```python
import torch

def _softmax(x, axis=-1):
    return torch.softmax(x, dim=axis)

def _gelu(x):
    return torch.nn.functional.gelu(x, approximate='tanh')

def _silu(x):
    return torch.nn.functional.silu(x)

def _sigmoid(x):
    return torch.sigmoid(x)

def _layernorm(x, axis=-1, eps=1e-05):
    m = x.mean(dim=axis, keepdim=True)
    v = x.var(dim=axis, keepdim=True, unbiased=False)
    return (x - m) / torch.sqrt(v + eps)

def _scatter_add(tgt, idx, src, axis=0):
    return tgt.clone().index_add_(axis, idx, src)

def _segment_sum(src, seg, n):
    out = torch.zeros((n,) + src.shape[1:], dtype=src.dtype)
    return out.index_add_(0, seg, src)

def _pad(x, pw):
    flat = tuple((v for pair in reversed(pw) for v in pair))
    return torch.nn.functional.pad(x, flat)
kernel_name = 'concat_heads__linear_attn_block__memory_aug_recurrent_mem_tr__prompt'

def setup_inputs():

    _w = lambda a: (lambda t: t.to(torch.bfloat16) if t.is_floating_point() else t)(torch.as_tensor(a))

    def _A_setup():
        B, S, D = (1, 2048, 448)
        return {'x': _w((lambda *s: torch.randn(*s, dtype=torch.bfloat16) * 0.05)(B, S, D)), 'wqkv': _w((lambda *s: torch.randn(*s, dtype=torch.bfloat16) * 1.6)(D, 3 * D)), 'wo': _w((lambda *s: torch.randn(*s, dtype=torch.bfloat16) * 0.1)(D, D))}
    _A_in = _A_setup()

    def _B_setup():
        B, S, Dm = (1, 2048, 448)
        H, Dh = (16, 256)
        M, seg = (8, 32)
        seg = min(seg, S)
        S = S // seg * seg
        return {'x': _w((lambda *s: torch.randn(*s, dtype=torch.bfloat16) * 0.05)(B, S, Dm)), 'mem0': _w((lambda *s: torch.randn(*s, dtype=torch.bfloat16) * 0.8)(B, M, Dm)), 'Wq': _w((lambda *s: torch.randn(*s, dtype=torch.bfloat16) * 1.6)(Dm, H, Dh) * Dm ** (-0.5)), 'Wk': _w((lambda *s: torch.randn(*s, dtype=torch.bfloat16) * 1.6)(Dm, H, Dh) * Dm ** (-0.5)), 'Wv': _w((lambda *s: torch.randn(*s, dtype=torch.bfloat16) * 0.8)(Dm, H, Dh) * Dm ** (-0.5)), 'Wo': _w((lambda *s: torch.randn(*s, dtype=torch.bfloat16) * 0.8)(H, Dh, Dm) * (H * Dh) ** (-0.5)), 'seg_len': seg}
    _B_in = _B_setup()
    return {'A_x': _A_in['x'], 'A_wqkv': _A_in['wqkv'], 'A_wo': _A_in['wo'], 'B_x': _B_in['x'], 'B_mem0': _B_in['mem0'], 'B_Wq': _B_in['Wq'], 'B_Wk': _B_in['Wk'], 'B_Wv': _B_in['Wv'], 'B_Wo': _B_in['Wo'], 'B_seg_len': _B_in['seg_len']}

def reference(A_x, A_wqkv, A_wo, B_x, B_mem0, B_Wq, B_Wk, B_Wv, B_Wo, B_seg_len):

    def _A_ref(x, wqkv, wo):
        B, S, D = x.shape
        H = 16
        Dh = D // H
        qkv = (lambda x, *d: x.permute(*d))((x @ wqkv).reshape(B, S, 3, H, Dh), 2, 0, 3, 1, 4)
        q, k, v = (qkv[0], qkv[1], qkv[2])
        phi = lambda t: torch.where(t > 0, t + 1, torch.exp(t)) + 1e-06
        pq, pk = (phi(q), phi(k))
        kv = torch.einsum('bhsd,bhse->bhde', pk, v)
        z = torch.einsum('bhsd->bhd', pk)
        num = torch.einsum('bhqd,bhde->bhqe', pq, kv)
        den = torch.einsum('bhqd,bhd->bhq', pq, z)[..., None] + 1e-06
        o = num / den
        return (lambda x, *d: x.permute(*d))(o, 0, 2, 1, 3).reshape(B, S, D) @ wo

    def _B_ref(x, mem0, Wq, Wk, Wv, Wo, seg_len):
        B, S, Dm = x.shape
        H, Dh = (Wq.shape[1], Wq.shape[2])
        M = mem0.shape[1]
        scale = Dh ** (-0.5)
        n_seg = S // seg_len
        L = M + seg_len
        idx = torch.arange(L)
        mask = (idx[:, None] < M) | (idx[:, None] >= idx[None, :])
        mem = mem0
        outs = []
        for s in range(n_seg):
            xs = x[:, s * seg_len:(s + 1) * seg_len, :].clone()
            h = torch.concatenate([mem, xs], axis=1)
            q = torch.einsum('btd,dhe->bhte', h, Wq)
            k = torch.einsum('btd,dhe->bhte', h, Wk)
            v = torch.einsum('btd,dhe->bhte', h, Wv)
            scores = torch.einsum('bhqe,bhke->bhqk', q, k) * scale
            scores = torch.where(mask[None, None], scores, -1000000000.0)
            p = _softmax(scores, axis=-1)
            o = torch.einsum('bhqk,bhke->bhqe', p, v)
            o = torch.einsum('bhte,hed->btd', o, Wo)
            mem = o[:, :M, :].clone()
            outs.append(o[:, M:, :])
        return torch.concatenate(outs, axis=1)
    a = _A_ref(A_x, A_wqkv, A_wo)
    b = _B_ref(B_x, B_mem0, B_Wq, B_Wk, B_Wv, B_Wo, B_seg_len)
    return torch.concatenate([a, b], axis=-1)
```

```python
import re

REG_RE = re.compile(r'^(-|abs\(|\|)?([vas])(?:(\d+)|\[(\d+):(\d+)\])\)?\|?$')

def regs_of(tok):
    tok = tok.strip()
    if tok in ('vcc',): return {('s', 106), ('s', 107)}
    if tok in ('vcc_lo',): return {('s', 106)}
    if tok in ('vcc_hi',): return {('s', 107)}
    if tok == 'exec': return {('s', 126), ('s', 127)}
    if tok == 'exec_lo': return {('s', 126)}
    if tok == 'exec_hi': return {('s', 127)}
    if tok == 'm0': return {('s', 124)}
    m = REG_RE.match(tok)
    if not m: return set()
    k = m.group(2)
    if m.group(3) is not None:
        return {(k, int(m.group(3)))}
    return {(k, i) for i in range(int(m.group(4)), int(m.group(5)) + 1)}

TRANS = ('v_exp_f32', 'v_log_f32', 'v_rcp_f32', 'v_rsq_f32', 'v_sqrt_f32', 'v_sin_f32', 'v_cos_f32', 'v_rcp_iflag_f32')
EXEC = {('s', 126), ('s', 127)}
VCC = {('s', 106), ('s', 107)}

class Ins:
    __slots__ = ('text', 'op', 'kind', 'w', 'r', 'a', 'b', 'c', 'passes', 'dpp', 'trans', 'perm', 'rdl', 'wide_data',
                 'target', 'uncond', 'ws', 'label', 'ldsdma', 'sread', 'comment')
    def __init__(self, text):
        self.text = text
        self.label = None; self.target = None; self.uncond = False
        self.w = set(); self.r = set(); self.a = set(); self.b = set(); self.c = set()
        self.passes = 0; self.dpp = False; self.trans = False; self.perm = False; self.rdl = False
        self.wide_data = set(); self.ws = 1; self.ldsdma = False; self.sread = set()
        t = text.split(';')[0].strip()
        if t.endswith(':'):
            self.kind = 'label'; self.label = t[:-1]; self.op = ''; self.ws = 0; return
        if t.startswith('.') or not t:
            self.kind = 'dir'; self.op = ''; self.ws = 0; return
        parts = t.split(None, 1)
        op = parts[0]; self.op = op
        rest = parts[1] if len(parts) > 1 else ''
        ops = []
        depth = 0; cur = ''
        for ch in rest:
            if ch in '[(': depth += 1
            if ch in '])': depth -= 1
            if ch == ',' and depth == 0:
                ops.append(cur.strip()); cur = ''
            else: cur += ch
        if cur.strip(): ops.append(cur.strip())
        mods = ''
        if ops:
            sp = ops[-1].split(None, 1)
            ops[-1] = sp[0]
            if len(sp) > 1: mods = sp[1]
        R = [regs_of(o) for o in ops]
        allr = lambda idx: set().union(*[R[i] for i in idx if i < len(R)]) if idx else set()
        n = len(ops)
        base = re.sub(r'_(e32|e64|dpp|sdwa)$', '', op)
        if op.startswith('v_mfma') or op.startswith('v_smfmac'):
            self.kind = 'mfma'
            self.passes = 8 if '32x32' in op else 4
            self.w = R[0]; self.a = R[1]; self.b = R[2]
            if op.startswith('v_smfmac'):
                self.c = R[0]; self.a = R[1] | R[3]
            else:
                self.c = R[3]
            self.r = self.a | self.b | self.c
        elif op.startswith('v_'):
            self.kind = 'valu'
            self.dpp = op.endswith('_dpp') or 'quad_perm' in mods or 'row_' in mods
            self.trans = base in TRANS
            if base.startswith('v_cmpx'):
                self.w = R[0] | EXEC; self.r = allr(range(1, n))
            elif base.startswith('v_cmp'):
                self.w = R[0]; self.r = allr(range(1, n))
            elif base.startswith('v_permlane') and 'swap' in base:
                self.perm = True; self.w = R[0] | R[1]; self.r = R[0] | R[1]
            elif base in ('v_readfirstlane_b32', 'v_readlane_b32'):
                self.rdl = True; self.w = R[0]; self.r = allr(range(1, n))
            elif base in ('v_add_co_u32', 'v_sub_co_u32', 'v_addc_co_u32', 'v_subb_co_u32', 'v_subrev_co_u32', 'v_mad_u64_u32', 'v_div_scale_f32'):
                self.w = R[0] | R[1]; self.r = allr(range(2, n))
            elif base == 'v_nop':
                pass
            else:
                self.w = R[0]; self.r = allr(range(1, n))
                if base.startswith('v_fmac') or base.startswith('v_pk_fmac') or base.startswith('v_dot2c') or self.dpp or base == 'v_writelane_b32':
                    self.r |= R[0]
                if base == 'v_div_fmas_f32': self.r |= VCC
            self.sread = {x for x in self.r if x[0] == 's'}
        elif op.startswith('ds_'):
            self.kind = 'ds'
            if op.startswith('ds_read') or op.startswith('ds_bpermute') or op.startswith('ds_permute') or op.startswith('ds_swizzle') or '_rtn' in op:
                self.w = R[0]; self.r = allr(range(1, n))
            else:
                self.r = allr(range(0, n))
        elif op.startswith('buffer_') or op.startswith('global_'):
            self.kind = 'vmem'
            if op in ('buffer_wbl2', 'buffer_inv'):
                pass
            elif 'load' in op:
                if ' lds' in (' ' + mods) or '_lds_' in op:
                    self.ldsdma = True; self.r = allr(range(0, n)) | {('s', 124)}
                else:
                    self.w = R[0]; self.r = allr(range(1, n))
            elif 'store' in op:
                self.r = allr(range(0, n))
                di = 0 if op.startswith('buffer_') else 1
                if 'x3' in op or 'x4' in op: self.wide_data = R[di]
            elif 'atomic' in op:
                self.r = allr(range(0, n))
                if 'sc0' in mods.split(): self.w = R[0]
            self.sread = {x for x in self.r if x[0] == 's'}
        elif op.startswith('s_'):
            self.kind = 'salu'
            if op == 's_nop':
                self.ws = int(ops[0], 0) + 1
            elif op.startswith('s_cbranch') or op == 's_branch':
                self.target = ops[0]; self.uncond = op == 's_branch'
            elif op == 's_endpgm':
                self.uncond = True
            elif op.startswith('s_cmp') or op.startswith('s_bitcmp') or op in ('s_waitcnt', 's_barrier', 's_sleep', 's_setprio'):
                self.r = allr(range(0, n))
            elif 'saveexec' in op:
                self.w = R[0] | EXEC; self.r = allr(range(1, n)) | EXEC
            else:
                self.w = R[0] if R else set(); self.r = allr(range(1, n))
        else:
            raise ValueError('unknown instruction: ' + text)

def need(p, c):
    n = 0
    vw = {x for x in p.w if x[0] != 's'}
    sw = {x for x in p.w if x[0] == 's'}
    if p.kind == 'valu':
        if c.kind == 'mfma':
            if vw & c.r: n = max(n, 2)
            if sw & EXEC: n = max(n, 4)
        if c.kind == 'valu':
            if c.dpp and (vw & c.r): n = max(n, 2)
            if c.dpp and (sw & EXEC): n = max(n, 5)
            if c.perm and (vw & c.r): n = max(n, 2)
            if c.perm and (sw & EXEC): n = max(n, 4)
            if c.rdl and (vw & c.r): n = max(n, 1)
            if c.rdl and (sw & EXEC): n = max(n, 4)
            if c.rdl and (sw & c.sread): n = max(n, 4)
            if p.trans and not c.trans and (vw & (c.r | c.w)): n = max(n, 1)
            if p.trans and c.trans and (vw & c.r): n = max(n, 1)
            if sw & c.sread: n = max(n, 4 if c.op.startswith('v_div_fmas') else 2)
        if c.kind == 'vmem' and (sw & c.sread): n = max(n, 5)
        if c.kind in ('vmem', 'ds') and p.trans and (vw & c.r): n = max(n, 1)
        if c.kind == 'salu' and (sw & c.r): n = max(n, 1)
    if p.kind == 'mfma':
        big = 12 if p.passes == 8 else 8
        if c.kind == 'mfma':
            if p.w & (c.a | c.b): n = max(n, big)
            if p.w & c.c:
                if not (p.w == c.c and p.passes == c.passes): n = max(n, 10 if p.passes == 8 else 6)
            elif p.w & c.w: n = max(n, big)
        elif c.kind in ('valu', 'vmem', 'ds'):
            if p.w & (c.r | c.w): n = max(n, big)
            if c.kind == 'valu' and (p.c & c.w): n = max(n, 7 if p.passes == 8 else 3)
    if p.kind == 'vmem' and p.wide_data:
        if p.wide_data & c.w: n = max(n, 2 if c.kind in ('valu', 'mfma') else 1)
    if p.kind == 'salu' and ('s', 124) in p.w and c.ldsdma: n = max(n, 1)
    return n

class Asm:
    def __init__(self):
        self.ins = []
        self.uid = 0
    def __call__(self, text):
        for line in text.split('\n'):
            line = line.strip()
            if line: self.ins.append(Ins(line))
    def label(self, name): self(name + ':')
    def newlabel(self, stem='L'):
        self.uid += 1
        return '%s_%d' % (stem, self.uid)
    def pad(self):
        ins = self.ins
        out = []
        lab = {x.label: i for i, x in enumerate(ins) if x.kind == 'label'}
        srcs = {}
        for i, x in enumerate(ins):
            if x.target is not None:
                if x.target not in lab: raise ValueError('unknown label ' + x.target)
                srcs.setdefault(lab[x.target], []).append(i)
        extra = [0] * len(ins)
        MAXD = 13
        def look(c, i, d, seen, dm=None):
            worst = 0
            while i >= 0 and d < MAXD:
                key = (i, d, dm)
                if key in seen: return worst
                seen.add(key)
                p = ins[i]
                if p.kind == 'label':
                    for s in srcs.get(i, []):
                        worst = max(worst, look2(c, s, d, seen, dm))
                    i -= 1
                    continue
                if p.kind == 'dir':
                    i -= 1; continue
                if p.uncond: return worst
                k = need(p, c)
                dd = d
                if p.kind == 'mfma':
                    if dm is not None: dd = max(d, dm)
                    dm = (d if dm is None else dm) + 4
                if k > dd: worst = max(worst, k - dd)
                d += p.ws + extra[i]
                i -= 1
            return worst
        def look2(c, s, d, seen, dm):
            d2 = d + 1 + extra[s]
            return look(c, s - 1, d2, seen, dm)
        for i, c in enumerate(ins):
            if c.kind in ('label', 'dir'): continue
            if c.kind == 'salu' and not c.r: continue
            extra[i] = look(c, i - 1, 0, set())
        npad = 0
        for i, c in enumerate(ins):
            e = extra[i]
            while e > 0:
                k = min(e, 16)
                out.append('    s_nop %d' % (k - 1)); e -= k; npad += 1
            if c.kind == 'label': out.append(c.text)
            elif c.kind == 'dir': out.append(c.text)
            else: out.append('    ' + c.text)
        self.npad = npad
        return '\n'.join(out) + '\n'

def v(i, n=1): return 'v%d' % i if n == 1 else 'v[%d:%d]' % (i, i + n - 1)
def a(i, n=1): return 'a%d' % i if n == 1 else 'a[%d:%d]' % (i, i + n - 1)
def s(i, n=1): return 's%d' % i if n == 1 else 's[%d:%d]' % (i, i + n - 1)
def u(i, n=1):
    if i < 256:
        assert i + n <= 256
        return v(i, n)
    return a(i - 256, n)
```

```python
import sys
from asmgen import *
from layout import *

NAME = 'concat_heads__linear_attn_block__memory_aug_recurrent_mem_tr__prompt'
HDR = open('cdna_kernels/%s.s.ref' % NAME).read().split('; Override launch')[0]

S_WS, S_BX, S_M0, S_DBG, S_OUT = 8, 12, 16, 20, 24
S_WQ, S_WK, S_WV, S_WO, S_AX, S_AW, S_AO = 28, 32, 36, 40, 44, 48, 52
sWAVE, sXCC, sROLE, sSTEP, sSPIN = 60, 61, 62, 63, 64
sT0, sT1, sT2, sT3, sT4, sT5 = 65, 66, 67, 68, 69, 70
sMEMRD, sPWR, sPRST, sXOFF, sPRD, sMEMWR, sMEMRST, sUOFF, sHM, sHZ, sXPF = 71, 72, 73, 74, 75, 76, 77, 78, 79, 80, 81
sHMRD, sHPRD, sHWR, sSTEP1 = 82, 83, 84, 85
sXLDS, sBTOG2 = 86, 87

L_MEM = 0
L_YT = 8192
L_SP = 16384
L_OP = 16384
L_DUMP = 20480
L_TICKET = 24576
L_XS = 32768
LDS_BYTES = 160 * 1024

SPIN_MAX = 4000000
PRM = dict(xpos=8, xgap=0, hn=15, nb1=4, vsl=6, uev=2, xev=3, xb=1, xsl=0, upf=0, rot=0, f0b=1, vdel=2, sdel=4, pdel=0, hs=7, hd=3, sd=1, vd=1, pd=1, s_sleep=0, v_sleep=0, p_sleep=0)

def srd(A, d, ptr_s, nbytes):
    A('s_mov_b32 %s, %s' % (s(d), s(ptr_s)))
    A('s_and_b32 %s, %s, 0xffff' % (s(d + 1), s(ptr_s + 1)))
    A('s_mov_b32 %s, %d' % (s(d + 2), nbytes))
    A('s_mov_b32 %s, 0x00020000' % s(d + 3))

def entry(A):
    A('s_cmp_ge_u32 s2, 256')
    A('s_cbranch_scc1 L_exit')
    A('s_load_dwordx16 s[64:79], s[0:1], 0')
    A('s_load_dwordx8 s[80:87], s[0:1], 64')
    A('s_load_dwordx2 s[88:89], s[0:1], 96')
    A('v_lshrrev_b32 v1, 6, v0')
    A('v_and_b32 v0, 63, v0')
    A('s_getreg_b32 %s, hwreg(HW_REG_XCC_ID)' % s(sXCC))
    A('v_readfirstlane_b32 %s, v1' % s(sWAVE))
    A('s_and_b32 %s, %s, 7' % (s(sXCC), s(sXCC)))
    A('s_waitcnt lgkmcnt(0)')
    srd(A, S_AX, 64, 1835008)
    srd(A, S_AW, 66, 448 * 1344 * 2)
    srd(A, S_AO, 68, 448 * 448 * 2)
    srd(A, S_BX, 70, 1835008)
    srd(A, S_M0, 72, 7168)
    srd(A, S_WQ, 74, 3670016)
    srd(A, S_WK, 76, 3670016)
    srd(A, S_WV, 78, 3670016)
    srd(A, S_WO, 80, 3670016)
    srd(A, S_OUT, 84, 2048 * 896 * 2)
    srd(A, S_DBG, 86, 256)
    srd(A, S_WS, 88, WS_BYTES)
    A('v_mov_b32 v2, %d' % L_TICKET)
    A('s_cmp_lg_u32 %s, 0' % s(sWAVE))
    A('s_cbranch_scc1 L_tk_wait')
    A('s_lshl_b32 %s, %s, 2' % (s(sT0), s(sXCC)))
    A('v_mov_b32 v3, %s' % s(sT0))
    A('v_mov_b32 v4, 1')
    A('s_mov_b64 exec, 1')
    A('buffer_atomic_add v4, v3, %s, 0 offen sc0' % s(S_DBG, 4))
    A('s_waitcnt vmcnt(0)')
    A('ds_write_b32 v2, v4')
    A('s_mov_b64 exec, -1')
    A('s_waitcnt lgkmcnt(0)')
    A.label('L_tk_wait')
    A('s_barrier')
    A('ds_read_b32 v3, v2')
    A('s_waitcnt lgkmcnt(0)')
    A('v_readfirstlane_b32 %s, v3' % s(sROLE))
    A('s_cmp_ge_u32 %s, 32' % s(sROLE))
    A('s_cbranch_scc1 L_exit')

STUBS = []
def spin_check(A, lbl_loop, pre=()):
    st = A.newlabel('L_retry')
    A('s_cbranch_vccnz %s' % st)
    STUBS.append((st, lbl_loop, list(pre)))
def emit_stubs(A):
    for st, l, pre in STUBS:
        A.label(st)
        for x in pre: A(x)
        A('s_sub_u32 %s, %s, 1' % (s(sSPIN), s(sSPIN)))
        A('s_cbranch_scc0 %s' % l)
        A('s_branch L_exit')
    del STUBS[:]

def lexpr(A, dst, lane, terms, base=0, tmp=None):
    A('v_mov_b32 %s, %s' % (dst, base))
    for lo, n, mul in terms:
        A('v_bfe_u32 %s, %s, %d, %d' % (tmp, lane, lo, n))
        if mul & (mul - 1) == 0:
            A('v_lshl_add_u32 %s, %s, %d, %s' % (dst, tmp, mul.bit_length() - 1, dst))
        else:
            A('v_mul_u32_u24 %s, %d, %s' % (tmp, mul, tmp))
            A('v_add_u32 %s, %s, %s' % (dst, dst, tmp))

class G: pass
G.stamps = False
G.dev_nowait = False
```

```python
WS_BYTES = 268435456
WIMG   = 0x0000000
WCU    = 401408
U_OFF  = 0x1000000
YX_OFF = 0x2C00000
HZ_OFF = 0x4800000
HZ_STEP = 114688
HM_OFF = 0x4F00000
HM_STEP = 7168
PP_OFF = 0x5000000
MB_MEM = 0x5400000
MB_P   = 0x5410000
HINT_M = 0x5420000
HINT_P = 0x5422000
FLAGS  = 0x5430000
STAMPS = 0x5500000
XF_OFF = 0x5600000
XG_OFF = 0x5800000
PA_OFF = 0x5A00000
KVP_OFF = PA_OFF
OI_OFF = PA_OFF + 0x100000
FLG_W1 = FLAGS
FLG_W2 = FLAGS + 0x4000
FLG_HM = FLAGS + 0x5000
FLG_Z  = FLAGS + 0x5800
FLG_P  = FLAGS + 0x6000
FLG_KV = FLAGS + 0x8000
FLG_O  = FLAGS + 0xA000
D_GRP, D_XG, D_INIT = 8, 9, 10
OOB    = 0x7ffffff0
SCALE_LOG2E = (1.0 / 16.0) * 1.4426950408889634

def col_of_pos(p):
    b, pp = divmod(p, 28)
    return 28 * b + (2 * pp if pp < 14 else 2 * (pp - 14) + 1)
```

```python
from common import *
sUOK = sHZ

ACC, MF = 0, 28
vIDX = 56
vK = 57
vYW = 64
vT = 65
vLANE = 255
vTRL, vB, vSPA, vSPB, vSPR, vPST, vX = 67, 68, 69, 70, 71, 72, 73
SA, SB = 76, 80
AF0 = 84
XB = 88
vU, vZB, vPL, vPL2, vOPW, vOPR, vMST, vZR, vZS0, vZS1, vXPF, vDUMMY = 72, 73, 74, 75, 76, 77, 78, 79, 80, 81, 82, 83
UB = 88
vSENT = 27
WBASE_V = 120

def W(r, k):
    t = r * 7 + k
    if t < 32: return a(t * 8, 8)
    return v(WBASE_V + (t - 32) * 8, 8)
def Wh(r, k, hi):
    t = r * 7 + k
    if t < 32: return a(t * 8 + 4 * hi, 4)
    return v(WBASE_V + (t - 32) * 8 + 4 * hi, 4)

def hint_wait(A, soff, sval, pw=0, delay=0, nent=16):
    l = A.newlabel('L_hint'); e = A.newlabel('L_hint_done')
    D = PRM['hd']
    A('s_cmp_lg_u32 %s, %d' % (s(sWAVE), pw))
    A('s_cbranch_scc1 %s' % e)
    A('v_mbcnt_lo_u32_b32 %s, -1, 0' % v(vT + 1))
    if nent == 64: A('v_mbcnt_hi_u32_b32 %s, -1, %s' % (v(vT + 1), v(vT + 1)))
    else: A('v_and_b32 %s, 15, %s' % (v(vT + 1), v(vT + 1)))
    A('v_lshlrev_b32 %s, 2, %s' % (v(vT + 1), v(vT + 1)))
    ld = 'buffer_load_dword %s, %s, %s, %s offen sc1' % (v(vT), v(vT + 1), s(S_WS, 4), s(soff))
    A('s_waitcnt vmcnt(0)')
    for i in range(D - 1):
        A(ld); A('s_nop %d' % PRM['hn'])
    A.label(l)
    A(ld)
    A('s_waitcnt vmcnt(%d)' % (D - 1))
    A('v_cmp_gt_u32 vcc, %s, %s' % (s(sval), v(vT)))
    spin_check(A, l)
    for i in range(delay): A('s_nop 3')
    A.label(e)
    A('s_barrier')

def poll(A, ld, regs, depth, sleep, extra_wait='', post=()):
    l = A.newlabel('L_poll')
    if sleep: A('s_sleep %d' % sleep)
    for x in ld: A(x)
    for x in post: A(x)
    nst = len([x for x in post if x.startswith('buffer_')])
    if nst:
        A('s_waitcnt vmcnt(%d)%s' % (nst, extra_wait))
        l2 = A.newlabel('L_poll2')
        A.label(l2)
        ld = list(ld) + ['s_waitcnt vmcnt(0)']
        l = l2
    else:
        A.label(l)
        A('s_waitcnt vmcnt(0)%s' % extra_wait)
    r = list(regs)
    t0, t1 = v(vT), v(vT + 1)
    A('v_max3_u32 %s, %s, %s, %s' % (t0, v(r[0]), v(r[1]), v(r[2])))
    A('v_max3_u32 %s, %s, %s, %s' % (t1, v(r[3]), v(r[4]), v(r[5])))
    A('v_max3_u32 %s, %s, %s, %s' % (t0, t0, v(r[6]), v(r[7])))
    if len(r) > 8: A('v_max3_u32 %s, %s, %s, %s' % (t1, t1, v(r[8]), v(r[9])))
    A('v_max_u32 %s, %s, %s' % (t0, t0, t1))
    A('v_cmp_eq_u32 vcc, -1, %s' % t0)
    spin_check(A, l, ld)

def rot_base(A):
    A('s_lshl_b32 %s, %s, 1' % (s(sT0), s(sWAVE)))
    if PRM['rot']:
        A('s_add_u32 %s, %s, %s' % (s(sT0), s(sT0), s(sROLE)))
        A('s_mul_i32 %s, %s, 37' % (s(sT1), s(sT0)))
        A('s_lshr_b32 %s, %s, 8' % (s(sT1), s(sT1)))
        A('s_mul_i32 %s, %s, 7' % (s(sT1), s(sT1)))
        A('s_sub_u32 %s, %s, %s' % (s(sT0), s(sT0), s(sT1)))

def rec_common_setup(A):
    A('v_mov_b32 %s, v0' % v(vLANE))
    A('s_mov_b32 %s, %d' % (s(sSPIN), SPIN_MAX))
    A('v_mov_b32 %s, -1' % v(vSENT))
    A('s_lshl_b32 %s, %s, 8' % (s(sHMRD), s(sROLE)))
    A('s_add_u32 %s, %s, %d' % (s(sHPRD), s(sHMRD), HINT_P - 16 * 256))
    A('s_add_u32 %s, %s, %d' % (s(sHMRD), s(sHMRD), HINT_M))
    A('v_and_b32 v1, 2, v0')
    A('v_cmp_eq_u32 vcc, 0, v1')
    A('v_mov_b32 v2, 0xeeeeeeee')
    A('v_mov_b32 v3, 0x44444444')
    A('v_cndmask_b32 %s, v2, v3, vcc' % v(vIDX))
    A('v_lshlrev_b32 v1, 4, v0')
    rot_base(A)
    for k in range(7):
        A('s_add_u32 %s, %s, %d' % (s(sT1), s(sT0), k))
        A('s_sub_u32 %s, %s, 7' % (s(sT2), s(sT1)))
        A('s_cmp_ge_u32 %s, 7' % s(sT1))
        A('s_cselect_b32 %s, %s, %s' % (s(sT1), s(sT2), s(sT1)))
        A('s_lshl_b32 %s, %s, 10' % (s(sT1), s(sT1)))
        A('v_add_u32 %s, %s, v1' % (v(vK + k), s(sT1)))

def build_xg(A):
    lexpr(A, 'v1', 'v0', [(2, 2, 8 * 896), (0, 2, 896), (4, 2, 16)], 0, 'v2')
    A('s_lshl_b32 %s, %s, 1' % (s(sT0), s(sROLE)))
    A('s_lshr_b32 %s, %s, 1' % (s(sT1), s(sWAVE)))
    A('s_add_u32 %s, %s, %s' % (s(sT0), s(sT0), s(sT1)))
    A('s_mul_i32 %s, %s, 28672' % (s(sT0), s(sT0)))
    A('s_and_b32 %s, %s, 1' % (s(sT1), s(sWAVE)))
    A('s_mul_i32 %s, %s, %d' % (s(sT2), s(sT1), 4 * 896))
    A('s_add_u32 %s, %s, %s' % (s(sT2), s(sT2), s(sT0)))
    for ks in range(14):
        A('buffer_load_dwordx4 %s, v1, %s, %s offen offset:%d' % (v(128 + 4 * ks, 4), s(S_BX, 4), s(sT2), ks * 64))
    A('s_mul_i32 %s, %s, 14336' % (s(sT1), s(sT1)))
    A('s_add_u32 %s, %s, %s' % (s(sT0), s(sT0), s(sT1)))
    A('s_add_u32 %s, %s, %d' % (s(sT0), s(sT0), XG_OFF))
    A('v_lshlrev_b32 v3, 4, v0')
    for ks in range(14):
        A('s_waitcnt vmcnt(13)')
        A('buffer_store_dwordx4 %s, v3, %s, %s offen sc1' % (v(128 + 4 * ks, 4), s(S_WS, 4), s(sT0)))
        A('s_add_u32 %s, %s, 1024' % (s(sT0), s(sT0)))
    dbg_arrive(A, D_XG)

def dbg_arrive(A, idx):
    A('s_waitcnt vmcnt(0) lgkmcnt(0)')
    A('s_barrier')
    l = A.newlabel('L_gb')
    A('s_cmp_lg_u32 %s, 0' % s(sWAVE))
    A('s_cbranch_scc1 %s' % l)
    A('v_mov_b32 v1, %d' % (idx * 4))
    A('v_mov_b32 v2, 1')
    A('s_mov_b64 exec, 1')
    A('buffer_atomic_add v2, v1, %s, 0 offen' % s(S_DBG, 4))
    A('s_mov_b64 exec, -1')
    A.label(l)

def wait_weights(A):
    if G.dev_nowait: return
    l = A.newlabel('L_ww'); l2 = A.newlabel('L_ww2'); e = A.newlabel('L_ww_done')
    A('s_cmp_lg_u32 %s, 0' % s(sWAVE))
    A('s_cbranch_scc1 %s' % e)
    A('v_mov_b32 v2, %d' % (D_INIT * 4))
    A.label(l)
    A('buffer_load_dword v3, v2, %s, 0 offen sc1' % s(S_DBG, 4))
    A('s_waitcnt vmcnt(0)')
    A('v_cmp_gt_u32 vcc, 224, v3')
    spin_check(A, l, ['s_sleep 2'])
    A('s_mov_b32 %s, %d' % (s(sT0), FLG_W1))
    A.label(l2)
    A('buffer_load_dword v3, v8, %s, %s offen sc1' % (s(S_WS, 4), s(sT0)))
    A('s_waitcnt vmcnt(0)')
    A('v_cmp_eq_u32 vcc, 0, v3')
    spin_check(A, l2, ['s_sleep 1'])
    A.label(e)
    A('s_barrier')

def build_xf(A):
    A('v_and_b32 v1, 15, v0')
    A('v_mul_u32_u24 v1, 1792, v1')
    A('v_lshrrev_b32 v2, 5, v0')
    A('v_mul_u32_u24 v2, 224, v2')
    A('v_add_u32 v1, v1, v2')
    A('v_bfe_u32 v2, v0, 4, 1')
    A('v_lshl_add_u32 v1, v2, 4, v1')
    A('s_and_b32 %s, %s, 1' % (s(sT0), s(sWAVE)))
    A('s_mul_i32 %s, %s, 896' % (s(sT0), s(sT0)))
    A('s_lshr_b32 %s, %s, 1' % (s(sT1), s(sWAVE)))
    A('s_lshl_b32 %s, %s, 7' % (s(sT1), s(sT1)))
    A('s_add_u32 %s, %s, %s' % (s(sT0), s(sT0), s(sT1)))
    A('v_add_u32 v1, %s, v1' % s(sT0))
    A('s_mul_i32 %s, %s, %d' % (s(sT0), s(sROLE), 2 * 28672))
    A('s_add_u32 %s, %s, 28672' % (s(sT1), s(sT0)))
    for g in range(2):
        for j in range(4):
            for hi in range(2):
                A('buffer_load_dwordx4 %s, v1, %s, %s offen offset:%d' % (
                    v(128 + g * 32 + j * 8 + hi * 4, 4), s(S_BX, 4), s(sT0 + g), j * 32 + hi * 448))
    A('v_lshlrev_b32 v3, 4, v0')
    A('s_lshl_b32 %s, %s, 13' % (s(sT2), s(sWAVE)))
    A('v_add_u32 v3, %s, v3' % s(sT2))
    A('s_lshl_b32 %s, %s, 16' % (s(sT2), s(sROLE)))
    A('s_add_u32 %s, %s, %d' % (s(sT2), s(sT2), XF_OFF))
    A('s_waitcnt vmcnt(0)')
    for g in range(2):
        for k in range(8):
            A('s_add_u32 %s, %s, %d' % (s(sT3), s(sT2), g * 32768 + (k >> 2) * 4096))
            A('buffer_store_dwordx4 %s, v3, %s, %s offen offset:%d' % (v(128 + g * 32 + k * 4, 4), s(S_WS, 4), s(sT3), (k & 3) * 1024))

def rec_load_weights(A):
    A('v_lshlrev_b32 v1, 4, %s' % v(vLANE))
    A('s_mul_i32 %s, %s, %d' % (s(sT0), s(sWAVE), 112 * 64))
    A('v_add_u32 v1, %s, v1' % s(sT0))
    A('v_add_u32 v2, 4096, v1')
    A('s_mul_i32 %s, %s, %d' % (s(sT3), s(sROLE), WCU))
    rot_base(A)
    n = 0
    for k in range(7):
        A('s_add_u32 %s, %s, %d' % (s(sT1), s(sT0), k))
        A('s_sub_u32 %s, %s, 7' % (s(sT2), s(sT1)))
        A('s_cmp_ge_u32 %s, 7' % s(sT1))
        A('s_cselect_b32 %s, %s, %s' % (s(sT1), s(sT2), s(sT1)))
        A('s_mul_i32 %s, %s, %d' % (s(sT1), s(sT1), 2 * 28672))
        A('s_add_u32 %s, %s, %s' % (s(sT1), s(sT1), s(sT3)))
        A('s_add_u32 %s, %s, 28672' % (s(sT2), s(sT1)))
        for hi in range(2):
            for r in range(7):
                A('buffer_load_dwordx4 %s, %s, %s, %s offen offset:%d sc1' % (Wh(r, k, hi), 'v1' if r < 4 else 'v2', s(S_WS, 4), s(sT1 + hi), (r & 3) * 1024))
                n += 1
                if n % 14 == 0 and n >= 42: A('s_waitcnt vmcnt(40)')
    A('s_waitcnt vmcnt(0)')

def group_barrier_arrive(A): dbg_arrive(A, D_GRP)

def group_barrier_wait(A):
    l = A.newlabel('L_gw')
    A('v_mov_b32 %s, 32' % v(vT))
    A.label(l)
    A('buffer_load_dword %s, %s, %s, 0 offen sc1' % (v(vT + 1), v(vT), s(S_DBG, 4)))
    A('s_waitcnt vmcnt(0)')
    A('v_cmp_ne_u32 vcc, 32, %s' % v(vT + 1))
    spin_check(A, l)

def hint_send(A, t0, t1):
    A('buffer_store_dword %s, %s, %s, %s offen' % (v(t0), v(t1), s(S_WS, 4), s(sHWR)))
def hint_setup(A, nrep, t0, t1, allw=False):
    A('v_lshlrev_b32 v1, 8, %s' % v(vLANE))
    A('v_mov_b32 v2, %d' % OOB)
    A('s_cmp_eq_u32 %s, 3' % s(sWAVE))
    A('s_cselect_b32 %s, %d, %d' % (s(sT0), nrep, nrep if allw else 0))
    A('v_cmp_gt_u32 vcc, %s, %s' % (s(sT0), v(vLANE)))
    A('v_cndmask_b32 %s, v2, v1, vcc' % v(t1))
    A('v_mov_b32 %s, 0' % v(t0))
    hint_send(A, t0, t1)

def zero_acc(): return ['v_mov_b32 %s, 0' % v(ACC + i) for i in range(28)]

def check4(A, r, lbl, pre):
    t0 = v(vT)
    A('v_max3_u32 %s, %s, %s, %s' % (t0, v(r), v(r + 1), v(r + 2)))
    A('v_max_u32 %s, %s, %s' % (t0, t0, v(r + 3)))
    A('v_cmp_eq_u32 vcc, -1, %s' % t0)
    spin_check(A, lbl, pre)

def epilogue(r):
    c = ACC + 4 * r
    return ['v_add_f32 %s, %s, %s' % (v(c), v(c), v(c + 2)),
            'v_add_f32 %s, %s, %s' % (v(c + 1), v(c + 1), v(c + 3)),
            'v_cvt_pk_bf16_f32 %s, %s, %s' % (v(c), v(c), v(c + 1)),
            'ds_write_b32 %s, %s offset:%d' % (v(vYW), v(c), r * 256)]

def smf(d, aa, bb, k32=False):
    return 'v_smfmac_f32_16x16x%d_bf16 %s, %s, %s, %s' % (32 if k32 else 64, d, aa, bb, v(vIDX))

def main_phase(A, pw, delay, post, vm, extra, every, early_vm=False):
    if pw is not None: hint_wait(A, sHMRD, sSTEP, pw, delay, 64)
    stamp(A, 1)
    ld = ['buffer_load_dwordx4 %s, %s, %s, %s offen sc1' % (v(MF + 4 * k, 4), v(vK + k), s(S_WS, 4), s(sMEMRD)) for k in range(2)]
    A(ld[0])
    if PRM['f0b'] and pw is not None: A('s_barrier')
    A(ld[1])
    for x in post: A(x)
    nst = len([x for x in post if x.startswith('buffer_')])
    A('s_waitcnt vmcnt(%d)' % (nst + 1))
    l0 = A.newlabel('L_pm0'); A.label(l0)
    check4(A, MF, l0, [ld[0], 's_waitcnt vmcnt(0)'])
    stamp(A, 2)
    A('ds_write_b128 %s, %s offset:%d' % (v(vK), v(MF, 4), L_MEM))
    vm = list(vm); cnt = [0]
    def vmtick():
        cnt[0] += 1
        if vm and cnt[0] % every == 0:
            for x in vm.pop(0): A(x)
    for r in range(7):
        A(smf(v(ACC + 4 * r, 4), v(MF, 4), W(r, 0)))
        if r >= 2 and early_vm: vmtick()
        if r == 1:
            A('s_waitcnt vmcnt(%d)' % nst)
            l1 = A.newlabel('L_pm1'); A.label(l1)
            check4(A, MF + 4, l1, [ld[1], 's_waitcnt vmcnt(0)'])
            A('ds_write_b128 %s, %s offset:%d' % (v(vK + 1), v(MF + 4, 4), L_MEM))
    for r in range(7):
        A(smf(v(ACC + 4 * r, 4), v(MF + 4, 4), W(r, 1)))
        if r == 0:
            A('s_waitcnt lgkmcnt(0)')
            A('s_barrier')
            stamp(A, 3)
        if r <= 2:
            ks = {0: [2, 3], 1: [4, 5], 2: [6]}[r]
            for k in ks: A('ds_read_b128 %s, %s offset:%d' % (v(MF + 4 * k, 4), v(vK + k), L_MEM))
        else:
            for x in extra.get(r - 7, []): A(x)
            vmtick()
    q = []; qd = []
    i = 0
    for r in range(7):
        for k in range(2, 7):
            if r == 0: A('s_waitcnt lgkmcnt(%d)' % min(15, PRE_DS[0] + 6 - k))
            A(smf(v(ACC + 4 * r, 4), v(MF + 4 * k, 4), W(r, k)))
            if k == 3 and r > 0: q += epilogue(r - 1)
            if q: A(q.pop(0))
            for x in extra.get(i, []): A(x)
            vmtick()
            i += 1
    stamp(A, 4)
    for x in q: A(x)
    assert not vm, len(vm)
PRE_DS = [0]

sTMB = 28
def stampi(idx):
    return ['s_memtime %s' % s(sTMB + 2 * idx, 2)] if G.stamps else []
def stamp(A, idx):
    for x in stampi(idx): A(x)
    if G.stamps and idx == 0: A('s_memrealtime %s' % s(sTMB + 2 * 10, 2))
def stamp_flush(A, n):
    if not G.stamps: return
    A('s_waitcnt lgkmcnt(0)')
    A('s_lshl_b32 %s, %s, 6' % (s(sT5), s(sSTEP)))
    A('s_add_u32 %s, %s, %s' % (s(sT5), s(sT5), s(sSTB)))
    A('v_mbcnt_lo_u32_b32 %s, -1, 0' % v(vT + 1))
    A('v_lshlrev_b32 %s, 2, %s' % (v(vT + 1), v(vT + 1)))
    for i in range(n):
        A('v_writelane_b32 %s, %s, %d' % (v(vT), s(sTMB + 2 * i), i))
    A('s_mov_b64 exec, 0xffff')
    A('buffer_store_dword %s, %s, %s, %s offen' % (v(vT), v(vT + 1), s(S_WS, 4), s(sT5)))
    A('s_mov_b64 exec, -1')

sSTB = 92
def stamp_setup(A):
    if not G.stamps: return
    A('s_lshl_b32 %s, %s, 2' % (s(sT0), s(sROLE)))
    A('s_add_u32 %s, %s, %s' % (s(sT0), s(sT0), s(sWAVE)))
    A('s_lshl_b32 %s, %s, 12' % (s(sT0), s(sT0)))
    A('s_add_u32 %s, %s, %d' % (s(sSTB), s(sT0), STAMPS))

def score_role(A):
    A.label('L_score')
    rec_common_setup(A)
    build_xg(A)
    build_xf(A)
    stamp_setup(A)
    L = v(vLANE)
    A('s_mul_i32 %s, %s, 1792' % (s(sT0), s(sWAVE)))
    A('s_add_u32 %s, %s, %d' % (s(sT0), s(sT0), L_YT))
    A('v_bfe_u32 v1, %s, 2, 2' % L)
    A('v_lshlrev_b32 v1, 6, v1')
    A('v_and_b32 v2, 1, %s' % L)
    A('v_lshl_add_u32 v1, v2, 5, v1')
    A('v_lshrrev_b32 v2, 4, %s' % L)
    A('v_lshl_add_u32 v1, v2, 3, v1')
    A('v_bfe_u32 v2, %s, 1, 1' % L)
    A('v_lshl_add_u32 v1, v2, 2, v1')
    A('v_add_u32 %s, %s, v1' % (v(vYW), s(sT0)))
    A('v_lshrrev_b32 v1, 4, %s' % L)
    A('v_mul_u32_u24 v1, 1792, v1')
    A('v_and_b32 v2, 15, %s' % L)
    A('v_lshl_add_u32 v1, v2, 3, v1')
    A('v_add_u32 %s, %d, v1' % (v(vTRL), L_YT))
    A('v_lshrrev_b32 v1, 5, %s' % L)
    A('v_mul_u32_u24 v1, 1792, v1')
    A('v_bfe_u32 v2, %s, 4, 1' % L)
    A('v_lshl_add_u32 v1, v2, 5, v1')
    A('v_bfe_u32 v2, %s, 1, 2' % L)
    A('v_lshl_add_u32 v1, v2, 6, v1')
    A('v_and_b32 v2, 1, %s' % L)
    A('v_lshl_add_u32 %s, v2, 4, v1' % v(vB))
    A('v_lshlrev_b32 v1, 4, %s' % L)
    A('s_lshl_b32 %s, %s, 13' % (s(sT0), s(sWAVE)))
    A('v_add_u32 %s, %s, v1' % (v(vX), s(sT0)))
    A('v_lshrrev_b32 v1, 4, %s' % L)
    A('v_lshlrev_b32 v1, 9, v1')
    A('v_bfe_u32 v2, %s, 3, 1' % L)
    A('v_lshl_add_u32 v3, v2, 7, v1')
    A('v_and_b32 v2, 1, %s' % L)
    A('v_lshl_add_u32 v3, v2, 6, v3')
    A('v_bfe_u32 v2, %s, 1, 2' % L)
    A('v_lshl_add_u32 v3, v2, 4, v3')
    A('v_add_u32 v5, %d, v3' % (L_DUMP - L_SP))
    A('s_and_b32 %s, %s, 1' % (s(sT0), s(sWAVE)))
    A('s_lshl_b32 %s, %s, 2' % (s(sT1), s(sT0)))
    A('v_add_u32 v3, %s, v3' % s(sT1))
    A('v_bfe_u32 v2, %s, 1, 1' % L)
    A('v_lshl_add_u32 v1, v2, 5, v1')
    A('v_bfe_u32 v2, %s, 2, 1' % L)
    A('v_lshl_add_u32 v1, v2, 4, v1')
    A('v_and_b32 v2, 1, %s' % L)
    A('v_lshl_add_u32 v1, v2, 2, v1')
    A('v_add_u32 v1, 256, v1')
    A('v_and_b32 v2, 8, %s' % L)
    A('v_or_b32 v2, %s, v2' % s(sT0))
    A('v_cmp_eq_u32 vcc, 0, v2')
    A('v_cndmask_b32 v1, v5, v1, vcc')
    A('s_cmp_lt_u32 %s, 2' % s(sWAVE))
    A('s_cselect_b64 vcc, -1, 0')
    A('v_cndmask_b32 %s, v1, v3, vcc' % v(vSPA))
    A('v_cndmask_b32 %s, v3, v1, vcc' % v(vSPB))
    A('v_add_u32 %s, %d, %s' % (v(vSPA), L_SP, v(vSPA)))
    A('v_add_u32 %s, %d, %s' % (v(vSPB), L_SP + 2048, v(vSPB)))
    A('v_and_b32 v1, 31, %s' % L)
    A('v_lshlrev_b32 v1, 4, v1')
    A('v_lshrrev_b32 v2, 5, %s' % L)
    A('v_lshl_add_u32 v1, v2, 3, v1')
    A('s_lshl_b32 %s, %s, 9' % (s(sT0), s(sWAVE)))
    A('s_add_u32 %s, %s, %d' % (s(sT0), s(sT0), L_SP))
    A('v_add_u32 %s, %s, v1' % (v(vSPR), s(sT0)))
    A('v_mov_b32 v4, 0xff800000')
    A('v_mov_b32 v5, 0xff800000')
    A('ds_write_b64 %s, v[4:5]' % v(vSPR))
    A('ds_write_b64 %s, v[4:5] offset:2048' % v(vSPR))
    A('v_lshrrev_b32 v1, 5, %s' % L)
    A('s_lshl_b32 %s, %s, 2' % (s(sT0), s(sWAVE)))
    A('v_add_u32 v1, %s, v1' % s(sT0))
    A('v_bfe_u32 v2, %s, 3, 1' % L)
    A('v_lshlrev_b32 v2, 8, v2')
    A('v_lshl_add_u32 v2, v1, 4, v2')
    A('v_bfe_u32 v3, %s, 2, 1' % L)
    A('v_lshl_add_u32 v2, v3, 5, v2')
    A('v_and_b32 v3, 3, %s' % L)
    A('v_lshl_add_u32 v2, v3, 2, v2')
    A('s_lshl_b32 %s, %s, 9' % (s(sT0), s(sROLE)))
    A('v_add_u32 v2, %s, v2' % s(sT0))
    A('v_and_b32 v3, 1, %s' % L)
    A('v_lshlrev_b32 v3, 2, v3')
    A('v_lshl_add_u32 v3, v1, 3, v3')
    A('v_bfe_u32 v4, %s, 1, 1' % L)
    A('v_lshl_add_u32 v3, v4, 4, v3')
    A('s_lshl_b32 %s, %s, 7' % (s(sT0), s(sROLE)))
    A('s_add_u32 %s, %s, 8192' % (s(sT0), s(sT0)))
    A('v_add_u32 v3, %s, v3' % s(sT0))
    A('v_and_b32 v4, 31, %s' % L)
    A('v_cmp_gt_u32 vcc, 16, v4')
    A('v_cndmask_b32 v2, v3, v2, vcc')
    A('v_mov_b32 v3, %d' % OOB)
    A('v_cmp_gt_u32 vcc, 20, v4')
    A('v_cndmask_b32 %s, v3, v2, vcc' % v(vPST))
    A('s_lshl_b32 %s, %s, 2' % (s(sHWR), s(sROLE)))
    A('s_add_u32 %s, %s, %d' % (s(sHWR), s(sHWR), HINT_P))
    HV, HA = 74, 75
    hint_setup(A, 16, HV, HA)
    for sl in range(4):
        A('s_mov_b32 %s, %d' % (s(sT0), MB_P + sl * 16384))
        A('buffer_store_dword %s, %s, %s, %s offen' % (v(vSENT), v(vPST), s(S_WS, 4), s(sT0)))
    group_barrier_arrive(A)
    A('v_min_u32 v8, 6, %s' % L)
    A('s_mul_i32 %s, %s, 14' % (s(sT0), s(sROLE)))
    A('v_add_u32 v8, %s, v8' % s(sT0))
    A('v_lshlrev_b32 v8, 6, v8')
    wait_weights(A)
    rec_load_weights(A)
    zero_sd = ['v_mov_b32 %s, 0' % v(SA + i) for i in range(8)]
    for x in zero_acc() + zero_sd: A(x)
    group_barrier_wait(A)
    A('s_mov_b32 %s, 0' % s(sSTEP))
    A('s_mov_b32 %s, %d' % (s(sXOFF), XF_OFF))
    A('s_mul_i32 %s, %s, 28672' % (s(sUOFF), s(sROLE)))
    A('s_lshl_b32 %s, %s, 13' % (s(sT0), s(sWAVE)))
    A('s_add_u32 %s, %s, %s' % (s(sUOFF), s(sUOFF), s(sT0)))
    A('s_add_u32 %s, %s, %d' % (s(sUOFF), s(sUOFF), U_OFF))
    A('s_mov_b32 m0, %d' % (L_DUMP + 8192))
    A('s_add_u32 %s, %s, 4096' % (s(sXPF), s(sXOFF)))
    for k in range(8):
        A('buffer_load_dwordx4 %s, %s, %s, %s offen offset:%d' % (v(XB + k * 4, 4), v(vX), s(S_WS, 4), s(sXOFF if k < 4 else sXPF), (k & 3) * 1024))
    A('s_waitcnt vmcnt(0)')
    A('s_cmp_ge_u32 %s, 2' % s(sWAVE))
    A('s_cbranch_scc1 L_score_loop1')
    for hh in range(2): score_loop(A, hh, HV, HA, zero_sd)

XLATE = {}
def score_loop(A, hh, HV, HA, zero_sd):
    LP = 'L_score_loop%d' % hh
    A.label(LP)
    A('s_and_b32 %s, %s, 3' % (s(sT0), s(sSTEP)))
    A('s_lshl_b32 %s, %s, 13' % (s(sMEMRD), s(sT0)))
    A('s_add_u32 %s, %s, %d' % (s(sMEMRD), s(sMEMRD), MB_MEM))
    A('s_lshl_b32 %s, %s, 14' % (s(sPWR), s(sT0)))
    A('s_add_u32 %s, %s, %d' % (s(sPWR), s(sPWR), MB_P))
    A('s_xor_b32 %s, %s, 0x8000' % (s(sPRST), s(sPWR)))
    A('s_add_u32 %s, %s, 1' % (s(sSTEP1), s(sSTEP)))
    A('v_mov_b32 %s, %s' % (v(HV), s(sSTEP1)))
    A('s_add_u32 %s, %s, 4096' % (s(sXPF), s(sXOFF)))
    A('s_add_u32 %s, %s, %d' % (s(sUOFF), s(sUOFF), 16 * 28672))
    stamp(A, 0)
    if hh == 0: BR = [XB, XB + 8, XB + 16, XB + 24, MF, ACC, MF + 8]; MC = [4, 5, 6]; nx = 4
    else:       BR = [XB + 24, MF, ACC, MF + 8, XB, XB + 8, XB + 16]; MC = [0, 1, 2, 3]; nx = 3
    AR = [AF0, ACC + 8, ACC + 12, ACC + 16, MF + 16, MF + 20, MF + 24]
    def bread(c): return ['ds_read_b128 %s, %s offset:%d' % (v(BR[c] + 4 * hi, 4), v(vB), L_MEM + hi * 3584 + c * 256) for hi in range(2)]
    def aread(c): return ['ds_read_b64_tr_b16 %s, %s offset:%d' % (v(AR[c] + 2 * t, 2), v(vTRL), c * 256 + t * 128) for t in range(2)]
    def ss(c): return smf(v(SA if c < 4 else SB, 4), v(AR[c], 4), v(BR[c], 8))
    extra = {}
    early = MC[:-1]
    pos = {XB + 24: (1, 3), MF: (5, 10), ACC: (15, 20)}
    for c in early:
        for x, ppos in zip(bread(c), pos[BR[c]]): extra.setdefault(ppos, []).append(x)
    PRE_DS[0] = 0
    extra.setdefault(28, []).extend(['s_waitcnt lgkmcnt(0)', 's_barrier'] + aread(0))
    extra.setdefault(30, []).extend(aread(1)); extra.setdefault(31, []).extend(aread(2))
    extra.setdefault(32, []).extend(aread(3))
    extra.setdefault(2, []).append('v_and_b32 %s, 0x3f0, %s' % (v(vT), v(vX)))
    extra.setdefault(4, []).append('v_lshlrev_b32 %s, 3, %s' % (v(vT), v(vT)))
    upf = 'buffer_load_dword %s, %s, %s offen lds' % (v(vT), s(S_WS, 4), s(sUOFF))
    vm = [['buffer_load_dwordx4 %s, %s, %s, %s offen offset:%d' % (v(XB + k * 4, 4), v(vX), s(S_WS, 4), s(sXOFF if k < 4 else sXPF), (k & 3) * 1024)] for k in range(2 * nx)]
    nlate = min(PRM['xpos'], len(vm))
    XLATE[hh] = vm[:nlate]
    main_phase(A, 0, PRM['sdel'], [], vm[nlate:], extra, PRM['xev'])
    e6 = epilogue(6)
    for x in bread(MC[-1]): A(x)
    A('s_waitcnt vmcnt(0) lgkmcnt(3)')
    A(ss(0))
    if PRM['upf']: A(upf)
    A(ss(1))
    A(e6[0]); A(e6[1]); A(e6[2]); A(e6[3])
    A('s_waitcnt lgkmcnt(1)')
    A('s_barrier')
    for x in aread(4) + aread(5): A(x)
    A(ss(2)); A(ss(3))
    A('s_waitcnt lgkmcnt(4)')
    A('s_barrier')
    for x in aread(6): A(x)
    A('s_waitcnt lgkmcnt(2)')
    A(ss(4))
    A(ss(5))
    S0 = ACC + 20
    A('v_add_f32 %s, %s, %s' % (v(S0), v(SA), v(SA + 2)))
    A('v_add_f32 %s, %s, %s' % (v(S0 + 1), v(SA + 1), v(SA + 3)))
    A('s_waitcnt lgkmcnt(0)')
    A(ss(6))
    A('ds_write2_b32 %s, %s, %s offset0:0 offset1:2' % (v(vSPA), v(S0), v(S0 + 1)))
    stamp(A, 5)
    A('s_add_u32 %s, %s, 32768' % (s(sXOFF), s(sXOFF)))
    A('v_add_f32 %s, %s, %s' % (v(S0 + 2), v(SB), v(SB + 2)))
    A('v_add_f32 %s, %s, %s' % (v(S0 + 3), v(SB + 1), v(SB + 3)))
    A('ds_write2_b32 %s, %s, %s offset0:0 offset1:2' % (v(vSPB), v(S0 + 2), v(S0 + 3)))
    A('s_waitcnt lgkmcnt(0)')
    A('s_barrier')
    A('ds_read2st64_b64 %s, %s offset0:0 offset1:4' % (v(S0, 4), v(vSPR)))
    stamp(A, 6)
    if PRM['hs'] == 6: hint_send(A, HV, HA)
    A('s_waitcnt lgkmcnt(0)')
    A('v_add_f32 %s, %s, %s' % (v(S0), v(S0), v(S0 + 2)))
    A('v_add_f32 %s, %s, %s' % (v(S0 + 1), v(S0 + 1), v(S0 + 3)))
    m, t2 = v(S0 + 2), v(S0 + 3)
    def reduce(op):
        for d in ('quad_perm:[1,0,3,2]', 'quad_perm:[2,3,0,1]', 'row_half_mirror', 'row_mirror'):
            A('%s_dpp %s, %s, %s %s row_mask:0xf bank_mask:0xf' % (op, m, m, m, d))
        A('v_mov_b32 %s, %s' % (t2, m))
        A('v_permlane16_swap_b32 %s, %s' % (m, t2))
        A('%s %s, %s, %s' % (op, m, m, t2))
    stamp(A, 7)
    A('v_max_f32 %s, %s, %s' % (m, v(S0), v(S0 + 1)))
    reduce('v_max_f32')
    if PRM['hs'] == 7: hint_send(A, HV, HA)
    A('v_sub_f32 %s, %s, %s' % (v(S0), v(S0), m))
    A('v_sub_f32 %s, %s, %s' % (v(S0 + 1), v(S0 + 1), m))
    A('v_exp_f32 %s, %s' % (v(S0), v(S0)))
    A('v_exp_f32 %s, %s' % (v(S0 + 1), v(S0 + 1)))
    A('v_add_f32 %s, %s, %s' % (m, v(S0), v(S0 + 1)))
    reduce('v_add_f32')
    A('v_rcp_f32 %s, %s' % (m, m))
    A('v_mul_f32 %s, %s, %s' % (v(S0), v(S0), m))
    A('v_mul_f32 %s, %s, %s' % (v(S0 + 1), v(S0 + 1), m))
    A('v_cvt_pk_bf16_f32 %s, %s, %s' % (v(vT), v(S0), v(S0 + 1)))
    A('v_min_u32 %s, -2, %s' % (v(vT), v(vT)))
    A('buffer_store_dword %s, %s, %s, %s offen' % (v(vT), v(vPST), s(S_WS, 4), s(sPWR)))
    stamp(A, 8)
    for x in zero_acc() + zero_sd: A(x)
    A('v_mov_b32 %s, -1' % v(vT + 1))
    A('buffer_store_dword %s, %s, %s, %s offen' % (v(vT + 1), v(vPST), s(S_WS, 4), s(sPRST)))
    if nlate:
        A('s_add_u32 %s, %s, 4096' % (s(sXPF), s(sXOFF)))
        if PRM['xsl']: A('s_sleep %d' % PRM['xsl'])
        for g in vm[:nlate]:
            A(g[0])
            if PRM['xgap']: A('s_sleep %d' % PRM['xgap'])
    stamp(A, 9)
    stamp_flush(A, 11)
    A('s_add_u32 %s, %s, 1' % (s(sSTEP), s(sSTEP)))
    A('s_cmp_lt_u32 %s, 63' % s(sSTEP))
    A('s_cbranch_scc1 %s' % LP)
    A('s_branch L_exit')
    emit_stubs(A)

def u_loads():
    out = []
    for cx in range(2):
        for hi in range(2):
            for p in range(2):
                out.append('buffer_load_dwordx4 %s, %s, %s, %s offen offset:%d sc1' % (
                    v(UB + (cx * 2 + p) * 8 + hi * 4, 4), v(vU), s(S_WS, 4), s(sUOFF + 10 + cx * 2 + hi), p * 14 * 64))
    return out

def value_role(A):
    A.label('L_value')
    rec_common_setup(A)
    build_xg(A)
    build_xf(A)
    stamp_setup(A)
    L = v(vLANE)
    sV = sT4
    A('s_sub_u32 %s, %s, 16' % (s(sV), s(sROLE)))
    A('s_mul_i32 %s, %s, %d' % (s(sT0), s(sWAVE), 4 * 28672))
    A('s_mul_i32 %s, %s, 1792' % (s(sT1), s(sV)))
    A('s_add_u32 %s, %s, %s' % (s(sT0), s(sT0), s(sT1)))
    A('v_and_b32 v3, 15, %s' % L)
    A('v_lshrrev_b32 v2, 4, %s' % L)
    A('v_mul_u32_u24 v1, 224, v2')
    A('v_lshl_add_u32 v1, v3, 4, v1')
    A('v_add_u32 v1, %s, v1' % s(sT0))
    A('v_mov_b32 v4, %d' % OOB)
    A('v_cmp_gt_u32 vcc, 14, v3')
    A('v_cndmask_b32 %s, v4, v1, vcc' % v(vU))
    A('v_mul_u32_u24 v1, 28, v2')
    A('v_add_u32 v1, v1, v3')
    A('v_lshlrev_b32 v1, 4, v1')
    A('s_mul_i32 %s, %s, %d' % (s(sT0), s(sWAVE), 112 * 16))
    A('s_add_u32 %s, %s, %d' % (s(sT0), s(sT0), L_YT))
    A('v_add_u32 %s, %s, v1' % (v(vZB), s(sT0)))
    A('v_lshlrev_b32 v1, 4, v3')
    A('v_lshl_add_u32 v1, v2, 2, v1')
    A('v_add_u32 %s, %s, v1' % (v(vYW), s(sT0)))
    A('s_lshl_b32 %s, %s, 2' % (s(sT2), s(sV)))
    A('s_add_u32 %s, %s, %s' % (s(sT2), s(sT2), s(sWAVE)))
    A('s_lshl_b32 %s, %s, 9' % (s(sT2), s(sT2)))
    A('v_lshlrev_b32 v1, 7, %s' % L)
    A('v_add_u32 v1, %s, v1' % s(sT2))
    A('v_cmp_gt_u32 vcc, 4, %s' % L)
    A('v_cndmask_b32 %s, v4, v1, vcc' % v(vXPF))
    A('s_lshl_b32 %s, %s, 11' % (s(sT0), s(sWAVE)))
    A('v_lshlrev_b32 v1, 4, %s' % L)
    A('v_add_u32 %s, %s, v1' % (v(vPL), s(sT0)))
    A('s_lshl_b32 %s, %s, 9' % (s(sT0), s(sWAVE)))
    A('s_add_u32 %s, %s, 8192' % (s(sT0), s(sT0)))
    A('v_lshlrev_b32 v2, 3, %s' % L)
    A('v_add_u32 %s, %s, v2' % (v(vPL2), s(sT0)))
    A('s_lshl_b32 %s, %s, 10' % (s(sT0), s(sWAVE)))
    A('s_add_u32 %s, %s, %d' % (s(sT0), s(sT0), L_OP))
    A('v_add_u32 %s, %s, v1' % (v(vOPW), s(sT0)))
    A('s_and_b32 %s, %s, 1' % (s(sT2), s(sWAVE)))
    A('s_lshl_b32 %s, %s, 3' % (s(sT0), s(sT2)))
    A('s_add_u32 %s, %s, %d' % (s(sT0), s(sT0), L_OP))
    A('v_add_u32 %s, %s, v1' % (v(vOPR), s(sT0)))
    A('s_mul_i32 %s, %s, 14' % (s(sT0), s(sV)))
    A('v_add_u32 v1, %s, v3' % s(sT0))
    A('v_lshrrev_b32 v2, 4, %s' % L)
    A('v_lshlrev_b32 v2, 1, v2')
    A('v_add_u32 v2, %s, v2' % s(sT2))
    A('v_lshrrev_b32 v5, 3, v1')
    A('v_lshlrev_b32 v5, 8, v5')
    A('v_bfe_u32 v6, v1, 2, 1')
    A('v_lshl_add_u32 v5, v6, 5, v5')
    A('v_lshrrev_b32 v6, 1, v2')
    A('v_lshl_add_u32 v5, v6, 6, v5')
    A('v_and_b32 v6, 1, v2')
    A('v_lshl_add_u32 v5, v6, 4, v5')
    A('v_and_b32 v6, 3, v1')
    A('v_lshl_add_u32 v5, v6, 2, v5')
    A('v_cmp_gt_u32 vcc, 14, v3')
    A('v_cndmask_b32 %s, v4, v5, vcc' % v(vMST))
    A('v_lshrrev_b32 v5, 2, v1')
    A('v_lshlrev_b32 v5, 7, v5')
    A('v_lshl_add_u32 v5, v2, 4, v5')
    A('v_lshl_add_u32 v5, v6, 2, v5')
    A('v_cndmask_b32 v10, v4, v5, vcc')
    A('v_mul_u32_u24 v2, 896, v2')
    A('v_lshl_add_u32 v2, v1, 2, v2')
    A('v_cndmask_b32 v2, v4, v2, vcc')
    A('buffer_load_dword v7, v2, %s, 0 offen' % s(S_M0, 4))
    A('s_lshl_b32 %s, %s, 2' % (s(sHWR), s(sV)))
    A('s_add_u32 %s, %s, %s' % (s(sHWR), s(sHWR), s(sWAVE)))
    A('s_lshl_b32 %s, %s, 2' % (s(sHWR), s(sHWR)))
    A('s_add_u32 %s, %s, %d' % (s(sHWR), s(sHWR), HINT_M))
    hint_setup(A, 32, 84, 85, True)
    for sl in range(1, 4):
        A('s_mov_b32 %s, %d' % (s(sT0), MB_MEM + sl * 8192))
        A('buffer_store_dword %s, %s, %s, %s offen' % (v(vSENT), v(vMST), s(S_WS, 4), s(sT0)))
    A('s_waitcnt vmcnt(0)')
    A('v_min_u32 v7, -2, v7')
    A('s_mov_b32 %s, %d' % (s(sT0), MB_MEM))
    A('buffer_store_dword v7, %s, %s, %s offen' % (v(vMST), s(S_WS, 4), s(sT0)))
    A('v_mov_b32 v86, v7')
    A('v_mov_b32 v87, v10')
    A('s_lshl_b32 %s, %s, 1' % (s(sT0), s(sV)))
    A('s_and_b32 %s, %s, 1' % (s(sT1), s(sWAVE)))
    A('s_add_u32 %s, %s, %s' % (s(sT0), s(sT0), s(sT1)))
    A('s_lshl_b32 %s, %s, 2' % (s(sT0), s(sT0)))
    A('s_add_u32 %s, %s, %d' % (s(sT0), s(sT0), FLG_HM))
    A('v_mov_b32 v1, %s' % s(sT0))
    A('v_mov_b32 v2, %d' % OOB)
    A('s_cmp_ge_u32 %s, 2' % s(sWAVE))
    A('s_cselect_b64 vcc, 1, 0')
    A('v_cndmask_b32 v80, v2, v1, vcc')
    A('s_cmp_ge_u32 %s, 2' % s(sWAVE))
    A('s_cbranch_scc1 L_vh_ok')
    A('v_mov_b32 v87, %d' % OOB)
    A('s_branch L_vh_ok2')
    A.label('L_vh_ok')
    A('v_mov_b32 %s, %d' % (v(vMST), OOB))
    A.label('L_vh_ok2')
    group_barrier_arrive(A)
    A('s_mul_i32 %s, %s, 28' % (s(sT0), s(sV)))
    lexpr(A, 'v8', L, [(4, 1, 27)], s(sT0), 'v1')
    A('v_lshrrev_b32 v8, 6, v8')
    lexpr(A, 'v9', L, [(0, 4, 14)], 7, 'v1')
    A('v_add_u32 v8, v8, v9')
    A('v_lshlrev_b32 v8, 6, v8')
    wait_weights(A)
    rec_load_weights(A)
    for x in zero_acc(): A(x)
    group_barrier_wait(A)
    A('s_mov_b32 %s, 0' % s(sSTEP))
    A('s_mov_b32 %s, %d' % (s(sUOFF), U_OFF))
    A('s_mov_b32 %s, %d' % (s(sHM), HM_OFF))
    A('s_mov_b32 %s, 0' % s(sUOK))
    A.label('L_value_loop')
    A('s_and_b32 %s, %s, 3' % (s(sT0), s(sSTEP)))
    A('s_lshl_b32 %s, %s, 13' % (s(sMEMRD), s(sT0)))
    A('s_add_u32 %s, %s, %d' % (s(sMEMRD), s(sMEMRD), MB_MEM))
    A('s_lshl_b32 %s, %s, 14' % (s(sPRD), s(sT0)))
    A('s_add_u32 %s, %s, %d' % (s(sPRD), s(sPRD), MB_P))
    A('s_add_u32 %s, %s, 1' % (s(sT0), s(sSTEP)))
    A('s_and_b32 %s, %s, 3' % (s(sT0), s(sT0)))
    A('s_lshl_b32 %s, %s, 13' % (s(sMEMWR), s(sT0)))
    A('s_add_u32 %s, %s, %d' % (s(sMEMWR), s(sMEMWR), MB_MEM))
    A('s_xor_b32 %s, %s, 0x4000' % (s(sMEMRST), s(sMEMWR)))
    for j in range(4):
        A('s_add_u32 %s, %s, %d' % (s(sUOFF + 10 + j), s(sUOFF), j * 448 * 64))
    stamp(A, 0)
    PRE_DS[0] = 0
    A('s_lshl_b32 %s, %s, 15' % (s(sXPF), s(sSTEP)))
    A('s_add_u32 %s, %s, %d' % (s(sXPF), s(sXPF), XF_OFF + 2 * 32768))
    if not G.dev_nowait:
        A('s_cmp_lt_u32 %s, %s' % (s(sSTEP), s(sUOK)))
        A('s_cbranch_scc0 L_ucheck')
        A.label('L_ucheck_done')
    ul = u_loads(); nb1 = PRM['nb1']
    post = ['s_barrier'] + ul[:nb1]
    rest = [[x] for x in ul[nb1:]] + [['buffer_load_dword %s, %s, %s, %s offen' % (v(vDUMMY), v(vXPF), s(S_WS, 4), s(sXPF)),
                                       'buffer_store_dword v86, v87, %s, %s offen sc1' % (s(S_WS, 4), s(sHM)),
                                       'buffer_store_dword v81, v80, %s, 0 offen sc1' % s(S_WS, 4)]]
    A('v_mov_b32 v81, %s' % s(sSTEP))
    main_phase(A, 2, PRM['vdel'], post, rest, {}, PRM['uev'], early_vm=True)
    for x in epilogue(6): A(x)
    ZB, PA, OD = MF, MF + 8, MF + 20
    for p in range(2):
        A('ds_read_b128 %s, %s offset:%d' % (v(ZB + 4 * p, 4), v(vZB), p * 14 * 16))
    for i in range(8): A('v_mov_b32 %s, 0' % v(OD + i))
    for x in zero_acc(): A(x)
    A('s_add_u32 %s, %s, 1' % (s(sSTEP1), s(sSTEP)))
    A('v_mov_b32 v84, %s' % s(sSTEP1))
    stamp(A, 5)
    stamp_flush(A, 11)
    hint_wait(A, sHPRD, sSTEP1, 2, PRM['pdel'])
    l = A.newlabel('L_pp')
    ld = ['buffer_load_dwordx4 %s, %s, %s, %s offen sc1' % (v(PA, 4), v(vPL), s(S_WS, 4), s(sPRD)),
          'buffer_load_dwordx4 %s, %s, %s, %s offen offset:1024 sc1' % (v(PA + 4, 4), v(vPL), s(S_WS, 4), s(sPRD)),
          'buffer_load_dwordx2 %s, %s, %s, %s offen sc1' % (v(PA + 8, 2), v(vPL2), s(S_WS, 4), s(sPRD))]
    for x in ld: A(x)
    for cx in range(2):
        A('s_waitcnt vmcnt(%d) lgkmcnt(0)' % (2 - cx))
        lx = A.newlabel('L_pp'); A.label(lx)
        check4(A, PA + 4 * cx, lx, [ld[cx], 's_waitcnt vmcnt(0)'])
        if cx == 0: stamp(A, 6)
        for p in range(2):
            A(smf(v(OD + 4 * p, 4), v(PA + 4 * cx, 4), v(UB + (cx * 2 + p) * 8, 8)))
    A('s_waitcnt vmcnt(0)')
    lx = A.newlabel('L_pp'); A.label(lx)
    A('v_max_u32 %s, %s, %s' % (v(vT), v(PA + 8), v(PA + 9)))
    A('v_cmp_eq_u32 vcc, -1, %s' % v(vT))
    spin_check(A, lx, [ld[2], 's_waitcnt vmcnt(0)'])
    for p in range(2):
        A(smf(v(OD + 4 * p, 4), v(PA + 8, 2), v(ZB + 4 * p, 4), k32=True))
    hint_send(A, 84, 85)
    R = vT + 1
    assert R % 2 == 0
    for p in range(2):
        c = OD + 4 * p
        A('v_add_f32 %s, %s, %s' % (v(R + p), v(c), v(c + 2)))
        A('v_add_f32 %s, %s, %s' % (v(R + 2 + p), v(c + 1), v(c + 3)))
    A('ds_write_b128 %s, %s' % (v(vOPW), v(R, 4)))
    A('s_waitcnt lgkmcnt(0)')
    A('s_barrier')
    stamp(A, 7)
    for w in range(4): A('ds_read_b64 %s, %s offset:%d' % (v(OD + 2 * w, 2), v(vOPR), w * 1024))
    A('s_waitcnt lgkmcnt(2)')
    A('v_add_f32 %s, %s, %s' % (v(OD), v(OD), v(OD + 2)))
    A('v_add_f32 %s, %s, %s' % (v(OD + 1), v(OD + 1), v(OD + 3)))
    A('s_waitcnt lgkmcnt(0)')
    A('v_add_f32 %s, %s, %s' % (v(OD + 4), v(OD + 4), v(OD + 6)))
    A('v_add_f32 %s, %s, %s' % (v(OD + 5), v(OD + 5), v(OD + 7)))
    A('v_add_f32 %s, %s, %s' % (v(OD), v(OD), v(OD + 4)))
    A('v_add_f32 %s, %s, %s' % (v(OD + 1), v(OD + 1), v(OD + 5)))
    A('v_cvt_pk_bf16_f32 v86, %s, %s' % (v(OD), v(OD + 1)))
    A('v_min_u32 v86, -2, v86')
    A('buffer_store_dword v86, %s, %s, %s offen' % (v(vMST), s(S_WS, 4), s(sMEMWR)))
    stamp(A, 8)
    A('v_mov_b32 %s, -1' % v(vT + 1))
    A('buffer_store_dword %s, %s, %s, %s offen' % (v(vT + 1), v(vMST), s(S_WS, 4), s(sMEMRST)))
    stamp(A, 9)
    A('s_add_u32 %s, %s, %d' % (s(sUOFF), s(sUOFF), 16 * 448 * 64))
    A('s_add_u32 %s, %s, %d' % (s(sHM), s(sHM), HM_STEP))
    A('s_add_u32 %s, %s, 1' % (s(sSTEP), s(sSTEP)))
    A('s_cmp_lt_u32 %s, 63' % s(sSTEP))
    A('s_cbranch_scc1 L_value_loop')
    A('buffer_store_dword v86, v87, %s, %s offen sc1' % (s(S_WS, 4), s(sHM)))
    A('v_mov_b32 v81, 64')
    A('s_waitcnt vmcnt(0)')
    A('buffer_store_dword v81, v80, %s, 0 offen sc1' % s(S_WS, 4))
    A('s_branch L_exit')
    if not G.dev_nowait:
        A.label('L_ucheck')
        P0 = UB
        A('v_mbcnt_lo_u32_b32 %s, -1, 0' % v(vT + 1))
        A('v_mbcnt_hi_u32_b32 %s, -1, %s' % (v(vT + 1), v(vT + 1)))
        A('v_min_u32 %s, 55, %s' % (v(vT + 1), v(vT + 1)))
        A('v_lshlrev_b32 %s, 4, %s' % (v(vT + 1), v(vT + 1)))
        A('s_mov_b32 %s, %d' % (s(sT1), FLG_W2 + 1792))
        A('s_lshr_b32 %s, %s, 2' % (s(sT2), s(sSTEP)))
        A('s_add_u32 %s, %s, 1' % (s(sT2), s(sT2)))
        A.label('L_ucheck_l')
        A('buffer_load_dwordx4 %s, %s, %s, %s offen sc1' % (v(P0, 4), v(vT + 1), s(S_WS, 4), s(sT1)))
        A('buffer_load_dwordx4 %s, %s, %s, %s offen offset:896 sc1' % (v(P0 + 4, 4), v(vT + 1), s(S_WS, 4), s(sT1)))
        A('s_waitcnt vmcnt(0)')
        A('v_min3_u32 %s, %s, %s, %s' % (v(P0), v(P0), v(P0 + 1), v(P0 + 2)))
        A('v_min3_u32 %s, %s, %s, %s' % (v(P0), v(P0), v(P0 + 3), v(P0 + 4)))
        A('v_min3_u32 %s, %s, %s, %s' % (v(P0), v(P0), v(P0 + 5), v(P0 + 6)))
        A('v_min_u32 %s, %s, %s' % (v(P0), v(P0), v(P0 + 7)))
        A('v_cmp_gt_u32 vcc, %s, %s' % (s(sT2), v(P0)))
        spin_check(A, 'L_ucheck_l')
        A('s_lshl_b32 %s, %s, 2' % (s(sUOK), s(sT2)))
        for thr in (4, 8, 12, 16):
            A('v_cmp_gt_u32 vcc, %d, %s' % (thr, v(P0)))
            A('s_cbranch_vccnz L_ucheck_done')
            A('s_max_u32 %s, %s, %d' % (s(sUOK), s(sUOK), 4 * thr))
        A('s_branch L_ucheck_done')
    emit_stubs(A)
```

```python
from common import *
import struct

sRHO, sH, sQ, sTY, sA = 71, 72, 73, 74, 75
sSC, sO1, sO2, sO3, sSEG, sCNT = 76, 77, 78, 79, 80, 81
S_W1 = 92
LW_R2 = 0
LW_ST = 36864
LW_WT = 36864 + 33792
def f2u(x): return struct.unpack('<I', struct.pack('<f', x))[0]

def wait_dbg(A, idx, val, sleep=2):
    l = A.newlabel('L_wd'); e = A.newlabel('L_wd_done')
    A('s_cmp_lg_u32 %s, 0' % s(sWAVE))
    A('s_cbranch_scc1 %s' % e)
    A('v_mov_b32 v2, %d' % (idx * 4))
    A.label(l)
    A('buffer_load_dword v3, v2, %s, 0 offen sc1' % s(S_DBG, 4))
    A('s_waitcnt vmcnt(0)')
    A('v_cmp_gt_u32 vcc, %d, v3' % val)
    spin_check(A, l, ['s_sleep %d' % sleep])
    A.label(e)
    A('s_barrier')

def worker_entry(A):
    A.label('L_worker')
    A('s_mov_b32 %s, %d' % (s(sSPIN), SPIN_MAX))
    A('s_sub_u32 %s, %s, 1' % (s(sRHO), s(sXCC)))
    A('s_lshl_b32 %s, %s, 5' % (s(sRHO), s(sRHO)))
    A('s_add_u32 %s, %s, %s' % (s(sRHO), s(sRHO), s(sROLE)))
    A('s_mul_i32 %s, %s, 9363' % (s(sT0), s(sRHO)))
    A('s_lshr_b32 %s, %s, 16' % (s(sT0), s(sT0)))
    A('s_mul_i32 %s, %s, 7' % (s(sT1), s(sT0)))
    A('s_sub_u32 %s, %s, %s' % (s(sQ), s(sRHO), s(sT1)))
    A('s_and_b32 %s, %s, 1' % (s(sTY), s(sT0)))
    A('s_lshr_b32 %s, %s, 1' % (s(sH), s(sT0)))
    A('s_mul_i32 %s, %s, 7' % (s(sA), s(sH)))
    A('s_add_u32 %s, %s, %s' % (s(sA), s(sA), s(sQ)))
    A('s_cmp_eq_u32 %s, 0' % s(sTY))
    A('s_cselect_b32 %s, %s, %s' % (s(S_W1), s(S_WQ), s(S_WV)))
    A('s_cselect_b32 %s, %s, %s' % (s(S_W1 + 1), s(S_WQ + 1), s(S_WV + 1)))
    A('s_mov_b32 %s, 3670016' % s(S_W1 + 2))
    A('s_mov_b32 %s, 0x00020000' % s(S_W1 + 3))
    A('s_cselect_b32 %s, 0x%x, 1.0' % (s(sSC), f2u(SCALE_LOG2E)))

def zero_flags(A):
    A('v_lshlrev_b32 v2, 2, v0')
    A('v_mov_b32 v3, %d' % OOB)
    A('s_cmp_eq_u32 %s, 3' % s(sWAVE))
    A('s_cselect_b64 vcc, -1, 0')
    A('v_cndmask_b32 v2, v3, v2, vcc')
    A('s_cselect_b64 vcc, 1, 0')
    A('v_mov_b32 v1, %d' % (D_INIT * 4))
    A('v_cndmask_b32 v11, v3, v1, vcc')
    A('v_mov_b32 v3, 0')
    A('v_mov_b32 v12, 1')
    A('s_lshl_b32 %s, %s, 8' % (s(sT0), s(sRHO)))
    A('s_add_u32 %s, %s, %d' % (s(sT0), s(sT0), FLAGS))
    A('buffer_store_dword v3, v2, %s, %s offen sc1' % (s(S_WS, 4), s(sT0)))

def phase_w1(A):
    LAND = 256
    W2F = 128
    AFR = (64, 96)
    DD = (32, 48)
    vG, vSW, vSR, vWT, vR2W, vR2R, vG2 = 4, 5, 6, 7, 8, 9, 10
    A('s_cmp_lg_u32 %s, 0' % s(sTY))
    A('s_cbranch_scc1 L_w1_b')
    lexpr(A, v(vG2), 'v0', [(5, 1, 8192), (0, 5, 16)], 0, 'v1')
    A('s_lshl_b32 %s, %s, 2' % (s(sT0), s(sQ)))
    A('s_add_u32 %s, %s, %s' % (s(sT0), s(sT0), s(sWAVE)))
    A('s_lshl_b32 %s, %s, 17' % (s(sT0), s(sT0)))
    A('s_lshl_b32 %s, %s, 9' % (s(sT1), s(sH)))
    A('s_add_u32 %s, %s, %s' % (s(sT0), s(sT0), s(sT1)))
    for j in range(8):
        A('buffer_load_dwordx4 %s, %s, %s, %s offen' % (v(64 + 4 * j, 4), v(vG2), s(S_WK, 4), s(sT0)))
        if j < 7: A('s_add_u32 %s, %s, 16384' % (s(sT0), s(sT0)))
    A('s_mul_i32 %s, %s, %d' % (s(sT0), s(sWAVE), 16 * 528))
    lexpr(A, v(vR2W), 'v0', [(5, 1, 528), (0, 5, 16)], s(sT0), 'v1')
    A('s_mov_b32 %s, 1056' % s(sO1))
    A('s_branch L_w1_c')
    A.label('L_w1_b')
    lexpr(A, v(vG2), 'v0', [(3, 3, 896), (0, 3, 16)], 0, 'v1')
    A('s_mul_i32 %s, %s, 229376' % (s(sT0), s(sH)))
    A('s_mul_i32 %s, %s, %d' % (s(sT1), s(sWAVE), 64 * 896))
    A('s_add_u32 %s, %s, %s' % (s(sT0), s(sT0), s(sT1)))
    A('s_lshl_b32 %s, %s, 7' % (s(sT1), s(sQ)))
    A('s_add_u32 %s, %s, %s' % (s(sT0), s(sT0), s(sT1)))
    for j in range(8):
        A('buffer_load_dwordx4 %s, %s, %s, %s offen' % (v(64 + 4 * j, 4), v(vG2), s(S_WO, 4), s(sT0)))
        if j < 7: A('s_add_u32 %s, %s, %d' % (s(sT0), s(sT0), 8 * 896))
    A('s_mul_i32 %s, %s, %d' % (s(sT0), s(sWAVE), 64 * 144))
    lexpr(A, v(vR2W), 'v0', [(3, 3, 144), (0, 3, 16)], s(sT0), 'v1')
    A('s_mov_b32 %s, %d' % (s(sO1), 8 * 144))
    A.label('L_w1_c')
    lexpr(A, v(vG), 'v0', [(5, 1, 8192), (0, 5, 16)], 0, 'v1')
    A('s_mul_i32 %s, %s, %d' % (s(sO2), s(sWAVE), 112 * 8192))
    A('s_lshl_b32 %s, %s, 9' % (s(sT1), s(sH)))
    A('s_add_u32 %s, %s, %s' % (s(sO2), s(sO2), s(sT1)))
    def w1load(n):
        A('buffer_load_dwordx4 %s, %s, %s, %s offen' % (u(LAND + 4 * n, 4), v(vG), s(S_W1, 4), s(sO2)))
        A('s_add_u32 %s, %s, 16384' % (s(sO2), s(sO2)))
    for n in range(48): w1load(n)
    A('s_mul_i32 %s, %s, 8448' % (s(sT0), s(sWAVE)))
    A('s_add_u32 %s, %s, %d' % (s(sT0), s(sT0), LW_ST))
    lexpr(A, v(vSW), 'v0', [(5, 1, 528), (0, 5, 16)], s(sT0), 'v1')
    lexpr(A, v(vSR), 'v0', [(0, 4, 528), (4, 2, 16)], s(sT0), 'v1')
    A('s_mul_i32 %s, %s, 224' % (s(sT0), s(sWAVE)))
    A('s_add_u32 %s, %s, %d' % (s(sT0), s(sT0), LW_WT))
    lexpr(A, v(vWT), 'v0', [(0, 4, 912), (4, 2, 8)], s(sT0), 'v1')
    A('s_waitcnt vmcnt(48)')
    A('buffer_atomic_add v12, v11, %s, 0 offen' % s(S_DBG, 4))
    for j in range(8):
        A('ds_write_b128 %s, %s' % (v(vR2W), v(64 + 4 * j, 4)))
        if j < 7: A('v_add_u32 %s, %s, %s' % (v(vR2W), s(sO1), v(vR2W)))
    for n in range(48, 56): w1load(n)
    A('s_waitcnt lgkmcnt(0)')
    A('s_barrier')
    A('s_cmp_lg_u32 %s, 0' % s(sTY))
    A('s_cbranch_scc1 L_w1_b2')
    lexpr(A, v(vR2R), 'v0', [(0, 4, 528), (4, 2, 16)], LW_R2, 'v1')
    for nt in range(4):
        for ks in range(8):
            A('ds_read_b128 %s, %s offset:%d' % (v(W2F + (nt * 8 + ks) * 4, 4), v(vR2R), nt * 16 * 528 + ks * 64))
            if ks % 4 == 3: A('s_waitcnt lgkmcnt(8)')
    A('s_branch L_w1_c2')
    A.label('L_w1_b2')
    lexpr(A, v(vR2R), 'v0', [(4, 2, 8 * 144), (2, 2, 144), (0, 2, 8)], LW_R2, 'v1')
    for nt in range(4):
        for ks in range(8):
            for t in range(2):
                A('ds_read_b64_tr_b16 %s, %s offset:%d' % (v(W2F + (nt * 8 + ks) * 4 + 2 * t, 2), v(vR2R), (32 * ks + 4 * t) * 144 + nt * 32))
            if ks % 2 == 1: A('s_waitcnt lgkmcnt(8)')
    A.label('L_w1_c2')
    def stage(i):
        o = ['s_waitcnt vmcnt(%d)' % (48 - 8 * i + (1 if i < 6 else 0))]
        for j in range(8):
            o.append('ds_write_b128 %s, %s offset:%d' % (v(vSW), u(LAND + 4 * (8 * i + j), 4), j * 1056))
            if j == 3: o.append('s_waitcnt lgkmcnt(8)')
        for ks in range(8):
            if ks % 4 == 0: o.append('s_waitcnt lgkmcnt(8)')
            o.append('ds_read_b128 %s, %s offset:%d' % (v(AFR[i & 1] + 4 * ks, 4), v(vSR), ks * 64))
        return o
    def postl(i):
        D = DD[i & 1]; o = []
        for nt in range(4):
            for r in range(4): o.append('v_mul_f32 %s, %s, %s' % (v(D + 4 * nt + r), s(sSC), v(D + 4 * nt + r)))
            o.append('v_cvt_pk_bf16_f32 %s, %s, %s' % (v(D + 4 * nt), v(D + 4 * nt), v(D + 4 * nt + 1)))
            o.append('v_cvt_pk_bf16_f32 %s, %s, %s' % (v(D + 4 * nt + 1), v(D + 4 * nt + 2), v(D + 4 * nt + 3)))
            o.append('ds_write_b64 %s, %s offset:%d' % (v(vWT), v(D + 4 * nt, 2), nt * 16 * 912 + i * 32))
        return o
    def post(i):
        for x in postl(i): A(x)
    for x in stage(0): A(x)
    for i in range(7):
        A('s_waitcnt lgkmcnt(0)')
        D = DD[i & 1]
        q1 = stage(i + 1) if i < 6 else []
        q2 = postl(i - 1) if i > 0 else []
        n = 0
        for ks in range(8):
            for nt in range(4):
                A('v_mfma_f32_16x16x32_bf16 %s, %s, %s, %s' % (v(D + 4 * nt, 4), v(AFR[i & 1] + 4 * ks, 4), v(W2F + (nt * 8 + ks) * 4, 4), '0' if ks == 0 else v(D + 4 * nt, 4)))
                n += 1
                if n >= 3 and q2: A(q2.pop(0))
                if n >= 4 and q1:
                    x = q1.pop(0); A(x)
                    if x.startswith('s_') and q1: A(q1.pop(0))
        for x in q2 + q1: A(x)
    post(6)
    A('s_waitcnt lgkmcnt(0)')
    A('s_barrier')

def col_to_blk(A, col, vv, pp, t):
    A('v_mul_u32_u24 %s, 2341, %s' % (vv, col))
    A('v_lshrrev_b32 %s, 16, %s' % (vv, vv))
    A('v_mul_u32_u24 %s, 28, %s' % (t, vv))
    A('v_sub_u32 %s, %s, %s' % (t, col, t))
    A('v_lshrrev_b32 %s, 1, %s' % (pp, t))
    A('v_and_b32 %s, 1, %s' % (t, t))
    A('v_mul_u32_u24 %s, 14, %s' % (t, t))
    A('v_add_u32 %s, %s, %s' % (pp, pp, t))

WF = 256
vST = 4
def phase_w1b(A):
    vRD, vDST = 8, 9
    A('s_cmp_lg_u32 %s, 0' % s(sTY))
    A('s_cbranch_scc1 L_w1b_b')
    A('s_lshl_b32 %s, %s, 4' % (s(sT0), s(sWAVE)))
    lexpr(A, 'v10', 'v0', [(0, 4, 1)], s(sT0), 'v1')
    A('s_mul_i32 %s, %s, %d' % (s(sT0), s(sH), WCU))
    A('s_lshl_b32 %s, %s, 2' % (s(sT1), s(sQ)))
    A('s_add_u32 %s, %s, %s' % (s(sT1), s(sT1), s(sWAVE)))
    A('s_lshl_b32 %s, %s, 10' % (s(sT1), s(sT1)))
    A('s_add_u32 %s, %s, %s' % (s(sT0), s(sT0), s(sT1)))
    lexpr(A, v(vDST), 'v0', [(0, 6, 16)], s(sT0), 'v1')
    for nt in range(4):
        lexpr(A, v(12 + nt), 'v0', [(2, 2, 8 * 912), (0, 2, 912), (4, 2, 16)], LW_WT + (32 * (nt >> 1) + 4 * (nt & 1)) * 912, 'v1')
    A('s_mul_i32 %s, %s, 28672' % (s(sT0), s(sH)))
    A('s_lshl_b32 %s, %s, 11' % (s(sT1), s(sQ)))
    A('s_add_u32 %s, %s, %s' % (s(sT0), s(sT0), s(sT1)))
    lexpr(A, v(vST), 'v0', [(0, 6, 16)], s(sT0), 'v1')
    A('v_add_u32 %s, 1024, %s' % (v(vST + 1), v(vST)))
    A('v_add_u32 %s, 14336, %s' % (v(vST + 2), v(vST)))
    A('v_add_u32 %s, 15360, %s' % (v(vST + 3), v(vST)))
    A('s_mov_b32 %s, %d' % (s(sO3), YX_OFF))
    A('s_branch L_w1b_c')
    A.label('L_w1b_b')
    for nt in range(4):
        lexpr(A, v(12 + nt), 'v0', [(0, 4, 2 * 912), (4, 2, 16)], LW_WT + (32 * (nt & 1) + (nt >> 1)) * 912, 'v1')
        A('s_lshl_b32 %s, %s, 6' % (s(sT0), s(sQ)))
        A('s_add_u32 %s, %s, %d' % (s(sT0), s(sT0), 32 * (nt & 1) + (nt >> 1)))
        lexpr(A, 'v16', 'v0', [(0, 4, 2)], s(sT0), 'v1')
        col_to_blk(A, 'v16', 'v17', 'v18', 'v1')
        A('v_mul_u32_u24 v19, 1792, v17')
        A('v_lshl_add_u32 v19, v18, 4, v19')
        A('s_mul_i32 %s, %s, 28672' % (s(sT0), s(sH)))
        A('s_add_u32 %s, %s, %d' % (s(sT0), s(sT0), (nt >> 1) * (896 - 224)))
        A('v_add_u32 v19, %s, v19' % s(sT0))
        A('v_lshrrev_b32 v1, 4, v0')
        A('v_mul_u32_u24 v1, 224, v1')
        A('v_add_u32 %s, v19, v1' % v(vST + nt))
    A('s_and_b32 %s, %s, 1' % (s(sT0), s(sWAVE)))
    A('s_lshl_b32 %s, %s, 5' % (s(sT0), s(sT0)))
    A('s_lshr_b32 %s, %s, 1' % (s(sT1), s(sWAVE)))
    A('s_add_u32 %s, %s, %s' % (s(sT0), s(sT0), s(sT1)))
    lexpr(A, 'v10', 'v0', [(0, 4, 2)], s(sT0), 'v1')
    A('s_lshl_b32 %s, %s, 6' % (s(sT1), s(sQ)))
    A('v_add_u32 v16, %s, v10' % s(sT1))
    col_to_blk(A, 'v16', 'v17', 'v18', 'v1')
    A('s_mul_i32 %s, %s, 28' % (s(sT0), s(sH)))
    A('v_add_u32 v18, %s, v18' % s(sT0))
    A('v_add_u32 v17, 16, v17')
    A('s_mov_b32 %s, %d' % (s(sT0), WCU))
    A('v_mul_lo_u32 v17, v17, %s' % s(sT0))
    A('v_lshrrev_b32 v1, 4, v18')
    A('v_lshl_add_u32 v17, v1, 10, v17')
    A('v_and_b32 v1, 15, v18')
    A('v_lshl_add_u32 v17, v1, 4, v17')
    A('v_lshrrev_b32 v1, 4, v0')
    A('v_lshl_add_u32 %s, v1, 8, v17' % v(vDST))
    A('s_mov_b32 %s, %d' % (s(sO3), U_OFF))
    A.label('L_w1b_c')
    A('v_mul_u32_u24 v10, 912, v10')
    lexpr(A, v(vRD), 'v0', [(5, 1, 32), (4, 1, 8)], LW_WT, 'v1')
    A('v_add_u32 %s, %s, v10' % (v(vRD), v(vRD)))
    for c in range(14):
        A('ds_read2_b32 %s, %s offset0:%d offset1:%d' % (v(64 + 4 * c, 2), v(vRD), 16 * c, 16 * c + 4))
        A('ds_read2_b32 %s, %s offset0:%d offset1:%d' % (v(66 + 4 * c, 2), v(vRD), 16 * c + 1, 16 * c + 5))
        if c % 4 == 3: A('s_waitcnt lgkmcnt(6)')
    A('s_mov_b32 %s, %d' % (s(sT0), WIMG))
    A('s_waitcnt lgkmcnt(0)')
    for c in range(14):
        A('buffer_store_dwordx4 %s, %s, %s, %s offen sc1' % (v(64 + 4 * c, 4), v(vDST), s(S_WS, 4), s(sT0)))
        if c < 13: A('s_add_u32 %s, %s, 28672' % (s(sT0), s(sT0)))
    for nt in range(4):
        for ks in range(14):
            A('ds_read_b128 %s, %s offset:%d' % (u(WF + (nt * 14 + ks) * 4, 4), v(12 + nt), ks * 64))
            if ks % 7 == 6: A('s_waitcnt lgkmcnt(7)')
    wait_dbg_nb = None
    A('s_waitcnt vmcnt(0) lgkmcnt(0)')
    wait_dbg(A, D_INIT, 224)
    e = A.newlabel('L_w1f')
    A('s_cmp_lg_u32 %s, 0' % s(sWAVE))
    A('s_cbranch_scc1 %s' % e)
    A('s_lshl_b32 %s, %s, 6' % (s(sT0), s(sRHO)))
    A('v_mov_b32 v2, %s' % s(sT0))
    A('v_mov_b32 v3, 1')
    A('s_mov_b32 %s, %d' % (s(sT0), FLG_W1))
    A('s_mov_b64 exec, 1')
    A('buffer_store_dword v3, v2, %s, %s offen sc1' % (s(S_WS, 4), s(sT0)))
    A('s_mov_b64 exec, -1')
    A.label(e)
    wait_dbg(A, D_XG, 32)

def phase_w2(A, ty):
    tag = 'AB'[ty]
    D, PK = 16, 48
    vXG, vFL, vFV = 8, 9, 10
    def X(b, t, ks):
        r = 64 + b * 112 + (t * 14 + ks) * 4
        return u(r if r < 256 else r - 256 + 256 + 224, 4)
    A.label('L_w2' + tag)
    lexpr(A, v(vXG), 'v0', [(0, 6, 16)], 0, 'v1')
    A('s_lshl_b32 %s, %s, 2' % (s(sT0), s(sA)))
    A('s_add_u32 %s, %s, %s' % (s(sT0), s(sT0), s(sWAVE)))
    A('s_lshl_b32 %s, %s, 2' % (s(sT0), s(sT0)))
    A('s_add_u32 %s, %s, %d' % (s(sT0), s(sT0), FLG_W2 + ty * 1792))
    A('v_mov_b32 v1, %s' % s(sT0))
    A('v_mov_b32 v2, %d' % OOB)
    A('v_cmp_eq_u32 vcc, 0, v0')
    A('v_cndmask_b32 %s, v2, v1, vcc' % v(vFL))
    A('s_mul_i32 %s, %s, 28672' % (s(sO1), s(sWAVE)))
    A('s_add_u32 %s, %s, %d' % (s(sO1), s(sO1), XG_OFF))
    A('s_mul_i32 %s, %s, %d' % (s(sT0), s(sWAVE), 16 * 28672))
    A('s_add_u32 %s, %s, %s' % (s(sO3), s(sO3), s(sT0)))
    A('s_mov_b32 %s, 0' % s(sCNT))
    def loads(b):
        out = []
        for n in range(28):
            ks, t = n >> 1, n & 1
            off = t * 14336 + ks * 1024
            g = []
            if n % 2 == 0 or True:
                g.append('s_add_u32 %s, %s, %d' % (s(sT2), s(sO1), off & ~4095))
            g.append('buffer_load_dwordx4 %s, %s, %s, %s offen offset:%d sc1' % (X(b, t, ks), v(vXG), s(S_WS, 4), s(sT2), off & 4095))
            out.append(g)
        return out
    for g in loads(0):
        for x in g: A(x)
    A('s_add_u32 %s, %s, %d' % (s(sO1), s(sO1), 4 * 28672))
    for _ in range(5): A('buffer_store_dword v1, v2, %s, 0 offen' % s(S_WS, 4))
    LP = 'L_w2loop' + tag
    A.label(LP)
    for b in range(2):
        ld = loads(1 - b)
        issued = 0
        for ks in range(14):
            A('s_waitcnt vmcnt(%d)' % min(63, 26 - 2 * ks + 5 + issued))
            for t in range(2):
                for nt in range(4):
                    d = v(D + (t * 4 + nt) * 4, 4)
                    w_, x_ = u(WF + (nt * 14 + ks) * 4, 4), X(b, t, ks)
                    a_, b_ = (w_, x_) if ty == 0 else (x_, w_)
                    A('v_mfma_f32_16x16x32_bf16 %s, %s, %s, %s' % (d, a_, b_, '0' if ks == 0 else d))
                    if nt == 1:
                        for x in ld.pop(0): A(x)
                        issued += 1
        A('s_add_u32 %s, %s, %d' % (s(sO1), s(sO1), 4 * 28672))
        A('s_waitcnt vmcnt(28)')
        A('v_mov_b32 %s, %s' % (v(vFV), s(sCNT)))
        A('buffer_store_dword %s, %s, %s, 0 offen sc1' % (v(vFV), v(vFL), s(S_WS, 4)))
        for k in range(4):
            if ty == 0: t, aa = k >> 1, k & 1; d0, d1 = D + (t * 4 + 2 * aa) * 4, D + (t * 4 + 2 * aa + 1) * 4
            else: d0, d1 = D + k * 4, D + (4 + k) * 4
            A('v_cvt_pk_bf16_f32 %s, %s, %s' % (v(PK + 4 * k), v(d0), v(d0 + 1)))
            A('v_cvt_pk_bf16_f32 %s, %s, %s' % (v(PK + 4 * k + 1), v(d0 + 2), v(d0 + 3)))
            A('v_cvt_pk_bf16_f32 %s, %s, %s' % (v(PK + 4 * k + 2), v(d1), v(d1 + 1)))
            A('v_cvt_pk_bf16_f32 %s, %s, %s' % (v(PK + 4 * k + 3), v(d1 + 2), v(d1 + 3)))
            A('buffer_store_dwordx4 %s, %s, %s, %s offen sc1' % (v(PK + 4 * k, 4), v(vST + k), s(S_WS, 4), s(sO3)))
        A('s_add_u32 %s, %s, %d' % (s(sO3), s(sO3), 4 * 16 * 28672))
        A('s_add_u32 %s, %s, 1' % (s(sCNT), s(sCNT)))
    A('s_cmp_lt_u32 %s, 16' % s(sCNT))
    A('s_cbranch_scc1 %s' % LP)
    A('s_waitcnt vmcnt(0)')
    A('v_mov_b32 %s, 16' % v(vFV))
    A('buffer_store_dword %s, %s, %s, 0 offen sc1' % (v(vFV), v(vFL), s(S_WS, 4)))

def wait_flags(A, vaddr, soff, sval, sleep, tmp='v3'):
    l = A.newlabel('L_wf')
    A.label(l)
    A('buffer_load_dword %s, %s, %s, %s offen sc1' % (tmp, vaddr, s(S_WS, 4), soff))
    A('s_waitcnt vmcnt(0)')
    A('v_cmp_gt_u32 vcc, %s, %s' % (sval, tmp))
    spin_check(A, l, ['s_sleep %d' % sleep])

def lane0_addr(A, dst, sreg):
    A('v_mov_b32 v1, %s' % sreg)
    A('v_mov_b32 v2, %d' % OOB)
    A('v_cmp_eq_u32 vcc, 0, v0')
    A('v_cndmask_b32 %s, v2, v1, vcc' % dst)

def phase_z(A):
    D, M = 16, 64
    vHF, vHM, vFL = 8, 9, 10
    lexpr(A, v(vHF), 'v0', [(0, 5, 4)], FLG_HM, 'v1')
    lexpr(A, v(vHM), 'v0', [(4, 2, 128), (0, 3, 16)], 0, 'v1')
    A('v_add_u32 v11, 4096, %s' % v(vHM))
    A('s_lshl_b32 %s, %s, 2' % (s(sT0), s(sA)))
    A('s_add_u32 %s, %s, %s' % (s(sT0), s(sT0), s(sWAVE)))
    A('s_lshl_b32 %s, %s, 2' % (s(sT0), s(sT0)))
    A('s_add_u32 %s, %s, %d' % (s(sT0), s(sT0), FLG_Z))
    lane0_addr(A, v(vFL), s(sT0))
    A('s_lshr_b32 %s, %s, 2' % (s(sT0), s(sH)))
    A('s_sub_u32 %s, %s, %s' % (s(sT0), s(sH), s(sT0)))
    A('s_mul_i32 %s, %s, 28672' % (s(sT0), s(sT0)))
    A('s_and_b32 %s, %s, 3' % (s(sT1), s(sH)))
    A('s_mul_i32 %s, %s, 224' % (s(sT1), s(sT1)))
    A('s_sub_u32 %s, %s, %s' % (s(sT0), s(sT0), s(sT1)))
    lexpr(A, 'v12', 'v0', [(4, 2, 216)], s(sT0), 'v1')
    A('v_cmp_gt_u32 vcc, 32, v0')
    for nt in range(4):
        A('v_sub_u32 %s, %s, v12' % (v(vST + nt), v(vST + nt)))
        A('v_cndmask_b32 %s, v2, %s, vcc' % (v(vST + nt), v(vST + nt)))
    A('s_mov_b32 %s, %s' % (s(sSEG), s(sWAVE)))
    A('s_mov_b32 %s, 0' % s(sCNT))
    A.label('L_zloop')
    A('s_add_u32 %s, %s, 1' % (s(sT0), s(sSEG)))
    wait_flags(A, v(vHF), '0', s(sT0), 8)
    A('s_mul_i32 %s, %s, %d' % (s(sO1), s(sSEG), HM_STEP))
    A('s_add_u32 %s, %s, %d' % (s(sO1), s(sO1), HM_OFF))
    A('s_mul_i32 %s, %s, %d' % (s(sO2), s(sSEG), HZ_STEP))
    A('s_add_u32 %s, %s, %d' % (s(sO2), s(sO2), HZ_OFF))
    for ks in range(14):
        A('buffer_load_dwordx4 %s, %s, %s, %s offen offset:%d sc1' % (v(M + 4 * ks, 4), v(vHM) if ks < 8 else 'v11', s(S_WS, 4), s(sO1), (ks & 7) * 512))
    for ks in range(14):
        A('s_waitcnt vmcnt(%d)' % (13 - ks))
        for nt in range(4):
            d = v(D + 4 * nt, 4)
            A('v_mfma_f32_16x16x32_bf16 %s, %s, %s, %s' % (d, v(M + 4 * ks, 4), u(WF + (nt * 14 + ks) * 4, 4), '0' if ks == 0 else d))
    for nt in range(4):
        d = D + 4 * nt
        A('v_cvt_pk_bf16_f32 %s, %s, %s' % (v(d), v(d), v(d + 1)))
        A('v_cvt_pk_bf16_f32 %s, %s, %s' % (v(d + 1), v(d + 2), v(d + 3)))
        A('buffer_store_dwordx2 %s, %s, %s, %s offen sc1' % (v(d, 2), v(vST + nt), s(S_WS, 4), s(sO2)))
    A('s_add_u32 %s, %s, 1' % (s(sCNT), s(sCNT)))
    A('v_mov_b32 v3, %s' % s(sCNT))
    A('s_waitcnt vmcnt(0)')
    A('buffer_store_dword v3, %s, %s, 0 offen sc1' % (v(vFL), s(S_WS, 4)))
    A('s_add_u32 %s, %s, 4' % (s(sSEG), s(sSEG)))
    A('s_cmp_lt_u32 %s, 64' % s(sSEG))
    A('s_cbranch_scc1 L_zloop')

sK = 82
def post_dispatch(A):
    A('s_and_b32 %s, %s, 7' % (s(sK), s(sA)))
    A('s_lshr_b32 %s, %s, 3' % (s(sSEG), s(sA)))
    A('s_cmp_ge_u32 %s, 4' % s(sK))
    A('s_cbranch_scc1 L_s2')

def seg_count(A, dst):
    A('s_lshr_b32 %s, %s, 2' % (dst, s(sSEG)))
    A('s_add_u32 %s, %s, 1' % (dst, dst))
    A('s_and_b32 %s, %s, 3' % (s(sT1), s(sSEG)))
    A('s_lshl_b32 %s, %s, 2' % (s(sT1), s(sT1)))

def phase_s1(A):
    XG_, YX_, HM_, D = 256, 256 + 112, 64, 16
    vL16, vYF, vHF, vHM, vHM2, vDL, vPX, vPM, vFL = 4, 5, 6, 7, 8, 9, 10, 11, 12
    T = 40
    sHD = sH
    A.label('L_s1')
    A('s_lshl_b32 %s, %s, 2' % (s(sHD), s(sK)))
    A('s_add_u32 %s, %s, %s' % (s(sHD), s(sHD), s(sWAVE)))
    lexpr(A, v(vL16), 'v0', [(0, 6, 16)], 0, 'v1')
    A('v_min_u32 v1, 6, v0')
    A('s_mul_i32 %s, %s, 7' % (s(sT0), s(sHD)))
    A('v_add_u32 v1, %s, v1' % s(sT0))
    A('v_lshlrev_b32 v1, 4, v1')
    A('v_add_u32 %s, %d, v1' % (v(vYF), FLG_W2))
    lexpr(A, v(vHF), 'v0', [(0, 5, 4)], FLG_HM, 'v1')
    lexpr(A, v(vHM), 'v0', [(4, 2, 128), (0, 3, 16)], 0, 'v1')
    A('v_add_u32 %s, 4096, %s' % (v(vHM2), v(vHM)))
    lexpr(A, v(vDL), 'v0', [(2, 2, 8), (0, 2, 1)], 0, 'v1')
    A('v_lshrrev_b32 v1, 4, v0')
    A('v_lshlrev_b32 v1, 3, v1')
    A('v_sub_u32 %s, %s, v1' % (v(vDL), v(vDL)))
    A('s_lshl_b32 %s, %s, 11' % (s(sT0), s(sHD)))
    A('v_add_u32 %s, %s, %s' % (v(vPX), s(sT0), v(vL16)))
    A('s_lshl_b32 %s, %s, 11' % (s(sT0), s(sK)))
    A('s_lshl_b32 %s, %s, 8' % (s(sT1), s(sWAVE)))
    A('s_add_u32 %s, %s, %s' % (s(sT0), s(sT0), s(sT1)))
    A('s_add_u32 %s, %s, %d' % (s(sT0), s(sT0), 16 * 2048))
    lexpr(A, 'v13', 'v0', [(0, 4, 16), (4, 1, 8)], s(sT0), 'v1')
    A('v_mov_b32 v2, %d' % OOB)
    A('v_cmp_gt_u32 vcc, 32, v0')
    A('v_cndmask_b32 %s, v2, v13, vcc' % v(vPM))
    A('s_lshl_b32 %s, %s, 2' % (s(sT0), s(sHD)))
    A('s_add_u32 %s, %s, %d' % (s(sT0), s(sT0), FLG_P))
    lane0_addr(A, v(vFL), s(sT0))
    A('v_mov_b32 v14, 0x%x' % f2u(-1.0e9 * 1.4426950408889634))
    A('v_mov_b32 v15, 0xff800000')
    A.label('L_s1loop')
    seg_count(A, s(sT0))
    wait_flags(A, v(vYF), s(sT1), s(sT0), 16)
    A('s_mul_i32 %s, %s, 28672' % (s(sO1), s(sSEG)))
    A('s_add_u32 %s, %s, %d' % (s(sO1), s(sO1), XG_OFF))
    A('s_lshl_b32 %s, %s, 4' % (s(sO2), s(sSEG)))
    A('s_add_u32 %s, %s, %s' % (s(sO2), s(sO2), s(sHD)))
    A('s_mul_i32 %s, %s, 28672' % (s(sO2), s(sO2)))
    A('s_add_u32 %s, %s, %d' % (s(sO2), s(sO2), YX_OFF))
    for ks in range(14):
        for base, so in ((XG_, sO1), (YX_, sO2)):
            for t in range(2):
                off = t * 14336 + ks * 1024
                A('s_add_u32 %s, %s, %d' % (s(sT2), s(so), off & ~4095))
                A('buffer_load_dwordx4 %s, %s, %s, %s offen offset:%d sc1' % (u(base + (t * 14 + ks) * 4, 4), v(vL16), s(S_WS, 4), s(sT2), off & 4095))
    def Dr(qt, t): return D + (qt * 3 + t) * 4
    for ks in range(14):
        A('s_waitcnt vmcnt(%d)' % (52 - 4 * ks))
        for qt in range(2):
            for t in range(2):
                d = v(Dr(qt, t), 4)
                A('v_mfma_f32_16x16x32_bf16 %s, %s, %s, %s' % (d, u(XG_ + (t * 14 + ks) * 4, 4), u(YX_ + (qt * 14 + ks) * 4, 4), '0' if ks == 0 else d))
    for qt in range(2):
        for t in range(2):
            for r in range(4):
                A('v_cmp_le_i32 vcc, %d, %s' % (4 * (t - qt) + r, v(vDL)))
                A('v_cndmask_b32 %s, v14, %s, vcc' % (v(Dr(qt, t) + r), v(Dr(qt, t) + r)))
        d = Dr(qt, 0)
        A('v_max3_f32 %s, %s, %s, %s' % (v(T + qt), v(d), v(d + 1), v(d + 2)))
        A('v_max3_f32 %s, %s, %s, %s' % (v(T + qt), v(T + qt), v(d + 3), v(d + 4)))
        A('v_max3_f32 %s, %s, %s, %s' % (v(T + qt), v(T + qt), v(d + 5), v(d + 6)))
        A('v_max_f32 %s, %s, %s' % (v(T + qt), v(T + qt), v(d + 7)))
    A('s_add_u32 %s, %s, 1' % (s(sT0), s(sSEG)))
    wait_flags(A, v(vHF), '0', s(sT0), 4)
    A('s_mul_i32 %s, %s, %d' % (s(sO1), s(sSEG), HM_STEP))
    A('s_add_u32 %s, %s, %d' % (s(sO1), s(sO1), HM_OFF))
    for ks in range(14):
        A('buffer_load_dwordx4 %s, %s, %s, %s offen offset:%d sc1' % (v(HM_ + 4 * ks, 4), v(vHM if ks < 8 else vHM2), s(S_WS, 4), s(sO1), (ks & 7) * 512))
    A('s_mul_i32 %s, %s, 40960' % (s(sO3), s(sSEG)))
    A('s_add_u32 %s, %s, %d' % (s(sO3), s(sO3), PP_OFF))
    A('v_cmp_gt_u32 vcc, 32, v0')
    for ks in range(14):
        A('s_waitcnt vmcnt(%d)' % (13 - ks))
        for qt in range(2):
            d = v(Dr(qt, 2), 4)
            A('v_mfma_f32_16x16x32_bf16 %s, %s, %s, %s' % (d, v(HM_ + 4 * ks, 4), u(YX_ + (qt * 14 + ks) * 4, 4), '0' if ks == 0 else d))
    def xred(op):
        for sw in ('v_permlane16_swap_b32', 'v_permlane32_swap_b32'):
            for qt in range(2): A('v_mov_b32 %s, %s' % (v(T + 2 + qt), v(T + qt)))
            for qt in range(2): A('%s %s, %s' % (sw, v(T + qt), v(T + 2 + qt)))
            for qt in range(2): A('%s %s, %s, %s' % (op, v(T + qt), v(T + qt), v(T + 2 + qt)))
    for qt in range(2):
        d = Dr(qt, 2)
        for r in range(4): A('v_cndmask_b32 %s, v15, %s, vcc' % (v(d + r), v(d + r)))
        A('v_max3_f32 %s, %s, %s, %s' % (v(T + qt), v(T + qt), v(d), v(d + 1)))
        A('v_max3_f32 %s, %s, %s, %s' % (v(T + qt), v(T + qt), v(d + 2), v(d + 3)))
    xred('v_max_f32')
    for qt in range(2):
        d = Dr(qt, 0)
        for i in range(12): A('v_sub_f32 %s, %s, %s' % (v(d + i), v(d + i), v(T + qt)))
        for i in range(12): A('v_exp_f32 %s, %s' % (v(d + i), v(d + i)))
    for qt in range(2):
        d = Dr(qt, 0)
        A('v_add_f32 %s, %s, %s' % (v(T + qt), v(d), v(d + 1)))
        for i in range(2, 12): A('v_add_f32 %s, %s, %s' % (v(T + qt), v(T + qt), v(d + i)))
    xred('v_add_f32')
    for qt in range(2): A('v_rcp_f32 %s, %s' % (v(T + qt), v(T + qt)))
    for qt in range(2):
        d = Dr(qt, 0); o = T + 4 + 8 * qt
        for i in range(12): A('v_mul_f32 %s, %s, %s' % (v(d + i), v(d + i), v(T + qt)))
        for i in range(6): A('v_cvt_pk_bf16_f32 %s, %s, %s' % (v(o + i), v(d + 2 * i), v(d + 2 * i + 1)))
        A('buffer_store_dwordx4 %s, %s, %s, %s offen offset:%d sc1' % (v(o, 4), v(vPX), s(S_WS, 4), s(sO3), qt * 1024))
        A('buffer_store_dwordx2 %s, %s, %s, %s offen offset:%d sc1' % (v(o + 4, 2), v(vPM), s(S_WS, 4), s(sO3), qt * 1024))
    A('v_mov_b32 v3, 1')
    A('s_lshl_b32 %s, %s, 6' % (s(sT0), s(sSEG)))
    A('s_waitcnt vmcnt(0)')
    A('buffer_store_dword v3, %s, %s, %s offen sc1' % (v(vFL), s(S_WS, 4), s(sT0)))
    A('s_add_u32 %s, %s, 14' % (s(sSEG), s(sSEG)))
    A('s_cmp_lt_u32 %s, 64' % s(sSEG))
    A('s_cbranch_scc1 L_s1loop')

def phase_s2(A):
    U_, Z_, P_, D = 256, 64, 128, 16
    vV, vGF, vPF, vP, vO, vO2 = 4, 5, 6, 7, 8, 9
    A.label('L_s2')
    A('s_sub_u32 %s, %s, 4' % (s(sK), s(sK)))
    A('s_lshl_b32 %s, %s, 2' % (s(sT3), s(sK)))
    A('s_and_b32 %s, %s, 2' % (s(sT0), s(sWAVE)))
    A('s_add_u32 %s, %s, %s' % (s(sT3), s(sT3), s(sT0)))
    A('s_mul_i32 %s, %s, 1792' % (s(sT0), s(sT3)))
    lexpr(A, v(vV), 'v0', [(4, 2, 224), (0, 4, 16)], s(sT0), 'v1')
    A('s_mul_i32 %s, %s, 28' % (s(sT0), s(sT3)))
    lexpr(A, 'v10', 'v0', [(4, 1, 55)], s(sT0), 'v1')
    A('v_lshrrev_b32 v10, 6, v10')
    lexpr(A, 'v11', 'v0', [(0, 4, 7)], 0, 'v1')
    A('v_add_u32 v10, v10, v11')
    A('v_lshlrev_b32 %s, 4, v10' % v(vGF))
    lexpr(A, v(vPF), 'v0', [(0, 4, 4)], FLG_P, 'v1')
    A('s_and_b32 %s, %s, 1' % (s(sT4), s(sWAVE)))
    A('s_lshl_b32 %s, %s, 10' % (s(sT0), s(sT4)))
    lexpr(A, v(vP), 'v0', [(0, 6, 16)], s(sT0), 'v1')
    A('s_mul_i32 %s, %s, %d' % (s(sT0), s(sT4), 4 * 1792))
    A('s_mul_i32 %s, %s, 56' % (s(sT1), s(sT3)))
    A('s_add_u32 %s, %s, %s' % (s(sT0), s(sT0), s(sT1)))
    A('s_add_u32 %s, %s, 896' % (s(sT0), s(sT0)))
    lexpr(A, v(vO), 'v0', [(2, 2, 8 * 1792), (0, 2, 1792), (4, 2, 16)], s(sT0), 'v1')
    A('v_mov_b32 v2, %d' % OOB)
    A('v_cmp_gt_u32 vcc, 48, v0')
    A('v_cndmask_b32 %s, v2, %s, vcc' % (v(vO2), v(vO)))
    A.label('L_s2loop')
    seg_count(A, s(sCNT))
    A('s_add_u32 %s, %s, %d' % (s(sO3), s(sT1), FLG_Z))
    A('s_add_u32 %s, %s, %d' % (s(sT1), s(sT1), FLG_W2 + 1792))
    wait_flags(A, v(vGF), s(sT1), s(sCNT), 16)
    A('s_mul_i32 %s, %s, %d' % (s(sO1), s(sSEG), 16 * 28672))
    A('s_add_u32 %s, %s, %d' % (s(sO1), s(sO1), U_OFF))
    for c in range(16):
        for tl in range(4):
            A('buffer_load_dwordx4 %s, %s, %s, %s offen offset:%d sc1' % (u(U_ + (c * 4 + tl) * 4, 4), v(vV), s(S_WS, 4), s(sO1), tl * 896))
        A('s_add_u32 %s, %s, 28672' % (s(sO1), s(sO1)))
        if c == 11: A('s_waitcnt vmcnt(32)')
    A('s_lshl_b32 %s, %s, 6' % (s(sT0), s(sSEG)))
    wait_flags(A, v(vPF), s(sT0), '1', 4)
    A('s_mul_i32 %s, %s, 40960' % (s(sO2), s(sSEG)))
    A('s_add_u32 %s, %s, %d' % (s(sO2), s(sO2), PP_OFF))
    for c in range(20):
        A('buffer_load_dwordx4 %s, %s, %s, %s offen offset:%d sc1' % (v(P_ + 4 * c, 4), v(vP), s(S_WS, 4), s(sO2), (c & 1) * 2048))
        if c & 1: A('s_add_u32 %s, %s, 4096' % (s(sO2), s(sO2)))
    wait_flags(A, v(vGF), s(sO3), s(sCNT), 2)
    A('s_mul_i32 %s, %s, %d' % (s(sO1), s(sSEG), HZ_STEP))
    A('s_add_u32 %s, %s, %d' % (s(sO1), s(sO1), HZ_OFF))
    for c in range(4):
        for tl in range(4):
            A('buffer_load_dwordx4 %s, %s, %s, %s offen offset:%d sc1' % (v(Z_ + (c * 4 + tl) * 4, 4), v(vV), s(S_WS, 4), s(sO1), tl * 896))
        A('s_add_u32 %s, %s, 28672' % (s(sO1), s(sO1)))
    for c in range(20):
        if c >= 16: A('s_waitcnt vmcnt(%d)' % (12 - 4 * (c - 16)))
        for tl in range(4):
            d = v(D + 4 * tl, 4)
            a_ = u(U_ + (c * 4 + tl) * 4, 4) if c < 16 else v(Z_ + ((c - 16) * 4 + tl) * 4, 4)
            A('v_mfma_f32_16x16x32_bf16 %s, %s, %s, %s' % (d, a_, v(P_ + 4 * c, 4), '0' if c == 0 else d))
    A('s_mul_i32 %s, %s, %d' % (s(sO1), s(sSEG), 32 * 1792))
    for b in range(2):
        e, o, pk = D + 8 * b, D + 8 * b + 4, 32 + 4 * b
        for r in range(4): A('v_cvt_pk_bf16_f32 %s, %s, %s' % (v(pk + r), v(e + r), v(o + r)))
        A('buffer_store_dwordx2 %s, %s, %s, %s offen offset:%d' % (v(pk, 2), v(vO), s(S_OUT, 4), s(sO1), 56 * b))
        A('buffer_store_dwordx2 %s, %s, %s, %s offen offset:%d' % (v(pk + 2, 2), v(vO2), s(S_OUT, 4), s(sO1), 56 * b + 8))
    A('s_add_u32 %s, %s, 14' % (s(sSEG), s(sSEG)))
    A('s_cmp_lt_u32 %s, 64' % s(sSEG))
    A('s_cbranch_scc1 L_s2loop')

LOG2E = 1.4426950408889634
def phase_a1(A):
    ST = 208
    def WQ(x, tl, ks):
        i = ((x * 2 + tl) * 14 + ks) * 4
        return a(i, 4) if i < 256 else v(176 + i - 256, 4)
    def WQh(x, tl, ks, t):
        i = ((x * 2 + tl) * 14 + ks) * 4 + 2 * t
        return a(i, 2) if i < 256 else v(176 + i - 256, 2)
    X_, D, KV, PQ = 120, 16, 64, 80
    T = 104
    vG, vW, vR, vR2, vX = 4, 5, 6, 7, 8
    sBLK, sI = sSEG, sCNT
    A('s_barrier')
    lexpr(A, v(vG), 'v0', [(2, 4, 2688), (0, 2, 16)], 0, 'v1')
    A('s_mul_i32 %s, %s, %d' % (s(sO1), s(sWAVE), 112 * 2688))
    A('s_mul_i32 %s, %s, 56' % (s(sT0), s(sH)))
    A('s_add_u32 %s, %s, %s' % (s(sO1), s(sO1), s(sT0)))
    for j in range(21):
        A('buffer_load_dwordx4 %s, %s, %s, %s offen offset:%d' % (v(16 + 4 * j, 4), v(vG), s(S_AW, 4), s(sO1), (j % 3) * 896))
        if j % 3 == 2: A('s_add_u32 %s, %s, %d' % (s(sO1), s(sO1), 16 * 2688))
    A('s_mul_i32 %s, %s, %d' % (s(sT0), s(sWAVE), 112 * ST))
    lexpr(A, v(vW), 'v0', [(2, 4, ST), (0, 2, 16)], s(sT0), 'v1')
    for j in range(21):
        A('s_waitcnt vmcnt(%d)' % (20 - j))
        A('ds_write_b128 %s, %s offset:%d' % (v(vW), v(16 + 4 * j, 4), (j // 3) * 16 * ST + (j % 3) * 64))
        if j % 6 == 5: A('s_waitcnt lgkmcnt(6)')
    lexpr(A, v(vR), 'v0', [(4, 2, 8 * ST), (2, 2, ST), (0, 2, 16)], 0, 'v1')
    A('v_add_u32 %s, %d, %s' % (v(vR2), 7 * 32 * ST, v(vR)))
    A('s_waitcnt lgkmcnt(0)')
    A('s_barrier')
    n = 0
    for x in range(3):
        for tl in range(2):
            for ks in range(14):
                for t in range(2):
                    A('ds_read_b64_tr_b16 %s, %s offset:%d' % (WQh(x, tl, ks, t), v(vR if ks < 7 else vR2), (32 * (ks % 7) + 4 * t) * ST + x * 64 + tl * 8))
                    n += 1
                    if n % 6 == 0: A('s_waitcnt lgkmcnt(6)')
    lexpr(A, v(vX), 'v0', [(0, 4, 896), (4, 2, 16)], 0, 'v1')
    A('v_add_u32 v9, %d, %s' % (16 * 896, v(vX)))
    for i in range(16): A('v_mov_b32 %s, 0' % v(KV + i))
    A('s_mov_b32 %s, 0x%x' % (s(sSC), f2u(LOG2E)))
    A('s_mov_b32 %s, 0x%x' % (s(sO3), f2u(1e-6)))
    A('v_and_b32 v1, 15, v0')
    A('v_cmp_le_u32 s[96:97], 12, v1')
    A('v_cmp_eq_u32 s[98:99], 12, v1')
    A('v_cmp_le_u32 s[100:101], 48, v0')
    A('s_lshl_b32 %s, %s, 2' % (s(sBLK), s(sQ)))
    A('s_add_u32 %s, %s, %s' % (s(sBLK), s(sBLK), s(sWAVE)))
    A('s_waitcnt lgkmcnt(0)')
    def phi(r):
        A('v_mul_f32 %s, %s, %s' % (v(T), s(sSC), v(r)))
        A('v_exp_f32 %s, %s' % (v(T), v(T)))
        A('v_cmp_lt_f32 vcc, 0, %s' % v(r))
        A('v_add_f32 %s, 1.0, %s' % (v(r), v(r)))
        A('v_cndmask_b32 %s, %s, %s, vcc' % (v(r), v(T), v(r)))
        A('v_add_f32 %s, %s, %s' % (v(r), s(sO3), v(r)))
    def Dk(x, t, tl): return D + (((x - 1) * 2 + tl) * 2 + t) * 4
    def Dq(t, tl): return D + 32 + (t * 2 + tl) * 4
    A('s_mov_b32 %s, 0' % s(sI))
    A.label('L_a1loop')
    A('s_mul_i32 %s, %s, %d' % (s(sO1), s(sBLK), 32 * 896))
    for hf in range(2):
        for k7 in range(7):
            for t in range(2):
                A('buffer_load_dwordx4 %s, %s, %s, %s offen offset:%d' % (v(X_ + (k7 * 2 + t) * 4, 4), v(vX) if t == 0 else 'v9', s(S_AX, 4), s(sO1), (7 * hf + k7) * 64))
        for k7 in range(7):
            ks = 7 * hf + k7
            A('s_waitcnt vmcnt(%d)' % (12 - 2 * k7))
            for t in range(2):
                xf = v(X_ + (k7 * 2 + t) * 4, 4)
                for tl in range(2):
                    for x in (1, 2):
                        d = v(Dk(x, t, tl), 4)
                        A('v_mfma_f32_16x16x32_bf16 %s, %s, %s, %s' % (d, xf, WQ(x, tl, ks), '0' if ks == 0 else d))
                    d = v(Dq(t, tl), 4)
                    A('v_mfma_f32_16x16x32_bf16 %s, %s, %s, %s' % (d, WQ(0, tl, ks), xf, '0' if ks == 0 else d))
        A('s_nop 7')
    for tl in range(2):
        b = Dk(1, 0, tl)
        for i in range(8):
            phi(b + i)
            if tl == 1: A('v_cndmask_b32 %s, %s, 0, s[96:97]' % (v(b + i), v(b + i)))
        for i in range(4): A('v_cvt_pk_bf16_f32 %s, %s, %s' % (v(b + i), v(b + 2 * i), v(b + 2 * i + 1)))
        b = Dk(2, 0, tl)
        if tl == 1:
            for i in range(8):
                A('v_cndmask_b32 %s, %s, 0, s[96:97]' % (v(b + i), v(b + i)))
                A('v_cndmask_b32 %s, %s, 1.0, s[98:99]' % (v(b + i), v(b + i)))
        for i in range(4): A('v_cvt_pk_bf16_f32 %s, %s, %s' % (v(b + i), v(b + 2 * i), v(b + 2 * i + 1)))
    for dt in range(2):
        for et in range(2):
            d = v(KV + (dt * 2 + et) * 4, 4)
            A('v_mfma_f32_16x16x32_bf16 %s, %s, %s, %s' % (d, v(Dk(1, 0, dt), 4), v(Dk(2, 0, et), 4), d))
    for i in range(15, -1, -1): A('v_mov_b32 %s, %s' % (v(PQ + 8 + i), v(PQ + i)))
    for t in range(2):
        b = Dq(t, 0)
        for i in range(8):
            phi(b + i)
            if i >= 4: A('v_cndmask_b32 %s, %s, 0, s[100:101]' % (v(b + i), v(b + i)))
        for i in range(4): A('v_cvt_pk_bf16_f32 %s, %s, %s' % (v(PQ + 4 * t + i), v(b + 2 * i), v(b + 2 * i + 1)))
    A('s_add_u32 %s, %s, 1' % (s(sI), s(sI)))
    A('s_add_u32 %s, %s, 28' % (s(sBLK), s(sBLK)))
    A('s_cmp_lt_u32 %s, 64' % s(sBLK))
    A('s_cbranch_scc1 L_a1loop')
    LK = 98304
    A('s_lshl_b32 %s, %s, 12' % (s(sT0), s(sWAVE)))
    A('s_add_u32 %s, %s, %d' % (s(sT0), s(sT0), LK))
    lexpr(A, v(vW), 'v0', [(0, 6, 16)], s(sT0), 'v1')
    for j in range(4): A('ds_write_b128 %s, %s offset:%d' % (v(vW), v(KV + 4 * j, 4), j * 1024))
    A('s_lshl_b32 %s, %s, 10' % (s(sT0), s(sWAVE)))
    lexpr(A, v(vR), 'v0', [(0, 6, 16)], s(sT0), 'v1')
    A('v_add_u32 %s, %d, %s' % (v(vR2), LK, v(vR)))
    A('s_waitcnt lgkmcnt(0)')
    A('s_barrier')
    for j in range(4): A('ds_read_b128 %s, %s offset:%d' % (v(D + 4 * j, 4), v(vR2), j * 4096))
    A('s_waitcnt lgkmcnt(0)')
    for r in range(4):
        A('v_add_f32 %s, %s, %s' % (v(D + r), v(D + r), v(D + 4 + r)))
        A('v_add_f32 %s, %s, %s' % (v(D + 8 + r), v(D + 8 + r), v(D + 12 + r)))
        A('v_add_f32 %s, %s, %s' % (v(D + r), v(D + r), v(D + 8 + r)))
    A('s_lshl_b32 %s, %s, 12' % (s(sT0), s(sA)))
    A('s_add_u32 %s, %s, %d' % (s(sT0), s(sT0), KVP_OFF))
    A('buffer_store_dwordx4 %s, %s, %s, %s offen sc1' % (v(D, 4), v(vR), s(S_WS, 4), s(sT0)))
    A('s_lshl_b32 %s, %s, 6' % (s(sT0), s(sA)))
    A('s_lshl_b32 %s, %s, 2' % (s(sT1), s(sWAVE)))
    A('s_add_u32 %s, %s, %s' % (s(sT0), s(sT0), s(sT1)))
    A('s_add_u32 %s, %s, %d' % (s(sT0), s(sT0), FLG_KV))
    lane0_addr(A, 'v10', s(sT0))
    A('v_mov_b32 v3, 1')
    A('s_waitcnt vmcnt(0)')
    A('buffer_store_dword v3, v10, %s, 0 offen sc1' % s(S_WS, 4))
    A('v_lshrrev_b32 v1, 2, v0')
    A('v_min_u32 v1, 6, v1')
    A('v_lshlrev_b32 v1, 6, v1')
    A('v_and_b32 v2, 3, v0')
    A('v_lshl_add_u32 v10, v2, 2, v1')
    A('s_mul_i32 %s, %s, %d' % (s(sT0), s(sH), 7 * 64))
    A('s_add_u32 %s, %s, %d' % (s(sT0), s(sT0), FLG_KV))
    wait_flags(A, 'v10', s(sT0), '1', 8)
    lexpr(A, v(vG), 'v0', [(0, 6, 16)], 0, 'v1')
    lexpr(A, v(vW), 'v0', [(4, 2, 256)], 12 * 16, 'v1')
    A('s_mul_i32 %s, %s, %d' % (s(sO1), s(sH), 7 * 4096))
    A('s_add_u32 %s, %s, %d' % (s(sO1), s(sO1), KVP_OFF))
    GB = 104
    def gr(q): return (GB + 24 * q) if q < 6 else D
    for q in range(7):
        for j in range(4):
            A('buffer_load_dwordx4 %s, %s, %s, %s offen offset:%d sc1' % (v(gr(q) + 4 * j, 4), v(vG), s(S_WS, 4), s(sO1), j * 1024))
        for dt in range(2):
            A('buffer_load_dwordx4 %s, %s, %s, %s offen offset:%d sc1' % (v(gr(q) + 16 + 4 * dt, 4), v(vW), s(S_WS, 4), s(sO1), (dt * 2 + 1) * 1024))
        A('s_add_u32 %s, %s, 4096' % (s(sO1), s(sO1)))
    A('s_waitcnt vmcnt(0)')
    for q in range(6):
        for i in range(24): A('v_add_f32 %s, %s, %s' % (v(D + i), v(D + i), v(gr(q) + i)))
    for et in range(2):
        for dt in range(2):
            b = D + (dt * 2 + et) * 4
            A('v_cvt_pk_bf16_f32 %s, %s, %s' % (v(KV + 4 * et + 2 * dt), v(b), v(b + 1)))
            A('v_cvt_pk_bf16_f32 %s, %s, %s' % (v(KV + 4 * et + 2 * dt + 1), v(b + 2), v(b + 3)))
    for i in range(4): A('v_cvt_pk_bf16_f32 %s, %s, %s' % (v(KV + 8 + i), v(D + 16 + 2 * i), v(D + 17 + 2 * i)))
    A('s_lshl_b32 %s, %s, 10' % (s(sT0), s(sH)))
    lexpr(A, v(vR), 'v0', [(0, 6, 16)], s(sT0), 'v1')
    A.label('L_a1o')
    A('s_sub_u32 %s, %s, 28' % (s(sBLK), s(sBLK)))
    A('s_lshl_b32 %s, %s, 15' % (s(sO1), s(sBLK)))
    A('s_add_u32 %s, %s, %d' % (s(sO1), s(sO1), OI_OFF))
    A('s_add_u32 %s, %s, 16384' % (s(sO2), s(sO1)))
    for t in range(2):
        b = D + 12 * t
        for j in range(3):
            A('v_mfma_f32_16x16x32_bf16 %s, %s, %s, 0' % (v(b + 4 * j, 4), v(KV + 4 * j, 4), v(PQ + 4 * t, 4)))
    for t in range(2):
        b = D + 12 * t; o = D + 24 + 4 * t
        A('v_add_f32 %s, %s, %s' % (v(b + 8), s(sO3), v(b + 8)))
        A('v_rcp_f32 %s, %s' % (v(b + 8), v(b + 8)))
        for i in range(8):
            A('v_mul_f32 %s, %s, %s' % (v(b + i), v(b + i), v(b + 8)))
            if i >= 4: A('v_cndmask_b32 %s, %s, 0, s[100:101]' % (v(b + i), v(b + i)))
        for i in range(4): A('v_cvt_pk_bf16_f32 %s, %s, %s' % (v(o + i), v(b + 2 * i), v(b + 2 * i + 1)))
        A('buffer_store_dwordx4 %s, %s, %s, %s offen sc1' % (v(o, 4), v(vR), s(S_WS, 4), s(sO1 + t)))
    for i in range(16): A('v_mov_b32 %s, %s' % (v(PQ + i), v(PQ + 8 + i)))
    A('s_sub_u32 %s, %s, 1' % (s(sI), s(sI)))
    A('s_cmp_lg_u32 %s, 0' % s(sI))
    A('s_cbranch_scc1 L_a1o')
    A('s_lshl_b32 %s, %s, 2' % (s(sT0), s(sA)))
    A('s_add_u32 %s, %s, %s' % (s(sT0), s(sT0), s(sWAVE)))
    A('s_lshl_b32 %s, %s, 2' % (s(sT0), s(sT0)))
    A('s_add_u32 %s, %s, %d' % (s(sT0), s(sT0), FLG_O))
    lane0_addr(A, 'v10', s(sT0))
    A('v_mov_b32 v3, 1')
    A('s_waitcnt vmcnt(0)')
    A('buffer_store_dword v3, v10, %s, 0 offen sc1' % s(S_WS, 4))

def phase_a2(A):
    ST = 144
    O_, D = 64, 16
    vG, vW, vR, vR2, vO = 4, 5, 6, 7, 8
    A('s_barrier')
    lexpr(A, v(vG), 'v0', [(3, 3, 896), (0, 3, 16)], 0, 'v1')
    A('s_mul_i32 %s, %s, %d' % (s(sO1), s(sWAVE), 112 * 896))
    A('s_lshl_b32 %s, %s, 7' % (s(sT0), s(sQ)))
    A('s_add_u32 %s, %s, %s' % (s(sO1), s(sO1), s(sT0)))
    for j in range(15):
        A('buffer_load_dwordx4 %s, %s, %s, %s offen' % (v(64 + 4 * j, 4), v(vG), s(S_AO, 4), s(sO1)))
        A('s_add_u32 %s, %s, %d' % (s(sO1), s(sO1), 8 * 896))
    A('s_mul_i32 %s, %s, %d' % (s(sT0), s(sWAVE), 112 * ST))
    lexpr(A, v(vW), 'v0', [(3, 3, ST), (0, 3, 16)], s(sT0), 'v1')
    for j in range(15):
        A('s_waitcnt vmcnt(%d)' % (14 - j))
        A('ds_write_b128 %s, %s offset:%d' % (v(vW), v(64 + 4 * j, 4), j * 8 * ST))
        if j % 6 == 5: A('s_waitcnt lgkmcnt(6)')
    lexpr(A, v(vR), 'v0', [(4, 2, 8 * ST), (2, 2, ST), (0, 2, 16)], 0, 'v1')
    A('s_waitcnt lgkmcnt(0)')
    A('s_barrier')
    n = 0
    for tl in range(4):
        for hh in range(16):
            for t in range(2):
                A('ds_read_b64_tr_b16 %s, %s offset:%d' % (a((tl * 16 + hh) * 4 + 2 * t, 2), v(vR), (28 * hh + 4 * t) * ST + (tl >> 1) * 64 + (tl & 1) * 8))
                n += 1
                if n % 6 == 0: A('s_waitcnt lgkmcnt(6)')
    A('s_lshl_b32 %s, %s, 2' % (s(sSEG), s(sH)))
    A('s_add_u32 %s, %s, %s' % (s(sSEG), s(sSEG), s(sWAVE)))
    A('s_mov_b32 %s, %s' % (s(sT0), s(sSEG)))
    for _ in range(2):
        A('s_sub_u32 %s, %s, 28' % (s(sT1), s(sT0)))
        A('s_cmp_ge_u32 %s, 28' % s(sT0))
        A('s_cselect_b32 %s, %s, %s' % (s(sT0), s(sT1), s(sT0)))
    A('s_lshl_b32 %s, %s, 2' % (s(sT0), s(sT0)))
    A('s_add_u32 %s, %s, %d' % (s(sT0), s(sT0), FLG_O))
    lexpr(A, 'v10', 'v0', [(0, 4, 7 * 16)], 0, 'v1')
    wait_flags(A, 'v10', s(sT0), '1', 8)
    lexpr(A, v(vG), 'v0', [(0, 6, 16)], 0, 'v1')
    A('s_lshl_b32 %s, %s, 15' % (s(sO1), s(sSEG)))
    A('s_add_u32 %s, %s, %d' % (s(sO1), s(sO1), OI_OFF))
    for i in range(32):
        A('buffer_load_dwordx4 %s, %s, %s, %s offen offset:%d sc1' % (v(O_ + 4 * i, 4), v(vG), s(S_WS, 4), s(sO1), (i & 3) * 1024))
        if i & 3 == 3: A('s_add_u32 %s, %s, 4096' % (s(sO1), s(sO1)))
    A('s_lshl_b32 %s, %s, 7' % (s(sT0), s(sQ)))
    lexpr(A, v(vO), 'v0', [(0, 4, 1792), (4, 2, 16)], s(sT0), 'v1')
    A('s_mul_i32 %s, %s, %d' % (s(sO1), s(sSEG), 32 * 1792))
    A('s_add_u32 %s, %s, %d' % (s(sO2), s(sO1), 16 * 1792))
    A('s_waitcnt lgkmcnt(0)')
    for t in range(2):
        for hh in range(16):
            A('s_waitcnt vmcnt(%d)' % (31 - (t * 16 + hh)))
            for tl in range(4):
                d = v(D + (t * 4 + tl) * 4, 4)
                A('v_mfma_f32_16x16x32_bf16 %s, %s, %s, %s' % (d, a((tl * 16 + hh) * 4, 4), v(O_ + (t * 16 + hh) * 4, 4), '0' if hh == 0 else d))
    for t in range(2):
        for aa in range(2):
            b = D + (t * 4 + 2 * aa) * 4; o = 48 + (t * 2 + aa) * 4
            for i in range(4): A('v_cvt_pk_bf16_f32 %s, %s, %s' % (v(o + i), v(b + 2 * i), v(b + 2 * i + 1)))
            A('buffer_store_dwordx4 %s, %s, %s, %s offen offset:%d' % (v(o, 4), v(vO), s(S_OUT, 4), s(sO1 + t), aa * 64))
```

```python
from common import *
from rec import *
from work import *

def build(stamps=False):
    G.stamps = stamps
    A = Asm()
    entry(A)
    A('s_cmp_lg_u32 %s, 0' % s(sXCC))
    A('s_cbranch_scc1 %s' % ('L_exit' if G.dev_nowait else 'L_worker'))
    A('s_cmp_ge_u32 %s, 16' % s(sROLE))
    A('s_cbranch_scc1 L_value')
    score_role(A)
    value_role(A)
    if not G.dev_nowait:
        worker_entry(A)
        zero_flags(A)
        phase_w1(A)
        phase_w1b(A)
        A('s_cmp_lg_u32 %s, 0' % s(sTY))
        A('s_cbranch_scc1 L_w2B')
        phase_w2(A, 0)
        phase_a1(A)
        phase_a2(A)
        post_dispatch(A)
        phase_s1(A)
        A('s_branch L_exit')
        phase_s2(A)
        A('s_branch L_exit')
        phase_w2(A, 1)
        phase_z(A)
        A('s_branch L_exit')
        emit_stubs(A)
    A.label('L_exit')
    A('s_endpgm')
    body = A.pad()
    K = NAME + '_kernel'
    txt = HDR + '; @launch grid=(256,1,1) block=(256,1,1) lds=%d\n' % LDS_BYTES
    txt += '.amdgcn_target "amdgcn-amd-amdhsa--gfx950"\n.text\n.globl %s\n.p2align 8\n.type %s,@function\n%s:\n' % (K, K, K)
    txt += body
    txt += '''.section .rodata,"a"
.p2align 6
.amdhsa_kernel %s
  .amdhsa_next_free_vgpr 512
  .amdhsa_next_free_sgpr 102
  .amdhsa_accum_offset 256
  .amdhsa_group_segment_fixed_size 0
  .amdhsa_kernarg_size 104
  .amdhsa_user_sgpr_count 2
  .amdhsa_user_sgpr_kernarg_segment_ptr 1
  .amdhsa_system_sgpr_workgroup_id_x 1
  .amdhsa_float_denorm_mode_32 3
.end_amdhsa_kernel
''' % K
    return txt, A

if __name__ == '__main__':
    out = sys.argv[1] if len(sys.argv) > 1 else 'dev.s'
    for x in sys.argv[2:]:
        if '=' in x: PRM[x.split('=')[0]] = int(x.split('=')[1])
    G.dev_nowait = 'nowait' in sys.argv
    txt, A = build(stamps='stamps' in sys.argv)
    open(out, 'w').write(txt)
    print('wrote', out, 'instrs', len(A.ins), 'pads', A.npad)
```

```python
import sys
from asmgen import *
from layout import *

NAME = 'concat_heads__linear_attn_block__memory_aug_recurrent_mem_tr__prompt'
HDR = open('cdna_kernels/%s.s.ref' % NAME).read().split('; Override launch')[0]

S_WS, S_BX, S_M0, S_DBG, S_OUT = 8, 12, 16, 20, 24
S_WQ, S_WK, S_WV, S_WO, S_AX, S_AW, S_AO = 28, 32, 36, 40, 44, 48, 52
sWAVE, sXCC, sROLE, sSTEP, sSPIN = 60, 61, 62, 63, 64
sT0, sT1, sT2, sT3, sT4, sT5 = 65, 66, 67, 68, 69, 70
sMEMRD, sPWR, sPRST, sXOFF, sPRD, sMEMWR, sMEMRST, sUOFF, sHM, sHZ, sXPF = 71, 72, 73, 74, 75, 76, 77, 78, 79, 80, 81
sHMRD, sHPRD, sHWR, sSTEP1 = 82, 83, 84, 85
sXLDS, sBTOG2 = 86, 87

L_MEM = 0
L_YT = 8192
L_SP = 16384
L_OP = 16384
L_DUMP = 20480
L_TICKET = 24576
LDS_BYTES = 160 * 1024

SPIN_MAX = 4000000
PRM = dict(xm=0, xm1=8, ht=10, sb=6, vf=11, xb=1, vh=12, fine=59, lb=6, w0=2, w1=9, direct=0, ko=3, msc=1, c0=3, cg=3, hn=15, nb1=6, uev=1, f0b=1, vdel=5, sdel=0, pdel=0, hs=99, hd=3, hv0=0, nrep=4, k1=4, k2=10, pla=2, pnu=0, zs=12)

def srd(A, d, ptr_s, nbytes):
    A('s_mov_b32 %s, %s' % (s(d), s(ptr_s)))
    A('s_and_b32 %s, %s, 0xffff' % (s(d + 1), s(ptr_s + 1)))
    A('s_mov_b32 %s, %d' % (s(d + 2), nbytes))
    A('s_mov_b32 %s, 0x00020000' % s(d + 3))

def entry(A):
    A('s_cmp_ge_u32 s2, 256')
    A('s_cbranch_scc1 L_exit')
    if G.events: A('s_memrealtime s[56:57]')
    A('s_load_dwordx16 s[64:79], s[0:1], 0')
    A('s_load_dwordx8 s[80:87], s[0:1], 64')
    A('s_load_dwordx2 s[88:89], s[0:1], 96')
    A('v_lshrrev_b32 v1, 6, v0')
    A('v_and_b32 v0, 63, v0')
    A('s_getreg_b32 %s, hwreg(HW_REG_XCC_ID)' % s(sXCC))
    A('v_readfirstlane_b32 %s, v1' % s(sWAVE))
    A('s_and_b32 %s, %s, 7' % (s(sXCC), s(sXCC)))
    A('s_waitcnt lgkmcnt(0)')
    srd(A, S_AX, 64, 1835008)
    srd(A, S_AW, 66, 448 * 1344 * 2)
    srd(A, S_AO, 68, 448 * 448 * 2)
    srd(A, S_BX, 70, 1835008)
    srd(A, S_M0, 72, 7168)
    srd(A, S_WQ, 74, 3670016)
    srd(A, S_WK, 76, 3670016)
    srd(A, S_WV, 78, 3670016)
    srd(A, S_WO, 80, 3670016)
    srd(A, S_OUT, 84, 2048 * 896 * 2)
    srd(A, S_DBG, 86, 256)
    srd(A, S_WS, 88, WS_BYTES)
    A('v_mov_b32 v2, %d' % L_TICKET)
    A('s_cmp_lg_u32 %s, 0' % s(sWAVE))
    A('s_cbranch_scc1 L_tk_wait')
    A('s_lshr_b32 %s, %s, 1' % (s(sT0), s(sXCC)))
    A('s_lshl_b32 %s, %s, 6' % (s(sT0), s(sT0)))
    A('s_and_b32 %s, %s, 1' % (s(sT1), s(sXCC)))
    A('s_lshl_b32 %s, %s, 2' % (s(sT1), s(sT1)))
    A('s_add_u32 %s, %s, %s' % (s(sT0), s(sT0), s(sT1)))
    A('v_mov_b32 v3, %s' % s(sT0))
    A('v_mov_b32 v4, 1')
    A('s_mov_b64 exec, 1')
    A('buffer_atomic_add v4, v3, %s, 0 offen sc0' % s(S_DBG, 4))
    A('s_waitcnt vmcnt(0)')
    A('ds_write_b32 v2, v4')
    A('s_mov_b64 exec, -1')
    A('s_waitcnt lgkmcnt(0)')
    A.label('L_tk_wait')
    A('s_barrier')
    A('ds_read_b32 v3, v2')
    A('s_waitcnt lgkmcnt(0)')
    A('v_readfirstlane_b32 %s, v3' % s(sROLE))
    A('s_cmp_ge_u32 %s, 32' % s(sROLE))
    A('s_cbranch_scc1 L_exit')
    if G.events:
        event(A, 1)
        A('v_mov_b32 v1, s56')
        A('s_sub_u32 s6, s6, 4')
        A('s_mov_b64 exec, 1')
        A('buffer_store_dword v1, v2, %s, s6 offen' % s(S_WS, 4))
        A('s_mov_b64 exec, -1')

STUBS = []
def spin_check(A, lbl_loop, pre=()):
    st = A.newlabel('L_retry')
    A('s_cbranch_vccnz %s' % st)
    STUBS.append((st, lbl_loop, list(pre)))
def emit_stubs(A):
    for st, l, pre in STUBS:
        A.label(st)
        for x in pre: A(x)
        A('s_sub_u32 %s, %s, 1' % (s(sSPIN), s(sSPIN)))
        A('s_cbranch_scc0 %s' % l)
        A('s_branch L_exit')
    del STUBS[:]

def lexpr(A, dst, lane, terms, base=0, tmp=None):
    A('v_mov_b32 %s, %s' % (dst, base))
    for lo, n, mul in terms:
        A('v_bfe_u32 %s, %s, %d, %d' % (tmp, lane, lo, n))
        if mul & (mul - 1) == 0:
            A('v_lshl_add_u32 %s, %s, %d, %s' % (dst, tmp, mul.bit_length() - 1, dst))
        else:
            A('v_mul_u32_u24 %s, %d, %s' % (tmp, mul, tmp))
            A('v_add_u32 %s, %s, %s' % (dst, dst, tmp))

class G: pass
G.stamps = False
G.dev_nowait = False
G.events = False
def event(A, idx, t0='v1', t1='v2'):
    if not G.events: return
    A('s_memrealtime s[4:5]')
    A('s_lshl_b32 s6, %s, 5' % s(sXCC))
    A('s_add_u32 s6, s6, %s' % s(sROLE))
    A('s_lshl_b32 s6, s6, 2')
    A('s_add_u32 s6, s6, %s' % s(sWAVE))
    A('s_lshl_b32 s6, s6, 6')
    A('s_add_u32 s6, s6, %d' % (EVT + idx * 4))
    A('v_mov_b32 %s, 0' % t1)
    A('s_waitcnt lgkmcnt(0)')
    A('v_mov_b32 %s, s4' % t0)
    A('s_mov_b64 exec, 1')
    A('buffer_store_dword %s, %s, %s, s6 offen' % (t0, t1, s(S_WS, 4)))
    A('s_mov_b64 exec, -1')

def levent(A, idx):
    if G.events: A('s_memrealtime %s' % s(84 + 2 * idx, 2))
def levent_flush(A, n, base):
    if not G.events: return
    A('s_waitcnt lgkmcnt(0)')
    for i in range(n):
        event(A, base + i)
        A('v_mov_b32 v1, %s' % s(84 + 2 * i))
        A('s_mov_b64 exec, 1')
        A('buffer_store_dword v1, v2, %s, s6 offen' % s(S_WS, 4))
        A('s_mov_b64 exec, -1')

def event_spin(A, idx, t0='v1', t1='v2'):
    if not G.events: return
    event(A, idx, t0, t1)
    A('v_mov_b32 %s, %s' % (t0, s(sSPIN)))
    A('s_mov_b64 exec, 1')
    A('buffer_store_dword %s, %s, %s, s6 offen' % (t0, t1, s(S_WS, 4)))
    A('s_mov_b64 exec, -1')
```

```python
WS_BYTES = 268435456
WIMG   = 0x0000000
WCU    = 401408
WIMGV  = 16 * 401408
WCV    = 458752
U_OFF  = 0x1000000
YX_OFF = 0x2C00000
HZ_OFF = 0x4800000
HZ_STEP = 114688
HM_OFF = 0x4F00000
HM_STEP = 7168
PP_OFF = 0x5000000
HINT_M = 0x5420000
HINT_P = 0x5422000
FLAGS  = 0x5430000
STAMPS = 0x5500000
EVT    = 0x55C0000
XF_OFF = 0x5600000
XG_OFF = 0x5800000
PA_OFF = 0x5A00000
KVP_OFF = PA_OFF
OI_OFF = PA_OFF + 0x100000
MB_OFF = 0x5E00000
MB_STEP = 18432
MB_PO  = 8192
FLG_W1 = FLAGS
FLG_W2 = FLAGS + 0x4000
FLG_Z  = FLAGS + 0x5800
FLG_P  = FLAGS + 0x6000
FLG_KV = FLAGS + 0x8000
FLG_O  = FLAGS + 0xA000
D_GRP, D_XG, D_INIT = 2, 4, 3
OOB    = 0x7ffffff0
SCALE_LOG2E = (1.0 / 16.0) * 1.4426950408889634
```

```python
from common import *

sSLOT, sSLOTP, sSLOTN, sUOK = sMEMRD, sPWR, sMEMWR, sHZ
vIDX = 60
vK = 61
vT = 68
vLANE = 255
MF = 32
SACC = 4
AF0 = 0
vYW, vTRL, vB, vX, vPST, vPSM, HV, HA = 70, 71, 72, 73, 74, 75, 76, 77
SD = 80
XB = 92
AF1 = 116
L_XS = 32768
vL16, vVW, vVR, vMST, vLW, VHV, VHA, vHM_, vHP_, vHIST = 70, 71, 72, 73, 74, 75, 76, 77, 78, 79
VR = 80
vUS = 69
ZB = 84
UB = 92
LB = 124
L_VB = 114688
L_WL = 32768

class Role:
    pass
SC = Role(); SC.nt = 7; SC.acc = SACC
VA = Role(); VA.nt = 8; VA.acc = 0
def sc_w(r, k):
    t = r * 7 + k
    return (256 + t * 8) if t < 32 else (120 + (t - 32) * 8)
SC.w = sc_w
VLDS = [(r, 6) for r in range(8)] + [(2, 4), (5, 4)]
VREG = [(r, k) for r in range(8) for k in range(7) if (r, k) not in VLDS]
def va_w(r, k):
    if (r, k) in VLDS: return None
    t = VREG.index((r, k))
    return (256 + t * 8) if t < 32 else (144 + (t - 32) * 8)
VA.w = va_w

def smf(d, aa, bb, k32=False):
    return 'v_smfmac_f32_16x16x%d_bf16 %s, %s, %s, %s' % (32 if k32 else 64, d, aa, bb, v(vIDX))

sTMB = 28
sSTB = 92
def stamp(A, idx):
    if not G.stamps: return
    A('s_memtime %s' % s(sTMB + 2 * idx, 2))
    if idx == 0: A('s_memrealtime %s' % s(sTMB + 2 * 10, 2))
def stamp_flush(A, n):
    if not G.stamps: return
    A('s_waitcnt lgkmcnt(0)')
    A('s_lshl_b32 %s, %s, 6' % (s(sT5), s(sSTEP)))
    A('s_add_u32 %s, %s, %s' % (s(sT5), s(sT5), s(sSTB)))
    A('v_mbcnt_lo_u32_b32 %s, -1, 0' % v(vT + 1))
    A('v_lshlrev_b32 %s, 2, %s' % (v(vT + 1), v(vT + 1)))
    for i in range(n):
        A('v_writelane_b32 %s, %s, %d' % (v(vT), s(sTMB + 2 * i), i))
    A('v_writelane_b32 %s, %s, 11' % (v(vT), s(sSPIN)))
    A('s_mov_b64 exec, 0xffff')
    A('buffer_store_dword %s, %s, %s, %s offen' % (v(vT), v(vT + 1), s(S_WS, 4), s(sT5)))
    A('s_mov_b64 exec, -1')
def stamp_setup(A):
    if not G.stamps: return
    A('s_lshl_b32 %s, %s, 2' % (s(sT0), s(sROLE)))
    A('s_add_u32 %s, %s, %s' % (s(sT0), s(sT0), s(sWAVE)))
    A('s_lshl_b32 %s, %s, 12' % (s(sT0), s(sT0)))
    A('s_add_u32 %s, %s, %d' % (s(sSTB), s(sT0), STAMPS))

def hint_wait(A, soff, sval, pw, delay, nent, areg=None, other=None):
    l = A.newlabel('L_hint'); e = A.newlabel('L_hint_done')
    D = PRM['hd']
    A('s_cmp_lg_u32 %s, %d' % (s(sWAVE), pw))
    A('s_cbranch_scc1 %s' % e)
    if areg is None:
        areg = vT + 1
        A('v_mbcnt_lo_u32_b32 %s, -1, 0' % v(vT + 1))
        A('v_mbcnt_hi_u32_b32 %s, -1, %s' % (v(vT + 1), v(vT + 1)))
        A('v_min_u32 %s, %d, %s' % (v(vT + 1), nent - 1, v(vT + 1)))
        A('v_lshlrev_b32 %s, 2, %s' % (v(vT + 1), v(vT + 1)))
    ld = 'buffer_load_dword %s, %s, %s, %s offen sc1' % (v(vT), v(areg), s(S_WS, 4), s(soff))
    if PRM['hv0']: A('s_waitcnt vmcnt(0)')
    for i in range(D - 1):
        A(ld); A('s_nop %d' % PRM['hn'])
    A.label(l)
    A(ld)
    A('s_waitcnt vmcnt(%d)' % (D - 1))
    A('v_cmp_gt_u32 vcc, %s, %s' % (s(sval), v(vT)))
    spin_check(A, l)
    for i in range(delay): A('s_nop 3')
    A.label(e)
    A('s_barrier')

def hint_send(A, t0, t1):
    A('buffer_store_dword %s, %s, %s, %s offen' % (v(t0), v(t1), s(S_WS, 4), s(sHWR)))
def hint_setup(A, t0, t1, allw):
    nrep = PRM['nrep']
    A('v_lshlrev_b32 v1, 8, %s' % v(vLANE))
    A('v_mov_b32 v2, %d' % OOB)
    A('s_cmp_eq_u32 %s, %d' % (s(sWAVE), 0 if allw else 3))
    A('s_cselect_b32 %s, %d, 0' % (s(sT0), nrep))
    A('v_cmp_gt_u32 vcc, %s, %s' % (s(sT0), v(vLANE)))
    A('v_cndmask_b32 %s, v2, v1, vcc' % v(t1))
    A('v_mov_b32 %s, 0' % v(t0))
    hint_send(A, t0, t1)

def dbg_arrive(A, idx):
    A('s_waitcnt vmcnt(0) lgkmcnt(0)')
    A('s_barrier')
    l = A.newlabel('L_gb')
    A('s_cmp_lg_u32 %s, 0' % s(sWAVE))
    A('s_cbranch_scc1 %s' % l)
    A('v_mov_b32 v1, %d' % (idx * 4))
    A('v_mov_b32 v2, 1')
    A('s_mov_b64 exec, 1')
    A('buffer_atomic_add v2, v1, %s, 0 offen' % s(S_DBG, 4))
    A('s_mov_b64 exec, -1')
    A.label(l)

def group_wait(A):
    l = A.newlabel('L_gw')
    A('v_mov_b32 %s, %d' % (v(vT), D_GRP * 4))
    A.label(l)
    A('buffer_load_dword %s, %s, %s, 0 offen sc1' % (v(vT + 1), v(vT), s(S_DBG, 4)))
    A('s_waitcnt vmcnt(0)')
    A('v_cmp_gt_u32 vcc, 32, %s' % v(vT + 1))
    spin_check(A, l, ['s_sleep 1'])

def wait_init(A):
    l = A.newlabel('L_wi')
    lexpr(A, 'v2', v(vLANE), [(0, 2, 64)], D_INIT * 4, 'v3')
    A.label(l)
    A('buffer_load_dword v3, v2, %s, 0 offen sc1' % s(S_DBG, 4))
    A('s_waitcnt vmcnt(0)')
    A('v_cmp_gt_u32 vcc, 56, v3')
    spin_check(A, l, ['s_sleep 2'])

def wait_weights(A):
    if G.dev_nowait: return
    l2 = A.newlabel('L_ww2'); e = A.newlabel('L_ww_done')
    A('s_cmp_lg_u32 %s, 0' % s(sWAVE))
    A('s_cbranch_scc1 %s' % e)
    wait_init(A)
    A('s_mov_b32 %s, %d' % (s(sT0), FLG_W1))
    A.label(l2)
    A('buffer_load_dword v3, v8, %s, %s offen sc1' % (s(S_WS, 4), s(sT0)))
    A('s_waitcnt vmcnt(0)')
    A('v_cmp_eq_u32 vcc, 0, v3')
    spin_check(A, l2, ['s_sleep 1'])
    A.label(e)
    A('s_barrier')

def check4(A, r, lbl, pre):
    t0 = v(vT)
    A('v_max3_u32 %s, %s, %s, %s' % (t0, v(r), v(r + 1), v(r + 2)))
    A('v_max_u32 %s, %s, %s' % (t0, t0, v(r + 3)))
    A('v_cmp_eq_u32 vcc, -1, %s' % t0)
    spin_check(A, lbl, pre)

def rot(A, k):
    A('s_add_u32 %s, %s, %d' % (s(sT1), s(sT0), k))
    A('s_sub_u32 %s, %s, 7' % (s(sT2), s(sT1)))
    A('s_cmp_ge_u32 %s, 7' % s(sT1))
    A('s_cselect_b32 %s, %s, %s' % (s(sT1), s(sT2), s(sT1)))

def rec_start(A):
    A('v_mov_b32 %s, v0' % v(vLANE))
    A('s_mov_b32 %s, %d' % (s(sSPIN), SPIN_MAX))
    XS = 65536
    lexpr(A, 'v1', 'v0', [(3, 3, 896), (0, 3, 16)], 0, 'v2')
    A('s_lshl_b32 %s, %s, 2' % (s(sT0), s(sROLE)))
    A('s_add_u32 %s, %s, %s' % (s(sT0), s(sT0), s(sWAVE)))
    A('s_mul_i32 %s, %s, %d' % (s(sT1), s(sT0), 16 * 896))
    A('s_add_u32 %s, %s, %d' % (s(sT2), s(sT1), 8 * 896))
    for g in range(2):
        for c in range(7):
            A('buffer_load_dwordx4 %s, v1, %s, %s offen offset:%d' % (v(128 + 4 * (7 * g + c), 4), s(S_BX, 4), s(sT1 + g), c * 128))
    A('v_lshlrev_b32 v3, 4, v0')
    for i in range(4): A('v_mov_b32 %s, -1' % v(4 + i))
    A('s_mul_i32 %s, %s, 9216' % (s(sT2), s(sT0)))
    A('s_add_u32 %s, %s, %d' % (s(sT2), s(sT2), MB_OFF))
    for i in range(9):
        A('buffer_store_dwordx4 v[4:7], v3, %s, %s offen' % (s(S_WS, 4), s(sT2)))
        A('s_add_u32 %s, %s, 1024' % (s(sT2), s(sT2)))
    A('s_mul_i32 %s, %s, %d' % (s(sT1), s(sWAVE), 16 * 912))
    A('s_add_u32 %s, %s, %d' % (s(sT1), s(sT1), XS))
    lexpr(A, 'v8', 'v0', [(3, 3, 912), (0, 3, 16)], s(sT1), 'v2')
    levent(A, 0)
    for i in range(14):
        A('s_waitcnt vmcnt(%d)' % (22 - i))
        if i == 0: levent(A, 1)
        A('ds_write_b128 v8, %s offset:%d' % (v(128 + 4 * i, 4), (i // 7) * 8 * 912 + (i % 7) * 128))
    A('s_lshr_b32 %s, %s, 1' % (s(sT1), s(sWAVE)))
    A('s_lshl_b32 %s, %s, 3' % (s(sT1), s(sT1)))
    A('s_and_b32 %s, %s, 1' % (s(sT2), s(sWAVE)))
    A('s_add_u32 %s, %s, %s' % (s(sT1), s(sT1), s(sT2)))
    A('s_mul_i32 %s, %s, %d' % (s(sT1), s(sT1), 4 * 912))
    A('s_add_u32 %s, %s, %d' % (s(sT1), s(sT1), XS))
    lexpr(A, 'v9', 'v0', [(2, 2, 8 * 912), (0, 2, 912), (4, 2, 16)], s(sT1), 'v2')
    A('s_mul_i32 %s, %s, 448' % (s(sT1), s(sT2)))
    A('s_lshr_b32 %s, %s, 1' % (s(sT2), s(sWAVE)))
    A('s_mul_i32 %s, %s, 912' % (s(sT2), s(sT2)))
    A('s_add_u32 %s, %s, %s' % (s(sT1), s(sT1), s(sT2)))
    A('s_add_u32 %s, %s, %d' % (s(sT1), s(sT1), XS))
    lexpr(A, 'v10', 'v0', [(3, 1, 16 * 912), (0, 2, 4 * 912), (2, 1, 2 * 912), (5, 1, 224), (4, 1, 16)], s(sT1), 'v2')
    A('s_mul_i32 %s, %s, 14336' % (s(sT0), s(sT0)))
    A('s_add_u32 %s, %s, %d' % (s(sT0), s(sT0), XG_OFF))
    A('s_waitcnt lgkmcnt(0)')
    A('s_barrier')
    levent(A, 2)
    for ks in range(14): A('ds_read_b128 %s, v9 offset:%d' % (v(128 + 4 * ks, 4), ks * 64))
    for ks in range(14):
        A('s_waitcnt lgkmcnt(%d)' % (13 - ks))
        A('buffer_store_dwordx4 %s, v3, %s, %s offen sc1' % (v(128 + 4 * ks, 4), s(S_WS, 4), s(sT0)))
        A('s_add_u32 %s, %s, 1024' % (s(sT0), s(sT0)))
    for g in range(2):
        for c in range(7):
            A('ds_read_b128 %s, v10 offset:%d' % (v(188 + g * 28 + c * 4, 4), g * 32 * 912 + c * 32))
        A('s_waitcnt lgkmcnt(0)')
    levent(A, 3)
    dbg_arrive(A, D_XG)
    event(A, 2)
    levent_flush(A, 4, 9)
    A('s_lshl_b32 %s, %s, 10' % (s(sT2), s(sWAVE)))
    A('v_add_u32 v3, %s, v3' % s(sT2))
    A('s_lshl_b32 %s, %s, 16' % (s(sT2), s(sROLE)))
    A('s_add_u32 %s, %s, %d' % (s(sT2), s(sT2), XF_OFF))
    for g in range(2):
        for c in range(7):
            A('s_add_u32 %s, %s, %d' % (s(sT3), s(sT2), g * 32768 + c * 4096))
            A('buffer_store_dwordx4 %s, v3, %s, %s offen' % (v(188 + g * 28 + c * 4, 4), s(S_WS, 4), s(sT3)))
    A('s_and_b32 %s, %s, %d' % (s(sT0), s(sROLE), PRM['nrep'] - 1))
    A('s_lshl_b32 %s, %s, 8' % (s(sHMRD), s(sT0)))
    A('s_add_u32 %s, %s, %d' % (s(sHPRD), s(sHMRD), HINT_P))
    A('s_add_u32 %s, %s, %d' % (s(sHMRD), s(sHMRD), HINT_M))
    A('v_and_b32 v1, 2, v0')
    A('v_cmp_eq_u32 vcc, 0, v1')
    A('v_mov_b32 v2, 0xeeeeeeee')
    A('v_mov_b32 v3, 0x44444444')
    A('v_cndmask_b32 %s, v2, v3, vcc' % v(vIDX))
    A('v_lshlrev_b32 v1, 4, v0')
    A('s_lshl_b32 %s, %s, 1' % (s(sT0), s(sWAVE)))
    for k in range(7):
        rot(A, k)
        A('s_lshl_b32 %s, %s, 10' % (s(sT1), s(sT1)))
        A('v_add_u32 %s, %s, v1' % (v(vK + k), s(sT1)))
    stamp_setup(A)

def load_weights(A, R, cstride):
    A('s_mul_i32 %s, %s, %d' % (s(sT0), s(sWAVE), R.nt * 1024))
    lexpr(A, 'v1', v(vLANE), [(0, 6, 16)], s(sT0), 'v2')
    A('v_add_u32 v2, 4096, v1')
    A('s_lshl_b32 %s, %s, 1' % (s(sT0), s(sWAVE)))
    n = 0
    order = list(range(7))
    if R is VA: order = [6, 4, 0, 1, 2, 3, 5]
    TMP = 4
    for k in order:
        rot(A, k)
        A('s_mul_i32 %s, %s, %d' % (s(sT1), s(sT1), 2 * cstride))
        A('s_add_u32 %s, %s, %s' % (s(sT1), s(sT1), s(sT3)))
        A('s_add_u32 %s, %s, %d' % (s(sT2), s(sT1), cstride))
        for hi in range(2):
            for r in range(R.nt):
                w = R.w(r, k)
                if w is None:
                    i = VLDS.index((r, k))
                    dst = v(ldstmp(i) + 4 * hi, 4)
                else: dst = u(w + 4 * hi, 4)
                A('buffer_load_dwordx4 %s, %s, %s, %s offen offset:%d sc1' % (dst, 'v1' if r < 4 else 'v2', s(S_WS, 4), s(sT1 + hi), (r & 3) * 1024))
                n += 1
            if n >= 42: A('s_waitcnt vmcnt(40)')
    A('s_waitcnt vmcnt(0)')
    if R is VA:
        for i in range(10):
            for hi in range(2):
                A('ds_write_b128 %s, %s offset:%d' % (v(vLW), v(ldstmp(i) + 4 * hi, 4), (2 * i + hi) * 1024))
            if i % 3 == 2: A('s_waitcnt lgkmcnt(4)')
        A('s_waitcnt lgkmcnt(0)')
def ldstmp(i): return (4 + 8 * i) if i < 7 else (UB + 8 * (i - 7))

def zero_regs(b, n): return ['v_mov_b32 %s, 0' % v(b + i) for i in range(n)]

def main_phase(A, R, pw, delay, post, vm, every, extra, epi, pre_ds=0):
    NT, AC = R.nt, R.acc
    hint_wait(A, sHMRD, sSTEP1, pw, delay, 14, vHM_ if R is VA else None)
    stamp(A, 1)
    ld = ['buffer_load_dwordx4 %s, %s, %s, %s offen sc1' % (v(MF + 4 * k, 4), v(vK + k), s(S_WS, 4), s(sSLOT)) for k in range(2)]
    A(ld[0])
    if PRM['f0b']: A('s_barrier')
    A(ld[1])
    for x in post: A(x)
    nst = len([x for x in post if x.startswith('buffer_')])
    A('s_waitcnt vmcnt(%d)' % (nst + 1))
    l0 = A.newlabel('L_pm0'); A.label(l0)
    check4(A, MF, l0, [ld[0], 's_waitcnt vmcnt(0)'])
    stamp(A, 2)
    A('ds_write_b128 %s, %s offset:%d' % (v(vK), v(MF, 4), L_MEM))
    vm = list(vm); cnt = [0]
    def vmtick():
        cnt[0] += 1
        if vm and cnt[0] % every == 0:
            for x in vm.pop(0): A(x)
    k1, k2 = PRM['k1'], PRM['k2']
    kseq = [(r, 0) for r in range(NT)] + [(r, 1) for r in range(NT)]
    rd = [2, 3, 4, 5, 6]
    for i, (r, k) in enumerate(kseq):
        A(smf(v(AC + 4 * r, 4), v(MF + 4 * k, 4), u(R.w(r, k), 8)))
        if i == k1 - 1:
            A('s_waitcnt vmcnt(%d)' % nst)
            l1 = A.newlabel('L_pm1'); A.label(l1)
            check4(A, MF + 4, l1, [ld[1], 's_waitcnt vmcnt(0)'])
            A('ds_write_b128 %s, %s offset:%d' % (v(vK + 1), v(MF + 4, 4), L_MEM))
        elif i >= k1 and i < k2 - 1: vmtick()
        if i == k2 - 1:
            A('s_waitcnt lgkmcnt(0)')
            A('s_barrier')
            stamp(A, 3)
        if i >= k2 - 1:
            for _ in range(2 if len(kseq) - i > 2 else 5):
                if rd:
                    kk = rd.pop(0); A('ds_read_b128 %s, %s offset:%d' % (v(MF + 4 * kk, 4), v(vK + kk), L_MEM))
    assert not rd
    q = []
    i = 0
    for r in range(NT):
        for k in range(2, 7):
            if r == 0: A('s_waitcnt lgkmcnt(%d)' % (6 - k))
            w = R.w(r, k)
            if w is None:
                iv = VORD.index((r, k))
                w = LB + 8 * (iv & 1)
                A('s_waitcnt lgkmcnt(%d)' % (2 if 1 <= iv <= 8 else 0))
            A(smf(v(AC + 4 * r, 4), v(MF + 4 * k, 4), u(w, 8)))
            if k == 3 and r > 0: q += epi(r - 1)
            if q: A(q.pop(0))
            for x in extra.get(i, []): A(x)
            vmtick()
            i += 1
    stamp(A, 4)
    for x in q: A(x)
    assert not vm, len(vm)
VORD = sorted(VLDS)

def main_direct(A, extra, epi):
    R = SC; AC = R.acc; KO = PRM['ko']
    hint_wait(A, sHMRD, sSTEP1, 0, PRM['sdel'], 14)
    stamp(A, 1)
    def ld(k, sc): return 'buffer_load_dwordx4 %s, %s, %s, %s offen%s' % (v(MF + 4 * k, 4), v(vK + k), s(S_WS, 4), s(sSLOT), ' sc1' if sc else '')
    for k in range(7):
        A(ld(k, PRM['msc']))
        if k < PRM['lb']: A('s_barrier')
    l = A.newlabel('L_pm'); A.label(l)
    t0 = v(vT)
    ck = []
    for k in range(7):
        r = MF + 4 * k
        if k == 0: ck += [(k, 'v_max3_u32 %s, %s, %s, %s' % (t0, v(r), v(r + 1), v(r + 2))), (k, 'v_max_u32 %s, %s, %s' % (t0, t0, v(r + 3)))]
        else: ck += [(k, 'v_max3_u32 %s, %s, %s, %s' % (t0, t0, v(r), v(r + 1))), (k, 'v_max3_u32 %s, %s, %s, %s' % (t0, t0, v(r + 2), v(r + 3)))]
    seq = [(r, k) for k in range(KO) for r in range(7)]
    have = -1
    def need(k):
        nonlocal have
        if k > have:
            A('s_waitcnt vmcnt(%d)' % (6 - k)); have = k
    first = len(seq) - 1 - len(ck)
    for i, (r, k) in enumerate(seq):
        need(k)
        if i == 0: stamp(A, 2)
        A(smf(v(AC + 4 * r, 4), v(MF + 4 * k, 4), u(R.w(r, k), 8)))
        if i >= first and ck:
            kk, x = ck.pop(0); need(kk); A(x)
        if i == PRM['w0']: A('ds_write_b128 %s, %s offset:%d' % (v(vK), v(MF, 4), L_MEM))
        if i == PRM['w1']: A('ds_write_b128 %s, %s offset:%d' % (v(vK + 1), v(MF + 4, 4), L_MEM))
    assert not ck
    A('v_cmp_eq_u32 vcc, -1, %s' % t0)
    spin_check(A, l, [ld(k, True) for k in range(7)] + zero_regs(AC, 28))
    stamp(A, 3)
    q = []; i = 0
    NK = 7 - KO
    for r in range(7):
        for k in range(KO, 7):
            A(smf(v(AC + 4 * r, 4), v(MF + 4 * k, 4), u(R.w(r, k), 8)))
            if k == KO + 1 and r > 0: q += epi(r - 1)
            if q:
                x = q.pop(0); A(x)
                if q and q[0].startswith('ds_') and NK < 5: A(q.pop(0))
            for x in extra.get((r, k - KO), []): A(x)
            i += 1
    stamp(A, 4)
    for x in q: A(x)

def sc_epi(r):
    c = SACC + 4 * r
    return ['v_add_f32 %s, %s, %s' % (v(c), v(c), v(c + 2)),
            'v_add_f32 %s, %s, %s' % (v(c + 1), v(c + 1), v(c + 3)),
            'v_cvt_pk_bf16_f32 %s, %s, %s' % (v(c), v(c), v(c + 1)),
            'ds_write_b32 %s, %s offset:%d' % (v(vYW), v(c), r * 256)]

sXL = 86
def xdma(A, fill=()):
    fill = list(fill)
    for k in range(7):
        if k in (0, 4): A('s_add_u32 m0, %s, %d' % (s(sXL), k * 1024))
        A('buffer_load_dwordx4 %s, %s, %s offen offset:%d lds' % (v(vX), s(S_WS, 4), s(sXOFF if k < 4 else sXPF), (k & 3) * 1024))
        for x in fill[:6]: A(x)
        fill = fill[6:]
    for x in fill: A(x)

def score_role(A):
    A.label('L_score')
    L = v(vLANE)
    A('s_mul_i32 %s, %s, 1792' % (s(sT0), s(sWAVE)))
    A('s_add_u32 %s, %s, %d' % (s(sT0), s(sT0), L_YT))
    lexpr(A, v(vYW), L, [(2, 2, 64), (0, 1, 32), (4, 2, 8), (1, 1, 4)], s(sT0), 'v1')
    lexpr(A, v(vTRL), L, [(4, 2, 1792), (0, 4, 8)], L_YT, 'v1')
    lexpr(A, v(vB), L, [(5, 1, 1792), (4, 1, 32), (0, 2, 64), (3, 1, 16)], L_MEM, 'v1')
    lexpr(A, v(vX), L, [(0, 6, 16)], 0, 'v1')
    A('s_lshl_b32 %s, %s, 9' % (s(sT0), s(sROLE)))
    A('s_lshl_b32 %s, %s, 4' % (s(sT2), s(sWAVE)))
    A('s_add_u32 %s, %s, %s' % (s(sT0), s(sT0), s(sT2)))
    lexpr(A, v(vPST), L, [(3, 1, 256), (4, 2, 64), (2, 1, 32), (0, 2, 4)], s(sT0), 'v1')
    A('s_lshr_b32 %s, %s, 2' % (s(sT0), s(sROLE)))
    A('s_lshl_b32 %s, %s, 9' % (s(sT0), s(sT0)))
    A('s_add_u32 %s, %s, %s' % (s(sT0), s(sT0), s(sT2)))
    A('s_and_b32 %s, %s, 1' % (s(sT1), s(sROLE)))
    A('s_lshl_b32 %s, %s, 5' % (s(sT1), s(sT1)))
    A('s_add_u32 %s, %s, %s' % (s(sT0), s(sT0), s(sT1)))
    A('s_and_b32 %s, %s, 2' % (s(sT1), s(sROLE)))
    A('s_lshl_b32 %s, %s, 1' % (s(sT1), s(sT1)))
    A('s_add_u32 %s, %s, %s' % (s(sT0), s(sT0), s(sT1)))
    A('s_add_u32 %s, %s, 8192' % (s(sT0), s(sT0)))
    lexpr(A, 'v3', L, [(1, 1, 256), (0, 1, 8), (4, 2, 64)], s(sT0), 'v1')
    A('v_and_b32 v4, 12, %s' % L)
    A('v_mov_b32 v2, %d' % OOB)
    A('v_cmp_eq_u32 vcc, 0, v4')
    A('v_cndmask_b32 %s, v2, v3, vcc' % v(vPSM))
    A('s_lshl_b32 %s, %s, 2' % (s(sHWR), s(sROLE)))
    A('s_add_u32 %s, %s, %d' % (s(sHWR), s(sHWR), HINT_P))
    hint_setup(A, HV, HA, PRM['hs'] != 99)
    dbg_arrive(A, D_GRP)
    A('v_min_u32 v8, 6, %s' % L)
    A('s_mul_i32 %s, %s, 7' % (s(sT0), s(sROLE)))
    A('v_add_u32 v8, %s, v8' % s(sT0))
    A('v_lshlrev_b32 v8, 6, v8')
    event(A, 3)
    wait_weights(A)
    event(A, 4)
    A('s_mul_i32 %s, %s, %d' % (s(sT3), s(sROLE), WCU))
    load_weights(A, SC, 28672)
    event(A, 5)
    group_wait(A)
    event(A, 6, v(vT), v(vT + 1))
    event_spin(A, 13, v(vT), v(vT + 1))
    A('s_mov_b32 %s, 0' % s(sSTEP))
    A('s_mov_b32 %s, %d' % (s(sSLOT), MB_OFF))
    A('s_mul_i32 %s, %s, 7168' % (s(sT0), s(sWAVE)))
    A('s_add_u32 %s, %s, %d' % (s(sXOFF), s(sT0), XF_OFF))
    A('s_add_u32 %s, %s, 4096' % (s(sXPF), s(sXOFF)))
    A('s_add_u32 %s, %s, %d' % (s(sXL), s(sT0), L_XS))
    AC = SACC
    if PRM['xm']:
        xdma(A)
        A('v_mov_b32 v78, %s' % v(vX))
        A('s_and_b32 %s, %s, 1' % (s(sT0), s(sWAVE)))
        A('s_mul_i32 %s, %s, 14336' % (s(sT0), s(sT0)))
        A('s_add_u32 %s, %s, %d' % (s(sXOFF), s(sT0), XF_OFF))
        A('s_add_u32 %s, %s, %d' % (s(sXL), s(sT0), L_XS))
        A('v_xor_b32 %s, 0x8000, %s' % (v(vX), v(vX)))
    A.label('L_score_loop')
    if PRM['xm']:
        for x in zero_regs(AC, 28) + zero_regs(SD, 12): A(x)
        A('v_xor_b32 %s, 0x8000, %s' % (v(vX), v(vX)))
        A('s_xor_b32 %s, %s, 0x18000' % (s(sXL), s(sXL)))
    else:
        xdma(A, zero_regs(AC, 28) + zero_regs(SD, 12))
        A('s_add_u32 %s, %s, 32768' % (s(sXPF), s(sXPF)))
    A('s_add_u32 %s, %s, 32768' % (s(sXOFF), s(sXOFF)))
    A('s_add_u32 %s, %s, %d' % (s(sSLOTP), s(sSLOT), MB_PO))
    A('s_add_u32 %s, %s, 1' % (s(sSTEP1), s(sSTEP)))
    A('v_mov_b32 %s, %s' % (v(HV), s(sSTEP1)))
    A('s_waitcnt vmcnt(0)')
    stamp(A, 0)
    units = [(c, T) for c in range(7) for T in range(3)]
    order0 = [(0, 0), (0, 1), (1, 0), (0, 2), (1, 1), (1, 2)]
    units = order0 + units[6:]
    ring = [XB, XB + 8, XB + 16, MF, AC, AC + 8, MF + 8, MF + 16]
    def bslot(i): return ring[i % 8]
    AR = [AF0, AF1, AC + 16, AC + 20, MF + 24, AF0, AF1]
    def bread(i):
        c, T = units[i]
        if T == 2: return ['ds_read_b128 %s, %s offset:%d' % (v(bslot(i) + 4 * hi, 4), v(vB), hi * 3584 + c * 256) for hi in range(2)]
        return ['ds_read_b128 %s, %s offset:%d' % (v(bslot(i) + 4 * hi, 4), v(vX), L_XS + c * 4096 + T * 2048 + hi * 1024) for hi in range(2)]
    def aread(c): return ['ds_read_b64_tr_b16 %s, %s offset:%d' % (v(AR[c] + 2 * t, 2), v(vTRL), c * 256 + t * 128) for t in range(2)]
    def ss(i):
        c, T = units[i]
        return smf(v(SD + 4 * T, 4), v(AR[c], 4), v(bslot(i), 8))
    extra = {}
    for i, pp in ((3, (5, 10)), (4, (15, 20)), (5, (25, 30))):
        for x, ppos in zip(bread(i), pp): extra.setdefault(ppos, []).append(x)
    extra.setdefault(28, []).extend(['s_waitcnt lgkmcnt(0)', 's_barrier'] + aread(0))
    extra.setdefault(31, []).extend(aread(1)); extra.setdefault(33, []).extend(aread(2))
    main_phase(A, SC, 0 if PRM['xm'] else 2, PRM['sdel'], bread(0) + bread(1) + bread(2), [], 1, extra, sc_epi)
    e6 = sc_epi(6)
    A('s_cmp_ge_u32 %s, 2' % s(sWAVE))
    A('s_cbranch_scc1 L_sc_oth')
    ds = []
    def D(x, tag):
        A(x); ds.append(tag)
    def wait_for(tags):
        last = max([i for i, tg in enumerate(ds) if tg in tags], default=-1)
        if last >= 0 and last > wait_for.done:
            A('s_waitcnt lgkmcnt(%d)' % min(14, len(ds) - 1 - last)); wait_for.done = last
    wait_for.done = -1
    ds += ['pre', 'A2', 'A2', 'w5']
    for x in aread(3): D(x, 'A3')
    for i in (6, 7):
        for x in bread(i): D(x, 'B%d' % i)
    for i in range(21):
        c, T = units[i]
        wait_for({'pre', 'A%d' % c, 'B%d' % i})
        A(ss(i))
        if i == 1:
            A(e6[0]); A(e6[1])
        if i == 2:
            A(e6[2]); D(e6[3], 'w6')
        if i + 8 < 21:
            for x in bread(i + 8): D(x, 'B%d' % (i + 8))
        if i == PRM['sb']:
            wait_for({'w6'})
            A('s_barrier')
            for x in aread(4): D(x, 'A4')
        if i == PRM['sb'] + 1:
            for x in aread(5): D(x, 'A5')
        if i == PRM['sb'] + 2:
            for x in aread(6): D(x, 'A6')
        if i == PRM['hs']: hint_send(A, HV, HA)
    stamp(A, 5)
    A('s_cmp_eq_u32 %s, 1' % s(sWAVE))
    A('s_cbranch_scc1 L_sc_sm1')
    for rb in range(2):
        if rb: A.label('L_sc_sm1')
        e, o, mm, m, t2 = v(AC), v(AC + 1), v(AC + 2), v(AC + 3), v(AC + 4)
        for d, T in ((e, 0), (o, 1), (mm, 2)): A('v_add_f32 %s, %s, %s' % (d, v(SD + 4 * T + rb), v(SD + 4 * T + rb + 2)))
        def reduce(op):
            for d in ('quad_perm:[1,0,3,2]', 'quad_perm:[2,3,0,1]', 'row_half_mirror', 'row_mirror'):
                A('%s_dpp %s, %s, %s %s row_mask:0xf bank_mask:0xf' % (op, m, m, m, d))
        A('v_max3_f32 %s, %s, %s, %s' % (m, e, o, mm))
        if PRM['hs'] == 21: hint_send(A, HV, HA)
        reduce('v_max_f32')
        if PRM['hs'] == 22: hint_send(A, HV, HA)
        for d in (e, o, mm): A('v_sub_f32 %s, %s, %s' % (d, d, m))
        for d in (e, o, mm): A('v_exp_f32 %s, %s' % (d, d))
        A('v_add_f32 %s, %s, %s' % (m, e, o))
        A('v_fma_f32 %s, %s, 0.5, %s' % (m, mm, m))
        A('v_mov_b32_dpp %s, %s row_ror:8 row_mask:0xf bank_mask:0xf' % (t2, mm))
        reduce('v_add_f32')
        A('v_rcp_f32 %s, %s' % (m, m))
        A('v_mul_f32 %s, %s, %s' % (e, e, m))
        A('v_mul_f32 %s, %s, %s' % (o, o, m))
        A('v_cvt_pk_bf16_f32 %s, %s, %s' % (v(vT), e, o))
        A('v_mul_f32 %s, %s, %s' % (mm, mm, m))
        A('v_min_u32 %s, -2, %s' % (v(vT), v(vT)))
        A('v_mul_f32 %s, %s, %s' % (t2, t2, m))
        A('buffer_store_dword %s, %s, %s, %s offen' % (v(vT), v(vPST), s(S_WS, 4), s(sSLOTP)))
        A('v_cvt_pk_bf16_f32 %s, %s, %s' % (v(vT + 1), mm, t2))
        A('v_min_u32 %s, -2, %s' % (v(vT + 1), v(vT + 1)))
        A('buffer_store_dword %s, %s, %s, %s offen' % (v(vT + 1), v(vPSM), s(S_WS, 4), s(sSLOTP)))
        stamp(A, 8)
        A('s_branch L_sc_join')
    A.label('L_sc_oth')
    for x in e6: A(x)
    A('s_waitcnt lgkmcnt(0)')
    A('s_barrier')
    if PRM['xm']:
        def piece(k):
            if k % 4 == 0:
                A('s_add_u32 m0, %s, %d' % (s(sXL), k * 1024)); A('s_add_u32 %s, %s, %d' % (s(sXPF), s(sXOFF), k * 1024))
            A('buffer_load_dwordx4 %s, %s, %s offen offset:%d lds' % (v(78), s(S_WS, 4), s(sXPF), (k & 3) * 1024))
        for k in range(PRM['xm1']): piece(k)
    if PRM['hs'] == 99:
        for i in range(PRM['ht']): A('s_nop 7')
        hint_send(A, HV, HA)
    if PRM['xm']:
        A('s_barrier')
        for k in range(PRM['xm1'], 14): piece(k)
        A('s_branch L_sc_join2')
    A.label('L_sc_join')
    A('s_barrier')
    A.label('L_sc_join2')
    stamp_flush(A, 11)
    A('s_add_u32 %s, %s, %d' % (s(sSLOT), s(sSLOT), MB_STEP))
    A('s_add_u32 %s, %s, 1' % (s(sSTEP), s(sSTEP)))
    A('s_cmp_lt_u32 %s, 63' % s(sSTEP))
    A('s_cbranch_scc1 L_score_loop')
    event(A, 8)
    event_spin(A, 14)
    A('s_branch L_exit')
    emit_stubs(A)

def va_epi(r):
    c = 4 * r
    return ['v_add_f32 %s, %s, %s' % (v(c), v(c), v(c + 2)),
            'v_add_f32 %s, %s, %s' % (v(c + 1), v(c + 1), v(c + 3)),
            'v_cvt_pk_bf16_f32 %s, %s, %s' % (v(ZB + 4 * (r & 1) + (r >> 1)), v(c), v(c + 1))]

sVB = 96
def u_loads():
    out = []
    for cx in range(2):
        for hi in range(2):
            for p in range(2):
                out.append((['s_add_u32 m0, %s, %d' % (s(sVB), cx * 4096 + hi * 2048)] if p == 0 else []) +
                           ['buffer_load_dwordx4 %s, %s, %s offen offset:%d sc1 lds' % (v(vL16), s(S_WS, 4), s(88 + cx * 2 + hi), p * 1024)])
    return out

def ucheck_code(A, lbl, back, P0, t):
    A.label(lbl)
    A('v_mbcnt_lo_u32_b32 %s, -1, 0' % v(t))
    A('v_mbcnt_hi_u32_b32 %s, -1, %s' % (v(t), v(t)))
    A('v_min_u32 %s, 55, %s' % (v(t), v(t)))
    A('v_lshlrev_b32 %s, 4, %s' % (v(t), v(t)))
    A('s_mov_b32 %s, %d' % (s(sT1), FLG_W2 + 1792))
    A('s_lshr_b32 %s, %s, 2' % (s(sT2), s(sT4)))
    A('s_add_u32 %s, %s, 1' % (s(sT2), s(sT2)))
    A.label(lbl + '_l')
    A('buffer_load_dwordx4 %s, %s, %s, %s offen sc1' % (v(P0, 4), v(t), s(S_WS, 4), s(sT1)))
    A('buffer_load_dwordx4 %s, %s, %s, %s offen offset:896 sc1' % (v(P0 + 4, 4), v(t), s(S_WS, 4), s(sT1)))
    A('s_waitcnt vmcnt(0)')
    A('v_min3_u32 %s, %s, %s, %s' % (v(P0), v(P0), v(P0 + 1), v(P0 + 2)))
    A('v_min3_u32 %s, %s, %s, %s' % (v(P0), v(P0), v(P0 + 3), v(P0 + 4)))
    A('v_min3_u32 %s, %s, %s, %s' % (v(P0), v(P0), v(P0 + 5), v(P0 + 6)))
    A('v_min_u32 %s, %s, %s' % (v(P0), v(P0), v(P0 + 7)))
    A('v_cmp_gt_u32 vcc, %s, %s' % (s(sT2), v(P0)))
    spin_check(A, lbl + '_l')
    A('s_lshl_b32 %s, %s, 2' % (s(sUOK), s(sT2)))
    for thr in (2, 4, 6, 8, 10, 12, 14, 16):
        A('v_cmp_gt_u32 vcc, %d, %s' % (thr, v(P0)))
        A('s_cbranch_vccnz %s' % back)
        A('s_max_u32 %s, %s, %d' % (s(sUOK), s(sUOK), 4 * thr if thr < 16 else 1000))
    A('s_branch %s' % back)

def value_role(A):
    A.label('L_value')
    L = v(vLANE)
    sV = sT4
    A('s_sub_u32 %s, %s, 16' % (s(sV), s(sROLE)))
    lexpr(A, v(vL16), L, [(0, 6, 16)], 0, 'v1')
    A('s_lshl_b32 %s, %s, 13' % (s(sVB), s(sWAVE)))
    A('s_add_u32 %s, %s, %d' % (s(sVB), s(sVB), L_VB))
    A('s_lshl_b32 %s, %s, 11' % (s(sT0), s(sWAVE)))
    A('s_add_u32 %s, %s, %d' % (s(sT0), s(sT0), L_VB + 32768))
    A('v_add_u32 %s, %s, %s' % (v(vVW), s(sT0), v(vL16)))
    A('v_add_u32 %s, %d, %s' % (v(vVR), L_VB, v(vL16)))
    A('s_mul_i32 %s, %s, 20480' % (s(sT0), s(sWAVE)))
    A('s_add_u32 %s, %s, %d' % (s(sT0), s(sT0), L_WL))
    A('v_add_u32 %s, %s, %s' % (v(vLW), s(sT0), v(vL16)))
    A('s_lshl_b32 %s, %s, 9' % (s(sT0), s(sV)))
    A('s_cmp_eq_u32 %s, 0' % s(sWAVE))
    A('s_cselect_b32 %s, %s, 0x70000000' % (s(sT0), s(sT0)))
    lexpr(A, v(vMST), L, [(3, 1, 256), (2, 1, 32), (4, 2, 64), (0, 2, 4)], s(sT0), 'v1')
    lexpr(A, v(vHIST), L, [(2, 2, 128), (4, 2, 32), (0, 2, 4)], s(sT0), 'v1')
    A('s_lshl_b32 %s, %s, 6' % (s(sT0), s(sV)))
    lexpr(A, 'v2', L, [(4, 2, 1792), (0, 4, 4)], s(sT0), 'v1')
    A('buffer_load_dword %s, v2, %s, 0 offen' % (v(VR), s(S_M0, 4)))
    A('buffer_load_dword %s, v2, %s, 0 offen offset:896' % (v(VR + 1), s(S_M0, 4)))
    A('s_lshl_b32 %s, %s, 2' % (s(sHWR), s(sV)))
    A('s_add_u32 %s, %s, %d' % (s(sHWR), s(sHWR), HINT_M))
    hint_setup(A, VHV, VHA, True)
    A('v_min_u32 v1, 13, %s' % L)
    A('v_lshlrev_b32 %s, 2, v1' % v(vHM_))
    A('v_min_u32 v1, 15, %s' % L)
    A('v_lshlrev_b32 %s, 2, v1' % v(vHP_))
    dbg_arrive(A, D_GRP)
    A('s_lshr_b32 %s, %s, 1' % (s(sT0), s(sV)))
    A('s_add_u32 %s, %s, 112' % (s(sT0), s(sT0)))
    lexpr(A, 'v8', L, [(0, 4, 7)], s(sT0), 'v1')
    A('v_lshlrev_b32 v8, 6, v8')
    A('s_mul_i32 %s, %s, %d' % (s(sUOFF), s(sWAVE), 4 * 28672))
    A('s_lshl_b32 %s, %s, 11' % (s(sT0), s(sV)))
    A('s_add_u32 %s, %s, %s' % (s(sUOFF), s(sUOFF), s(sT0)))
    A('s_add_u32 %s, %s, %d' % (s(sUOFF), s(sUOFF), U_OFF))
    A('s_mul_i32 %s, %s, %d' % (s(sT3), s(sV), WCV))
    A('s_add_u32 %s, %s, %d' % (s(sT3), s(sT3), WIMGV))
    event(A, 3)
    wait_weights(A)
    event(A, 4)
    load_weights(A, VA, 32768)
    event(A, 5)
    group_wait(A)
    event(A, 6, v(vT), v(vT + 1))
    event_spin(A, 13, v(vT), v(vT + 1))
    A('s_mov_b32 %s, 0' % s(sSTEP))
    A('s_mov_b32 %s, %d' % (s(sSLOT), MB_OFF))
    A('s_mov_b32 %s, %d' % (s(sUOK), 1000 if G.dev_nowait else 0))
    for j in range(2):
        A('v_min_u32 %s, -2, %s' % (v(VR + j), v(VR + j)))
        A('buffer_store_dword %s, %s, %s, %s offen offset:%d' % (v(VR + j), v(vMST), s(S_WS, 4), s(sSLOT), 16 * j))
    A('v_mov_b32 %s, 1' % v(VHV))
    A('s_barrier')
    hint_send(A, VHV, VHA)
    def lread(i):
        j = VLDS.index(VORD[i])
        return ['ds_read_b128 %s, %s offset:%d' % (v(LB + 8 * (i & 1) + 4 * hi, 4), v(vLW), (2 * j + hi) * 1024) for hi in range(2)]
    BF = [0, 8, 16, 24, 32, 40, 48, 80, 88]
    OD, PA, PKD = 96, 104, 56
    sP0 = 93
    def top():
        A('s_add_u32 %s, %s, 1' % (s(sSTEP1), s(sSTEP)))
        for j in range(4): A('s_add_u32 %s, %s, %d' % (s(88 + j), s(sUOFF), j * 28672))
    top()
    A.label('L_value_loop')
    stamp(A, 0)
    A('s_mov_b32 %s, %s' % (s(sT4), s(sSTEP)))
    A('s_cmp_lt_u32 %s, %s' % (s(sSTEP), s(sUOK)))
    A('s_cbranch_scc0 L_ucheck')
    A.label('L_ucheck_done')
    ul = u_loads(); nb1 = PRM['nb1']
    extra = {}
    for i in range(2, 10):
        r, k = VORD[i - 2]
        extra.setdefault(5 * r + k - 2, []).extend(lread(i))
    A('s_add_u32 %s, %s, 2' % (s(sT0), s(sSTEP)))
    extra.setdefault(0, []).append('v_mov_b32 %s, %s' % (v(VHV), s(sT0)))
    zr = zero_regs(0, 32)
    post = ['s_barrier'] + lread(0) + lread(1)
    for j, x in enumerate(ul[:nb1]): post += x + zr[j * 6:(j + 1) * 6]
    post += zr[nb1 * 6:]
    main_phase(A, VA, 2, PRM['vdel'], post, ul[nb1:], PRM['uev'], extra, va_epi)
    for x in va_epi(7): A(x)
    for j in range(3): A('s_add_u32 %s, %s, %d' % (s(sP0 + j), s(sSLOT), MB_PO + 4096 * j))
    A('s_add_u32 %s, %s, %d' % (s(sSLOT), s(sSLOT), MB_STEP))
    for p in range(2): A('ds_write_b128 %s, %s offset:%d' % (v(vVW), v(ZB + 4 * p, 4), p * 1024))
    A('s_waitcnt vmcnt(0) lgkmcnt(0)')
    A('s_barrier')
    stamp(A, 5)
    def bread(f):
        c, p = f >> 1, f & 1
        return ['ds_read_b128 %s, %s offset:%d' % (v(BF[f % 9] + 4 * hi, 4), v(vVR), c * 4096 + hi * 2048 + p * 1024) for hi in range(2)]
    pre = []
    for f in range(9):
        pre += bread(f)
        if f in (4, 7): pre.append('s_waitcnt lgkmcnt(4)')
    pre += zero_regs(OD, 8) + ['s_waitcnt lgkmcnt(0)']
    A('s_add_u32 %s, %s, %d' % (s(sUOFF), s(sUOFF), 16 * 28672))
    A('s_add_u32 %s, %s, 1' % (s(sSTEP), s(sSTEP)))
    A('s_cmp_lg_u32 %s, 0' % s(sWAVE))
    A('s_cbranch_scc1 L_value_oth')
    for x in pre: A(x)
    A('s_barrier')
    stamp(A, 9)
    ld = ['buffer_load_dwordx4 %s, %s, %s, %s offen offset:%d sc1' % (v(PA + 4 * c, 4), v(vL16), s(S_WS, 4), s(sP0 + (c >> 2)), (c & 3) * 1024) for c in range(10)]
    for x in ld: A(x)
    A.label('L_pv')
    for f in range(20):
        c, p = f >> 1, f & 1
        if p == 0: A('s_waitcnt vmcnt(%d)' % (9 - c + (1 if f > PRM['vf'] else 0)))
        if f == 0: stamp(A, 6)
        if f >= 9: A('s_waitcnt lgkmcnt(%d)' % min(14, 2 * (min(19, f + 8) - f)))
        A(smf(v(OD + 4 * p, 4), v(PA + 4 * c, 4), v(BF[f % 9], 8)))
        if f == PRM['vf']: hint_send(A, VHV, VHA)
        if f + 9 < 20:
            for x in bread(f + 9): A(x)
    stamp(A, 7)
    A('v_add_f32 %s, %s, %s' % (v(OD), v(OD), v(OD + 2)))
    A('v_add_f32 %s, %s, %s' % (v(OD + 1), v(OD + 1), v(OD + 3)))
    A('v_cmp_u_f32 vcc, %s, %s' % (v(OD), v(OD + 1)))
    A('v_add_f32 %s, %s, %s' % (v(OD + 4), v(OD + 4), v(OD + 6)))
    A('v_add_f32 %s, %s, %s' % (v(OD + 5), v(OD + 5), v(OD + 7)))
    A('s_cbranch_vccnz L_pv_nan')
    A('v_cvt_pk_bf16_f32 %s, %s, %s' % (v(PKD), v(OD), v(OD + 4)))
    A('v_cvt_pk_bf16_f32 %s, %s, %s' % (v(PKD + 1), v(OD + 1), v(OD + 5)))
    A.label('L_pv_ok')
    A('buffer_store_dword %s, %s, %s, %s offen' % (v(PKD), v(vMST), s(S_WS, 4), s(sSLOT)))
    A('buffer_store_dword %s, %s, %s, %s offen offset:16' % (v(PKD + 1), v(vMST), s(S_WS, 4), s(sSLOT)))
    stamp(A, 8)
    if G.stamps:
        A('s_sub_u32 %s, %s, 1' % (s(sSTEP), s(sSTEP)))
        stamp_flush(A, 11)
        A('s_add_u32 %s, %s, 1' % (s(sSTEP), s(sSTEP)))
    A.label('L_value_next')
    top()
    A('s_cmp_lt_u32 %s, 63' % s(sSTEP))
    A('s_cbranch_scc1 L_value_loop')
    A('s_mov_b32 %s, %d' % (s(sT0), HM_OFF + 63 * HM_STEP))
    for j in range(2): A('buffer_store_dword %s, %s, %s, %s offen offset:%d sc1' % (v(PKD + j), v(vHIST), s(S_WS, 4), s(sT0), 16 * j))
    event(A, 8)
    event_spin(A, 14)
    A('s_branch L_exit')
    A.label('L_value_oth')
    hint_wait(A, sHPRD, sSTEP1, 2, PRM['pdel'], 16, vHP_)
    A('s_branch L_value_next')
    A.label('L_pv_nan')
    A('v_max3_u32 %s, %s, %s, %s' % (v(vT), v(PA), v(PA + 1), v(PA + 2)))
    for i in range(3, 39, 2): A('v_max3_u32 %s, %s, %s, %s' % (v(vT), v(vT), v(PA + i), v(PA + i + 1)))
    A('v_max_u32 %s, %s, %s' % (v(vT), v(vT), v(PA + 39)))
    A('v_cmp_eq_u32 vcc, -1, %s' % v(vT))
    spin_check(A, 'L_pv', ld + pre)
    A('v_cvt_pk_bf16_f32 %s, %s, %s' % (v(PKD), v(OD), v(OD + 4)))
    A('v_cvt_pk_bf16_f32 %s, %s, %s' % (v(PKD + 1), v(OD + 1), v(OD + 5)))
    A('v_min_u32 %s, -2, %s' % (v(PKD), v(PKD)))
    A('v_min_u32 %s, -2, %s' % (v(PKD + 1), v(PKD + 1)))
    A('s_branch L_pv_ok')
    ucheck_code(A, 'L_ucheck', 'L_ucheck_done', UB, UB + 8)
    emit_stubs(A)

def helper_role(A):
    A.label('L_helper')
    L = v(vLANE)
    sHW = sT3
    dbg_arrive(A, D_GRP)
    A('s_sub_u32 %s, %s, 30' % (s(sHW), s(sROLE)))
    A('s_lshl_b32 %s, %s, 2' % (s(sHW), s(sHW)))
    A('s_add_u32 %s, %s, %s' % (s(sHW), s(sHW), s(sWAVE)))
    A('s_min_u32 %s, %s, 6' % (s(sT0), s(sHW)))
    A('s_lshl_b32 %s, %s, 10' % (s(sT0), s(sT0)))
    lexpr(A, 'v10', L, [(0, 6, 16)], s(sT0), 'v1')
    A('s_cmp_lt_u32 %s, 7' % s(sHW))
    A('s_cselect_b32 %s, %s, 0x70000000' % (s(sT0), s(sT0)))
    lexpr(A, 'v11', L, [(4, 2, 256), (1, 1, 128), (2, 2, 32), (0, 1, 16)], s(sT0), 'v1')
    lexpr(A, 'v12', L, [(0, 6, 128)], 0, 'v1')
    if not G.dev_nowait: wait_init(A)
    group_wait(A)
    A('s_mov_b32 %s, 0' % s(sSTEP))
    A('s_mov_b32 %s, %d' % (s(sSLOT), MB_OFF))
    A('s_mov_b32 %s, %d' % (s(sHM), HM_OFF))
    A('s_mov_b32 %s, %d' % (s(sUOK), 1000 if G.dev_nowait else 0))
    LA = PRM['pla']
    A('s_lshl_b32 %s, %s, 13' % (s(sT0), s(sHW)))
    A('s_add_u32 %s, %s, %d' % (s(sXOFF), s(sT0), XF_OFF + (LA + 1) * 32768))
    A('s_add_u32 %s, %s, %d' % (s(sT1), s(sT0), MB_OFF + (LA + 1) * MB_STEP - 4 * 8192))
    A('s_cmp_lt_u32 %s, 4' % s(sHW))
    A('s_cselect_b32 %s, %s, %s' % (s(sXOFF), s(sXOFF), s(sT1)))
    A('s_mov_b32 %s, 32768' % s(sXPF))
    A('s_cselect_b32 %s, %s, %d' % (s(sXPF), s(sXPF), MB_STEP))
    NU = PRM['pnu']
    A('s_mul_i32 %s, %s, %d' % (s(sUOFF), s(sHW), 57344))
    A('s_add_u32 %s, %s, %d' % (s(sUOFF), s(sUOFF), U_OFF + LA * 16 * 28672))
    A.label('L_helper_loop')
    l = A.newlabel('L_hp'); A.label(l)
    A('buffer_load_dwordx4 v[16:19], v10, %s, %s offen sc1' % (s(S_WS, 4), s(sSLOT)))
    A('s_waitcnt vmcnt(0)')
    check4(A, 16, l, ['s_sleep 1'])
    A('buffer_store_dwordx4 v[16:19], v11, %s, %s offen sc1' % (s(S_WS, 4), s(sHM)))
    A('buffer_load_dword v20, v12, %s, %s offen' % (s(S_WS, 4), s(sXOFF)))
    if NU:
        A('s_add_u32 %s, %s, %d' % (s(sT4), s(sSTEP), LA))
        A('s_cmp_ge_u32 %s, 63' % s(sT4))
        A('s_cbranch_scc1 L_hskip')
        A('s_cmp_lt_u32 %s, %s' % (s(sT4), s(sUOK)))
        A('s_cbranch_scc0 L_hucheck')
        A.label('L_hucheck_done')
        A('s_mov_b32 %s, %s' % (s(sT0), s(sUOFF)))
        for i in range(NU):
            A('buffer_load_dword v20, v12, %s, %s offen' % (s(S_WS, 4), s(sT0)))
            A('s_add_u32 %s, %s, 8192' % (s(sT0), s(sT0)))
        A.label('L_hskip')
    A('s_add_u32 %s, %s, %d' % (s(sUOFF), s(sUOFF), 16 * 28672))
    A('s_add_u32 %s, %s, %s' % (s(sXOFF), s(sXOFF), s(sXPF)))
    A('s_add_u32 %s, %s, %d' % (s(sSLOT), s(sSLOT), MB_STEP))
    A('s_add_u32 %s, %s, %d' % (s(sHM), s(sHM), HM_STEP))
    A('s_add_u32 %s, %s, 1' % (s(sSTEP), s(sSTEP)))
    A('s_cmp_lt_u32 %s, 64' % s(sSTEP))
    A('s_cbranch_scc1 L_helper_loop')
    A('s_waitcnt vmcnt(0)')
    event(A, 8)
    event_spin(A, 14)
    A('s_branch L_exit')
    if NU: ucheck_code(A, 'L_hucheck', 'L_hucheck_done', 24, 21)
    emit_stubs(A)
```

```python
from common import *
import struct

sRHO, sH, sQ, sTY, sA = 71, 72, 73, 74, 75
sSC, sO1, sO2, sO3, sSEG, sCNT = 76, 77, 78, 79, 80, 81
S_W1 = 92
LW_R2 = 0
LW_ST = 36864
LW_WT = 36864 + 33792
def f2u(x): return struct.unpack('<I', struct.pack('<f', x))[0]

def wait_dbg(A, idx, val, sleep=2):
    l = A.newlabel('L_wd'); e = A.newlabel('L_wd_done')
    A('s_cmp_lg_u32 %s, 0' % s(sWAVE))
    A('s_cbranch_scc1 %s' % e)
    if idx == D_INIT: lexpr(A, 'v2', 'v0', [(0, 2, 64)], idx * 4, 'v3')
    else: A('v_mov_b32 v2, %d' % (idx * 4))
    A.label(l)
    A('buffer_load_dword v3, v2, %s, 0 offen sc1' % s(S_DBG, 4))
    A('s_waitcnt vmcnt(0)')
    A('v_cmp_gt_u32 vcc, %d, v3' % val)
    spin_check(A, l, ['s_sleep %d' % sleep])
    A.label(e)
    A('s_barrier')

def worker_entry(A):
    A.label('L_worker')
    A('s_mov_b32 %s, %d' % (s(sSPIN), SPIN_MAX))
    A('s_sub_u32 %s, %s, 1' % (s(sRHO), s(sXCC)))
    A('s_lshl_b32 %s, %s, 5' % (s(sRHO), s(sRHO)))
    A('s_add_u32 %s, %s, %s' % (s(sRHO), s(sRHO), s(sROLE)))
    A('s_mul_i32 %s, %s, 9363' % (s(sT0), s(sRHO)))
    A('s_lshr_b32 %s, %s, 16' % (s(sT0), s(sT0)))
    A('s_mul_i32 %s, %s, 7' % (s(sT1), s(sT0)))
    A('s_sub_u32 %s, %s, %s' % (s(sQ), s(sRHO), s(sT1)))
    A('s_lshr_b32 %s, %s, 4' % (s(sTY), s(sT0)))
    A('s_and_b32 %s, %s, 15' % (s(sH), s(sT0)))
    A('s_mul_i32 %s, %s, 7' % (s(sA), s(sH)))
    A('s_add_u32 %s, %s, %s' % (s(sA), s(sA), s(sQ)))
    A('s_cmp_eq_u32 %s, 0' % s(sTY))
    A('s_cselect_b32 %s, %s, %s' % (s(S_W1), s(S_WQ), s(S_WV)))
    A('s_cselect_b32 %s, %s, %s' % (s(S_W1 + 1), s(S_WQ + 1), s(S_WV + 1)))
    A('s_mov_b32 %s, 3670016' % s(S_W1 + 2))
    A('s_mov_b32 %s, 0x00020000' % s(S_W1 + 3))
    A('s_cselect_b32 %s, 0x%x, 1.0' % (s(sSC), f2u(SCALE_LOG2E)))

def zero_flags(A):
    A('s_cmp_eq_u32 %s, 3' % s(sWAVE))
    A('s_cselect_b32 %s, 0, 0x70000000' % s(sT1))
    A('s_cselect_b64 vcc, 1, 0')
    lexpr(A, 'v2', 'v0', [(0, 6, 4)], s(sT1), 'v1')
    lexpr(A, 'v13', 'v0', [(0, 6, 16)], s(sT1), 'v1')
    A('v_mov_b32 v3, %d' % OOB)
    A('s_and_b32 %s, %s, 3' % (s(sT0), s(sRHO)))
    A('s_lshl_b32 %s, %s, 6' % (s(sT0), s(sT0)))
    A('s_add_u32 %s, %s, %d' % (s(sT0), s(sT0), D_INIT * 4))
    A('v_mov_b32 v1, %s' % s(sT0))
    A('v_cndmask_b32 v11, v3, v1, vcc')
    A('v_mov_b32 v3, 0')
    A('v_mov_b32 v12, 1')
    for i in range(4): A('v_mov_b32 %s, -1' % v(16 + i))
    A('s_lshl_b32 %s, %s, 8' % (s(sT0), s(sRHO)))
    A('s_add_u32 %s, %s, %d' % (s(sT0), s(sT0), FLAGS))
    A('buffer_store_dword v3, v2, %s, %s offen sc1' % (s(S_WS, 4), s(sT0)))
    A('s_lshl_b32 %s, %s, 11' % (s(sT0), s(sRHO)))
    A('s_add_u32 %s, %s, %d' % (s(sT0), s(sT0), HM_OFF))
    A('buffer_store_dwordx4 v[16:19], v13, %s, %s offen sc1' % (s(S_WS, 4), s(sT0)))
    A('buffer_store_dwordx4 v[16:19], v13, %s, %s offen offset:1024 sc1' % (s(S_WS, 4), s(sT0)))

def phase_w1(A):
    LAND = 256
    W2F = 128
    AFR = (64, 96)
    DD = (32, 48)
    vG, vSW, vSR, vWT, vR2W, vR2R, vG2 = 4, 5, 6, 7, 8, 9, 10
    A('s_cmp_lg_u32 %s, 0' % s(sTY))
    A('s_cbranch_scc1 L_w1_b')
    lexpr(A, v(vG2), 'v0', [(5, 1, 8192), (0, 5, 16)], 0, 'v1')
    A('s_lshl_b32 %s, %s, 2' % (s(sT0), s(sQ)))
    A('s_add_u32 %s, %s, %s' % (s(sT0), s(sT0), s(sWAVE)))
    A('s_lshl_b32 %s, %s, 17' % (s(sT0), s(sT0)))
    A('s_lshl_b32 %s, %s, 9' % (s(sT1), s(sH)))
    A('s_add_u32 %s, %s, %s' % (s(sT0), s(sT0), s(sT1)))
    for j in range(8):
        A('buffer_load_dwordx4 %s, %s, %s, %s offen' % (v(64 + 4 * j, 4), v(vG2), s(S_WK, 4), s(sT0)))
        if j < 7: A('s_add_u32 %s, %s, 16384' % (s(sT0), s(sT0)))
    A('s_mul_i32 %s, %s, %d' % (s(sT0), s(sWAVE), 16 * 528))
    lexpr(A, v(vR2W), 'v0', [(5, 1, 528), (0, 5, 16)], s(sT0), 'v1')
    A('s_mov_b32 %s, 1056' % s(sO1))
    A('s_branch L_w1_c')
    A.label('L_w1_b')
    lexpr(A, v(vG2), 'v0', [(3, 3, 896), (0, 3, 16)], 0, 'v1')
    A('s_mul_i32 %s, %s, 229376' % (s(sT0), s(sH)))
    A('s_mul_i32 %s, %s, %d' % (s(sT1), s(sWAVE), 64 * 896))
    A('s_add_u32 %s, %s, %s' % (s(sT0), s(sT0), s(sT1)))
    A('s_lshl_b32 %s, %s, 7' % (s(sT1), s(sQ)))
    A('s_add_u32 %s, %s, %s' % (s(sT0), s(sT0), s(sT1)))
    for j in range(8):
        A('buffer_load_dwordx4 %s, %s, %s, %s offen' % (v(64 + 4 * j, 4), v(vG2), s(S_WO, 4), s(sT0)))
        if j < 7: A('s_add_u32 %s, %s, %d' % (s(sT0), s(sT0), 8 * 896))
    A('s_mul_i32 %s, %s, %d' % (s(sT0), s(sWAVE), 64 * 144))
    lexpr(A, v(vR2W), 'v0', [(3, 3, 144), (0, 3, 16)], s(sT0), 'v1')
    A('s_mov_b32 %s, %d' % (s(sO1), 8 * 144))
    A.label('L_w1_c')
    sTL, sTP, sB1 = sSEG, sCNT, sO3
    lexpr(A, v(vG), 'v0', [(5, 1, 8192), (0, 5, 16)], 0, 'v1')
    A('s_mul_i32 %s, %s, %d' % (s(sB1), s(sWAVE), 112 * 8192))
    A('s_lshl_b32 %s, %s, 9' % (s(sT1), s(sH)))
    A('s_add_u32 %s, %s, %s' % (s(sB1), s(sB1), s(sT1)))
    A('s_mov_b32 %s, %s' % (s(sTL), s(sQ)))
    A('s_mov_b32 %s, %s' % (s(sTP), s(sQ)))
    def nxt(r): return ['s_add_u32 %s, %s, 1' % (s(r), s(r)), 's_cmp_eq_u32 %s, 7' % s(r), 's_cselect_b32 %s, 0, %s' % (s(r), s(r))]
    def w1loads(i):
        o = ['s_lshl_b32 %s, %s, 17' % (s(sO2), s(sTL)), 's_add_u32 %s, %s, %s' % (s(sO2), s(sO2), s(sB1))] + nxt(sTL)
        for j in range(8):
            o.append('buffer_load_dwordx4 %s, %s, %s, %s offen' % (u(LAND + 4 * (8 * i + j), 4), v(vG), s(S_W1, 4), s(sO2)))
            if j < 7: o.append('s_add_u32 %s, %s, 16384' % (s(sO2), s(sO2)))
        return o
    for i in range(3):
        for x in w1loads(i): A(x)
    A('s_mul_i32 %s, %s, 8448' % (s(sT0), s(sWAVE)))
    A('s_add_u32 %s, %s, %d' % (s(sT0), s(sT0), LW_ST))
    lexpr(A, v(vSW), 'v0', [(5, 1, 528), (0, 5, 16)], s(sT0), 'v1')
    lexpr(A, v(vSR), 'v0', [(0, 4, 528), (4, 2, 16)], s(sT0), 'v1')
    A('s_mul_i32 %s, %s, 224' % (s(sT0), s(sWAVE)))
    A('s_add_u32 %s, %s, %d' % (s(sT0), s(sT0), LW_WT))
    lexpr(A, v(vWT), 'v0', [(0, 4, 912), (4, 2, 8)], s(sT0), 'v1')
    levent(A, 0)
    A('s_waitcnt vmcnt(24)')
    levent(A, 1)
    A('buffer_atomic_add v12, v11, %s, 0 offen' % s(S_DBG, 4))
    for j in range(8):
        A('ds_write_b128 %s, %s' % (v(vR2W), v(64 + 4 * j, 4)))
        if j < 7: A('v_add_u32 %s, %s, %s' % (v(vR2W), s(sO1), v(vR2W)))
    A('s_waitcnt lgkmcnt(0)')
    A('s_barrier')
    A('s_cmp_lg_u32 %s, 0' % s(sTY))
    A('s_cbranch_scc1 L_w1_b2')
    lexpr(A, v(vR2R), 'v0', [(0, 4, 528), (4, 2, 16)], LW_R2, 'v1')
    for nt in range(4):
        for ks in range(8):
            A('ds_read_b128 %s, %s offset:%d' % (v(W2F + (nt * 8 + ks) * 4, 4), v(vR2R), nt * 16 * 528 + ks * 64))
            if ks % 4 == 3: A('s_waitcnt lgkmcnt(8)')
    A('s_branch L_w1_c2')
    A.label('L_w1_b2')
    lexpr(A, v(vR2R), 'v0', [(4, 2, 8 * 144), (2, 2, 144), (0, 2, 8)], LW_R2, 'v1')
    for nt in range(4):
        for ks in range(8):
            for t in range(2):
                A('ds_read_b64_tr_b16 %s, %s offset:%d' % (v(W2F + (nt * 8 + ks) * 4 + 2 * t, 2), v(vR2R), (32 * ks + 4 * t) * 144 + nt * 32))
            if ks % 2 == 1: A('s_waitcnt lgkmcnt(8)')
    A.label('L_w1_c2')
    def stage(i):
        o = ['s_waitcnt vmcnt(%d)' % [17, 9, 9, 8, 8, 8, 0][i]]
        for j in range(8):
            o.append('ds_write_b128 %s, %s offset:%d' % (v(vSW), u(LAND + 4 * (8 * i + j), 4), j * 1056))
            if j == 3: o.append('s_waitcnt lgkmcnt(8)')
        for ks in range(8):
            if ks % 4 == 0: o.append('s_waitcnt lgkmcnt(8)')
            o.append('ds_read_b128 %s, %s offset:%d' % (v(AFR[i & 1] + 4 * ks, 4), v(vSR), ks * 64))
        return o
    def postl(i):
        D = DD[i & 1]
        o = ['s_lshl_b32 %s, %s, 5' % (s(sT3), s(sTP))] + nxt(sTP) + ['v_add_u32 v13, %s, %s' % (s(sT3), v(vWT))]
        for nt in range(4):
            for r in range(4): o.append('v_mul_f32 %s, %s, %s' % (v(D + 4 * nt + r), s(sSC), v(D + 4 * nt + r)))
            o.append('v_cvt_pk_bf16_f32 %s, %s, %s' % (v(D + 4 * nt), v(D + 4 * nt), v(D + 4 * nt + 1)))
            o.append('v_cvt_pk_bf16_f32 %s, %s, %s' % (v(D + 4 * nt + 1), v(D + 4 * nt + 2), v(D + 4 * nt + 3)))
            o.append('ds_write_b64 v13, %s offset:%d' % (v(D + 4 * nt, 2), nt * 16 * 912))
        return o
    def post(i):
        for x in postl(i): A(x)
    levent(A, 2)
    for x in stage(0): A(x)
    for i in range(7):
        A('s_waitcnt lgkmcnt(0)')
        if i == 3: levent(A, 3)
        D = DD[i & 1]
        q1 = (stage(i + 1) if i < 6 else []) + (w1loads(i + 3) if i < 4 else [])
        q2 = postl(i - 1) if i > 0 else []
        n = 0
        for ks in range(8):
            for nt in range(4):
                A('v_mfma_f32_16x16x32_bf16 %s, %s, %s, %s' % (v(D + 4 * nt, 4), v(AFR[i & 1] + 4 * ks, 4), v(W2F + (nt * 8 + ks) * 4, 4), '0' if ks == 0 else v(D + 4 * nt, 4)))
                n += 1
                for qq, n0 in ((q2, 3), (q1, 2)):
                    if n >= n0:
                        while qq:
                            x = qq.pop(0); A(x)
                            if not x.startswith('s_'): break
        for x in q2 + q1: A(x)
    post(6)
    A('s_waitcnt lgkmcnt(0)')
    levent_flush(A, 4, 9)
    A('s_barrier')

def col_to_blk(A, col, vv, pp, t):
    A('v_mul_u32_u24 %s, 2341, %s' % (vv, col))
    A('v_lshrrev_b32 %s, 16, %s' % (vv, vv))
    A('v_mul_u32_u24 %s, 28, %s' % (t, vv))
    A('v_sub_u32 %s, %s, %s' % (t, col, t))
    A('v_lshrrev_b32 %s, 1, %s' % (pp, t))
    A('v_and_b32 %s, 1, %s' % (t, t))
    A('v_mul_u32_u24 %s, 14, %s' % (t, t))
    A('v_add_u32 %s, %s, %s' % (pp, pp, t))

WF = 256
vST = 4
def phase_w1b(A):
    vRD, vDST = 8, 9
    A('s_cmp_lg_u32 %s, 0' % s(sTY))
    A('s_cbranch_scc1 L_w1b_b')
    A('s_lshl_b32 %s, %s, 4' % (s(sT0), s(sWAVE)))
    lexpr(A, 'v10', 'v0', [(0, 4, 1)], s(sT0), 'v1')
    A('s_mul_i32 %s, %s, %d' % (s(sT0), s(sH), WCU))
    A('s_lshl_b32 %s, %s, 2' % (s(sT1), s(sQ)))
    A('s_add_u32 %s, %s, %s' % (s(sT1), s(sT1), s(sWAVE)))
    A('s_lshl_b32 %s, %s, 10' % (s(sT1), s(sT1)))
    A('s_add_u32 %s, %s, %s' % (s(sT0), s(sT0), s(sT1)))
    lexpr(A, v(vDST), 'v0', [(0, 6, 16)], s(sT0), 'v1')
    for nt in range(4):
        lexpr(A, v(12 + nt), 'v0', [(2, 2, 8 * 912), (0, 2, 912), (4, 2, 16)], LW_WT + (32 * (nt >> 1) + 4 * (nt & 1)) * 912, 'v1')
    A('s_mul_i32 %s, %s, 28672' % (s(sT0), s(sH)))
    A('s_lshl_b32 %s, %s, 11' % (s(sT1), s(sQ)))
    A('s_add_u32 %s, %s, %s' % (s(sT0), s(sT0), s(sT1)))
    lexpr(A, v(vST), 'v0', [(0, 6, 16)], s(sT0), 'v1')
    A('v_add_u32 %s, 1024, %s' % (v(vST + 1), v(vST)))
    A('v_add_u32 %s, 14336, %s' % (v(vST + 2), v(vST)))
    A('v_add_u32 %s, 15360, %s' % (v(vST + 3), v(vST)))
    A('s_mov_b32 %s, %d' % (s(sO3), YX_OFF))
    A('s_mov_b32 %s, 28672' % s(sO1))
    A('s_branch L_w1b_c')
    A.label('L_w1b_b')
    for nt in range(4):
        lexpr(A, v(12 + nt), 'v0', [(0, 4, 2 * 912), (4, 2, 16)], LW_WT + (32 * (nt & 1) + (nt >> 1)) * 912, 'v1')
    A('s_mul_i32 %s, %s, 28672' % (s(sT0), s(sH)))
    A('s_lshl_b32 %s, %s, 12' % (s(sT1), s(sQ)))
    A('s_add_u32 %s, %s, %s' % (s(sT0), s(sT0), s(sT1)))
    lexpr(A, v(vST), 'v0', [(0, 6, 16)], s(sT0), 'v1')
    for nt in range(1, 4): A('v_add_u32 %s, %d, %s' % (v(vST + nt), (nt & 1) * 2048 + (nt >> 1) * 1024, v(vST)))
    A('s_and_b32 %s, %s, 1' % (s(sT2), s(sWAVE)))
    A('s_lshl_b32 %s, %s, 5' % (s(sT0), s(sT2)))
    A('s_lshr_b32 %s, %s, 1' % (s(sT1), s(sWAVE)))
    A('s_add_u32 %s, %s, %s' % (s(sT0), s(sT0), s(sT1)))
    lexpr(A, 'v10', 'v0', [(0, 4, 2)], s(sT0), 'v1')
    A('s_lshl_b32 %s, %s, 1' % (s(sT0), s(sQ)))
    A('s_add_u32 %s, %s, %s' % (s(sT0), s(sT0), s(sT2)))
    A('s_mul_i32 %s, %s, %d' % (s(sT0), s(sT0), WCV))
    A('s_lshl_b32 %s, %s, 1' % (s(sT2), s(sH)))
    A('s_add_u32 %s, %s, %s' % (s(sT2), s(sT2), s(sT1)))
    A('s_lshl_b32 %s, %s, 10' % (s(sT2), s(sT2)))
    A('s_add_u32 %s, %s, %s' % (s(sT0), s(sT0), s(sT2)))
    A('s_add_u32 %s, %s, %d' % (s(sT0), s(sT0), WIMGV))
    lexpr(A, v(vDST), 'v0', [(0, 6, 16)], s(sT0), 'v1')
    A('s_mov_b32 %s, %d' % (s(sO3), U_OFF))
    A('s_mov_b32 %s, 32768' % s(sO1))
    A.label('L_w1b_c')
    A('v_mul_u32_u24 v10, 912, v10')
    lexpr(A, v(vRD), 'v0', [(5, 1, 32), (4, 1, 8)], LW_WT, 'v1')
    A('v_add_u32 %s, %s, v10' % (v(vRD), v(vRD)))
    for c in range(14):
        A('ds_read2_b32 %s, %s offset0:%d offset1:%d' % (v(64 + 4 * c, 2), v(vRD), 16 * c, 16 * c + 4))
        A('ds_read2_b32 %s, %s offset0:%d offset1:%d' % (v(66 + 4 * c, 2), v(vRD), 16 * c + 1, 16 * c + 5))
        if c % 4 == 3: A('s_waitcnt lgkmcnt(6)')
    A('s_mov_b32 %s, %d' % (s(sT0), WIMG))
    A('s_waitcnt lgkmcnt(0)')
    for c in range(14):
        A('buffer_store_dwordx4 %s, %s, %s, %s offen sc1' % (v(64 + 4 * c, 4), v(vDST), s(S_WS, 4), s(sT0)))
        if c < 13: A('s_add_u32 %s, %s, %s' % (s(sT0), s(sT0), s(sO1)))
    for nt in range(4):
        for ks in range(14):
            A('ds_read_b128 %s, %s offset:%d' % (u(WF + (nt * 14 + ks) * 4, 4), v(12 + nt), ks * 64))
            if ks % 7 == 6: A('s_waitcnt lgkmcnt(7)')
    wait_dbg_nb = None
    A('s_waitcnt vmcnt(0) lgkmcnt(0)')
    wait_dbg(A, D_INIT, 56)
    e = A.newlabel('L_w1f')
    A('s_cmp_lg_u32 %s, 0' % s(sWAVE))
    A('s_cbranch_scc1 %s' % e)
    A('s_lshl_b32 %s, %s, 6' % (s(sT0), s(sRHO)))
    A('v_mov_b32 v2, %s' % s(sT0))
    A('v_mov_b32 v3, 1')
    A('s_mov_b32 %s, %d' % (s(sT0), FLG_W1))
    A('s_mov_b64 exec, 1')
    A('buffer_store_dword v3, v2, %s, %s offen sc1' % (s(S_WS, 4), s(sT0)))
    A('s_mov_b64 exec, -1')
    A.label(e)
    event(A, 3)
    wait_dbg(A, D_XG, 32)

def phase_w2(A, ty):
    tag = 'AB'[ty]
    D, PK = 16, 48
    vXG, vFL, vFV = 8, 9, 10
    def X(b, t, ks):
        r = 64 + b * 112 + (t * 14 + ks) * 4
        return u(r if r < 256 else r - 256 + 256 + 224, 4)
    A.label('L_w2' + tag)
    lexpr(A, v(vXG), 'v0', [(0, 6, 16)], 0, 'v1')
    A('s_lshl_b32 %s, %s, 2' % (s(sT0), s(sA)))
    A('s_add_u32 %s, %s, %s' % (s(sT0), s(sT0), s(sWAVE)))
    A('s_lshl_b32 %s, %s, 2' % (s(sT0), s(sT0)))
    A('s_add_u32 %s, %s, %d' % (s(sT0), s(sT0), FLG_W2 + ty * 1792))
    A('v_mov_b32 v1, %s' % s(sT0))
    A('v_mov_b32 v2, %d' % OOB)
    A('v_cmp_eq_u32 vcc, 0, v0')
    A('v_cndmask_b32 %s, v2, v1, vcc' % v(vFL))
    A('s_mul_i32 %s, %s, 28672' % (s(sO1), s(sWAVE)))
    A('s_add_u32 %s, %s, %d' % (s(sO1), s(sO1), XG_OFF))
    A('s_mul_i32 %s, %s, %d' % (s(sT0), s(sWAVE), 16 * 28672))
    A('s_add_u32 %s, %s, %s' % (s(sO3), s(sO3), s(sT0)))
    A('s_mov_b32 %s, 0' % s(sCNT))
    def loads(b):
        out = []
        for n in range(28):
            ks, t = n >> 1, n & 1
            off = t * 14336 + ks * 1024
            g = []
            if n % 2 == 0 or True:
                g.append('s_add_u32 %s, %s, %d' % (s(sT2), s(sO1), off & ~4095))
            g.append('buffer_load_dwordx4 %s, %s, %s, %s offen offset:%d sc1' % (X(b, t, ks), v(vXG), s(S_WS, 4), s(sT2), off & 4095))
            out.append(g)
        return out
    for g in loads(0):
        for x in g: A(x)
    A('s_add_u32 %s, %s, %d' % (s(sO1), s(sO1), 4 * 28672))
    for _ in range(5): A('buffer_store_dword v1, v2, %s, 0 offen' % s(S_WS, 4))
    LP = 'L_w2loop' + tag
    A.label(LP)
    for b in range(2):
        ld = loads(1 - b)
        issued = 0
        for ks in range(14):
            A('s_waitcnt vmcnt(%d)' % min(63, 26 - 2 * ks + 5 + issued))
            for t in range(2):
                for nt in range(4):
                    d = v(D + (t * 4 + nt) * 4, 4)
                    w_, x_ = u(WF + (nt * 14 + ks) * 4, 4), X(b, t, ks)
                    a_, b_ = (w_, x_) if ty == 0 else (x_, w_)
                    A('v_mfma_f32_16x16x32_bf16 %s, %s, %s, %s' % (d, a_, b_, '0' if ks == 0 else d))
                    if nt == 1:
                        for x in ld.pop(0): A(x)
                        issued += 1
        A('s_add_u32 %s, %s, %d' % (s(sO1), s(sO1), 4 * 28672))
        A('s_waitcnt vmcnt(28)')
        A('v_mov_b32 %s, %s' % (v(vFV), s(sCNT)))
        A('buffer_store_dword %s, %s, %s, 0 offen sc1' % (v(vFV), v(vFL), s(S_WS, 4)))
        for k in range(4):
            if ty == 0: t, aa = k >> 1, k & 1; d0, d1 = D + (t * 4 + 2 * aa) * 4, D + (t * 4 + 2 * aa + 1) * 4
            else: d0, d1 = D + k * 4, D + (4 + k) * 4
            A('v_cvt_pk_bf16_f32 %s, %s, %s' % (v(PK + 4 * k), v(d0), v(d0 + 1)))
            A('v_cvt_pk_bf16_f32 %s, %s, %s' % (v(PK + 4 * k + 1), v(d0 + 2), v(d0 + 3)))
            A('v_cvt_pk_bf16_f32 %s, %s, %s' % (v(PK + 4 * k + 2), v(d1), v(d1 + 1)))
            A('v_cvt_pk_bf16_f32 %s, %s, %s' % (v(PK + 4 * k + 3), v(d1 + 2), v(d1 + 3)))
            A('buffer_store_dwordx4 %s, %s, %s, %s offen sc1' % (v(PK + 4 * k, 4), v(vST + k), s(S_WS, 4), s(sO3)))
        A('s_add_u32 %s, %s, %d' % (s(sO3), s(sO3), 4 * 16 * 28672))
        A('s_add_u32 %s, %s, 1' % (s(sCNT), s(sCNT)))
    A('s_cmp_lt_u32 %s, 16' % s(sCNT))
    A('s_cbranch_scc1 %s' % LP)
    A('s_waitcnt vmcnt(0)')
    A('v_mov_b32 %s, 16' % v(vFV))
    A('buffer_store_dword %s, %s, %s, 0 offen sc1' % (v(vFV), v(vFL), s(S_WS, 4)))

def wait_flags(A, vaddr, soff, sval, sleep, tmp='v3', coarse=False):
    l = A.newlabel('L_wf')
    A.label(l)
    A('buffer_load_dword %s, %s, %s, %s offen sc1' % (tmp, vaddr, s(S_WS, 4), soff))
    A('s_waitcnt vmcnt(0)')
    A('v_cmp_gt_u32 vcc, %s, %s' % (sval, tmp))
    if coarse:
        fine = A.newlabel('L_wff')
        spin_check(A, l, ['s_cmp_ge_u32 %s, %d' % (s(sSEG), PRM['fine']), 's_cbranch_scc1 %s' % fine, 's_sleep %d' % PRM['zs'], fine + ':', 's_sleep 1'])
    else: spin_check(A, l, ['s_sleep %d' % sleep])

def load_hm(A, M, va, vb, so, mm):
    l = A.newlabel('L_hm'); l2 = A.newlabel('L_hm2'); l3 = A.newlabel('L_hm3')
    ld = ['buffer_load_dwordx4 %s, %s, %s, %s offen offset:%d sc1' % (v(M + 4 * ks, 4), va if ks < 8 else vb, s(S_WS, 4), s(so), (ks & 7) * 512) for ks in range(14)]
    A('s_sub_u32 %s, %s, %d' % (s(sT2), s(so), HM_STEP))
    A('s_cmp_ge_u32 %s, %d' % (s(sSEG), PRM['fine']))
    A('s_cselect_b32 %s, %s, %s' % (s(sT2), s(sT2), s(so)))
    A.label(l)
    A('buffer_load_dword v3, %s, %s, %s offen offset:2560 sc1' % (vb, s(S_WS, 4), s(sT2)))
    A('s_waitcnt vmcnt(0)')
    A('v_cmp_eq_u32 vcc, -1, v3')
    spin_check(A, l, ['s_sleep %d' % PRM['zs']])
    A.label(l2)
    for x in ld: A(x)
    A('s_waitcnt vmcnt(13)')
    A('v_cmp_eq_u32 vcc, -1, %s' % v(M))
    spin_check(A, l2, ['s_waitcnt vmcnt(0)'])
    for ks in range(14):
        A('s_waitcnt vmcnt(%d)' % (13 - ks))
        mm(ks)
        r = M + 4 * ks
        if ks == 0: A('v_max_u32 v3, %s, %s' % (v(r), v(r + 1)))
        else: A('v_max3_u32 v3, v3, %s, %s' % (v(r), v(r + 1)))
        A('v_max3_u32 v3, v3, %s, %s' % (v(r + 2), v(r + 3)))
    A('v_cmp_eq_u32 vcc, -1, v3')
    spin_check(A, l2)

def lane0_addr(A, dst, sreg):
    A('v_mov_b32 v1, %s' % sreg)
    A('v_mov_b32 v2, %d' % OOB)
    A('v_cmp_eq_u32 vcc, 0, v0')
    A('v_cndmask_b32 %s, v2, v1, vcc' % dst)

def phase_z(A):
    D, M = 16, 64
    vHF, vHM, vFL = 8, 9, 10
    lexpr(A, v(vHM), 'v0', [(4, 2, 128), (0, 3, 16)], 0, 'v1')
    A('v_add_u32 v11, 4096, %s' % v(vHM))
    A('s_lshl_b32 %s, %s, 2' % (s(sT0), s(sA)))
    A('s_add_u32 %s, %s, %s' % (s(sT0), s(sT0), s(sWAVE)))
    A('s_lshl_b32 %s, %s, 2' % (s(sT0), s(sT0)))
    A('s_add_u32 %s, %s, %d' % (s(sT0), s(sT0), FLG_Z))
    lane0_addr(A, v(vFL), s(sT0))
    A('s_lshr_b32 %s, %s, 2' % (s(sT0), s(sH)))
    A('s_mul_i32 %s, %s, 28672' % (s(sT0), s(sT0)))
    A('s_and_b32 %s, %s, 3' % (s(sT1), s(sH)))
    A('s_lshl_b32 %s, %s, 8' % (s(sT1), s(sT1)))
    A('s_add_u32 %s, %s, %s' % (s(sT0), s(sT0), s(sT1)))
    A('s_lshl_b32 %s, %s, 12' % (s(sT1), s(sQ)))
    A('s_add_u32 %s, %s, %s' % (s(sT0), s(sT0), s(sT1)))
    lexpr(A, 'v12', 'v0', [(0, 4, 16), (4, 1, 8)], s(sT0), 'v1')
    A('v_cmp_gt_u32 vcc, 32, v0')
    A('v_cndmask_b32 %s, v2, v12, vcc' % v(vST))
    A('s_mov_b32 %s, %s' % (s(sSEG), s(sWAVE)))
    A('s_mov_b32 %s, 0' % s(sCNT))
    A.label('L_zloop')
    A('s_mul_i32 %s, %s, %d' % (s(sO1), s(sSEG), HM_STEP))
    A('s_add_u32 %s, %s, %d' % (s(sO1), s(sO1), HM_OFF))
    A('s_mul_i32 %s, %s, %d' % (s(sO2), s(sSEG), HZ_STEP))
    A('s_add_u32 %s, %s, %d' % (s(sO2), s(sO2), HZ_OFF))
    def mm(ks):
        for nt in range(4):
            d = v(D + 4 * nt, 4)
            A('v_mfma_f32_16x16x32_bf16 %s, %s, %s, %s' % (d, v(M + 4 * ks, 4), u(WF + (nt * 14 + ks) * 4, 4), '0' if ks == 0 else d))
    load_hm(A, M, v(vHM), 'v11', sO1, mm)
    for nt in range(4):
        d = D + 4 * nt
        A('v_cvt_pk_bf16_f32 %s, %s, %s' % (v(d), v(d), v(d + 1)))
        A('v_cvt_pk_bf16_f32 %s, %s, %s' % (v(d + 1), v(d + 2), v(d + 3)))
        A('buffer_store_dwordx2 %s, %s, %s, %s offen offset:%d sc1' % (v(d, 2), v(vST), s(S_WS, 4), s(sO2), (nt & 1) * 2048 + (nt >> 1) * 1024))
    A('s_add_u32 %s, %s, 1' % (s(sCNT), s(sCNT)))
    A('v_mov_b32 v3, %s' % s(sCNT))
    A('s_waitcnt vmcnt(0)')
    A('buffer_store_dword v3, %s, %s, 0 offen sc1' % (v(vFL), s(S_WS, 4)))
    A('s_add_u32 %s, %s, 4' % (s(sSEG), s(sSEG)))
    A('s_cmp_lt_u32 %s, 64' % s(sSEG))
    A('s_cbranch_scc1 L_zloop')

sK = 82
def post_dispatch(A):
    A('s_and_b32 %s, %s, 7' % (s(sK), s(sA)))
    A('s_lshr_b32 %s, %s, 3' % (s(sSEG), s(sA)))
    A('s_cmp_ge_u32 %s, 4' % s(sK))
    A('s_cbranch_scc1 L_s2')

def seg_count(A, dst):
    A('s_lshr_b32 %s, %s, 2' % (dst, s(sSEG)))
    A('s_add_u32 %s, %s, 1' % (dst, dst))
    A('s_and_b32 %s, %s, 3' % (s(sT1), s(sSEG)))
    A('s_lshl_b32 %s, %s, 2' % (s(sT1), s(sT1)))

def phase_s1(A):
    XG_, YX_, HM_, D = 256, 256 + 112, 64, 16
    vL16, vYF, vHF, vHM, vHM2, vDL, vPX, vPM, vFL = 4, 5, 6, 7, 8, 9, 10, 11, 12
    T = 40
    sHD = sH
    A.label('L_s1')
    A('s_lshl_b32 %s, %s, 2' % (s(sHD), s(sK)))
    A('s_add_u32 %s, %s, %s' % (s(sHD), s(sHD), s(sWAVE)))
    lexpr(A, v(vL16), 'v0', [(0, 6, 16)], 0, 'v1')
    A('v_min_u32 v1, 6, v0')
    A('s_mul_i32 %s, %s, 7' % (s(sT0), s(sHD)))
    A('v_add_u32 v1, %s, v1' % s(sT0))
    A('v_lshlrev_b32 v1, 4, v1')
    A('v_add_u32 %s, %d, v1' % (v(vYF), FLG_W2))
    lexpr(A, v(vHM), 'v0', [(4, 2, 128), (0, 3, 16)], 0, 'v1')
    A('v_add_u32 %s, 4096, %s' % (v(vHM2), v(vHM)))
    lexpr(A, v(vDL), 'v0', [(2, 2, 8), (0, 2, 1)], 0, 'v1')
    A('v_lshrrev_b32 v1, 4, v0')
    A('v_lshlrev_b32 v1, 3, v1')
    A('v_sub_u32 %s, %s, v1' % (v(vDL), v(vDL)))
    A('s_lshl_b32 %s, %s, 11' % (s(sT0), s(sHD)))
    A('v_add_u32 %s, %s, %s' % (v(vPX), s(sT0), v(vL16)))
    A('s_lshl_b32 %s, %s, 11' % (s(sT0), s(sK)))
    A('s_lshl_b32 %s, %s, 8' % (s(sT1), s(sWAVE)))
    A('s_add_u32 %s, %s, %s' % (s(sT0), s(sT0), s(sT1)))
    A('s_add_u32 %s, %s, %d' % (s(sT0), s(sT0), 16 * 2048))
    lexpr(A, 'v13', 'v0', [(0, 4, 16), (4, 1, 8)], s(sT0), 'v1')
    A('v_mov_b32 v2, %d' % OOB)
    A('v_cmp_gt_u32 vcc, 32, v0')
    A('v_cndmask_b32 %s, v2, v13, vcc' % v(vPM))
    A('s_lshl_b32 %s, %s, 2' % (s(sT0), s(sHD)))
    A('s_add_u32 %s, %s, %d' % (s(sT0), s(sT0), FLG_P))
    lane0_addr(A, v(vFL), s(sT0))
    A('v_mov_b32 v14, 0x%x' % f2u(-1.0e9 * 1.4426950408889634))
    A('v_mov_b32 v15, 0xff800000')
    A.label('L_s1loop')
    seg_count(A, s(sT0))
    wait_flags(A, v(vYF), s(sT1), s(sT0), 16)
    A('s_mul_i32 %s, %s, 28672' % (s(sO1), s(sSEG)))
    A('s_add_u32 %s, %s, %d' % (s(sO1), s(sO1), XG_OFF))
    A('s_lshl_b32 %s, %s, 4' % (s(sO2), s(sSEG)))
    A('s_add_u32 %s, %s, %s' % (s(sO2), s(sO2), s(sHD)))
    A('s_mul_i32 %s, %s, 28672' % (s(sO2), s(sO2)))
    A('s_add_u32 %s, %s, %d' % (s(sO2), s(sO2), YX_OFF))
    for ks in range(14):
        for base, so in ((XG_, sO1), (YX_, sO2)):
            for t in range(2):
                off = t * 14336 + ks * 1024
                A('s_add_u32 %s, %s, %d' % (s(sT2), s(so), off & ~4095))
                A('buffer_load_dwordx4 %s, %s, %s, %s offen offset:%d sc1' % (u(base + (t * 14 + ks) * 4, 4), v(vL16), s(S_WS, 4), s(sT2), off & 4095))
    def Dr(qt, t): return D + (qt * 3 + t) * 4
    for ks in range(14):
        A('s_waitcnt vmcnt(%d)' % (52 - 4 * ks))
        for qt in range(2):
            for t in range(2):
                d = v(Dr(qt, t), 4)
                A('v_mfma_f32_16x16x32_bf16 %s, %s, %s, %s' % (d, u(XG_ + (t * 14 + ks) * 4, 4), u(YX_ + (qt * 14 + ks) * 4, 4), '0' if ks == 0 else d))
    for qt in range(2):
        for t in range(2):
            for r in range(4):
                A('v_cmp_le_i32 vcc, %d, %s' % (4 * (t - qt) + r, v(vDL)))
                A('v_cndmask_b32 %s, v14, %s, vcc' % (v(Dr(qt, t) + r), v(Dr(qt, t) + r)))
        d = Dr(qt, 0)
        A('v_max3_f32 %s, %s, %s, %s' % (v(T + qt), v(d), v(d + 1), v(d + 2)))
        A('v_max3_f32 %s, %s, %s, %s' % (v(T + qt), v(T + qt), v(d + 3), v(d + 4)))
        A('v_max3_f32 %s, %s, %s, %s' % (v(T + qt), v(T + qt), v(d + 5), v(d + 6)))
        A('v_max_f32 %s, %s, %s' % (v(T + qt), v(T + qt), v(d + 7)))
    A('s_mul_i32 %s, %s, %d' % (s(sO1), s(sSEG), HM_STEP))
    A('s_add_u32 %s, %s, %d' % (s(sO1), s(sO1), HM_OFF))
    A('s_mul_i32 %s, %s, 40960' % (s(sO3), s(sSEG)))
    A('s_add_u32 %s, %s, %d' % (s(sO3), s(sO3), PP_OFF))
    def mm(ks):
        for qt in range(2):
            d = v(Dr(qt, 2), 4)
            A('v_mfma_f32_16x16x32_bf16 %s, %s, %s, %s' % (d, v(HM_ + 4 * ks, 4), u(YX_ + (qt * 14 + ks) * 4, 4), '0' if ks == 0 else d))
    load_hm(A, HM_, v(vHM), v(vHM2), sO1, mm)
    A('v_cmp_gt_u32 vcc, 32, v0')
    def xred(op):
        for sw in ('v_permlane16_swap_b32', 'v_permlane32_swap_b32'):
            for qt in range(2): A('v_mov_b32 %s, %s' % (v(T + 2 + qt), v(T + qt)))
            for qt in range(2): A('%s %s, %s' % (sw, v(T + qt), v(T + 2 + qt)))
            for qt in range(2): A('%s %s, %s, %s' % (op, v(T + qt), v(T + qt), v(T + 2 + qt)))
    for qt in range(2):
        d = Dr(qt, 2)
        for r in range(4): A('v_cndmask_b32 %s, v15, %s, vcc' % (v(d + r), v(d + r)))
        A('v_max3_f32 %s, %s, %s, %s' % (v(T + qt), v(T + qt), v(d), v(d + 1)))
        A('v_max3_f32 %s, %s, %s, %s' % (v(T + qt), v(T + qt), v(d + 2), v(d + 3)))
    xred('v_max_f32')
    for qt in range(2):
        d = Dr(qt, 0)
        for i in range(12): A('v_sub_f32 %s, %s, %s' % (v(d + i), v(d + i), v(T + qt)))
        for i in range(12): A('v_exp_f32 %s, %s' % (v(d + i), v(d + i)))
    for qt in range(2):
        d = Dr(qt, 0)
        A('v_add_f32 %s, %s, %s' % (v(T + qt), v(d), v(d + 1)))
        for i in range(2, 12): A('v_add_f32 %s, %s, %s' % (v(T + qt), v(T + qt), v(d + i)))
    xred('v_add_f32')
    for qt in range(2): A('v_rcp_f32 %s, %s' % (v(T + qt), v(T + qt)))
    for qt in range(2):
        d = Dr(qt, 0); o = T + 4 + 8 * qt
        for i in range(12): A('v_mul_f32 %s, %s, %s' % (v(d + i), v(d + i), v(T + qt)))
        for i in range(6): A('v_cvt_pk_bf16_f32 %s, %s, %s' % (v(o + i), v(d + 2 * i), v(d + 2 * i + 1)))
        A('buffer_store_dwordx4 %s, %s, %s, %s offen offset:%d sc1' % (v(o, 4), v(vPX), s(S_WS, 4), s(sO3), qt * 1024))
        A('buffer_store_dwordx2 %s, %s, %s, %s offen offset:%d sc1' % (v(o + 4, 2), v(vPM), s(S_WS, 4), s(sO3), qt * 1024))
    A('v_mov_b32 v3, 1')
    A('s_lshl_b32 %s, %s, 6' % (s(sT0), s(sSEG)))
    A('s_waitcnt vmcnt(0)')
    A('buffer_store_dword v3, %s, %s, %s offen sc1' % (v(vFL), s(S_WS, 4), s(sT0)))
    A('s_add_u32 %s, %s, 14' % (s(sSEG), s(sSEG)))
    A('s_cmp_lt_u32 %s, 64' % s(sSEG))
    A('s_cbranch_scc1 L_s1loop')

def phase_s2(A):
    U_, Z_, P_, D = 256, 64, 128, 16
    vV, vGF, vPF, vP, vO, vO2 = 4, 5, 6, 7, 8, 9
    A.label('L_s2')
    A('s_sub_u32 %s, %s, 4' % (s(sK), s(sK)))
    A('s_lshl_b32 %s, %s, 1' % (s(sT3), s(sK)))
    A('s_lshr_b32 %s, %s, 1' % (s(sT0), s(sWAVE)))
    A('s_add_u32 %s, %s, %s' % (s(sT3), s(sT3), s(sT0)))
    A('s_cmp_ge_u32 %s, 7' % s(sT3))
    A('s_cbranch_scc1 L_exit')
    A('s_lshl_b32 %s, %s, 12' % (s(sT0), s(sT3)))
    lexpr(A, v(vV), 'v0', [(0, 6, 16)], s(sT0), 'v1')
    A('s_lshl_b32 %s, %s, 4' % (s(sT0), s(sT3)))
    lexpr(A, v(vGF), 'v0', [(0, 4, 112)], s(sT0), 'v1')
    lexpr(A, v(vPF), 'v0', [(0, 4, 4)], FLG_P, 'v1')
    A('s_and_b32 %s, %s, 1' % (s(sT4), s(sWAVE)))
    A('s_lshl_b32 %s, %s, 10' % (s(sT0), s(sT4)))
    lexpr(A, v(vP), 'v0', [(0, 6, 16)], s(sT0), 'v1')
    A('s_mul_i32 %s, %s, %d' % (s(sT0), s(sT4), 4 * 1792))
    A('s_lshl_b32 %s, %s, 7' % (s(sT1), s(sT3)))
    A('s_add_u32 %s, %s, %s' % (s(sT0), s(sT0), s(sT1)))
    A('s_add_u32 %s, %s, 896' % (s(sT0), s(sT0)))
    lexpr(A, v(vO), 'v0', [(2, 2, 8 * 1792), (0, 2, 1792), (4, 2, 16)], s(sT0), 'v1')
    A.label('L_s2loop')
    seg_count(A, s(sCNT))
    A('s_add_u32 %s, %s, %d' % (s(sO3), s(sT1), FLG_Z))
    A('s_add_u32 %s, %s, %d' % (s(sT1), s(sT1), FLG_W2 + 1792))
    wait_flags(A, v(vGF), s(sT1), s(sCNT), 16)
    A('s_mul_i32 %s, %s, %d' % (s(sO1), s(sSEG), 16 * 28672))
    A('s_add_u32 %s, %s, %d' % (s(sO1), s(sO1), U_OFF))
    for c in range(16):
        for tl in range(4):
            A('buffer_load_dwordx4 %s, %s, %s, %s offen offset:%d sc1' % (u(U_ + (c * 4 + tl) * 4, 4), v(vV), s(S_WS, 4), s(sO1), tl * 1024))
        A('s_add_u32 %s, %s, 28672' % (s(sO1), s(sO1)))
        if c == 11: A('s_waitcnt vmcnt(32)')
    wait_flags(A, v(vGF), s(sO3), s(sCNT), 2, coarse=True)
    A('s_mul_i32 %s, %s, %d' % (s(sO1), s(sSEG), HZ_STEP))
    A('s_add_u32 %s, %s, %d' % (s(sO1), s(sO1), HZ_OFF))
    for c in range(4):
        for tl in range(4):
            A('buffer_load_dwordx4 %s, %s, %s, %s offen offset:%d sc1' % (v(Z_ + (c * 4 + tl) * 4, 4), v(vV), s(S_WS, 4), s(sO1), tl * 1024))
        A('s_add_u32 %s, %s, 28672' % (s(sO1), s(sO1)))
    A('s_lshl_b32 %s, %s, 6' % (s(sT0), s(sSEG)))
    A('s_mul_i32 %s, %s, 40960' % (s(sO2), s(sSEG)))
    A('s_add_u32 %s, %s, %d' % (s(sO2), s(sO2), PP_OFF))
    wait_flags(A, v(vPF), s(sT0), '1', 1)
    for c in range(20):
        A('buffer_load_dwordx4 %s, %s, %s, %s offen offset:%d sc1' % (v(P_ + 4 * c, 4), v(vP), s(S_WS, 4), s(sO2), (c & 1) * 2048))
        if c & 1: A('s_add_u32 %s, %s, 4096' % (s(sO2), s(sO2)))
    for c in range(20):
        A('s_waitcnt vmcnt(%d)' % (19 - c))
        for tl in range(4):
            d = v(D + 4 * tl, 4)
            a_ = u(U_ + (c * 4 + tl) * 4, 4) if c < 16 else v(Z_ + ((c - 16) * 4 + tl) * 4, 4)
            A('v_mfma_f32_16x16x32_bf16 %s, %s, %s, %s' % (d, a_, v(P_ + 4 * c, 4), '0' if c == 0 else d))
    A('s_mul_i32 %s, %s, %d' % (s(sO1), s(sSEG), 32 * 1792))
    for b in range(2):
        e, o, pk = D + 8 * b, D + 8 * b + 4, 32 + 4 * b
        for r in range(4): A('v_cvt_pk_bf16_f32 %s, %s, %s' % (v(pk + r), v(e + r), v(o + r)))
        A('buffer_store_dwordx4 %s, %s, %s, %s offen offset:%d' % (v(pk, 4), v(vO), s(S_OUT, 4), s(sO1), 64 * b))
    A('s_add_u32 %s, %s, 14' % (s(sSEG), s(sSEG)))
    A('s_cmp_lt_u32 %s, 64' % s(sSEG))
    A('s_cbranch_scc1 L_s2loop')

LOG2E = 1.4426950408889634
def phase_a1(A):
    ST = 208
    def WQ(x, tl, ks):
        i = ((x * 2 + tl) * 14 + ks) * 4
        return a(i, 4) if i < 256 else v(176 + i - 256, 4)
    def WQh(x, tl, ks, t):
        i = ((x * 2 + tl) * 14 + ks) * 4 + 2 * t
        return a(i, 2) if i < 256 else v(176 + i - 256, 2)
    X_, D, KV, PQ = 120, 16, 64, 80
    T = 104
    vG, vW, vR, vR2, vX = 4, 5, 6, 7, 8
    sBLK, sI = sSEG, sCNT
    A('s_barrier')
    lexpr(A, v(vG), 'v0', [(2, 4, 2688), (0, 2, 16)], 0, 'v1')
    A('s_mul_i32 %s, %s, %d' % (s(sO1), s(sWAVE), 112 * 2688))
    A('s_mul_i32 %s, %s, 56' % (s(sT0), s(sH)))
    A('s_add_u32 %s, %s, %s' % (s(sO1), s(sO1), s(sT0)))
    for j in range(21):
        A('buffer_load_dwordx4 %s, %s, %s, %s offen offset:%d' % (v(16 + 4 * j, 4), v(vG), s(S_AW, 4), s(sO1), (j % 3) * 896))
        if j % 3 == 2: A('s_add_u32 %s, %s, %d' % (s(sO1), s(sO1), 16 * 2688))
    A('s_mul_i32 %s, %s, %d' % (s(sT0), s(sWAVE), 112 * ST))
    lexpr(A, v(vW), 'v0', [(2, 4, ST), (0, 2, 16)], s(sT0), 'v1')
    for j in range(21):
        A('s_waitcnt vmcnt(%d)' % (20 - j))
        A('ds_write_b128 %s, %s offset:%d' % (v(vW), v(16 + 4 * j, 4), (j // 3) * 16 * ST + (j % 3) * 64))
        if j % 6 == 5: A('s_waitcnt lgkmcnt(6)')
    lexpr(A, v(vR), 'v0', [(4, 2, 8 * ST), (2, 2, ST), (0, 2, 16)], 0, 'v1')
    A('v_add_u32 %s, %d, %s' % (v(vR2), 7 * 32 * ST, v(vR)))
    A('s_waitcnt lgkmcnt(0)')
    A('s_barrier')
    n = 0
    for x in range(3):
        for tl in range(2):
            for ks in range(14):
                for t in range(2):
                    A('ds_read_b64_tr_b16 %s, %s offset:%d' % (WQh(x, tl, ks, t), v(vR if ks < 7 else vR2), (32 * (ks % 7) + 4 * t) * ST + x * 64 + tl * 8))
                    n += 1
                    if n % 6 == 0: A('s_waitcnt lgkmcnt(6)')
    lexpr(A, v(vX), 'v0', [(0, 4, 896), (4, 2, 16)], 0, 'v1')
    A('v_add_u32 v9, %d, %s' % (16 * 896, v(vX)))
    for i in range(16): A('v_mov_b32 %s, 0' % v(KV + i))
    A('s_mov_b32 %s, 0x%x' % (s(sSC), f2u(LOG2E)))
    A('s_mov_b32 %s, 0x%x' % (s(sO3), f2u(1e-6)))
    A('v_and_b32 v1, 15, v0')
    A('v_cmp_le_u32 s[96:97], 12, v1')
    A('v_cmp_eq_u32 s[98:99], 12, v1')
    A('v_cmp_le_u32 s[100:101], 48, v0')
    A('s_lshl_b32 %s, %s, 2' % (s(sBLK), s(sQ)))
    A('s_add_u32 %s, %s, %s' % (s(sBLK), s(sBLK), s(sWAVE)))
    A('s_waitcnt lgkmcnt(0)')
    def phi(r):
        A('v_mul_f32 %s, %s, %s' % (v(T), s(sSC), v(r)))
        A('v_exp_f32 %s, %s' % (v(T), v(T)))
        A('v_cmp_lt_f32 vcc, 0, %s' % v(r))
        A('v_add_f32 %s, 1.0, %s' % (v(r), v(r)))
        A('v_cndmask_b32 %s, %s, %s, vcc' % (v(r), v(T), v(r)))
        A('v_add_f32 %s, %s, %s' % (v(r), s(sO3), v(r)))
    def Dk(x, t, tl): return D + (((x - 1) * 2 + tl) * 2 + t) * 4
    def Dq(t, tl): return D + 32 + (t * 2 + tl) * 4
    A('s_mov_b32 %s, 0' % s(sI))
    A.label('L_a1loop')
    A('s_mul_i32 %s, %s, %d' % (s(sO1), s(sBLK), 32 * 896))
    for hf in range(2):
        for k7 in range(7):
            for t in range(2):
                A('buffer_load_dwordx4 %s, %s, %s, %s offen offset:%d' % (v(X_ + (k7 * 2 + t) * 4, 4), v(vX) if t == 0 else 'v9', s(S_AX, 4), s(sO1), (7 * hf + k7) * 64))
        for k7 in range(7):
            ks = 7 * hf + k7
            A('s_waitcnt vmcnt(%d)' % (12 - 2 * k7))
            for t in range(2):
                xf = v(X_ + (k7 * 2 + t) * 4, 4)
                for tl in range(2):
                    for x in (1, 2):
                        d = v(Dk(x, t, tl), 4)
                        A('v_mfma_f32_16x16x32_bf16 %s, %s, %s, %s' % (d, xf, WQ(x, tl, ks), '0' if ks == 0 else d))
                    d = v(Dq(t, tl), 4)
                    A('v_mfma_f32_16x16x32_bf16 %s, %s, %s, %s' % (d, WQ(0, tl, ks), xf, '0' if ks == 0 else d))
        A('s_nop 7')
    for tl in range(2):
        b = Dk(1, 0, tl)
        for i in range(8):
            phi(b + i)
            if tl == 1: A('v_cndmask_b32 %s, %s, 0, s[96:97]' % (v(b + i), v(b + i)))
        for i in range(4): A('v_cvt_pk_bf16_f32 %s, %s, %s' % (v(b + i), v(b + 2 * i), v(b + 2 * i + 1)))
        b = Dk(2, 0, tl)
        if tl == 1:
            for i in range(8):
                A('v_cndmask_b32 %s, %s, 0, s[96:97]' % (v(b + i), v(b + i)))
                A('v_cndmask_b32 %s, %s, 1.0, s[98:99]' % (v(b + i), v(b + i)))
        for i in range(4): A('v_cvt_pk_bf16_f32 %s, %s, %s' % (v(b + i), v(b + 2 * i), v(b + 2 * i + 1)))
    for dt in range(2):
        for et in range(2):
            d = v(KV + (dt * 2 + et) * 4, 4)
            A('v_mfma_f32_16x16x32_bf16 %s, %s, %s, %s' % (d, v(Dk(1, 0, dt), 4), v(Dk(2, 0, et), 4), d))
    for i in range(15, -1, -1): A('v_mov_b32 %s, %s' % (v(PQ + 8 + i), v(PQ + i)))
    for t in range(2):
        b = Dq(t, 0)
        for i in range(8):
            phi(b + i)
            if i >= 4: A('v_cndmask_b32 %s, %s, 0, s[100:101]' % (v(b + i), v(b + i)))
        for i in range(4): A('v_cvt_pk_bf16_f32 %s, %s, %s' % (v(PQ + 4 * t + i), v(b + 2 * i), v(b + 2 * i + 1)))
    A('s_add_u32 %s, %s, 1' % (s(sI), s(sI)))
    A('s_add_u32 %s, %s, 28' % (s(sBLK), s(sBLK)))
    A('s_cmp_lt_u32 %s, 64' % s(sBLK))
    A('s_cbranch_scc1 L_a1loop')
    LK = 98304
    A('s_lshl_b32 %s, %s, 12' % (s(sT0), s(sWAVE)))
    A('s_add_u32 %s, %s, %d' % (s(sT0), s(sT0), LK))
    lexpr(A, v(vW), 'v0', [(0, 6, 16)], s(sT0), 'v1')
    for j in range(4): A('ds_write_b128 %s, %s offset:%d' % (v(vW), v(KV + 4 * j, 4), j * 1024))
    A('s_lshl_b32 %s, %s, 10' % (s(sT0), s(sWAVE)))
    lexpr(A, v(vR), 'v0', [(0, 6, 16)], s(sT0), 'v1')
    A('v_add_u32 %s, %d, %s' % (v(vR2), LK, v(vR)))
    A('s_waitcnt lgkmcnt(0)')
    A('s_barrier')
    for j in range(4): A('ds_read_b128 %s, %s offset:%d' % (v(D + 4 * j, 4), v(vR2), j * 4096))
    A('s_waitcnt lgkmcnt(0)')
    for r in range(4):
        A('v_add_f32 %s, %s, %s' % (v(D + r), v(D + r), v(D + 4 + r)))
        A('v_add_f32 %s, %s, %s' % (v(D + 8 + r), v(D + 8 + r), v(D + 12 + r)))
        A('v_add_f32 %s, %s, %s' % (v(D + r), v(D + r), v(D + 8 + r)))
    A('s_lshl_b32 %s, %s, 12' % (s(sT0), s(sA)))
    A('s_add_u32 %s, %s, %d' % (s(sT0), s(sT0), KVP_OFF))
    A('buffer_store_dwordx4 %s, %s, %s, %s offen sc1' % (v(D, 4), v(vR), s(S_WS, 4), s(sT0)))
    A('s_lshl_b32 %s, %s, 6' % (s(sT0), s(sA)))
    A('s_lshl_b32 %s, %s, 2' % (s(sT1), s(sWAVE)))
    A('s_add_u32 %s, %s, %s' % (s(sT0), s(sT0), s(sT1)))
    A('s_add_u32 %s, %s, %d' % (s(sT0), s(sT0), FLG_KV))
    lane0_addr(A, 'v10', s(sT0))
    A('v_mov_b32 v3, 1')
    A('s_waitcnt vmcnt(0)')
    A('buffer_store_dword v3, v10, %s, 0 offen sc1' % s(S_WS, 4))
    A('v_lshrrev_b32 v1, 2, v0')
    A('v_min_u32 v1, 6, v1')
    A('v_lshlrev_b32 v1, 6, v1')
    A('v_and_b32 v2, 3, v0')
    A('v_lshl_add_u32 v10, v2, 2, v1')
    A('s_mul_i32 %s, %s, %d' % (s(sT0), s(sH), 7 * 64))
    A('s_add_u32 %s, %s, %d' % (s(sT0), s(sT0), FLG_KV))
    wait_flags(A, 'v10', s(sT0), '1', 8)
    lexpr(A, v(vG), 'v0', [(0, 6, 16)], 0, 'v1')
    lexpr(A, v(vW), 'v0', [(4, 2, 256)], 12 * 16, 'v1')
    A('s_mul_i32 %s, %s, %d' % (s(sO1), s(sH), 7 * 4096))
    A('s_add_u32 %s, %s, %d' % (s(sO1), s(sO1), KVP_OFF))
    GB = 104
    def gr(q): return (GB + 24 * q) if q < 6 else D
    for q in range(7):
        for j in range(4):
            A('buffer_load_dwordx4 %s, %s, %s, %s offen offset:%d sc1' % (v(gr(q) + 4 * j, 4), v(vG), s(S_WS, 4), s(sO1), j * 1024))
        for dt in range(2):
            A('buffer_load_dwordx4 %s, %s, %s, %s offen offset:%d sc1' % (v(gr(q) + 16 + 4 * dt, 4), v(vW), s(S_WS, 4), s(sO1), (dt * 2 + 1) * 1024))
        A('s_add_u32 %s, %s, 4096' % (s(sO1), s(sO1)))
    A('s_waitcnt vmcnt(0)')
    for q in range(6):
        for i in range(24): A('v_add_f32 %s, %s, %s' % (v(D + i), v(D + i), v(gr(q) + i)))
    for et in range(2):
        for dt in range(2):
            b = D + (dt * 2 + et) * 4
            A('v_cvt_pk_bf16_f32 %s, %s, %s' % (v(KV + 4 * et + 2 * dt), v(b), v(b + 1)))
            A('v_cvt_pk_bf16_f32 %s, %s, %s' % (v(KV + 4 * et + 2 * dt + 1), v(b + 2), v(b + 3)))
    for i in range(4): A('v_cvt_pk_bf16_f32 %s, %s, %s' % (v(KV + 8 + i), v(D + 16 + 2 * i), v(D + 17 + 2 * i)))
    A('s_lshl_b32 %s, %s, 10' % (s(sT0), s(sH)))
    lexpr(A, v(vR), 'v0', [(0, 6, 16)], s(sT0), 'v1')
    A.label('L_a1o')
    A('s_sub_u32 %s, %s, 28' % (s(sBLK), s(sBLK)))
    A('s_lshl_b32 %s, %s, 15' % (s(sO1), s(sBLK)))
    A('s_add_u32 %s, %s, %d' % (s(sO1), s(sO1), OI_OFF))
    A('s_add_u32 %s, %s, 16384' % (s(sO2), s(sO1)))
    for t in range(2):
        b = D + 12 * t
        for j in range(3):
            A('v_mfma_f32_16x16x32_bf16 %s, %s, %s, 0' % (v(b + 4 * j, 4), v(KV + 4 * j, 4), v(PQ + 4 * t, 4)))
    for t in range(2):
        b = D + 12 * t; o = D + 24 + 4 * t
        A('v_add_f32 %s, %s, %s' % (v(b + 8), s(sO3), v(b + 8)))
        A('v_rcp_f32 %s, %s' % (v(b + 8), v(b + 8)))
        for i in range(8):
            A('v_mul_f32 %s, %s, %s' % (v(b + i), v(b + i), v(b + 8)))
            if i >= 4: A('v_cndmask_b32 %s, %s, 0, s[100:101]' % (v(b + i), v(b + i)))
        for i in range(4): A('v_cvt_pk_bf16_f32 %s, %s, %s' % (v(o + i), v(b + 2 * i), v(b + 2 * i + 1)))
        A('buffer_store_dwordx4 %s, %s, %s, %s offen sc1' % (v(o, 4), v(vR), s(S_WS, 4), s(sO1 + t)))
    for i in range(16): A('v_mov_b32 %s, %s' % (v(PQ + i), v(PQ + 8 + i)))
    A('s_sub_u32 %s, %s, 1' % (s(sI), s(sI)))
    A('s_cmp_lg_u32 %s, 0' % s(sI))
    A('s_cbranch_scc1 L_a1o')
    A('s_lshl_b32 %s, %s, 2' % (s(sT0), s(sA)))
    A('s_add_u32 %s, %s, %s' % (s(sT0), s(sT0), s(sWAVE)))
    A('s_lshl_b32 %s, %s, 2' % (s(sT0), s(sT0)))
    A('s_add_u32 %s, %s, %d' % (s(sT0), s(sT0), FLG_O))
    lane0_addr(A, 'v10', s(sT0))
    A('v_mov_b32 v3, 1')
    A('s_waitcnt vmcnt(0)')
    A('buffer_store_dword v3, v10, %s, 0 offen sc1' % s(S_WS, 4))

def phase_a2(A):
    ST = 144
    O_, D = 64, 16
    vG, vW, vR, vR2, vO = 4, 5, 6, 7, 8
    A('s_barrier')
    lexpr(A, v(vG), 'v0', [(3, 3, 896), (0, 3, 16)], 0, 'v1')
    A('s_mul_i32 %s, %s, %d' % (s(sO1), s(sWAVE), 112 * 896))
    A('s_lshl_b32 %s, %s, 7' % (s(sT0), s(sQ)))
    A('s_add_u32 %s, %s, %s' % (s(sO1), s(sO1), s(sT0)))
    for j in range(15):
        A('buffer_load_dwordx4 %s, %s, %s, %s offen' % (v(64 + 4 * j, 4), v(vG), s(S_AO, 4), s(sO1)))
        A('s_add_u32 %s, %s, %d' % (s(sO1), s(sO1), 8 * 896))
    A('s_mul_i32 %s, %s, %d' % (s(sT0), s(sWAVE), 112 * ST))
    lexpr(A, v(vW), 'v0', [(3, 3, ST), (0, 3, 16)], s(sT0), 'v1')
    for j in range(15):
        A('s_waitcnt vmcnt(%d)' % (14 - j))
        A('ds_write_b128 %s, %s offset:%d' % (v(vW), v(64 + 4 * j, 4), j * 8 * ST))
        if j % 6 == 5: A('s_waitcnt lgkmcnt(6)')
    lexpr(A, v(vR), 'v0', [(4, 2, 8 * ST), (2, 2, ST), (0, 2, 16)], 0, 'v1')
    A('s_waitcnt lgkmcnt(0)')
    A('s_barrier')
    n = 0
    for tl in range(4):
        for hh in range(16):
            for t in range(2):
                A('ds_read_b64_tr_b16 %s, %s offset:%d' % (a((tl * 16 + hh) * 4 + 2 * t, 2), v(vR), (28 * hh + 4 * t) * ST + (tl >> 1) * 64 + (tl & 1) * 8))
                n += 1
                if n % 6 == 0: A('s_waitcnt lgkmcnt(6)')
    A('s_lshl_b32 %s, %s, 2' % (s(sSEG), s(sH)))
    A('s_add_u32 %s, %s, %s' % (s(sSEG), s(sSEG), s(sWAVE)))
    A('s_mov_b32 %s, %s' % (s(sT0), s(sSEG)))
    for _ in range(2):
        A('s_sub_u32 %s, %s, 28' % (s(sT1), s(sT0)))
        A('s_cmp_ge_u32 %s, 28' % s(sT0))
        A('s_cselect_b32 %s, %s, %s' % (s(sT0), s(sT1), s(sT0)))
    A('s_lshl_b32 %s, %s, 2' % (s(sT0), s(sT0)))
    A('s_add_u32 %s, %s, %d' % (s(sT0), s(sT0), FLG_O))
    lexpr(A, 'v10', 'v0', [(0, 4, 7 * 16)], 0, 'v1')
    wait_flags(A, 'v10', s(sT0), '1', 8)
    lexpr(A, v(vG), 'v0', [(0, 6, 16)], 0, 'v1')
    A('s_lshl_b32 %s, %s, 15' % (s(sO1), s(sSEG)))
    A('s_add_u32 %s, %s, %d' % (s(sO1), s(sO1), OI_OFF))
    for i in range(32):
        A('buffer_load_dwordx4 %s, %s, %s, %s offen offset:%d sc1' % (v(O_ + 4 * i, 4), v(vG), s(S_WS, 4), s(sO1), (i & 3) * 1024))
        if i & 3 == 3: A('s_add_u32 %s, %s, 4096' % (s(sO1), s(sO1)))
    A('s_lshl_b32 %s, %s, 7' % (s(sT0), s(sQ)))
    lexpr(A, v(vO), 'v0', [(0, 4, 1792), (4, 2, 16)], s(sT0), 'v1')
    A('s_mul_i32 %s, %s, %d' % (s(sO1), s(sSEG), 32 * 1792))
    A('s_add_u32 %s, %s, %d' % (s(sO2), s(sO1), 16 * 1792))
    A('s_waitcnt lgkmcnt(0)')
    for t in range(2):
        for hh in range(16):
            A('s_waitcnt vmcnt(%d)' % (31 - (t * 16 + hh)))
            for tl in range(4):
                d = v(D + (t * 4 + tl) * 4, 4)
                A('v_mfma_f32_16x16x32_bf16 %s, %s, %s, %s' % (d, a((tl * 16 + hh) * 4, 4), v(O_ + (t * 16 + hh) * 4, 4), '0' if hh == 0 else d))
    for t in range(2):
        for aa in range(2):
            b = D + (t * 4 + 2 * aa) * 4; o = 48 + (t * 2 + aa) * 4
            for i in range(4): A('v_cvt_pk_bf16_f32 %s, %s, %s' % (v(o + i), v(b + 2 * i), v(b + 2 * i + 1)))
            A('buffer_store_dwordx4 %s, %s, %s, %s offen offset:%d' % (v(o, 4), v(vO), s(S_OUT, 4), s(sO1 + t), aa * 64))
```

```python
from common import *
from rec import *
from work import *

def build(stamps=False):
    G.stamps = stamps
    A = Asm()
    entry(A, early_prefetch if PRM['epf'] and not G.dev_nowait else None)
    A('s_cmp_lg_u32 %s, 0' % s(sXCC))
    A('s_cbranch_scc1 %s' % ('L_exit' if G.dev_nowait else 'L_worker'))
    rec_start(A)
    A('s_cmp_ge_u32 %s, 30' % s(sROLE))
    A('s_cbranch_scc1 L_helper')
    A('s_cmp_ge_u32 %s, 16' % s(sROLE))
    A('s_cbranch_scc1 L_value')
    score_role(A)
    value_role(A)
    helper_role(A)
    if not G.dev_nowait:
        worker_entry(A)
        zero_flags(A)
        phase_w1(A)
        phase_w1b(A)
        event(A, 4)
        A('s_cmp_lg_u32 %s, 0' % s(sTY))
        A('s_cbranch_scc1 L_w2B')
        for i in range(PRM['adel']): A('s_sleep 127')
        phase_w2(A, 0)
        event(A, 5)
        phase_a1(A)
        event(A, 6)
        phase_a2(A)
        event(A, 7)
        post_dispatch(A)
        phase_s1(A)
        event(A, 8)
        A('s_branch L_exit')
        phase_s2(A)
        A('s_waitcnt vmcnt(0)')
        diag(A, 11)
        event(A, 8)
        A('s_branch L_exit')
        phase_w2(A, 1)
        event(A, 5)
        phase_z(A)
        event(A, 8)
        A('s_branch L_exit')
        emit_stubs(A)
    A.label('L_exit')
    A('s_endpgm')
    body = A.pad()
    K = NAME + '_kernel'
    txt = HDR + '; @launch grid=(256,1,1) block=(256,1,1) lds=%d\n' % LDS_BYTES
    txt += '.amdgcn_target "amdgcn-amd-amdhsa--gfx950"\n.text\n.globl %s\n.p2align 8\n.type %s,@function\n%s:\n' % (K, K, K)
    txt += body
    txt += '''.section .rodata,"a"
.p2align 6
.amdhsa_kernel %s
  .amdhsa_next_free_vgpr 512
  .amdhsa_next_free_sgpr 102
  .amdhsa_accum_offset 256
  .amdhsa_group_segment_fixed_size 0
  .amdhsa_kernarg_size 104
  .amdhsa_user_sgpr_count 2
  .amdhsa_user_sgpr_kernarg_segment_ptr 1
  .amdhsa_system_sgpr_workgroup_id_x 1
  .amdhsa_float_denorm_mode_32 3
.end_amdhsa_kernel
''' % K
    return txt, A

if __name__ == '__main__':
    out = sys.argv[1] if len(sys.argv) > 1 else 'dev.s'
    for x in sys.argv[2:]:
        if '=' in x: PRM[x.split('=')[0]] = int(x.split('=')[1])
    G.events = 'events' in sys.argv
    G.diag = 'diag' in sys.argv
    G.dev_nowait = 'nowait' in sys.argv
    txt, A = build(stamps=2 if 'acc' in sys.argv else (1 if 'stamps' in sys.argv else 0))
    if G.events: txt = '; ' + ' '.join(sys.argv[2:]) + '\n' + txt
    open(out, 'w').write(txt)
    print('wrote', out, 'instrs', len(A.ins), 'pads', A.npad)
```

```python
import sys
from asmgen import *
from layout import *

NAME = 'concat_heads__linear_attn_block__memory_aug_recurrent_mem_tr__prompt'
HDR = open('cdna_kernels/%s.s.ref' % NAME).read().split('; Override launch')[0]

S_WS, S_BX, S_M0, S_DBG, S_OUT = 8, 12, 16, 20, 24
S_WQ, S_WK, S_WV, S_WO, S_AX, S_AW, S_AO = 28, 32, 36, 40, 44, 48, 52
sWAVE, sXCC, sROLE, sSTEP, sSPIN = 60, 61, 62, 63, 64
sT0, sT1, sT2, sT3, sT4, sT5 = 65, 66, 67, 68, 69, 70
sMEMRD, sPWR, sPRST, sXOFF, sPRD, sMEMWR, sMEMRST, sUOFF, sHM, sHZ, sXPF = 71, 72, 73, 74, 75, 76, 77, 78, 79, 80, 81
sHMRD, sHPRD, sHWR, sSTEP1 = 82, 83, 84, 85
sXLDS, sBTOG2 = 86, 87

L_MEM = 0
L_YT = 8192
L_SP = 16384
L_OP = 16384
L_DUMP = 20480
L_TICKET = 163832
LDS_BYTES = 160 * 1024

SPIN_MAX = 4000000
PRM_S = dict(wfl='')
PRM = dict(plt=3, xg=0, adel=0, lws=16, epf=0, wsp=4, wrot=2, xm=0, xm1=8, ht=10, sb=6, vf=11, xb=1, vh=12, fine=61, lb=6, w0=2, w1=9, direct=0, ko=3, msc=1, c0=3, cg=3, hn=15, nb1=6, uev=1, f0b=1, vdel=5, sdel=0, pdel=0, hs=99, hd=3, hv0=0, nrep=4, k1=4, k2=10, pla=10, pnu=0, zs=12)

def srd(A, d, ptr_s, nbytes):
    A('s_mov_b32 %s, %s' % (s(d), s(ptr_s)))
    A('s_and_b32 %s, %s, 0xffff' % (s(d + 1), s(ptr_s + 1)))
    A('s_mov_b32 %s, %d' % (s(d + 2), nbytes))
    A('s_mov_b32 %s, 0x00020000' % s(d + 3))

def entry(A, early=None):
    A('s_cmp_ge_u32 s2, 256')
    A('s_cbranch_scc1 L_exit')
    if G.events: A('s_memrealtime s[56:57]')
    A('s_load_dwordx16 s[64:79], s[0:1], 0')
    A('s_load_dwordx8 s[80:87], s[0:1], 64')
    A('s_load_dwordx2 s[88:89], s[0:1], 96')
    A('v_lshrrev_b32 v1, 6, v0')
    A('v_and_b32 v0, 63, v0')
    A('s_getreg_b32 %s, hwreg(HW_REG_XCC_ID)' % s(sXCC))
    A('v_readfirstlane_b32 %s, v1' % s(sWAVE))
    A('s_and_b32 %s, %s, 7' % (s(sXCC), s(sXCC)))
    A('s_waitcnt lgkmcnt(0)')
    srd(A, S_AX, 64, 1835008)
    srd(A, S_AW, 66, 448 * 1344 * 2)
    srd(A, S_AO, 68, 448 * 448 * 2)
    srd(A, S_BX, 70, 1835008)
    srd(A, S_M0, 72, 7168)
    srd(A, S_WQ, 74, 3670016)
    srd(A, S_WK, 76, 3670016)
    srd(A, S_WV, 78, 3670016)
    srd(A, S_WO, 80, 3670016)
    srd(A, S_OUT, 84, 2048 * 896 * 2)
    srd(A, S_DBG, 86, 256)
    srd(A, S_WS, 88, WS_BYTES)
    A('v_mov_b32 v2, %d' % L_TICKET)
    A('s_cmp_lg_u32 %s, 0' % s(sWAVE))
    A('s_cbranch_scc1 L_tk_wait')
    A('s_lshr_b32 %s, %s, 1' % (s(sT0), s(sXCC)))
    A('s_lshl_b32 %s, %s, 6' % (s(sT0), s(sT0)))
    A('s_and_b32 %s, %s, 1' % (s(sT1), s(sXCC)))
    A('s_lshl_b32 %s, %s, 2' % (s(sT1), s(sT1)))
    A('s_add_u32 %s, %s, %s' % (s(sT0), s(sT0), s(sT1)))
    A('v_mov_b32 v3, %s' % s(sT0))
    A('v_mov_b32 v4, 1')
    A('s_mov_b64 exec, 1')
    A('buffer_atomic_add v4, v3, %s, 0 offen sc0' % s(S_DBG, 4))
    A('s_mov_b64 exec, -1')
    A.label('L_tk_wait')
    if early: early(A)
    A('s_cmp_lg_u32 %s, 0' % s(sWAVE))
    A('s_cbranch_scc1 L_tk_wait2')
    A('s_cmp_eq_u32 %s, 0' % s(sXCC))
    A('s_cbranch_scc0 L_tk_w3')
    A('s_waitcnt vmcnt(0)')
    A.label('L_tk_w3')
    A('s_waitcnt vmcnt(%d)' % (2 if early else 0))
    A('s_mov_b64 exec, 1')
    A('ds_write_b32 v2, v4')
    A('s_mov_b64 exec, -1')
    A('s_waitcnt lgkmcnt(0)')
    A.label('L_tk_wait2')
    A('s_barrier')
    A('ds_read_b32 v3, v2')
    A('s_waitcnt lgkmcnt(0)')
    A('v_readfirstlane_b32 %s, v3' % s(sROLE))
    A('s_cmp_ge_u32 %s, 32' % s(sROLE))
    A('s_cbranch_scc1 L_exit')
    if G.events:
        event(A, 1)
        A('v_mov_b32 v1, s56')
        A('s_sub_u32 s6, s6, 4')
        A('s_mov_b64 exec, 1')
        A('buffer_store_dword v1, v2, %s, s6 offen' % s(S_WS, 4))
        A('s_mov_b64 exec, -1')

STUBS = []
def spin_check(A, lbl_loop, pre=()):
    st = A.newlabel('L_retry')
    A('s_cbranch_vccnz %s' % st)
    STUBS.append((st, lbl_loop, list(pre)))
def emit_stubs(A):
    for st, l, pre in STUBS:
        A.label(st)
        for x in pre: A(x)
        A('s_sub_u32 %s, %s, 1' % (s(sSPIN), s(sSPIN)))
        A('s_cbranch_scc0 %s' % l)
        A('s_branch L_exit')
    del STUBS[:]

def lexpr(A, dst, lane, terms, base=0, tmp=None):
    A('v_mov_b32 %s, %s' % (dst, base))
    for lo, n, mul in terms:
        A('v_bfe_u32 %s, %s, %d, %d' % (tmp, lane, lo, n))
        if mul & (mul - 1) == 0:
            A('v_lshl_add_u32 %s, %s, %d, %s' % (dst, tmp, mul.bit_length() - 1, dst))
        else:
            A('v_mul_u32_u24 %s, %d, %s' % (tmp, mul, tmp))
            A('v_add_u32 %s, %s, %s' % (dst, dst, tmp))

class G: pass
G.stamps = False
G.dev_nowait = False
G.events = False
def event(A, idx, t0='v1', t1='v2', dyn=None):
    if not G.events: return
    A('s_memrealtime s[4:5]')
    A('s_lshl_b32 s6, %s, 5' % s(sXCC))
    A('s_add_u32 s6, s6, %s' % s(sROLE))
    A('s_lshl_b32 s6, s6, 2')
    A('s_add_u32 s6, s6, %s' % s(sWAVE))
    A('s_lshl_b32 s6, s6, 6')
    A('s_add_u32 s6, s6, %d' % (EVT + idx * 4))
    if dyn:
        A('s_add_u32 s6, s6, %s' % dyn); A('s_add_u32 %s, %s, 4' % (dyn, dyn))
    A('v_mov_b32 %s, 0' % t1)
    A('s_waitcnt lgkmcnt(0)')
    A('v_mov_b32 %s, s4' % t0)
    A('s_mov_b64 exec, 1')
    A('buffer_store_dword %s, %s, %s, s6 offen' % (t0, t1, s(S_WS, 4)))
    A('s_mov_b64 exec, -1')

def levent(A, idx):
    if G.events: A('s_memrealtime %s' % s(84 + 2 * idx, 2))
def levent_flush(A, n, base):
    if not G.events: return
    A('s_waitcnt lgkmcnt(0)')
    for i in range(n):
        event(A, base + i)
        A('v_mov_b32 v1, %s' % s(84 + 2 * i))
        A('s_mov_b64 exec, 1')
        A('buffer_store_dword v1, v2, %s, s6 offen' % s(S_WS, 4))
        A('s_mov_b64 exec, -1')

def event_spin(A, idx, t0='v1', t1='v2'):
    if not G.events: return
    event(A, idx, t0, t1)
    A('v_mov_b32 %s, %s' % (t0, s(sSPIN)))
    A('s_mov_b64 exec, 1')
    A('buffer_store_dword %s, %s, %s, s6 offen' % (t0, t1, s(S_WS, 4)))
    A('s_mov_b64 exec, -1')
```

```python
from common import *

sSLOT, sSLOTP, sSLOTN, sUOK = sMEMRD, sPWR, sMEMWR, sHZ
vIDX = 60
vK = 61
vT = 68
vLANE = 255
MF = 32
SACC = 4
AF0 = 0
vYW, vTRL, vB, vX, vPST, vPSM, HV, HA = 70, 71, 72, 73, 74, 75, 76, 77
SD = 80
XB = 92
AF1 = 116
L_XS = 32768
vL16, vVW, vVR, vMST, vLW, VHV, VHA, vHM_, vHP_, vHIST = 70, 71, 72, 73, 74, 75, 76, 77, 78, 79
VR = 80
vUS = 69
ZB = 84
UB = 92
LB = 124
L_VB = 114688
L_WL = 32768

class Role:
    pass
SC = Role(); SC.nt = 7; SC.acc = SACC
VA = Role(); VA.nt = 8; VA.acc = 0
def sc_w(r, k):
    t = r * 7 + k
    return (256 + t * 8) if t < 32 else (120 + (t - 32) * 8)
SC.w = sc_w
VLDS = [(r, 6) for r in range(8)] + [(2, 4), (5, 4)]
VREG = [(r, k) for r in range(8) for k in range(7) if (r, k) not in VLDS]
def va_w(r, k):
    if (r, k) in VLDS: return None
    t = VREG.index((r, k))
    return (256 + t * 8) if t < 32 else (144 + (t - 32) * 8)
VA.w = va_w

def smf(d, aa, bb, k32=False):
    return 'v_smfmac_f32_16x16x%d_bf16 %s, %s, %s, %s' % (32 if k32 else 64, d, aa, bb, v(vIDX))

sTMB = 28
sSTB = 92
def stamp(A, idx):
    if not G.stamps: return
    A('s_memtime %s' % s(sTMB + 2 * idx, 2))
    if idx == 0: A('s_memrealtime %s' % s(sTMB + 2 * 10, 2))
def stamp_flush(A, n):
    if not G.stamps: return
    A('s_waitcnt lgkmcnt(0)')
    A('s_lshl_b32 %s, %s, 6' % (s(sT5), s(sSTEP)))
    A('s_add_u32 %s, %s, %s' % (s(sT5), s(sT5), s(sSTB)))
    A('v_mbcnt_lo_u32_b32 %s, -1, 0' % v(vT + 1))
    A('v_lshlrev_b32 %s, 2, %s' % (v(vT + 1), v(vT + 1)))
    for i in range(n):
        A('v_writelane_b32 %s, %s, %d' % (v(vT), s(sTMB + 2 * i), i))
    A('v_writelane_b32 %s, %s, 11' % (v(vT), s(sSPIN)))
    A('s_mov_b64 exec, 0xffff')
    A('buffer_store_dword %s, %s, %s, %s offen' % (v(vT), v(vT + 1), s(S_WS, 4), s(sT5)))
    A('s_mov_b64 exec, -1')
def stamp_setup(A):
    if not G.stamps: return
    A('s_lshl_b32 %s, %s, 2' % (s(sT0), s(sROLE)))
    A('s_add_u32 %s, %s, %s' % (s(sT0), s(sT0), s(sWAVE)))
    A('s_lshl_b32 %s, %s, 12' % (s(sT0), s(sT0)))
    A('s_add_u32 %s, %s, %d' % (s(sSTB), s(sT0), STAMPS))

def hint_wait(A, soff, sval, pw, delay, nent, areg=None, other=None):
    l = A.newlabel('L_hint'); e = A.newlabel('L_hint_done')
    D = PRM['hd']
    A('s_cmp_lg_u32 %s, %d' % (s(sWAVE), pw))
    A('s_cbranch_scc1 %s' % e)
    if areg is None:
        areg = vT + 1
        A('v_mbcnt_lo_u32_b32 %s, -1, 0' % v(vT + 1))
        A('v_mbcnt_hi_u32_b32 %s, -1, %s' % (v(vT + 1), v(vT + 1)))
        A('v_min_u32 %s, %d, %s' % (v(vT + 1), nent - 1, v(vT + 1)))
        A('v_lshlrev_b32 %s, 2, %s' % (v(vT + 1), v(vT + 1)))
    ld = 'buffer_load_dword %s, %s, %s, %s offen sc1' % (v(vT), v(areg), s(S_WS, 4), s(soff))
    if PRM['hv0']: A('s_waitcnt vmcnt(0)')
    for i in range(D - 1):
        A(ld); A('s_nop %d' % PRM['hn'])
    A.label(l)
    A(ld)
    A('s_waitcnt vmcnt(%d)' % (D - 1))
    A('v_cmp_gt_u32 vcc, %s, %s' % (s(sval), v(vT)))
    spin_check(A, l)
    for i in range(delay): A('s_nop 3')
    A.label(e)
    A('s_barrier')

def hint_send(A, t0, t1):
    A('buffer_store_dword %s, %s, %s, %s offen' % (v(t0), v(t1), s(S_WS, 4), s(sHWR)))
def hint_setup(A, t0, t1, allw):
    nrep = PRM['nrep']
    A('v_lshlrev_b32 v1, 8, %s' % v(vLANE))
    A('v_mov_b32 v2, %d' % OOB)
    A('s_cmp_eq_u32 %s, %d' % (s(sWAVE), 0 if allw else 3))
    A('s_cselect_b32 %s, %d, 0' % (s(sT0), nrep))
    A('v_cmp_gt_u32 vcc, %s, %s' % (s(sT0), v(vLANE)))
    A('v_cndmask_b32 %s, v2, v1, vcc' % v(t1))
    A('v_mov_b32 %s, 0' % v(t0))
    hint_send(A, t0, t1)

def dbg_arrive(A, idx):
    A('s_waitcnt vmcnt(0) lgkmcnt(0)')
    A('s_barrier')
    l = A.newlabel('L_gb')
    A('s_cmp_lg_u32 %s, 0' % s(sWAVE))
    A('s_cbranch_scc1 %s' % l)
    A('v_mov_b32 v1, %d' % (idx * 4))
    A('v_mov_b32 v2, 1')
    A('s_mov_b64 exec, 1')
    A('buffer_atomic_add v2, v1, %s, 0 offen' % s(S_DBG, 4))
    A('s_mov_b64 exec, -1')
    A.label(l)

def group_wait(A):
    l = A.newlabel('L_gw')
    A('v_mov_b32 %s, %d' % (v(vT), D_GRP * 4))
    A.label(l)
    A('buffer_load_dword %s, %s, %s, 0 offen sc1' % (v(vT + 1), v(vT), s(S_DBG, 4)))
    A('s_waitcnt vmcnt(0)')
    A('v_cmp_gt_u32 vcc, 32, %s' % v(vT + 1))
    spin_check(A, l, ['s_sleep 1'])

def wait_init(A, idx=D_INIT, lane=None):
    l = A.newlabel('L_wi')
    lexpr(A, 'v2', lane or v(vLANE), [(0, 2, 64)], idx * 4, 'v3')
    A.label(l)
    A('buffer_load_dword v3, v2, %s, 0 offen sc1' % s(S_DBG, 4))
    A('s_waitcnt vmcnt(0)')
    A('v_cmp_gt_u32 vcc, 56, v3')
    spin_check(A, l, ['s_sleep 16'])

def check4(A, r, lbl, pre):
    t0 = v(vT)
    A('v_max3_u32 %s, %s, %s, %s' % (t0, v(r), v(r + 1), v(r + 2)))
    A('v_max_u32 %s, %s, %s' % (t0, t0, v(r + 3)))
    A('v_cmp_eq_u32 vcc, -1, %s' % t0)
    spin_check(A, lbl, pre)

sROT = 87
def rot(A, k):
    A('s_add_u32 %s, %s, %d' % (s(sT1), s(sT0), k))
    A('s_sub_u32 %s, %s, 7' % (s(sT2), s(sT1)))
    A('s_cmp_ge_u32 %s, 7' % s(sT1))
    A('s_cselect_b32 %s, %s, %s' % (s(sT1), s(sT2), s(sT1)))

def rec_start(A):
    A('v_mov_b32 %s, v0' % v(vLANE))
    A('s_mov_b32 %s, %d' % (s(sSPIN), SPIN_MAX))
    A('s_and_b32 %s, %s, %d' % (s(sT0), s(sROLE), PRM['nrep'] - 1))
    A('s_lshl_b32 %s, %s, 8' % (s(sHMRD), s(sT0)))
    A('s_add_u32 %s, %s, %d' % (s(sHPRD), s(sHMRD), HINT_P))
    A('s_add_u32 %s, %s, %d' % (s(sHMRD), s(sHMRD), HINT_M))
    A('v_and_b32 v1, 2, v0')
    A('v_cmp_eq_u32 vcc, 0, v1')
    A('v_mov_b32 v2, 0xeeeeeeee')
    A('v_mov_b32 v3, 0x44444444')
    A('v_cndmask_b32 %s, v2, v3, vcc' % v(vIDX))
    A('v_lshlrev_b32 v1, 4, v0')
    A('s_sub_u32 %s, %s, 16' % (s(sT1), s(sROLE)))
    A('s_lshr_b32 %s, %s, 1' % (s(sT1), s(sT1)))
    A('s_cmp_lt_u32 %s, 16' % s(sROLE))
    A('s_cselect_b32 %s, 0, %s' % (s(sT1), s(sT1)))
    A('s_lshl_b32 %s, %s, 1' % (s(sT0), s(sWAVE)))
    A('s_add_u32 %s, %s, %s' % (s(sT0), s(sT0), s(sT1)))
    rot(A, 0)
    A('s_mov_b32 %s, %s' % (s(sROT), s(sT1)))
    A('s_mov_b32 %s, %s' % (s(sT0), s(sT1)))
    for k in range(7):
        rot(A, k)
        A('s_lshl_b32 %s, %s, 10' % (s(sT1), s(sT1)))
        A('v_add_u32 %s, %s, v1' % (v(vK + k), s(sT1)))
    stamp_setup(A)

def load_weights(A, R, cstride):
    tag = 'S' if R is SC else 'V'
    A('s_mul_i32 %s, %s, %d' % (s(sT0), s(sWAVE), R.nt * 1024))
    if not G.dev_nowait:
        A('v_mov_b32 %s, v8' % v(vT))
        wait_init(A)
        A('v_mov_b32 v3, %s' % v(vT))
    lexpr(A, 'v1', v(vLANE), [(0, 6, 16)], s(sT0), 'v2')
    A('v_add_u32 v2, 4096, v1')
    SB_ = 28
    A('s_mov_b32 %s, %s' % (s(sT0), s(sROT)))
    for k in range(7):
        rot(A, k)
        A('s_mul_i32 %s, %s, %d' % (s(sT1), s(sT1), 2 * cstride))
        A('s_add_u32 %s, %s, %s' % (s(SB_ + 2 * k), s(sT1), s(sT3)))
        A('s_add_u32 %s, %s, %d' % (s(SB_ + 2 * k + 1), s(SB_ + 2 * k), cstride))
    A('s_mov_b32 %s, %d' % (s(sT0), FLG_W1))
    pl = 'buffer_load_dword %s, v3, %s, %s offen sc1' % (v(vT), s(S_WS, 4), s(sT0))
    for w in range(1, 4):
        A('s_cmp_eq_u32 %s, %d' % (s(sWAVE), w))
        A('s_cbranch_scc1 L_lw%s%d' % (tag, w))
    for w in range(4):
        A.label('L_lw%s%d' % (tag, w))
        st = [[], [], [], []]
        for k in range(7):
            for hi in range(2):
                for r in range(R.nt):
                    q = ((7 * w + r) >> 2) if R is SC else 0
                    c = (2 * ((k + 2 * w) % 7) + hi - 2 * q) % 14
                    st[c >> 2].append((r, k, hi))
        n = 0; since = None
        for i in range(4):
            if not G.dev_nowait:
                l = A.newlabel('L_lwp')
                if since is None: A(pl); since = 0
                A('s_waitcnt vmcnt(%d)' % since)
                A.label(l)
                A('v_cmp_gt_u32 vcc, %d, %s' % (i + 1, v(vT)))
                spin_check(A, l, ['s_sleep %d' % PRM['lws'], pl, 's_waitcnt vmcnt(0)'])
                if i == 0: event(A, 4, 'v0', v(vT + 1))
            for j, (r, k, hi) in enumerate(st[i]):
                if j == len(st[i]) // 2 and i < 3 and not G.dev_nowait: A(pl); since = 0
                wv = R.w(r, k)
                dst = v(ldstmp(VLDS.index((r, k))) + 4 * hi, 4) if wv is None else u(wv + 4 * hi, 4)
                A('buffer_load_dwordx4 %s, %s, %s, %s offen offset:%d sc1' % (dst, 'v1' if r < 4 else 'v2', s(S_WS, 4), s(SB_ + 2 * k + hi), (r & 3) * 1024))
                if since is not None: since += 1
                n += 1
                if G.dev_nowait and n % 16 == 0: A('s_waitcnt vmcnt(40)')
        if w < 3: A('s_branch L_lw%sE' % tag)
    A.label('L_lw%sE' % tag)
    A('s_waitcnt vmcnt(0)')
    if R is VA:
        for i in range(10):
            for hi in range(2):
                A('ds_write_b128 %s, %s offset:%d' % (v(vLW), v(ldstmp(i) + 4 * hi, 4), (2 * i + hi) * 1024))
            if i % 3 == 2: A('s_waitcnt lgkmcnt(4)')
        A('s_waitcnt lgkmcnt(0)')
def ldstmp(i): return (4 + 8 * i) if i < 7 else (UB + 8 * (i - 7))

def zero_regs(b, n): return ['v_mov_b32 %s, 0' % v(b + i) for i in range(n)]

def main_phase(A, R, pw, delay, post, vm, every, extra, epi, pre_ds=0):
    NT, AC = R.nt, R.acc
    hint_wait(A, sHMRD, sSTEP1, pw, delay, 22, vHM_ if R is VA else None)
    stamp(A, 1)
    ld = ['buffer_load_dwordx4 %s, %s, %s, %s offen sc1' % (v(MF + 4 * k, 4), v(vK + k), s(S_WS, 4), s(sSLOT)) for k in range(2)]
    A(ld[0])
    if PRM['f0b']: A('s_barrier')
    A(ld[1])
    for x in post: A(x)
    nst = len([x for x in post if x.startswith('buffer_')])
    A('s_waitcnt vmcnt(%d)' % (nst + 1))
    l0 = A.newlabel('L_pm0'); A.label(l0)
    check4(A, MF, l0, [ld[0], 's_waitcnt vmcnt(0)'])
    stamp(A, 2)
    A('ds_write_b128 %s, %s offset:%d' % (v(vK), v(MF, 4), L_MEM))
    vm = list(vm); cnt = [0]
    def vmtick():
        cnt[0] += 1
        if vm and cnt[0] % every == 0:
            for x in vm.pop(0): A(x)
    k1, k2 = PRM['k1'], PRM['k2']
    kseq = [(r, 0) for r in range(NT)] + [(r, 1) for r in range(NT)]
    rd = [2, 3, 4, 5, 6]
    for i, (r, k) in enumerate(kseq):
        A(smf(v(AC + 4 * r, 4), v(MF + 4 * k, 4), u(R.w(r, k), 8)))
        if i == k1 - 1:
            A('s_waitcnt vmcnt(%d)' % nst)
            l1 = A.newlabel('L_pm1'); A.label(l1)
            check4(A, MF + 4, l1, [ld[1], 's_waitcnt vmcnt(0)'])
            A('ds_write_b128 %s, %s offset:%d' % (v(vK + 1), v(MF + 4, 4), L_MEM))
        elif i >= k1 and i < k2 - 1: vmtick()
        if i == k2 - 1:
            A('s_waitcnt lgkmcnt(0)')
            A('s_barrier')
            stamp(A, 3)
        if i >= k2 - 1:
            for _ in range(2 if len(kseq) - i > 2 else 5):
                if rd:
                    kk = rd.pop(0); A('ds_read_b128 %s, %s offset:%d' % (v(MF + 4 * kk, 4), v(vK + kk), L_MEM))
    assert not rd
    q = []
    i = 0
    for r in range(NT):
        for k in range(2, 7):
            if r == 0: A('s_waitcnt lgkmcnt(%d)' % (6 - k))
            w = R.w(r, k)
            if w is None:
                iv = VORD.index((r, k))
                w = LB + 8 * (iv & 1)
                A('s_waitcnt lgkmcnt(%d)' % (2 if 1 <= iv <= 8 else 0))
            A(smf(v(AC + 4 * r, 4), v(MF + 4 * k, 4), u(w, 8)))
            if k == 3 and r > 0: q += epi(r - 1)
            if q: A(q.pop(0))
            for x in extra.get(i, []): A(x)
            vmtick()
            i += 1
    stamp(A, 4)
    for x in q: A(x)
    assert not vm, len(vm)
VORD = sorted(VLDS)

def main_direct(A, extra, epi):
    R = SC; AC = R.acc; KO = PRM['ko']
    hint_wait(A, sHMRD, sSTEP1, 0, PRM['sdel'], 22)
    stamp(A, 1)
    def ld(k, sc): return 'buffer_load_dwordx4 %s, %s, %s, %s offen%s' % (v(MF + 4 * k, 4), v(vK + k), s(S_WS, 4), s(sSLOT), ' sc1' if sc else '')
    for k in range(7):
        A(ld(k, PRM['msc']))
        if k < PRM['lb']: A('s_barrier')
    l = A.newlabel('L_pm'); A.label(l)
    t0 = v(vT)
    ck = []
    for k in range(7):
        r = MF + 4 * k
        if k == 0: ck += [(k, 'v_max3_u32 %s, %s, %s, %s' % (t0, v(r), v(r + 1), v(r + 2))), (k, 'v_max_u32 %s, %s, %s' % (t0, t0, v(r + 3)))]
        else: ck += [(k, 'v_max3_u32 %s, %s, %s, %s' % (t0, t0, v(r), v(r + 1))), (k, 'v_max3_u32 %s, %s, %s, %s' % (t0, t0, v(r + 2), v(r + 3)))]
    seq = [(r, k) for k in range(KO) for r in range(7)]
    have = -1
    def need(k):
        nonlocal have
        if k > have:
            A('s_waitcnt vmcnt(%d)' % (6 - k)); have = k
    first = len(seq) - 1 - len(ck)
    for i, (r, k) in enumerate(seq):
        need(k)
        if i == 0: stamp(A, 2)
        A(smf(v(AC + 4 * r, 4), v(MF + 4 * k, 4), u(R.w(r, k), 8)))
        if i >= first and ck:
            kk, x = ck.pop(0); need(kk); A(x)
        if i == PRM['w0']: A('ds_write_b128 %s, %s offset:%d' % (v(vK), v(MF, 4), L_MEM))
        if i == PRM['w1']: A('ds_write_b128 %s, %s offset:%d' % (v(vK + 1), v(MF + 4, 4), L_MEM))
    assert not ck
    A('v_cmp_eq_u32 vcc, -1, %s' % t0)
    spin_check(A, l, [ld(k, True) for k in range(7)] + zero_regs(AC, 28))
    stamp(A, 3)
    q = []; i = 0
    NK = 7 - KO
    for r in range(7):
        for k in range(KO, 7):
            A(smf(v(AC + 4 * r, 4), v(MF + 4 * k, 4), u(R.w(r, k), 8)))
            if k == KO + 1 and r > 0: q += epi(r - 1)
            if q:
                x = q.pop(0); A(x)
                if q and q[0].startswith('ds_') and NK < 5: A(q.pop(0))
            for x in extra.get((r, k - KO), []): A(x)
            i += 1
    stamp(A, 4)
    for x in q: A(x)

def sc_epi(r):
    c = SACC + 4 * r
    return ['v_add_f32 %s, %s, %s' % (v(c), v(c), v(c + 2)),
            'v_add_f32 %s, %s, %s' % (v(c + 1), v(c + 1), v(c + 3)),
            'v_cvt_pk_bf16_f32 %s, %s, %s' % (v(c), v(c), v(c + 1)),
            'ds_write_b32 %s, %s offset:%d' % (v(vYW), v(c), r * 256)]

sXL = 86
def xdma(A, fill=()):
    fill = list(fill)
    for k in range(7):
        if k in (0, 4): A('s_add_u32 m0, %s, %d' % (s(sXL), k * 1024))
        A('buffer_load_dwordx4 %s, %s, %s offen offset:%d sc1 lds' % (v(vX), s(S_WS, 4), s(sXOFF if k < 4 else sXPF), (k & 3) * 1024))
        for x in fill[:6]: A(x)
        fill = fill[6:]
    for x in fill: A(x)

def score_role(A):
    A.label('L_score')
    L = v(vLANE)
    A('s_mul_i32 %s, %s, 1792' % (s(sT0), s(sWAVE)))
    A('s_add_u32 %s, %s, %d' % (s(sT0), s(sT0), L_YT))
    lexpr(A, v(vYW), L, [(2, 2, 64), (0, 1, 32), (4, 2, 8), (1, 1, 4)], s(sT0), 'v1')
    lexpr(A, v(vTRL), L, [(4, 2, 1792), (0, 4, 8)], L_YT, 'v1')
    lexpr(A, v(vB), L, [(5, 1, 1792), (4, 1, 32), (0, 2, 64), (3, 1, 16)], L_MEM, 'v1')
    lexpr(A, v(vX), L, [(0, 6, 16)], 0, 'v1')
    A('s_lshl_b32 %s, %s, 9' % (s(sT0), s(sROLE)))
    A('s_lshl_b32 %s, %s, 4' % (s(sT2), s(sWAVE)))
    A('s_add_u32 %s, %s, %s' % (s(sT0), s(sT0), s(sT2)))
    lexpr(A, v(vPST), L, [(3, 1, 256), (4, 2, 64), (2, 1, 32), (0, 2, 4)], s(sT0), 'v1')
    A('s_lshr_b32 %s, %s, 2' % (s(sT0), s(sROLE)))
    A('s_lshl_b32 %s, %s, 9' % (s(sT0), s(sT0)))
    A('s_add_u32 %s, %s, %s' % (s(sT0), s(sT0), s(sT2)))
    A('s_and_b32 %s, %s, 1' % (s(sT1), s(sROLE)))
    A('s_lshl_b32 %s, %s, 5' % (s(sT1), s(sT1)))
    A('s_add_u32 %s, %s, %s' % (s(sT0), s(sT0), s(sT1)))
    A('s_and_b32 %s, %s, 2' % (s(sT1), s(sROLE)))
    A('s_lshl_b32 %s, %s, 1' % (s(sT1), s(sT1)))
    A('s_add_u32 %s, %s, %s' % (s(sT0), s(sT0), s(sT1)))
    A('s_add_u32 %s, %s, 8192' % (s(sT0), s(sT0)))
    lexpr(A, 'v3', L, [(1, 1, 256), (0, 1, 8), (4, 2, 64)], s(sT0), 'v1')
    A('v_and_b32 v4, 12, %s' % L)
    A('v_mov_b32 v2, %d' % OOB)
    A('v_cmp_eq_u32 vcc, 0, v4')
    A('v_cndmask_b32 %s, v2, v3, vcc' % v(vPSM))
    A('s_lshl_b32 %s, %s, 2' % (s(sHWR), s(sROLE)))
    A('s_add_u32 %s, %s, %d' % (s(sHWR), s(sHWR), HINT_P))
    hint_setup(A, HV, HA, PRM['hs'] != 99)
    dbg_arrive(A, D_GRP)
    A('s_mul_i32 %s, %s, 7' % (s(sT1), s(sWAVE)))
    A('v_lshrrev_b32 v8, 2, %s' % L)
    A('v_min_u32 v8, 2, v8')
    A('v_mul_u32_u24 v8, 3, v8')
    A('v_add_u32 v8, %s, v8' % s(sT1))
    A('v_lshrrev_b32 v8, 2, v8')
    A('s_mul_i32 %s, %s, 7' % (s(sT0), s(sROLE)))
    A('v_add_u32 v8, %s, v8' % s(sT0))
    A('v_lshlrev_b32 v8, 6, v8')
    A('v_and_b32 v9, 3, %s' % L)
    A('v_lshl_add_u32 v8, v9, 2, v8')
    event(A, 3)
    A('s_mul_i32 %s, %s, %d' % (s(sT3), s(sROLE), WCU))
    load_weights(A, SC, 28672)
    event(A, 5)
    group_wait(A)
    event(A, 6, v(vT), v(vT + 1))
    event_spin(A, 13, v(vT), v(vT + 1))
    A('s_mov_b32 %s, 0' % s(sSTEP))
    A('s_mov_b32 %s, %d' % (s(sSLOT), MB_OFF))
    A('s_mul_i32 %s, %s, 7168' % (s(sT0), s(sWAVE)))
    A('s_add_u32 %s, %s, %d' % (s(sXOFF), s(sT0), XF_OFF))
    A('s_add_u32 %s, %s, 4096' % (s(sXPF), s(sXOFF)))
    A('s_add_u32 %s, %s, %d' % (s(sXL), s(sT0), L_XS))
    AC = SACC
    if PRM['xm']:
        xdma(A)
        A('v_mov_b32 v78, %s' % v(vX))
        A('s_mov_b32 %s, %d' % (s(sXOFF), XF_OFF))
        A('s_mov_b32 %s, %d' % (s(sXL), L_XS))
        A('v_xor_b32 %s, 0x8000, %s' % (v(vX), v(vX)))
    A.label('L_score_loop')
    if PRM['xm']:
        for x in zero_regs(AC, 28) + zero_regs(SD, 12): A(x)
        A('v_xor_b32 %s, 0x8000, %s' % (v(vX), v(vX)))
        A('s_xor_b32 %s, %s, 0x18000' % (s(sXL), s(sXL)))
    else:
        xdma(A, zero_regs(AC, 28) + zero_regs(SD, 12))
        A('s_add_u32 %s, %s, 32768' % (s(sXPF), s(sXPF)))
    A('s_add_u32 %s, %s, 32768' % (s(sXOFF), s(sXOFF)))
    A('s_add_u32 %s, %s, %d' % (s(sSLOTP), s(sSLOT), MB_PO))
    A('s_add_u32 %s, %s, 1' % (s(sSTEP1), s(sSTEP)))
    A('v_mov_b32 %s, %s' % (v(HV), s(sSTEP1)))
    A('s_waitcnt vmcnt(0)')
    stamp(A, 0)
    units = [(c, T) for c in range(7) for T in range(3)]
    order0 = [(0, 0), (0, 1), (1, 0), (0, 2), (1, 1), (1, 2)]
    units = order0 + units[6:]
    ring = [XB, XB + 8, XB + 16, MF, AC, AC + 8, MF + 8, MF + 16]
    def bslot(i): return ring[i % 8]
    AR = [AF0, AF1, AC + 16, AC + 20, MF + 24, AF0, AF1]
    def bread(i):
        c, T = units[i]
        if T == 2: return ['ds_read_b128 %s, %s offset:%d' % (v(bslot(i) + 4 * hi, 4), v(vB), hi * 3584 + c * 256) for hi in range(2)]
        return ['ds_read_b128 %s, %s offset:%d' % (v(bslot(i) + 4 * hi, 4), v(vX), L_XS + c * 4096 + T * 2048 + hi * 1024) for hi in range(2)]
    def aread(c): return ['ds_read_b64_tr_b16 %s, %s offset:%d' % (v(AR[c] + 2 * t, 2), v(vTRL), c * 256 + t * 128) for t in range(2)]
    def ss(i):
        c, T = units[i]
        return smf(v(SD + 4 * T, 4), v(AR[c], 4), v(bslot(i), 8))
    extra = {}
    for i, pp in ((3, (5, 10)), (4, (15, 20)), (5, (25, 30))):
        for x, ppos in zip(bread(i), pp): extra.setdefault(ppos, []).append(x)
    extra.setdefault(28, []).extend(['s_waitcnt lgkmcnt(0)', 's_barrier'] + aread(0))
    extra.setdefault(31, []).extend(aread(1)); extra.setdefault(33, []).extend(aread(2))
    main_phase(A, SC, 3, PRM['sdel'], bread(0) + bread(1) + bread(2), [], 1, extra, sc_epi)
    e6 = sc_epi(6)
    A('s_cmp_ge_u32 %s, 2' % s(sWAVE))
    A('s_cbranch_scc1 L_sc_oth')
    ds = []
    def D(x, tag):
        A(x); ds.append(tag)
    def wait_for(tags):
        last = max([i for i, tg in enumerate(ds) if tg in tags], default=-1)
        if last >= 0 and last > wait_for.done:
            A('s_waitcnt lgkmcnt(%d)' % min(14, len(ds) - 1 - last)); wait_for.done = last
    wait_for.done = -1
    ds += ['pre', 'A2', 'A2', 'w5']
    for x in aread(3): D(x, 'A3')
    for i in (6, 7):
        for x in bread(i): D(x, 'B%d' % i)
    for i in range(21):
        c, T = units[i]
        wait_for({'pre', 'A%d' % c, 'B%d' % i})
        A(ss(i))
        if i == 1:
            A(e6[0]); A(e6[1])
        if i == 2:
            A(e6[2]); D(e6[3], 'w6')
        if i + 8 < 21:
            for x in bread(i + 8): D(x, 'B%d' % (i + 8))
        if i == PRM['sb']:
            wait_for({'w6'})
            A('s_barrier')
            for x in aread(4): D(x, 'A4')
        if i == PRM['sb'] + 1:
            for x in aread(5): D(x, 'A5')
        if i == PRM['sb'] + 2:
            for x in aread(6): D(x, 'A6')
        if i == PRM['hs']: hint_send(A, HV, HA)
    stamp(A, 5)
    A('s_cmp_eq_u32 %s, 1' % s(sWAVE))
    A('s_cbranch_scc1 L_sc_sm1')
    for rb in range(2):
        if rb: A.label('L_sc_sm1')
        e, o, mm, m, t2 = v(AC), v(AC + 1), v(AC + 2), v(AC + 3), v(AC + 4)
        for d, T in ((e, 0), (o, 1), (mm, 2)): A('v_add_f32 %s, %s, %s' % (d, v(SD + 4 * T + rb), v(SD + 4 * T + rb + 2)))
        def reduce(op):
            for d in ('quad_perm:[1,0,3,2]', 'quad_perm:[2,3,0,1]', 'row_half_mirror', 'row_mirror'):
                A('%s_dpp %s, %s, %s %s row_mask:0xf bank_mask:0xf' % (op, m, m, m, d))
        A('v_max3_f32 %s, %s, %s, %s' % (m, e, o, mm))
        if PRM['hs'] == 21: hint_send(A, HV, HA)
        reduce('v_max_f32')
        if PRM['hs'] == 22: hint_send(A, HV, HA)
        for d in (e, o, mm): A('v_sub_f32 %s, %s, %s' % (d, d, m))
        for d in (e, o, mm): A('v_exp_f32 %s, %s' % (d, d))
        A('v_add_f32 %s, %s, %s' % (m, e, o))
        A('v_fma_f32 %s, %s, 0.5, %s' % (m, mm, m))
        A('v_mov_b32_dpp %s, %s row_ror:8 row_mask:0xf bank_mask:0xf' % (t2, mm))
        reduce('v_add_f32')
        A('v_rcp_f32 %s, %s' % (m, m))
        A('v_mul_f32 %s, %s, %s' % (e, e, m))
        A('v_mul_f32 %s, %s, %s' % (o, o, m))
        A('v_cvt_pk_bf16_f32 %s, %s, %s' % (v(vT), e, o))
        A('v_mul_f32 %s, %s, %s' % (mm, mm, m))
        A('v_min_u32 %s, -2, %s' % (v(vT), v(vT)))
        A('v_mul_f32 %s, %s, %s' % (t2, t2, m))
        A('buffer_store_dword %s, %s, %s, %s offen' % (v(vT), v(vPST), s(S_WS, 4), s(sSLOTP)))
        A('v_cvt_pk_bf16_f32 %s, %s, %s' % (v(vT + 1), mm, t2))
        A('v_min_u32 %s, -2, %s' % (v(vT + 1), v(vT + 1)))
        A('buffer_store_dword %s, %s, %s, %s offen' % (v(vT + 1), v(vPSM), s(S_WS, 4), s(sSLOTP)))
        stamp(A, 8)
        A('s_branch L_sc_join')
    A.label('L_sc_oth')
    for x in e6: A(x)
    A('s_waitcnt lgkmcnt(0)')
    A('s_barrier')
    N1 = PRM['xm1']
    if PRM['xm']:
        A('s_cmp_eq_u32 %s, 3' % s(sWAVE))
        A('s_cbranch_scc1 L_sc_w3')
        for k in range(N1):
            if k % 4 == 0:
                A('s_add_u32 m0, %s, %d' % (s(sXL), k * 1024)); A('s_add_u32 %s, %s, %d' % (s(sXPF), s(sXOFF), k * 1024))
            A('buffer_load_dwordx4 %s, %s, %s offen offset:%d sc1 lds' % (v(78), s(S_WS, 4), s(sXPF), (k & 3) * 1024))
            for i in range(PRM['xg']): A('s_nop 7')
        A('s_branch L_sc_join')
        A.label('L_sc_w3')
    if PRM['hs'] == 99:
        for i in range(PRM['ht']): A('s_nop 7')
        hint_send(A, HV, HA)
    if G.events:
        A('s_memtime s[4:5]')
        A('s_waitcnt lgkmcnt(0)')
        A('s_mov_b32 m0, %s' % s(sSTEP))
        A('s_nop 3')
        A('v_writelane_b32 v79, s4, m0')
    A.label('L_sc_join')
    A('s_barrier')
    if PRM['xm']:
        assert (28 - N1) % 4 == 0
        NR = (28 - N1) // 4
        A('s_mul_i32 %s, %s, %d' % (s(sT0), s(sWAVE), NR * 1024))
        A('s_add_u32 %s, %s, %d' % (s(sT0), s(sT0), N1 * 1024))
        for k in range(NR):
            if k % 4 == 0:
                A('s_add_u32 %s, %s, %d' % (s(sT1), s(sT0), k * 1024))
                A('s_add_u32 m0, %s, %s' % (s(sXL), s(sT1))); A('s_add_u32 %s, %s, %s' % (s(sXPF), s(sXOFF), s(sT1)))
            A('buffer_load_dwordx4 %s, %s, %s offen offset:%d sc1 lds' % (v(78), s(S_WS, 4), s(sXPF), (k & 3) * 1024))
    stamp_flush(A, 11)
    A('s_add_u32 %s, %s, %d' % (s(sSLOT), s(sSLOT), MB_STEP))
    A('s_add_u32 %s, %s, 1' % (s(sSTEP), s(sSTEP)))
    A('s_cmp_lt_u32 %s, 63' % s(sSTEP))
    A('s_cbranch_scc1 L_score_loop')
    if G.events:
        A('s_lshl_b32 s6, %s, 2' % s(sROLE))
        A('s_add_u32 s6, s6, %s' % s(sWAVE))
        A('s_lshl_b32 s6, s6, 8')
        A('s_add_u32 s6, s6, %d' % (EVT + 0x20000))
        A('v_lshrrev_b32 v1, 2, %s' % v(vX))
        A('v_and_b32 v1, 0xff, v1')
        A('buffer_store_dword v79, v1, %s, s6 offen' % s(S_WS, 4))
    event(A, 8)
    event_spin(A, 14)
    A('s_branch L_exit')
    emit_stubs(A)

def va_epi(r):
    c = 4 * r
    return ['v_add_f32 %s, %s, %s' % (v(c), v(c), v(c + 2)),
            'v_add_f32 %s, %s, %s' % (v(c + 1), v(c + 1), v(c + 3)),
            'v_cvt_pk_bf16_f32 %s, %s, %s' % (v(ZB + 4 * (r & 1) + (r >> 1)), v(c), v(c + 1))]

sVB = 96
def u_loads():
    out = []
    for cx in range(2):
        for hi in range(2):
            for p in range(2):
                out.append((['s_add_u32 m0, %s, %d' % (s(sVB), cx * 4096 + hi * 2048)] if p == 0 else []) +
                           ['buffer_load_dwordx4 %s, %s, %s offen offset:%d sc1 lds' % (v(vL16), s(S_WS, 4), s(88 + cx * 2 + hi), p * 1024)])
    return out

def ucheck_code(A, lbl, back, P0, t):
    A.label(lbl)
    A('v_mbcnt_lo_u32_b32 %s, -1, 0' % v(t))
    A('v_mbcnt_hi_u32_b32 %s, -1, %s' % (v(t), v(t)))
    A('v_min_u32 %s, 55, %s' % (v(t), v(t)))
    A('v_lshlrev_b32 %s, 4, %s' % (v(t), v(t)))
    A('s_mov_b32 %s, %d' % (s(sT1), FLG_W2 + 1792))
    A('s_lshr_b32 %s, %s, 2' % (s(sT2), s(sT4)))
    A('s_add_u32 %s, %s, 1' % (s(sT2), s(sT2)))
    A.label(lbl + '_l')
    A('buffer_load_dwordx4 %s, %s, %s, %s offen sc1' % (v(P0, 4), v(t), s(S_WS, 4), s(sT1)))
    A('buffer_load_dwordx4 %s, %s, %s, %s offen offset:896 sc1' % (v(P0 + 4, 4), v(t), s(S_WS, 4), s(sT1)))
    A('s_waitcnt vmcnt(0)')
    A('v_min3_u32 %s, %s, %s, %s' % (v(P0), v(P0), v(P0 + 1), v(P0 + 2)))
    A('v_min3_u32 %s, %s, %s, %s' % (v(P0), v(P0), v(P0 + 3), v(P0 + 4)))
    A('v_min3_u32 %s, %s, %s, %s' % (v(P0), v(P0), v(P0 + 5), v(P0 + 6)))
    A('v_min_u32 %s, %s, %s' % (v(P0), v(P0), v(P0 + 7)))
    A('v_cmp_gt_u32 vcc, %s, %s' % (s(sT2), v(P0)))
    spin_check(A, lbl + '_l', ['s_sleep 8'])
    A('s_lshl_b32 %s, %s, 2' % (s(sUOK), s(sT2)))
    for thr in range(2, 17):
        A('v_cmp_gt_u32 vcc, %d, %s' % (thr, v(P0)))
        A('s_cbranch_vccnz %s' % back)
        A('s_max_u32 %s, %s, %d' % (s(sUOK), s(sUOK), 4 * thr if thr < 16 else 1000))
    A('s_branch %s' % back)

def value_role(A):
    A.label('L_value')
    L = v(vLANE)
    sV = sT4
    A('s_sub_u32 %s, %s, 16' % (s(sV), s(sROLE)))
    lexpr(A, v(vL16), L, [(0, 6, 16)], 0, 'v1')
    A('s_lshl_b32 %s, %s, 13' % (s(sVB), s(sWAVE)))
    A('s_add_u32 %s, %s, %d' % (s(sVB), s(sVB), L_VB))
    A('s_lshl_b32 %s, %s, 11' % (s(sT0), s(sWAVE)))
    A('s_add_u32 %s, %s, %d' % (s(sT0), s(sT0), L_VB + 32768))
    A('v_add_u32 %s, %s, %s' % (v(vVW), s(sT0), v(vL16)))
    A('v_add_u32 %s, %d, %s' % (v(vVR), L_VB, v(vL16)))
    A('s_mul_i32 %s, %s, 20480' % (s(sT0), s(sWAVE)))
    A('s_add_u32 %s, %s, %d' % (s(sT0), s(sT0), L_WL))
    A('v_add_u32 %s, %s, %s' % (v(vLW), s(sT0), v(vL16)))
    A('s_lshl_b32 %s, %s, 9' % (s(sT0), s(sV)))
    A('s_cmp_eq_u32 %s, 0' % s(sWAVE))
    A('s_cselect_b32 %s, %s, 0x70000000' % (s(sT0), s(sT0)))
    lexpr(A, v(vMST), L, [(3, 1, 256), (2, 1, 32), (4, 2, 64), (0, 2, 4)], s(sT0), 'v1')
    lexpr(A, v(vHIST), L, [(2, 2, 128), (4, 2, 32), (0, 2, 4)], s(sT0), 'v1')
    A('s_lshl_b32 %s, %s, 6' % (s(sT0), s(sV)))
    lexpr(A, 'v2', L, [(4, 2, 1792), (0, 4, 4)], s(sT0), 'v1')
    A('buffer_load_dword %s, v2, %s, 0 offen' % (v(VR), s(S_M0, 4)))
    A('buffer_load_dword %s, v2, %s, 0 offen offset:896' % (v(VR + 1), s(S_M0, 4)))
    A('s_lshl_b32 %s, %s, 2' % (s(sHWR), s(sV)))
    A('s_add_u32 %s, %s, %d' % (s(sHWR), s(sHWR), HINT_M))
    hint_setup(A, VHV, VHA, True)
    A('v_min_u32 v1, 21, %s' % L)
    A('v_lshlrev_b32 %s, 2, v1' % v(vHM_))
    A('v_min_u32 v1, 15, %s' % L)
    A('v_lshlrev_b32 %s, 2, v1' % v(vHP_))
    dbg_arrive(A, D_GRP)
    A('s_lshr_b32 %s, %s, 1' % (s(sT0), s(sV)))
    A('s_add_u32 %s, %s, 112' % (s(sT0), s(sT0)))
    A('s_mul_i32 %s, %s, 28' % (s(sT1), s(sWAVE)))
    A('s_add_u32 %s, %s, %s' % (s(sT0), s(sT0), s(sT1)))
    lexpr(A, 'v8', L, [(2, 2, 7)], s(sT0), 'v1')
    A('v_lshlrev_b32 v8, 6, v8')
    A('v_and_b32 v9, 3, %s' % L)
    A('v_lshl_add_u32 v8, v9, 2, v8')
    A('s_mul_i32 %s, %s, %d' % (s(sUOFF), s(sWAVE), 4 * 28672))
    A('s_lshl_b32 %s, %s, 11' % (s(sT0), s(sV)))
    A('s_add_u32 %s, %s, %s' % (s(sUOFF), s(sUOFF), s(sT0)))
    A('s_add_u32 %s, %s, %d' % (s(sUOFF), s(sUOFF), U_OFF))
    A('s_mul_i32 %s, %s, %d' % (s(sT3), s(sV), WCV))
    A('s_add_u32 %s, %s, %d' % (s(sT3), s(sT3), WIMGV))
    event(A, 3)
    load_weights(A, VA, 32768)
    event(A, 5)
    group_wait(A)
    event(A, 6, v(vT), v(vT + 1))
    event_spin(A, 13, v(vT), v(vT + 1))
    A('s_mov_b32 %s, 0' % s(sSTEP))
    A('s_mov_b32 %s, %d' % (s(sSLOT), MB_OFF))
    A('s_mov_b32 %s, %d' % (s(sUOK), 1000 if G.dev_nowait else 0))
    for j in range(2):
        A('v_min_u32 %s, -2, %s' % (v(VR + j), v(VR + j)))
        A('buffer_store_dword %s, %s, %s, %s offen offset:%d' % (v(VR + j), v(vMST), s(S_WS, 4), s(sSLOT), 16 * j))
    A('v_mov_b32 %s, 1' % v(VHV))
    A('s_barrier')
    hint_send(A, VHV, VHA)
    def lread(i):
        j = VLDS.index(VORD[i])
        return ['ds_read_b128 %s, %s offset:%d' % (v(LB + 8 * (i & 1) + 4 * hi, 4), v(vLW), (2 * j + hi) * 1024) for hi in range(2)]
    BF = [0, 8, 16, 24, 32, 40, 48, 80, 88]
    OD, PA, PKD = 96, 104, 56
    sP0 = 93
    def top():
        A('s_add_u32 %s, %s, 1' % (s(sSTEP1), s(sSTEP)))
        for j in range(4): A('s_add_u32 %s, %s, %d' % (s(88 + j), s(sUOFF), j * 28672))
    top()
    A.label('L_value_loop')
    stamp(A, 0)
    ul = u_loads(); nb1 = PRM['nb1']
    extra = {}
    for i in range(2, 10):
        r, k = VORD[i - 2]
        extra.setdefault(5 * r + k - 2, []).extend(lread(i))
    A('s_add_u32 %s, %s, 2' % (s(sT0), s(sSTEP)))
    extra.setdefault(0, []).append('v_mov_b32 %s, %s' % (v(VHV), s(sT0)))
    zr = zero_regs(0, 32)
    post = ['s_barrier'] + lread(0) + lread(1)
    for j, x in enumerate(ul[:nb1]): post += x + zr[j * 6:(j + 1) * 6]
    post += zr[nb1 * 6:]
    main_phase(A, VA, 2, PRM['vdel'], post, ul[nb1:], PRM['uev'], extra, va_epi)
    for x in va_epi(7): A(x)
    for j in range(3): A('s_add_u32 %s, %s, %d' % (s(sP0 + j), s(sSLOT), MB_PO + 4096 * j))
    A('s_add_u32 %s, %s, %d' % (s(sSLOT), s(sSLOT), MB_STEP))
    for p in range(2): A('ds_write_b128 %s, %s offset:%d' % (v(vVW), v(ZB + 4 * p, 4), p * 1024))
    A('s_waitcnt vmcnt(0) lgkmcnt(0)')
    A('s_barrier')
    stamp(A, 5)
    def bread(f):
        c, p = f >> 1, f & 1
        return ['ds_read_b128 %s, %s offset:%d' % (v(BF[f % 9] + 4 * hi, 4), v(vVR), c * 4096 + hi * 2048 + p * 1024) for hi in range(2)]
    pre = []
    for f in range(9):
        pre += bread(f)
        if f in (4, 7): pre.append('s_waitcnt lgkmcnt(4)')
    pre += zero_regs(OD, 8) + ['s_waitcnt lgkmcnt(0)']
    A('s_add_u32 %s, %s, %d' % (s(sUOFF), s(sUOFF), 16 * 28672))
    A('s_add_u32 %s, %s, 1' % (s(sSTEP), s(sSTEP)))
    A('s_cmp_lg_u32 %s, 0' % s(sWAVE))
    A('s_cbranch_scc1 L_value_oth')
    for x in pre: A(x)
    A('s_barrier')
    stamp(A, 9)
    ld = ['buffer_load_dwordx4 %s, %s, %s, %s offen offset:%d sc1' % (v(PA + 4 * c, 4), v(vL16), s(S_WS, 4), s(sP0 + (c >> 2)), (c & 3) * 1024) for c in range(10)]
    for x in ld: A(x)
    A.label('L_pv')
    for f in range(20):
        c, p = f >> 1, f & 1
        if p == 0: A('s_waitcnt vmcnt(%d)' % (9 - c + (1 if f > PRM['vf'] else 0)))
        if f == 0: stamp(A, 6)
        if f >= 9: A('s_waitcnt lgkmcnt(%d)' % min(14, 2 * (min(19, f + 8) - f)))
        A(smf(v(OD + 4 * p, 4), v(PA + 4 * c, 4), v(BF[f % 9], 8)))
        if f == PRM['vf']: hint_send(A, VHV, VHA)
        if f + 9 < 20:
            for x in bread(f + 9): A(x)
    stamp(A, 7)
    A('v_add_f32 %s, %s, %s' % (v(OD), v(OD), v(OD + 2)))
    A('v_add_f32 %s, %s, %s' % (v(OD + 1), v(OD + 1), v(OD + 3)))
    A('v_cmp_u_f32 vcc, %s, %s' % (v(OD), v(OD + 1)))
    A('v_add_f32 %s, %s, %s' % (v(OD + 4), v(OD + 4), v(OD + 6)))
    A('v_add_f32 %s, %s, %s' % (v(OD + 5), v(OD + 5), v(OD + 7)))
    A('s_cbranch_vccnz L_pv_nan')
    A('v_cvt_pk_bf16_f32 %s, %s, %s' % (v(PKD), v(OD), v(OD + 4)))
    A('v_cvt_pk_bf16_f32 %s, %s, %s' % (v(PKD + 1), v(OD + 1), v(OD + 5)))
    A.label('L_pv_ok')
    A('buffer_store_dword %s, %s, %s, %s offen' % (v(PKD), v(vMST), s(S_WS, 4), s(sSLOT)))
    A('buffer_store_dword %s, %s, %s, %s offen offset:16' % (v(PKD + 1), v(vMST), s(S_WS, 4), s(sSLOT)))
    stamp(A, 8)
    if G.stamps:
        A('s_sub_u32 %s, %s, 1' % (s(sSTEP), s(sSTEP)))
        stamp_flush(A, 11)
        A('s_add_u32 %s, %s, 1' % (s(sSTEP), s(sSTEP)))
    A.label('L_value_next')
    top()
    A('s_cmp_lt_u32 %s, 63' % s(sSTEP))
    A('s_cbranch_scc1 L_value_loop')
    A('s_mov_b32 %s, %d' % (s(sT0), HM_OFF + 63 * HM_STEP))
    for j in range(2): A('buffer_store_dword %s, %s, %s, %s offen offset:%d sc1' % (v(PKD + j), v(vHIST), s(S_WS, 4), s(sT0), 16 * j))
    event(A, 8)
    event_spin(A, 14)
    A('s_branch L_exit')
    A.label('L_value_oth')
    hint_wait(A, sHPRD, sSTEP1, 2, PRM['pdel'], 16, vHP_)
    A('s_branch L_value_next')
    A.label('L_pv_nan')
    A('v_max3_u32 %s, %s, %s, %s' % (v(vT), v(PA), v(PA + 1), v(PA + 2)))
    for i in range(3, 39, 2): A('v_max3_u32 %s, %s, %s, %s' % (v(vT), v(vT), v(PA + i), v(PA + i + 1)))
    A('v_max_u32 %s, %s, %s' % (v(vT), v(vT), v(PA + 39)))
    A('v_cmp_eq_u32 vcc, -1, %s' % v(vT))
    spin_check(A, 'L_pv', ld + pre)
    A('v_cvt_pk_bf16_f32 %s, %s, %s' % (v(PKD), v(OD), v(OD + 4)))
    A('v_cvt_pk_bf16_f32 %s, %s, %s' % (v(PKD + 1), v(OD + 1), v(OD + 5)))
    A('v_min_u32 %s, -2, %s' % (v(PKD), v(PKD)))
    A('v_min_u32 %s, -2, %s' % (v(PKD + 1), v(PKD + 1)))
    A('s_branch L_pv_ok')
    emit_stubs(A)

def helper_role(A):
    A.label('L_helper')
    L = v(vLANE)
    sHW, sJ, sXS, sXD, sSI = sT3, sPRST, sXOFF, sXPF, sUOFF
    LA = PRM['pla']; LT = PRM['plt']
    A('s_sub_u32 %s, %s, 30' % (s(sHW), s(sROLE)))
    A('s_lshl_b32 %s, %s, 2' % (s(sHW), s(sHW)))
    A('s_add_u32 %s, %s, %s' % (s(sHW), s(sHW), s(sWAVE)))
    A('s_min_u32 %s, %s, 6' % (s(sT4), s(sHW)))
    A('s_lshl_b32 %s, %s, 10' % (s(sT0), s(sT4)))
    lexpr(A, 'v10', L, [(0, 6, 16)], s(sT0), 'v1')
    A('s_cmp_lt_u32 %s, 7' % s(sHW))
    A('s_cselect_b32 %s, %s, 0x70000000' % (s(sT0), s(sT0)))
    lexpr(A, 'v11', L, [(4, 2, 256), (1, 1, 128), (2, 2, 32), (0, 1, 16)], s(sT0), 'v1')
    A('s_lshl_b32 %s, %s, 12' % (s(sT0), s(sHW)))
    lexpr(A, 'v12', L, [(0, 5, 128)], s(sT0), 'v1')
    A('s_lshl_b32 %s, %s, 10' % (s(sT0), s(sHW)))
    lexpr(A, 'v13', L, [(3, 2, 8192), (0, 3, 128)], s(sT0), 'v1')
    A('v_mov_b32 v2, %d' % OOB)
    A('v_cmp_gt_u32 vcc, %d, v13' % MB_STEP)
    A('v_cndmask_b32 v13, v2, v13, vcc')
    A('s_lshl_b32 %s, %s, 10' % (s(sT0), s(sHW)))
    lexpr(A, 'v14', L, [(0, 6, 16)], s(sT0), 'v1')
    A('v_add_u32 v15, 8192, v14')
    A('s_cmp_lt_u32 %s, 2' % s(sHW))
    A('s_cselect_b32 %s, 16384, 0' % s(sT0))
    A('v_add_u32 v9, %s, v14' % s(sT0))
    for i in range(4): A('v_mov_b32 %s, -1' % v(4 + i))
    A('s_lshl_b32 %s, %s, 2' % (s(sHWR), s(sHW)))
    A('s_add_u32 %s, %s, %d' % (s(sHWR), s(sHWR), HINT_M + 14 * 4))
    A('v_lshlrev_b32 v1, 8, %s' % L)
    A('v_mov_b32 v2, %d' % OOB)
    A('v_cmp_gt_u32 vcc, %d, %s' % (PRM['nrep'], L))
    A('v_cndmask_b32 v8, v2, v1, vcc')
    A('s_mov_b32 %s, 0' % s(sJ))
    A('s_cmp_eq_u32 %s, 7' % s(sHW))
    A('s_cselect_b32 %s, %d, 1000' % (s(sUOK), 1000 if G.dev_nowait else 0))
    A('s_mov_b32 %s, 0' % s(sXS))
    A('s_mov_b32 %s, %d' % (s(sXD), XF_OFF + LT * 32768))
    A('s_mov_b32 %s, %d' % (s(sSI), MB_OFF))
    def prepare(touch):
        A('s_sub_u32 %s, %s, 1' % (s(sT0), s(sJ)))
        A('s_max_i32 %s, %s, 0' % (s(sT0), s(sT0)))
        A('s_min_u32 %s, %s, %s' % (s(sT0), s(sT0), s(sUOK)))
        A('v_mov_b32 v3, %s' % s(sT0))
        A('buffer_store_dword v3, v8, %s, %s offen' % (s(S_WS, 4), s(sHWR)))
        if touch:
            A('s_add_u32 %s, %s, %d' % (s(sT0), s(sSLOT), LT * MB_STEP))
            A('buffer_load_dword v21, v13, %s, %s offen sc1' % (s(S_WS, 4), s(sT0)))
            A('buffer_load_dword v20, v12, %s, %s offen sc1' % (s(S_WS, 4), s(sXD)))
            A('s_add_u32 %s, %s, 32768' % (s(sXD), s(sXD)))
        e = A.newlabel('L_hsk')
        A('s_cmp_ge_u32 %s, 64' % s(sJ))
        A('s_cbranch_scc1 %s' % e)
        for a_ in ('v14', 'v15', 'v9'): A('buffer_store_dwordx4 v[4:7], %s, %s, %s offen' % (a_, s(S_WS, 4), s(sSI)))
        A('s_add_u32 %s, %s, 1' % (s(sJ), s(sJ)))
        A('s_add_u32 %s, %s, %d' % (s(sSI), s(sSI), MB_STEP))
        A.label(e)
    A.label('L_helper_pre')
    A('s_waitcnt vmcnt(0)')
    prepare(False)
    A('s_cmp_le_u32 %s, %d' % (s(sJ), LA + 1))
    A('s_cbranch_scc1 L_helper_pre')
    if not G.dev_nowait: wait_init(A, D_XG)
    dbg_arrive(A, D_GRP)
    group_wait(A)
    A('s_mov_b32 %s, 0' % s(sSTEP))
    A('s_mov_b32 %s, %d' % (s(sSLOT), MB_OFF))
    A('s_mov_b32 %s, %d' % (s(sHM), HM_OFF))
    A('s_cmp_eq_u32 %s, 7' % s(sHW))
    A('s_cbranch_scc1 L_helper7')
    A.label('L_helper_warm')
    for i in range(LT):
        A('s_mov_b32 %s, %d' % (s(sT0), XF_OFF + i * 32768))
        A('buffer_load_dword v20, v12, %s, %s offen sc1' % (s(S_WS, 4), s(sT0)))
        A('s_mov_b32 %s, %d' % (s(sT0), MB_OFF + i * MB_STEP))
        A('buffer_load_dword v21, v13, %s, %s offen sc1' % (s(S_WS, 4), s(sT0)))
    A('buffer_load_dwordx4 v[16:19], v10, %s, %s offen sc1' % (s(S_WS, 4), s(sSLOT)))
    A('s_waitcnt vmcnt(0)')
    check4(A, 16, 'L_helper_warm', ['s_sleep 8'])
    A.label('L_helper_loop')
    l = A.newlabel('L_hp'); A.label(l)
    A('buffer_load_dwordx4 v[16:19], v10, %s, %s offen sc1' % (s(S_WS, 4), s(sSLOT)))
    A('s_waitcnt vmcnt(0)')
    check4(A, 16, l, ['s_sleep 1'])
    A('buffer_store_dwordx4 v[16:19], v11, %s, %s offen sc1' % (s(S_WS, 4), s(sHM)))
    prepare(True)
    A('s_add_u32 %s, %s, %d' % (s(sSLOT), s(sSLOT), MB_STEP))
    A('s_add_u32 %s, %s, %d' % (s(sHM), s(sHM), HM_STEP))
    A('s_add_u32 %s, %s, 1' % (s(sSTEP), s(sSTEP)))
    A('s_cmp_lt_u32 %s, 64' % s(sSTEP))
    A('s_cbranch_scc1 L_helper_loop')
    A('s_waitcnt vmcnt(0)')
    event(A, 8)
    A('s_branch L_exit')
    A.label('L_helper7')
    A('s_cmp_ge_u32 %s, 64' % s(sUOK))
    A('s_cbranch_scc1 L_h7_b')
    A('s_mov_b32 %s, 0' % s(sT4))
    A('s_branch L_hucheck')
    A.label('L_hucheck_done')
    A('s_sub_u32 %s, %s, 1' % (s(sT0), s(sJ)))
    A('s_min_u32 %s, %s, %s' % (s(sT0), s(sT0), s(sUOK)))
    A('v_mov_b32 v3, %s' % s(sT0))
    A('buffer_store_dword v3, v8, %s, %s offen' % (s(S_WS, 4), s(sHWR)))
    A.label('L_h7_b')
    A('buffer_load_dwordx4 v[16:19], v15, %s, %s offen sc1' % (s(S_WS, 4), s(sSLOT)))
    A('s_waitcnt vmcnt(0)')
    check4(A, 16, 'L_helper7', ['s_sleep 4'])
    prepare(True)
    A('s_add_u32 %s, %s, %d' % (s(sSLOT), s(sSLOT), MB_STEP))
    A('s_add_u32 %s, %s, 1' % (s(sSTEP), s(sSTEP)))
    A('s_cmp_lt_u32 %s, 63' % s(sSTEP))
    A('s_cbranch_scc1 L_helper7')
    A('s_branch L_exit')
    ucheck_code(A, 'L_hucheck', 'L_hucheck_done', 24, 22)
    emit_stubs(A)
```

```python
from common import *
import struct

sRHO, sH, sQ, sTY, sA = 71, 72, 73, 74, 75
sSC, sO1, sO2, sO3, sSEG, sCNT = 76, 77, 78, 79, 80, 81
S_W1 = 92
LW_R2 = 0
LW_ST = 36864
LW_WT = 36864 + 33792
def f2u(x): return struct.unpack('<I', struct.pack('<f', x))[0]

def wait_dbg(A, idx, val, sleep=2):
    l = A.newlabel('L_wd'); e = A.newlabel('L_wd_done')
    A('s_cmp_lg_u32 %s, 0' % s(sWAVE))
    A('s_cbranch_scc1 %s' % e)
    if idx in (D_INIT, D_XG): lexpr(A, 'v2', 'v0', [(0, 2, 64)], idx * 4, 'v3')
    else: A('v_mov_b32 v2, %d' % (idx * 4))
    A.label(l)
    A('buffer_load_dword v3, v2, %s, 0 offen sc1' % s(S_DBG, 4))
    A('s_waitcnt vmcnt(0)')
    A('v_cmp_gt_u32 vcc, %d, v3' % val)
    spin_check(A, l, ['s_sleep %d' % sleep])
    A.label(e)
    A('s_barrier')

def early_prefetch(A):
    e = A.newlabel('L_ep')
    A('s_cmp_eq_u32 %s, 0' % s(sXCC))
    A('s_cbranch_scc1 %s' % e)
    A('s_lshr_b32 %s, s2, 3' % s(sROLE))
    role_decode(A)
    lexpr(A, 'v5', 'v0', [(2, 4, 8192), (0, 2, 128)], 0, 'v6')
    A('s_and_b32 %s, %s, 1' % (s(sT2), s(sWAVE)))
    A('s_lshl_b32 %s, %s, 1' % (s(sT0), s(sQ)))
    A('s_add_u32 %s, %s, %s' % (s(sT0), s(sT0), s(sT2)))
    A('s_lshl_b32 %s, %s, 18' % (s(sT0), s(sT0)))
    A('s_lshl_b32 %s, %s, 9' % (s(sT1), s(sH)))
    A('s_add_u32 %s, %s, %s' % (s(sT0), s(sT0), s(sT1)))
    A('s_add_u32 %s, %s, %d' % (s(sT1), s(sT0), 16 * 8192))
    l2 = A.newlabel('L_ep2'); l3 = A.newlabel('L_ep3')
    A('s_cmp_ge_u32 %s, 2' % s(sWAVE))
    A('s_cbranch_scc1 %s' % l2)
    for j in range(2): A('buffer_load_dword v7, v5, %s, %s offen' % (s(S_W1, 4), s(sT0 + j)))
    A('s_branch %s' % e)
    A.label(l2)
    A('s_cmp_lg_u32 %s, 0' % s(sTY))
    A('s_cbranch_scc1 %s' % l3)
    for j in range(2): A('buffer_load_dword v7, v5, %s, %s offen' % (s(S_WK, 4), s(sT0 + j)))
    A('s_branch %s' % e)
    A.label(l3)
    A('v_lshlrev_b32 v5, 7, v0')
    A('s_lshl_b32 %s, %s, 1' % (s(sT0), s(sQ)))
    A('s_add_u32 %s, %s, %s' % (s(sT0), s(sT0), s(sT2)))
    A('s_lshl_b32 %s, %s, 14' % (s(sT0), s(sT0)))
    A('s_mul_i32 %s, %s, 229376' % (s(sT1), s(sH)))
    A('s_add_u32 %s, %s, %s' % (s(sT0), s(sT0), s(sT1)))
    A('s_add_u32 %s, %s, 8192' % (s(sT1), s(sT0)))
    for j in range(2): A('buffer_load_dword v7, v5, %s, %s offen' % (s(S_WO, 4), s(sT0 + j)))
    A.label(e)

def worker_entry(A):
    A.label('L_worker')
    A('s_mov_b32 %s, %d' % (s(sSPIN), SPIN_MAX))
    role_decode(A)

def role_decode(A):
    A('s_sub_u32 %s, %s, 1' % (s(sRHO), s(sXCC)))
    A('s_lshl_b32 %s, %s, 5' % (s(sRHO), s(sRHO)))
    A('s_add_u32 %s, %s, %s' % (s(sRHO), s(sRHO), s(sROLE)))
    A('s_mul_i32 %s, %s, 9363' % (s(sT0), s(sRHO)))
    A('s_lshr_b32 %s, %s, 16' % (s(sT0), s(sT0)))
    A('s_mul_i32 %s, %s, 7' % (s(sT1), s(sT0)))
    A('s_sub_u32 %s, %s, %s' % (s(sQ), s(sRHO), s(sT1)))
    A('s_lshr_b32 %s, %s, 4' % (s(sTY), s(sT0)))
    A('s_and_b32 %s, %s, 15' % (s(sH), s(sT0)))
    A('s_mul_i32 %s, %s, 7' % (s(sA), s(sH)))
    A('s_add_u32 %s, %s, %s' % (s(sA), s(sA), s(sQ)))
    A('s_cmp_eq_u32 %s, 0' % s(sTY))
    A('s_cselect_b32 %s, %s, %s' % (s(S_W1), s(S_WQ), s(S_WV)))
    A('s_cselect_b32 %s, %s, %s' % (s(S_W1 + 1), s(S_WQ + 1), s(S_WV + 1)))
    A('s_mov_b32 %s, 3670016' % s(S_W1 + 2))
    A('s_mov_b32 %s, 0x00020000' % s(S_W1 + 3))
    A('s_cselect_b32 %s, 0x%x, 1.0' % (s(sSC), f2u(SCALE_LOG2E)))

def zero_flags(A):
    A('s_cmp_eq_u32 %s, 3' % s(sWAVE))
    A('s_cselect_b32 %s, 0, 0x70000000' % s(sT1))
    A('s_cselect_b64 vcc, 1, 0')
    lexpr(A, 'v13', 'v0', [(0, 6, 16)], s(sT1), 'v1')
    A('v_mov_b32 v3, %d' % OOB)
    A('s_and_b32 %s, %s, 3' % (s(sT0), s(sRHO)))
    A('s_lshl_b32 %s, %s, 6' % (s(sT0), s(sT0)))
    A('s_add_u32 %s, %s, %d' % (s(sT0), s(sT0), D_INIT * 4))
    A('v_mov_b32 v1, %s' % s(sT0))
    A('v_cndmask_b32 v11, v3, v1, vcc')
    A('s_lshl_b32 %s, %s, 6' % (s(sT0), s(sRHO)))
    A('s_mul_i32 %s, %s, 192' % (s(sT2), s(sRHO)))
    A('s_add_u32 %s, %s, %d' % (s(sT2), s(sT2), 0x4000 - 64))
    A('v_mov_b32 v1, %s' % s(sT0))
    A('v_mov_b32 v2, %s' % s(sT2))
    A('v_cmp_gt_u32 vcc, 16, v0')
    A('v_cndmask_b32 v2, v2, v1, vcc')
    A('v_lshl_add_u32 v2, v0, 2, v2')
    A('v_add_u32 v2, %s, v2' % s(sT1))
    A('v_mov_b32 v3, 0')
    A('v_mov_b32 v12, 1')
    for i in range(4): A('v_mov_b32 %s, -1' % v(16 + i))
    A('s_mov_b32 %s, %d' % (s(sT0), FLAGS))
    A('buffer_store_dword v3, v2, %s, %s offen sc1' % (s(S_WS, 4), s(sT0)))
    A('s_lshl_b32 %s, %s, 11' % (s(sT0), s(sRHO)))
    A('s_add_u32 %s, %s, %d' % (s(sT0), s(sT0), HM_OFF))
    A('buffer_store_dwordx4 v[16:19], v13, %s, %s offen sc1' % (s(S_WS, 4), s(sT0)))
    A('buffer_store_dwordx4 v[16:19], v13, %s, %s offen offset:1024 sc1' % (s(S_WS, 4), s(sT0)))

sXGD = 100
def xg_load(A):
    A('s_lshl_b32 %s, %s, 2' % (s(sT0), s(sRHO)))
    A('s_add_u32 %s, %s, %s' % (s(sT0), s(sT0), s(sWAVE)))
    A('s_mul_i32 %s, %s, 9363' % (s(sT1), s(sT0)))
    A('s_lshr_b32 %s, %s, 16' % (s(sT1), s(sT1)))
    A('s_mul_i32 %s, %s, 7' % (s(sT2), s(sT1)))
    A('s_sub_u32 %s, %s, %s' % (s(sT2), s(sT0), s(sT2)))
    A('s_lshl_b32 %s, %s, 7' % (s(sT2), s(sT2)))
    A('s_lshr_b32 %s, %s, 1' % (s(sT3), s(sT1)))
    A('s_mul_i32 %s, %s, 28672' % (s(sT3), s(sT3)))
    A('s_add_u32 %s, %s, %s' % (s(sT2), s(sT2), s(sT3)))
    A('s_and_b32 %s, %s, 1' % (s(sT3), s(sT1)))
    A('s_mul_i32 %s, %s, %d' % (s(sT3), s(sT3), 4 * 896))
    A('s_add_u32 %s, %s, %s' % (s(sT2), s(sT2), s(sT3)))
    lexpr(A, 'v48', 'v0', [(2, 2, 8 * 896), (0, 2, 896), (4, 2, 16)], 0, 'v1')
    A('buffer_load_dwordx4 v[40:43], v48, %s, %s offen' % (s(S_BX, 4), s(sT2)))
    A('buffer_load_dwordx4 v[44:47], v48, %s, %s offen offset:64' % (s(S_BX, 4), s(sT2)))
    A('s_lshl_b32 %s, %s, 11' % (s(sXGD), s(sT0)))
    A('s_add_u32 %s, %s, %d' % (s(sXGD), s(sXGD), XG_OFF))
    A('s_lshr_b32 %s, %s, 1' % (s(sT1), s(sT1)))
    A('s_mul_i32 %s, %s, 14' % (s(sT2), s(sT1)))
    A('s_sub_u32 %s, %s, %s' % (s(sT0), s(sT0), s(sT2)))
    A('s_lshl_b32 %s, %s, 15' % (s(sXGD + 1), s(sT1)))
    A('s_lshl_b32 %s, %s, 11' % (s(sT2), s(sT0)))
    A('s_add_u32 %s, %s, %s' % (s(sXGD + 1), s(sXGD + 1), s(sT2)))
    A('s_add_u32 %s, %s, %d' % (s(sXGD + 1), s(sXGD + 1), XF_OFF))
    A('s_mul_i32 %s, %s, 28672' % (s(sT1), s(sT1)))
    A('s_lshr_b32 %s, %s, 1' % (s(sT2), s(sT0)))
    A('s_lshl_b32 %s, %s, 5' % (s(sT2), s(sT2)))
    A('s_add_u32 %s, %s, %s' % (s(sT1), s(sT1), s(sT2)))
    A('s_and_b32 %s, %s, 1' % (s(sT2), s(sT0)))
    A('s_mul_i32 %s, %s, 896' % (s(sT2), s(sT2)))
    A('s_add_u32 %s, %s, %s' % (s(sT1), s(sT1), s(sT2)))
    lexpr(A, 'v49', 'v0', [(3, 1, 16 * 896), (0, 2, 4 * 896), (2, 1, 2 * 896), (5, 1, 224), (4, 1, 16)], 0, 'v1')
    A('buffer_load_dwordx4 v[32:35], v49, %s, %s offen' % (s(S_BX, 4), s(sT1)))
    A('buffer_load_dwordx4 v[36:39], v49, %s, %s offen offset:448' % (s(S_BX, 4), s(sT1)))
    A('v_lshlrev_b32 v48, 4, v0')

WF = 256
vST = 4
def phase_w1(A):
    W2F = 256
    AFR = (64, 96)
    DD = (128, 160)
    PC = 192
    vSRC, vRD, vDST, vR2W, vR2R, vG2 = 16, 24, 28, 8, 9, 10
    R2 = 3 * 32768
    sB1, sCI, sRING, sCS = sO3, sSEG, sCNT, 83
    vm = ['i', 'i', 'i']
    done = [0]
    def V(x, tag):
        A(x); vm.append(tag)
    def vwait(tag):
        last = max(i for i, tg in enumerate(vm) if tg == tag)
        return 's_waitcnt vmcnt(%d)' % (len(vm) - 1 - last)
    A('s_cmp_lg_u32 %s, 0' % s(sTY))
    A('s_cbranch_scc1 L_w1_b')
    lexpr(A, v(vG2), 'v0', [(5, 1, 8192), (0, 5, 16)], 0, 'v1')
    A('s_lshl_b32 %s, %s, 2' % (s(sT0), s(sQ)))
    A('s_add_u32 %s, %s, %s' % (s(sT0), s(sT0), s(sWAVE)))
    A('s_lshl_b32 %s, %s, 17' % (s(sT0), s(sT0)))
    A('s_lshl_b32 %s, %s, 9' % (s(sT1), s(sH)))
    A('s_add_u32 %s, %s, %s' % (s(sT0), s(sT0), s(sT1)))
    for j in range(8):
        A('buffer_load_dwordx4 %s, %s, %s, %s offen' % (v(64 + 4 * j, 4), v(vG2), s(S_WK, 4), s(sT0)))
        if j < 7: A('s_add_u32 %s, %s, 16384' % (s(sT0), s(sT0)))
    A('s_branch L_w1_c')
    A.label('L_w1_b')
    lexpr(A, v(vG2), 'v0', [(3, 3, 896), (0, 3, 16)], 0, 'v1')
    A('s_mul_i32 %s, %s, 229376' % (s(sT0), s(sH)))
    A('s_mul_i32 %s, %s, %d' % (s(sT1), s(sWAVE), 64 * 896))
    A('s_add_u32 %s, %s, %s' % (s(sT0), s(sT0), s(sT1)))
    A('s_lshl_b32 %s, %s, 7' % (s(sT1), s(sQ)))
    A('s_add_u32 %s, %s, %s' % (s(sT0), s(sT0), s(sT1)))
    for j in range(8):
        A('buffer_load_dwordx4 %s, %s, %s, %s offen' % (v(64 + 4 * j, 4), v(vG2), s(S_WO, 4), s(sT0)))
        if j < 7: A('s_add_u32 %s, %s, %d' % (s(sT0), s(sT0), 8 * 896))
    A.label('L_w1_c')
    vm.extend(['w2'] * 8)
    A('v_lshrrev_b32 v1, 5, v0')
    A('v_and_b32 v2, 31, v0')
    A('v_xor_b32 v2, v2, v1')
    A('v_lshlrev_b32 v1, 13, v1')
    for j in range(8):
        g = j >> 1
        rowoff = 16 * (g >> 1) + 4 * (g & 1) + 8 * (j & 1)
        A('v_xor_b32 v3, %d, v2' % (2 * j))
        A('v_lshl_add_u32 v3, v3, 4, v1')
        A('v_add_u32 %s, %d, v3' % (v(vSRC + j), rowoff * 8192))
    A('s_lshl_b32 %s, %s, 9' % (s(sB1), s(sH)))
    A('s_lshl_b32 %s, %s, 13' % (s(sRING), s(sWAVE)))
    if PRM['wrot'] == 3:
        A('s_and_b32 %s, %s, 1' % (s(sT0), s(sQ)))
        A('s_lshl_b32 %s, %s, 2' % (s(sT0), s(sT0)))
    else: A('s_mul_i32 %s, %s, %d' % (s(sT0), s(sQ), PRM['wrot']))
    A('s_add_u32 %s, %s, %s' % (s(sT0), s(sT0), s(sWAVE)))
    for i in range(4):
        A('s_add_u32 %s, %s, %d' % (s(96 + i), s(sT0), 4 * i))
        A('s_sub_u32 %s, %s, 14' % (s(sT1), s(96 + i)))
        A('s_cmp_ge_u32 %s, 14' % s(96 + i))
        A('s_cselect_b32 %s, %s, %s' % (s(96 + i), s(sT1), s(96 + i)))
    def dma(tl):
        i, T = tl >> 1, tl & 1
        o = [('s_lshl_b32 %s, %s, 18' % (s(sO2), s(96 + i)), None), ('s_add_u32 %s, %s, %s' % (s(sO2), s(sO2), s(sB1)), None)]
        if T: o.append(('s_add_u32 %s, %s, %d' % (s(sO2), s(sO2), 2 * 8192), None))
        for j in range(8):
            o.append(('s_add_u32 m0, %s, %d' % (s(sRING), (tl & 3) * 32768 + j * 1024), None))
            o.append(('buffer_load_dwordx4 %s, %s, %s offen%s lds' % (v(vSRC + j), s(S_W1, 4), s(sO2), PRM_S['wfl']), 't%d' % tl))
        return o
    def emit(x):
        if x[1]: V(x[0], x[1])
        elif callable(x[0]): A(x[0]())
        else: A(x[0])
    for tl in range(2):
        for x in dma(tl): emit(x)
    pass
    A('v_and_b32 v1, 15, v0')
    A('v_lshrrev_b32 v2, 4, v0')
    A('v_xor_b32 v2, v2, v1')
    A('v_lshl_add_u32 v1, v1, 9, %s' % s(sRING))
    for k in range(4):
        A('v_xor_b32 v3, %d, v2' % (4 * k))
        A('v_lshl_add_u32 %s, v3, 4, v1' % v(vRD + k))
    A('s_cmp_lg_u32 %s, 0' % s(sTY))
    A('s_cbranch_scc1 L_w1_b2')
    A('s_mul_i32 %s, %s, %d' % (s(sT0), s(sWAVE), 16 * 528))
    A('s_add_u32 %s, %s, %d' % (s(sT0), s(sT0), R2))
    lexpr(A, v(vR2W), 'v0', [(5, 1, 528), (0, 5, 16)], s(sT0), 'v1')
    lexpr(A, v(vR2R), 'v0', [(0, 4, 528), (4, 2, 16)], R2, 'v1')
    A('s_mul_i32 %s, %s, %d' % (s(sT0), s(sH), WCU))
    A('s_lshl_b32 %s, %s, 12' % (s(sT1), s(sQ)))
    A('s_add_u32 %s, %s, %s' % (s(sT0), s(sT0), s(sT1)))
    lexpr(A, v(vDST), 'v0', [(0, 6, 16)], s(sT0), 'v1')
    for nt in range(1, 4): A('v_add_u32 %s, %d, %s' % (v(vDST + nt), nt * 1024, v(vDST)))
    A('s_mov_b32 %s, 28672' % s(sCS))
    levent(A, 0)
    A(vwait('w2'))
    levent(A, 1)
    for j in range(8): A('ds_write_b128 %s, %s offset:%d' % (v(vR2W), v(64 + 4 * j, 4), j * 1056))
    A('s_waitcnt lgkmcnt(0)')
    A('s_barrier')
    for nt in range(4):
        for ks in range(8):
            A('ds_read_b128 %s, %s offset:%d' % (u(W2F + (nt * 8 + ks) * 4, 4), v(vR2R), nt * 16 * 528 + ks * 64))
            if ks % 4 == 3: A('s_waitcnt lgkmcnt(8)')
    A('s_branch L_w1_c2')
    A.label('L_w1_b2')
    A('s_mul_i32 %s, %s, %d' % (s(sT0), s(sWAVE), 64 * 144))
    A('s_add_u32 %s, %s, %d' % (s(sT0), s(sT0), R2))
    lexpr(A, v(vR2W), 'v0', [(3, 3, 144), (0, 3, 8)], s(sT0), 'v1')
    lexpr(A, v(vR2R), 'v0', [(4, 2, 8 * 144), (2, 2, 144), (0, 2, 8)], R2, 'v1')
    A('s_mul_i32 %s, %s, %d' % (s(sT0), s(sQ), 2 * WCV))
    A('s_lshl_b32 %s, %s, 11' % (s(sT1), s(sH)))
    A('s_add_u32 %s, %s, %s' % (s(sT0), s(sT0), s(sT1)))
    A('s_add_u32 %s, %s, %d' % (s(sT0), s(sT0), WIMGV))
    lexpr(A, v(vDST), 'v0', [(0, 6, 16)], s(sT0), 'v1')
    for nt in range(1, 4): A('v_add_u32 %s, %d, %s' % (v(vDST + nt), (nt & 1) * WCV + (nt >> 1) * 1024, v(vDST)))
    A('s_mov_b32 %s, 32768' % s(sCS))
    A('s_mov_b32 %s, 0x05040100' % s(sT0))
    A('s_mov_b32 %s, 0x07060302' % s(sT1))
    levent(A, 0)
    A(vwait('w2'))
    levent(A, 1)
    for j in range(8):
        r, o = 64 + 4 * j, 96 + 4 * j
        A('v_perm_b32 %s, %s, %s, %s' % (v(o), v(r + 1), v(r), s(sT0)))
        A('v_perm_b32 %s, %s, %s, %s' % (v(o + 1), v(r + 3), v(r + 2), s(sT0)))
        A('v_perm_b32 %s, %s, %s, %s' % (v(o + 2), v(r + 1), v(r), s(sT1)))
        A('v_perm_b32 %s, %s, %s, %s' % (v(o + 3), v(r + 3), v(r + 2), s(sT1)))
        A('ds_write_b64 %s, %s offset:%d' % (v(vR2W), v(o, 2), j * 8 * 144))
        A('ds_write_b64 %s, %s offset:%d' % (v(vR2W), v(o + 2, 2), j * 8 * 144 + 64))
        if j == 4: A('s_waitcnt lgkmcnt(4)')
    A('s_waitcnt lgkmcnt(0)')
    A('s_barrier')
    for nt in range(4):
        for ks in range(8):
            for tt in range(2):
                A('ds_read_b64_tr_b16 %s, %s offset:%d' % (u(W2F + (nt * 8 + ks) * 4 + 2 * tt, 2), v(vR2R), (32 * ks + 4 * tt) * 144 + (nt >> 1) * 64 + (nt & 1) * 32))
            if ks % 2 == 1: A('s_waitcnt lgkmcnt(8)')
    A.label('L_w1_c2')
    V('buffer_atomic_add v12, v11, %s, 0 offen' % s(S_DBG, 4), 'at')
    for x in dma(2): emit(x)
    xg_load(A); vm.extend(['xl'] * 4)
    def reads(tl):
        o = [((lambda tl=tl: vwait('t%d' % tl)), None)]
        for ks in range(8):
            off = (tl & 3) * 32768 + (ks >> 2) * 256
            if off > 65535: reg, off = vRD + 36 + (ks & 3), off - 65536
            else: reg = vRD + (ks & 3)
            o.append(('ds_read_b128 %s, %s offset:%d' % (v(AFR[tl & 1] + 4 * ks, 4), v(reg), off), None))
        return o
    for k in range(4): A('v_add_u32 %s, 0x10000, %s' % (v(vRD + 36 + k), v(vRD + k)))
    def post(i):
        D = DD[i & 1]
        o = [('s_mul_i32 %s, %s, %s' % (s(sT3), s(96 + i), s(sCS)), None)]
        for nt in range(4):
            for T in range(2):
                d = D + (T * 4 + nt) * 4
                for r in range(4): o.append(('v_mul_f32 %s, %s, %s' % (v(d + r), s(sSC), v(d + r)), None))
                pc = PC + (i * 4 + nt) * 4 + 2 * T
                o.append(('v_cvt_pk_bf16_f32 %s, %s, %s' % (v(pc), v(d), v(d + 1)), None))
                o.append(('v_cvt_pk_bf16_f32 %s, %s, %s' % (v(pc + 1), v(d + 2), v(d + 3)), None))
            o.append(('buffer_store_dwordx4 %s, %s, %s, %s offen sc1' % (v(PC + (i * 4 + nt) * 4, 4), v(vDST + nt), s(S_WS, 4), s(sT3)), 'st%d' % i))
        return o
    levent(A, 2)
    for x in reads(0): emit(x)
    A('s_waitcnt lgkmcnt(0)')
    A('s_barrier')
    A('s_lshl_b32 %s, %s, 6' % (s(sT0), s(sRHO)))
    A('s_lshl_b32 %s, %s, 2' % (s(sT1), s(sWAVE)))
    A('s_add_u32 %s, %s, %s' % (s(sT0), s(sT0), s(sT1)))
    A('s_add_u32 %s, %s, %d' % (s(sT0), s(sT0), FLG_W1))
    lane0_addr(A, 'v14', s(sT0))
    q2 = []
    for tl in range(8):
        if tl == 5:
            A(vwait('xs'))
            A('s_barrier')
            A('v_mov_b32 v15, 1')
            V('buffer_atomic_add v15, v11, %s, 0 offen offset:%d' % (s(S_DBG, 4), (D_XG - D_INIT) * 4), 'at')
        if tl == 3:
            A(vwait('xl'))
            V('buffer_store_dwordx4 v[32:35], v48, %s, %s offen sc1' % (s(S_WS, 4), s(sXGD + 1)), 'xs')
            V('buffer_store_dwordx4 v[36:39], v48, %s, %s offen offset:1024 sc1' % (s(S_WS, 4), s(sXGD + 1)), 'xs')
            V('buffer_store_dwordx4 v[40:43], v48, %s, %s offen sc1' % (s(S_WS, 4), s(sXGD)), 'xs')
            V('buffer_store_dwordx4 v[44:47], v48, %s, %s offen offset:1024 sc1' % (s(S_WS, 4), s(sXGD)), 'xs')
        if tl in (4, 6):
            A(vwait('st%d' % (tl // 2 - 2)))
            A('v_mov_b32 v12, %d' % (tl // 2 - 1))
            V('buffer_store_dword v12, v14, %s, 0 offen sc1' % s(S_WS, 4), 'fl')
        if tl == 6:
            for x in q2: emit(x)
            q2 = []
            A('s_cmp_ge_u32 %s, 2' % s(sWAVE))
            A('s_cbranch_scc0 L_w1_last')
            for x in post(2):
                if callable(x[0]): A(x[0]())
                else: A(x[0])
            A('s_branch L_w1_done')
            A.label('L_w1_last')
        A('s_waitcnt lgkmcnt(0)')
        if tl == 4: levent(A, 3)
        D = DD[(tl >> 1) & 1] + (tl & 1) * 16
        q1 = (dma(tl + 3) if tl + 3 < 8 else [])
        qr = reads(tl + 1) if tl < 7 else []
        if tl >= 2 and tl % 2 == 0: q2 = post(tl // 2 - 1)
        n = 0
        for ks in range(8):
            for nt in range(4):
                A('v_mfma_f32_16x16x32_bf16 %s, %s, %s, %s' % (v(D + 4 * nt, 4), v(AFR[tl & 1] + 4 * ks, 4), u(W2F + (nt * 8 + ks) * 4, 4), '0' if ks == 0 else v(D + 4 * nt, 4)))
                n += 1
                def pop(qq):
                    while qq:
                        x = qq.pop(0); emit(x)
                        if not callable(x[0]) and not x[0].startswith('s_'): break
                if n >= 3:
                    pop(q2); pop(q2)
                if n % PRM['wsp'] == 1: pop(q1)
                if n >= 16 and n % 2 == 0: pop(qr)
        for x in q1 + qr: emit(x)
    for x in q2 + post(3): emit(x)
    A(vwait('st2'))
    A('v_mov_b32 v12, 3')
    A('buffer_store_dword v12, v14, %s, 0 offen sc1' % s(S_WS, 4))
    A.label('L_w1_done')
    A('v_mov_b32 v9, 4')
    A('s_waitcnt vmcnt(0)')
    A('buffer_store_dword v9, v14, %s, 0 offen sc1' % s(S_WS, 4))
    event(A, 2)
    levent_flush(A, 4, 9)
    A('s_waitcnt lgkmcnt(0)')
    A('s_barrier')

def phase_w1b(A):
    PC = 192
    lexpr(A, 'v8', 'v0', [(0, 4, 912), (5, 1, 32), (4, 1, 8)], 0, 'v1')
    for i in range(4):
        if i == 3:
            A('s_cmp_ge_u32 %s, 2' % s(sWAVE))
            A('s_cbranch_scc1 L_w1b_s')
        A('s_lshl_b32 %s, %s, 6' % (s(sT0), s(96 + i)))
        for nt in range(4):
            A('s_add_u32 %s, %s, %d' % (s(sT1), s(sT0), nt * 16 * 912))
            A('v_add_u32 v9, %s, v8' % s(sT1))
            pc = PC + (i * 4 + nt) * 4
            A('ds_write2_b32 v9, %s, %s offset0:0 offset1:1' % (v(pc), v(pc + 2)))
            A('ds_write2_b32 v9, %s, %s offset0:4 offset1:5' % (v(pc + 1), v(pc + 3)))
        A('s_waitcnt lgkmcnt(4)')
    A.label('L_w1b_s')
    A('s_cmp_lg_u32 %s, 0' % s(sTY))
    A('s_cbranch_scc1 L_w1b_b')
    for nt in range(4):
        lexpr(A, v(12 + nt), 'v0', [(2, 2, 8 * 912), (0, 2, 912), (4, 2, 16)], (32 * (nt >> 1) + 4 * (nt & 1)) * 912, 'v1')
    A('s_mul_i32 %s, %s, 28672' % (s(sT0), s(sH)))
    A('s_lshl_b32 %s, %s, 11' % (s(sT1), s(sQ)))
    A('s_add_u32 %s, %s, %s' % (s(sT0), s(sT0), s(sT1)))
    lexpr(A, v(vST), 'v0', [(0, 6, 16)], s(sT0), 'v1')
    A('v_add_u32 %s, 1024, %s' % (v(vST + 1), v(vST)))
    A('v_add_u32 %s, 14336, %s' % (v(vST + 2), v(vST)))
    A('v_add_u32 %s, 15360, %s' % (v(vST + 3), v(vST)))
    A('s_mov_b32 %s, %d' % (s(sO3), YX_OFF))
    A('s_branch L_w1b_c')
    A.label('L_w1b_b')
    for nt in range(4):
        lexpr(A, v(12 + nt), 'v0', [(0, 4, 912), (4, 2, 16)], 16 * nt * 912, 'v1')
    A('s_mul_i32 %s, %s, 28672' % (s(sT0), s(sH)))
    A('s_lshl_b32 %s, %s, 12' % (s(sT1), s(sQ)))
    A('s_add_u32 %s, %s, %s' % (s(sT0), s(sT0), s(sT1)))
    lexpr(A, v(vST), 'v0', [(0, 6, 16)], s(sT0), 'v1')
    for nt in range(1, 4): A('v_add_u32 %s, %d, %s' % (v(vST + nt), (nt & 1) * 2048 + (nt >> 1) * 1024, v(vST)))
    A('s_mov_b32 %s, %d' % (s(sO3), U_OFF))
    A.label('L_w1b_c')
    A('s_waitcnt lgkmcnt(0)')
    A('s_barrier')
    for nt in range(4):
        for ks in range(14):
            A('ds_read_b128 %s, %s offset:%d' % (u(WF + (nt * 14 + ks) * 4, 4), v(12 + nt), ks * 64))
            if ks % 7 == 6: A('s_waitcnt lgkmcnt(7)')
    A('s_waitcnt lgkmcnt(0)')
    wait_dbg(A, D_XG, 56, 16)

def phase_w2(A, ty):
    tag = 'AB'[ty]
    D, PK = 16, 48
    vXG, vFL, vFV = 8, 9, 10
    def X(b, t, ks):
        r = 64 + b * 112 + (t * 14 + ks) * 4
        return u(r if r < 256 else r - 256 + 256 + 224, 4)
    A.label('L_w2' + tag)
    lexpr(A, v(vXG), 'v0', [(0, 6, 16)], 0, 'v1')
    A('s_lshl_b32 %s, %s, 2' % (s(sT0), s(sA)))
    A('s_add_u32 %s, %s, %s' % (s(sT0), s(sT0), s(sWAVE)))
    A('s_lshl_b32 %s, %s, 2' % (s(sT0), s(sT0)))
    A('s_add_u32 %s, %s, %d' % (s(sT0), s(sT0), FLG_W2 + ty * 1792))
    A('v_mov_b32 v1, %s' % s(sT0))
    A('v_mov_b32 v2, %d' % OOB)
    A('v_cmp_eq_u32 vcc, 0, v0')
    A('v_cndmask_b32 %s, v2, v1, vcc' % v(vFL))
    A('s_mul_i32 %s, %s, 28672' % (s(sO1), s(sWAVE)))
    A('s_add_u32 %s, %s, %d' % (s(sO1), s(sO1), XG_OFF))
    A('s_mul_i32 %s, %s, %d' % (s(sT0), s(sWAVE), 16 * 28672))
    A('s_add_u32 %s, %s, %s' % (s(sO3), s(sO3), s(sT0)))
    A('s_mov_b32 %s, 0' % s(sCNT))
    def loads(b):
        out = []
        for n in range(28):
            ks, t = n >> 1, n & 1
            off = t * 14336 + ks * 1024
            g = []
            if n % 2 == 0 or True:
                g.append('s_add_u32 %s, %s, %d' % (s(sT2), s(sO1), off & ~4095))
            g.append('buffer_load_dwordx4 %s, %s, %s, %s offen offset:%d sc1' % (X(b, t, ks), v(vXG), s(S_WS, 4), s(sT2), off & 4095))
            out.append(g)
        return out
    for g in loads(0):
        for x in g: A(x)
    A('s_add_u32 %s, %s, %d' % (s(sO1), s(sO1), 4 * 28672))
    for _ in range(5): A('buffer_store_dword v1, v2, %s, 0 offen' % s(S_WS, 4))
    LP = 'L_w2loop' + tag
    A.label(LP)
    for b in range(2):
        ld = loads(1 - b)
        issued = 0
        for ks in range(14):
            A('s_waitcnt vmcnt(%d)' % min(63, 26 - 2 * ks + 5 + issued))
            for t in range(2):
                for nt in range(4):
                    d = v(D + (t * 4 + nt) * 4, 4)
                    w_, x_ = u(WF + (nt * 14 + ks) * 4, 4), X(b, t, ks)
                    a_, b_ = (w_, x_) if ty == 0 else (x_, w_)
                    A('v_mfma_f32_16x16x32_bf16 %s, %s, %s, %s' % (d, a_, b_, '0' if ks == 0 else d))
                    if nt == 1:
                        for x in ld.pop(0): A(x)
                        issued += 1
        A('s_add_u32 %s, %s, %d' % (s(sO1), s(sO1), 4 * 28672))
        A('s_waitcnt vmcnt(28)')
        A('v_mov_b32 %s, %s' % (v(vFV), s(sCNT)))
        A('buffer_store_dword %s, %s, %s, 0 offen sc1' % (v(vFV), v(vFL), s(S_WS, 4)))
        for k in range(4):
            if ty == 0: t, aa = k >> 1, k & 1; d0, d1 = D + (t * 4 + 2 * aa) * 4, D + (t * 4 + 2 * aa + 1) * 4
            else: d0, d1 = D + k * 4, D + (4 + k) * 4
            A('v_cvt_pk_bf16_f32 %s, %s, %s' % (v(PK + 4 * k), v(d0), v(d0 + 1)))
            A('v_cvt_pk_bf16_f32 %s, %s, %s' % (v(PK + 4 * k + 1), v(d0 + 2), v(d0 + 3)))
            A('v_cvt_pk_bf16_f32 %s, %s, %s' % (v(PK + 4 * k + 2), v(d1), v(d1 + 1)))
            A('v_cvt_pk_bf16_f32 %s, %s, %s' % (v(PK + 4 * k + 3), v(d1 + 2), v(d1 + 3)))
            A('buffer_store_dwordx4 %s, %s, %s, %s offen sc1' % (v(PK + 4 * k, 4), v(vST + k), s(S_WS, 4), s(sO3)))
        A('s_add_u32 %s, %s, %d' % (s(sO3), s(sO3), 4 * 16 * 28672))
        A('s_add_u32 %s, %s, 1' % (s(sCNT), s(sCNT)))
    A('s_cmp_lt_u32 %s, 16' % s(sCNT))
    A('s_cbranch_scc1 %s' % LP)
    A('s_waitcnt vmcnt(0)')
    A('v_mov_b32 %s, 16' % v(vFV))
    A('buffer_store_dword %s, %s, %s, 0 offen sc1' % (v(vFV), v(vFL), s(S_WS, 4)))

def wait_flags(A, vaddr, soff, sval, sleep, tmp='v3', coarse=False):
    l = A.newlabel('L_wf')
    A.label(l)
    A('buffer_load_dword %s, %s, %s, %s offen sc1' % (tmp, vaddr, s(S_WS, 4), soff))
    A('s_waitcnt vmcnt(0)')
    A('v_cmp_gt_u32 vcc, %s, %s' % (sval, tmp))
    if coarse:
        fine = A.newlabel('L_wff')
        spin_check(A, l, ['s_cmp_ge_u32 %s, %d' % (s(sSEG), PRM['fine']), 's_cbranch_scc1 %s' % fine, 's_sleep %d' % PRM['zs'], fine + ':', 's_sleep 1'])
    else: spin_check(A, l, ['s_sleep %d' % sleep])

def load_hm(A, M, va, vb, so, mm):
    l = A.newlabel('L_hm'); l2 = A.newlabel('L_hm2'); l3 = A.newlabel('L_hm3')
    ld = ['buffer_load_dwordx4 %s, %s, %s, %s offen offset:%d sc1' % (v(M + 4 * ks, 4), va if ks < 8 else vb, s(S_WS, 4), s(so), (ks & 7) * 512) for ks in range(14)]
    A('s_sub_u32 %s, %s, %d' % (s(sT2), s(so), HM_STEP))
    A('s_cmp_ge_u32 %s, %d' % (s(sSEG), PRM['fine']))
    A('s_cselect_b32 %s, %s, %s' % (s(sT2), s(sT2), s(so)))
    A.label(l)
    A('buffer_load_dword v3, %s, %s, %s offen offset:2560 sc1' % (vb, s(S_WS, 4), s(sT2)))
    A('s_waitcnt vmcnt(0)')
    A('v_cmp_eq_u32 vcc, -1, v3')
    spin_check(A, l, ['s_sleep %d' % PRM['zs']])
    A.label(l2)
    for x in ld: A(x)
    A('s_waitcnt vmcnt(13)')
    A('v_cmp_eq_u32 vcc, -1, %s' % v(M))
    spin_check(A, l2, ['s_waitcnt vmcnt(0)'])
    for ks in range(14):
        A('s_waitcnt vmcnt(%d)' % (13 - ks))
        mm(ks)
        r = M + 4 * ks
        if ks == 0: A('v_max_u32 v3, %s, %s' % (v(r), v(r + 1)))
        else: A('v_max3_u32 v3, v3, %s, %s' % (v(r), v(r + 1)))
        A('v_max3_u32 v3, v3, %s, %s' % (v(r + 2), v(r + 3)))
    A('v_cmp_eq_u32 vcc, -1, v3')
    spin_check(A, l2)

def lane0_addr(A, dst, sreg):
    A('v_mov_b32 v1, %s' % sreg)
    A('v_mov_b32 v2, %d' % OOB)
    A('v_cmp_eq_u32 vcc, 0, v0')
    A('v_cndmask_b32 %s, v2, v1, vcc' % dst)

def phase_z(A):
    D, M = 16, 64
    vHF, vHM, vFL = 8, 9, 10
    lexpr(A, v(vHM), 'v0', [(4, 2, 128), (0, 3, 16)], 0, 'v1')
    A('v_add_u32 v11, 4096, %s' % v(vHM))
    A('s_lshl_b32 %s, %s, 2' % (s(sT0), s(sA)))
    A('s_add_u32 %s, %s, %s' % (s(sT0), s(sT0), s(sWAVE)))
    A('s_lshl_b32 %s, %s, 2' % (s(sT0), s(sT0)))
    A('s_add_u32 %s, %s, %d' % (s(sT0), s(sT0), FLG_Z))
    lane0_addr(A, v(vFL), s(sT0))
    A('s_lshr_b32 %s, %s, 2' % (s(sT0), s(sH)))
    A('s_mul_i32 %s, %s, 28672' % (s(sT0), s(sT0)))
    A('s_and_b32 %s, %s, 3' % (s(sT1), s(sH)))
    A('s_lshl_b32 %s, %s, 8' % (s(sT1), s(sT1)))
    A('s_add_u32 %s, %s, %s' % (s(sT0), s(sT0), s(sT1)))
    A('s_lshl_b32 %s, %s, 12' % (s(sT1), s(sQ)))
    A('s_add_u32 %s, %s, %s' % (s(sT0), s(sT0), s(sT1)))
    lexpr(A, 'v12', 'v0', [(0, 4, 16), (4, 1, 8)], s(sT0), 'v1')
    A('v_cmp_gt_u32 vcc, 32, v0')
    A('v_cndmask_b32 %s, v2, v12, vcc' % v(vST))
    A('s_mov_b32 %s, %s' % (s(sSEG), s(sWAVE)))
    A('s_mov_b32 %s, 0' % s(sCNT))
    A.label('L_zloop')
    A('s_mul_i32 %s, %s, %d' % (s(sO1), s(sSEG), HM_STEP))
    A('s_add_u32 %s, %s, %d' % (s(sO1), s(sO1), HM_OFF))
    A('s_mul_i32 %s, %s, %d' % (s(sO2), s(sSEG), HZ_STEP))
    A('s_add_u32 %s, %s, %d' % (s(sO2), s(sO2), HZ_OFF))
    def mm(ks):
        for nt in range(4):
            d = v(D + 4 * nt, 4)
            A('v_mfma_f32_16x16x32_bf16 %s, %s, %s, %s' % (d, v(M + 4 * ks, 4), u(WF + (nt * 14 + ks) * 4, 4), '0' if ks == 0 else d))
    load_hm(A, M, v(vHM), 'v11', sO1, mm)
    for nt in range(4):
        d = D + 4 * nt
        A('v_cvt_pk_bf16_f32 %s, %s, %s' % (v(d), v(d), v(d + 1)))
        A('v_cvt_pk_bf16_f32 %s, %s, %s' % (v(d + 1), v(d + 2), v(d + 3)))
        A('buffer_store_dwordx2 %s, %s, %s, %s offen offset:%d sc1' % (v(d, 2), v(vST), s(S_WS, 4), s(sO2), (nt & 1) * 2048 + (nt >> 1) * 1024))
    A('s_add_u32 %s, %s, 1' % (s(sCNT), s(sCNT)))
    A('v_mov_b32 v3, %s' % s(sCNT))
    A('s_waitcnt vmcnt(0)')
    A('buffer_store_dword v3, %s, %s, 0 offen sc1' % (v(vFL), s(S_WS, 4)))
    A('s_add_u32 %s, %s, 4' % (s(sSEG), s(sSEG)))
    A('s_cmp_lt_u32 %s, 64' % s(sSEG))
    A('s_cbranch_scc1 L_zloop')

sK = 82
def post_dispatch(A):
    A('s_mov_b32 s101, 0')
    A('s_and_b32 %s, %s, 7' % (s(sK), s(sA)))
    A('s_lshr_b32 %s, %s, 3' % (s(sSEG), s(sA)))
    A('s_cmp_ge_u32 %s, 4' % s(sK))
    A('s_cbranch_scc1 L_s2')

def seg_count(A, dst):
    A('s_lshr_b32 %s, %s, 2' % (dst, s(sSEG)))
    A('s_add_u32 %s, %s, 1' % (dst, dst))
    A('s_and_b32 %s, %s, 3' % (s(sT1), s(sSEG)))
    A('s_lshl_b32 %s, %s, 2' % (s(sT1), s(sT1)))

def phase_s1(A):
    XG_, YX_, HM_, D = 256, 256 + 112, 64, 16
    vL16, vYF, vHF, vHM, vHM2, vDL, vPX, vPM, vFL = 4, 5, 6, 7, 8, 9, 10, 11, 12
    T = 40
    sHD = sH
    A.label('L_s1')
    A('s_lshl_b32 %s, %s, 2' % (s(sHD), s(sK)))
    A('s_add_u32 %s, %s, %s' % (s(sHD), s(sHD), s(sWAVE)))
    lexpr(A, v(vL16), 'v0', [(0, 6, 16)], 0, 'v1')
    A('v_min_u32 v1, 6, v0')
    A('s_mul_i32 %s, %s, 7' % (s(sT0), s(sHD)))
    A('v_add_u32 v1, %s, v1' % s(sT0))
    A('v_lshlrev_b32 v1, 4, v1')
    A('v_add_u32 %s, %d, v1' % (v(vYF), FLG_W2))
    lexpr(A, v(vHM), 'v0', [(4, 2, 128), (0, 3, 16)], 0, 'v1')
    A('v_add_u32 %s, 4096, %s' % (v(vHM2), v(vHM)))
    lexpr(A, v(vDL), 'v0', [(2, 2, 8), (0, 2, 1)], 0, 'v1')
    A('v_lshrrev_b32 v1, 4, v0')
    A('v_lshlrev_b32 v1, 3, v1')
    A('v_sub_u32 %s, %s, v1' % (v(vDL), v(vDL)))
    A('s_lshl_b32 %s, %s, 11' % (s(sT0), s(sHD)))
    A('v_add_u32 %s, %s, %s' % (v(vPX), s(sT0), v(vL16)))
    A('s_lshl_b32 %s, %s, 11' % (s(sT0), s(sK)))
    A('s_lshl_b32 %s, %s, 8' % (s(sT1), s(sWAVE)))
    A('s_add_u32 %s, %s, %s' % (s(sT0), s(sT0), s(sT1)))
    A('s_add_u32 %s, %s, %d' % (s(sT0), s(sT0), 16 * 2048))
    lexpr(A, 'v13', 'v0', [(0, 4, 16), (4, 1, 8)], s(sT0), 'v1')
    A('v_mov_b32 v2, %d' % OOB)
    A('v_cmp_gt_u32 vcc, 32, v0')
    A('v_cndmask_b32 %s, v2, v13, vcc' % v(vPM))
    A('s_lshl_b32 %s, %s, 2' % (s(sT0), s(sHD)))
    A('s_add_u32 %s, %s, %d' % (s(sT0), s(sT0), FLG_P))
    lane0_addr(A, v(vFL), s(sT0))
    A('v_mov_b32 v14, 0x%x' % f2u(-1.0e9 * 1.4426950408889634))
    A('v_mov_b32 v15, 0xff800000')
    A.label('L_s1loop')
    seg_count(A, s(sT0))
    wait_flags(A, v(vYF), s(sT1), s(sT0), 16)
    A('s_mul_i32 %s, %s, 28672' % (s(sO1), s(sSEG)))
    A('s_add_u32 %s, %s, %d' % (s(sO1), s(sO1), XG_OFF))
    A('s_lshl_b32 %s, %s, 4' % (s(sO2), s(sSEG)))
    A('s_add_u32 %s, %s, %s' % (s(sO2), s(sO2), s(sHD)))
    A('s_mul_i32 %s, %s, 28672' % (s(sO2), s(sO2)))
    A('s_add_u32 %s, %s, %d' % (s(sO2), s(sO2), YX_OFF))
    for ks in range(14):
        for base, so in ((XG_, sO1), (YX_, sO2)):
            for t in range(2):
                off = t * 14336 + ks * 1024
                A('s_add_u32 %s, %s, %d' % (s(sT2), s(so), off & ~4095))
                A('buffer_load_dwordx4 %s, %s, %s, %s offen offset:%d sc1' % (u(base + (t * 14 + ks) * 4, 4), v(vL16), s(S_WS, 4), s(sT2), off & 4095))
    def Dr(qt, t): return D + (qt * 3 + t) * 4
    for ks in range(14):
        A('s_waitcnt vmcnt(%d)' % (52 - 4 * ks))
        for qt in range(2):
            for t in range(2):
                d = v(Dr(qt, t), 4)
                A('v_mfma_f32_16x16x32_bf16 %s, %s, %s, %s' % (d, u(XG_ + (t * 14 + ks) * 4, 4), u(YX_ + (qt * 14 + ks) * 4, 4), '0' if ks == 0 else d))
    for qt in range(2):
        for t in range(2):
            for r in range(4):
                A('v_cmp_le_i32 vcc, %d, %s' % (4 * (t - qt) + r, v(vDL)))
                A('v_cndmask_b32 %s, v14, %s, vcc' % (v(Dr(qt, t) + r), v(Dr(qt, t) + r)))
        d = Dr(qt, 0)
        A('v_max3_f32 %s, %s, %s, %s' % (v(T + qt), v(d), v(d + 1), v(d + 2)))
        A('v_max3_f32 %s, %s, %s, %s' % (v(T + qt), v(T + qt), v(d + 3), v(d + 4)))
        A('v_max3_f32 %s, %s, %s, %s' % (v(T + qt), v(T + qt), v(d + 5), v(d + 6)))
        A('v_max_f32 %s, %s, %s' % (v(T + qt), v(T + qt), v(d + 7)))
    A('s_mul_i32 %s, %s, %d' % (s(sO1), s(sSEG), HM_STEP))
    A('s_add_u32 %s, %s, %d' % (s(sO1), s(sO1), HM_OFF))
    A('s_mul_i32 %s, %s, 40960' % (s(sO3), s(sSEG)))
    A('s_add_u32 %s, %s, %d' % (s(sO3), s(sO3), PP_OFF))
    def mm(ks):
        for qt in range(2):
            d = v(Dr(qt, 2), 4)
            A('v_mfma_f32_16x16x32_bf16 %s, %s, %s, %s' % (d, v(HM_ + 4 * ks, 4), u(YX_ + (qt * 14 + ks) * 4, 4), '0' if ks == 0 else d))
    load_hm(A, HM_, v(vHM), v(vHM2), sO1, mm)
    A('v_cmp_gt_u32 vcc, 32, v0')
    def xred(op):
        for sw in ('v_permlane16_swap_b32', 'v_permlane32_swap_b32'):
            for qt in range(2): A('v_mov_b32 %s, %s' % (v(T + 2 + qt), v(T + qt)))
            for qt in range(2): A('%s %s, %s' % (sw, v(T + qt), v(T + 2 + qt)))
            for qt in range(2): A('%s %s, %s, %s' % (op, v(T + qt), v(T + qt), v(T + 2 + qt)))
    for qt in range(2):
        d = Dr(qt, 2)
        for r in range(4): A('v_cndmask_b32 %s, v15, %s, vcc' % (v(d + r), v(d + r)))
        A('v_max3_f32 %s, %s, %s, %s' % (v(T + qt), v(T + qt), v(d), v(d + 1)))
        A('v_max3_f32 %s, %s, %s, %s' % (v(T + qt), v(T + qt), v(d + 2), v(d + 3)))
    xred('v_max_f32')
    for qt in range(2):
        d = Dr(qt, 0)
        for i in range(12): A('v_sub_f32 %s, %s, %s' % (v(d + i), v(d + i), v(T + qt)))
        for i in range(12): A('v_exp_f32 %s, %s' % (v(d + i), v(d + i)))
    for qt in range(2):
        d = Dr(qt, 0)
        A('v_add_f32 %s, %s, %s' % (v(T + qt), v(d), v(d + 1)))
        for i in range(2, 12): A('v_add_f32 %s, %s, %s' % (v(T + qt), v(T + qt), v(d + i)))
    xred('v_add_f32')
    for qt in range(2): A('v_rcp_f32 %s, %s' % (v(T + qt), v(T + qt)))
    for qt in range(2):
        d = Dr(qt, 0); o = T + 4 + 8 * qt
        for i in range(12): A('v_mul_f32 %s, %s, %s' % (v(d + i), v(d + i), v(T + qt)))
        for i in range(6): A('v_cvt_pk_bf16_f32 %s, %s, %s' % (v(o + i), v(d + 2 * i), v(d + 2 * i + 1)))
        A('buffer_store_dwordx4 %s, %s, %s, %s offen offset:%d sc1' % (v(o, 4), v(vPX), s(S_WS, 4), s(sO3), qt * 1024))
        A('buffer_store_dwordx2 %s, %s, %s, %s offen offset:%d sc1' % (v(o + 4, 2), v(vPM), s(S_WS, 4), s(sO3), qt * 1024))
    A('v_mov_b32 v3, 1')
    A('s_lshl_b32 %s, %s, 6' % (s(sT0), s(sSEG)))
    A('s_waitcnt vmcnt(0)')
    A('buffer_store_dword v3, %s, %s, %s offen sc1' % (v(vFL), s(S_WS, 4), s(sT0)))
    event(A, 9, dyn='s101')
    A('s_add_u32 %s, %s, 14' % (s(sSEG), s(sSEG)))
    A('s_cmp_lt_u32 %s, 64' % s(sSEG))
    A('s_cbranch_scc1 L_s1loop')

def phase_s2(A):
    U_, Z_, P_, D = 256, 64, 128, 16
    vV, vGF, vPF, vP, vO, vO2 = 4, 5, 6, 7, 8, 9
    A.label('L_s2')
    A('s_sub_u32 %s, %s, 4' % (s(sK), s(sK)))
    A('s_lshl_b32 %s, %s, 1' % (s(sT3), s(sK)))
    A('s_lshr_b32 %s, %s, 1' % (s(sT0), s(sWAVE)))
    A('s_add_u32 %s, %s, %s' % (s(sT3), s(sT3), s(sT0)))
    A('s_cmp_ge_u32 %s, 7' % s(sT3))
    A('s_cbranch_scc1 L_exit')
    A('s_lshl_b32 %s, %s, 12' % (s(sT0), s(sT3)))
    lexpr(A, v(vV), 'v0', [(0, 6, 16)], s(sT0), 'v1')
    A('s_lshl_b32 %s, %s, 4' % (s(sT0), s(sT3)))
    lexpr(A, v(vGF), 'v0', [(0, 4, 112)], s(sT0), 'v1')
    lexpr(A, v(vPF), 'v0', [(0, 4, 4)], FLG_P, 'v1')
    A('s_and_b32 %s, %s, 1' % (s(sT4), s(sWAVE)))
    A('s_lshl_b32 %s, %s, 10' % (s(sT0), s(sT4)))
    lexpr(A, v(vP), 'v0', [(0, 6, 16)], s(sT0), 'v1')
    A('s_mul_i32 %s, %s, %d' % (s(sT0), s(sT4), 4 * 1792))
    A('s_lshl_b32 %s, %s, 7' % (s(sT1), s(sT3)))
    A('s_add_u32 %s, %s, %s' % (s(sT0), s(sT0), s(sT1)))
    A('s_add_u32 %s, %s, 896' % (s(sT0), s(sT0)))
    lexpr(A, v(vO), 'v0', [(2, 2, 8 * 1792), (0, 2, 1792), (4, 2, 16)], s(sT0), 'v1')
    A.label('L_s2loop')
    seg_count(A, s(sCNT))
    A('s_add_u32 %s, %s, %d' % (s(sO3), s(sT1), FLG_Z))
    A('s_add_u32 %s, %s, %d' % (s(sT1), s(sT1), FLG_W2 + 1792))
    wait_flags(A, v(vGF), s(sT1), s(sCNT), 16)
    A('s_mul_i32 %s, %s, %d' % (s(sO1), s(sSEG), 16 * 28672))
    A('s_add_u32 %s, %s, %d' % (s(sO1), s(sO1), U_OFF))
    for c in range(16):
        for tl in range(4):
            A('buffer_load_dwordx4 %s, %s, %s, %s offen offset:%d sc1' % (u(U_ + (c * 4 + tl) * 4, 4), v(vV), s(S_WS, 4), s(sO1), tl * 1024))
        A('s_add_u32 %s, %s, 28672' % (s(sO1), s(sO1)))
        if c == 11: A('s_waitcnt vmcnt(32)')
    A('s_mul_i32 %s, %s, %d' % (s(sT2), s(sSEG), HM_STEP))
    A('s_add_u32 %s, %s, %d' % (s(sT2), s(sT2), HM_OFF))
    A('v_mov_b32 v10, 0')
    lp = A.newlabel('L_s2p'); A.label(lp)
    A('buffer_load_dword v3, v10, %s, %s offen sc1' % (s(S_WS, 4), s(sT2)))
    A('s_waitcnt vmcnt(0)')
    A('v_cmp_eq_u32 vcc, -1, v3')
    spin_check(A, lp, ['s_sleep %d' % PRM['zs']])
    wait_flags(A, v(vGF), s(sO3), s(sCNT), 2)
    A('s_mul_i32 %s, %s, %d' % (s(sO1), s(sSEG), HZ_STEP))
    A('s_add_u32 %s, %s, %d' % (s(sO1), s(sO1), HZ_OFF))
    for c in range(4):
        for tl in range(4):
            A('buffer_load_dwordx4 %s, %s, %s, %s offen offset:%d sc1' % (v(Z_ + (c * 4 + tl) * 4, 4), v(vV), s(S_WS, 4), s(sO1), tl * 1024))
        A('s_add_u32 %s, %s, 28672' % (s(sO1), s(sO1)))
    A('s_lshl_b32 %s, %s, 6' % (s(sT0), s(sSEG)))
    A('s_mul_i32 %s, %s, 40960' % (s(sO2), s(sSEG)))
    A('s_add_u32 %s, %s, %d' % (s(sO2), s(sO2), PP_OFF))
    wait_flags(A, v(vPF), s(sT0), '1', 1)
    for c in range(20):
        A('buffer_load_dwordx4 %s, %s, %s, %s offen offset:%d sc1' % (v(P_ + 4 * c, 4), v(vP), s(S_WS, 4), s(sO2), (c & 1) * 2048))
        if c & 1: A('s_add_u32 %s, %s, 4096' % (s(sO2), s(sO2)))
    for c in range(20):
        A('s_waitcnt vmcnt(%d)' % (19 - c))
        for tl in range(4):
            d = v(D + 4 * tl, 4)
            a_ = u(U_ + (c * 4 + tl) * 4, 4) if c < 16 else v(Z_ + ((c - 16) * 4 + tl) * 4, 4)
            A('v_mfma_f32_16x16x32_bf16 %s, %s, %s, %s' % (d, a_, v(P_ + 4 * c, 4), '0' if c == 0 else d))
    A('s_mul_i32 %s, %s, %d' % (s(sO1), s(sSEG), 32 * 1792))
    for b in range(2):
        e, o, pk = D + 8 * b, D + 8 * b + 4, 32 + 4 * b
        for r in range(4): A('v_cvt_pk_bf16_f32 %s, %s, %s' % (v(pk + r), v(e + r), v(o + r)))
        A('buffer_store_dwordx4 %s, %s, %s, %s offen offset:%d' % (v(pk, 4), v(vO), s(S_OUT, 4), s(sO1), 64 * b))
    event(A, 9, dyn='s101')
    A('s_add_u32 %s, %s, 14' % (s(sSEG), s(sSEG)))
    A('s_cmp_lt_u32 %s, 64' % s(sSEG))
    A('s_cbranch_scc1 L_s2loop')

LOG2E = 1.4426950408889634
def phase_a1(A):
    ST = 208
    def WQ(x, tl, ks):
        i = ((x * 2 + tl) * 14 + ks) * 4
        return a(i, 4) if i < 256 else v(176 + i - 256, 4)
    def WQh(x, tl, ks, t):
        i = ((x * 2 + tl) * 14 + ks) * 4 + 2 * t
        return a(i, 2) if i < 256 else v(176 + i - 256, 2)
    X_, D, KV, PQ = 120, 16, 64, 80
    T = 104
    vG, vW, vR, vR2, vX = 4, 5, 6, 7, 8
    sBLK, sI = sSEG, sCNT
    A('s_barrier')
    lexpr(A, v(vG), 'v0', [(2, 4, 2688), (0, 2, 16)], 0, 'v1')
    A('s_mul_i32 %s, %s, %d' % (s(sO1), s(sWAVE), 112 * 2688))
    A('s_mul_i32 %s, %s, 56' % (s(sT0), s(sH)))
    A('s_add_u32 %s, %s, %s' % (s(sO1), s(sO1), s(sT0)))
    for j in range(21):
        A('buffer_load_dwordx4 %s, %s, %s, %s offen offset:%d' % (v(16 + 4 * j, 4), v(vG), s(S_AW, 4), s(sO1), (j % 3) * 896))
        if j % 3 == 2: A('s_add_u32 %s, %s, %d' % (s(sO1), s(sO1), 16 * 2688))
    A('s_mul_i32 %s, %s, %d' % (s(sT0), s(sWAVE), 112 * ST))
    lexpr(A, v(vW), 'v0', [(2, 4, ST), (0, 2, 16)], s(sT0), 'v1')
    for j in range(21):
        A('s_waitcnt vmcnt(%d)' % (20 - j))
        A('ds_write_b128 %s, %s offset:%d' % (v(vW), v(16 + 4 * j, 4), (j // 3) * 16 * ST + (j % 3) * 64))
        if j % 6 == 5: A('s_waitcnt lgkmcnt(6)')
    lexpr(A, v(vR), 'v0', [(4, 2, 8 * ST), (2, 2, ST), (0, 2, 16)], 0, 'v1')
    A('v_add_u32 %s, %d, %s' % (v(vR2), 7 * 32 * ST, v(vR)))
    A('s_waitcnt lgkmcnt(0)')
    A('s_barrier')
    n = 0
    for x in range(3):
        for tl in range(2):
            for ks in range(14):
                for t in range(2):
                    A('ds_read_b64_tr_b16 %s, %s offset:%d' % (WQh(x, tl, ks, t), v(vR if ks < 7 else vR2), (32 * (ks % 7) + 4 * t) * ST + x * 64 + tl * 8))
                    n += 1
                    if n % 6 == 0: A('s_waitcnt lgkmcnt(6)')
    lexpr(A, v(vX), 'v0', [(0, 4, 896), (4, 2, 16)], 0, 'v1')
    A('v_add_u32 v9, %d, %s' % (16 * 896, v(vX)))
    for i in range(16): A('v_mov_b32 %s, 0' % v(KV + i))
    A('s_mov_b32 %s, 0x%x' % (s(sSC), f2u(LOG2E)))
    A('s_mov_b32 %s, 0x%x' % (s(sO3), f2u(1e-6)))
    A('v_and_b32 v1, 15, v0')
    A('v_cmp_le_u32 s[96:97], 12, v1')
    A('v_cmp_eq_u32 s[98:99], 12, v1')
    A('v_cmp_le_u32 s[100:101], 48, v0')
    A('s_lshl_b32 %s, %s, 2' % (s(sBLK), s(sQ)))
    A('s_add_u32 %s, %s, %s' % (s(sBLK), s(sBLK), s(sWAVE)))
    A('s_waitcnt lgkmcnt(0)')
    def phi(r):
        A('v_mul_f32 %s, %s, %s' % (v(T), s(sSC), v(r)))
        A('v_exp_f32 %s, %s' % (v(T), v(T)))
        A('v_cmp_lt_f32 vcc, 0, %s' % v(r))
        A('v_add_f32 %s, 1.0, %s' % (v(r), v(r)))
        A('v_cndmask_b32 %s, %s, %s, vcc' % (v(r), v(T), v(r)))
        A('v_add_f32 %s, %s, %s' % (v(r), s(sO3), v(r)))
    def Dk(x, t, tl): return D + (((x - 1) * 2 + tl) * 2 + t) * 4
    def Dq(t, tl): return D + 32 + (t * 2 + tl) * 4
    A('s_mov_b32 %s, 0' % s(sI))
    A.label('L_a1loop')
    A('s_mul_i32 %s, %s, %d' % (s(sO1), s(sBLK), 32 * 896))
    for hf in range(2):
        for k7 in range(7):
            for t in range(2):
                A('buffer_load_dwordx4 %s, %s, %s, %s offen offset:%d' % (v(X_ + (k7 * 2 + t) * 4, 4), v(vX) if t == 0 else 'v9', s(S_AX, 4), s(sO1), (7 * hf + k7) * 64))
        for k7 in range(7):
            ks = 7 * hf + k7
            A('s_waitcnt vmcnt(%d)' % (12 - 2 * k7))
            for t in range(2):
                xf = v(X_ + (k7 * 2 + t) * 4, 4)
                for tl in range(2):
                    for x in (1, 2):
                        d = v(Dk(x, t, tl), 4)
                        A('v_mfma_f32_16x16x32_bf16 %s, %s, %s, %s' % (d, xf, WQ(x, tl, ks), '0' if ks == 0 else d))
                    d = v(Dq(t, tl), 4)
                    A('v_mfma_f32_16x16x32_bf16 %s, %s, %s, %s' % (d, WQ(0, tl, ks), xf, '0' if ks == 0 else d))
        A('s_nop 7')
    for tl in range(2):
        b = Dk(1, 0, tl)
        for i in range(8):
            phi(b + i)
            if tl == 1: A('v_cndmask_b32 %s, %s, 0, s[96:97]' % (v(b + i), v(b + i)))
        for i in range(4): A('v_cvt_pk_bf16_f32 %s, %s, %s' % (v(b + i), v(b + 2 * i), v(b + 2 * i + 1)))
        b = Dk(2, 0, tl)
        if tl == 1:
            for i in range(8):
                A('v_cndmask_b32 %s, %s, 0, s[96:97]' % (v(b + i), v(b + i)))
                A('v_cndmask_b32 %s, %s, 1.0, s[98:99]' % (v(b + i), v(b + i)))
        for i in range(4): A('v_cvt_pk_bf16_f32 %s, %s, %s' % (v(b + i), v(b + 2 * i), v(b + 2 * i + 1)))
    for dt in range(2):
        for et in range(2):
            d = v(KV + (dt * 2 + et) * 4, 4)
            A('v_mfma_f32_16x16x32_bf16 %s, %s, %s, %s' % (d, v(Dk(1, 0, dt), 4), v(Dk(2, 0, et), 4), d))
    for i in range(15, -1, -1): A('v_mov_b32 %s, %s' % (v(PQ + 8 + i), v(PQ + i)))
    for t in range(2):
        b = Dq(t, 0)
        for i in range(8):
            phi(b + i)
            if i >= 4: A('v_cndmask_b32 %s, %s, 0, s[100:101]' % (v(b + i), v(b + i)))
        for i in range(4): A('v_cvt_pk_bf16_f32 %s, %s, %s' % (v(PQ + 4 * t + i), v(b + 2 * i), v(b + 2 * i + 1)))
    A('s_add_u32 %s, %s, 1' % (s(sI), s(sI)))
    A('s_add_u32 %s, %s, 28' % (s(sBLK), s(sBLK)))
    A('s_cmp_lt_u32 %s, 64' % s(sBLK))
    A('s_cbranch_scc1 L_a1loop')
    LK = 98304
    A('s_lshl_b32 %s, %s, 12' % (s(sT0), s(sWAVE)))
    A('s_add_u32 %s, %s, %d' % (s(sT0), s(sT0), LK))
    lexpr(A, v(vW), 'v0', [(0, 6, 16)], s(sT0), 'v1')
    for j in range(4): A('ds_write_b128 %s, %s offset:%d' % (v(vW), v(KV + 4 * j, 4), j * 1024))
    A('s_lshl_b32 %s, %s, 10' % (s(sT0), s(sWAVE)))
    lexpr(A, v(vR), 'v0', [(0, 6, 16)], s(sT0), 'v1')
    A('v_add_u32 %s, %d, %s' % (v(vR2), LK, v(vR)))
    A('s_waitcnt lgkmcnt(0)')
    A('s_barrier')
    for j in range(4): A('ds_read_b128 %s, %s offset:%d' % (v(D + 4 * j, 4), v(vR2), j * 4096))
    A('s_waitcnt lgkmcnt(0)')
    for r in range(4):
        A('v_add_f32 %s, %s, %s' % (v(D + r), v(D + r), v(D + 4 + r)))
        A('v_add_f32 %s, %s, %s' % (v(D + 8 + r), v(D + 8 + r), v(D + 12 + r)))
        A('v_add_f32 %s, %s, %s' % (v(D + r), v(D + r), v(D + 8 + r)))
    A('s_lshl_b32 %s, %s, 12' % (s(sT0), s(sA)))
    A('s_add_u32 %s, %s, %d' % (s(sT0), s(sT0), KVP_OFF))
    A('buffer_store_dwordx4 %s, %s, %s, %s offen sc1' % (v(D, 4), v(vR), s(S_WS, 4), s(sT0)))
    A('s_lshl_b32 %s, %s, 6' % (s(sT0), s(sA)))
    A('s_lshl_b32 %s, %s, 2' % (s(sT1), s(sWAVE)))
    A('s_add_u32 %s, %s, %s' % (s(sT0), s(sT0), s(sT1)))
    A('s_add_u32 %s, %s, %d' % (s(sT0), s(sT0), FLG_KV))
    lane0_addr(A, 'v10', s(sT0))
    A('v_mov_b32 v3, 1')
    A('s_waitcnt vmcnt(0)')
    A('buffer_store_dword v3, v10, %s, 0 offen sc1' % s(S_WS, 4))
    A('v_lshrrev_b32 v1, 2, v0')
    A('v_min_u32 v1, 6, v1')
    A('v_lshlrev_b32 v1, 6, v1')
    A('v_and_b32 v2, 3, v0')
    A('v_lshl_add_u32 v10, v2, 2, v1')
    A('s_mul_i32 %s, %s, %d' % (s(sT0), s(sH), 7 * 64))
    A('s_add_u32 %s, %s, %d' % (s(sT0), s(sT0), FLG_KV))
    wait_flags(A, 'v10', s(sT0), '1', 8)
    lexpr(A, v(vG), 'v0', [(0, 6, 16)], 0, 'v1')
    lexpr(A, v(vW), 'v0', [(4, 2, 256)], 12 * 16, 'v1')
    A('s_mul_i32 %s, %s, %d' % (s(sO1), s(sH), 7 * 4096))
    A('s_add_u32 %s, %s, %d' % (s(sO1), s(sO1), KVP_OFF))
    GB = 104
    def gr(q): return (GB + 24 * q) if q < 6 else D
    for q in range(7):
        for j in range(4):
            A('buffer_load_dwordx4 %s, %s, %s, %s offen offset:%d sc1' % (v(gr(q) + 4 * j, 4), v(vG), s(S_WS, 4), s(sO1), j * 1024))
        for dt in range(2):
            A('buffer_load_dwordx4 %s, %s, %s, %s offen offset:%d sc1' % (v(gr(q) + 16 + 4 * dt, 4), v(vW), s(S_WS, 4), s(sO1), (dt * 2 + 1) * 1024))
        A('s_add_u32 %s, %s, 4096' % (s(sO1), s(sO1)))
    A('s_waitcnt vmcnt(0)')
    for q in range(6):
        for i in range(24): A('v_add_f32 %s, %s, %s' % (v(D + i), v(D + i), v(gr(q) + i)))
    for et in range(2):
        for dt in range(2):
            b = D + (dt * 2 + et) * 4
            A('v_cvt_pk_bf16_f32 %s, %s, %s' % (v(KV + 4 * et + 2 * dt), v(b), v(b + 1)))
            A('v_cvt_pk_bf16_f32 %s, %s, %s' % (v(KV + 4 * et + 2 * dt + 1), v(b + 2), v(b + 3)))
    for i in range(4): A('v_cvt_pk_bf16_f32 %s, %s, %s' % (v(KV + 8 + i), v(D + 16 + 2 * i), v(D + 17 + 2 * i)))
    A('s_lshl_b32 %s, %s, 10' % (s(sT0), s(sH)))
    lexpr(A, v(vR), 'v0', [(0, 6, 16)], s(sT0), 'v1')
    A.label('L_a1o')
    A('s_sub_u32 %s, %s, 28' % (s(sBLK), s(sBLK)))
    A('s_lshl_b32 %s, %s, 15' % (s(sO1), s(sBLK)))
    A('s_add_u32 %s, %s, %d' % (s(sO1), s(sO1), OI_OFF))
    A('s_add_u32 %s, %s, 16384' % (s(sO2), s(sO1)))
    for t in range(2):
        b = D + 12 * t
        for j in range(3):
            A('v_mfma_f32_16x16x32_bf16 %s, %s, %s, 0' % (v(b + 4 * j, 4), v(KV + 4 * j, 4), v(PQ + 4 * t, 4)))
    for t in range(2):
        b = D + 12 * t; o = D + 24 + 4 * t
        A('v_add_f32 %s, %s, %s' % (v(b + 8), s(sO3), v(b + 8)))
        A('v_rcp_f32 %s, %s' % (v(b + 8), v(b + 8)))
        for i in range(8):
            A('v_mul_f32 %s, %s, %s' % (v(b + i), v(b + i), v(b + 8)))
            if i >= 4: A('v_cndmask_b32 %s, %s, 0, s[100:101]' % (v(b + i), v(b + i)))
        for i in range(4): A('v_cvt_pk_bf16_f32 %s, %s, %s' % (v(o + i), v(b + 2 * i), v(b + 2 * i + 1)))
        A('buffer_store_dwordx4 %s, %s, %s, %s offen sc1' % (v(o, 4), v(vR), s(S_WS, 4), s(sO1 + t)))
    for i in range(16): A('v_mov_b32 %s, %s' % (v(PQ + i), v(PQ + 8 + i)))
    A('s_sub_u32 %s, %s, 1' % (s(sI), s(sI)))
    A('s_cmp_lg_u32 %s, 0' % s(sI))
    A('s_cbranch_scc1 L_a1o')
    A('s_lshl_b32 %s, %s, 2' % (s(sT0), s(sA)))
    A('s_add_u32 %s, %s, %s' % (s(sT0), s(sT0), s(sWAVE)))
    A('s_lshl_b32 %s, %s, 2' % (s(sT0), s(sT0)))
    A('s_add_u32 %s, %s, %d' % (s(sT0), s(sT0), FLG_O))
    lane0_addr(A, 'v10', s(sT0))
    A('v_mov_b32 v3, 1')
    A('s_waitcnt vmcnt(0)')
    A('buffer_store_dword v3, v10, %s, 0 offen sc1' % s(S_WS, 4))

def phase_a2(A):
    ST = 144
    O_, D = 64, 16
    vG, vW, vR, vR2, vO = 4, 5, 6, 7, 8
    A('s_barrier')
    lexpr(A, v(vG), 'v0', [(3, 3, 896), (0, 3, 16)], 0, 'v1')
    A('s_mul_i32 %s, %s, %d' % (s(sO1), s(sWAVE), 112 * 896))
    A('s_lshl_b32 %s, %s, 7' % (s(sT0), s(sQ)))
    A('s_add_u32 %s, %s, %s' % (s(sO1), s(sO1), s(sT0)))
    for j in range(15):
        A('buffer_load_dwordx4 %s, %s, %s, %s offen' % (v(64 + 4 * j, 4), v(vG), s(S_AO, 4), s(sO1)))
        A('s_add_u32 %s, %s, %d' % (s(sO1), s(sO1), 8 * 896))
    A('s_mul_i32 %s, %s, %d' % (s(sT0), s(sWAVE), 112 * ST))
    lexpr(A, v(vW), 'v0', [(3, 3, ST), (0, 3, 16)], s(sT0), 'v1')
    for j in range(15):
        A('s_waitcnt vmcnt(%d)' % (14 - j))
        A('ds_write_b128 %s, %s offset:%d' % (v(vW), v(64 + 4 * j, 4), j * 8 * ST))
        if j % 6 == 5: A('s_waitcnt lgkmcnt(6)')
    lexpr(A, v(vR), 'v0', [(4, 2, 8 * ST), (2, 2, ST), (0, 2, 16)], 0, 'v1')
    A('s_waitcnt lgkmcnt(0)')
    A('s_barrier')
    n = 0
    for tl in range(4):
        for hh in range(16):
            for t in range(2):
                A('ds_read_b64_tr_b16 %s, %s offset:%d' % (a((tl * 16 + hh) * 4 + 2 * t, 2), v(vR), (28 * hh + 4 * t) * ST + (tl >> 1) * 64 + (tl & 1) * 8))
                n += 1
                if n % 6 == 0: A('s_waitcnt lgkmcnt(6)')
    A('s_lshl_b32 %s, %s, 2' % (s(sSEG), s(sH)))
    A('s_add_u32 %s, %s, %s' % (s(sSEG), s(sSEG), s(sWAVE)))
    A('s_mov_b32 %s, %s' % (s(sT0), s(sSEG)))
    for _ in range(2):
        A('s_sub_u32 %s, %s, 28' % (s(sT1), s(sT0)))
        A('s_cmp_ge_u32 %s, 28' % s(sT0))
        A('s_cselect_b32 %s, %s, %s' % (s(sT0), s(sT1), s(sT0)))
    A('s_lshl_b32 %s, %s, 2' % (s(sT0), s(sT0)))
    A('s_add_u32 %s, %s, %d' % (s(sT0), s(sT0), FLG_O))
    lexpr(A, 'v10', 'v0', [(0, 4, 7 * 16)], 0, 'v1')
    wait_flags(A, 'v10', s(sT0), '1', 8)
    lexpr(A, v(vG), 'v0', [(0, 6, 16)], 0, 'v1')
    A('s_lshl_b32 %s, %s, 15' % (s(sO1), s(sSEG)))
    A('s_add_u32 %s, %s, %d' % (s(sO1), s(sO1), OI_OFF))
    for i in range(32):
        A('buffer_load_dwordx4 %s, %s, %s, %s offen offset:%d sc1' % (v(O_ + 4 * i, 4), v(vG), s(S_WS, 4), s(sO1), (i & 3) * 1024))
        if i & 3 == 3: A('s_add_u32 %s, %s, 4096' % (s(sO1), s(sO1)))
    A('s_lshl_b32 %s, %s, 7' % (s(sT0), s(sQ)))
    lexpr(A, v(vO), 'v0', [(0, 4, 1792), (4, 2, 16)], s(sT0), 'v1')
    A('s_mul_i32 %s, %s, %d' % (s(sO1), s(sSEG), 32 * 1792))
    A('s_add_u32 %s, %s, %d' % (s(sO2), s(sO1), 16 * 1792))
    A('s_waitcnt lgkmcnt(0)')
    for t in range(2):
        for hh in range(16):
            A('s_waitcnt vmcnt(%d)' % (31 - (t * 16 + hh)))
            for tl in range(4):
                d = v(D + (t * 4 + tl) * 4, 4)
                A('v_mfma_f32_16x16x32_bf16 %s, %s, %s, %s' % (d, a((tl * 16 + hh) * 4, 4), v(O_ + (t * 16 + hh) * 4, 4), '0' if hh == 0 else d))
    for t in range(2):
        for aa in range(2):
            b = D + (t * 4 + 2 * aa) * 4; o = 48 + (t * 2 + aa) * 4
            for i in range(4): A('v_cvt_pk_bf16_f32 %s, %s, %s' % (v(o + i), v(b + 2 * i), v(b + 2 * i + 1)))
            A('buffer_store_dwordx4 %s, %s, %s, %s offen offset:%d' % (v(o, 4), v(vO), s(S_OUT, 4), s(sO1 + t), aa * 64))
```

```python
import sys
from asmgen import *
from layout import *

NAME = 'concat_heads__linear_attn_block__memory_aug_recurrent_mem_tr__prompt'
HDR = open('cdna_kernels/%s.s.ref' % NAME).read().split('; Override launch')[0]

S_WS, S_BX, S_M0, S_DBG, S_OUT = 8, 12, 16, 20, 24
S_WQ, S_WK, S_WV, S_WO, S_AX, S_AW, S_AO = 28, 32, 36, 40, 44, 48, 52
sWAVE, sXCC, sROLE, sSTEP, sSPIN = 60, 61, 62, 63, 64
sT0, sT1, sT2, sT3, sT4, sT5 = 65, 66, 67, 68, 69, 70
sMEMRD, sPWR, sPRST, sXOFF, sPRD, sMEMWR, sMEMRST, sUOFF, sHM, sHZ, sXPF = 71, 72, 73, 74, 75, 76, 77, 78, 79, 80, 81
sHMRD, sHPRD, sHWR, sSTEP1 = 82, 83, 84, 85
sXLDS, sBTOG2 = 86, 87

L_MEM = 0
L_YT = 8192
L_SP = 16384
L_OP = 16384
L_DUMP = 20480
L_TICKET = 163832
LDS_BYTES = 160 * 1024

SPIN_MAX = 4000000
PRM_S = dict(wfl='')
PRM = dict(cpf=0, xw=0, wxl=1, wxs=5, wfn=14, npre=9, xe=2, xd=0, fsm=1, plt=3, xg=0, adel=0, lws=16, epf=0, wsp=4, wrot=2, xm=0, xm1=8, ht=9, sb=9, sc=15, ba=27, bb=38, vf=11, xb=1, vh=12, fine=61, lb=6, w0=2, w1=9, direct=0, ko=3, msc=1, c0=3, cg=3, hn=15, nb1=4, uev=2, f0b=1, vdel=5, sdel=0, pdel=0, hs=99, hd=3, hv0=0, nrep=4, k1=4, k2=10, pla=10, pnu=0, zs=12)

def srd(A, d, ptr_s, nbytes):
    A('s_mov_b32 %s, %s' % (s(d), s(ptr_s)))
    A('s_and_b32 %s, %s, 0xffff' % (s(d + 1), s(ptr_s + 1)))
    A('s_mov_b32 %s, %d' % (s(d + 2), nbytes))
    A('s_mov_b32 %s, 0x00020000' % s(d + 3))

def entry(A, early=None):
    A('s_cmp_ge_u32 s2, 256')
    A('s_cbranch_scc1 L_exit')
    if G.events: A('s_memrealtime s[56:57]')
    A('s_load_dwordx16 s[64:79], s[0:1], 0')
    A('s_load_dwordx8 s[80:87], s[0:1], 64')
    A('s_load_dwordx2 s[88:89], s[0:1], 96')
    if PRM['cpf']:
        A('s_getpc_b64 s[4:5]')
        A.label('L_pc')
        A('s_lshr_b32 s6, s2, 3')
        A('s_and_b32 s6, s6, 3')
        A('s_lshl_b32 s6, s6, 8')
        A('v_add_u32 v1, s6, v0')
        A('v_lshlrev_b32 v1, 7, v1')
        A('v_min_u32 v1, L_exit-L_pc, v1')
        A('global_load_dword v251, v1, s[4:5]')
    A('v_lshrrev_b32 v1, 6, v0')
    A('v_and_b32 v0, 63, v0')
    A('s_getreg_b32 %s, hwreg(HW_REG_XCC_ID)' % s(sXCC))
    A('v_readfirstlane_b32 %s, v1' % s(sWAVE))
    A('s_and_b32 %s, %s, 7' % (s(sXCC), s(sXCC)))
    A('s_waitcnt lgkmcnt(0)')
    srd(A, S_AX, 64, 1835008)
    srd(A, S_AW, 66, 448 * 1344 * 2)
    srd(A, S_AO, 68, 448 * 448 * 2)
    srd(A, S_BX, 70, 1835008)
    srd(A, S_M0, 72, 7168)
    srd(A, S_WQ, 74, 3670016)
    srd(A, S_WK, 76, 3670016)
    srd(A, S_WV, 78, 3670016)
    srd(A, S_WO, 80, 3670016)
    srd(A, S_OUT, 84, 2048 * 896 * 2)
    srd(A, S_DBG, 86, 256)
    srd(A, S_WS, 88, WS_BYTES)
    A('v_mov_b32 v2, %d' % L_TICKET)
    A('s_cmp_lg_u32 %s, 0' % s(sWAVE))
    A('s_cbranch_scc1 L_tk_wait')
    A('s_lshr_b32 %s, %s, 1' % (s(sT0), s(sXCC)))
    A('s_lshl_b32 %s, %s, 6' % (s(sT0), s(sT0)))
    A('s_and_b32 %s, %s, 1' % (s(sT1), s(sXCC)))
    A('s_lshl_b32 %s, %s, 2' % (s(sT1), s(sT1)))
    A('s_add_u32 %s, %s, %s' % (s(sT0), s(sT0), s(sT1)))
    A('v_mov_b32 v3, %s' % s(sT0))
    A('v_mov_b32 v4, 1')
    A('s_mov_b64 exec, 1')
    A('buffer_atomic_add v4, v3, %s, 0 offen sc0' % s(S_DBG, 4))
    A('s_mov_b64 exec, -1')
    A.label('L_tk_wait')
    if early: early(A)
    A('s_cmp_lg_u32 %s, 0' % s(sWAVE))
    A('s_cbranch_scc1 L_tk_wait2')
    A('s_cmp_eq_u32 %s, 0' % s(sXCC))
    A('s_cbranch_scc0 L_tk_w3')
    A('s_waitcnt vmcnt(0)')
    A.label('L_tk_w3')
    A('s_waitcnt vmcnt(%d)' % (2 if early else 0))
    A('s_mov_b64 exec, 1')
    A('ds_write_b32 v2, v4')
    A('s_mov_b64 exec, -1')
    A('s_waitcnt lgkmcnt(0)')
    A.label('L_tk_wait2')
    A('s_barrier')
    A('ds_read_b32 v3, v2')
    A('s_waitcnt lgkmcnt(0)')
    A('v_readfirstlane_b32 %s, v3' % s(sROLE))
    A('s_cmp_ge_u32 %s, 32' % s(sROLE))
    A('s_cbranch_scc1 L_exit')
    if G.events:
        event(A, 1)
        A('v_mov_b32 v1, s56')
        A('s_sub_u32 s6, s6, 4')
        A('s_mov_b64 exec, 1')
        A('buffer_store_dword v1, v2, %s, s6 offen' % s(S_WS, 4))
        A('s_mov_b64 exec, -1')

STUBS = []
def spin_check(A, lbl_loop, pre=()):
    st = A.newlabel('L_retry')
    A('s_cbranch_vccnz %s' % st)
    STUBS.append((st, lbl_loop, list(pre)))
def emit_stubs(A):
    for st, l, pre in STUBS:
        A.label(st)
        for x in pre: A(x)
        A('s_sub_u32 %s, %s, 1' % (s(sSPIN), s(sSPIN)))
        A('s_cbranch_scc0 %s' % l)
        A('s_branch L_exit')
    del STUBS[:]

def lexpr(A, dst, lane, terms, base=0, tmp=None):
    A('v_mov_b32 %s, %s' % (dst, base))
    for lo, n, mul in terms:
        A('v_bfe_u32 %s, %s, %d, %d' % (tmp, lane, lo, n))
        if mul & (mul - 1) == 0:
            A('v_lshl_add_u32 %s, %s, %d, %s' % (dst, tmp, mul.bit_length() - 1, dst))
        else:
            A('v_mul_u32_u24 %s, %d, %s' % (tmp, mul, tmp))
            A('v_add_u32 %s, %s, %s' % (dst, dst, tmp))

class G: pass
G.stamps = False
G.dev_nowait = False
G.events = False
def event(A, idx, t0='v1', t1='v2', dyn=None):
    if not G.events: return
    A('s_memrealtime s[4:5]')
    A('s_lshl_b32 s6, %s, 5' % s(sXCC))
    A('s_add_u32 s6, s6, %s' % s(sROLE))
    A('s_lshl_b32 s6, s6, 2')
    A('s_add_u32 s6, s6, %s' % s(sWAVE))
    A('s_lshl_b32 s6, s6, 6')
    A('s_add_u32 s6, s6, %d' % (EVT + idx * 4))
    if dyn:
        A('s_add_u32 s6, s6, %s' % dyn); A('s_add_u32 %s, %s, 4' % (dyn, dyn))
    A('v_mov_b32 %s, 0' % t1)
    A('s_waitcnt lgkmcnt(0)')
    A('v_mov_b32 %s, s4' % t0)
    A('s_mov_b64 exec, 1')
    A('buffer_store_dword %s, %s, %s, s6 offen' % (t0, t1, s(S_WS, 4)))
    A('s_mov_b64 exec, -1')

def levent(A, idx):
    if G.events: A('s_memrealtime %s' % s(84 + 2 * idx, 2))
def levent_flush(A, n, base):
    if not G.events: return
    A('s_waitcnt lgkmcnt(0)')
    for i in range(n):
        event(A, base + i)
        A('v_mov_b32 v1, %s' % s(84 + 2 * i))
        A('s_mov_b64 exec, 1')
        A('buffer_store_dword v1, v2, %s, s6 offen' % s(S_WS, 4))
        A('s_mov_b64 exec, -1')

def event_spin(A, idx, t0='v1', t1='v2'):
    if not G.events: return
    event(A, idx, t0, t1)
    A('v_mov_b32 %s, %s' % (t0, s(sSPIN)))
    A('s_mov_b64 exec, 1')
    A('buffer_store_dword %s, %s, %s, s6 offen' % (t0, t1, s(S_WS, 4)))
    A('s_mov_b64 exec, -1')
```

```python
from common import *

sSLOT, sSLOTP, sSLOTN, sUOK = sMEMRD, sPWR, sMEMWR, sHZ
vIDX = 60
vK = 61
vT = 68
vLANE = 255
MF = 32
SACC = 4
AF0 = 0
vYW, vTRL, vB, vX, vPST, vPSM, HV, HA = 70, 71, 72, 73, 74, 75, 71, 77
vBIG = 200
vSW = 78
SD = 80
XB = 92
AF1 = 116
L_XS = 32768
vL16, vVW, vVR, vMST, vLW, VHV, VHA, vHM_, vHP_, vHIST = 70, 71, 72, 73, 74, 75, 76, 77, 78, 79
VR = 80
vUS = 69
ZB = 84
UB = 92
LB = 124
L_VB = 114688
L_WL = 32768

class Role:
    pass
SC = Role(); SC.nt = 7
VA = Role(); VA.nt = 8; VA.accf = lambda r: 4 * r
def sc_w(r, k):
    t = r * 7 + k
    return (256 + t * 8) if t < 32 else (120 + (t - 32) * 8)
SC6 = Role(); SC6.nt = 6; SC6.w = sc_w; SC6.accf = lambda r: SACC + 4 * r; SC6.land = {}
SC8 = Role(); SC8.nt = 8; SC8.accf = lambda r: (SACC + 4 * r) if r < 7 else 0
SC8.land = {(7, 5): MF, (7, 6): SACC}
SC8.w = lambda r, k: sc_w(r, k) if r < 7 else (80 + 8 * k if k < 5 else None)
XS2 = 0x10000
L_SWL = 65536
VLDS = [(r, 6) for r in range(8)] + [(2, 4), (5, 4)]
VREG = [(r, k) for r in range(8) for k in range(7) if (r, k) not in VLDS]
def va_w(r, k):
    if (r, k) in VLDS: return None
    t = VREG.index((r, k))
    return (256 + t * 8) if t < 32 else (144 + (t - 32) * 8)
VA.w = va_w

def smf(d, aa, bb, k32=False):
    return 'v_smfmac_f32_16x16x%d_bf16 %s, %s, %s, %s' % (32 if k32 else 64, d, aa, bb, v(vIDX))

sTMB = 28
sSTB = 92
def stamp(A, idx):
    if not G.stamps: return
    A('s_memtime %s' % s(sTMB + 2 * idx, 2))
    if idx == 0 and G.stamps == 1: A('s_memrealtime %s' % s(sTMB + 2 * 10, 2))
def stamp_acc(A, order):
    A('s_waitcnt lgkmcnt(0)')
    l = A.newlabel('L_sa')
    A('s_cmp_lt_u32 %s, 10' % s(sSTEP))
    A('s_cbranch_scc1 %s' % l)
    prev = 3
    for i, k in enumerate(order):
        A('s_sub_u32 s2, %s, %s' % (s(sTMB + 2 * k), s(prev)))
        A('s_add_u32 %s, %s, s2' % (s(50 + i), s(50 + i)))
        prev = sTMB + 2 * k
    A.label(l)
    A('s_mov_b32 s3, %s' % s(sTMB + 2 * order[-1]))
def stamp_acc_out(A):
    if G.stamps != 2: return
    A('v_mbcnt_lo_u32_b32 v2, -1, 0')
    A('v_lshlrev_b32 v2, 2, v2')
    for i in range(10): A('v_writelane_b32 v1, %s, %d' % (s(50 + i), i))
    A('s_mov_b64 exec, 0xffff')
    A('buffer_store_dword v1, v2, %s, %s offen' % (s(S_WS, 4), s(sSTB)))
    A('s_mov_b64 exec, -1')
def stamp_flush(A, n, order=None):
    if not G.stamps: return
    if G.stamps == 2:
        stamp_acc(A, order); return
    A('s_waitcnt lgkmcnt(0)')
    A('s_lshl_b32 %s, %s, 6' % (s(sT5), s(sSTEP)))
    A('s_add_u32 %s, %s, %s' % (s(sT5), s(sT5), s(sSTB)))
    A('v_mbcnt_lo_u32_b32 %s, -1, 0' % v(vT + 1))
    A('v_lshlrev_b32 %s, 2, %s' % (v(vT + 1), v(vT + 1)))
    for i in range(n):
        A('v_writelane_b32 %s, %s, %d' % (v(vT), s(sTMB + 2 * i), i))
    A('v_writelane_b32 %s, %s, 11' % (v(vT), s(sSPIN)))
    A('s_mov_b64 exec, 0xffff')
    A('buffer_store_dword %s, %s, %s, %s offen' % (v(vT), v(vT + 1), s(S_WS, 4), s(sT5)))
    A('s_mov_b64 exec, -1')
def stamp_setup(A):
    if not G.stamps: return
    A('s_lshl_b32 %s, %s, 2' % (s(sT0), s(sROLE)))
    A('s_add_u32 %s, %s, %s' % (s(sT0), s(sT0), s(sWAVE)))
    A('s_lshl_b32 %s, %s, 12' % (s(sT0), s(sT0)))
    A('s_add_u32 %s, %s, %d' % (s(sSTB), s(sT0), STAMPS))
    for i in range(10): A('s_mov_b32 %s, 0' % s(50 + i))

def hint_wait(A, soff, sval, pw, delay, nent, areg=None, other=None):
    l = A.newlabel('L_hint'); e = A.newlabel('L_hint_done')
    D = PRM['hd']
    A('s_cmp_lg_u32 %s, %d' % (s(sWAVE), pw))
    A('s_cbranch_scc1 %s' % e)
    if areg is None:
        areg = vT + 1
        A('v_mbcnt_lo_u32_b32 %s, -1, 0' % v(vT + 1))
        A('v_mbcnt_hi_u32_b32 %s, -1, %s' % (v(vT + 1), v(vT + 1)))
        A('v_min_u32 %s, %d, %s' % (v(vT + 1), nent - 1, v(vT + 1)))
        A('v_lshlrev_b32 %s, 2, %s' % (v(vT + 1), v(vT + 1)))
    ld = 'buffer_load_dword %s, %s, %s, %s offen sc1' % (v(vT), v(areg), s(S_WS, 4), s(soff))
    if PRM['hv0']: A('s_waitcnt vmcnt(0)')
    for i in range(D - 1):
        A(ld); A('s_nop %d' % PRM['hn'])
    A.label(l)
    A(ld)
    A('s_waitcnt vmcnt(%d)' % (D - 1))
    A('v_cmp_gt_u32 vcc, %s, %s' % (s(sval), v(vT)))
    spin_check(A, l)
    for i in range(delay): A('s_nop 3')
    A.label(e)
    A('s_barrier')

def hint_send(A, t0, t1):
    A('buffer_store_dword %s, %s, %s, %s offen' % (v(t0), v(t1), s(S_WS, 4), s(sHWR)))
def hint_setup(A, t0, t1, allw):
    nrep = PRM['nrep']
    A('v_lshlrev_b32 v1, 8, %s' % v(vLANE))
    A('v_mov_b32 v2, %d' % OOB)
    A('s_cmp_eq_u32 %s, %d' % (s(sWAVE), 0 if allw else 3))
    A('s_cselect_b32 %s, %d, 0' % (s(sT0), nrep))
    A('v_cmp_gt_u32 vcc, %s, %s' % (s(sT0), v(vLANE)))
    A('v_cndmask_b32 %s, v2, v1, vcc' % v(t1))
    A('v_mov_b32 %s, 0' % v(t0))
    hint_send(A, t0, t1)

def dbg_arrive(A, idx):
    A('s_waitcnt vmcnt(0) lgkmcnt(0)')
    A('s_barrier')
    l = A.newlabel('L_gb')
    A('s_cmp_lg_u32 %s, 0' % s(sWAVE))
    A('s_cbranch_scc1 %s' % l)
    A('v_mov_b32 v1, %d' % (idx * 4))
    A('v_mov_b32 v2, 1')
    A('s_mov_b64 exec, 1')
    A('buffer_atomic_add v2, v1, %s, 0 offen' % s(S_DBG, 4))
    A('s_mov_b64 exec, -1')
    A.label(l)

def group_wait(A):
    l = A.newlabel('L_gw')
    A('v_mov_b32 %s, %d' % (v(vT), D_GRP * 4))
    A.label(l)
    A('buffer_load_dword %s, %s, %s, 0 offen sc1' % (v(vT + 1), v(vT), s(S_DBG, 4)))
    A('s_waitcnt vmcnt(0)')
    A('v_cmp_gt_u32 vcc, 32, %s' % v(vT + 1))
    spin_check(A, l, ['s_sleep 1'])

def wait_init(A, idx=D_INIT, lane=None):
    l = A.newlabel('L_wi')
    lexpr(A, 'v2', lane or v(vLANE), [(0, 2, 64)], idx * 4, 'v3')
    A.label(l)
    A('buffer_load_dword v3, v2, %s, 0 offen sc1' % s(S_DBG, 4))
    A('s_waitcnt vmcnt(0)')
    A('v_cmp_gt_u32 vcc, 56, v3')
    spin_check(A, l, ['s_sleep 16'])

def check4(A, r, lbl, pre):
    t0 = v(vT)
    A('v_max3_u32 %s, %s, %s, %s' % (t0, v(r), v(r + 1), v(r + 2)))
    A('v_max_u32 %s, %s, %s' % (t0, t0, v(r + 3)))
    A('v_cmp_eq_u32 vcc, -1, %s' % t0)
    spin_check(A, lbl, pre)

sROT = 87
def rot(A, k):
    A('s_add_u32 %s, %s, %d' % (s(sT1), s(sT0), k))
    A('s_sub_u32 %s, %s, 7' % (s(sT2), s(sT1)))
    A('s_cmp_ge_u32 %s, 7' % s(sT1))
    A('s_cselect_b32 %s, %s, %s' % (s(sT1), s(sT2), s(sT1)))

def rec_start(A):
    A('v_mov_b32 %s, v0' % v(vLANE))
    A('s_mov_b32 %s, %d' % (s(sSPIN), SPIN_MAX))
    if PRM['xw']:
        A('s_lshl_b32 %s, %s, 2' % (s(sT0), s(sROLE)))
        A('s_add_u32 %s, %s, %s' % (s(sT0), s(sT0), s(sWAVE)))
        A('s_mul_i32 %s, %s, 14336' % (s(sT0), s(sT0)))
        A('s_add_u32 %s, %s, 6144' % (s(sT1), s(sT0)))
        A('v_lshlrev_b32 v1, 7, v0')
        for j in range(2): A('buffer_load_dword v250, v1, %s, %s offen nt' % (s(S_BX, 4), s(sT0 + j)))
    A('s_and_b32 %s, %s, %d' % (s(sT0), s(sROLE), PRM['nrep'] - 1))
    A('s_lshl_b32 %s, %s, 8' % (s(sHMRD), s(sT0)))
    A('s_add_u32 %s, %s, %d' % (s(sHPRD), s(sHMRD), HINT_P))
    A('s_add_u32 %s, %s, %d' % (s(sHMRD), s(sHMRD), HINT_M))
    A('v_and_b32 v1, 2, v0')
    A('v_cmp_eq_u32 vcc, 0, v1')
    A('v_mov_b32 v2, 0xeeeeeeee')
    A('v_mov_b32 v3, 0x44444444')
    A('v_cndmask_b32 %s, v2, v3, vcc' % v(vIDX))
    A('v_lshlrev_b32 v1, 4, v0')
    A('s_sub_u32 %s, %s, 16' % (s(sT1), s(sROLE)))
    A('s_lshr_b32 %s, %s, 1' % (s(sT1), s(sT1)))
    A('s_cmp_lt_u32 %s, 16' % s(sROLE))
    A('s_cselect_b32 %s, 0, %s' % (s(sT1), s(sT1)))
    A('s_lshl_b32 %s, %s, 1' % (s(sT0), s(sWAVE)))
    A('s_add_u32 %s, %s, %s' % (s(sT0), s(sT0), s(sT1)))
    rot(A, 0)
    A('s_mov_b32 %s, %s' % (s(sROT), s(sT1)))
    A('s_mov_b32 %s, %s' % (s(sT0), s(sT1)))
    for k in range(7):
        rot(A, k)
        A('s_lshl_b32 %s, %s, 10' % (s(sT1), s(sT1)))
        A('v_add_u32 %s, %s, v1' % (v(vK + k), s(sT1)))
    stamp_setup(A)

def load_weights(A, R, cstride):
    tag = 'S' if R is SC else 'V'
    A('s_mul_i32 %s, %s, %d' % (s(sT0), s(sWAVE), R.nt * 1024))
    if not G.dev_nowait:
        A('v_mov_b32 %s, v8' % v(vT))
        wait_init(A)
        A('v_mov_b32 v3, %s' % v(vT))
    lexpr(A, 'v1', v(vLANE), [(0, 6, 16)], s(sT0), 'v2')
    A('v_add_u32 v2, 4096, v1')
    if R is SC: A('v_subrev_u32 v0, 8192, v1')
    SB_ = 28
    A('s_mov_b32 %s, %s' % (s(sT0), s(sROT)))
    for k in range(7):
        rot(A, k)
        A('s_mul_i32 %s, %s, %d' % (s(sT1), s(sT1), 2 * cstride))
        A('s_add_u32 %s, %s, %s' % (s(SB_ + 2 * k), s(sT1), s(sT3)))
        A('s_add_u32 %s, %s, %d' % (s(SB_ + 2 * k + 1), s(SB_ + 2 * k), cstride))
    A('s_mov_b32 %s, %d' % (s(sT0), FLG_W1))
    pl = 'buffer_load_dword %s, v3, %s, %s offen sc1' % (v(vT), s(S_WS, 4), s(sT0))
    for w in range(1, 4):
        A('s_cmp_eq_u32 %s, %d' % (s(sWAVE), w))
        A('s_cbranch_scc1 L_lw%s%d' % (tag, w))
    for w in range(4):
        A.label('L_lw%s%d' % (tag, w))
        st = [[], [], [], []]
        RW = R if R is VA else (SC6 if w < 2 else SC8)
        for k in range(7):
            for hi in range(2):
                for r in range(RW.nt):
                    q = ((7 * w + r if r < 7 else 7 * w - 8) >> 2) if R is SC else 0
                    c = (2 * ((k + 2 * w) % 7) + hi - 2 * q) % 14
                    st[c >> 2].append((r, k, hi))
        n = 0; since = None
        for i in range(4):
            if not G.dev_nowait:
                l = A.newlabel('L_lwp')
                if since is None: A(pl); since = 0
                A('s_waitcnt vmcnt(%d)' % since)
                A.label(l)
                A('v_cmp_gt_u32 vcc, %d, %s' % (i + 1, v(vT)))
                spin_check(A, l, ['s_sleep %d' % PRM['lws'], pl, 's_waitcnt vmcnt(0)'])
                if i == 0: event(A, 4, 'v59', v(vT + 1))
            for j, (r, k, hi) in enumerate(st[i]):
                if j == len(st[i]) // 2 and i < 3 and not G.dev_nowait: A(pl); since = 0
                wv = RW.w(r, k)
                if wv is None: dst = v((ldstmp(VLDS.index((r, k))) if R is VA else 4 + 8 * (k - 5)) + 4 * hi, 4)
                else: dst = u(wv + 4 * hi, 4)
                if R is SC and r == 7: ar, off = 'v0', 0
                else: ar, off = ('v1' if r < 4 else 'v2'), (r & 3) * 1024
                A('buffer_load_dwordx4 %s, %s, %s, %s offen offset:%d sc1' % (dst, ar, s(S_WS, 4), s(SB_ + 2 * k + hi), off))
                if since is not None: since += 1
                n += 1
                if G.dev_nowait and n % 16 == 0: A('s_waitcnt vmcnt(40)')
        if w < 3: A('s_branch L_lw%sE' % tag)
    A.label('L_lw%sE' % tag)
    A('s_waitcnt vmcnt(0)')
    if R is SC:
        for i in range(4): A('ds_write_b128 %s, %s offset:%d' % (v(vSW), v(4 + 4 * i, 4), i * 1024))
        A('s_waitcnt lgkmcnt(0)')
    if R is VA:
        for i in range(10):
            for hi in range(2):
                A('ds_write_b128 %s, %s offset:%d' % (v(vLW), v(ldstmp(i) + 4 * hi, 4), (2 * i + hi) * 1024))
            if i % 3 == 2: A('s_waitcnt lgkmcnt(4)')
        A('s_waitcnt lgkmcnt(0)')
def ldstmp(i): return (4 + 8 * i) if i < 7 else (UB + 8 * (i - 7))

def zero_regs(b, n): return ['v_mov_b32 %s, 0' % v(b + i) for i in range(n)]

def main_phase(A, R, pw, delay, post, vm, every, extra, epi, pre_ds=0):
    NT = R.nt
    hint_wait(A, sHMRD, sSTEP1, pw, delay, 22, vHM_ if R is VA else None)
    stamp(A, 1)
    ld = ['buffer_load_dwordx4 %s, %s, %s, %s offen sc1' % (v(MF + 4 * k, 4), v(vK + k), s(S_WS, 4), s(sSLOT)) for k in range(2)]
    A(ld[0])
    if PRM['f0b']: A('s_barrier')
    A(ld[1])
    for x in post: A(x)
    nst = len([x for x in post if x.startswith('buffer_')])
    A('s_waitcnt vmcnt(%d)' % (nst + 1))
    l0 = A.newlabel('L_pm0'); A.label(l0)
    check4(A, MF, l0, [ld[0], 's_waitcnt vmcnt(0)'])
    stamp(A, 2)
    A('ds_write_b128 %s, %s offset:%d' % (v(vK), v(MF, 4), L_MEM))
    vm = list(vm); cnt = [0]
    def vmtick():
        cnt[0] += 1
        if vm and cnt[0] % every == 0:
            for x in vm.pop(0): A(x)
    k1, k2 = PRM['k1'], min(PRM['k2'], 2 * NT - 3)
    kseq = [(r, 0) for r in range(NT)] + [(r, 1) for r in range(NT)]
    rd = [2, 3, 4, 5, 6]
    for i, (r, k) in enumerate(kseq):
        A(smf(v(R.accf(r), 4), v(MF + 4 * k, 4), u(R.w(r, k), 8)))
        if i == k1 - 1:
            A('s_waitcnt vmcnt(%d)' % nst)
            l1 = A.newlabel('L_pm1'); A.label(l1)
            check4(A, MF + 4, l1, [ld[1], 's_waitcnt vmcnt(0)'])
            A('ds_write_b128 %s, %s offset:%d' % (v(vK + 1), v(MF + 4, 4), L_MEM))
        elif i >= k1 and i < k2 - 1: vmtick()
        if i == k2 - 1:
            A('s_waitcnt lgkmcnt(0)')
            A('s_barrier')
            stamp(A, 3)
        if i >= k2 - 1:
            for _ in range(2 if len(kseq) - i > 2 else 5):
                if rd:
                    kk = rd.pop(0); A('ds_read_b128 %s, %s offset:%d' % (v(MF + 4 * kk, 4), v(vK + kk), L_MEM))
    assert not rd
    q = []
    i = 0
    for r in range(NT):
        for k in range(2, 7):
            if r == 0: A('s_waitcnt lgkmcnt(%d)' % (6 - k))
            w = R.w(r, k)
            if w is None and R is VA:
                iv = VORD.index((r, k))
                w = LB + 8 * (iv & 1)
                A('s_waitcnt lgkmcnt(%d)' % (2 if 1 <= iv <= 8 else 0))
            elif w is None: w = R.land[(r, k)]
            A(smf(v(R.accf(r), 4), v(MF + 4 * k, 4), u(w, 8)))
            if k == 3 and r > 0: q += epi(r - 1)
            if q: A(q.pop(0))
            for x in extra.get(i, []): A(x)
            vmtick()
            i += 1
    stamp(A, 4)
    for x in q: A(x)
    assert not vm, len(vm)
VORD = sorted(VLDS)

def sc_epi(r, up=0):
    c = (SACC + 4 * r) if r < 7 else 0
    off = (up + r * 256) if r < 7 else 6 * 256
    return ['v_add_f32 %s, %s, %s' % (v(c), v(c), v(c + 2)),
            'v_add_f32 %s, %s, %s' % (v(c + 1), v(c + 1), v(c + 3)),
            'v_cvt_pk_bf16_f32 %s, %s, %s' % (v(c), v(c), v(c + 1)),
            'ds_write_b32 %s, %s offset:%d' % (v(vYW), v(c), off)]

sXL = 86
sXB = 98
vXG = 76
def xpieces(A, sbase, n, fill=()):
    fill = list(fill)
    for k in range(n):
        if k % 4 == 0:
            A('s_add_u32 %s, %s, %d' % (s(sT1), s(sbase), k * 1024))
            A('s_add_u32 m0, %s, %s' % (s(sT1), s(sXB)))
            A('s_add_u32 %s, %s, %s' % (s(sXPF), s(sT1), s(sXOFF)))
        A('buffer_load_dwordx4 %s, %s, %s offen offset:%d sc1 lds' % (v(vXG), s(S_WS, 4), s(sXPF), (k & 3) * 1024))
        for x in fill[:6]: A(x)
        fill = fill[6:]
    for x in fill: A(x)

def score_role(A):
    A.label('L_score')
    L = v(vLANE)
    A('s_and_b32 %s, %s, 1' % (s(sT0), s(sWAVE)))
    A('s_mul_i32 %s, %s, 1792' % (s(sT0), s(sT0)))
    A('s_add_u32 %s, %s, %d' % (s(sT0), s(sT0), L_YT))
    lexpr(A, v(vYW), L, [(2, 2, 64), (0, 1, 32), (4, 2, 8), (1, 1, 4)], s(sT0), 'v1')
    lexpr(A, v(vTRL), L, [(4, 2, 1792), (0, 4, 8)], L_YT, 'v1')
    lexpr(A, v(vB), L, [(5, 1, 1792), (4, 1, 32), (0, 2, 64), (3, 1, 16)], L_MEM, 'v1')
    lexpr(A, v(vX), L, [(0, 6, 16)], 0, 'v1')
    A('s_lshl_b32 %s, %s, 12' % (s(sT0), s(sWAVE)))
    A('s_add_u32 %s, %s, %d' % (s(sT0), s(sT0), L_SWL))
    A('v_add_u32 %s, %s, %s' % (v(vSW), s(sT0), v(vX)))
    A('s_lshl_b32 %s, %s, 9' % (s(sT0), s(sROLE)))
    A('s_lshl_b32 %s, %s, 4' % (s(sT2), s(sWAVE)))
    A('s_add_u32 %s, %s, %s' % (s(sT0), s(sT0), s(sT2)))
    lexpr(A, v(vPST), L, [(3, 1, 256), (4, 2, 64), (2, 1, 32), (0, 2, 4)], s(sT0), 'v1')
    A('s_lshr_b32 %s, %s, 2' % (s(sT0), s(sROLE)))
    A('s_lshl_b32 %s, %s, 9' % (s(sT0), s(sT0)))
    A('s_add_u32 %s, %s, %s' % (s(sT0), s(sT0), s(sT2)))
    A('s_and_b32 %s, %s, 1' % (s(sT1), s(sROLE)))
    A('s_lshl_b32 %s, %s, 5' % (s(sT1), s(sT1)))
    A('s_add_u32 %s, %s, %s' % (s(sT0), s(sT0), s(sT1)))
    A('s_and_b32 %s, %s, 2' % (s(sT1), s(sROLE)))
    A('s_lshl_b32 %s, %s, 1' % (s(sT1), s(sT1)))
    A('s_add_u32 %s, %s, %s' % (s(sT0), s(sT0), s(sT1)))
    A('s_add_u32 %s, %s, 8192' % (s(sT0), s(sT0)))
    lexpr(A, 'v3', L, [(1, 1, 256), (0, 1, 8), (4, 2, 64)], s(sT0), 'v1')
    A('v_and_b32 v4, 12, %s' % L)
    A('v_mov_b32 v2, %d' % OOB)
    A('v_cmp_eq_u32 vcc, 0, v4')
    A('v_cndmask_b32 %s, v2, v3, vcc' % v(vPSM))
    A('s_lshl_b32 %s, %s, 2' % (s(sHWR), s(sROLE)))
    A('s_add_u32 %s, %s, %d' % (s(sHWR), s(sHWR), HINT_P))
    hint_setup(A, HV, HA, False)
    A('s_nop 2')
    lexpr(A, v(vTRL), L, [(4, 2, 1792), (0, 4, 8)], L_YT, 'v1')
    dbg_arrive(A, D_GRP)
    A('s_mul_i32 %s, %s, 7' % (s(sT1), s(sWAVE)))
    A('v_lshrrev_b32 v8, 2, %s' % L)
    A('v_cmp_lt_u32 vcc, 2, v8')
    A('v_mul_u32_u24 v8, 3, v8')
    A('v_add_u32 v8, %s, v8' % s(sT1))
    A('s_and_b32 %s, %s, 1' % (s(sT1), s(sWAVE)))
    A('s_mul_i32 %s, %s, 7' % (s(sT1), s(sT1)))
    A('s_add_u32 %s, %s, 6' % (s(sT1), s(sT1)))
    A('v_mov_b32 v9, %s' % s(sT1))
    A('v_cndmask_b32 v8, v8, v9, vcc')
    A('v_lshrrev_b32 v8, 2, v8')
    A('s_mul_i32 %s, %s, 7' % (s(sT0), s(sROLE)))
    A('v_add_u32 v8, %s, v8' % s(sT0))
    A('v_lshlrev_b32 v8, 6, v8')
    A('v_and_b32 v9, 3, %s' % L)
    A('v_lshl_add_u32 v8, v9, 2, v8')
    event(A, 3)
    A('s_mul_i32 %s, %s, %d' % (s(sT3), s(sROLE), WCU))
    load_weights(A, SC, 28672)
    event(A, 5)
    group_wait(A)
    event(A, 6, v(vT), v(vT + 1))
    event_spin(A, 13, v(vT), v(vT + 1))
    A('s_mov_b32 %s, 0' % s(sSTEP))
    A('s_mov_b32 %s, %d' % (s(sSLOT), MB_OFF))
    NE = PRM['xe']; NL = -(-(28 - 2 * NE) // 3)
    sXE = 97
    A('v_mov_b32 %s, %s' % (v(vXG), v(vX)))
    A('s_mov_b32 %s, %d' % (s(sXOFF), XF_OFF))
    A('s_mov_b32 %s, %d' % (s(sXB), L_XS))
    A('s_mul_i32 %s, %s, %d' % (s(sXL), s(sWAVE), NL * 1024))
    A('s_add_u32 %s, %s, %d' % (s(sXL), s(sXL), 2 * NE * 1024))
    A('s_min_u32 %s, %s, %d' % (s(sXL), s(sXL), (28 - NL) * 1024))
    A('s_and_b32 %s, %s, 1' % (s(sXE), s(sWAVE)))
    A('s_mul_i32 %s, %s, %d' % (s(sXE), s(sXE), NE * 1024))
    xpieces(A, sXE, NE)
    A('v_xor_b32 %s, 0x%x, %s' % (v(vX), XS2, v(vX)))
    AC = SACC
    def top(z, lw):
        if lw:
            A('s_cmp_eq_u32 %s, 3' % s(sWAVE))
            A('s_cbranch_scc1 L_sc_nox')
            xpieces(A, sXL, NL)
            A.label('L_sc_nox')
            for x in z: A(x)
        else: xpieces(A, sXL, NL, z)
        A('s_add_u32 %s, %s, 32768' % (s(sXOFF), s(sXOFF)))
        A('s_xor_b32 %s, %s, 0x%x' % (s(sXB), s(sXB), XS2))
        A('s_add_u32 %s, %s, %d' % (s(sSLOTP), s(sSLOT), MB_PO))
        A('s_add_u32 %s, %s, 1' % (s(sSTEP1), s(sSTEP)))
        if lw: A('v_mov_b32 %s, %s' % (v(HV), s(sSTEP1)))
        else: A('v_xor_b32 %s, 0x%x, %s' % (v(vX), XS2, v(vX)))
        A('s_waitcnt vmcnt(0)')
        stamp(A, 0)
    def bottom(lp, order):
        stamp_flush(A, 11, order)
        A('s_barrier')
        A('s_add_u32 %s, %s, %d' % (s(sSLOT), s(sSLOT), MB_STEP))
        A('s_add_u32 %s, %s, 1' % (s(sSTEP), s(sSTEP)))
        A('s_cmp_lt_u32 %s, 63' % s(sSTEP))
        A('s_cbranch_scc1 %s' % lp)
    A('s_cmp_ge_u32 %s, 2' % s(sWAVE))
    A('s_cbranch_scc1 L_score_loop8')
    A('v_mov_b32 %s, 0x5f800000' % v(vBIG))
    A.label('L_score_loop')
    top(zero_regs(AC, 24) + zero_regs(SD, 12), False)
    units = [(c, T) for c in range(7) for T in range(3)]
    XS_ = [XB, XB + 8, XB + 16, 208, 216, 224, 232, 240, 248]
    slot = {}; pre = []
    xs = list(XS_)
    for i, (c, T) in enumerate(units):
        if T < 2 and xs: slot[i] = xs.pop(0); pre.append(i)
    early = {2: MF, 5: AC, 8: AC + 8}
    slot.update(early)
    late_free = [MF + 8, MF + 16]
    AR = [AF0, AF1, AC + 24, 204, AC + 16, AC + 20, MF + 24]
    def bread(i):
        c, T = units[i]
        if T == 2: return ['ds_read_b128 %s, %s offset:%d' % (v(slot[i] + 4 * hi, 4), v(vB), hi * 3584 + c * 256) for hi in range(2)]
        return ['ds_read_b128 %s, %s offset:%d' % (v(slot[i] + 4 * hi, 4), v(vX), L_XS + c * 4096 + T * 2048 + hi * 1024) for hi in range(2)]
    def aread(c): return ['ds_read_b64_tr_b16 %s, %s offset:%d' % (v(AR[c] + 2 * t, 2), v(vTRL), c * 256 + t * 128) for t in range(2)]
    def ss(i):
        c, T = units[i]
        return smf(v(SD + 4 * T, 4), v(AR[c], 4), v(slot[i], 8))
    extra = {}
    for i, pp in ((2, (5, 10)), (5, (15, 20)), (8, (20, 25))):
        for x, ppos in zip(bread(i), pp): extra.setdefault(ppos, []).append(x)
    extra.setdefault(28, []).extend(['s_waitcnt lgkmcnt(0)', 's_barrier'] + aread(0) + aread(1))
    post = []
    for n_, i in enumerate(pre):
        post += bread(i)
        if n_ in (4, 7): post.append('s_waitcnt lgkmcnt(4)')
    main_phase(A, SC6, 3, PRM['sdel'], post, [], 1, extra, sc_epi)
    e5 = sc_epi(5)
    ds = ['A0', 'A0', 'A1', 'A1', 'w4']
    def D(x, tag):
        A(x); ds.append(tag)
    def wait_for(tags):
        last = max([i for i, tg in enumerate(ds) if tg in tags], default=-1)
        if last >= 0 and last > wait_for.done:
            A('s_waitcnt lgkmcnt(%d)' % min(14, len(ds) - 1 - last)); wait_for.done = last
    wait_for.done = -1
    for x in aread(2): D(x, 'A2')
    for x in aread(3): D(x, 'A3')
    todo = [i for i in range(21) if i not in slot]
    free = list(late_free)
    for i in range(21):
        c, T = units[i]
        wait_for({'A%d' % c, 'B%d' % i})
        A(ss(i))
        if i == 1:
            A(e5[0]); A(e5[1])
        if i == 2:
            A(e5[2]); D(e5[3], 'w5')
        free.append(slot[i])
        if todo:
            j = todo.pop(0); slot[j] = free.pop(0)
            for x in bread(j): D(x, 'B%d' % j)
        if i == PRM['sb']:
            wait_for({'w5'})
            A('s_barrier')
            for x in aread(4): D(x, 'A4')
            for x in aread(5): D(x, 'A5')
        if i == PRM['sc']:
            A('s_barrier')
            for x in aread(6): D(x, 'A6')
    stamp(A, 5)
    A('s_cmp_eq_u32 %s, 1' % s(sWAVE))
    A('s_cbranch_scc1 L_sc_sm1')
    e, o, mm, m, t2, rr = v(AC), v(AC + 1), v(AC + 2), v(AC + 3), v(AC + 4), v(AC + 5)
    def reduce(op):
        for d in ('quad_perm:[1,0,3,2]', 'quad_perm:[2,3,0,1]', 'row_half_mirror', 'row_mirror'):
            A('%s_dpp %s, %s, %s %s row_mask:0xf bank_mask:0xf' % (op, m, m, m, d))
    def softmax(rb, exact):
        for d, T in ((e, 0), (o, 1), (mm, 2)): A('v_add_f32 %s, %s, %s' % (d, v(SD + 4 * T + rb), v(SD + 4 * T + rb + 2)))
        if exact:
            A('v_max3_f32 %s, %s, %s, %s' % (m, e, o, mm))
            reduce('v_max_f32')
            for d in (e, o, mm): A('v_sub_f32 %s, %s, %s' % (d, d, m))
        for d in (e, o, mm): A('v_exp_f32 %s, %s' % (d, d))
        A('v_add_f32 %s, %s, %s' % (m, e, o))
        A('v_fma_f32 %s, %s, 0.5, %s' % (m, mm, m))
        A('v_mov_b32_dpp %s, %s row_ror:8 row_mask:0xf bank_mask:0xf' % (t2, mm))
        reduce('v_add_f32')
        A('v_rcp_f32 %s, %s' % (rr, m))
        if not exact:
            A('v_max_f32 %s, %s, %s' % (m, m, rr))
            A('v_mul_f32 %s, %s, %s' % (e, e, rr))
            A('v_cmp_nlt_f32 vcc, %s, %s' % (m, v(vBIG)))
            A('v_mul_f32 %s, %s, %s' % (o, o, rr))
            A('v_cvt_pk_bf16_f32 %s, %s, %s' % (v(vT), e, o))
            A('s_cbranch_vccnz L_sc_exact%d' % rb)
            A('buffer_store_dword %s, %s, %s, %s offen' % (v(vT), v(vPST), s(S_WS, 4), s(sSLOTP)))
            A('v_mul_f32 %s, %s, %s' % (mm, mm, rr))
            A('v_mul_f32 %s, %s, %s' % (t2, t2, rr))
            A('v_cvt_pk_bf16_f32 %s, %s, %s' % (v(vT + 1), mm, t2))
        else:
            for d in (e, o, mm, t2): A('v_mul_f32 %s, %s, %s' % (d, d, rr))
            A('v_cvt_pk_bf16_f32 %s, %s, %s' % (v(vT), e, o))
            A('v_cvt_pk_bf16_f32 %s, %s, %s' % (v(vT + 1), mm, t2))
            A('v_min_u32 %s, -2, %s' % (v(vT), v(vT)))
            A('v_min_u32 %s, -2, %s' % (v(vT + 1), v(vT + 1)))
            A('buffer_store_dword %s, %s, %s, %s offen' % (v(vT), v(vPST), s(S_WS, 4), s(sSLOTP)))
        A('buffer_store_dword %s, %s, %s, %s offen' % (v(vT + 1), v(vPSM), s(S_WS, 4), s(sSLOTP)))
        stamp(A, 8)
        A('s_branch L_sc_join')
    for rb in range(2):
        if rb: A.label('L_sc_sm1')
        softmax(rb, not PRM['fsm'])
    if PRM['fsm']:
        for rb in range(2):
            A.label('L_sc_exact%d' % rb)
            softmax(rb, True)
    A.label('L_sc_join')
    bottom('L_score_loop', [0, 1, 2, 3, 4, 5, 8])
    A('s_branch L_sc_end')
    A.label('L_score_loop8')
    top(zero_regs(0, 32), True)
    extra = {}
    for (r_, k_), pp in (((7, 5), (5, 10)), ((7, 6), (15, 20))):
        for hi in range(2):
            extra.setdefault(pp[hi], []).append('ds_read_b128 %s, %s offset:%d' % (v(SC8.land[(r_, k_)] + 4 * hi, 4), v(vSW), (2 * (k_ - 5) + hi) * 1024))
    extra.setdefault(PRM['ba'], []).extend(['s_waitcnt lgkmcnt(0)', 's_barrier'])
    extra.setdefault(PRM['bb'], []).extend(['s_waitcnt lgkmcnt(0)', 's_barrier'])
    epi8 = lambda r: sc_epi(r, 3584)
    class _C:
        def __init__(s_): s_.l = []
        def __call__(s_, x): s_.l.append(x)
    cc = _C(); xpieces(cc, sXE, NE)
    main_phase(A, SC8, 3, PRM['sdel'], (['s_nop 7'] if NE else []) + cc.l, [], 1, extra, epi8)
    for x in epi8(7): A(x)
    A('s_waitcnt lgkmcnt(0)')
    A('s_barrier')
    stamp(A, 5)
    for i in range(PRM['ht']): A('s_nop 3')
    hint_send(A, HV, HA)
    if G.events:
        A('s_memtime s[4:5]')
        A('s_waitcnt lgkmcnt(0)')
        A('s_mov_b32 m0, %s' % s(sSTEP))
        A('s_nop 3')
        A('v_writelane_b32 v79, s4, m0')
    bottom('L_score_loop8', [0, 1, 2, 3, 4, 5])
    A.label('L_sc_end')
    stamp_acc_out(A)
    if G.events:
        A('s_lshl_b32 s6, %s, 2' % s(sROLE))
        A('s_add_u32 s6, s6, %s' % s(sWAVE))
        A('s_lshl_b32 s6, s6, 8')
        A('s_add_u32 s6, s6, %d' % (EVT + 0x20000))
        A('v_lshrrev_b32 v1, 2, %s' % v(vXG))
        A('v_and_b32 v1, 0xff, v1')
        A('buffer_store_dword v79, v1, %s, s6 offen' % s(S_WS, 4))
    event(A, 8)
    event_spin(A, 14)
    A('s_branch L_exit')
    emit_stubs(A)

def va_epi(r):
    c = 4 * r
    return ['v_add_f32 %s, %s, %s' % (v(c), v(c), v(c + 2)),
            'v_add_f32 %s, %s, %s' % (v(c + 1), v(c + 1), v(c + 3)),
            'v_cvt_pk_bf16_f32 %s, %s, %s' % (v(ZB + 4 * (r & 1) + (r >> 1)), v(c), v(c + 1))]

sVB = 96
def u_loads():
    out = []
    for cx in range(2):
        for hi in range(2):
            for p in range(2):
                out.append((['s_add_u32 m0, %s, %d' % (s(sVB), cx * 4096 + hi * 2048)] if p == 0 else []) +
                           ['buffer_load_dwordx4 %s, %s, %s offen offset:%d sc1 lds' % (v(vL16), s(S_WS, 4), s(88 + cx * 2 + hi), p * 1024)])
    return out

def ucheck_code(A, lbl, back, P0, t):
    A.label(lbl)
    A('v_mbcnt_lo_u32_b32 %s, -1, 0' % v(t))
    A('v_mbcnt_hi_u32_b32 %s, -1, %s' % (v(t), v(t)))
    A('v_min_u32 %s, 55, %s' % (v(t), v(t)))
    A('v_lshlrev_b32 %s, 4, %s' % (v(t), v(t)))
    A('s_mov_b32 %s, %d' % (s(sT1), FLG_W2 + 1792))
    A('s_lshr_b32 %s, %s, 2' % (s(sT2), s(sT4)))
    A('s_add_u32 %s, %s, 1' % (s(sT2), s(sT2)))
    A.label(lbl + '_l')
    A('buffer_load_dwordx4 %s, %s, %s, %s offen sc1' % (v(P0, 4), v(t), s(S_WS, 4), s(sT1)))
    A('buffer_load_dwordx4 %s, %s, %s, %s offen offset:896 sc1' % (v(P0 + 4, 4), v(t), s(S_WS, 4), s(sT1)))
    A('s_waitcnt vmcnt(0)')
    A('v_min3_u32 %s, %s, %s, %s' % (v(P0), v(P0), v(P0 + 1), v(P0 + 2)))
    A('v_min3_u32 %s, %s, %s, %s' % (v(P0), v(P0), v(P0 + 3), v(P0 + 4)))
    A('v_min3_u32 %s, %s, %s, %s' % (v(P0), v(P0), v(P0 + 5), v(P0 + 6)))
    A('v_min_u32 %s, %s, %s' % (v(P0), v(P0), v(P0 + 7)))
    A('v_cmp_gt_u32 vcc, %s, %s' % (s(sT2), v(P0)))
    spin_check(A, lbl + '_l', ['s_sleep 8'])
    A('s_lshl_b32 %s, %s, 2' % (s(sUOK), s(sT2)))
    for thr in range(2, 17):
        A('v_cmp_gt_u32 vcc, %d, %s' % (thr, v(P0)))
        A('s_cbranch_vccnz %s' % back)
        A('s_max_u32 %s, %s, %d' % (s(sUOK), s(sUOK), 4 * thr if thr < 16 else 1000))
    A('s_branch %s' % back)

def value_role(A):
    A.label('L_value')
    L = v(vLANE)
    sV = sT4
    A('s_sub_u32 %s, %s, 16' % (s(sV), s(sROLE)))
    lexpr(A, v(vL16), L, [(0, 6, 16)], 0, 'v1')
    A('s_lshl_b32 %s, %s, 13' % (s(sVB), s(sWAVE)))
    A('s_add_u32 %s, %s, %d' % (s(sVB), s(sVB), L_VB))
    A('s_lshl_b32 %s, %s, 11' % (s(sT0), s(sWAVE)))
    A('s_add_u32 %s, %s, %d' % (s(sT0), s(sT0), L_VB + 32768))
    A('v_add_u32 %s, %s, %s' % (v(vVW), s(sT0), v(vL16)))
    A('v_add_u32 %s, %d, %s' % (v(vVR), L_VB, v(vL16)))
    A('s_mul_i32 %s, %s, 20480' % (s(sT0), s(sWAVE)))
    A('s_add_u32 %s, %s, %d' % (s(sT0), s(sT0), L_WL))
    A('v_add_u32 %s, %s, %s' % (v(vLW), s(sT0), v(vL16)))
    A('s_lshl_b32 %s, %s, 9' % (s(sT0), s(sV)))
    A('s_cmp_eq_u32 %s, 0' % s(sWAVE))
    A('s_cselect_b32 %s, %s, 0x70000000' % (s(sT0), s(sT0)))
    lexpr(A, v(vMST), L, [(3, 1, 256), (2, 1, 32), (4, 2, 64), (0, 2, 4)], s(sT0), 'v1')
    lexpr(A, v(vHIST), L, [(2, 2, 128), (4, 2, 32), (0, 2, 4)], s(sT0), 'v1')
    A('s_lshl_b32 %s, %s, 6' % (s(sT0), s(sV)))
    lexpr(A, 'v2', L, [(4, 2, 1792), (0, 4, 4)], s(sT0), 'v1')
    A('buffer_load_dword %s, v2, %s, 0 offen' % (v(VR), s(S_M0, 4)))
    A('buffer_load_dword %s, v2, %s, 0 offen offset:896' % (v(VR + 1), s(S_M0, 4)))
    A('s_lshl_b32 %s, %s, 2' % (s(sHWR), s(sV)))
    A('s_add_u32 %s, %s, %d' % (s(sHWR), s(sHWR), HINT_M))
    hint_setup(A, VHV, VHA, True)
    A('v_min_u32 v1, 21, %s' % L)
    A('v_lshlrev_b32 %s, 2, v1' % v(vHM_))
    A('v_min_u32 v1, 15, %s' % L)
    A('v_lshlrev_b32 %s, 2, v1' % v(vHP_))
    dbg_arrive(A, D_GRP)
    A('s_lshr_b32 %s, %s, 1' % (s(sT0), s(sV)))
    A('s_add_u32 %s, %s, 112' % (s(sT0), s(sT0)))
    A('s_mul_i32 %s, %s, 28' % (s(sT1), s(sWAVE)))
    A('s_add_u32 %s, %s, %s' % (s(sT0), s(sT0), s(sT1)))
    lexpr(A, 'v8', L, [(2, 2, 7)], s(sT0), 'v1')
    A('v_lshlrev_b32 v8, 6, v8')
    A('v_and_b32 v9, 3, %s' % L)
    A('v_lshl_add_u32 v8, v9, 2, v8')
    A('s_mul_i32 %s, %s, %d' % (s(sUOFF), s(sWAVE), 4 * 28672))
    A('s_lshl_b32 %s, %s, 11' % (s(sT0), s(sV)))
    A('s_add_u32 %s, %s, %s' % (s(sUOFF), s(sUOFF), s(sT0)))
    A('s_add_u32 %s, %s, %d' % (s(sUOFF), s(sUOFF), U_OFF))
    A('s_mul_i32 %s, %s, %d' % (s(sT3), s(sV), WCV))
    A('s_add_u32 %s, %s, %d' % (s(sT3), s(sT3), WIMGV))
    event(A, 3)
    load_weights(A, VA, 32768)
    event(A, 5)
    group_wait(A)
    event(A, 6, v(vT), v(vT + 1))
    event_spin(A, 13, v(vT), v(vT + 1))
    A('s_mov_b32 %s, 0' % s(sSTEP))
    A('s_mov_b32 %s, %d' % (s(sSLOT), MB_OFF))
    A('s_mov_b32 %s, %d' % (s(sUOK), 1000 if G.dev_nowait else 0))
    for j in range(2):
        A('v_min_u32 %s, -2, %s' % (v(VR + j), v(VR + j)))
        A('buffer_store_dword %s, %s, %s, %s offen offset:%d' % (v(VR + j), v(vMST), s(S_WS, 4), s(sSLOT), 16 * j))
    A('v_mov_b32 %s, 1' % v(VHV))
    A('s_barrier')
    hint_send(A, VHV, VHA)
    def lread(i):
        j = VLDS.index(VORD[i])
        return ['ds_read_b128 %s, %s offset:%d' % (v(LB + 8 * (i & 1) + 4 * hi, 4), v(vLW), (2 * j + hi) * 1024) for hi in range(2)]
    BF = [0, 8, 16, 24, 32, 40, 48, 80, 88]
    OD, PA, PKD = 96, 104, 56
    sP0 = 93
    def top():
        A('s_add_u32 %s, %s, 1' % (s(sSTEP1), s(sSTEP)))
        for j in range(4): A('s_add_u32 %s, %s, %d' % (s(88 + j), s(sUOFF), j * 28672))
    top()
    A.label('L_value_loop')
    if G.stamps != 2: stamp(A, 0)
    ul = u_loads(); nb1 = PRM['nb1']
    extra = {}
    for i in range(2, 10):
        r, k = VORD[i - 2]
        extra.setdefault(5 * r + k - 2, []).extend(lread(i))
    A('s_add_u32 %s, %s, 2' % (s(sT0), s(sSTEP)))
    extra.setdefault(0, []).append('v_mov_b32 %s, %s' % (v(VHV), s(sT0)))
    for x in lread(0) + lread(1) + ['v_pk_mov_b32 %s, 0, 0' % v(2 * i, 2) for i in range(16)]: A(x)
    post = ['s_barrier']
    for j, x in enumerate(ul[:nb1]): post += x
    main_phase(A, VA, 2, PRM['vdel'], post, ul[nb1:], PRM['uev'], extra, va_epi)
    for x in va_epi(7): A(x)
    for j in range(3): A('s_add_u32 %s, %s, %d' % (s(sP0 + j), s(sSLOT), MB_PO + 4096 * j))
    A('s_add_u32 %s, %s, %d' % (s(sSLOT), s(sSLOT), MB_STEP))
    for p in range(2): A('ds_write_b128 %s, %s offset:%d' % (v(vVW), v(ZB + 4 * p, 4), p * 1024))
    A('s_waitcnt vmcnt(0) lgkmcnt(0)')
    A('s_barrier')
    stamp(A, 5)
    def bread(f):
        c, p = f >> 1, f & 1
        return ['ds_read_b128 %s, %s offset:%d' % (v(BF[f % 9] + 4 * hi, 4), v(vVR), c * 4096 + hi * 2048 + p * 1024) for hi in range(2)]
    pre = []
    for f in range(9):
        pre += bread(f)
        if f in (4, 7): pre.append('s_waitcnt lgkmcnt(4)')
    pre += zero_regs(OD, 8) + ['s_waitcnt lgkmcnt(0)']
    A('s_add_u32 %s, %s, %d' % (s(sUOFF), s(sUOFF), 16 * 28672))
    A('s_add_u32 %s, %s, 1' % (s(sSTEP), s(sSTEP)))
    A('s_cmp_lg_u32 %s, 0' % s(sWAVE))
    A('s_cbranch_scc1 L_value_oth')
    npre = PRM['npre']
    pre1 = zero_regs(OD, 8); pre2 = []
    for f in range(9):
        (pre1 if f < npre else pre2).extend(bread(f))
        if f in (4, 7): (pre1 if f < npre else pre2).append('s_waitcnt lgkmcnt(4)')
    for x in pre1: A(x)
    if G.stamps == 2: stamp(A, 0)
    A('s_barrier')
    stamp(A, 9)
    ld = ['buffer_load_dwordx4 %s, %s, %s, %s offen offset:%d sc1' % (v(PA + 4 * c, 4), v(vL16), s(S_WS, 4), s(sP0 + (c >> 2)), (c & 3) * 1024) for c in range(10)]
    for x in ld: A(x)
    for x in pre2: A(x)
    A('s_waitcnt lgkmcnt(0)')
    A.label('L_pv')
    for f in range(20):
        c, p = f >> 1, f & 1
        if p == 0: A('s_waitcnt vmcnt(%d)' % (9 - c + (1 if f > PRM['vf'] else 0)))
        if f == 0: stamp(A, 6)
        if f >= 9: A('s_waitcnt lgkmcnt(%d)' % min(14, 2 * (min(19, f + 8) - f)))
        A(smf(v(OD + 4 * p, 4), v(PA + 4 * c, 4), v(BF[f % 9], 8)))
        if f == PRM['vf']: hint_send(A, VHV, VHA)
        if f + 9 < 20:
            for x in bread(f + 9): A(x)
    stamp(A, 7)
    A('v_add_f32 %s, %s, %s' % (v(OD), v(OD), v(OD + 2)))
    A('v_add_f32 %s, %s, %s' % (v(OD + 1), v(OD + 1), v(OD + 3)))
    A('v_cmp_u_f32 vcc, %s, %s' % (v(OD), v(OD + 1)))
    A('v_add_f32 %s, %s, %s' % (v(OD + 4), v(OD + 4), v(OD + 6)))
    A('v_add_f32 %s, %s, %s' % (v(OD + 5), v(OD + 5), v(OD + 7)))
    A('s_cbranch_vccnz L_pv_nan')
    A('v_cvt_pk_bf16_f32 %s, %s, %s' % (v(PKD), v(OD), v(OD + 4)))
    A('v_cvt_pk_bf16_f32 %s, %s, %s' % (v(PKD + 1), v(OD + 1), v(OD + 5)))
    A.label('L_pv_ok')
    A('buffer_store_dword %s, %s, %s, %s offen' % (v(PKD), v(vMST), s(S_WS, 4), s(sSLOT)))
    A('buffer_store_dword %s, %s, %s, %s offen offset:16' % (v(PKD + 1), v(vMST), s(S_WS, 4), s(sSLOT)))
    stamp(A, 8)
    if G.stamps:
        A('s_sub_u32 %s, %s, 1' % (s(sSTEP), s(sSTEP)))
        stamp_flush(A, 11, [0, 1, 2, 3, 4, 5, 10, 9, 6, 7][:10] if False else [1, 2, 3, 4, 5, 0, 9, 6, 7, 8])
        A('s_add_u32 %s, %s, 1' % (s(sSTEP), s(sSTEP)))
    A.label('L_value_next')
    top()
    A('s_cmp_lt_u32 %s, 63' % s(sSTEP))
    A('s_cbranch_scc1 L_value_loop')
    stamp_acc_out(A)
    A('s_mov_b32 %s, %d' % (s(sT0), HM_OFF + 63 * HM_STEP))
    for j in range(2): A('buffer_store_dword %s, %s, %s, %s offen offset:%d sc1' % (v(PKD + j), v(vHIST), s(S_WS, 4), s(sT0), 16 * j))
    event(A, 8)
    event_spin(A, 14)
    A('s_branch L_exit')
    A.label('L_value_oth')
    hint_wait(A, sHPRD, sSTEP1, 2, PRM['pdel'], 16, vHP_)
    A('s_branch L_value_next')
    A.label('L_pv_nan')
    A('v_max3_u32 %s, %s, %s, %s' % (v(vT), v(PA), v(PA + 1), v(PA + 2)))
    for i in range(3, 39, 2): A('v_max3_u32 %s, %s, %s, %s' % (v(vT), v(vT), v(PA + i), v(PA + i + 1)))
    A('v_max_u32 %s, %s, %s' % (v(vT), v(vT), v(PA + 39)))
    A('v_cmp_eq_u32 vcc, -1, %s' % v(vT))
    spin_check(A, 'L_pv', ld + pre)
    A('v_cvt_pk_bf16_f32 %s, %s, %s' % (v(PKD), v(OD), v(OD + 4)))
    A('v_cvt_pk_bf16_f32 %s, %s, %s' % (v(PKD + 1), v(OD + 1), v(OD + 5)))
    A('v_min_u32 %s, -2, %s' % (v(PKD), v(PKD)))
    A('v_min_u32 %s, -2, %s' % (v(PKD + 1), v(PKD + 1)))
    A('s_branch L_pv_ok')
    emit_stubs(A)

def helper_role(A):
    A.label('L_helper')
    L = v(vLANE)
    sHW, sJ, sXS, sXD, sSI = sT3, sPRST, sXOFF, sXPF, sUOFF
    LA = PRM['pla']; LT = PRM['plt']
    A('s_sub_u32 %s, %s, 30' % (s(sHW), s(sROLE)))
    A('s_lshl_b32 %s, %s, 2' % (s(sHW), s(sHW)))
    A('s_add_u32 %s, %s, %s' % (s(sHW), s(sHW), s(sWAVE)))
    A('s_min_u32 %s, %s, 6' % (s(sT4), s(sHW)))
    A('s_lshl_b32 %s, %s, 10' % (s(sT0), s(sT4)))
    lexpr(A, 'v10', L, [(0, 6, 16)], s(sT0), 'v1')
    A('s_cmp_lt_u32 %s, 7' % s(sHW))
    A('s_cselect_b32 %s, %s, 0x70000000' % (s(sT0), s(sT0)))
    lexpr(A, 'v11', L, [(4, 2, 256), (1, 1, 128), (2, 2, 32), (0, 1, 16)], s(sT0), 'v1')
    A('s_lshl_b32 %s, %s, 12' % (s(sT0), s(sHW)))
    lexpr(A, 'v12', L, [(0, 5, 128)], s(sT0), 'v1')
    A('s_lshl_b32 %s, %s, 10' % (s(sT0), s(sHW)))
    lexpr(A, 'v13', L, [(3, 2, 8192), (0, 3, 128)], s(sT0), 'v1')
    A('v_mov_b32 v2, %d' % OOB)
    A('v_cmp_gt_u32 vcc, %d, v13' % MB_STEP)
    A('v_cndmask_b32 v13, v2, v13, vcc')
    A('s_lshl_b32 %s, %s, 10' % (s(sT0), s(sHW)))
    lexpr(A, 'v14', L, [(0, 6, 16)], s(sT0), 'v1')
    A('v_add_u32 v15, 8192, v14')
    A('s_cmp_lt_u32 %s, 2' % s(sHW))
    A('s_cselect_b32 %s, 16384, 0' % s(sT0))
    A('v_add_u32 v9, %s, v14' % s(sT0))
    for i in range(4): A('v_mov_b32 %s, -1' % v(4 + i))
    A('s_lshl_b32 %s, %s, 2' % (s(sHWR), s(sHW)))
    A('s_add_u32 %s, %s, %d' % (s(sHWR), s(sHWR), HINT_M + 14 * 4))
    A('v_lshlrev_b32 v1, 8, %s' % L)
    A('v_mov_b32 v2, %d' % OOB)
    A('v_cmp_gt_u32 vcc, %d, %s' % (PRM['nrep'], L))
    A('v_cndmask_b32 v8, v2, v1, vcc')
    A('s_mov_b32 %s, 0' % s(sJ))
    A('s_cmp_eq_u32 %s, 7' % s(sHW))
    A('s_cselect_b32 %s, %d, 1000' % (s(sUOK), 1000 if G.dev_nowait else 0))
    A('s_mov_b32 %s, 0' % s(sXS))
    A('s_mov_b32 %s, %d' % (s(sXD), XF_OFF + LT * 32768))
    A('s_mov_b32 %s, %d' % (s(sSI), MB_OFF))
    def prepare(touch):
        A('s_sub_u32 %s, %s, 1' % (s(sT0), s(sJ)))
        A('s_max_i32 %s, %s, 0' % (s(sT0), s(sT0)))
        A('s_min_u32 %s, %s, %s' % (s(sT0), s(sT0), s(sUOK)))
        A('v_mov_b32 v3, %s' % s(sT0))
        A('buffer_store_dword v3, v8, %s, %s offen' % (s(S_WS, 4), s(sHWR)))
        if touch:
            A('s_add_u32 %s, %s, %d' % (s(sT0), s(sSLOT), LT * MB_STEP))
            A('buffer_load_dword v21, v13, %s, %s offen sc1' % (s(S_WS, 4), s(sT0)))
            A('buffer_load_dword v20, v12, %s, %s offen sc1' % (s(S_WS, 4), s(sXD)))
            A('s_add_u32 %s, %s, 32768' % (s(sXD), s(sXD)))
        e = A.newlabel('L_hsk')
        A('s_cmp_ge_u32 %s, 64' % s(sJ))
        A('s_cbranch_scc1 %s' % e)
        for a_ in ('v14', 'v15', 'v9'): A('buffer_store_dwordx4 v[4:7], %s, %s, %s offen' % (a_, s(S_WS, 4), s(sSI)))
        A('s_add_u32 %s, %s, 1' % (s(sJ), s(sJ)))
        A('s_add_u32 %s, %s, %d' % (s(sSI), s(sSI), MB_STEP))
        A.label(e)
    A.label('L_helper_pre')
    A('s_waitcnt vmcnt(0)')
    prepare(False)
    A('s_cmp_le_u32 %s, %d' % (s(sJ), LA + 1))
    A('s_cbranch_scc1 L_helper_pre')
    if not G.dev_nowait: wait_init(A, D_XG)
    dbg_arrive(A, D_GRP)
    group_wait(A)
    A('s_mov_b32 %s, 0' % s(sSTEP))
    A('s_mov_b32 %s, %d' % (s(sSLOT), MB_OFF))
    A('s_mov_b32 %s, %d' % (s(sHM), HM_OFF))
    A('s_cmp_eq_u32 %s, 7' % s(sHW))
    A('s_cbranch_scc1 L_helper7')
    A.label('L_helper_warm')
    for i in range(LT):
        A('s_mov_b32 %s, %d' % (s(sT0), XF_OFF + i * 32768))
        A('buffer_load_dword v20, v12, %s, %s offen sc1' % (s(S_WS, 4), s(sT0)))
        A('s_mov_b32 %s, %d' % (s(sT0), MB_OFF + i * MB_STEP))
        A('buffer_load_dword v21, v13, %s, %s offen sc1' % (s(S_WS, 4), s(sT0)))
    A('buffer_load_dwordx4 v[16:19], v10, %s, %s offen sc1' % (s(S_WS, 4), s(sSLOT)))
    A('s_waitcnt vmcnt(0)')
    check4(A, 16, 'L_helper_warm', ['s_sleep 8'])
    A.label('L_helper_loop')
    l = A.newlabel('L_hp'); A.label(l)
    A('buffer_load_dwordx4 v[16:19], v10, %s, %s offen sc1' % (s(S_WS, 4), s(sSLOT)))
    A('s_waitcnt vmcnt(0)')
    check4(A, 16, l, ['s_sleep 1'])
    A('buffer_store_dwordx4 v[16:19], v11, %s, %s offen sc1' % (s(S_WS, 4), s(sHM)))
    prepare(True)
    A('s_add_u32 %s, %s, %d' % (s(sSLOT), s(sSLOT), MB_STEP))
    A('s_add_u32 %s, %s, %d' % (s(sHM), s(sHM), HM_STEP))
    A('s_add_u32 %s, %s, 1' % (s(sSTEP), s(sSTEP)))
    A('s_cmp_lt_u32 %s, 64' % s(sSTEP))
    A('s_cbranch_scc1 L_helper_loop')
    A('s_waitcnt vmcnt(0)')
    event(A, 8)
    A('s_branch L_exit')
    A.label('L_helper7')
    A('s_cmp_ge_u32 %s, 64' % s(sUOK))
    A('s_cbranch_scc1 L_h7_b')
    A('s_mov_b32 %s, 0' % s(sT4))
    A('s_branch L_hucheck')
    A.label('L_hucheck_done')
    A('s_sub_u32 %s, %s, 1' % (s(sT0), s(sJ)))
    A('s_min_u32 %s, %s, %s' % (s(sT0), s(sT0), s(sUOK)))
    A('v_mov_b32 v3, %s' % s(sT0))
    A('buffer_store_dword v3, v8, %s, %s offen' % (s(S_WS, 4), s(sHWR)))
    A.label('L_h7_b')
    A('buffer_load_dwordx4 v[16:19], v15, %s, %s offen sc1' % (s(S_WS, 4), s(sSLOT)))
    A('s_waitcnt vmcnt(0)')
    check4(A, 16, 'L_helper7', ['s_sleep 4'])
    prepare(True)
    A('s_add_u32 %s, %s, %d' % (s(sSLOT), s(sSLOT), MB_STEP))
    A('s_add_u32 %s, %s, 1' % (s(sSTEP), s(sSTEP)))
    A('s_cmp_lt_u32 %s, 63' % s(sSTEP))
    A('s_cbranch_scc1 L_helper7')
    A('s_branch L_exit')
    ucheck_code(A, 'L_hucheck', 'L_hucheck_done', 24, 22)
    emit_stubs(A)
```

```python
from common import *
import struct

sRHO, sH, sQ, sTY, sA = 71, 72, 73, 74, 75
sSC, sO1, sO2, sO3, sSEG, sCNT = 76, 77, 78, 79, 80, 81
S_W1 = 92
LW_R2 = 0
LW_ST = 36864
LW_WT = 36864 + 33792
def f2u(x): return struct.unpack('<I', struct.pack('<f', x))[0]

def wait_dbg(A, idx, val, sleep=2):
    l = A.newlabel('L_wd'); e = A.newlabel('L_wd_done')
    A('s_cmp_lg_u32 %s, 0' % s(sWAVE))
    A('s_cbranch_scc1 %s' % e)
    if idx in (D_INIT, D_XG): lexpr(A, 'v2', 'v0', [(0, 2, 64)], idx * 4, 'v3')
    else: A('v_mov_b32 v2, %d' % (idx * 4))
    A.label(l)
    A('buffer_load_dword v3, v2, %s, 0 offen sc1' % s(S_DBG, 4))
    A('s_waitcnt vmcnt(0)')
    A('v_cmp_gt_u32 vcc, %d, v3' % val)
    spin_check(A, l, ['s_sleep %d' % sleep])
    A.label(e)
    A('s_barrier')

def early_prefetch(A):
    e = A.newlabel('L_ep')
    A('s_cmp_eq_u32 %s, 0' % s(sXCC))
    A('s_cbranch_scc1 %s' % e)
    A('s_lshr_b32 %s, s2, 3' % s(sROLE))
    role_decode(A)
    lexpr(A, 'v5', 'v0', [(2, 4, 8192), (0, 2, 128)], 0, 'v6')
    A('s_and_b32 %s, %s, 1' % (s(sT2), s(sWAVE)))
    A('s_lshl_b32 %s, %s, 1' % (s(sT0), s(sQ)))
    A('s_add_u32 %s, %s, %s' % (s(sT0), s(sT0), s(sT2)))
    A('s_lshl_b32 %s, %s, 18' % (s(sT0), s(sT0)))
    A('s_lshl_b32 %s, %s, 9' % (s(sT1), s(sH)))
    A('s_add_u32 %s, %s, %s' % (s(sT0), s(sT0), s(sT1)))
    A('s_add_u32 %s, %s, %d' % (s(sT1), s(sT0), 16 * 8192))
    l2 = A.newlabel('L_ep2'); l3 = A.newlabel('L_ep3')
    A('s_cmp_ge_u32 %s, 2' % s(sWAVE))
    A('s_cbranch_scc1 %s' % l2)
    for j in range(2): A('buffer_load_dword v7, v5, %s, %s offen' % (s(S_W1, 4), s(sT0 + j)))
    A('s_branch %s' % e)
    A.label(l2)
    A('s_cmp_lg_u32 %s, 0' % s(sTY))
    A('s_cbranch_scc1 %s' % l3)
    for j in range(2): A('buffer_load_dword v7, v5, %s, %s offen' % (s(S_WK, 4), s(sT0 + j)))
    A('s_branch %s' % e)
    A.label(l3)
    A('v_lshlrev_b32 v5, 7, v0')
    A('s_lshl_b32 %s, %s, 1' % (s(sT0), s(sQ)))
    A('s_add_u32 %s, %s, %s' % (s(sT0), s(sT0), s(sT2)))
    A('s_lshl_b32 %s, %s, 14' % (s(sT0), s(sT0)))
    A('s_mul_i32 %s, %s, 229376' % (s(sT1), s(sH)))
    A('s_add_u32 %s, %s, %s' % (s(sT0), s(sT0), s(sT1)))
    A('s_add_u32 %s, %s, 8192' % (s(sT1), s(sT0)))
    for j in range(2): A('buffer_load_dword v7, v5, %s, %s offen' % (s(S_WO, 4), s(sT0 + j)))
    A.label(e)

def worker_entry(A):
    A.label('L_worker')
    A('s_mov_b32 %s, %d' % (s(sSPIN), SPIN_MAX))
    role_decode(A)

def role_decode(A):
    A('s_sub_u32 %s, %s, 1' % (s(sRHO), s(sXCC)))
    A('s_lshl_b32 %s, %s, 5' % (s(sRHO), s(sRHO)))
    A('s_add_u32 %s, %s, %s' % (s(sRHO), s(sRHO), s(sROLE)))
    A('s_mul_i32 %s, %s, 9363' % (s(sT0), s(sRHO)))
    A('s_lshr_b32 %s, %s, 16' % (s(sT0), s(sT0)))
    A('s_mul_i32 %s, %s, 7' % (s(sT1), s(sT0)))
    A('s_sub_u32 %s, %s, %s' % (s(sQ), s(sRHO), s(sT1)))
    A('s_lshr_b32 %s, %s, 4' % (s(sTY), s(sT0)))
    A('s_and_b32 %s, %s, 15' % (s(sH), s(sT0)))
    A('s_mul_i32 %s, %s, 7' % (s(sA), s(sH)))
    A('s_add_u32 %s, %s, %s' % (s(sA), s(sA), s(sQ)))
    A('s_cmp_eq_u32 %s, 0' % s(sTY))
    A('s_cselect_b32 %s, %s, %s' % (s(S_W1), s(S_WQ), s(S_WV)))
    A('s_cselect_b32 %s, %s, %s' % (s(S_W1 + 1), s(S_WQ + 1), s(S_WV + 1)))
    A('s_mov_b32 %s, 3670016' % s(S_W1 + 2))
    A('s_mov_b32 %s, 0x00020000' % s(S_W1 + 3))
    A('s_cselect_b32 %s, 0x%x, 1.0' % (s(sSC), f2u(SCALE_LOG2E)))

def zero_flags(A):
    A('s_cmp_eq_u32 %s, 3' % s(sWAVE))
    A('s_cselect_b32 %s, 0, 0x70000000' % s(sT1))
    A('s_cselect_b64 vcc, 1, 0')
    lexpr(A, 'v13', 'v0', [(0, 6, 16)], s(sT1), 'v1')
    A('v_mov_b32 v3, %d' % OOB)
    A('s_and_b32 %s, %s, 3' % (s(sT0), s(sRHO)))
    A('s_lshl_b32 %s, %s, 6' % (s(sT0), s(sT0)))
    A('s_add_u32 %s, %s, %d' % (s(sT0), s(sT0), D_INIT * 4))
    A('v_mov_b32 v1, %s' % s(sT0))
    A('v_cndmask_b32 v11, v3, v1, vcc')
    A('s_lshl_b32 %s, %s, 6' % (s(sT0), s(sRHO)))
    A('s_mul_i32 %s, %s, 192' % (s(sT2), s(sRHO)))
    A('s_add_u32 %s, %s, %d' % (s(sT2), s(sT2), 0x4000 - 64))
    A('v_mov_b32 v1, %s' % s(sT0))
    A('v_mov_b32 v2, %s' % s(sT2))
    A('v_cmp_gt_u32 vcc, 16, v0')
    A('v_cndmask_b32 v2, v2, v1, vcc')
    A('v_lshl_add_u32 v2, v0, 2, v2')
    A('v_add_u32 v2, %s, v2' % s(sT1))
    A('v_mov_b32 v3, 0')
    A('v_mov_b32 v12, 1')
    for i in range(4): A('v_mov_b32 %s, -1' % v(16 + i))
    A('s_mov_b32 %s, %d' % (s(sT0), FLAGS))
    A('buffer_store_dword v3, v2, %s, %s offen sc1' % (s(S_WS, 4), s(sT0)))
    A('s_lshl_b32 %s, %s, 11' % (s(sT0), s(sRHO)))
    A('s_add_u32 %s, %s, %d' % (s(sT0), s(sT0), HM_OFF))
    A('buffer_store_dwordx4 v[16:19], v13, %s, %s offen sc1' % (s(S_WS, 4), s(sT0)))
    A('buffer_store_dwordx4 v[16:19], v13, %s, %s offen offset:1024 sc1' % (s(S_WS, 4), s(sT0)))

sXGD = 100
def xg_load(A):
    A('s_lshl_b32 %s, %s, 2' % (s(sT0), s(sRHO)))
    A('s_add_u32 %s, %s, %s' % (s(sT0), s(sT0), s(sWAVE)))
    A('s_mul_i32 %s, %s, 9363' % (s(sT1), s(sT0)))
    A('s_lshr_b32 %s, %s, 16' % (s(sT1), s(sT1)))
    A('s_mul_i32 %s, %s, 7' % (s(sT2), s(sT1)))
    A('s_sub_u32 %s, %s, %s' % (s(sT2), s(sT0), s(sT2)))
    A('s_lshl_b32 %s, %s, 7' % (s(sT2), s(sT2)))
    A('s_lshr_b32 %s, %s, 1' % (s(sT3), s(sT1)))
    A('s_mul_i32 %s, %s, 28672' % (s(sT3), s(sT3)))
    A('s_add_u32 %s, %s, %s' % (s(sT2), s(sT2), s(sT3)))
    A('s_and_b32 %s, %s, 1' % (s(sT3), s(sT1)))
    A('s_mul_i32 %s, %s, %d' % (s(sT3), s(sT3), 4 * 896))
    A('s_add_u32 %s, %s, %s' % (s(sT2), s(sT2), s(sT3)))
    lexpr(A, 'v48', 'v0', [(2, 2, 8 * 896), (0, 2, 896), (4, 2, 16)], 0, 'v1')
    A('buffer_load_dwordx4 v[40:43], v48, %s, %s offen' % (s(S_BX, 4), s(sT2)))
    A('buffer_load_dwordx4 v[44:47], v48, %s, %s offen offset:64' % (s(S_BX, 4), s(sT2)))
    A('s_lshl_b32 %s, %s, 11' % (s(sXGD), s(sT0)))
    A('s_add_u32 %s, %s, %d' % (s(sXGD), s(sXGD), XG_OFF))
    A('s_lshr_b32 %s, %s, 1' % (s(sT1), s(sT1)))
    A('s_mul_i32 %s, %s, 14' % (s(sT2), s(sT1)))
    A('s_sub_u32 %s, %s, %s' % (s(sT0), s(sT0), s(sT2)))
    A('s_lshl_b32 %s, %s, 15' % (s(sXGD + 1), s(sT1)))
    A('s_lshl_b32 %s, %s, 11' % (s(sT2), s(sT0)))
    A('s_add_u32 %s, %s, %s' % (s(sXGD + 1), s(sXGD + 1), s(sT2)))
    A('s_add_u32 %s, %s, %d' % (s(sXGD + 1), s(sXGD + 1), XF_OFF))
    A('s_mul_i32 %s, %s, 28672' % (s(sT1), s(sT1)))
    A('s_lshr_b32 %s, %s, 1' % (s(sT2), s(sT0)))
    A('s_lshl_b32 %s, %s, 5' % (s(sT2), s(sT2)))
    A('s_add_u32 %s, %s, %s' % (s(sT1), s(sT1), s(sT2)))
    A('s_and_b32 %s, %s, 1' % (s(sT2), s(sT0)))
    A('s_mul_i32 %s, %s, 896' % (s(sT2), s(sT2)))
    A('s_add_u32 %s, %s, %s' % (s(sT1), s(sT1), s(sT2)))
    lexpr(A, 'v49', 'v0', [(3, 1, 16 * 896), (0, 2, 4 * 896), (2, 1, 2 * 896), (5, 1, 224), (4, 1, 16)], 0, 'v1')
    A('buffer_load_dwordx4 v[32:35], v49, %s, %s offen' % (s(S_BX, 4), s(sT1)))
    A('buffer_load_dwordx4 v[36:39], v49, %s, %s offen offset:448' % (s(S_BX, 4), s(sT1)))
    A('v_lshlrev_b32 v48, 4, v0')

WF = 256
vST = 4
def phase_w1(A):
    W2F = 256
    AFR = (64, 96)
    DD = (128, 160)
    PC = 192
    vSRC, vRD, vDST, vR2W, vR2R, vG2 = 16, 24, 28, 8, 9, 10
    R2 = 3 * 32768
    sB1, sCI, sRING, sCS = sO3, sSEG, sCNT, 83
    vm = ['i', 'i', 'i']
    done = [0]
    def V(x, tag):
        A(x); vm.append(tag)
    def vwait(tag):
        last = max(i for i, tg in enumerate(vm) if tg == tag)
        return 's_waitcnt vmcnt(%d)' % (len(vm) - 1 - last)
    A('s_cmp_lg_u32 %s, 0' % s(sTY))
    A('s_cbranch_scc1 L_w1_b')
    lexpr(A, v(vG2), 'v0', [(5, 1, 8192), (0, 5, 16)], 0, 'v1')
    A('s_lshl_b32 %s, %s, 2' % (s(sT0), s(sQ)))
    A('s_add_u32 %s, %s, %s' % (s(sT0), s(sT0), s(sWAVE)))
    A('s_lshl_b32 %s, %s, 17' % (s(sT0), s(sT0)))
    A('s_lshl_b32 %s, %s, 9' % (s(sT1), s(sH)))
    A('s_add_u32 %s, %s, %s' % (s(sT0), s(sT0), s(sT1)))
    for j in range(8):
        A('buffer_load_dwordx4 %s, %s, %s, %s offen' % (v(64 + 4 * j, 4), v(vG2), s(S_WK, 4), s(sT0)))
        if j < 7: A('s_add_u32 %s, %s, 16384' % (s(sT0), s(sT0)))
    A('s_branch L_w1_c')
    A.label('L_w1_b')
    lexpr(A, v(vG2), 'v0', [(3, 3, 896), (0, 3, 16)], 0, 'v1')
    A('s_mul_i32 %s, %s, 229376' % (s(sT0), s(sH)))
    A('s_mul_i32 %s, %s, %d' % (s(sT1), s(sWAVE), 64 * 896))
    A('s_add_u32 %s, %s, %s' % (s(sT0), s(sT0), s(sT1)))
    A('s_lshl_b32 %s, %s, 7' % (s(sT1), s(sQ)))
    A('s_add_u32 %s, %s, %s' % (s(sT0), s(sT0), s(sT1)))
    for j in range(8):
        A('buffer_load_dwordx4 %s, %s, %s, %s offen' % (v(64 + 4 * j, 4), v(vG2), s(S_WO, 4), s(sT0)))
        if j < 7: A('s_add_u32 %s, %s, %d' % (s(sT0), s(sT0), 8 * 896))
    A.label('L_w1_c')
    vm.extend(['w2'] * 8)
    A('v_lshrrev_b32 v1, 5, v0')
    A('v_and_b32 v2, 31, v0')
    A('v_xor_b32 v2, v2, v1')
    A('v_lshlrev_b32 v1, 13, v1')
    for j in range(8):
        g = j >> 1
        rowoff = 16 * (g >> 1) + 4 * (g & 1) + 8 * (j & 1)
        A('v_xor_b32 v3, %d, v2' % (2 * j))
        A('v_lshl_add_u32 v3, v3, 4, v1')
        A('v_add_u32 %s, %d, v3' % (v(vSRC + j), rowoff * 8192))
    A('s_lshl_b32 %s, %s, 9' % (s(sB1), s(sH)))
    A('s_lshl_b32 %s, %s, 13' % (s(sRING), s(sWAVE)))
    if PRM['wrot'] == 3:
        A('s_and_b32 %s, %s, 1' % (s(sT0), s(sQ)))
        A('s_lshl_b32 %s, %s, 2' % (s(sT0), s(sT0)))
    else: A('s_mul_i32 %s, %s, %d' % (s(sT0), s(sQ), PRM['wrot']))
    A('s_add_u32 %s, %s, %s' % (s(sT0), s(sT0), s(sWAVE)))
    for i in range(4):
        A('s_add_u32 %s, %s, %d' % (s(96 + i), s(sT0), 4 * i))
        A('s_sub_u32 %s, %s, 14' % (s(sT1), s(96 + i)))
        A('s_cmp_ge_u32 %s, 14' % s(96 + i))
        A('s_cselect_b32 %s, %s, %s' % (s(96 + i), s(sT1), s(96 + i)))
    def dma(tl):
        i, T = tl >> 1, tl & 1
        o = [('s_lshl_b32 %s, %s, 18' % (s(sO2), s(96 + i)), None), ('s_add_u32 %s, %s, %s' % (s(sO2), s(sO2), s(sB1)), None)]
        if T: o.append(('s_add_u32 %s, %s, %d' % (s(sO2), s(sO2), 2 * 8192), None))
        for j in range(8):
            o.append(('s_add_u32 m0, %s, %d' % (s(sRING), (tl & 3) * 32768 + j * 1024), None))
            o.append(('buffer_load_dwordx4 %s, %s, %s offen%s lds' % (v(vSRC + j), s(S_W1, 4), s(sO2), PRM_S['wfl']), 't%d' % tl))
        return o
    def emit(x):
        if x[1]: V(x[0], x[1])
        elif callable(x[0]): A(x[0]())
        else: A(x[0])
    for tl in range(2):
        for x in dma(tl): emit(x)
    A('v_and_b32 v1, 15, v0')
    A('v_lshrrev_b32 v2, 4, v0')
    A('v_xor_b32 v2, v2, v1')
    A('v_lshl_add_u32 v1, v1, 9, %s' % s(sRING))
    for k in range(4):
        A('v_xor_b32 v3, %d, v2' % (4 * k))
        A('v_lshl_add_u32 %s, v3, 4, v1' % v(vRD + k))
    A('s_cmp_lg_u32 %s, 0' % s(sTY))
    A('s_cbranch_scc1 L_w1_b2')
    A('s_mul_i32 %s, %s, %d' % (s(sT0), s(sWAVE), 16 * 528))
    A('s_add_u32 %s, %s, %d' % (s(sT0), s(sT0), R2))
    lexpr(A, v(vR2W), 'v0', [(5, 1, 528), (0, 5, 16)], s(sT0), 'v1')
    lexpr(A, v(vR2R), 'v0', [(0, 4, 528), (4, 2, 16)], R2, 'v1')
    A('s_mul_i32 %s, %s, %d' % (s(sT0), s(sH), WCU))
    A('s_lshl_b32 %s, %s, 12' % (s(sT1), s(sQ)))
    A('s_add_u32 %s, %s, %s' % (s(sT0), s(sT0), s(sT1)))
    lexpr(A, v(vDST), 'v0', [(0, 6, 16)], s(sT0), 'v1')
    for nt in range(1, 4): A('v_add_u32 %s, %d, %s' % (v(vDST + nt), nt * 1024, v(vDST)))
    A('s_mov_b32 %s, 28672' % s(sCS))
    levent(A, 0)
    A(vwait('w2'))
    levent(A, 1)
    for j in range(8): A('ds_write_b128 %s, %s offset:%d' % (v(vR2W), v(64 + 4 * j, 4), j * 1056))
    A('s_waitcnt lgkmcnt(0)')
    A('s_barrier')
    for nt in range(4):
        for ks in range(8):
            A('ds_read_b128 %s, %s offset:%d' % (u(W2F + (nt * 8 + ks) * 4, 4), v(vR2R), nt * 16 * 528 + ks * 64))
            if ks % 4 == 3: A('s_waitcnt lgkmcnt(8)')
    A('s_branch L_w1_c2')
    A.label('L_w1_b2')
    A('s_mul_i32 %s, %s, %d' % (s(sT0), s(sWAVE), 64 * 144))
    A('s_add_u32 %s, %s, %d' % (s(sT0), s(sT0), R2))
    lexpr(A, v(vR2W), 'v0', [(3, 3, 144), (0, 3, 8)], s(sT0), 'v1')
    lexpr(A, v(vR2R), 'v0', [(4, 2, 8 * 144), (2, 2, 144), (0, 2, 8)], R2, 'v1')
    A('s_mul_i32 %s, %s, %d' % (s(sT0), s(sQ), 2 * WCV))
    A('s_lshl_b32 %s, %s, 11' % (s(sT1), s(sH)))
    A('s_add_u32 %s, %s, %s' % (s(sT0), s(sT0), s(sT1)))
    A('s_add_u32 %s, %s, %d' % (s(sT0), s(sT0), WIMGV))
    lexpr(A, v(vDST), 'v0', [(0, 6, 16)], s(sT0), 'v1')
    for nt in range(1, 4): A('v_add_u32 %s, %d, %s' % (v(vDST + nt), (nt & 1) * WCV + (nt >> 1) * 1024, v(vDST)))
    A('s_mov_b32 %s, 32768' % s(sCS))
    A('s_mov_b32 %s, 0x05040100' % s(sT0))
    A('s_mov_b32 %s, 0x07060302' % s(sT1))
    levent(A, 0)
    A(vwait('w2'))
    levent(A, 1)
    for j in range(8):
        r, o = 64 + 4 * j, 96 + 4 * j
        A('v_perm_b32 %s, %s, %s, %s' % (v(o), v(r + 1), v(r), s(sT0)))
        A('v_perm_b32 %s, %s, %s, %s' % (v(o + 1), v(r + 3), v(r + 2), s(sT0)))
        A('v_perm_b32 %s, %s, %s, %s' % (v(o + 2), v(r + 1), v(r), s(sT1)))
        A('v_perm_b32 %s, %s, %s, %s' % (v(o + 3), v(r + 3), v(r + 2), s(sT1)))
        A('ds_write_b64 %s, %s offset:%d' % (v(vR2W), v(o, 2), j * 8 * 144))
        A('ds_write_b64 %s, %s offset:%d' % (v(vR2W), v(o + 2, 2), j * 8 * 144 + 64))
        if j == 4: A('s_waitcnt lgkmcnt(4)')
    A('s_waitcnt lgkmcnt(0)')
    A('s_barrier')
    for nt in range(4):
        for ks in range(8):
            for tt in range(2):
                A('ds_read_b64_tr_b16 %s, %s offset:%d' % (u(W2F + (nt * 8 + ks) * 4 + 2 * tt, 2), v(vR2R), (32 * ks + 4 * tt) * 144 + (nt >> 1) * 64 + (nt & 1) * 32))
            if ks % 2 == 1: A('s_waitcnt lgkmcnt(8)')
    A.label('L_w1_c2')
    V('buffer_atomic_add v12, v11, %s, 0 offen' % s(S_DBG, 4), 'at')
    for x in dma(2): emit(x)
    xst = ['buffer_store_dwordx4 v[32:35], v48, %s, %s offen sc1' % (s(S_WS, 4), s(sXGD + 1)),
           'buffer_store_dwordx4 v[36:39], v48, %s, %s offen offset:1024 sc1' % (s(S_WS, 4), s(sXGD + 1)),
           'buffer_store_dwordx4 v[40:43], v48, %s, %s offen sc1' % (s(S_WS, 4), s(sXGD)),
           'buffer_store_dwordx4 v[44:47], v48, %s, %s offen offset:1024 sc1' % (s(S_WS, 4), s(sXGD))]
    def reads(tl):
        o = [((lambda tl=tl: vwait('t%d' % tl)), None)]
        for ks in range(8):
            off = (tl & 3) * 32768 + (ks >> 2) * 256
            if off > 65535: reg, off = vRD + 36 + (ks & 3), off - 65536
            else: reg = vRD + (ks & 3)
            o.append(('ds_read_b128 %s, %s offset:%d' % (v(AFR[tl & 1] + 4 * ks, 4), v(reg), off), None))
        return o
    for k in range(4): A('v_add_u32 %s, 0x10000, %s' % (v(vRD + 36 + k), v(vRD + k)))
    def post(i):
        D = DD[i & 1]
        o = [('s_mul_i32 %s, %s, %s' % (s(sT3), s(96 + i), s(sCS)), None)]
        for nt in range(4):
            for T in range(2):
                d = D + (T * 4 + nt) * 4
                for r in range(4): o.append(('v_mul_f32 %s, %s, %s' % (v(d + r), s(sSC), v(d + r)), None))
                pc = PC + (i * 4 + nt) * 4 + 2 * T
                o.append(('v_cvt_pk_bf16_f32 %s, %s, %s' % (v(pc), v(d), v(d + 1)), None))
                o.append(('v_cvt_pk_bf16_f32 %s, %s, %s' % (v(pc + 1), v(d + 2), v(d + 3)), None))
            o.append(('buffer_store_dwordx4 %s, %s, %s, %s offen sc1' % (v(PC + (i * 4 + nt) * 4, 4), v(vDST + nt), s(S_WS, 4), s(sT3)), 'st%d' % i))
        return o
    levent(A, 2)
    for x in reads(0): emit(x)
    A('s_waitcnt lgkmcnt(0)')
    A('s_barrier')
    A('s_lshl_b32 %s, %s, 6' % (s(sT0), s(sRHO)))
    A('s_lshl_b32 %s, %s, 2' % (s(sT1), s(sWAVE)))
    A('s_add_u32 %s, %s, %s' % (s(sT0), s(sT0), s(sT1)))
    A('s_add_u32 %s, %s, %d' % (s(sT0), s(sT0), FLG_W1))
    lane0_addr(A, 'v14', s(sT0))
    q2 = []
    for tl in range(8):
        if tl == PRM['wxs']:
            A(vwait('xl'))
            for x in xst: V(x, 'xs')
        if tl == 6:
            A(vwait('xs'))
            A('s_barrier')
            A('v_mov_b32 v15, 1')
            V('buffer_atomic_add v15, v11, %s, 0 offen offset:%d' % (s(S_DBG, 4), (D_XG - D_INIT) * 4), 'at')
        if tl == PRM['wxl']:
            xg_load(A); vm.extend(['xl'] * 4)
        if tl == 6:
            for x in q2: emit(x)
            q2 = []
            A('s_cmp_ge_u32 %s, 2' % s(sWAVE))
            A('s_cbranch_scc0 L_w1_last')
            for x in post(2):
                if callable(x[0]): A(x[0]())
                else: A(x[0])
            A('s_branch L_w1_done')
            A.label('L_w1_last')
        A('s_waitcnt lgkmcnt(0)')
        if tl == 4: levent(A, 3)
        D = DD[(tl >> 1) & 1] + (tl & 1) * 16
        q1 = (dma(tl + 3) if tl + 3 < 8 else [])
        qr = reads(tl + 1) if tl < 7 else []
        if tl >= 2 and tl % 2 == 0: q2 = post(tl // 2 - 1)
        n = 0
        for ks in range(8):
            for nt in range(4):
                A('v_mfma_f32_16x16x32_bf16 %s, %s, %s, %s' % (v(D + 4 * nt, 4), v(AFR[tl & 1] + 4 * ks, 4), u(W2F + (nt * 8 + ks) * 4, 4), '0' if ks == 0 else v(D + 4 * nt, 4)))
                n += 1
                def pop(qq):
                    while qq:
                        x = qq.pop(0); emit(x)
                        if not callable(x[0]) and not x[0].startswith('s_'): break
                if n >= 3:
                    pop(q2); pop(q2)
                if n % PRM['wsp'] == 1: pop(q1)
                if n >= 16 and n % 2 == 0: pop(qr)
                if tl in (3, 5, 7) and n == PRM['wfn']:
                    A(vwait('st%d' % (tl // 2 - 1)))
                    A('v_mov_b32 v12, %d' % (tl // 2))
                    V('buffer_store_dword v12, v14, %s, 0 offen sc1' % s(S_WS, 4), 'fl')
        for x in q1 + qr: emit(x)
    for x in q2 + post(3): emit(x)
    A.label('L_w1_done')
    A('v_mov_b32 v9, 4')
    A('s_waitcnt vmcnt(0)')
    A('buffer_store_dword v9, v14, %s, 0 offen sc1' % s(S_WS, 4))
    event(A, 2)
    levent_flush(A, 4, 9)
    A('s_waitcnt lgkmcnt(0)')
    A('s_barrier')

def phase_w1b(A):
    PC = 192
    lexpr(A, 'v8', 'v0', [(0, 4, 912), (5, 1, 32), (4, 1, 8)], 0, 'v1')
    for i in range(4):
        if i == 3:
            A('s_cmp_ge_u32 %s, 2' % s(sWAVE))
            A('s_cbranch_scc1 L_w1b_s')
        A('s_lshl_b32 %s, %s, 6' % (s(sT0), s(96 + i)))
        for nt in range(4):
            A('s_add_u32 %s, %s, %d' % (s(sT1), s(sT0), nt * 16 * 912))
            A('v_add_u32 v9, %s, v8' % s(sT1))
            pc = PC + (i * 4 + nt) * 4
            A('ds_write2_b32 v9, %s, %s offset0:0 offset1:1' % (v(pc), v(pc + 2)))
            A('ds_write2_b32 v9, %s, %s offset0:4 offset1:5' % (v(pc + 1), v(pc + 3)))
        A('s_waitcnt lgkmcnt(4)')
    A.label('L_w1b_s')
    A('s_cmp_lg_u32 %s, 0' % s(sTY))
    A('s_cbranch_scc1 L_w1b_b')
    for nt in range(4):
        lexpr(A, v(12 + nt), 'v0', [(2, 2, 8 * 912), (0, 2, 912), (4, 2, 16)], (32 * (nt >> 1) + 4 * (nt & 1)) * 912, 'v1')
    A('s_mul_i32 %s, %s, 28672' % (s(sT0), s(sH)))
    A('s_lshl_b32 %s, %s, 11' % (s(sT1), s(sQ)))
    A('s_add_u32 %s, %s, %s' % (s(sT0), s(sT0), s(sT1)))
    lexpr(A, v(vST), 'v0', [(0, 6, 16)], s(sT0), 'v1')
    A('v_add_u32 %s, 1024, %s' % (v(vST + 1), v(vST)))
    A('v_add_u32 %s, 14336, %s' % (v(vST + 2), v(vST)))
    A('v_add_u32 %s, 15360, %s' % (v(vST + 3), v(vST)))
    A('s_mov_b32 %s, %d' % (s(sO3), YX_OFF))
    A('s_branch L_w1b_c')
    A.label('L_w1b_b')
    for nt in range(4):
        lexpr(A, v(12 + nt), 'v0', [(0, 4, 912), (4, 2, 16)], 16 * nt * 912, 'v1')
    A('s_mul_i32 %s, %s, 28672' % (s(sT0), s(sH)))
    A('s_lshl_b32 %s, %s, 12' % (s(sT1), s(sQ)))
    A('s_add_u32 %s, %s, %s' % (s(sT0), s(sT0), s(sT1)))
    lexpr(A, v(vST), 'v0', [(0, 6, 16)], s(sT0), 'v1')
    for nt in range(1, 4): A('v_add_u32 %s, %d, %s' % (v(vST + nt), (nt & 1) * 2048 + (nt >> 1) * 1024, v(vST)))
    A('s_mov_b32 %s, %d' % (s(sO3), U_OFF))
    A.label('L_w1b_c')
    A('s_waitcnt lgkmcnt(0)')
    A('s_barrier')
    for nt in range(4):
        for ks in range(14):
            A('ds_read_b128 %s, %s offset:%d' % (u(WF + (nt * 14 + ks) * 4, 4), v(12 + nt), ks * 64))
            if ks % 7 == 6: A('s_waitcnt lgkmcnt(7)')
    A('s_waitcnt lgkmcnt(0)')
    wait_dbg(A, D_XG, 56, 16)

def phase_w2(A, ty):
    tag = 'AB'[ty]
    D, PK = 16, 48
    vXG, vFL, vFV = 8, 9, 10
    def X(b, t, ks):
        r = 64 + b * 112 + (t * 14 + ks) * 4
        return u(r if r < 256 else r - 256 + 256 + 224, 4)
    A.label('L_w2' + tag)
    lexpr(A, v(vXG), 'v0', [(0, 6, 16)], 0, 'v1')
    A('s_lshl_b32 %s, %s, 2' % (s(sT0), s(sA)))
    A('s_add_u32 %s, %s, %s' % (s(sT0), s(sT0), s(sWAVE)))
    A('s_lshl_b32 %s, %s, 2' % (s(sT0), s(sT0)))
    A('s_add_u32 %s, %s, %d' % (s(sT0), s(sT0), FLG_W2 + ty * 1792))
    A('v_mov_b32 v1, %s' % s(sT0))
    A('v_mov_b32 v2, %d' % OOB)
    A('v_cmp_eq_u32 vcc, 0, v0')
    A('v_cndmask_b32 %s, v2, v1, vcc' % v(vFL))
    A('s_mul_i32 %s, %s, 28672' % (s(sO1), s(sWAVE)))
    A('s_add_u32 %s, %s, %d' % (s(sO1), s(sO1), XG_OFF))
    A('s_mul_i32 %s, %s, %d' % (s(sT0), s(sWAVE), 16 * 28672))
    A('s_add_u32 %s, %s, %s' % (s(sO3), s(sO3), s(sT0)))
    A('s_mov_b32 %s, 0' % s(sCNT))
    def loads(b):
        out = []
        for n in range(28):
            ks, t = n >> 1, n & 1
            off = t * 14336 + ks * 1024
            g = []
            if n % 2 == 0 or True:
                g.append('s_add_u32 %s, %s, %d' % (s(sT2), s(sO1), off & ~4095))
            g.append('buffer_load_dwordx4 %s, %s, %s, %s offen offset:%d sc1' % (X(b, t, ks), v(vXG), s(S_WS, 4), s(sT2), off & 4095))
            out.append(g)
        return out
    for g in loads(0):
        for x in g: A(x)
    A('s_add_u32 %s, %s, %d' % (s(sO1), s(sO1), 4 * 28672))
    for _ in range(5): A('buffer_store_dword v1, v2, %s, 0 offen' % s(S_WS, 4))
    LP = 'L_w2loop' + tag
    A.label(LP)
    for b in range(2):
        ld = loads(1 - b)
        issued = 0
        for ks in range(14):
            A('s_waitcnt vmcnt(%d)' % min(63, 26 - 2 * ks + 5 + issued))
            for t in range(2):
                for nt in range(4):
                    d = v(D + (t * 4 + nt) * 4, 4)
                    w_, x_ = u(WF + (nt * 14 + ks) * 4, 4), X(b, t, ks)
                    a_, b_ = (w_, x_) if ty == 0 else (x_, w_)
                    A('v_mfma_f32_16x16x32_bf16 %s, %s, %s, %s' % (d, a_, b_, '0' if ks == 0 else d))
                    if nt == 1:
                        for x in ld.pop(0): A(x)
                        issued += 1
        A('s_add_u32 %s, %s, %d' % (s(sO1), s(sO1), 4 * 28672))
        A('s_waitcnt vmcnt(28)')
        A('v_mov_b32 %s, %s' % (v(vFV), s(sCNT)))
        A('buffer_store_dword %s, %s, %s, 0 offen sc1' % (v(vFV), v(vFL), s(S_WS, 4)))
        for k in range(4):
            if ty == 0: t, aa = k >> 1, k & 1; d0, d1 = D + (t * 4 + 2 * aa) * 4, D + (t * 4 + 2 * aa + 1) * 4
            else: d0, d1 = D + k * 4, D + (4 + k) * 4
            A('v_cvt_pk_bf16_f32 %s, %s, %s' % (v(PK + 4 * k), v(d0), v(d0 + 1)))
            A('v_cvt_pk_bf16_f32 %s, %s, %s' % (v(PK + 4 * k + 1), v(d0 + 2), v(d0 + 3)))
            A('v_cvt_pk_bf16_f32 %s, %s, %s' % (v(PK + 4 * k + 2), v(d1), v(d1 + 1)))
            A('v_cvt_pk_bf16_f32 %s, %s, %s' % (v(PK + 4 * k + 3), v(d1 + 2), v(d1 + 3)))
            A('buffer_store_dwordx4 %s, %s, %s, %s offen sc1' % (v(PK + 4 * k, 4), v(vST + k), s(S_WS, 4), s(sO3)))
        A('s_add_u32 %s, %s, %d' % (s(sO3), s(sO3), 4 * 16 * 28672))
        A('s_add_u32 %s, %s, 1' % (s(sCNT), s(sCNT)))
    A('s_cmp_lt_u32 %s, 16' % s(sCNT))
    A('s_cbranch_scc1 %s' % LP)
    A('s_waitcnt vmcnt(0)')
    A('v_mov_b32 %s, 16' % v(vFV))
    A('buffer_store_dword %s, %s, %s, 0 offen sc1' % (v(vFV), v(vFL), s(S_WS, 4)))

def wait_flags(A, vaddr, soff, sval, sleep, tmp='v3', coarse=False):
    l = A.newlabel('L_wf')
    A.label(l)
    A('buffer_load_dword %s, %s, %s, %s offen sc1' % (tmp, vaddr, s(S_WS, 4), soff))
    A('s_waitcnt vmcnt(0)')
    A('v_cmp_gt_u32 vcc, %s, %s' % (sval, tmp))
    if coarse:
        fine = A.newlabel('L_wff')
        spin_check(A, l, ['s_cmp_ge_u32 %s, %d' % (s(sSEG), PRM['fine']), 's_cbranch_scc1 %s' % fine, 's_sleep %d' % PRM['zs'], fine + ':', 's_sleep 1'])
    else: spin_check(A, l, ['s_sleep %d' % sleep])

def load_hm(A, M, va, vb, so, mm):
    l = A.newlabel('L_hm'); l2 = A.newlabel('L_hm2'); l3 = A.newlabel('L_hm3')
    ld = ['buffer_load_dwordx4 %s, %s, %s, %s offen offset:%d sc1' % (v(M + 4 * ks, 4), va if ks < 8 else vb, s(S_WS, 4), s(so), (ks & 7) * 512) for ks in range(14)]
    A('s_sub_u32 %s, %s, %d' % (s(sT2), s(so), HM_STEP))
    A('s_cmp_ge_u32 %s, %d' % (s(sSEG), PRM['fine']))
    A('s_cselect_b32 %s, %s, %s' % (s(sT2), s(sT2), s(so)))
    A.label(l)
    A('buffer_load_dword v3, %s, %s, %s offen offset:2560 sc1' % (vb, s(S_WS, 4), s(sT2)))
    A('s_waitcnt vmcnt(0)')
    A('v_cmp_eq_u32 vcc, -1, v3')
    spin_check(A, l, ['s_sleep %d' % PRM['zs']])
    A.label(l2)
    for x in ld: A(x)
    A('s_waitcnt vmcnt(13)')
    A('v_cmp_eq_u32 vcc, -1, %s' % v(M))
    spin_check(A, l2, ['s_waitcnt vmcnt(0)'])
    for ks in range(14):
        A('s_waitcnt vmcnt(%d)' % (13 - ks))
        mm(ks)
        r = M + 4 * ks
        if ks == 0: A('v_max_u32 v3, %s, %s' % (v(r), v(r + 1)))
        else: A('v_max3_u32 v3, v3, %s, %s' % (v(r), v(r + 1)))
        A('v_max3_u32 v3, v3, %s, %s' % (v(r + 2), v(r + 3)))
    A('v_cmp_eq_u32 vcc, -1, v3')
    spin_check(A, l2)

def lane0_addr(A, dst, sreg):
    A('v_mov_b32 v1, %s' % sreg)
    A('v_mov_b32 v2, %d' % OOB)
    A('v_cmp_eq_u32 vcc, 0, v0')
    A('v_cndmask_b32 %s, v2, v1, vcc' % dst)

def phase_z(A):
    D, M = 16, 64
    vHF, vHM, vFL = 8, 9, 10
    lexpr(A, v(vHM), 'v0', [(4, 2, 128), (0, 3, 16)], 0, 'v1')
    A('v_add_u32 v11, 4096, %s' % v(vHM))
    A('s_lshl_b32 %s, %s, 2' % (s(sT0), s(sA)))
    A('s_add_u32 %s, %s, %s' % (s(sT0), s(sT0), s(sWAVE)))
    A('s_lshl_b32 %s, %s, 2' % (s(sT0), s(sT0)))
    A('s_add_u32 %s, %s, %d' % (s(sT0), s(sT0), FLG_Z))
    lane0_addr(A, v(vFL), s(sT0))
    A('s_lshr_b32 %s, %s, 2' % (s(sT0), s(sH)))
    A('s_mul_i32 %s, %s, 28672' % (s(sT0), s(sT0)))
    A('s_and_b32 %s, %s, 3' % (s(sT1), s(sH)))
    A('s_lshl_b32 %s, %s, 8' % (s(sT1), s(sT1)))
    A('s_add_u32 %s, %s, %s' % (s(sT0), s(sT0), s(sT1)))
    A('s_lshl_b32 %s, %s, 12' % (s(sT1), s(sQ)))
    A('s_add_u32 %s, %s, %s' % (s(sT0), s(sT0), s(sT1)))
    lexpr(A, 'v12', 'v0', [(0, 4, 16), (4, 1, 8)], s(sT0), 'v1')
    A('v_cmp_gt_u32 vcc, 32, v0')
    A('v_cndmask_b32 %s, v2, v12, vcc' % v(vST))
    A('s_mov_b32 %s, %s' % (s(sSEG), s(sWAVE)))
    A('s_mov_b32 %s, 0' % s(sCNT))
    A.label('L_zloop')
    A('s_mul_i32 %s, %s, %d' % (s(sO1), s(sSEG), HM_STEP))
    A('s_add_u32 %s, %s, %d' % (s(sO1), s(sO1), HM_OFF))
    A('s_mul_i32 %s, %s, %d' % (s(sO2), s(sSEG), HZ_STEP))
    A('s_add_u32 %s, %s, %d' % (s(sO2), s(sO2), HZ_OFF))
    def mm(ks):
        for nt in range(4):
            d = v(D + 4 * nt, 4)
            A('v_mfma_f32_16x16x32_bf16 %s, %s, %s, %s' % (d, v(M + 4 * ks, 4), u(WF + (nt * 14 + ks) * 4, 4), '0' if ks == 0 else d))
    load_hm(A, M, v(vHM), 'v11', sO1, mm)
    for nt in range(4):
        d = D + 4 * nt
        A('v_cvt_pk_bf16_f32 %s, %s, %s' % (v(d), v(d), v(d + 1)))
        A('v_cvt_pk_bf16_f32 %s, %s, %s' % (v(d + 1), v(d + 2), v(d + 3)))
        A('buffer_store_dwordx2 %s, %s, %s, %s offen offset:%d sc1' % (v(d, 2), v(vST), s(S_WS, 4), s(sO2), (nt & 1) * 2048 + (nt >> 1) * 1024))
    A('s_add_u32 %s, %s, 1' % (s(sCNT), s(sCNT)))
    A('v_mov_b32 v3, %s' % s(sCNT))
    A('s_waitcnt vmcnt(0)')
    A('buffer_store_dword v3, %s, %s, 0 offen sc1' % (v(vFL), s(S_WS, 4)))
    A('s_add_u32 %s, %s, 4' % (s(sSEG), s(sSEG)))
    A('s_cmp_lt_u32 %s, 64' % s(sSEG))
    A('s_cbranch_scc1 L_zloop')

sK = 82
def post_dispatch(A):
    A('s_mov_b32 s101, 0')
    A('s_and_b32 %s, %s, 7' % (s(sK), s(sA)))
    A('s_lshr_b32 %s, %s, 3' % (s(sSEG), s(sA)))
    A('s_cmp_ge_u32 %s, 4' % s(sK))
    A('s_cbranch_scc1 L_s2')

def seg_count(A, dst):
    A('s_lshr_b32 %s, %s, 2' % (dst, s(sSEG)))
    A('s_add_u32 %s, %s, 1' % (dst, dst))
    A('s_and_b32 %s, %s, 3' % (s(sT1), s(sSEG)))
    A('s_lshl_b32 %s, %s, 2' % (s(sT1), s(sT1)))

def phase_s1(A):
    XG_, YX_, HM_, D = 256, 256 + 112, 64, 16
    vL16, vYF, vHF, vHM, vHM2, vDL, vPX, vPM, vFL = 4, 5, 6, 7, 8, 9, 10, 11, 12
    T = 40
    sHD = sH
    A.label('L_s1')
    A('s_lshl_b32 %s, %s, 2' % (s(sHD), s(sK)))
    A('s_add_u32 %s, %s, %s' % (s(sHD), s(sHD), s(sWAVE)))
    lexpr(A, v(vL16), 'v0', [(0, 6, 16)], 0, 'v1')
    A('v_min_u32 v1, 6, v0')
    A('s_mul_i32 %s, %s, 7' % (s(sT0), s(sHD)))
    A('v_add_u32 v1, %s, v1' % s(sT0))
    A('v_lshlrev_b32 v1, 4, v1')
    A('v_add_u32 %s, %d, v1' % (v(vYF), FLG_W2))
    lexpr(A, v(vHM), 'v0', [(4, 2, 128), (0, 3, 16)], 0, 'v1')
    A('v_add_u32 %s, 4096, %s' % (v(vHM2), v(vHM)))
    lexpr(A, v(vDL), 'v0', [(2, 2, 8), (0, 2, 1)], 0, 'v1')
    A('v_lshrrev_b32 v1, 4, v0')
    A('v_lshlrev_b32 v1, 3, v1')
    A('v_sub_u32 %s, %s, v1' % (v(vDL), v(vDL)))
    A('s_lshl_b32 %s, %s, 11' % (s(sT0), s(sHD)))
    A('v_add_u32 %s, %s, %s' % (v(vPX), s(sT0), v(vL16)))
    A('s_lshl_b32 %s, %s, 11' % (s(sT0), s(sK)))
    A('s_lshl_b32 %s, %s, 8' % (s(sT1), s(sWAVE)))
    A('s_add_u32 %s, %s, %s' % (s(sT0), s(sT0), s(sT1)))
    A('s_add_u32 %s, %s, %d' % (s(sT0), s(sT0), 16 * 2048))
    lexpr(A, 'v13', 'v0', [(0, 4, 16), (4, 1, 8)], s(sT0), 'v1')
    A('v_mov_b32 v2, %d' % OOB)
    A('v_cmp_gt_u32 vcc, 32, v0')
    A('v_cndmask_b32 %s, v2, v13, vcc' % v(vPM))
    A('s_lshl_b32 %s, %s, 2' % (s(sT0), s(sHD)))
    A('s_add_u32 %s, %s, %d' % (s(sT0), s(sT0), FLG_P))
    lane0_addr(A, v(vFL), s(sT0))
    A('v_mov_b32 v14, 0x%x' % f2u(-1.0e9 * 1.4426950408889634))
    A('v_mov_b32 v15, 0xff800000')
    A.label('L_s1loop')
    seg_count(A, s(sT0))
    wait_flags(A, v(vYF), s(sT1), s(sT0), 16)
    A('s_mul_i32 %s, %s, 28672' % (s(sO1), s(sSEG)))
    A('s_add_u32 %s, %s, %d' % (s(sO1), s(sO1), XG_OFF))
    A('s_lshl_b32 %s, %s, 4' % (s(sO2), s(sSEG)))
    A('s_add_u32 %s, %s, %s' % (s(sO2), s(sO2), s(sHD)))
    A('s_mul_i32 %s, %s, 28672' % (s(sO2), s(sO2)))
    A('s_add_u32 %s, %s, %d' % (s(sO2), s(sO2), YX_OFF))
    for ks in range(14):
        for base, so in ((XG_, sO1), (YX_, sO2)):
            for t in range(2):
                off = t * 14336 + ks * 1024
                A('s_add_u32 %s, %s, %d' % (s(sT2), s(so), off & ~4095))
                A('buffer_load_dwordx4 %s, %s, %s, %s offen offset:%d sc1' % (u(base + (t * 14 + ks) * 4, 4), v(vL16), s(S_WS, 4), s(sT2), off & 4095))
    def Dr(qt, t): return D + (qt * 3 + t) * 4
    for ks in range(14):
        A('s_waitcnt vmcnt(%d)' % (52 - 4 * ks))
        for qt in range(2):
            for t in range(2):
                d = v(Dr(qt, t), 4)
                A('v_mfma_f32_16x16x32_bf16 %s, %s, %s, %s' % (d, u(XG_ + (t * 14 + ks) * 4, 4), u(YX_ + (qt * 14 + ks) * 4, 4), '0' if ks == 0 else d))
    for qt in range(2):
        for t in range(2):
            for r in range(4):
                A('v_cmp_le_i32 vcc, %d, %s' % (4 * (t - qt) + r, v(vDL)))
                A('v_cndmask_b32 %s, v14, %s, vcc' % (v(Dr(qt, t) + r), v(Dr(qt, t) + r)))
        d = Dr(qt, 0)
        A('v_max3_f32 %s, %s, %s, %s' % (v(T + qt), v(d), v(d + 1), v(d + 2)))
        A('v_max3_f32 %s, %s, %s, %s' % (v(T + qt), v(T + qt), v(d + 3), v(d + 4)))
        A('v_max3_f32 %s, %s, %s, %s' % (v(T + qt), v(T + qt), v(d + 5), v(d + 6)))
        A('v_max_f32 %s, %s, %s' % (v(T + qt), v(T + qt), v(d + 7)))
    A('s_mul_i32 %s, %s, %d' % (s(sO1), s(sSEG), HM_STEP))
    A('s_add_u32 %s, %s, %d' % (s(sO1), s(sO1), HM_OFF))
    A('s_mul_i32 %s, %s, 40960' % (s(sO3), s(sSEG)))
    A('s_add_u32 %s, %s, %d' % (s(sO3), s(sO3), PP_OFF))
    def mm(ks):
        for qt in range(2):
            d = v(Dr(qt, 2), 4)
            A('v_mfma_f32_16x16x32_bf16 %s, %s, %s, %s' % (d, v(HM_ + 4 * ks, 4), u(YX_ + (qt * 14 + ks) * 4, 4), '0' if ks == 0 else d))
    load_hm(A, HM_, v(vHM), v(vHM2), sO1, mm)
    A('v_cmp_gt_u32 vcc, 32, v0')
    def xred(op):
        for sw in ('v_permlane16_swap_b32', 'v_permlane32_swap_b32'):
            for qt in range(2): A('v_mov_b32 %s, %s' % (v(T + 2 + qt), v(T + qt)))
            for qt in range(2): A('%s %s, %s' % (sw, v(T + qt), v(T + 2 + qt)))
            for qt in range(2): A('%s %s, %s, %s' % (op, v(T + qt), v(T + qt), v(T + 2 + qt)))
    for qt in range(2):
        d = Dr(qt, 2)
        for r in range(4): A('v_cndmask_b32 %s, v15, %s, vcc' % (v(d + r), v(d + r)))
        A('v_max3_f32 %s, %s, %s, %s' % (v(T + qt), v(T + qt), v(d), v(d + 1)))
        A('v_max3_f32 %s, %s, %s, %s' % (v(T + qt), v(T + qt), v(d + 2), v(d + 3)))
    xred('v_max_f32')
    for qt in range(2):
        d = Dr(qt, 0)
        for i in range(12): A('v_sub_f32 %s, %s, %s' % (v(d + i), v(d + i), v(T + qt)))
        for i in range(12): A('v_exp_f32 %s, %s' % (v(d + i), v(d + i)))
    for qt in range(2):
        d = Dr(qt, 0)
        A('v_add_f32 %s, %s, %s' % (v(T + qt), v(d), v(d + 1)))
        for i in range(2, 12): A('v_add_f32 %s, %s, %s' % (v(T + qt), v(T + qt), v(d + i)))
    xred('v_add_f32')
    for qt in range(2): A('v_rcp_f32 %s, %s' % (v(T + qt), v(T + qt)))
    for qt in range(2):
        d = Dr(qt, 0); o = T + 4 + 8 * qt
        for i in range(12): A('v_mul_f32 %s, %s, %s' % (v(d + i), v(d + i), v(T + qt)))
        for i in range(6): A('v_cvt_pk_bf16_f32 %s, %s, %s' % (v(o + i), v(d + 2 * i), v(d + 2 * i + 1)))
        A('buffer_store_dwordx4 %s, %s, %s, %s offen offset:%d sc1' % (v(o, 4), v(vPX), s(S_WS, 4), s(sO3), qt * 1024))
        A('buffer_store_dwordx2 %s, %s, %s, %s offen offset:%d sc1' % (v(o + 4, 2), v(vPM), s(S_WS, 4), s(sO3), qt * 1024))
    A('v_mov_b32 v3, 1')
    A('s_lshl_b32 %s, %s, 6' % (s(sT0), s(sSEG)))
    A('s_waitcnt vmcnt(0)')
    A('buffer_store_dword v3, %s, %s, %s offen sc1' % (v(vFL), s(S_WS, 4), s(sT0)))
    event(A, 9, dyn='s101')
    A('s_add_u32 %s, %s, 14' % (s(sSEG), s(sSEG)))
    A('s_cmp_lt_u32 %s, 64' % s(sSEG))
    A('s_cbranch_scc1 L_s1loop')

def phase_s2(A):
    U_, Z_, P_, D = 256, 64, 128, 16
    vV, vGF, vPF, vP, vO, vO2 = 4, 5, 6, 7, 8, 9
    A.label('L_s2')
    A('s_sub_u32 %s, %s, 4' % (s(sK), s(sK)))
    A('s_lshl_b32 %s, %s, 1' % (s(sT3), s(sK)))
    A('s_lshr_b32 %s, %s, 1' % (s(sT0), s(sWAVE)))
    A('s_add_u32 %s, %s, %s' % (s(sT3), s(sT3), s(sT0)))
    A('s_cmp_ge_u32 %s, 7' % s(sT3))
    A('s_cbranch_scc1 L_exit')
    A('s_lshl_b32 %s, %s, 12' % (s(sT0), s(sT3)))
    lexpr(A, v(vV), 'v0', [(0, 6, 16)], s(sT0), 'v1')
    A('s_lshl_b32 %s, %s, 4' % (s(sT0), s(sT3)))
    lexpr(A, v(vGF), 'v0', [(0, 4, 112)], s(sT0), 'v1')
    lexpr(A, v(vPF), 'v0', [(0, 4, 4)], FLG_P, 'v1')
    A('s_and_b32 %s, %s, 1' % (s(sT4), s(sWAVE)))
    A('s_lshl_b32 %s, %s, 10' % (s(sT0), s(sT4)))
    lexpr(A, v(vP), 'v0', [(0, 6, 16)], s(sT0), 'v1')
    A('s_mul_i32 %s, %s, %d' % (s(sT0), s(sT4), 4 * 1792))
    A('s_lshl_b32 %s, %s, 7' % (s(sT1), s(sT3)))
    A('s_add_u32 %s, %s, %s' % (s(sT0), s(sT0), s(sT1)))
    A('s_add_u32 %s, %s, 896' % (s(sT0), s(sT0)))
    lexpr(A, v(vO), 'v0', [(2, 2, 8 * 1792), (0, 2, 1792), (4, 2, 16)], s(sT0), 'v1')
    A.label('L_s2loop')
    seg_count(A, s(sCNT))
    A('s_add_u32 %s, %s, %d' % (s(sO3), s(sT1), FLG_Z))
    A('s_add_u32 %s, %s, %d' % (s(sT1), s(sT1), FLG_W2 + 1792))
    wait_flags(A, v(vGF), s(sT1), s(sCNT), 16)
    A('s_mul_i32 %s, %s, %d' % (s(sO1), s(sSEG), 16 * 28672))
    A('s_add_u32 %s, %s, %d' % (s(sO1), s(sO1), U_OFF))
    for c in range(16):
        for tl in range(4):
            A('buffer_load_dwordx4 %s, %s, %s, %s offen offset:%d sc1' % (u(U_ + (c * 4 + tl) * 4, 4), v(vV), s(S_WS, 4), s(sO1), tl * 1024))
        A('s_add_u32 %s, %s, 28672' % (s(sO1), s(sO1)))
        if c == 11: A('s_waitcnt vmcnt(32)')
    A('s_mul_i32 %s, %s, %d' % (s(sT2), s(sSEG), HM_STEP))
    A('s_add_u32 %s, %s, %d' % (s(sT2), s(sT2), HM_OFF))
    A('v_mov_b32 v10, 0')
    lp = A.newlabel('L_s2p'); A.label(lp)
    A('buffer_load_dword v3, v10, %s, %s offen sc1' % (s(S_WS, 4), s(sT2)))
    A('s_waitcnt vmcnt(0)')
    A('v_cmp_eq_u32 vcc, -1, v3')
    spin_check(A, lp, ['s_sleep %d' % PRM['zs']])
    wait_flags(A, v(vGF), s(sO3), s(sCNT), 2)
    A('s_mul_i32 %s, %s, %d' % (s(sO1), s(sSEG), HZ_STEP))
    A('s_add_u32 %s, %s, %d' % (s(sO1), s(sO1), HZ_OFF))
    for c in range(4):
        for tl in range(4):
            A('buffer_load_dwordx4 %s, %s, %s, %s offen offset:%d sc1' % (v(Z_ + (c * 4 + tl) * 4, 4), v(vV), s(S_WS, 4), s(sO1), tl * 1024))
        A('s_add_u32 %s, %s, 28672' % (s(sO1), s(sO1)))
    A('s_lshl_b32 %s, %s, 6' % (s(sT0), s(sSEG)))
    A('s_mul_i32 %s, %s, 40960' % (s(sO2), s(sSEG)))
    A('s_add_u32 %s, %s, %d' % (s(sO2), s(sO2), PP_OFF))
    wait_flags(A, v(vPF), s(sT0), '1', 1)
    for c in range(20):
        A('buffer_load_dwordx4 %s, %s, %s, %s offen offset:%d sc1' % (v(P_ + 4 * c, 4), v(vP), s(S_WS, 4), s(sO2), (c & 1) * 2048))
        if c & 1: A('s_add_u32 %s, %s, 4096' % (s(sO2), s(sO2)))
    for c in range(20):
        A('s_waitcnt vmcnt(%d)' % (19 - c))
        for tl in range(4):
            d = v(D + 4 * tl, 4)
            a_ = u(U_ + (c * 4 + tl) * 4, 4) if c < 16 else v(Z_ + ((c - 16) * 4 + tl) * 4, 4)
            A('v_mfma_f32_16x16x32_bf16 %s, %s, %s, %s' % (d, a_, v(P_ + 4 * c, 4), '0' if c == 0 else d))
    A('s_mul_i32 %s, %s, %d' % (s(sO1), s(sSEG), 32 * 1792))
    for b in range(2):
        e, o, pk = D + 8 * b, D + 8 * b + 4, 32 + 4 * b
        for r in range(4): A('v_cvt_pk_bf16_f32 %s, %s, %s' % (v(pk + r), v(e + r), v(o + r)))
        A('buffer_store_dwordx4 %s, %s, %s, %s offen offset:%d' % (v(pk, 4), v(vO), s(S_OUT, 4), s(sO1), 64 * b))
    event(A, 9, dyn='s101')
    A('s_add_u32 %s, %s, 14' % (s(sSEG), s(sSEG)))
    A('s_cmp_lt_u32 %s, 64' % s(sSEG))
    A('s_cbranch_scc1 L_s2loop')

LOG2E = 1.4426950408889634
def phase_a1(A):
    ST = 208
    def WQ(x, tl, ks):
        i = ((x * 2 + tl) * 14 + ks) * 4
        return a(i, 4) if i < 256 else v(176 + i - 256, 4)
    def WQh(x, tl, ks, t):
        i = ((x * 2 + tl) * 14 + ks) * 4 + 2 * t
        return a(i, 2) if i < 256 else v(176 + i - 256, 2)
    X_, D, KV, PQ = 120, 16, 64, 80
    T = 104
    vG, vW, vR, vR2, vX = 4, 5, 6, 7, 8
    sBLK, sI = sSEG, sCNT
    A('s_barrier')
    lexpr(A, v(vG), 'v0', [(2, 4, 2688), (0, 2, 16)], 0, 'v1')
    A('s_mul_i32 %s, %s, %d' % (s(sO1), s(sWAVE), 112 * 2688))
    A('s_mul_i32 %s, %s, 56' % (s(sT0), s(sH)))
    A('s_add_u32 %s, %s, %s' % (s(sO1), s(sO1), s(sT0)))
    for j in range(21):
        A('buffer_load_dwordx4 %s, %s, %s, %s offen offset:%d' % (v(16 + 4 * j, 4), v(vG), s(S_AW, 4), s(sO1), (j % 3) * 896))
        if j % 3 == 2: A('s_add_u32 %s, %s, %d' % (s(sO1), s(sO1), 16 * 2688))
    A('s_mul_i32 %s, %s, %d' % (s(sT0), s(sWAVE), 112 * ST))
    lexpr(A, v(vW), 'v0', [(2, 4, ST), (0, 2, 16)], s(sT0), 'v1')
    for j in range(21):
        A('s_waitcnt vmcnt(%d)' % (20 - j))
        A('ds_write_b128 %s, %s offset:%d' % (v(vW), v(16 + 4 * j, 4), (j // 3) * 16 * ST + (j % 3) * 64))
        if j % 6 == 5: A('s_waitcnt lgkmcnt(6)')
    lexpr(A, v(vR), 'v0', [(4, 2, 8 * ST), (2, 2, ST), (0, 2, 16)], 0, 'v1')
    A('v_add_u32 %s, %d, %s' % (v(vR2), 7 * 32 * ST, v(vR)))
    A('s_waitcnt lgkmcnt(0)')
    A('s_barrier')
    n = 0
    for x in range(3):
        for tl in range(2):
            for ks in range(14):
                for t in range(2):
                    A('ds_read_b64_tr_b16 %s, %s offset:%d' % (WQh(x, tl, ks, t), v(vR if ks < 7 else vR2), (32 * (ks % 7) + 4 * t) * ST + x * 64 + tl * 8))
                    n += 1
                    if n % 6 == 0: A('s_waitcnt lgkmcnt(6)')
    lexpr(A, v(vX), 'v0', [(0, 4, 896), (4, 2, 16)], 0, 'v1')
    A('v_add_u32 v9, %d, %s' % (16 * 896, v(vX)))
    for i in range(16): A('v_mov_b32 %s, 0' % v(KV + i))
    A('s_mov_b32 %s, 0x%x' % (s(sSC), f2u(LOG2E)))
    A('s_mov_b32 %s, 0x%x' % (s(sO3), f2u(1e-6)))
    A('v_and_b32 v1, 15, v0')
    A('v_cmp_le_u32 s[96:97], 12, v1')
    A('v_cmp_eq_u32 s[98:99], 12, v1')
    A('v_cmp_le_u32 s[100:101], 48, v0')
    A('s_lshl_b32 %s, %s, 2' % (s(sBLK), s(sQ)))
    A('s_add_u32 %s, %s, %s' % (s(sBLK), s(sBLK), s(sWAVE)))
    A('s_waitcnt lgkmcnt(0)')
    def phi(r):
        A('v_mul_f32 %s, %s, %s' % (v(T), s(sSC), v(r)))
        A('v_exp_f32 %s, %s' % (v(T), v(T)))
        A('v_cmp_lt_f32 vcc, 0, %s' % v(r))
        A('v_add_f32 %s, 1.0, %s' % (v(r), v(r)))
        A('v_cndmask_b32 %s, %s, %s, vcc' % (v(r), v(T), v(r)))
        A('v_add_f32 %s, %s, %s' % (v(r), s(sO3), v(r)))
    def Dk(x, t, tl): return D + (((x - 1) * 2 + tl) * 2 + t) * 4
    def Dq(t, tl): return D + 32 + (t * 2 + tl) * 4
    A('s_mov_b32 %s, 0' % s(sI))
    A.label('L_a1loop')
    A('s_mul_i32 %s, %s, %d' % (s(sO1), s(sBLK), 32 * 896))
    for hf in range(2):
        for k7 in range(7):
            for t in range(2):
                A('buffer_load_dwordx4 %s, %s, %s, %s offen offset:%d' % (v(X_ + (k7 * 2 + t) * 4, 4), v(vX) if t == 0 else 'v9', s(S_AX, 4), s(sO1), (7 * hf + k7) * 64))
        for k7 in range(7):
            ks = 7 * hf + k7
            A('s_waitcnt vmcnt(%d)' % (12 - 2 * k7))
            for t in range(2):
                xf = v(X_ + (k7 * 2 + t) * 4, 4)
                for tl in range(2):
                    for x in (1, 2):
                        d = v(Dk(x, t, tl), 4)
                        A('v_mfma_f32_16x16x32_bf16 %s, %s, %s, %s' % (d, xf, WQ(x, tl, ks), '0' if ks == 0 else d))
                    d = v(Dq(t, tl), 4)
                    A('v_mfma_f32_16x16x32_bf16 %s, %s, %s, %s' % (d, WQ(0, tl, ks), xf, '0' if ks == 0 else d))
        A('s_nop 7')
    for tl in range(2):
        b = Dk(1, 0, tl)
        for i in range(8):
            phi(b + i)
            if tl == 1: A('v_cndmask_b32 %s, %s, 0, s[96:97]' % (v(b + i), v(b + i)))
        for i in range(4): A('v_cvt_pk_bf16_f32 %s, %s, %s' % (v(b + i), v(b + 2 * i), v(b + 2 * i + 1)))
        b = Dk(2, 0, tl)
        if tl == 1:
            for i in range(8):
                A('v_cndmask_b32 %s, %s, 0, s[96:97]' % (v(b + i), v(b + i)))
                A('v_cndmask_b32 %s, %s, 1.0, s[98:99]' % (v(b + i), v(b + i)))
        for i in range(4): A('v_cvt_pk_bf16_f32 %s, %s, %s' % (v(b + i), v(b + 2 * i), v(b + 2 * i + 1)))
    for dt in range(2):
        for et in range(2):
            d = v(KV + (dt * 2 + et) * 4, 4)
            A('v_mfma_f32_16x16x32_bf16 %s, %s, %s, %s' % (d, v(Dk(1, 0, dt), 4), v(Dk(2, 0, et), 4), d))
    for i in range(15, -1, -1): A('v_mov_b32 %s, %s' % (v(PQ + 8 + i), v(PQ + i)))
    for t in range(2):
        b = Dq(t, 0)
        for i in range(8):
            phi(b + i)
            if i >= 4: A('v_cndmask_b32 %s, %s, 0, s[100:101]' % (v(b + i), v(b + i)))
        for i in range(4): A('v_cvt_pk_bf16_f32 %s, %s, %s' % (v(PQ + 4 * t + i), v(b + 2 * i), v(b + 2 * i + 1)))
    A('s_add_u32 %s, %s, 1' % (s(sI), s(sI)))
    A('s_add_u32 %s, %s, 28' % (s(sBLK), s(sBLK)))
    A('s_cmp_lt_u32 %s, 64' % s(sBLK))
    A('s_cbranch_scc1 L_a1loop')
    LK = 98304
    A('s_lshl_b32 %s, %s, 12' % (s(sT0), s(sWAVE)))
    A('s_add_u32 %s, %s, %d' % (s(sT0), s(sT0), LK))
    lexpr(A, v(vW), 'v0', [(0, 6, 16)], s(sT0), 'v1')
    for j in range(4): A('ds_write_b128 %s, %s offset:%d' % (v(vW), v(KV + 4 * j, 4), j * 1024))
    A('s_lshl_b32 %s, %s, 10' % (s(sT0), s(sWAVE)))
    lexpr(A, v(vR), 'v0', [(0, 6, 16)], s(sT0), 'v1')
    A('v_add_u32 %s, %d, %s' % (v(vR2), LK, v(vR)))
    A('s_waitcnt lgkmcnt(0)')
    A('s_barrier')
    for j in range(4): A('ds_read_b128 %s, %s offset:%d' % (v(D + 4 * j, 4), v(vR2), j * 4096))
    A('s_waitcnt lgkmcnt(0)')
    for r in range(4):
        A('v_add_f32 %s, %s, %s' % (v(D + r), v(D + r), v(D + 4 + r)))
        A('v_add_f32 %s, %s, %s' % (v(D + 8 + r), v(D + 8 + r), v(D + 12 + r)))
        A('v_add_f32 %s, %s, %s' % (v(D + r), v(D + r), v(D + 8 + r)))
    A('s_lshl_b32 %s, %s, 12' % (s(sT0), s(sA)))
    A('s_add_u32 %s, %s, %d' % (s(sT0), s(sT0), KVP_OFF))
    A('buffer_store_dwordx4 %s, %s, %s, %s offen sc1' % (v(D, 4), v(vR), s(S_WS, 4), s(sT0)))
    A('s_lshl_b32 %s, %s, 6' % (s(sT0), s(sA)))
    A('s_lshl_b32 %s, %s, 2' % (s(sT1), s(sWAVE)))
    A('s_add_u32 %s, %s, %s' % (s(sT0), s(sT0), s(sT1)))
    A('s_add_u32 %s, %s, %d' % (s(sT0), s(sT0), FLG_KV))
    lane0_addr(A, 'v10', s(sT0))
    A('v_mov_b32 v3, 1')
    A('s_waitcnt vmcnt(0)')
    A('buffer_store_dword v3, v10, %s, 0 offen sc1' % s(S_WS, 4))
    A('v_lshrrev_b32 v1, 2, v0')
    A('v_min_u32 v1, 6, v1')
    A('v_lshlrev_b32 v1, 6, v1')
    A('v_and_b32 v2, 3, v0')
    A('v_lshl_add_u32 v10, v2, 2, v1')
    A('s_mul_i32 %s, %s, %d' % (s(sT0), s(sH), 7 * 64))
    A('s_add_u32 %s, %s, %d' % (s(sT0), s(sT0), FLG_KV))
    wait_flags(A, 'v10', s(sT0), '1', 8)
    lexpr(A, v(vG), 'v0', [(0, 6, 16)], 0, 'v1')
    lexpr(A, v(vW), 'v0', [(4, 2, 256)], 12 * 16, 'v1')
    A('s_mul_i32 %s, %s, %d' % (s(sO1), s(sH), 7 * 4096))
    A('s_add_u32 %s, %s, %d' % (s(sO1), s(sO1), KVP_OFF))
    GB = 104
    def gr(q): return (GB + 24 * q) if q < 6 else D
    for q in range(7):
        for j in range(4):
            A('buffer_load_dwordx4 %s, %s, %s, %s offen offset:%d sc1' % (v(gr(q) + 4 * j, 4), v(vG), s(S_WS, 4), s(sO1), j * 1024))
        for dt in range(2):
            A('buffer_load_dwordx4 %s, %s, %s, %s offen offset:%d sc1' % (v(gr(q) + 16 + 4 * dt, 4), v(vW), s(S_WS, 4), s(sO1), (dt * 2 + 1) * 1024))
        A('s_add_u32 %s, %s, 4096' % (s(sO1), s(sO1)))
    A('s_waitcnt vmcnt(0)')
    for q in range(6):
        for i in range(24): A('v_add_f32 %s, %s, %s' % (v(D + i), v(D + i), v(gr(q) + i)))
    for et in range(2):
        for dt in range(2):
            b = D + (dt * 2 + et) * 4
            A('v_cvt_pk_bf16_f32 %s, %s, %s' % (v(KV + 4 * et + 2 * dt), v(b), v(b + 1)))
            A('v_cvt_pk_bf16_f32 %s, %s, %s' % (v(KV + 4 * et + 2 * dt + 1), v(b + 2), v(b + 3)))
    for i in range(4): A('v_cvt_pk_bf16_f32 %s, %s, %s' % (v(KV + 8 + i), v(D + 16 + 2 * i), v(D + 17 + 2 * i)))
    A('s_lshl_b32 %s, %s, 10' % (s(sT0), s(sH)))
    lexpr(A, v(vR), 'v0', [(0, 6, 16)], s(sT0), 'v1')
    A.label('L_a1o')
    A('s_sub_u32 %s, %s, 28' % (s(sBLK), s(sBLK)))
    A('s_lshl_b32 %s, %s, 15' % (s(sO1), s(sBLK)))
    A('s_add_u32 %s, %s, %d' % (s(sO1), s(sO1), OI_OFF))
    A('s_add_u32 %s, %s, 16384' % (s(sO2), s(sO1)))
    for t in range(2):
        b = D + 12 * t
        for j in range(3):
            A('v_mfma_f32_16x16x32_bf16 %s, %s, %s, 0' % (v(b + 4 * j, 4), v(KV + 4 * j, 4), v(PQ + 4 * t, 4)))
    for t in range(2):
        b = D + 12 * t; o = D + 24 + 4 * t
        A('v_add_f32 %s, %s, %s' % (v(b + 8), s(sO3), v(b + 8)))
        A('v_rcp_f32 %s, %s' % (v(b + 8), v(b + 8)))
        for i in range(8):
            A('v_mul_f32 %s, %s, %s' % (v(b + i), v(b + i), v(b + 8)))
            if i >= 4: A('v_cndmask_b32 %s, %s, 0, s[100:101]' % (v(b + i), v(b + i)))
        for i in range(4): A('v_cvt_pk_bf16_f32 %s, %s, %s' % (v(o + i), v(b + 2 * i), v(b + 2 * i + 1)))
        A('buffer_store_dwordx4 %s, %s, %s, %s offen sc1' % (v(o, 4), v(vR), s(S_WS, 4), s(sO1 + t)))
    for i in range(16): A('v_mov_b32 %s, %s' % (v(PQ + i), v(PQ + 8 + i)))
    A('s_sub_u32 %s, %s, 1' % (s(sI), s(sI)))
    A('s_cmp_lg_u32 %s, 0' % s(sI))
    A('s_cbranch_scc1 L_a1o')
    A('s_lshl_b32 %s, %s, 2' % (s(sT0), s(sA)))
    A('s_add_u32 %s, %s, %s' % (s(sT0), s(sT0), s(sWAVE)))
    A('s_lshl_b32 %s, %s, 2' % (s(sT0), s(sT0)))
    A('s_add_u32 %s, %s, %d' % (s(sT0), s(sT0), FLG_O))
    lane0_addr(A, 'v10', s(sT0))
    A('v_mov_b32 v3, 1')
    A('s_waitcnt vmcnt(0)')
    A('buffer_store_dword v3, v10, %s, 0 offen sc1' % s(S_WS, 4))

def phase_a2(A):
    ST = 144
    O_, D = 64, 16
    vG, vW, vR, vR2, vO = 4, 5, 6, 7, 8
    A('s_barrier')
    lexpr(A, v(vG), 'v0', [(3, 3, 896), (0, 3, 16)], 0, 'v1')
    A('s_mul_i32 %s, %s, %d' % (s(sO1), s(sWAVE), 112 * 896))
    A('s_lshl_b32 %s, %s, 7' % (s(sT0), s(sQ)))
    A('s_add_u32 %s, %s, %s' % (s(sO1), s(sO1), s(sT0)))
    for j in range(15):
        A('buffer_load_dwordx4 %s, %s, %s, %s offen' % (v(64 + 4 * j, 4), v(vG), s(S_AO, 4), s(sO1)))
        A('s_add_u32 %s, %s, %d' % (s(sO1), s(sO1), 8 * 896))
    A('s_mul_i32 %s, %s, %d' % (s(sT0), s(sWAVE), 112 * ST))
    lexpr(A, v(vW), 'v0', [(3, 3, ST), (0, 3, 16)], s(sT0), 'v1')
    for j in range(15):
        A('s_waitcnt vmcnt(%d)' % (14 - j))
        A('ds_write_b128 %s, %s offset:%d' % (v(vW), v(64 + 4 * j, 4), j * 8 * ST))
        if j % 6 == 5: A('s_waitcnt lgkmcnt(6)')
    lexpr(A, v(vR), 'v0', [(4, 2, 8 * ST), (2, 2, ST), (0, 2, 16)], 0, 'v1')
    A('s_waitcnt lgkmcnt(0)')
    A('s_barrier')
    n = 0
    for tl in range(4):
        for hh in range(16):
            for t in range(2):
                A('ds_read_b64_tr_b16 %s, %s offset:%d' % (a((tl * 16 + hh) * 4 + 2 * t, 2), v(vR), (28 * hh + 4 * t) * ST + (tl >> 1) * 64 + (tl & 1) * 8))
                n += 1
                if n % 6 == 0: A('s_waitcnt lgkmcnt(6)')
    A('s_lshl_b32 %s, %s, 2' % (s(sSEG), s(sH)))
    A('s_add_u32 %s, %s, %s' % (s(sSEG), s(sSEG), s(sWAVE)))
    A('s_mov_b32 %s, %s' % (s(sT0), s(sSEG)))
    for _ in range(2):
        A('s_sub_u32 %s, %s, 28' % (s(sT1), s(sT0)))
        A('s_cmp_ge_u32 %s, 28' % s(sT0))
        A('s_cselect_b32 %s, %s, %s' % (s(sT0), s(sT1), s(sT0)))
    A('s_lshl_b32 %s, %s, 2' % (s(sT0), s(sT0)))
    A('s_add_u32 %s, %s, %d' % (s(sT0), s(sT0), FLG_O))
    lexpr(A, 'v10', 'v0', [(0, 4, 7 * 16)], 0, 'v1')
    wait_flags(A, 'v10', s(sT0), '1', 8)
    lexpr(A, v(vG), 'v0', [(0, 6, 16)], 0, 'v1')
    A('s_lshl_b32 %s, %s, 15' % (s(sO1), s(sSEG)))
    A('s_add_u32 %s, %s, %d' % (s(sO1), s(sO1), OI_OFF))
    for i in range(32):
        A('buffer_load_dwordx4 %s, %s, %s, %s offen offset:%d sc1' % (v(O_ + 4 * i, 4), v(vG), s(S_WS, 4), s(sO1), (i & 3) * 1024))
        if i & 3 == 3: A('s_add_u32 %s, %s, 4096' % (s(sO1), s(sO1)))
    A('s_lshl_b32 %s, %s, 7' % (s(sT0), s(sQ)))
    lexpr(A, v(vO), 'v0', [(0, 4, 1792), (4, 2, 16)], s(sT0), 'v1')
    A('s_mul_i32 %s, %s, %d' % (s(sO1), s(sSEG), 32 * 1792))
    A('s_add_u32 %s, %s, %d' % (s(sO2), s(sO1), 16 * 1792))
    A('s_waitcnt lgkmcnt(0)')
    for t in range(2):
        for hh in range(16):
            A('s_waitcnt vmcnt(%d)' % (31 - (t * 16 + hh)))
            for tl in range(4):
                d = v(D + (t * 4 + tl) * 4, 4)
                A('v_mfma_f32_16x16x32_bf16 %s, %s, %s, %s' % (d, a((tl * 16 + hh) * 4, 4), v(O_ + (t * 16 + hh) * 4, 4), '0' if hh == 0 else d))
    for t in range(2):
        for aa in range(2):
            b = D + (t * 4 + 2 * aa) * 4; o = 48 + (t * 2 + aa) * 4
            for i in range(4): A('v_cvt_pk_bf16_f32 %s, %s, %s' % (v(o + i), v(b + 2 * i), v(b + 2 * i + 1)))
            A('buffer_store_dwordx4 %s, %s, %s, %s offen offset:%d' % (v(o, 4), v(vO), s(S_OUT, 4), s(sO1 + t), aa * 64))
```

```python
import sys
from asmgen import *
from layout import *

NAME = 'concat_heads__linear_attn_block__memory_aug_recurrent_mem_tr__prompt'
HDR = open('cdna_kernels/%s.s.ref' % NAME).read().split('; Override launch')[0]

S_WS, S_BX, S_M0, S_DBG, S_OUT = 8, 12, 16, 20, 24
S_WQ, S_WK, S_WV, S_WO, S_AX, S_AW, S_AO = 28, 32, 36, 40, 44, 48, 52
sWAVE, sXCC, sROLE, sSTEP, sSPIN = 60, 61, 62, 63, 64
sT0, sT1, sT2, sT3, sT4, sT5 = 65, 66, 67, 68, 69, 70
sMEMRD, sPWR, sPRST, sXOFF, sPRD, sMEMWR, sMEMRST, sUOFF, sHM, sHZ, sXPF = 71, 72, 73, 74, 75, 76, 77, 78, 79, 80, 81
sHMRD, sHPRD, sHWR, sSTEP1 = 82, 83, 84, 85
sXLDS, sBTOG2 = 86, 87

L_MEM = 0
L_YT = 8192
L_SP = 16384
L_OP = 16384
L_DUMP = 20480
L_TICKET = 163832
LDS_BYTES = 160 * 1024

SPIN_MAX = 4000000
PRM_S = dict(wfl='')
PRM = dict(osc=0, pring=0, probe=0, zc=8, wl=0, wst=0, cpl=1, pd=2, rt=0, w2f=2, tlb=3, tls=65536, ploc=1, upd=0, nub=1, pvw=4, bdel=0, wfast=1, wfn0=1, fl=1, prime=0, lsp=0, k1l=4, k2l=10, solo=0, vsl=8, cpf=1, xw=0, wxl=3, wxs=5, wfn=14, npre=6, xe=2, xd=0, fsm=1, plt=4, xg=0, adel=0, lws=6, epf=0, wsp=4, wrot=2, xm=0, xm1=8, ht=6, s23=1, s4=7, sb=12, sc=14, b01=19, ba=23, o2=1, s0b=15, o3=1, psl=8, vf=8, xb=1, vh=12, fine=62, lb=20, w0=2, w1=9, direct=0, ko=3, msc=1, c0=3, cg=3, hn=15, nb1=4, uev=2, f0b=1, vdel=5, sdel=0, pdel=0, hs=99, hd=3, hv0=0, nrep=4, k1=4, k2=10, pla=10, pnu=0, zs=12)

def srd(A, d, ptr_s, nbytes):
    A('s_mov_b32 %s, %s' % (s(d), s(ptr_s)))
    A('s_and_b32 %s, %s, 0xffff' % (s(d + 1), s(ptr_s + 1)))
    A('s_mov_b32 %s, %d' % (s(d + 2), nbytes))
    A('s_mov_b32 %s, 0x00020000' % s(d + 3))

def entry(A, early=None):
    A('s_cmp_ge_u32 s2, 256')
    A('s_cbranch_scc1 L_exit')
    if G.events or PRM['probe']: A('s_memrealtime s[56:57]')
    A('s_load_dwordx16 s[64:79], s[0:1], 0')
    A('s_load_dwordx8 s[80:87], s[0:1], 64')
    A('s_load_dwordx2 s[88:89], s[0:1], 96')
    if PRM['cpf']:
        A('s_getpc_b64 s[4:5]')
        A.label('L_pc')
        A('s_lshr_b32 s6, s2, 3')
        A('s_and_b32 s6, s6, 3')
        A('s_lshl_b32 s6, s6, 8')
        A('v_add_u32 v1, s6, v0')
        A('v_lshlrev_b32 v1, 7, v1')
        A('v_min_u32 v1, L_exit-L_pc, v1')
        A('global_load_dword v251, v1, s[4:5]')
    A('v_lshrrev_b32 v1, 6, v0')
    A('v_and_b32 v0, 63, v0')
    A('s_getreg_b32 %s, hwreg(HW_REG_XCC_ID)' % s(sXCC))
    A('v_readfirstlane_b32 %s, v1' % s(sWAVE))
    A('s_and_b32 %s, %s, 7' % (s(sXCC), s(sXCC)))
    A('s_waitcnt lgkmcnt(0)')
    srd(A, S_AX, 64, 1835008)
    srd(A, S_AW, 66, 448 * 1344 * 2)
    srd(A, S_AO, 68, 448 * 448 * 2)
    srd(A, S_BX, 70, 1835008)
    srd(A, S_M0, 72, 7168)
    srd(A, S_WQ, 74, 3670016)
    srd(A, S_WK, 76, 3670016)
    srd(A, S_WV, 78, 3670016)
    srd(A, S_WO, 80, 3670016)
    srd(A, S_OUT, 84, 2048 * 896 * 2)
    srd(A, S_DBG, 86, 256)
    srd(A, S_WS, 88, WS_BYTES)
    A('v_mov_b32 v2, %d' % L_TICKET)
    A('s_cmp_lg_u32 %s, 0' % s(sWAVE))
    A('s_cbranch_scc1 L_tk_wait')
    A('s_lshr_b32 %s, %s, 1' % (s(sT0), s(sXCC)))
    A('s_lshl_b32 %s, %s, 6' % (s(sT0), s(sT0)))
    A('s_and_b32 %s, %s, 1' % (s(sT1), s(sXCC)))
    A('s_lshl_b32 %s, %s, 2' % (s(sT1), s(sT1)))
    A('s_add_u32 %s, %s, %s' % (s(sT0), s(sT0), s(sT1)))
    A('v_mov_b32 v3, %s' % s(sT0))
    A('v_mov_b32 v4, 1')
    A('s_mov_b64 exec, 1')
    A('buffer_atomic_add v4, v3, %s, 0 offen sc0' % s(S_DBG, 4))
    A('s_mov_b64 exec, -1')
    A.label('L_tk_wait')
    if early: early(A)
    A('s_cmp_lg_u32 %s, 0' % s(sWAVE))
    A('s_cbranch_scc1 L_tk_wait2')
    A('s_cmp_eq_u32 %s, 0' % s(sXCC))
    A('s_cbranch_scc0 L_tk_w3')
    A('s_waitcnt vmcnt(0)')
    A.label('L_tk_w3')
    A('s_waitcnt vmcnt(%d)' % (2 if early else 0))
    A('s_mov_b64 exec, 1')
    A('ds_write_b32 v2, v4')
    A('s_mov_b64 exec, -1')
    A('s_waitcnt lgkmcnt(0)')
    A.label('L_tk_wait2')
    A('s_barrier')
    A('ds_read_b32 v3, v2')
    A('s_waitcnt lgkmcnt(0)')
    A('v_readfirstlane_b32 %s, v3' % s(sROLE))
    A('s_cmp_ge_u32 %s, 32' % s(sROLE))
    A('s_cbranch_scc1 L_exit')
    if G.events:
        event(A, 1)
        A('v_mov_b32 v1, s56')
        A('s_sub_u32 s6, s6, 4')
        A('s_mov_b64 exec, 1')
        A('buffer_store_dword v1, v2, %s, s6 offen' % s(S_WS, 4))
        A('s_mov_b64 exec, -1')

STUBS = []
def spin_check(A, lbl_loop, pre=()):
    st = A.newlabel('L_retry')
    A('s_cbranch_vccnz %s' % st)
    STUBS.append((st, lbl_loop, list(pre)))
def emit_stubs(A):
    for st, l, pre in STUBS:
        A.label(st)
        for x in pre: A(x)
        A('s_sub_u32 %s, %s, 1' % (s(sSPIN), s(sSPIN)))
        A('s_cbranch_scc0 %s' % l)
        A('s_branch L_exit')
    del STUBS[:]

def lexpr(A, dst, lane, terms, base=0, tmp=None):
    A('v_mov_b32 %s, %s' % (dst, base))
    for lo, n, mul in terms:
        A('v_bfe_u32 %s, %s, %d, %d' % (tmp, lane, lo, n))
        if mul & (mul - 1) == 0:
            A('v_lshl_add_u32 %s, %s, %d, %s' % (dst, tmp, mul.bit_length() - 1, dst))
        else:
            A('v_mul_u32_u24 %s, %d, %s' % (tmp, mul, tmp))
            A('v_add_u32 %s, %s, %s' % (dst, dst, tmp))

class G: pass
G.stamps = False
G.dev_nowait = False
G.events = False
def event(A, idx, t0='v1', t1='v2', dyn=None):
    if not G.events: return
    A('s_memrealtime s[4:5]')
    A('s_lshl_b32 s6, %s, 5' % s(sXCC))
    A('s_add_u32 s6, s6, %s' % s(sROLE))
    A('s_lshl_b32 s6, s6, 2')
    A('s_add_u32 s6, s6, %s' % s(sWAVE))
    A('s_lshl_b32 s6, s6, 6')
    A('s_add_u32 s6, s6, %d' % (EVT + idx * 4))
    if dyn:
        A('s_add_u32 s6, s6, %s' % dyn); A('s_add_u32 %s, %s, 4' % (dyn, dyn))
    A('v_mov_b32 %s, 0' % t1)
    A('s_waitcnt lgkmcnt(0)')
    A('v_mov_b32 %s, s4' % t0)
    A('s_mov_b64 exec, 1')
    A('buffer_store_dword %s, %s, %s, s6 offen' % (t0, t1, s(S_WS, 4)))
    A('s_mov_b64 exec, -1')

def levent(A, idx):
    if G.events: A('s_memrealtime %s' % s(84 + 2 * idx, 2))
def levent_flush(A, n, base):
    if not G.events: return
    A('s_waitcnt lgkmcnt(0)')
    for i in range(n):
        event(A, base + i)
        A('v_mov_b32 v1, %s' % s(84 + 2 * i))
        A('s_mov_b64 exec, 1')
        A('buffer_store_dword v1, v2, %s, s6 offen' % s(S_WS, 4))
        A('s_mov_b64 exec, -1')

def event_spin(A, idx, t0='v1', t1='v2'):
    if not G.events: return
    event(A, idx, t0, t1)
    A('v_mov_b32 %s, %s' % (t0, s(sSPIN)))
    A('s_mov_b64 exec, 1')
    A('buffer_store_dword %s, %s, %s, s6 offen' % (t0, t1, s(S_WS, 4)))
    A('s_mov_b64 exec, -1')

G.diag = False
def diag(A, idx, t0='v1', t1='v2'):
    if not G.diag: return
    A('s_memrealtime s[4:5]')
    A('v_mov_b32 %s, %d' % (t1, idx * 4))
    A('s_waitcnt lgkmcnt(0)')
    A('s_and_b32 s4, s4, 0xffffff')
    A('v_mov_b32 %s, s4' % t0)
    A('s_mov_b64 exec, 1')
    A('buffer_atomic_umax %s, %s, %s, 0 offen' % (t0, t1, s(S_DBG, 4)))
    A('s_mov_b64 exec, -1')
```

```python
from common import *

sSLOT, sSLOTP, sSLOTN, sUOK = sMEMRD, sPWR, sMEMWR, sHZ
vIDX = 60
vK = 61
vT = 68
vLANE = 255
MF = 32
SACC = 4
AF0 = 0
vYW, vTRL, vB, vX, vPST, vPSM, HV, HA = 70, 71, 72, 73, 74, 75, 71, 77
vBIG = 200
vSW = 78
SD = 80
XB = 92
AF1 = 116
L_XS = 32768
vL16, vVW, vVR, vMST, vLW, VHV, VHA, vHM_, vHP_, vHIST = 70, 71, 72, 73, 74, 75, 76, 77, 78, 79
VR = 80
vUS = 69
ZB = 84
UB = 92
LB = 124
L_VB = 114688
L_WL = 32768

class Role:
    pass
SC = Role(); SC.nt = 7
VA = Role(); VA.nt = 8; VA.accf = lambda r: 4 * r
def sc_w(r, k):
    t = r * 7 + k
    return (256 + t * 8) if t < 32 else (120 + (t - 32) * 8)
SC6 = Role(); SC6.nt = 6; SC6.w = sc_w; SC6.accf = lambda r: SACC + 4 * r; SC6.land = {}
SC8 = Role(); SC8.nt = 8; SC8.accf = lambda r: (SACC + 4 * r) if r < 7 else 0
SC8.land = {(7, 5): MF, (7, 6): SACC}
SC8.w = lambda r, k: sc_w(r, k) if r < 7 else (80 + 8 * k if k < 5 else None)
XS2 = 0x10000
L_SWL = 65536
VLDS = [(r, 6) for r in range(8)] + [(2, 4), (5, 4)]
VREG = [(r, k) for r in range(8) for k in range(7) if (r, k) not in VLDS]
def va_w(r, k):
    if (r, k) in VLDS: return None
    t = VREG.index((r, k))
    return (256 + t * 8) if t < 32 else (144 + (t - 32) * 8)
VA.w = va_w

def smf(d, aa, bb, k32=False):
    return 'v_smfmac_f32_16x16x%d_bf16 %s, %s, %s, %s' % (32 if k32 else 64, d, aa, bb, v(vIDX))

sTMB = 28
sSTB = 92
def stamp(A, idx):
    if not G.stamps: return
    A('s_memtime %s' % s(sTMB + 2 * idx, 2))
    if idx == 0 and G.stamps == 1: A('s_memrealtime %s' % s(sTMB + 2 * 10, 2))
def stamp_acc(A, order):
    A('s_waitcnt lgkmcnt(0)')
    l = A.newlabel('L_sa')
    A('s_cmp_lt_u32 %s, 10' % s(sSTEP))
    A('s_cbranch_scc1 %s' % l)
    prev = 3
    for i, k in enumerate(order):
        A('s_sub_u32 s2, %s, %s' % (s(sTMB + 2 * k), s(prev)))
        A('s_add_u32 %s, %s, s2' % (s(50 + i), s(50 + i)))
        prev = sTMB + 2 * k
    A.label(l)
    A('s_mov_b32 s3, %s' % s(sTMB + 2 * order[-1]))
def stamp_acc_out(A):
    if G.stamps != 2: return
    A('v_mbcnt_lo_u32_b32 v2, -1, 0')
    A('v_lshlrev_b32 v2, 2, v2')
    for i in range(10): A('v_writelane_b32 v1, %s, %d' % (s(50 + i), i))
    A('s_mov_b64 exec, 0xffff')
    A('buffer_store_dword v1, v2, %s, %s offen' % (s(S_WS, 4), s(sSTB)))
    A('s_mov_b64 exec, -1')
def stamp_flush(A, n, order=None):
    if not G.stamps: return
    if G.stamps == 2:
        stamp_acc(A, order); return
    A('s_waitcnt lgkmcnt(0)')
    A('s_lshl_b32 %s, %s, 6' % (s(sT5), s(sSTEP)))
    A('s_add_u32 %s, %s, %s' % (s(sT5), s(sT5), s(sSTB)))
    A('v_mbcnt_lo_u32_b32 %s, -1, 0' % v(vT + 1))
    A('v_lshlrev_b32 %s, 2, %s' % (v(vT + 1), v(vT + 1)))
    for i in range(n):
        A('v_writelane_b32 %s, %s, %d' % (v(vT), s(sTMB + 2 * i), i))
    A('v_writelane_b32 %s, %s, 11' % (v(vT), s(sSPIN)))
    A('s_mov_b64 exec, 0xffff')
    A('buffer_store_dword %s, %s, %s, %s offen' % (v(vT), v(vT + 1), s(S_WS, 4), s(sT5)))
    A('s_mov_b64 exec, -1')
def stamp_setup(A):
    if not G.stamps: return
    A('s_lshl_b32 %s, %s, 2' % (s(sT0), s(sROLE)))
    A('s_add_u32 %s, %s, %s' % (s(sT0), s(sT0), s(sWAVE)))
    A('s_lshl_b32 %s, %s, 12' % (s(sT0), s(sT0)))
    A('s_add_u32 %s, %s, %d' % (s(sSTB), s(sT0), STAMPS))
    for i in range(10): A('s_mov_b32 %s, 0' % s(50 + i))

def hint_wait(A, soff, sval, pw, delay, nent, areg=None, other=None):
    l = A.newlabel('L_hint'); e = A.newlabel('L_hint_done')
    D = PRM['hd']
    A('s_cmp_lg_u32 %s, %d' % (s(sWAVE), pw))
    A('s_cbranch_scc1 %s' % e)
    if areg is None:
        areg = vT + 1
        A('v_mbcnt_lo_u32_b32 %s, -1, 0' % v(vT + 1))
        A('v_mbcnt_hi_u32_b32 %s, -1, %s' % (v(vT + 1), v(vT + 1)))
        A('v_min_u32 %s, %d, %s' % (v(vT + 1), nent - 1, v(vT + 1)))
        A('v_lshlrev_b32 %s, 2, %s' % (v(vT + 1), v(vT + 1)))
    ld = 'buffer_load_dword %s, %s, %s, %s offen sc1' % (v(vT), v(areg), s(S_WS, 4), s(soff))
    if PRM['hv0']: A('s_waitcnt vmcnt(0)')
    for i in range(D - 1):
        A(ld); A('s_nop %d' % PRM['hn'])
    A.label(l)
    A(ld)
    A('s_waitcnt vmcnt(%d)' % (D - 1))
    A('v_cmp_gt_u32 vcc, %s, %s' % (s(sval), v(vT)))
    spin_check(A, l)
    for i in range(delay): A('s_nop 3')
    A.label(e)
    A('s_barrier')

def hint_send(A, t0, t1):
    A('buffer_store_dword %s, %s, %s, %s offen' % (v(t0), v(t1), s(S_WS, 4), s(sHWR)))
def hint_setup(A, t0, t1, allw):
    nrep = PRM['nrep']
    A('v_lshlrev_b32 v1, 8, %s' % v(vLANE))
    A('v_mov_b32 v2, %d' % OOB)
    A('s_cmp_eq_u32 %s, %d' % (s(sWAVE), 0 if allw else 3))
    A('s_cselect_b32 %s, %d, 0' % (s(sT0), nrep))
    A('v_cmp_gt_u32 vcc, %s, %s' % (s(sT0), v(vLANE)))
    A('v_cndmask_b32 %s, v2, v1, vcc' % v(t1))
    A('v_mov_b32 %s, 0' % v(t0))
    hint_send(A, t0, t1)

def dbg_arrive(A, idx):
    A('s_waitcnt vmcnt(0) lgkmcnt(0)')
    A('s_barrier')
    l = A.newlabel('L_gb')
    A('s_cmp_lg_u32 %s, 0' % s(sWAVE))
    A('s_cbranch_scc1 %s' % l)
    A('v_mov_b32 v1, %d' % (idx * 4))
    A('v_mov_b32 v2, 1')
    A('s_mov_b64 exec, 1')
    A('buffer_atomic_add v2, v1, %s, 0 offen' % s(S_DBG, 4))
    A('s_mov_b64 exec, -1')
    A.label(l)

def group_wait(A):
    l = A.newlabel('L_gw')
    A('v_mov_b32 %s, %d' % (v(vT), D_GRP * 4))
    A.label(l)
    A('buffer_load_dword %s, %s, %s, 0 offen sc1' % (v(vT + 1), v(vT), s(S_DBG, 4)))
    A('s_waitcnt vmcnt(0)')
    A('v_cmp_gt_u32 vcc, 32, %s' % v(vT + 1))
    spin_check(A, l, ['s_sleep 1'])

def wait_init(A, idx=D_INIT, lane=None):
    l = A.newlabel('L_wi')
    lexpr(A, 'v2', lane or v(vLANE), [(0, 2, 64)], idx * 4, 'v3')
    A.label(l)
    A('buffer_load_dword v3, v2, %s, 0 offen sc1' % s(S_DBG, 4))
    A('s_waitcnt vmcnt(0)')
    A('v_cmp_gt_u32 vcc, 56, v3')
    spin_check(A, l, ['s_sleep 16'])

def check4(A, r, lbl, pre):
    t0 = v(vT)
    A('v_max3_u32 %s, %s, %s, %s' % (t0, v(r), v(r + 1), v(r + 2)))
    A('v_max_u32 %s, %s, %s' % (t0, t0, v(r + 3)))
    A('v_cmp_eq_u32 vcc, -1, %s' % t0)
    spin_check(A, lbl, pre)

sROT = 87
def rot(A, k):
    A('s_add_u32 %s, %s, %d' % (s(sT1), s(sT0), k))
    A('s_sub_u32 %s, %s, 7' % (s(sT2), s(sT1)))
    A('s_cmp_ge_u32 %s, 7' % s(sT1))
    A('s_cselect_b32 %s, %s, %s' % (s(sT1), s(sT2), s(sT1)))

def rec_start(A):
    A('v_mov_b32 %s, v0' % v(vLANE))
    A('s_mov_b32 %s, %d' % (s(sSPIN), SPIN_MAX))
    if PRM['xw']:
        A('s_lshl_b32 %s, %s, 2' % (s(sT0), s(sROLE)))
        A('s_add_u32 %s, %s, %s' % (s(sT0), s(sT0), s(sWAVE)))
        A('s_mul_i32 %s, %s, 14336' % (s(sT0), s(sT0)))
        A('s_add_u32 %s, %s, 6144' % (s(sT1), s(sT0)))
        A('v_lshlrev_b32 v1, 7, v0')
        for j in range(2): A('buffer_load_dword v250, v1, %s, %s offen nt' % (s(S_BX, 4), s(sT0 + j)))
    A('s_and_b32 %s, %s, %d' % (s(sT0), s(sROLE), PRM['nrep'] - 1))
    A('s_lshl_b32 %s, %s, 8' % (s(sHMRD), s(sT0)))
    A('s_add_u32 %s, %s, %d' % (s(sHPRD), s(sHMRD), HINT_P))
    A('s_add_u32 %s, %s, %d' % (s(sHMRD), s(sHMRD), HINT_M))
    A('v_and_b32 v1, 2, v0')
    A('v_cmp_eq_u32 vcc, 0, v1')
    A('v_mov_b32 v2, 0xeeeeeeee')
    A('v_mov_b32 v3, 0x44444444')
    A('v_cndmask_b32 %s, v2, v3, vcc' % v(vIDX))
    A('v_lshlrev_b32 v1, 4, v0')
    A('s_sub_u32 %s, %s, 16' % (s(sT1), s(sROLE)))
    A('s_lshr_b32 %s, %s, 1' % (s(sT1), s(sT1)))
    A('s_cmp_lt_u32 %s, 16' % s(sROLE))
    A('s_cselect_b32 %s, 0, %s' % (s(sT1), s(sT1)))
    A('s_lshl_b32 %s, %s, 1' % (s(sT0), s(sWAVE)))
    A('s_add_u32 %s, %s, %s' % (s(sT0), s(sT0), s(sT1)))
    rot(A, 0)
    A('s_mov_b32 %s, %s' % (s(sROT), s(sT1)))
    A('s_mov_b32 %s, %s' % (s(sT0), s(sT1)))
    for k in range(7):
        rot(A, k)
        A('s_lshl_b32 %s, %s, 10' % (s(sT1), s(sT1)))
        A('v_add_u32 %s, %s, v1' % (v(vK + k), s(sT1)))
    stamp_setup(A)

def load_weights(A, R, cstride):
    tag = 'S' if R is SC else 'V'
    A('s_mul_i32 %s, %s, %d' % (s(sT0), s(sWAVE), R.nt * 1024))
    if not G.dev_nowait:
        A('v_mov_b32 %s, v8' % v(vT))
        wait_init(A)
        A('v_mov_b32 v3, %s' % v(vT))
    lexpr(A, 'v1', v(vLANE), [(0, 6, 16)], s(sT0), 'v2')
    A('v_add_u32 v2, 4096, v1')
    if R is SC: A('v_subrev_u32 v0, 8192, v1')
    SB_ = 28
    A('s_mov_b32 %s, %s' % (s(sT0), s(sROT)))
    for k in range(7):
        rot(A, k)
        A('s_mul_i32 %s, %s, %d' % (s(sT1), s(sT1), 2 * cstride))
        A('s_add_u32 %s, %s, %s' % (s(SB_ + 2 * k), s(sT1), s(sT3)))
        A('s_add_u32 %s, %s, %d' % (s(SB_ + 2 * k + 1), s(SB_ + 2 * k), cstride))
    A('s_mov_b32 %s, %d' % (s(sT0), FLG_W1))
    pl = 'buffer_load_dword %s, v3, %s, %s offen sc1' % (v(vT), s(S_WS, 4), s(sT0))
    for w in range(1, 4):
        A('s_cmp_eq_u32 %s, %d' % (s(sWAVE), w))
        A('s_cbranch_scc1 L_lw%s%d' % (tag, w))
    for w in range(4):
        A.label('L_lw%s%d' % (tag, w))
        st = [[], [], [], []]
        RW = R if R is VA else (SC6 if w < 2 else SC8)
        for k in range(7):
            for hi in range(2):
                for r in range(RW.nt):
                    q = ((7 * w + r if r < 7 else 7 * w - 8) >> 2) if R is SC else 0
                    c = (2 * ((k + 2 * w) % 7) + hi - 2 * q) % 14
                    st[c >> 2].append((r, k, hi))
        n = 0; since = None
        for i in range(4):
            if not G.dev_nowait:
                l = A.newlabel('L_lwp')
                if since is None: A(pl); since = 0
                A('s_waitcnt vmcnt(%d)' % since)
                A.label(l)
                A('v_cmp_gt_u32 vcc, %d, %s' % (i + 1, v(vT)))
                spin_check(A, l, ['s_sleep %d' % PRM['lws'], pl, 's_waitcnt vmcnt(0)'])
                if i == 0: event(A, 4, 'v59', v(vT + 1))
            for j, (r, k, hi) in enumerate(st[i]):
                if j == len(st[i]) // 2 and i < 3 and not G.dev_nowait: A(pl); since = 0
                wv = RW.w(r, k)
                if wv is None: dst = v((ldstmp(VLDS.index((r, k))) if R is VA else 4 + 8 * (k - 5)) + 4 * hi, 4)
                else: dst = u(wv + 4 * hi, 4)
                if R is SC and r == 7: ar, off = 'v0', 0
                else: ar, off = ('v1' if r < 4 else 'v2'), (r & 3) * 1024
                A('buffer_load_dwordx4 %s, %s, %s, %s offen offset:%d sc1' % (dst, ar, s(S_WS, 4), s(SB_ + 2 * k + hi), off))
                if since is not None: since += 1
                n += 1
                if G.dev_nowait and n % 16 == 0: A('s_waitcnt vmcnt(40)')
        if w < 3: A('s_branch L_lw%sE' % tag)
    A.label('L_lw%sE' % tag)
    A('s_waitcnt vmcnt(0)')
    if R is SC:
        for i in range(4): A('ds_write_b128 %s, %s offset:%d' % (v(vSW), v(4 + 4 * i, 4), i * 1024))
        A('s_waitcnt lgkmcnt(0)')
    if R is VA:
        for i in range(10):
            for hi in range(2):
                A('ds_write_b128 %s, %s offset:%d' % (v(vLW), v(ldstmp(i) + 4 * hi, 4), (2 * i + hi) * 1024))
            if i % 3 == 2: A('s_waitcnt lgkmcnt(4)')
        A('s_waitcnt lgkmcnt(0)')
def ldstmp(i): return (4 + 8 * i) if i < 7 else (UB + 8 * (i - 7))

def zero_regs(b, n): return ['v_mov_b32 %s, 0' % v(b + i) for i in range(n)]

def main_phase(A, R, pw, delay, post, vm, every, extra, epi, pre_ds=0):
    NT = R.nt
    hint_wait(A, sHMRD, sSTEP1, pw, delay, 22, vHM_ if R is VA else None)
    stamp(A, 1)
    ld = ['buffer_load_dwordx4 %s, %s, %s, %s offen sc1' % (v(MF + 4 * k, 4), v(vK + k), s(S_WS, 4), s(sSLOT)) for k in range(2)]
    A(ld[0])
    if PRM['f0b']: A('s_barrier')
    A(ld[1])
    for x in post: A(x)
    nst = len([x for x in post if x.startswith('buffer_')])
    A('s_waitcnt vmcnt(%d)' % (nst + 1))
    l0 = A.newlabel('L_pm0'); A.label(l0)
    check4(A, MF, l0, [ld[0], 's_waitcnt vmcnt(0)'])
    stamp(A, 2)
    A('ds_write_b128 %s, %s offset:%d' % (v(vK), v(MF, 4), L_MEM))
    vm = list(vm); cnt = [0]
    def vmtick():
        cnt[0] += 1
        if vm and cnt[0] % every == 0:
            for x in vm.pop(0): A(x)
    k1, k2 = PRM['k1'], min(PRM['k2'], 2 * NT - 3)
    kseq = [(r, 0) for r in range(NT)] + [(r, 1) for r in range(NT)]
    rd = [2, 3, 4, 5, 6]
    for i, (r, k) in enumerate(kseq):
        A(smf(v(R.accf(r), 4), v(MF + 4 * k, 4), u(R.w(r, k), 8)))
        if i == k1 - 1:
            A('s_waitcnt vmcnt(%d)' % nst)
            l1 = A.newlabel('L_pm1'); A.label(l1)
            check4(A, MF + 4, l1, [ld[1], 's_waitcnt vmcnt(0)'])
            A('ds_write_b128 %s, %s offset:%d' % (v(vK + 1), v(MF + 4, 4), L_MEM))
        elif i >= k1 and i < k2 - 1: vmtick()
        if i == k2 - 1:
            A('s_waitcnt lgkmcnt(0)')
            A('s_barrier')
            stamp(A, 3)
        if i >= k2 - 1:
            for _ in range(2 if len(kseq) - i > 2 else 5):
                if rd:
                    kk = rd.pop(0); A('ds_read_b128 %s, %s offset:%d' % (v(MF + 4 * kk, 4), v(vK + kk), L_MEM))
    assert not rd
    q = []
    i = 0
    for r in range(NT):
        for k in range(2, 7):
            if r == 0: A('s_waitcnt lgkmcnt(%d)' % (6 - k))
            w = R.w(r, k)
            if w is None and R is VA:
                iv = VORD.index((r, k))
                w = LB + 8 * (iv & 1)
                A('s_waitcnt lgkmcnt(%d)' % (2 if 1 <= iv <= 8 else 0))
            elif w is None: w = R.land[(r, k)]
            A(smf(v(R.accf(r), 4), v(MF + 4 * k, 4), u(w, 8)))
            if k == 3 and r > 0: q += epi(r - 1)
            if q: A(q.pop(0))
            for x in extra.get(i, []): A(x)
            vmtick()
            i += 1
    stamp(A, 4)
    for x in q: A(x)
    assert not vm, len(vm)
VORD = sorted(VLDS)

def sc_epi(r, up=0):
    c = (SACC + 4 * r) if r < 7 else 0
    off = (up + r * 256) if r < 7 else 6 * 256
    return ['v_add_f32 %s, %s, %s' % (v(c), v(c), v(c + 2)),
            'v_add_f32 %s, %s, %s' % (v(c + 1), v(c + 1), v(c + 3)),
            'v_cvt_pk_bf16_f32 %s, %s, %s' % (v(c), v(c), v(c + 1)),
            'ds_write_b32 %s, %s offset:%d' % (v(vYW), v(c), off)]

sXL = 86
sXB = 98
vXG = 76
def xpieces(A, sbase, n, fill=()):
    fill = list(fill)
    for k in range(n):
        if k % 4 == 0:
            A('s_add_u32 %s, %s, %d' % (s(sT1), s(sbase), k * 1024))
            A('s_add_u32 m0, %s, %s' % (s(sT1), s(sXB)))
            A('s_add_u32 %s, %s, %s' % (s(sXPF), s(sT1), s(sXOFF)))
        A('buffer_load_dwordx4 %s, %s, %s offen offset:%d sc1 lds' % (v(vXG), s(S_WS, 4), s(sXPF), (k & 3) * 1024))
        for x in fill[:6]: A(x)
        fill = fill[6:]
    for x in fill: A(x)

def score_role(A):
    A.label('L_score')
    L = v(vLANE)
    A('s_and_b32 %s, %s, 1' % (s(sT0), s(sWAVE)))
    A('s_mul_i32 %s, %s, 1792' % (s(sT0), s(sT0)))
    A('s_add_u32 %s, %s, %d' % (s(sT0), s(sT0), L_YT))
    lexpr(A, v(vYW), L, [(2, 2, 64), (0, 1, 32), (4, 2, 8), (1, 1, 4)], s(sT0), 'v1')
    lexpr(A, v(vTRL), L, [(4, 2, 1792), (0, 4, 8)], L_YT, 'v1')
    lexpr(A, v(vB), L, [(5, 1, 1792), (4, 1, 32), (0, 2, 64), (3, 1, 16)], L_MEM, 'v1')
    lexpr(A, v(vX), L, [(0, 6, 16)], 0, 'v1')
    A('s_lshl_b32 %s, %s, 12' % (s(sT0), s(sWAVE)))
    A('s_add_u32 %s, %s, %d' % (s(sT0), s(sT0), L_SWL))
    A('v_add_u32 %s, %s, %s' % (v(vSW), s(sT0), v(vX)))
    A('s_lshl_b32 %s, %s, 9' % (s(sT0), s(sROLE)))
    A('s_lshl_b32 %s, %s, 4' % (s(sT2), s(sWAVE)))
    A('s_add_u32 %s, %s, %s' % (s(sT0), s(sT0), s(sT2)))
    lexpr(A, v(vPST), L, [(3, 1, 256), (4, 2, 64), (2, 1, 32), (0, 2, 4)], s(sT0), 'v1')
    A('s_lshr_b32 %s, %s, 2' % (s(sT0), s(sROLE)))
    A('s_lshl_b32 %s, %s, 9' % (s(sT0), s(sT0)))
    A('s_add_u32 %s, %s, %s' % (s(sT0), s(sT0), s(sT2)))
    A('s_and_b32 %s, %s, 1' % (s(sT1), s(sROLE)))
    A('s_lshl_b32 %s, %s, 5' % (s(sT1), s(sT1)))
    A('s_add_u32 %s, %s, %s' % (s(sT0), s(sT0), s(sT1)))
    A('s_and_b32 %s, %s, 2' % (s(sT1), s(sROLE)))
    A('s_lshl_b32 %s, %s, 1' % (s(sT1), s(sT1)))
    A('s_add_u32 %s, %s, %s' % (s(sT0), s(sT0), s(sT1)))
    A('s_add_u32 %s, %s, 8192' % (s(sT0), s(sT0)))
    lexpr(A, 'v3', L, [(1, 1, 256), (0, 1, 8), (4, 2, 64)], s(sT0), 'v1')
    A('v_and_b32 v4, 12, %s' % L)
    A('v_mov_b32 v2, %d' % OOB)
    A('v_cmp_eq_u32 vcc, 0, v4')
    A('v_cndmask_b32 %s, v2, v3, vcc' % v(vPSM))
    A('s_lshl_b32 %s, %s, 2' % (s(sHWR), s(sROLE)))
    A('s_add_u32 %s, %s, %d' % (s(sHWR), s(sHWR), HINT_P))
    hint_setup(A, HV, HA, False)
    A('s_nop 2')
    lexpr(A, v(vTRL), L, [(4, 2, 1792), (0, 4, 8)], L_YT, 'v1')
    dbg_arrive(A, D_GRP)
    A('s_mul_i32 %s, %s, 7' % (s(sT1), s(sWAVE)))
    A('v_lshrrev_b32 v8, 2, %s' % L)
    A('v_cmp_lt_u32 vcc, 2, v8')
    A('v_mul_u32_u24 v8, 3, v8')
    A('v_add_u32 v8, %s, v8' % s(sT1))
    A('s_and_b32 %s, %s, 1' % (s(sT1), s(sWAVE)))
    A('s_mul_i32 %s, %s, 7' % (s(sT1), s(sT1)))
    A('s_add_u32 %s, %s, 6' % (s(sT1), s(sT1)))
    A('v_mov_b32 v9, %s' % s(sT1))
    A('v_cndmask_b32 v8, v8, v9, vcc')
    A('v_lshrrev_b32 v8, 2, v8')
    A('s_mul_i32 %s, %s, 7' % (s(sT0), s(sROLE)))
    A('v_add_u32 v8, %s, v8' % s(sT0))
    A('v_lshlrev_b32 v8, 6, v8')
    A('v_and_b32 v9, 3, %s' % L)
    A('v_lshl_add_u32 v8, v9, 2, v8')
    event(A, 3)
    A('s_mul_i32 %s, %s, %d' % (s(sT3), s(sROLE), WCU))
    load_weights(A, SC, 28672)
    event(A, 5)
    group_wait(A)
    event(A, 6, v(vT), v(vT + 1))
    event_spin(A, 13, v(vT), v(vT + 1))
    A('s_mov_b32 %s, 0' % s(sSTEP))
    A('s_mov_b32 %s, %d' % (s(sSLOT), MB_OFF))
    NE = PRM['xe']; NL = -(-(28 - 2 * NE) // 3)
    sXE = 97
    A('v_mov_b32 %s, %s' % (v(vXG), v(vX)))
    A('s_mov_b32 %s, %d' % (s(sXOFF), XF_OFF))
    A('s_mov_b32 %s, %d' % (s(sXB), L_XS))
    A('s_mul_i32 %s, %s, %d' % (s(sXL), s(sWAVE), NL * 1024))
    A('s_add_u32 %s, %s, %d' % (s(sXL), s(sXL), 2 * NE * 1024))
    A('s_min_u32 %s, %s, %d' % (s(sXL), s(sXL), (28 - NL) * 1024))
    A('s_and_b32 %s, %s, 1' % (s(sXE), s(sWAVE)))
    A('s_mul_i32 %s, %s, %d' % (s(sXE), s(sXE), NE * 1024))
    xpieces(A, sXE, NE)
    A('v_xor_b32 %s, 0x%x, %s' % (v(vX), XS2, v(vX)))
    AC = SACC
    def top(z, lw):
        if lw:
            A('s_cmp_eq_u32 %s, 3' % s(sWAVE))
            A('s_cbranch_scc1 L_sc_nox')
            xpieces(A, sXL, NL)
            A.label('L_sc_nox')
            for x in z: A(x)
        else: xpieces(A, sXL, NL, z)
        A('s_add_u32 %s, %s, 32768' % (s(sXOFF), s(sXOFF)))
        A('s_xor_b32 %s, %s, 0x%x' % (s(sXB), s(sXB), XS2))
        A('s_add_u32 %s, %s, %d' % (s(sSLOTP), s(sSLOT), MB_PO))
        A('s_add_u32 %s, %s, 1' % (s(sSTEP1), s(sSTEP)))
        if lw: A('v_mov_b32 %s, %s' % (v(HV), s(sSTEP1)))
        else: A('v_xor_b32 %s, 0x%x, %s' % (v(vX), XS2, v(vX)))
        A('s_waitcnt vmcnt(0)')
        stamp(A, 0)
    def bottom(lp, order):
        stamp_flush(A, 11, order)
        A('s_barrier')
        A('s_add_u32 %s, %s, %d' % (s(sSLOT), s(sSLOT), MB_STEP))
        A('s_add_u32 %s, %s, 1' % (s(sSTEP), s(sSTEP)))
        A('s_cmp_lt_u32 %s, 63' % s(sSTEP))
        A('s_cbranch_scc1 %s' % lp)
    A('s_cmp_ge_u32 %s, 2' % s(sWAVE))
    A('s_cbranch_scc1 L_score_loop8')
    A('v_mov_b32 %s, 0x5f800000' % v(vBIG))
    A.label('L_score_loop')
    top(zero_regs(AC, 24) + zero_regs(SD, 12), False)
    units = [(c, T) for c in range(7) for T in range(3)]
    XS_ = [XB, XB + 8, XB + 16, 208, 216, 224, 232, 240, 248]
    slot = {}; pre = []
    xs = list(XS_)
    for i, (c, T) in enumerate(units):
        if T < 2 and xs: slot[i] = xs.pop(0); pre.append(i)
    early = {2: MF, 5: AC, 8: AC + 8}
    slot.update(early)
    late_free = [MF + 8, MF + 16]
    AR = [AF0, AF1, AC + 24, 204, AC + 16, AC + 20, MF + 24]
    def bread(i):
        c, T = units[i]
        if T == 2: return ['ds_read_b128 %s, %s offset:%d' % (v(slot[i] + 4 * hi, 4), v(vB), hi * 3584 + c * 256) for hi in range(2)]
        return ['ds_read_b128 %s, %s offset:%d' % (v(slot[i] + 4 * hi, 4), v(vX), L_XS + c * 4096 + T * 2048 + hi * 1024) for hi in range(2)]
    def aread(c): return ['ds_read_b64_tr_b16 %s, %s offset:%d' % (v(AR[c] + 2 * t, 2), v(vTRL), c * 256 + t * 128) for t in range(2)]
    def ss(i):
        c, T = units[i]
        return smf(v(SD + 4 * T, 4), v(AR[c], 4), v(slot[i], 8))
    extra = {}
    for i, pp in ((2, (5, 10)), (5, (15, 20)), (8, (20, 25))):
        for x, ppos in zip(bread(i), pp): extra.setdefault(ppos, []).append(x)
    extra.setdefault(28, []).extend(['s_waitcnt lgkmcnt(0)', 's_barrier'] + aread(0) + aread(1))
    post = []
    for n_, i in enumerate(pre):
        post += bread(i)
        if n_ in (4, 7): post.append('s_waitcnt lgkmcnt(4)')
    main_phase(A, SC6, 3, PRM['sdel'], post, [], 1, extra, sc_epi)
    e5 = sc_epi(5)
    ds = ['A0', 'A0', 'A1', 'A1', 'w4']
    def D(x, tag):
        A(x); ds.append(tag)
    def wait_for(tags):
        last = max([i for i, tg in enumerate(ds) if tg in tags], default=-1)
        if last >= 0 and last > wait_for.done:
            A('s_waitcnt lgkmcnt(%d)' % min(14, len(ds) - 1 - last)); wait_for.done = last
    wait_for.done = -1
    for x in aread(2): D(x, 'A2')
    for x in aread(3): D(x, 'A3')
    todo = [i for i in range(21) if i not in slot]
    free = list(late_free)
    for i in range(21):
        c, T = units[i]
        wait_for({'A%d' % c, 'B%d' % i})
        A(ss(i))
        if i == 1:
            A(e5[0]); A(e5[1])
        if i == 2:
            A(e5[2]); D(e5[3], 'w5')
        free.append(slot[i])
        if todo:
            j = todo.pop(0); slot[j] = free.pop(0)
            for x in bread(j): D(x, 'B%d' % j)
        if i == PRM['sb']:
            wait_for({'w5'})
            A('s_barrier')
            for x in aread(4): D(x, 'A4')
            for x in aread(5): D(x, 'A5')
        if i == PRM['sc']:
            A('s_barrier')
            for x in aread(6): D(x, 'A6')
    stamp(A, 5)
    A('s_cmp_eq_u32 %s, 1' % s(sWAVE))
    A('s_cbranch_scc1 L_sc_sm1')
    e, o, mm, m, t2, rr = v(AC), v(AC + 1), v(AC + 2), v(AC + 3), v(AC + 4), v(AC + 5)
    def reduce(op):
        for d in ('quad_perm:[1,0,3,2]', 'quad_perm:[2,3,0,1]', 'row_half_mirror', 'row_mirror'):
            A('%s_dpp %s, %s, %s %s row_mask:0xf bank_mask:0xf' % (op, m, m, m, d))
    def softmax(rb, exact):
        for d, T in ((e, 0), (o, 1), (mm, 2)): A('v_add_f32 %s, %s, %s' % (d, v(SD + 4 * T + rb), v(SD + 4 * T + rb + 2)))
        if exact:
            A('v_max3_f32 %s, %s, %s, %s' % (m, e, o, mm))
            reduce('v_max_f32')
            for d in (e, o, mm): A('v_sub_f32 %s, %s, %s' % (d, d, m))
        for d in (e, o, mm): A('v_exp_f32 %s, %s' % (d, d))
        A('v_add_f32 %s, %s, %s' % (m, e, o))
        A('v_fma_f32 %s, %s, 0.5, %s' % (m, mm, m))
        A('v_mov_b32_dpp %s, %s row_ror:8 row_mask:0xf bank_mask:0xf' % (t2, mm))
        reduce('v_add_f32')
        A('v_rcp_f32 %s, %s' % (rr, m))
        if not exact:
            A('v_max_f32 %s, %s, %s' % (m, m, rr))
            A('v_mul_f32 %s, %s, %s' % (e, e, rr))
            A('v_cmp_nlt_f32 vcc, %s, %s' % (m, v(vBIG)))
            A('v_mul_f32 %s, %s, %s' % (o, o, rr))
            A('v_cvt_pk_bf16_f32 %s, %s, %s' % (v(vT), e, o))
            A('s_cbranch_vccnz L_sc_exact%d' % rb)
            A('buffer_store_dword %s, %s, %s, %s offen' % (v(vT), v(vPST), s(S_WS, 4), s(sSLOTP)))
            A('v_mul_f32 %s, %s, %s' % (mm, mm, rr))
            A('v_mul_f32 %s, %s, %s' % (t2, t2, rr))
            A('v_cvt_pk_bf16_f32 %s, %s, %s' % (v(vT + 1), mm, t2))
        else:
            for d in (e, o, mm, t2): A('v_mul_f32 %s, %s, %s' % (d, d, rr))
            A('v_cvt_pk_bf16_f32 %s, %s, %s' % (v(vT), e, o))
            A('v_cvt_pk_bf16_f32 %s, %s, %s' % (v(vT + 1), mm, t2))
            A('v_min_u32 %s, -2, %s' % (v(vT), v(vT)))
            A('v_min_u32 %s, -2, %s' % (v(vT + 1), v(vT + 1)))
            A('buffer_store_dword %s, %s, %s, %s offen' % (v(vT), v(vPST), s(S_WS, 4), s(sSLOTP)))
        A('buffer_store_dword %s, %s, %s, %s offen' % (v(vT + 1), v(vPSM), s(S_WS, 4), s(sSLOTP)))
        stamp(A, 8)
        A('s_branch L_sc_join')
    for rb in range(2):
        if rb: A.label('L_sc_sm1')
        softmax(rb, not PRM['fsm'])
    if PRM['fsm']:
        for rb in range(2):
            A.label('L_sc_exact%d' % rb)
            softmax(rb, True)
    A.label('L_sc_join')
    bottom('L_score_loop', [0, 1, 2, 3, 4, 5, 8])
    A('s_branch L_sc_end')
    A.label('L_score_loop8')
    top(zero_regs(0, 32), True)
    extra = {}
    for (r_, k_), pp in (((7, 5), (5, 10)), ((7, 6), (15, 20))):
        for hi in range(2):
            extra.setdefault(pp[hi], []).append('ds_read_b128 %s, %s offset:%d' % (v(SC8.land[(r_, k_)] + 4 * hi, 4), v(vSW), (2 * (k_ - 5) + hi) * 1024))
    extra.setdefault(PRM['ba'], []).extend(['s_waitcnt lgkmcnt(0)', 's_barrier'])
    extra.setdefault(PRM['bb'], []).extend(['s_waitcnt lgkmcnt(0)', 's_barrier'])
    epi8 = lambda r: sc_epi(r, 3584)
    class _C:
        def __init__(s_): s_.l = []
        def __call__(s_, x): s_.l.append(x)
    cc = _C(); xpieces(cc, sXE, NE)
    main_phase(A, SC8, 3, PRM['sdel'], (['s_nop 7'] if NE else []) + cc.l, [], 1, extra, epi8)
    for x in epi8(7): A(x)
    A('s_waitcnt lgkmcnt(0)')
    A('s_barrier')
    stamp(A, 5)
    for i in range(PRM['ht']): A('s_nop 3')
    hint_send(A, HV, HA)
    if G.events:
        A('s_memtime s[4:5]')
        A('s_waitcnt lgkmcnt(0)')
        A('s_mov_b32 m0, %s' % s(sSTEP))
        A('s_nop 3')
        A('v_writelane_b32 v79, s4, m0')
    bottom('L_score_loop8', [0, 1, 2, 3, 4, 5])
    A.label('L_sc_end')
    stamp_acc_out(A)
    if G.events:
        A('s_lshl_b32 s6, %s, 2' % s(sROLE))
        A('s_add_u32 s6, s6, %s' % s(sWAVE))
        A('s_lshl_b32 s6, s6, 8')
        A('s_add_u32 s6, s6, %d' % (EVT + 0x20000))
        A('v_lshrrev_b32 v1, 2, %s' % v(vXG))
        A('v_and_b32 v1, 0xff, v1')
        A('buffer_store_dword v79, v1, %s, s6 offen' % s(S_WS, 4))
    event(A, 8)
    event_spin(A, 14)
    A('s_branch L_exit')
    emit_stubs(A)

def va_epi(r):
    c = 4 * r
    return ['v_add_f32 %s, %s, %s' % (v(c), v(c), v(c + 2)),
            'v_add_f32 %s, %s, %s' % (v(c + 1), v(c + 1), v(c + 3)),
            'v_cvt_pk_bf16_f32 %s, %s, %s' % (v(ZB + 4 * (r & 1) + (r >> 1)), v(c), v(c + 1))]

sVB = 96
def u_loads():
    out = []
    for cx in range(2):
        for hi in range(2):
            for p in range(2):
                out.append((['s_add_u32 m0, %s, %d' % (s(sVB), cx * 4096 + hi * 2048)] if p == 0 else []) +
                           ['buffer_load_dwordx4 %s, %s, %s offen offset:%d sc1 lds' % (v(vL16), s(S_WS, 4), s(88 + cx * 2 + hi), p * 1024)])
    return out

def ucheck_code(A, lbl, back, P0, t):
    A.label(lbl)
    A('v_mbcnt_lo_u32_b32 %s, -1, 0' % v(t))
    A('v_mbcnt_hi_u32_b32 %s, -1, %s' % (v(t), v(t)))
    A('v_min_u32 %s, 55, %s' % (v(t), v(t)))
    A('v_lshlrev_b32 %s, 4, %s' % (v(t), v(t)))
    A('s_mov_b32 %s, %d' % (s(sT1), FLG_W2 + 1792))
    A('s_lshr_b32 %s, %s, 2' % (s(sT2), s(sT4)))
    A('s_add_u32 %s, %s, 1' % (s(sT2), s(sT2)))
    A.label(lbl + '_l')
    A('buffer_load_dwordx4 %s, %s, %s, %s offen sc1' % (v(P0, 4), v(t), s(S_WS, 4), s(sT1)))
    A('buffer_load_dwordx4 %s, %s, %s, %s offen offset:896 sc1' % (v(P0 + 4, 4), v(t), s(S_WS, 4), s(sT1)))
    A('s_waitcnt vmcnt(0)')
    A('v_min3_u32 %s, %s, %s, %s' % (v(P0), v(P0), v(P0 + 1), v(P0 + 2)))
    A('v_min3_u32 %s, %s, %s, %s' % (v(P0), v(P0), v(P0 + 3), v(P0 + 4)))
    A('v_min3_u32 %s, %s, %s, %s' % (v(P0), v(P0), v(P0 + 5), v(P0 + 6)))
    A('v_min_u32 %s, %s, %s' % (v(P0), v(P0), v(P0 + 7)))
    A('v_cmp_gt_u32 vcc, %s, %s' % (s(sT2), v(P0)))
    spin_check(A, lbl + '_l', ['s_sleep 8'])
    A('s_lshl_b32 %s, %s, 2' % (s(sUOK), s(sT2)))
    for thr in range(2, 17):
        A('v_cmp_gt_u32 vcc, %d, %s' % (thr, v(P0)))
        A('s_cbranch_vccnz %s' % back)
        A('s_max_u32 %s, %s, %d' % (s(sUOK), s(sUOK), 4 * thr if thr < 16 else 1000))
    A('s_branch %s' % back)

def value_role(A):
    A.label('L_value')
    L = v(vLANE)
    sV = sT4
    A('s_sub_u32 %s, %s, 16' % (s(sV), s(sROLE)))
    lexpr(A, v(vL16), L, [(0, 6, 16)], 0, 'v1')
    A('s_lshl_b32 %s, %s, 13' % (s(sVB), s(sWAVE)))
    A('s_add_u32 %s, %s, %d' % (s(sVB), s(sVB), L_VB))
    A('s_lshl_b32 %s, %s, 11' % (s(sT0), s(sWAVE)))
    A('s_add_u32 %s, %s, %d' % (s(sT0), s(sT0), L_VB + 32768))
    A('v_add_u32 %s, %s, %s' % (v(vVW), s(sT0), v(vL16)))
    A('v_add_u32 %s, %d, %s' % (v(vVR), L_VB, v(vL16)))
    A('s_mul_i32 %s, %s, 20480' % (s(sT0), s(sWAVE)))
    A('s_add_u32 %s, %s, %d' % (s(sT0), s(sT0), L_WL))
    A('v_add_u32 %s, %s, %s' % (v(vLW), s(sT0), v(vL16)))
    A('s_lshl_b32 %s, %s, 9' % (s(sT0), s(sV)))
    A('s_cmp_eq_u32 %s, 0' % s(sWAVE))
    A('s_cselect_b32 %s, %s, 0x70000000' % (s(sT0), s(sT0)))
    lexpr(A, v(vMST), L, [(3, 1, 256), (2, 1, 32), (4, 2, 64), (0, 2, 4)], s(sT0), 'v1')
    lexpr(A, v(vHIST), L, [(2, 2, 128), (4, 2, 32), (0, 2, 4)], s(sT0), 'v1')
    A('s_lshl_b32 %s, %s, 6' % (s(sT0), s(sV)))
    lexpr(A, 'v2', L, [(4, 2, 1792), (0, 4, 4)], s(sT0), 'v1')
    A('buffer_load_dword %s, v2, %s, 0 offen' % (v(VR), s(S_M0, 4)))
    A('buffer_load_dword %s, v2, %s, 0 offen offset:896' % (v(VR + 1), s(S_M0, 4)))
    A('s_lshl_b32 %s, %s, 2' % (s(sHWR), s(sV)))
    A('s_add_u32 %s, %s, %d' % (s(sHWR), s(sHWR), HINT_M))
    hint_setup(A, VHV, VHA, True)
    A('v_min_u32 v1, 21, %s' % L)
    A('v_lshlrev_b32 %s, 2, v1' % v(vHM_))
    A('v_min_u32 v1, 15, %s' % L)
    A('v_lshlrev_b32 %s, 2, v1' % v(vHP_))
    dbg_arrive(A, D_GRP)
    A('s_lshr_b32 %s, %s, 1' % (s(sT0), s(sV)))
    A('s_add_u32 %s, %s, 112' % (s(sT0), s(sT0)))
    A('s_mul_i32 %s, %s, 28' % (s(sT1), s(sWAVE)))
    A('s_add_u32 %s, %s, %s' % (s(sT0), s(sT0), s(sT1)))
    lexpr(A, 'v8', L, [(2, 2, 7)], s(sT0), 'v1')
    A('v_lshlrev_b32 v8, 6, v8')
    A('v_and_b32 v9, 3, %s' % L)
    A('v_lshl_add_u32 v8, v9, 2, v8')
    A('s_mul_i32 %s, %s, %d' % (s(sUOFF), s(sWAVE), 4 * 28672))
    A('s_lshl_b32 %s, %s, 11' % (s(sT0), s(sV)))
    A('s_add_u32 %s, %s, %s' % (s(sUOFF), s(sUOFF), s(sT0)))
    A('s_add_u32 %s, %s, %d' % (s(sUOFF), s(sUOFF), U_OFF))
    A('s_mul_i32 %s, %s, %d' % (s(sT3), s(sV), WCV))
    A('s_add_u32 %s, %s, %d' % (s(sT3), s(sT3), WIMGV))
    event(A, 3)
    load_weights(A, VA, 32768)
    event(A, 5)
    group_wait(A)
    event(A, 6, v(vT), v(vT + 1))
    event_spin(A, 13, v(vT), v(vT + 1))
    A('s_mov_b32 %s, 0' % s(sSTEP))
    A('s_mov_b32 %s, %d' % (s(sSLOT), MB_OFF))
    A('s_mov_b32 %s, %d' % (s(sUOK), 1000 if G.dev_nowait else 0))
    for j in range(2):
        A('v_min_u32 %s, -2, %s' % (v(VR + j), v(VR + j)))
        A('buffer_store_dword %s, %s, %s, %s offen offset:%d' % (v(VR + j), v(vMST), s(S_WS, 4), s(sSLOT), 16 * j))
    A('v_mov_b32 %s, 1' % v(VHV))
    A('s_barrier')
    hint_send(A, VHV, VHA)
    def lread(i):
        j = VLDS.index(VORD[i])
        return ['ds_read_b128 %s, %s offset:%d' % (v(LB + 8 * (i & 1) + 4 * hi, 4), v(vLW), (2 * j + hi) * 1024) for hi in range(2)]
    BF = [0, 8, 16, 24, 32, 40, 48, 80, 88]
    OD, PA, PKD = 96, 104, 56
    sP0 = 93
    def top():
        A('s_add_u32 %s, %s, 1' % (s(sSTEP1), s(sSTEP)))
        for j in range(4): A('s_add_u32 %s, %s, %d' % (s(88 + j), s(sUOFF), j * 28672))
    top()
    A.label('L_value_loop')
    if G.stamps != 2: stamp(A, 0)
    ul = u_loads(); nb1 = PRM['nb1']
    extra = {}
    for i in range(2, 10):
        r, k = VORD[i - 2]
        extra.setdefault(5 * r + k - 2, []).extend(lread(i))
    A('s_add_u32 %s, %s, 2' % (s(sT0), s(sSTEP)))
    extra.setdefault(0, []).append('v_mov_b32 %s, %s' % (v(VHV), s(sT0)))
    for x in lread(0) + lread(1) + ['v_pk_mov_b32 %s, 0, 0' % v(2 * i, 2) for i in range(16)]: A(x)
    post = ['s_barrier']
    for j, x in enumerate(ul[:nb1]): post += x
    main_phase(A, VA, 2, PRM['vdel'], post, ul[nb1:], PRM['uev'], extra, va_epi)
    for x in va_epi(7): A(x)
    for j in range(3): A('s_add_u32 %s, %s, %d' % (s(sP0 + j), s(sSLOT), MB_PO + 4096 * j))
    A('s_add_u32 %s, %s, %d' % (s(sSLOT), s(sSLOT), MB_STEP))
    for p in range(2): A('ds_write_b128 %s, %s offset:%d' % (v(vVW), v(ZB + 4 * p, 4), p * 1024))
    A('s_waitcnt vmcnt(0) lgkmcnt(0)')
    A('s_barrier')
    stamp(A, 5)
    def bread(f):
        c, p = f >> 1, f & 1
        return ['ds_read_b128 %s, %s offset:%d' % (v(BF[f % 9] + 4 * hi, 4), v(vVR), c * 4096 + hi * 2048 + p * 1024) for hi in range(2)]
    pre = []
    for f in range(9):
        pre += bread(f)
        if f in (4, 7): pre.append('s_waitcnt lgkmcnt(4)')
    pre += zero_regs(OD, 8) + ['s_waitcnt lgkmcnt(0)']
    A('s_add_u32 %s, %s, %d' % (s(sUOFF), s(sUOFF), 16 * 28672))
    A('s_add_u32 %s, %s, 1' % (s(sSTEP), s(sSTEP)))
    A('s_cmp_lg_u32 %s, 0' % s(sWAVE))
    A('s_cbranch_scc1 L_value_oth')
    npre = PRM['npre']
    pre1 = zero_regs(OD, 8); pre2 = []
    for f in range(9):
        (pre1 if f < npre else pre2).extend(bread(f))
        if f in (4, 7): (pre1 if f < npre else pre2).append('s_waitcnt lgkmcnt(4)')
    for x in pre1: A(x)
    if G.stamps == 2: stamp(A, 0)
    A('s_barrier')
    stamp(A, 9)
    ld = ['buffer_load_dwordx4 %s, %s, %s, %s offen offset:%d sc1' % (v(PA + 4 * c, 4), v(vL16), s(S_WS, 4), s(sP0 + (c >> 2)), (c & 3) * 1024) for c in range(10)]
    for x in ld: A(x)
    for x in pre2: A(x)
    A('s_waitcnt lgkmcnt(0)')
    A.label('L_pv')
    for f in range(20):
        c, p = f >> 1, f & 1
        if p == 0: A('s_waitcnt vmcnt(%d)' % (9 - c + (1 if f > PRM['vf'] else 0)))
        if f == 0: stamp(A, 6)
        if f >= 9: A('s_waitcnt lgkmcnt(%d)' % min(14, 2 * (min(19, f + 8) - f)))
        A(smf(v(OD + 4 * p, 4), v(PA + 4 * c, 4), v(BF[f % 9], 8)))
        if f == PRM['vf']: hint_send(A, VHV, VHA)
        if f + 9 < 20:
            for x in bread(f + 9): A(x)
    stamp(A, 7)
    A('v_add_f32 %s, %s, %s' % (v(OD), v(OD), v(OD + 2)))
    A('v_add_f32 %s, %s, %s' % (v(OD + 1), v(OD + 1), v(OD + 3)))
    A('v_cmp_u_f32 vcc, %s, %s' % (v(OD), v(OD + 1)))
    A('v_add_f32 %s, %s, %s' % (v(OD + 4), v(OD + 4), v(OD + 6)))
    A('v_add_f32 %s, %s, %s' % (v(OD + 5), v(OD + 5), v(OD + 7)))
    A('s_cbranch_vccnz L_pv_nan')
    A('v_cvt_pk_bf16_f32 %s, %s, %s' % (v(PKD), v(OD), v(OD + 4)))
    A('v_cvt_pk_bf16_f32 %s, %s, %s' % (v(PKD + 1), v(OD + 1), v(OD + 5)))
    A.label('L_pv_ok')
    A('buffer_store_dword %s, %s, %s, %s offen' % (v(PKD), v(vMST), s(S_WS, 4), s(sSLOT)))
    A('buffer_store_dword %s, %s, %s, %s offen offset:16' % (v(PKD + 1), v(vMST), s(S_WS, 4), s(sSLOT)))
    stamp(A, 8)
    if G.stamps:
        A('s_sub_u32 %s, %s, 1' % (s(sSTEP), s(sSTEP)))
        stamp_flush(A, 11, [0, 1, 2, 3, 4, 5, 10, 9, 6, 7][:10] if False else [1, 2, 3, 4, 5, 0, 9, 6, 7, 8])
        A('s_add_u32 %s, %s, 1' % (s(sSTEP), s(sSTEP)))
    A.label('L_value_next')
    top()
    A('s_cmp_lt_u32 %s, 63' % s(sSTEP))
    A('s_cbranch_scc1 L_value_loop')
    stamp_acc_out(A)
    A('s_mov_b32 %s, %d' % (s(sT0), HM_OFF + 63 * HM_STEP))
    for j in range(2): A('buffer_store_dword %s, %s, %s, %s offen offset:%d sc1' % (v(PKD + j), v(vHIST), s(S_WS, 4), s(sT0), 16 * j))
    event(A, 8)
    event_spin(A, 14)
    A('s_branch L_exit')
    A.label('L_value_oth')
    hint_wait(A, sHPRD, sSTEP1, 2, PRM['pdel'], 16, vHP_)
    A('s_branch L_value_next')
    A.label('L_pv_nan')
    A('v_max3_u32 %s, %s, %s, %s' % (v(vT), v(PA), v(PA + 1), v(PA + 2)))
    for i in range(3, 39, 2): A('v_max3_u32 %s, %s, %s, %s' % (v(vT), v(vT), v(PA + i), v(PA + i + 1)))
    A('v_max_u32 %s, %s, %s' % (v(vT), v(vT), v(PA + 39)))
    A('v_cmp_eq_u32 vcc, -1, %s' % v(vT))
    spin_check(A, 'L_pv', ld + pre)
    A('v_cvt_pk_bf16_f32 %s, %s, %s' % (v(PKD), v(OD), v(OD + 4)))
    A('v_cvt_pk_bf16_f32 %s, %s, %s' % (v(PKD + 1), v(OD + 1), v(OD + 5)))
    A('v_min_u32 %s, -2, %s' % (v(PKD), v(PKD)))
    A('v_min_u32 %s, -2, %s' % (v(PKD + 1), v(PKD + 1)))
    A('s_branch L_pv_ok')
    emit_stubs(A)

def helper_role(A):
    A.label('L_helper')
    diag(A, 5)
    L = v(vLANE)
    sHW, sJ, sXS, sXD, sSI = sT3, sPRST, sXOFF, sXPF, sUOFF
    LA = PRM['pla']; LT = PRM['plt']
    A('s_sub_u32 %s, %s, 30' % (s(sHW), s(sROLE)))
    A('s_lshl_b32 %s, %s, 2' % (s(sHW), s(sHW)))
    A('s_add_u32 %s, %s, %s' % (s(sHW), s(sHW), s(sWAVE)))
    A('s_min_u32 %s, %s, 6' % (s(sT4), s(sHW)))
    A('s_lshl_b32 %s, %s, 10' % (s(sT0), s(sT4)))
    lexpr(A, 'v10', L, [(0, 6, 16)], s(sT0), 'v1')
    A('s_cmp_lt_u32 %s, 7' % s(sHW))
    A('s_cselect_b32 %s, %s, 0x70000000' % (s(sT0), s(sT0)))
    lexpr(A, 'v11', L, [(4, 2, 256), (1, 1, 128), (2, 2, 32), (0, 1, 16)], s(sT0), 'v1')
    A('s_lshl_b32 %s, %s, 12' % (s(sT0), s(sHW)))
    lexpr(A, 'v12', L, [(0, 5, 128)], s(sT0), 'v1')
    A('s_lshl_b32 %s, %s, 10' % (s(sT0), s(sHW)))
    lexpr(A, 'v13', L, [(3, 2, 8192), (0, 3, 128)], s(sT0), 'v1')
    A('v_mov_b32 v2, %d' % OOB)
    A('v_cmp_gt_u32 vcc, %d, v13' % MB_STEP)
    A('v_cndmask_b32 v13, v2, v13, vcc')
    A('s_lshl_b32 %s, %s, 10' % (s(sT0), s(sHW)))
    lexpr(A, 'v14', L, [(0, 6, 16)], s(sT0), 'v1')
    A('v_add_u32 v15, 8192, v14')
    A('s_cmp_lt_u32 %s, 2' % s(sHW))
    A('s_cselect_b32 %s, 16384, 0' % s(sT0))
    A('v_add_u32 v9, %s, v14' % s(sT0))
    for i in range(4): A('v_mov_b32 %s, -1' % v(4 + i))
    A('s_lshl_b32 %s, %s, 2' % (s(sHWR), s(sHW)))
    A('s_add_u32 %s, %s, %d' % (s(sHWR), s(sHWR), HINT_M + 14 * 4))
    A('v_lshlrev_b32 v1, 8, %s' % L)
    A('v_mov_b32 v2, %d' % OOB)
    A('v_cmp_gt_u32 vcc, %d, %s' % (PRM['nrep'], L))
    A('v_cndmask_b32 v8, v2, v1, vcc')
    A('s_mov_b32 %s, 0' % s(sJ))
    A('s_cmp_eq_u32 %s, 7' % s(sHW))
    A('s_cselect_b32 %s, %d, 1000' % (s(sUOK), 1000 if G.dev_nowait else 0))
    A('s_mov_b32 %s, 0' % s(sXS))
    A('s_mov_b32 %s, %d' % (s(sXD), XF_OFF + LT * 32768))
    A('s_mov_b32 %s, %d' % (s(sSI), MB_OFF))
    def prepare(touch):
        A('s_sub_u32 %s, %s, 1' % (s(sT0), s(sJ)))
        A('s_max_i32 %s, %s, 0' % (s(sT0), s(sT0)))
        A('s_min_u32 %s, %s, %s' % (s(sT0), s(sT0), s(sUOK)))
        A('v_mov_b32 v3, %s' % s(sT0))
        A('buffer_store_dword v3, v8, %s, %s offen' % (s(S_WS, 4), s(sHWR)))
        if touch:
            A('s_add_u32 %s, %s, %d' % (s(sT0), s(sSLOT), LT * MB_STEP))
            A('buffer_load_dword v21, v13, %s, %s offen sc1' % (s(S_WS, 4), s(sT0)))
            A('buffer_load_dword v20, v12, %s, %s offen sc1' % (s(S_WS, 4), s(sXD)))
            A('s_add_u32 %s, %s, 32768' % (s(sXD), s(sXD)))
        e = A.newlabel('L_hsk')
        A('s_cmp_ge_u32 %s, 64' % s(sJ))
        A('s_cbranch_scc1 %s' % e)
        for a_ in ('v14', 'v15', 'v9'): A('buffer_store_dwordx4 v[4:7], %s, %s, %s offen' % (a_, s(S_WS, 4), s(sSI)))
        A('s_add_u32 %s, %s, 1' % (s(sJ), s(sJ)))
        A('s_add_u32 %s, %s, %d' % (s(sSI), s(sSI), MB_STEP))
        A.label(e)
    A.label('L_helper_pre')
    A('s_waitcnt vmcnt(0)')
    prepare(False)
    A('s_cmp_le_u32 %s, %d' % (s(sJ), LA + 1))
    A('s_cbranch_scc1 L_helper_pre')
    if not G.dev_nowait: wait_init(A, D_XG)
    dbg_arrive(A, D_GRP)
    group_wait(A)
    A('s_mov_b32 %s, 0' % s(sSTEP))
    A('s_mov_b32 %s, %d' % (s(sSLOT), MB_OFF))
    A('s_mov_b32 %s, %d' % (s(sHM), HM_OFF))
    A('s_cmp_eq_u32 %s, 7' % s(sHW))
    A('s_cbranch_scc1 L_helper7')
    A.label('L_helper_warm')
    for i in range(LT):
        A('s_mov_b32 %s, %d' % (s(sT0), XF_OFF + i * 32768))
        A('buffer_load_dword v20, v12, %s, %s offen sc1' % (s(S_WS, 4), s(sT0)))
        A('s_mov_b32 %s, %d' % (s(sT0), MB_OFF + i * MB_STEP))
        A('buffer_load_dword v21, v13, %s, %s offen sc1' % (s(S_WS, 4), s(sT0)))
    A('buffer_load_dwordx4 v[16:19], v10, %s, %s offen sc1' % (s(S_WS, 4), s(sSLOT)))
    A('s_waitcnt vmcnt(0)')
    check4(A, 16, 'L_helper_warm', ['s_sleep 8'])
    diag(A, 6)
    A.label('L_helper_loop')
    l = A.newlabel('L_hp'); A.label(l)
    A('buffer_load_dwordx4 v[16:19], v10, %s, %s offen sc1' % (s(S_WS, 4), s(sSLOT)))
    A('s_waitcnt vmcnt(0)')
    check4(A, 16, l, ['s_sleep 1'])
    A('buffer_store_dwordx4 v[16:19], v11, %s, %s offen sc1' % (s(S_WS, 4), s(sHM)))
    prepare(True)
    if G.diag:
        for st_, ix in ((1, 7), (2, 8), (8, 9), (63, 10)):
            lb = A.newlabel('L_dg')
            A('s_cmp_lg_u32 %s, %d' % (s(sSTEP), st_)); A('s_cbranch_scc1 %s' % lb); diag(A, ix); A.label(lb)
    A('s_add_u32 %s, %s, %d' % (s(sSLOT), s(sSLOT), MB_STEP))
    A('s_add_u32 %s, %s, %d' % (s(sHM), s(sHM), HM_STEP))
    A('s_add_u32 %s, %s, 1' % (s(sSTEP), s(sSTEP)))
    A('s_cmp_lt_u32 %s, 64' % s(sSTEP))
    A('s_cbranch_scc1 L_helper_loop')
    A('s_waitcnt vmcnt(0)')
    event(A, 8)
    A('s_branch L_exit')
    A.label('L_helper7')
    A('s_cmp_ge_u32 %s, 64' % s(sUOK))
    A('s_cbranch_scc1 L_h7_b')
    A('s_mov_b32 %s, 0' % s(sT4))
    A('s_branch L_hucheck')
    A.label('L_hucheck_done')
    A('s_sub_u32 %s, %s, 1' % (s(sT0), s(sJ)))
    A('s_min_u32 %s, %s, %s' % (s(sT0), s(sT0), s(sUOK)))
    A('v_mov_b32 v3, %s' % s(sT0))
    A('buffer_store_dword v3, v8, %s, %s offen' % (s(S_WS, 4), s(sHWR)))
    A.label('L_h7_b')
    A('buffer_load_dwordx4 v[16:19], v15, %s, %s offen sc1' % (s(S_WS, 4), s(sSLOT)))
    A('s_waitcnt vmcnt(0)')
    check4(A, 16, 'L_helper7', ['s_sleep 4'])
    prepare(True)
    A('s_add_u32 %s, %s, %d' % (s(sSLOT), s(sSLOT), MB_STEP))
    A('s_add_u32 %s, %s, 1' % (s(sSTEP), s(sSTEP)))
    A('s_cmp_lt_u32 %s, 63' % s(sSTEP))
    A('s_cbranch_scc1 L_helper7')
    A('s_branch L_exit')
    ucheck_code(A, 'L_hucheck', 'L_hucheck_done', 24, 22)
    emit_stubs(A)
```

```python
from common import *

sSLOT, sSLOTP, sSLOTN, sUOK = sMEMRD, sPWR, sMEMWR, sHZ
vIDX = 60
vK = 61
vT = 68
vLANE = 255
MF = 32
SACC = 4
AF0 = 0
vYW, vTRL, vB, vX, vPST, vPSM, HV, HA = 70, 71, 72, 73, 74, 75, 71, 77
vBIG = 200
vSW = 78
SD = 80
XB = 92
AF1 = 116
L_XS = 32768
vL16, vVW, vVR, vMST, vLW, VHV, VHA, vHM_, vHP_, vHIST = 70, 71, 72, 73, 74, 75, 76, 77, 78, 79
VR = 80
vUS = 69
ZB = 84
UB = 92
LB = 124
L_VB = 114688
L_WL = 32768

class Role:
    pass
SC = Role(); SC.nt = 7
VA = Role(); VA.nt = 8; VA.accf = lambda r: 4 * r
def sc_w(r, k):
    t = r * 7 + k
    return (256 + t * 8) if t < 32 else (120 + (t - 32) * 8)
SC6 = Role(); SC6.nt = 6; SC6.w = sc_w; SC6.accf = lambda r: SACC + 4 * r; SC6.land = {}
SC8 = Role(); SC8.nt = 8; SC8.accf = lambda r: (SACC + 4 * r) if r < 7 else 0
SC8.land = {(7, 5): MF, (7, 6): SACC}
SC8.w = lambda r, k: sc_w(r, k) if r < 7 else (80 + 8 * k if k < 5 else None)
XS2 = 0x10000
L_SWL = 65536
VLDS = [(r, 6) for r in range(8)] + [(2, 4), (5, 4)]
VREG = [(r, k) for r in range(8) for k in range(7) if (r, k) not in VLDS]
def va_w(r, k):
    if (r, k) in VLDS: return None
    t = VREG.index((r, k))
    return (256 + t * 8) if t < 32 else (144 + (t - 32) * 8)
VA.w = va_w

def smf(d, aa, bb, k32=False):
    return 'v_smfmac_f32_16x16x%d_bf16 %s, %s, %s, %s' % (32 if k32 else 64, d, aa, bb, v(vIDX))

sTMB = 28
sSTB = 92
def stamp(A, idx):
    if not G.stamps: return
    A('s_memtime %s' % s(sTMB + 2 * idx, 2))
    if idx == 0 and G.stamps == 1: A('s_memrealtime %s' % s(sTMB + 2 * 10, 2))
def stamp_acc(A, order):
    A('s_waitcnt lgkmcnt(0)')
    l = A.newlabel('L_sa')
    A('s_cmp_lt_u32 %s, 10' % s(sSTEP))
    A('s_cbranch_scc1 %s' % l)
    prev = 3
    for i, k in enumerate(order):
        A('s_sub_u32 s2, %s, %s' % (s(sTMB + 2 * k), s(prev)))
        A('s_add_u32 %s, %s, s2' % (s(50 + i), s(50 + i)))
        prev = sTMB + 2 * k
    A.label(l)
    A('s_mov_b32 s3, %s' % s(sTMB + 2 * order[-1]))
def stamp_acc_out(A):
    if G.stamps != 2: return
    A('v_mbcnt_lo_u32_b32 v2, -1, 0')
    A('v_lshlrev_b32 v2, 2, v2')
    for i in range(10): A('v_writelane_b32 v1, %s, %d' % (s(50 + i), i))
    A('s_mov_b64 exec, 0xffff')
    A('buffer_store_dword v1, v2, %s, %s offen' % (s(S_WS, 4), s(sSTB)))
    A('s_mov_b64 exec, -1')
def stamp_flush(A, n, order=None):
    if not G.stamps: return
    if G.stamps == 2:
        stamp_acc(A, order); return
    A('s_waitcnt lgkmcnt(0)')
    A('s_lshl_b32 %s, %s, 6' % (s(sT5), s(sSTEP)))
    A('s_add_u32 %s, %s, %s' % (s(sT5), s(sT5), s(sSTB)))
    A('v_mbcnt_lo_u32_b32 %s, -1, 0' % v(vT + 1))
    A('v_lshlrev_b32 %s, 2, %s' % (v(vT + 1), v(vT + 1)))
    for i in range(n):
        A('v_writelane_b32 %s, %s, %d' % (v(vT), s(sTMB + 2 * i), i))
    A('v_writelane_b32 %s, %s, 11' % (v(vT), s(sSPIN)))
    A('s_mov_b64 exec, 0xffff')
    A('buffer_store_dword %s, %s, %s, %s offen' % (v(vT), v(vT + 1), s(S_WS, 4), s(sT5)))
    A('s_mov_b64 exec, -1')
def stamp_setup(A):
    if not G.stamps: return
    A('s_lshl_b32 %s, %s, 2' % (s(sT0), s(sROLE)))
    A('s_add_u32 %s, %s, %s' % (s(sT0), s(sT0), s(sWAVE)))
    A('s_lshl_b32 %s, %s, 12' % (s(sT0), s(sT0)))
    A('s_add_u32 %s, %s, %d' % (s(sSTB), s(sT0), STAMPS))
    for i in range(10): A('s_mov_b32 %s, 0' % s(50 + i))

def hint_wait(A, soff, sval, pw, delay, nent, areg=None, solo=False, primed=False):
    l = A.newlabel('L_hint'); e = A.newlabel('L_hint_done')
    D = PRM['hd']
    if not solo:
        A('s_cmp_lg_u32 %s, %d' % (s(sWAVE), pw))
        A('s_cbranch_scc1 %s' % e)
    if areg is None:
        areg = vT + 1
        A('v_mbcnt_lo_u32_b32 %s, -1, 0' % v(vT + 1))
        A('v_mbcnt_hi_u32_b32 %s, -1, %s' % (v(vT + 1), v(vT + 1)))
        A('v_min_u32 %s, %d, %s' % (v(vT + 1), nent - 1, v(vT + 1)))
        A('v_lshlrev_b32 %s, 2, %s' % (v(vT + 1), v(vT + 1)))
    ld = 'buffer_load_dword %s, %s, %s, %s offen sc1' % (v(vT), v(areg), s(S_WS, 4), s(soff))
    if PRM['hv0']: A('s_waitcnt vmcnt(0)')
    for i in range(0 if primed else D - 1):
        A(ld); A('s_nop %d' % PRM['hn'])
    A.label(l)
    A(ld)
    A('s_waitcnt vmcnt(%d)' % (D - 1))
    A('v_cmp_gt_u32 vcc, %s, %s' % (s(sval), v(vT)))
    spin_check(A, l)
    for i in range(delay): A('s_nop 3')
    if solo: return
    A.label(e)
    if primed: A('s_waitcnt lgkmcnt(0)')
    A('s_barrier')

def hint_send(A, t0, t1):
    A('buffer_store_dword %s, %s, %s, %s offen' % (v(t0), v(t1), s(S_WS, 4), s(sHWR)))
def hint_setup(A, t0, t1, allw):
    nrep = PRM['nrep']
    A('v_lshlrev_b32 v1, 8, %s' % v(vLANE))
    A('v_mov_b32 v2, %d' % OOB)
    A('s_cmp_eq_u32 %s, %d' % (s(sWAVE), 0 if allw else 3))
    A('s_cselect_b32 %s, %d, 0' % (s(sT0), nrep))
    A('v_cmp_gt_u32 vcc, %s, %s' % (s(sT0), v(vLANE)))
    A('v_cndmask_b32 %s, v2, v1, vcc' % v(t1))
    A('v_mov_b32 %s, 0' % v(t0))
    hint_send(A, t0, t1)

def dbg_arrive(A, idx):
    A('s_waitcnt vmcnt(0) lgkmcnt(0)')
    A('s_barrier')
    l = A.newlabel('L_gb')
    A('s_cmp_lg_u32 %s, 0' % s(sWAVE))
    A('s_cbranch_scc1 %s' % l)
    A('v_mov_b32 v1, %d' % (idx * 4))
    A('v_mov_b32 v2, 1')
    A('s_mov_b64 exec, 1')
    A('buffer_atomic_add v2, v1, %s, 0 offen' % s(S_DBG, 4))
    A('s_mov_b64 exec, -1')
    A.label(l)

def group_wait(A):
    l = A.newlabel('L_gw')
    A('v_mov_b32 %s, %d' % (v(vT), D_GRP * 4))
    A.label(l)
    A('buffer_load_dword %s, %s, %s, 0 offen sc1' % (v(vT + 1), v(vT), s(S_DBG, 4)))
    A('s_waitcnt vmcnt(0)')
    A('v_cmp_gt_u32 vcc, 32, %s' % v(vT + 1))
    spin_check(A, l, ['s_sleep 1'])

def wait_init(A, idx=D_INIT, lane=None):
    l = A.newlabel('L_wi')
    lexpr(A, 'v2', lane or v(vLANE), [(0, 2, 64)], idx * 4, 'v3')
    A.label(l)
    A('buffer_load_dword v3, v2, %s, 0 offen sc1' % s(S_DBG, 4))
    A('s_waitcnt vmcnt(0)')
    A('v_cmp_gt_u32 vcc, 56, v3')
    spin_check(A, l, ['s_sleep 16'])

def check4(A, r, lbl, pre):
    t0 = v(vT)
    A('v_max3_u32 %s, %s, %s, %s' % (t0, v(r), v(r + 1), v(r + 2)))
    A('v_max_u32 %s, %s, %s' % (t0, t0, v(r + 3)))
    A('v_cmp_eq_u32 vcc, -1, %s' % t0)
    spin_check(A, lbl, pre)

sROT = 87
def rot(A, k):
    A('s_add_u32 %s, %s, %d' % (s(sT1), s(sT0), k))
    A('s_sub_u32 %s, %s, 7' % (s(sT2), s(sT1)))
    A('s_cmp_ge_u32 %s, 7' % s(sT1))
    A('s_cselect_b32 %s, %s, %s' % (s(sT1), s(sT2), s(sT1)))

def rec_start(A):
    A('v_mov_b32 %s, v0' % v(vLANE))
    A('s_mov_b32 %s, %d' % (s(sSPIN), SPIN_MAX))
    if PRM['xw']:
        A('s_lshl_b32 %s, %s, 2' % (s(sT0), s(sROLE)))
        A('s_add_u32 %s, %s, %s' % (s(sT0), s(sT0), s(sWAVE)))
        A('s_mul_i32 %s, %s, 14336' % (s(sT0), s(sT0)))
        A('s_add_u32 %s, %s, 6144' % (s(sT1), s(sT0)))
        A('v_lshlrev_b32 v1, 7, v0')
        for j in range(2): A('buffer_load_dword v250, v1, %s, %s offen nt' % (s(S_BX, 4), s(sT0 + j)))
    A('s_and_b32 %s, %s, %d' % (s(sT0), s(sROLE), PRM['nrep'] - 1))
    A('s_lshl_b32 %s, %s, 8' % (s(sHMRD), s(sT0)))
    A('s_add_u32 %s, %s, %d' % (s(sHPRD), s(sHMRD), HINT_P))
    A('s_add_u32 %s, %s, %d' % (s(sHMRD), s(sHMRD), HINT_M))
    A('v_and_b32 v1, 2, v0')
    A('v_cmp_eq_u32 vcc, 0, v1')
    A('v_mov_b32 v2, 0xeeeeeeee')
    A('v_mov_b32 v3, 0x44444444')
    A('v_cndmask_b32 %s, v2, v3, vcc' % v(vIDX))
    A('v_lshlrev_b32 v1, 4, v0')
    A('s_sub_u32 %s, %s, 16' % (s(sT1), s(sROLE)))
    A('s_lshr_b32 %s, %s, 1' % (s(sT1), s(sT1)))
    A('s_cmp_lt_u32 %s, 16' % s(sROLE))
    A('s_cselect_b32 %s, 0, %s' % (s(sT1), s(sT1)))
    A('s_lshl_b32 %s, %s, 1' % (s(sT0), s(sWAVE)))
    A('s_add_u32 %s, %s, %s' % (s(sT0), s(sT0), s(sT1)))
    rot(A, 0)
    A('s_mov_b32 %s, %s' % (s(sROT), s(sT1)))
    A('s_mov_b32 %s, %s' % (s(sT0), s(sT1)))
    for k in range(7):
        rot(A, k)
        A('s_lshl_b32 %s, %s, 10' % (s(sT1), s(sT1)))
        A('v_add_u32 %s, %s, v1' % (v(vK + k), s(sT1)))
    stamp_setup(A)

def load_weights(A, R, cstride):
    tag = 'S' if R is SC else 'V'
    A('s_mul_i32 %s, %s, %d' % (s(sT0), s(sWAVE), R.nt * 1024))
    if not G.dev_nowait:
        A('v_mov_b32 %s, v8' % v(vT))
        wait_init(A)
        A('v_mov_b32 v3, %s' % v(vT))
    lexpr(A, 'v1', v(vLANE), [(0, 6, 16)], s(sT0), 'v2')
    A('v_add_u32 v2, 4096, v1')
    if R is SC: A('v_subrev_u32 v0, 8192, v1')
    SB_ = 28
    A('s_mov_b32 %s, %s' % (s(sT0), s(sROT)))
    for k in range(7):
        rot(A, k)
        A('s_mul_i32 %s, %s, %d' % (s(sT1), s(sT1), 2 * cstride))
        A('s_add_u32 %s, %s, %s' % (s(SB_ + 2 * k), s(sT1), s(sT3)))
        A('s_add_u32 %s, %s, %d' % (s(SB_ + 2 * k + 1), s(SB_ + 2 * k), cstride))
    A('s_mov_b32 %s, %d' % (s(sT0), FLG_W1))
    pl = 'buffer_load_dword %s, v3, %s, %s offen sc1' % (v(vT), s(S_WS, 4), s(sT0))
    for w in range(1, 4):
        A('s_cmp_eq_u32 %s, %d' % (s(sWAVE), w))
        A('s_cbranch_scc1 L_lw%s%d' % (tag, w))
    for w in range(4):
        A.label('L_lw%s%d' % (tag, w))
        st = [[], [], [], []]
        RW = R if R is VA else (SC6 if w < 2 else SC8)
        for k in range(7):
            for hi in range(2):
                for r in range(RW.nt):
                    q = ((7 * w + r if r < 7 else 7 * w - 8) >> 2) if R is SC else 0
                    c = (2 * ((k + 2 * w) % 7) + hi - 2 * q) % 14
                    st[c >> 2].append((r, k, hi))
        n = 0; since = None
        for i in range(4):
            if not G.dev_nowait:
                l = A.newlabel('L_lwp')
                if since is None: A(pl); since = 0
                A('s_waitcnt vmcnt(%d)' % since)
                A.label(l)
                A('v_cmp_gt_u32 vcc, %d, %s' % (i + 1, v(vT)))
                spin_check(A, l, ['s_sleep %d' % PRM['lws'], pl, 's_waitcnt vmcnt(0)'])
                if i == 0: event(A, 4, 'v59', v(vT + 1))
            for j, (r, k, hi) in enumerate(st[i]):
                if j == len(st[i]) // 2 and i < 3 and not G.dev_nowait: A(pl); since = 0
                wv = RW.w(r, k)
                if wv is None: dst = v((ldstmp(VLDS.index((r, k))) if R is VA else 4 + 8 * (k - 5)) + 4 * hi, 4)
                else: dst = u(wv + 4 * hi, 4)
                if R is SC and r == 7: ar, off = 'v0', 0
                else: ar, off = ('v1' if r < 4 else 'v2'), (r & 3) * 1024
                A('buffer_load_dwordx4 %s, %s, %s, %s offen offset:%d sc1' % (dst, ar, s(S_WS, 4), s(SB_ + 2 * k + hi), off))
                if since is not None: since += 1
                n += 1
                if G.dev_nowait and n % 16 == 0: A('s_waitcnt vmcnt(40)')
        if w < 3: A('s_branch L_lw%sE' % tag)
    A.label('L_lw%sE' % tag)
    A('s_waitcnt vmcnt(0)')
    if R is SC:
        for i in range(4): A('ds_write_b128 %s, %s offset:%d' % (v(vSW), v(4 + 4 * i, 4), i * 1024))
        A('s_waitcnt lgkmcnt(0)')
    if R is VA:
        for i in range(10):
            for hi in range(2):
                A('ds_write_b128 %s, %s offset:%d' % (v(vLW), v(ldstmp(i) + 4 * hi, 4), (2 * i + hi) * 1024))
            if i % 3 == 2: A('s_waitcnt lgkmcnt(4)')
        A('s_waitcnt lgkmcnt(0)')
def ldstmp(i): return (4 + 8 * i) if i < 7 else (UB + 8 * (i - 7))

def zero_regs(b, n): return ['v_mov_b32 %s, 0' % v(b + i) for i in range(n)]

def lds_younger(A, dst):
    n = 0
    for x in reversed(A.ins):
        if x.kind == 'label': return 0
        if x.kind == 'ds':
            if x.text.startswith('ds_read_b128 ' + dst): return n
            n += 1
    return 0

def main_phase(A, R, pw, delay, post, vm, every, extra, epi, pre_ds=0):
    NT = R.nt
    hint_wait(A, sHMRD, sSTEP1, pw, delay, 22, vHM_ if R is VA else None)
    stamp(A, 1)
    ld = ['buffer_load_dwordx4 %s, %s, %s, %s offen sc1' % (v(MF + 4 * k, 4), v(vK + k), s(S_WS, 4), s(sSLOT)) for k in range(2)]
    A(ld[0])
    if PRM['f0b']: A('s_barrier')
    A(ld[1])
    for x in post: A(x)
    nst = len([x for x in post if x.startswith('buffer_')])
    A('s_waitcnt vmcnt(%d)' % (nst + 1))
    l0 = A.newlabel('L_pm0'); A.label(l0)
    check4(A, MF, l0, [ld[0], 's_waitcnt vmcnt(0)'])
    stamp(A, 2)
    A('ds_write_b128 %s, %s offset:%d' % (v(vK), v(MF, 4), L_MEM))
    vm = list(vm); cnt = [0]
    def vmtick():
        cnt[0] += 1
        if vm and cnt[0] % every == 0:
            for x in vm.pop(0): A(x)
    k1, k2 = PRM['k1'], min(PRM['k2'], 2 * NT - 3)
    if R is SC8: k1, k2 = PRM['k1l'], PRM['k2l']
    kseq = [(r, 0) for r in range(NT)] + [(r, 1) for r in range(NT)]
    rd = [2, 3, 4, 5, 6]
    for i, (r, k) in enumerate(kseq):
        A(smf(v(R.accf(r), 4), v(MF + 4 * k, 4), u(R.w(r, k), 8)))
        if i == k1 - 1:
            A('s_waitcnt vmcnt(%d)' % nst)
            l1 = A.newlabel('L_pm1'); A.label(l1)
            check4(A, MF + 4, l1, [ld[1], 's_waitcnt vmcnt(0)'])
            A('ds_write_b128 %s, %s offset:%d' % (v(vK + 1), v(MF + 4, 4), L_MEM))
        elif i >= k1 and i < k2 - 1: vmtick()
        if i == k2 - 1:
            A('s_waitcnt lgkmcnt(0)')
            A('s_barrier')
            stamp(A, 3)
        if i >= k2 - 1:
            for _ in range(2 if len(kseq) - i > 2 else 5):
                if rd:
                    kk = rd.pop(0); A('ds_read_b128 %s, %s offset:%d' % (v(MF + 4 * kk, 4), v(vK + kk), L_MEM))
    assert not rd
    q = []
    i = 0
    for r in range(NT):
        for k in range(2, 7):
            if r == 0: A('s_waitcnt lgkmcnt(%d)' % (6 - k))
            w = R.w(r, k)
            if w is None and R is VA:
                iv = VORD.index((r, k))
                w = LB + 8 * (iv & 1)
                A('s_waitcnt lgkmcnt(%d)' % lds_younger(A, 'v[%d:%d]' % (w + 4, w + 7)))
            elif w is None: w = R.land[(r, k)]
            A(smf(v(R.accf(r), 4), v(MF + 4 * k, 4), u(w, 8)))
            if k == 3 and r > 0: q += epi(r - 1)
            if q: A(q.pop(0))
            for x in extra.get(i, []): A(x)
            vmtick()
            i += 1
    stamp(A, 4)
    for x in q: A(x)
    assert not vm, len(vm)
VORD = sorted(VLDS)

def sc_epi(r, up=0):
    c = (SACC + 4 * r) if r < 7 else 0
    off = (up + r * 256) if r < 7 else 6 * 256
    return ['v_add_f32 %s, %s, %s' % (v(c), v(c), v(c + 2)),
            'v_add_f32 %s, %s, %s' % (v(c + 1), v(c + 1), v(c + 3)),
            'v_cvt_pk_bf16_f32 %s, %s, %s' % (v(c), v(c), v(c + 1)),
            'ds_write_b32 %s, %s offset:%d' % (v(vYW), v(c), off)]

sXL = 86
sXB = 98
vXG = 76
def xpieces(A, sbase, n, fill=()):
    fill = list(fill)
    for k in range(n):
        if k % 4 == 0:
            A('s_add_u32 %s, %s, %d' % (s(sT1), s(sbase), k * 1024))
            A('s_add_u32 m0, %s, %s' % (s(sT1), s(sXB)))
            A('s_add_u32 %s, %s, %s' % (s(sXPF), s(sT1), s(sXOFF)))
        A('buffer_load_dwordx4 %s, %s, %s offen offset:%d sc1 lds' % (v(vXG), s(S_WS, 4), s(sXPF), (k & 3) * 1024))
        for x in fill[:6]: A(x)
        fill = fill[6:]
    for x in fill: A(x)

def score_role(A):
    A.label('L_score')
    L = v(vLANE)
    A('s_and_b32 %s, %s, 1' % (s(sT0), s(sWAVE)))
    A('s_mul_i32 %s, %s, 1792' % (s(sT0), s(sT0)))
    A('s_add_u32 %s, %s, %d' % (s(sT0), s(sT0), L_YT))
    lexpr(A, v(vYW), L, [(2, 2, 64), (0, 1, 32), (4, 2, 8), (1, 1, 4)], s(sT0), 'v1')
    lexpr(A, v(vTRL), L, [(4, 2, 1792), (0, 4, 8)], L_YT, 'v1')
    lexpr(A, v(vB), L, [(5, 1, 1792), (4, 1, 32), (0, 2, 64), (3, 1, 16)], L_MEM, 'v1')
    lexpr(A, v(vX), L, [(0, 6, 16)], 0, 'v1')
    A('s_lshl_b32 %s, %s, 12' % (s(sT0), s(sWAVE)))
    A('s_add_u32 %s, %s, %d' % (s(sT0), s(sT0), L_SWL))
    A('v_add_u32 %s, %s, %s' % (v(vSW), s(sT0), v(vX)))
    A('s_lshl_b32 %s, %s, 9' % (s(sT0), s(sROLE)))
    FL = PRM['fl']
    gterm = [(5, 1, 64), (4, 1, 16)] if FL else [(4, 2, 64)]
    A('s_lshl_b32 %s, %s, %d' % (s(sT2), s(sWAVE), 7 if FL else 4))
    A('s_add_u32 %s, %s, %s' % (s(sT0), s(sT0), s(sT2)))
    lexpr(A, v(vPST), L, [(3, 1, 256), (2, 1, 32), (0, 2, 4)] + gterm, s(sT0), 'v1')
    A('s_lshr_b32 %s, %s, 2' % (s(sT0), s(sROLE)))
    A('s_lshl_b32 %s, %s, 9' % (s(sT0), s(sT0)))
    A('s_add_u32 %s, %s, %s' % (s(sT0), s(sT0), s(sT2)))
    A('s_and_b32 %s, %s, 1' % (s(sT1), s(sROLE)))
    A('s_lshl_b32 %s, %s, 5' % (s(sT1), s(sT1)))
    A('s_add_u32 %s, %s, %s' % (s(sT0), s(sT0), s(sT1)))
    A('s_and_b32 %s, %s, 2' % (s(sT1), s(sROLE)))
    A('s_lshl_b32 %s, %s, 1' % (s(sT1), s(sT1)))
    A('s_add_u32 %s, %s, %s' % (s(sT0), s(sT0), s(sT1)))
    A('s_add_u32 %s, %s, 8192' % (s(sT0), s(sT0)))
    lexpr(A, 'v3', L, [(1, 1, 256), (0, 1, 8)] + gterm, s(sT0), 'v1')
    A('v_and_b32 v4, 12, %s' % L)
    A('v_mov_b32 v2, %d' % OOB)
    A('v_cmp_eq_u32 vcc, 0, v4')
    A('v_cndmask_b32 %s, v2, v3, vcc' % v(vPSM))
    A('s_lshl_b32 %s, %s, 2' % (s(sHWR), s(sROLE)))
    A('s_add_u32 %s, %s, %d' % (s(sHWR), s(sHWR), HINT_P))
    hint_setup(A, HV, HA, False)
    A('s_nop 2')
    lexpr(A, v(vTRL), L, [(4, 2, 1792), (0, 4, 8)], L_YT, 'v1')
    dbg_arrive(A, D_GRP)
    A('s_mul_i32 %s, %s, 7' % (s(sT1), s(sWAVE)))
    A('v_lshrrev_b32 v8, 2, %s' % L)
    A('v_cmp_lt_u32 vcc, 2, v8')
    A('v_mul_u32_u24 v8, 3, v8')
    A('v_add_u32 v8, %s, v8' % s(sT1))
    A('s_and_b32 %s, %s, 1' % (s(sT1), s(sWAVE)))
    A('s_mul_i32 %s, %s, 7' % (s(sT1), s(sT1)))
    A('s_add_u32 %s, %s, 6' % (s(sT1), s(sT1)))
    A('v_mov_b32 v9, %s' % s(sT1))
    A('v_cndmask_b32 v8, v8, v9, vcc')
    A('v_lshrrev_b32 v8, 2, v8')
    A('s_mul_i32 %s, %s, 7' % (s(sT0), s(sROLE)))
    A('v_add_u32 v8, %s, v8' % s(sT0))
    A('v_lshlrev_b32 v8, 6, v8')
    A('v_and_b32 v9, 3, %s' % L)
    A('v_lshl_add_u32 v8, v9, 2, v8')
    event(A, 3)
    A('s_mul_i32 %s, %s, %d' % (s(sT3), s(sROLE), WCU))
    load_weights(A, SC, 28672)
    event(A, 5)
    group_wait(A)
    event(A, 6, v(vT), v(vT + 1))
    event_spin(A, 13, v(vT), v(vT + 1))
    A('s_mov_b32 %s, 0' % s(sSTEP))
    A('s_mov_b32 %s, %d' % (s(sSLOT), MB_OFF))
    NE = PRM['xe']; NL = -(-(28 - 2 * NE) // 3)
    sXE = 97
    A('v_mov_b32 %s, %s' % (v(vXG), v(vX)))
    A('s_mov_b32 %s, %d' % (s(sXOFF), XF_OFF))
    A('s_mov_b32 %s, %d' % (s(sXB), L_XS))
    A('s_mul_i32 %s, %s, %d' % (s(sXL), s(sWAVE), NL * 1024))
    A('s_add_u32 %s, %s, %d' % (s(sXL), s(sXL), 2 * NE * 1024))
    A('s_min_u32 %s, %s, %d' % (s(sXL), s(sXL), (28 - NL) * 1024))
    A('s_and_b32 %s, %s, 1' % (s(sXE), s(sWAVE)))
    A('s_mul_i32 %s, %s, %d' % (s(sXE), s(sXE), NE * 1024))
    xpieces(A, sXE, NE)
    A('v_xor_b32 %s, 0x%x, %s' % (v(vX), XS2, v(vX)))
    AC = SACC
    def top(z, lw):
        if lw:
            A('s_cmp_eq_u32 %s, 3' % s(sWAVE))
            A('s_cbranch_scc1 L_sc_nox')
            xpieces(A, sXL, NL)
            A.label('L_sc_nox')
            for x in z: A(x)
        else: xpieces(A, sXL, NL, z)
        A('s_add_u32 %s, %s, 32768' % (s(sXOFF), s(sXOFF)))
        A('s_xor_b32 %s, %s, 0x%x' % (s(sXB), s(sXB), XS2))
        A('s_add_u32 %s, %s, %d' % (s(sSLOTP), s(sSLOT), MB_PO))
        A('s_add_u32 %s, %s, 1' % (s(sSTEP1), s(sSTEP)))
        if lw: A('v_mov_b32 %s, %s' % (v(HV), s(sSTEP1)))
        else: A('v_xor_b32 %s, 0x%x, %s' % (v(vX), XS2, v(vX)))
        A('s_waitcnt vmcnt(0)')
        stamp(A, 0)
    def bottom(lp, order):
        stamp_flush(A, 11, order)
        A('s_barrier')
        A('s_add_u32 %s, %s, %d' % (s(sSLOT), s(sSLOT), MB_STEP))
        A('s_add_u32 %s, %s, 1' % (s(sSTEP), s(sSTEP)))
        A('s_cmp_lt_u32 %s, 63' % s(sSTEP))
        A('s_cbranch_scc1 %s' % lp)
    A('s_cmp_ge_u32 %s, 2' % s(sWAVE))
    A('s_cbranch_scc1 L_score_loop8')
    A('v_mov_b32 %s, 0x5f800000' % v(vBIG))
    A.label('L_score_loop')
    top(zero_regs(AC, 24) + zero_regs(SD, 12), False)
    units = [(c, T) for c in range(7) for T in range(3)]
    XS_ = [XB, XB + 8, XB + 16, 208, 216, 224, 232, 240, 248]
    slot = {}; pre = []
    xs = list(XS_)
    for i, (c, T) in enumerate(units):
        if T < 2 and xs: slot[i] = xs.pop(0); pre.append(i)
    early = {2: MF, 5: AC, 8: AC + 8}
    slot.update(early)
    late_free = [MF + 8, MF + 16]
    AR = [AF0, AF1, AC + 24, 204, AC + 16, AC + 20, MF + 24]
    def bread(i):
        c, T = units[i]
        if T == 2: return ['ds_read_b128 %s, %s offset:%d' % (v(slot[i] + 4 * hi, 4), v(vB), hi * 3584 + c * 256) for hi in range(2)]
        return ['ds_read_b128 %s, %s offset:%d' % (v(slot[i] + 4 * hi, 4), v(vX), L_XS + c * 4096 + T * 2048 + hi * 1024) for hi in range(2)]
    def aread(c): return ['ds_read_b64_tr_b16 %s, %s offset:%d' % (v(AR[c] + 2 * t, 2), v(vTRL), c * 256 + t * 128) for t in range(2)]
    def ss(i):
        c, T = units[i]
        return smf(v(SD + 4 * T, 4), v(AR[c], 4), v(slot[i], 8))
    extra = {}
    for i, pp in ((2, (5, 10)), (5, (15, 20)), (8, (20, 25))):
        for x, ppos in zip(bread(i), pp): extra.setdefault(ppos, []).append(x)
    extra.setdefault(28, []).extend(['s_waitcnt lgkmcnt(0)', 's_barrier'] + aread(0) + aread(1))
    post = []
    for n_, i in enumerate(pre):
        post += bread(i)
        if n_ in (4, 7): post.append('s_waitcnt lgkmcnt(4)')
    main_phase(A, SC6, 3, PRM['sdel'], post, [], 1, extra, sc_epi)
    e5 = sc_epi(5)
    ds = ['A0', 'A0', 'A1', 'A1', 'w4']
    def D(x, tag):
        A(x); ds.append(tag)
    def wait_for(tags):
        last = max([i for i, tg in enumerate(ds) if tg in tags], default=-1)
        if last >= 0 and last > wait_for.done:
            A('s_waitcnt lgkmcnt(%d)' % min(14, len(ds) - 1 - last)); wait_for.done = last
    wait_for.done = -1
    for x in aread(2): D(x, 'A2')
    for x in aread(3): D(x, 'A3')
    todo = [i for i in range(21) if i not in slot]
    free = list(late_free)
    for i in range(21):
        c, T = units[i]
        wait_for({'A%d' % c, 'B%d' % i})
        A(ss(i))
        if i == 1:
            A(e5[0]); A(e5[1])
        if i == 2:
            A(e5[2]); D(e5[3], 'w5')
        free.append(slot[i])
        if todo:
            j = todo.pop(0); slot[j] = free.pop(0)
            for x in bread(j): D(x, 'B%d' % j)
        if i == PRM['sb']:
            wait_for({'w5'})
            A('s_barrier')
            for x in aread(4): D(x, 'A4')
            for x in aread(5): D(x, 'A5')
        if i == PRM['sc']:
            A('s_barrier')
            for x in aread(6): D(x, 'A6')
    stamp(A, 5)
    A('s_cmp_eq_u32 %s, 1' % s(sWAVE))
    A('s_cbranch_scc1 L_sc_sm1')
    e, o, mm, m, t2, rr = v(AC), v(AC + 1), v(AC + 2), v(AC + 3), v(AC + 4), v(AC + 5)
    def reduce(op):
        for d in ('quad_perm:[1,0,3,2]', 'quad_perm:[2,3,0,1]', 'row_half_mirror', 'row_mirror'):
            A('%s_dpp %s, %s, %s %s row_mask:0xf bank_mask:0xf' % (op, m, m, m, d))
    def softmax(rb, exact):
        for d, T in ((e, 0), (o, 1), (mm, 2)): A('v_add_f32 %s, %s, %s' % (d, v(SD + 4 * T + rb), v(SD + 4 * T + rb + 2)))
        if exact:
            A('v_max3_f32 %s, %s, %s, %s' % (m, e, o, mm))
            reduce('v_max_f32')
            for d in (e, o, mm): A('v_sub_f32 %s, %s, %s' % (d, d, m))
        for d in (e, o, mm): A('v_exp_f32 %s, %s' % (d, d))
        A('v_add_f32 %s, %s, %s' % (m, e, o))
        A('v_fma_f32 %s, %s, 0.5, %s' % (m, mm, m))
        A('v_mov_b32_dpp %s, %s row_ror:8 row_mask:0xf bank_mask:0xf' % (t2, mm))
        reduce('v_add_f32')
        A('v_rcp_f32 %s, %s' % (rr, m))
        if not exact:
            A('v_max_f32 %s, %s, %s' % (m, m, rr))
            A('v_mul_f32 %s, %s, %s' % (e, e, rr))
            A('v_cmp_nlt_f32 vcc, %s, %s' % (m, v(vBIG)))
            A('v_mul_f32 %s, %s, %s' % (o, o, rr))
            A('v_cvt_pk_bf16_f32 %s, %s, %s' % (v(vT), e, o))
            A('s_cbranch_vccnz L_sc_exact%d' % rb)
            A('buffer_store_dword %s, %s, %s, %s offen' % (v(vT), v(vPST), s(S_WS, 4), s(sSLOTP)))
            A('v_mul_f32 %s, %s, %s' % (mm, mm, rr))
            A('v_mul_f32 %s, %s, %s' % (t2, t2, rr))
            A('v_cvt_pk_bf16_f32 %s, %s, %s' % (v(vT + 1), mm, t2))
        else:
            for d in (e, o, mm, t2): A('v_mul_f32 %s, %s, %s' % (d, d, rr))
            A('v_cvt_pk_bf16_f32 %s, %s, %s' % (v(vT), e, o))
            A('v_cvt_pk_bf16_f32 %s, %s, %s' % (v(vT + 1), mm, t2))
            A('v_min_u32 %s, -2, %s' % (v(vT), v(vT)))
            A('v_min_u32 %s, -2, %s' % (v(vT + 1), v(vT + 1)))
            A('buffer_store_dword %s, %s, %s, %s offen' % (v(vT), v(vPST), s(S_WS, 4), s(sSLOTP)))
        A('buffer_store_dword %s, %s, %s, %s offen' % (v(vT + 1), v(vPSM), s(S_WS, 4), s(sSLOTP)))
        stamp(A, 8)
        A('s_branch L_sc_join')
    for rb in range(2):
        if rb: A.label('L_sc_sm1')
        softmax(rb, not PRM['fsm'])
    if PRM['fsm']:
        for rb in range(2):
            A.label('L_sc_exact%d' % rb)
            softmax(rb, True)
    A.label('L_sc_join')
    bottom('L_score_loop', [0, 1, 2, 3, 4, 5, 8])
    A('s_branch L_sc_end')
    A.label('L_score_loop8')
    top(zero_regs(0, 32), True)
    extra = {}
    for (r_, k_), pp in (((7, 5), (5, 10)), ((7, 6), (15, 20))):
        for hi in range(2):
            extra.setdefault(pp[hi], []).append('ds_read_b128 %s, %s offset:%d' % (v(SC8.land[(r_, k_)] + 4 * hi, 4), v(vSW), (2 * (k_ - 5) + hi) * 1024))
    extra.setdefault(PRM['ba'], []).extend(['s_waitcnt lgkmcnt(0)', 's_barrier'])
    extra.setdefault(PRM['bb'], []).extend(['s_waitcnt lgkmcnt(0)', 's_barrier'])
    epi8 = lambda r: sc_epi(r, 3584)
    class _C:
        def __init__(s_): s_.l = []
        def __call__(s_, x): s_.l.append(x)
    cc = _C(); xpieces(cc, sXE, NE)
    main_phase(A, SC8, 3, PRM['sdel'], (['s_nop 7'] if NE else []) + cc.l, [], 1, extra, epi8)
    for x in epi8(7): A(x)
    A('s_waitcnt lgkmcnt(0)')
    A('s_barrier')
    stamp(A, 5)
    for i in range(PRM['ht']): A('s_nop 3')
    hint_send(A, HV, HA)
    if G.events:
        A('s_memtime s[4:5]')
        A('s_waitcnt lgkmcnt(0)')
        A('s_mov_b32 m0, %s' % s(sSTEP))
        A('s_nop 3')
        A('v_writelane_b32 v79, s4, m0')
    bottom('L_score_loop8', [0, 1, 2, 3, 4, 5])
    A.label('L_sc_end')
    stamp_acc_out(A)
    if G.events:
        A('s_lshl_b32 s6, %s, 2' % s(sROLE))
        A('s_add_u32 s6, s6, %s' % s(sWAVE))
        A('s_lshl_b32 s6, s6, 8')
        A('s_add_u32 s6, s6, %d' % (EVT + 0x20000))
        A('v_lshrrev_b32 v1, 2, %s' % v(vXG))
        A('v_and_b32 v1, 0xff, v1')
        A('buffer_store_dword v79, v1, %s, s6 offen' % s(S_WS, 4))
    event(A, 8)
    event_spin(A, 14)
    A('s_branch L_exit')
    emit_stubs(A)

def va_epi(r):
    c = 4 * r
    return ['v_add_f32 %s, %s, %s' % (v(c), v(c), v(c + 2)),
            'v_add_f32 %s, %s, %s' % (v(c + 1), v(c + 1), v(c + 3)),
            'v_cvt_pk_bf16_f32 %s, %s, %s' % (v(ZB + 4 * (r & 1) + (r >> 1)), v(c), v(c + 1))]

sVB = 96
sPD = 97
def u_loads():
    out = []
    for cx in range(2):
        for hi in range(2):
            for p in range(2):
                out.append((['s_add_u32 m0, %s, %d' % (s(sVB), cx * 4096 + hi * 2048)] if p == 0 else []) +
                           ['buffer_load_dwordx4 %s, %s, %s offen offset:%d sc1 lds' % (v(vL16), s(S_WS, 4), s(88 + cx * 2 + hi), p * 1024)])
    return out

def ucheck_code(A, lbl, back, P0, t):
    A.label(lbl)
    A('v_mbcnt_lo_u32_b32 %s, -1, 0' % v(t))
    A('v_mbcnt_hi_u32_b32 %s, -1, %s' % (v(t), v(t)))
    A('v_min_u32 %s, 55, %s' % (v(t), v(t)))
    A('v_lshlrev_b32 %s, 4, %s' % (v(t), v(t)))
    A('s_mov_b32 %s, %d' % (s(sT1), FLG_W2 + 1792))
    A('s_lshr_b32 %s, %s, 2' % (s(sT2), s(sT4)))
    A('s_add_u32 %s, %s, 1' % (s(sT2), s(sT2)))
    A.label(lbl + '_l')
    A('buffer_load_dwordx4 %s, %s, %s, %s offen sc1' % (v(P0, 4), v(t), s(S_WS, 4), s(sT1)))
    A('buffer_load_dwordx4 %s, %s, %s, %s offen offset:896 sc1' % (v(P0 + 4, 4), v(t), s(S_WS, 4), s(sT1)))
    A('s_waitcnt vmcnt(0)')
    A('v_min3_u32 %s, %s, %s, %s' % (v(P0), v(P0), v(P0 + 1), v(P0 + 2)))
    A('v_min3_u32 %s, %s, %s, %s' % (v(P0), v(P0), v(P0 + 3), v(P0 + 4)))
    A('v_min3_u32 %s, %s, %s, %s' % (v(P0), v(P0), v(P0 + 5), v(P0 + 6)))
    A('v_min_u32 %s, %s, %s' % (v(P0), v(P0), v(P0 + 7)))
    A('v_cmp_gt_u32 vcc, %s, %s' % (s(sT2), v(P0)))
    spin_check(A, lbl + '_l', ['s_sleep 8'])
    A('s_lshl_b32 %s, %s, 2' % (s(sUOK), s(sT2)))
    for thr in range(2, 17):
        A('v_cmp_gt_u32 vcc, %d, %s' % (thr, v(P0)))
        A('s_cbranch_vccnz %s' % back)
        A('s_max_u32 %s, %s, %d' % (s(sUOK), s(sUOK), 4 * thr if thr < 16 else 1000))
    A('s_branch %s' % back)

def value_role(A):
    A.label('L_value')
    L = v(vLANE)
    sV = sT4
    A('s_sub_u32 %s, %s, 16' % (s(sV), s(sROLE)))
    lexpr(A, v(vL16), L, [(0, 6, 16)], 0, 'v1')
    A('s_lshl_b32 %s, %s, 13' % (s(sVB), s(sWAVE)))
    A('s_add_u32 %s, %s, %d' % (s(sVB), s(sVB), L_VB))
    A('s_lshl_b32 %s, %s, 11' % (s(sT0), s(sWAVE)))
    A('s_add_u32 %s, %s, %d' % (s(sT0), s(sT0), L_VB + 32768))
    A('v_add_u32 %s, %s, %s' % (v(vVW), s(sT0), v(vL16)))
    A('v_add_u32 %s, %d, %s' % (v(vVR), L_VB, v(vL16)))
    A('s_mul_i32 %s, %s, 20480' % (s(sT0), s(sWAVE)))
    A('s_add_u32 %s, %s, %d' % (s(sT0), s(sT0), L_WL))
    A('v_add_u32 %s, %s, %s' % (v(vLW), s(sT0), v(vL16)))
    A('s_lshl_b32 %s, %s, 9' % (s(sT0), s(sV)))
    A('s_cmp_eq_u32 %s, 0' % s(sWAVE))
    A('s_cselect_b32 %s, %s, 0x70000000' % (s(sT0), s(sT0)))
    FL = PRM['fl']; MO = 128 if FL else 16; HO = 64 if FL else 16
    lexpr(A, v(vMST), L, [(3, 1, 256), (2, 1, 32), (0, 2, 4)] + ([(5, 1, 64), (4, 1, 16)] if FL else [(4, 2, 64)]), s(sT0), 'v1')
    lexpr(A, v(vHIST), L, [(2, 2, 128), (4, 2, 16 if FL else 32), (0, 2, 4)], s(sT0), 'v1')
    A('s_lshl_b32 %s, %s, 6' % (s(sT0), s(sV)))
    lexpr(A, 'v2', L, [(4, 2, 1792), (0, 4, 4)], s(sT0), 'v1')
    A('buffer_load_dword %s, v2, %s, 0 offen' % (v(VR), s(S_M0, 4)))
    A('buffer_load_dword %s, v2, %s, 0 offen offset:896' % (v(VR + 1), s(S_M0, 4)))
    A('s_lshl_b32 %s, %s, 2' % (s(sHWR), s(sV)))
    A('s_add_u32 %s, %s, %d' % (s(sHWR), s(sHWR), HINT_M))
    hint_setup(A, VHV, VHA, True)
    A('v_min_u32 v1, 21, %s' % L)
    A('v_lshlrev_b32 %s, 2, v1' % v(vHM_))
    A('v_min_u32 v1, 15, %s' % L)
    A('v_lshlrev_b32 %s, 2, v1' % v(vHP_))
    A('s_cmp_eq_u32 %s, 2' % s(sWAVE))
    A('s_cselect_b32 %s, 0, 0x70000000' % s(sT0))
    A('v_add_u32 %s, %s, %s' % (v(vHP_), s(sT0), v(vHP_)))
    dbg_arrive(A, D_GRP)
    A('s_lshr_b32 %s, %s, 1' % (s(sT0), s(sV)))
    A('s_add_u32 %s, %s, 112' % (s(sT0), s(sT0)))
    A('s_mul_i32 %s, %s, 28' % (s(sT1), s(sWAVE)))
    A('s_add_u32 %s, %s, %s' % (s(sT0), s(sT0), s(sT1)))
    lexpr(A, 'v8', L, [(2, 2, 7)], s(sT0), 'v1')
    A('v_lshlrev_b32 v8, 6, v8')
    A('v_and_b32 v9, 3, %s' % L)
    A('v_lshl_add_u32 v8, v9, 2, v8')
    A('s_mul_i32 %s, %s, %d' % (s(sUOFF), s(sWAVE), 4 * 28672))
    A('s_lshl_b32 %s, %s, 11' % (s(sT0), s(sV)))
    A('s_add_u32 %s, %s, %s' % (s(sUOFF), s(sUOFF), s(sT0)))
    A('s_add_u32 %s, %s, %d' % (s(sUOFF), s(sUOFF), U_OFF))
    A('s_mul_i32 %s, %s, %d' % (s(sT3), s(sV), WCV))
    A('s_add_u32 %s, %s, %d' % (s(sT3), s(sT3), WIMGV))
    event(A, 3)
    load_weights(A, VA, 32768)
    event(A, 5)
    group_wait(A)
    event(A, 6, v(vT), v(vT + 1))
    event_spin(A, 13, v(vT), v(vT + 1))
    A('s_mov_b32 %s, 0' % s(sSTEP))
    A('s_mov_b32 %s, %d' % (s(sSLOT), MB_OFF))
    A('s_mov_b32 %s, 0' % s(sPD))
    for j in range(2):
        A('v_min_u32 %s, -2, %s' % (v(VR + j), v(VR + j)))
        A('buffer_store_dword %s, %s, %s, %s offen offset:%d' % (v(VR + j), v(vMST), s(S_WS, 4), s(sSLOT), MO * j))
    A('v_mov_b32 %s, 1' % v(VHV))
    A('s_barrier')
    hint_send(A, VHV, VHA)
    def lread(i):
        j = VLDS.index(VORD[i])
        return ['ds_read_b128 %s, %s offset:%d' % (v(LB + 8 * (i & 1) + 4 * hi, 4), v(vLW), (2 * j + hi) * 1024) for hi in range(2)]
    BF = [0, 8, 16, 24, 32, 40, 48, 80, 88]
    OD, PA, PKD = 96, 104, 56
    sP0 = 93
    def top():
        A('s_add_u32 %s, %s, 1' % (s(sSTEP1), s(sSTEP)))
        for j in range(4): A('s_add_u32 %s, %s, %d' % (s(88 + j), s(sUOFF), j * 28672))
    top()
    A.label('L_value_loop')
    if G.stamps != 2: stamp(A, 0)
    ul = u_loads(); nb1 = PRM['nb1']
    extra = {}
    for i in range(2, 10):
        r, k = VORD[i - 2]
        g0 = 5 * r + k - 2
        for j, x in enumerate(lread(i)): extra.setdefault(g0 + (j if (k == 6 and PRM['lsp']) else 0), []).append(x)
    A('s_add_u32 %s, %s, 2' % (s(sT0), s(sSTEP)))
    extra.setdefault(0, []).append('v_mov_b32 %s, %s' % (v(VHV), s(sT0)))
    for x in lread(0) + lread(1) + ['v_pk_mov_b32 %s, 0, 0' % v(2 * i, 2) for i in range(16)]: A(x)
    post = ['s_barrier']
    for j, x in enumerate(ul[:nb1]): post += x
    pp = 'buffer_load_dword %s, %s, %s, %s offen sc1' % (v(vT), v(vHP_), s(S_WS, 4), s(sHPRD))
    if PRM['prime']:
        extra.setdefault(34, []).append(pp); extra.setdefault(39, []).append(pp)
    main_phase(A, VA, 2, PRM['vdel'], post, ul[nb1:], PRM['uev'], extra, va_epi)
    zw = va_epi(7) + ['ds_write_b128 %s, %s offset:%d' % (v(vVW), v(ZB + 4 * p, 4), p * 1024) for p in range(2)]
    for j in range(3): A('s_add_u32 %s, %s, %d' % (s(sP0 + j), s(sSLOT), MB_PO + 4096 * j))
    A('s_add_u32 %s, %s, %d' % (s(sSLOT), s(sSLOT), MB_STEP))
    if G.stamps == 2:
        A('s_waitcnt lgkmcnt(0)')
        stamp(A, 10)
        A('s_waitcnt vmcnt(%d)' % (2 if PRM['prime'] else 0))
        stamp(A, 3)
    A('s_waitcnt vmcnt(%d)' % (2 if PRM['prime'] else 0))
    A('s_barrier')
    stamp(A, 5)
    def bread(f):
        c, p = f >> 1, f & 1
        return ['ds_read_b128 %s, %s offset:%d' % (v(BF[f % 9] + 4 * hi, 4), v(vVR), c * 4096 + hi * 2048 + p * 1024) for hi in range(2)]
    pre = []
    for f in range(9):
        pre += bread(f)
        if f in (4, 7): pre.append('s_waitcnt lgkmcnt(4)')
    pre += zero_regs(OD, 8) + ['s_waitcnt lgkmcnt(0)']
    A('s_add_u32 %s, %s, %d' % (s(sUOFF), s(sUOFF), 16 * 28672))
    A('s_add_u32 %s, %s, 1' % (s(sSTEP), s(sSTEP)))
    A('s_cmp_lg_u32 %s, 0' % s(sWAVE))
    A('s_cbranch_scc1 L_value_oth')
    npre = PRM['npre']
    pre1 = []; pre2 = []
    for f in range(9):
        if f == 3: pre1.extend(zw + zero_regs(OD, 8))
        (pre1 if f < npre else pre2).extend(bread(f))
        if f in (4, 7): (pre1 if f < npre else pre2).append('s_waitcnt lgkmcnt(4)')
    for x in pre1: A(x)
    if G.stamps == 2: stamp(A, 0)
    if PRM['solo']: hint_wait(A, sHPRD, sSTEP1, 0, PRM['pdel'], 16, vHP_, solo=True)
    else:
        A('s_cmp_lg_u32 %s, 0' % s(sPD))
        A('s_barrier')
        A('s_cbranch_scc1 L_pv_delay')
        A.label('L_pv_go')
    stamp(A, 9)
    ld = ['buffer_load_dwordx4 %s, %s, %s, %s offen offset:%d sc1' % (v(PA + 4 * c, 4), v(vL16), s(S_WS, 4), s(sP0 + (c >> 2)), (c & 3) * 1024) for c in range(10)]
    for x in ld: A(x)
    for x in pre2: A(x)
    A('s_waitcnt lgkmcnt(0)')
    A.label('L_pv')
    for f in range(20):
        c, p = f >> 1, f & 1
        if p == 0: A('s_waitcnt vmcnt(%d)' % (9 - c + (1 if f > PRM['vf'] else 0)))
        if f == 0: stamp(A, 6)
        if f >= 9: A('s_waitcnt lgkmcnt(%d)' % min(14, sum(len(bread(g)) for g in range(f + 1, min(19, f + 8) + 1))))
        A(smf(v(OD + 4 * p, 4), v(PA + 4 * c, 4), v(BF[f % 9], 8)))
        if f == PRM['vf']: hint_send(A, VHV, VHA)
        if f + 9 < 20:
            for x in bread(f + 9): A(x)
    stamp(A, 7)
    A('v_add_f32 %s, %s, %s' % (v(OD), v(OD), v(OD + 2)))
    A('v_add_f32 %s, %s, %s' % (v(OD + 1), v(OD + 1), v(OD + 3)))
    A('v_cmp_u_f32 vcc, %s, %s' % (v(OD), v(OD + 1)))
    A('v_add_f32 %s, %s, %s' % (v(OD + 4), v(OD + 4), v(OD + 6)))
    A('v_add_f32 %s, %s, %s' % (v(OD + 5), v(OD + 5), v(OD + 7)))
    A('s_cbranch_vccnz L_pv_nan')
    A('v_cvt_pk_bf16_f32 %s, %s, %s' % (v(PKD), v(OD), v(OD + 4)))
    A('v_cvt_pk_bf16_f32 %s, %s, %s' % (v(PKD + 1), v(OD + 1), v(OD + 5)))
    A.label('L_pv_ok')
    A('buffer_store_dword %s, %s, %s, %s offen' % (v(PKD), v(vMST), s(S_WS, 4), s(sSLOT)))
    A('buffer_store_dword %s, %s, %s, %s offen offset:%d' % (v(PKD + 1), v(vMST), s(S_WS, 4), s(sSLOT), MO))
    stamp(A, 8)
    if G.stamps:
        A('s_sub_u32 %s, %s, 1' % (s(sSTEP), s(sSTEP)))
        stamp_flush(A, 11, [0, 1, 2, 3, 4, 5, 10, 9, 6, 7][:10] if False else [1, 2, 4, 10, 3, 5, 0, 9, 6, 8])
        A('s_add_u32 %s, %s, 1' % (s(sSTEP), s(sSTEP)))
    A.label('L_value_next')
    top()
    A('s_cmp_lt_u32 %s, 63' % s(sSTEP))
    A('s_cbranch_scc1 L_value_loop')
    stamp_acc_out(A)
    A('s_mov_b32 %s, %d' % (s(sT0), HM_OFF + 63 * HM_STEP))
    for j in range(2): A('buffer_store_dword %s, %s, %s, %s offen offset:%d sc1' % (v(PKD + j), v(vHIST), s(S_WS, 4), s(sT0), HO * j))
    event(A, 8)
    event_spin(A, 14)
    A('s_branch L_exit')
    A.label('L_value_oth')
    A(pp)
    for x in zw[:4]: A(x)
    A(pp)
    for x in zw[4:]: A(x)
    A('s_nop 7')
    if PRM['solo']: A('s_sleep %d' % PRM['vsl'])
    else: hint_wait(A, sHPRD, sSTEP1, 2, PRM['pdel'], 16, vHP_, primed=True)
    A('s_branch L_value_next')
    A.label('L_pv_delay')
    A('s_mov_b32 %s, %s' % (s(sT1), s(sPD)))
    A.label('L_pv_delay2')
    A('s_sub_u32 %s, %s, 1' % (s(sT1), s(sT1)))
    A('s_cmp_lg_u32 %s, 0' % s(sT1))
    A('s_cbranch_scc1 L_pv_delay2')
    A('s_branch L_pv_go')
    A.label('L_pv_nan')
    A('v_max3_u32 %s, %s, %s, %s' % (v(vT), v(PA), v(PA + 1), v(PA + 2)))
    for i in range(3, 39, 2): A('v_max3_u32 %s, %s, %s, %s' % (v(vT), v(vT), v(PA + i), v(PA + i + 1)))
    A('v_max_u32 %s, %s, %s' % (v(vT), v(vT), v(PA + 39)))
    A('v_cmp_eq_u32 vcc, -1, %s' % v(vT))
    spin_check(A, 'L_pv', ld + pre + ['s_add_u32 %s, %s, 1' % (s(sPD), s(sPD)), 's_min_u32 %s, %s, 6' % (s(sPD), s(sPD))])
    A('v_cvt_pk_bf16_f32 %s, %s, %s' % (v(PKD), v(OD), v(OD + 4)))
    A('v_cvt_pk_bf16_f32 %s, %s, %s' % (v(PKD + 1), v(OD + 1), v(OD + 5)))
    A('v_min_u32 %s, -2, %s' % (v(PKD), v(PKD)))
    A('v_min_u32 %s, -2, %s' % (v(PKD + 1), v(PKD + 1)))
    A('s_branch L_pv_ok')
    emit_stubs(A)

def helper_role(A):
    A.label('L_helper')
    diag(A, 5)
    L = v(vLANE)
    sHW, sJ, sXS, sXD, sSI = sT3, sPRST, sXOFF, sXPF, sUOFF
    LA = PRM['pla']; LT = PRM['plt']
    A('s_sub_u32 %s, %s, 30' % (s(sHW), s(sROLE)))
    A('s_lshl_b32 %s, %s, 2' % (s(sHW), s(sHW)))
    A('s_add_u32 %s, %s, %s' % (s(sHW), s(sHW), s(sWAVE)))
    A('s_min_u32 %s, %s, 6' % (s(sT4), s(sHW)))
    A('s_lshl_b32 %s, %s, 10' % (s(sT0), s(sT4)))
    lexpr(A, 'v10', L, [(0, 6, 16)], s(sT0), 'v1')
    A('s_cmp_lt_u32 %s, 7' % s(sHW))
    A('s_cselect_b32 %s, %s, 0x70000000' % (s(sT0), s(sT0)))
    lexpr(A, 'v11', L, [(4, 2, 256), (1, 1, 128), (2, 2, 32), (0, 1, 16)], s(sT0), 'v1')
    A('s_lshl_b32 %s, %s, 12' % (s(sT0), s(sHW)))
    lexpr(A, 'v12', L, [(0, 5, 128)], s(sT0), 'v1')
    A('s_lshl_b32 %s, %s, 10' % (s(sT0), s(sHW)))
    lexpr(A, 'v13', L, [(3, 2, 8192), (0, 3, 128)], s(sT0), 'v1')
    A('v_mov_b32 v2, %d' % OOB)
    A('v_cmp_gt_u32 vcc, %d, v13' % MB_STEP)
    A('v_cndmask_b32 v13, v2, v13, vcc')
    A('s_lshl_b32 %s, %s, 10' % (s(sT0), s(sHW)))
    lexpr(A, 'v14', L, [(0, 6, 16)], s(sT0), 'v1')
    A('v_add_u32 v15, 8192, v14')
    A('s_cmp_lt_u32 %s, 2' % s(sHW))
    A('s_cselect_b32 %s, 16384, 0' % s(sT0))
    A('v_add_u32 v9, %s, v14' % s(sT0))
    for i in range(4): A('v_mov_b32 %s, -1' % v(4 + i))
    A('s_lshl_b32 %s, %s, 2' % (s(sHWR), s(sHW)))
    A('s_add_u32 %s, %s, %d' % (s(sHWR), s(sHWR), HINT_M + 14 * 4))
    A('v_lshlrev_b32 v1, 8, %s' % L)
    A('v_mov_b32 v2, %d' % OOB)
    A('v_cmp_gt_u32 vcc, %d, %s' % (PRM['nrep'], L))
    A('v_cndmask_b32 v8, v2, v1, vcc')
    A('s_mov_b32 %s, 0' % s(sJ))
    A('s_cmp_eq_u32 %s, 7' % s(sHW))
    A('s_cselect_b32 %s, %d, 1000' % (s(sUOK), 1000 if G.dev_nowait else 0))
    A('s_mov_b32 %s, 0' % s(sXS))
    A('s_mov_b32 %s, %d' % (s(sXD), XF_OFF + LT * 32768))
    A('s_mov_b32 %s, %d' % (s(sSI), MB_OFF))
    def prepare(touch):
        A('s_sub_u32 %s, %s, 1' % (s(sT0), s(sJ)))
        A('s_max_i32 %s, %s, 0' % (s(sT0), s(sT0)))
        A('s_min_u32 %s, %s, %s' % (s(sT0), s(sT0), s(sUOK)))
        A('v_mov_b32 v3, %s' % s(sT0))
        A('buffer_store_dword v3, v8, %s, %s offen' % (s(S_WS, 4), s(sHWR)))
        if touch:
            A('s_add_u32 %s, %s, %d' % (s(sT0), s(sSLOT), LT * MB_STEP))
            A('buffer_load_dword v21, v13, %s, %s offen sc1' % (s(S_WS, 4), s(sT0)))
            A('buffer_load_dword v20, v12, %s, %s offen sc1' % (s(S_WS, 4), s(sXD)))
            A('s_add_u32 %s, %s, 32768' % (s(sXD), s(sXD)))
        e = A.newlabel('L_hsk')
        A('s_cmp_ge_u32 %s, 64' % s(sJ))
        A('s_cbranch_scc1 %s' % e)
        for a_ in ('v14', 'v15', 'v9'): A('buffer_store_dwordx4 v[4:7], %s, %s, %s offen' % (a_, s(S_WS, 4), s(sSI)))
        A('s_add_u32 %s, %s, 1' % (s(sJ), s(sJ)))
        A('s_add_u32 %s, %s, %d' % (s(sSI), s(sSI), MB_STEP))
        A.label(e)
    A.label('L_helper_pre')
    A('s_waitcnt vmcnt(0)')
    prepare(False)
    A('s_cmp_le_u32 %s, %d' % (s(sJ), LA + 1))
    A('s_cbranch_scc1 L_helper_pre')
    if not G.dev_nowait: wait_init(A, D_XG)
    dbg_arrive(A, D_GRP)
    group_wait(A)
    A('s_mov_b32 %s, 0' % s(sSTEP))
    A('s_mov_b32 %s, %d' % (s(sSLOT), MB_OFF))
    A('s_mov_b32 %s, %d' % (s(sHM), HM_OFF))
    A('s_cmp_eq_u32 %s, 7' % s(sHW))
    A('s_cbranch_scc1 L_helper7')
    A.label('L_helper_warm')
    for i in range(LT):
        A('s_mov_b32 %s, %d' % (s(sT0), XF_OFF + i * 32768))
        A('buffer_load_dword v20, v12, %s, %s offen sc1' % (s(S_WS, 4), s(sT0)))
        A('s_mov_b32 %s, %d' % (s(sT0), MB_OFF + i * MB_STEP))
        A('buffer_load_dword v21, v13, %s, %s offen sc1' % (s(S_WS, 4), s(sT0)))
    A('buffer_load_dwordx4 v[16:19], v10, %s, %s offen sc1' % (s(S_WS, 4), s(sSLOT)))
    A('s_waitcnt vmcnt(0)')
    check4(A, 16, 'L_helper_warm', ['s_sleep 8'])
    diag(A, 6)
    A.label('L_helper_loop')
    l = A.newlabel('L_hp'); A.label(l)
    A('buffer_load_dwordx4 v[16:19], v10, %s, %s offen sc1' % (s(S_WS, 4), s(sSLOT)))
    A('s_waitcnt vmcnt(0)')
    check4(A, 16, l, ['s_sleep 1'])
    A('buffer_store_dwordx4 v[16:19], v11, %s, %s offen sc1' % (s(S_WS, 4), s(sHM)))
    prepare(True)
    if G.diag:
        for st_, ix in ((1, 7), (2, 8), (8, 9), (63, 10)):
            lb = A.newlabel('L_dg')
            A('s_cmp_lg_u32 %s, %d' % (s(sSTEP), st_)); A('s_cbranch_scc1 %s' % lb); diag(A, ix); A.label(lb)
    A('s_add_u32 %s, %s, %d' % (s(sSLOT), s(sSLOT), MB_STEP))
    A('s_add_u32 %s, %s, %d' % (s(sHM), s(sHM), HM_STEP))
    A('s_add_u32 %s, %s, 1' % (s(sSTEP), s(sSTEP)))
    A('s_cmp_lt_u32 %s, 64' % s(sSTEP))
    A('s_cbranch_scc1 L_helper_loop')
    A('s_waitcnt vmcnt(0)')
    event(A, 8)
    A('s_branch L_exit')
    A.label('L_helper7')
    A('s_cmp_ge_u32 %s, 64' % s(sUOK))
    A('s_cbranch_scc1 L_h7_b')
    A('s_mov_b32 %s, 0' % s(sT4))
    A('s_branch L_hucheck')
    A.label('L_hucheck_done')
    A('s_sub_u32 %s, %s, 1' % (s(sT0), s(sJ)))
    A('s_min_u32 %s, %s, %s' % (s(sT0), s(sT0), s(sUOK)))
    A('v_mov_b32 v3, %s' % s(sT0))
    A('buffer_store_dword v3, v8, %s, %s offen' % (s(S_WS, 4), s(sHWR)))
    A.label('L_h7_b')
    A('buffer_load_dwordx4 v[16:19], v15, %s, %s offen sc1' % (s(S_WS, 4), s(sSLOT)))
    A('s_waitcnt vmcnt(0)')
    check4(A, 16, 'L_helper7', ['s_sleep 4'])
    prepare(True)
    A('s_add_u32 %s, %s, %d' % (s(sSLOT), s(sSLOT), MB_STEP))
    A('s_add_u32 %s, %s, 1' % (s(sSTEP), s(sSTEP)))
    A('s_cmp_lt_u32 %s, 63' % s(sSTEP))
    A('s_cbranch_scc1 L_helper7')
    A('s_branch L_exit')
    ucheck_code(A, 'L_hucheck', 'L_hucheck_done', 24, 22)
    emit_stubs(A)
```

```python
WS_BYTES = 268435456
WIMG   = 0x0000000
WCU    = 401408
WIMGV  = 16 * 401408
WCV    = 458752
U_OFF  = 0x1000000
YX_OFF = 0x2C00000
HZ_OFF = 0x4800000
HZ_STEP = 114688
HM_OFF = 0x4F00000
HM_STEP = 7168
PP_OFF = 0x5000000
HINT_M = 0x5420000
HINT_P = 0x5422000
FLAGS  = 0x5430000
STAMPS = 0x5500000
EVT    = 0x55C0000
XF_OFF = 0x5600000
XG_OFF = 0x5800000
PA_OFF = 0x5A00000
KVP_OFF = PA_OFF
OI_OFF = PA_OFF + 0x100000
MB_OFF = 0x5E00000
MB_STEP = 18432
MB_PO  = 8192
FLG_W1 = FLAGS
FLG_W2 = FLAGS + 0x4000
FLG_Z  = FLAGS + 0x7800
FLG_P  = FLAGS + 0xB000
FLG_KV = FLAGS + 0x5000
FLG_O  = FLAGS + 0x7000
D_GRP, D_XG, D_INIT, D_RDY = 36, 4, 3, 52
OOB    = 0x7ffffff0
SCALE_LOG2E = (1.0 / 16.0) * 1.4426950408889634
```

```python
from common import *

sSLOT, sSLOTP, sSLOTN, sUOK = sMEMRD, sPWR, sMEMWR, sHZ
vIDX = 60
vK = 61
vT = 68
vLANE = 255
MF = 32
SACC = 4
AF0 = 0
vYW, vTRL, vB, vX, vPST, vPSM, HV, HA = 70, 71, 72, 73, 74, 75, 71, 77
vBIG = 200
vSW = 78
SD = 80
XB = 92
AF1 = 116
L_XS = 32768
vL16, vVW, vVR, vMST, vLW, VHV, VHA, vHM_, vHP_, vHIST = 70, 71, 72, 73, 74, 75, 76, 77, 78, 79
VR = 80
vUS = 69
ZB = 84
UB = 92
LB = 124
L_VB = 114688
L_WL = 32768

class Role:
    pass
SC = Role(); SC.nt = 7
VA = Role(); VA.nt = 8; VA.accf = lambda r: 4 * r
def sc_w(r, k):
    t = r * 7 + k
    return (256 + t * 8) if t < 32 else (120 + (t - 32) * 8)
def tile_pos(w, r):
    if r < 4: return r, w
    e = 3 * (r - 4) + (w - 1)
    return 4 + e // 4, e % 4
def tau(w, r):
    c, ga = tile_pos(w, r); return 7 * ga + c
SC4 = Role(); SC4.nt = 4; SC4.w = sc_w
SC6 = Role(); SC6.nt = 6; SC6.w = sc_w; SC6.accf = lambda r: SACC + 4 * r; SC6.land = {}
SC8 = Role(); SC8.nt = 8; SC8.accf = lambda r: (SACC + 4 * r) if r < 7 else 0
SC8.land = {(7, 5): MF, (7, 6): SACC}
SC8.w = lambda r, k: sc_w(r, k) if r < 7 else (80 + 8 * k if k < 5 else None)
XS2 = 0x10000
L_SWL = 65536
VLDS = [(r, 6) for r in range(8)] + [(2, 4), (5, 4)]
VREG = [(r, k) for r in range(8) for k in range(7) if (r, k) not in VLDS]
def va_w(r, k):
    if (r, k) in VLDS: return None
    t = VREG.index((r, k))
    return (256 + t * 8) if t < 32 else (144 + (t - 32) * 8)
VA.w = va_w

def smf(d, aa, bb, k32=False):
    return 'v_smfmac_f32_16x16x%d_bf16 %s, %s, %s, %s' % (32 if k32 else 64, d, aa, bb, v(vIDX))

sTMB = 28
sSTB = 92
def stamp(A, idx):
    if not G.stamps: return
    A('s_memtime %s' % s(sTMB + 2 * idx, 2))
    if idx == 0 and G.stamps == 1: A('s_memrealtime %s' % s(sTMB + 2 * 10, 2))
def stamp_acc(A, order):
    A('s_waitcnt lgkmcnt(0)')
    l = A.newlabel('L_sa')
    A('s_cmp_lt_u32 %s, 10' % s(sSTEP))
    A('s_cbranch_scc1 %s' % l)
    prev = 3
    for i, k in enumerate(order):
        A('s_sub_u32 s2, %s, %s' % (s(sTMB + 2 * k), s(prev)))
        A('s_add_u32 %s, %s, s2' % (s(50 + i), s(50 + i)))
        prev = sTMB + 2 * k
    A.label(l)
    A('s_mov_b32 s3, %s' % s(sTMB + 2 * order[-1]))
def stamp_acc_out(A):
    if G.stamps != 2: return
    A('v_mbcnt_lo_u32_b32 v2, -1, 0')
    A('v_lshlrev_b32 v2, 2, v2')
    for i in range(10): A('v_writelane_b32 v1, %s, %d' % (s(50 + i), i))
    A('s_mov_b64 exec, 0xffff')
    A('buffer_store_dword v1, v2, %s, %s offen' % (s(S_WS, 4), s(sSTB)))
    A('s_mov_b64 exec, -1')
def stamp_flush(A, n, order=None):
    if not G.stamps: return
    if G.stamps == 2:
        stamp_acc(A, order); return
    A('s_waitcnt lgkmcnt(0)')
    A('s_lshl_b32 %s, %s, 6' % (s(sT5), s(sSTEP)))
    A('s_add_u32 %s, %s, %s' % (s(sT5), s(sT5), s(sSTB)))
    A('v_mbcnt_lo_u32_b32 %s, -1, 0' % v(vT + 1))
    A('v_lshlrev_b32 %s, 2, %s' % (v(vT + 1), v(vT + 1)))
    for i in range(n):
        A('v_writelane_b32 %s, %s, %d' % (v(vT), s(sTMB + 2 * i), i))
    A('v_writelane_b32 %s, %s, 11' % (v(vT), s(sSPIN)))
    A('s_mov_b64 exec, 0xffff')
    A('buffer_store_dword %s, %s, %s, %s offen' % (v(vT), v(vT + 1), s(S_WS, 4), s(sT5)))
    A('s_mov_b64 exec, -1')
def stamp_setup(A):
    if not G.stamps: return
    A('s_lshl_b32 %s, %s, 2' % (s(sT0), s(sROLE)))
    A('s_add_u32 %s, %s, %s' % (s(sT0), s(sT0), s(sWAVE)))
    A('s_lshl_b32 %s, %s, 12' % (s(sT0), s(sT0)))
    A('s_add_u32 %s, %s, %d' % (s(sSTB), s(sT0), STAMPS))
    for i in range(10): A('s_mov_b32 %s, 0' % s(50 + i))

def hint_wait(A, soff, sval, pw, delay, nent, areg=None, solo=False, primed=False):
    l = A.newlabel('L_hint'); e = A.newlabel('L_hint_done')
    D = PRM['hd']
    if not solo:
        A('s_cmp_lg_u32 %s, %d' % (s(sWAVE), pw))
        A('s_cbranch_scc1 %s' % e)
    if areg is None:
        areg = vT + 1
        A('v_mbcnt_lo_u32_b32 %s, -1, 0' % v(vT + 1))
        A('v_mbcnt_hi_u32_b32 %s, -1, %s' % (v(vT + 1), v(vT + 1)))
        A('v_min_u32 %s, %d, %s' % (v(vT + 1), nent - 1, v(vT + 1)))
        A('v_lshlrev_b32 %s, 2, %s' % (v(vT + 1), v(vT + 1)))
    ld = 'buffer_load_dword %s, %s, %s, %s offen sc1' % (v(vT), v(areg), s(S_WS, 4), s(soff))
    if PRM['hv0']: A('s_waitcnt vmcnt(0)')
    for i in range(0 if primed else D - 1):
        A(ld); A('s_nop %d' % PRM['hn'])
    A.label(l)
    A(ld)
    A('s_waitcnt vmcnt(%d)' % (D - 1))
    A('v_cmp_gt_u32 vcc, %s, %s' % (s(sval), v(vT)))
    spin_check(A, l)
    for i in range(delay): A('s_nop 3')
    if solo: return
    A.label(e)
    if primed: A('s_waitcnt vmcnt(2) lgkmcnt(0)')
    A('s_barrier')

def hint_send(A, t0, t1):
    A('buffer_store_dword %s, %s, %s, %s offen' % (v(t0), v(t1), s(S_WS, 4), s(sHWR)))
def hint_setup(A, t0, t1, allw):
    nrep = PRM['nrep']
    A('v_lshlrev_b32 v1, 8, %s' % v(vLANE))
    A('v_mov_b32 v2, %d' % OOB)
    A('s_cmp_eq_u32 %s, %d' % (s(sWAVE), 0 if allw else 3))
    A('s_cselect_b32 %s, %d, 0' % (s(sT0), nrep))
    A('v_cmp_gt_u32 vcc, %s, %s' % (s(sT0), v(vLANE)))
    A('v_cndmask_b32 %s, v2, v1, vcc' % v(t1))
    A('v_mov_b32 %s, 0' % v(t0))
    hint_send(A, t0, t1)

def dbg_arrive(A, idx):
    A('s_waitcnt vmcnt(0) lgkmcnt(0)')
    A('s_barrier')
    l = A.newlabel('L_gb')
    A('s_cmp_lg_u32 %s, 0' % s(sWAVE))
    A('s_cbranch_scc1 %s' % l)
    A('v_mov_b32 v1, %d' % (idx * 4))
    A('v_mov_b32 v2, 1')
    A('s_mov_b64 exec, 1')
    A('buffer_atomic_add v2, v1, %s, 0 offen' % s(S_DBG, 4))
    A('s_mov_b64 exec, -1')
    A.label(l)

def group_wait(A):
    l = A.newlabel('L_gw')
    A('v_mov_b32 %s, %d' % (v(vT), D_GRP * 4))
    A.label(l)
    A('buffer_load_dword %s, %s, %s, 0 offen sc1' % (v(vT + 1), v(vT), s(S_DBG, 4)))
    A('s_waitcnt vmcnt(0)')
    A('v_cmp_gt_u32 vcc, 32, %s' % v(vT + 1))
    spin_check(A, l, ['s_sleep 1'])

def wait_init(A, idx=D_INIT, lane=None):
    l = A.newlabel('L_wi')
    lexpr(A, 'v2', lane or v(vLANE), [(0, 2, 64)], idx * 4, 'v3')
    A.label(l)
    A('buffer_load_dword v3, v2, %s, 0 offen sc1' % s(S_DBG, 4))
    A('s_waitcnt vmcnt(0)')
    A('v_cmp_gt_u32 vcc, 56, v3')
    spin_check(A, l, ['s_sleep 16'])

def check4(A, r, lbl, pre):
    t0 = v(vT)
    A('v_max3_u32 %s, %s, %s, %s' % (t0, v(r), v(r + 1), v(r + 2)))
    A('v_max_u32 %s, %s, %s' % (t0, t0, v(r + 3)))
    A('v_cmp_eq_u32 vcc, -1, %s' % t0)
    spin_check(A, lbl, pre)

sROT = 87
def rot(A, k):
    A('s_add_u32 %s, %s, %d' % (s(sT1), s(sT0), k))
    A('s_sub_u32 %s, %s, 7' % (s(sT2), s(sT1)))
    A('s_cmp_ge_u32 %s, 7' % s(sT1))
    A('s_cselect_b32 %s, %s, %s' % (s(sT1), s(sT2), s(sT1)))

def rec_start(A):
    A('v_mov_b32 %s, v0' % v(vLANE))
    A('s_mov_b32 %s, %d' % (s(sSPIN), SPIN_MAX))
    if PRM['xw']:
        A('s_lshl_b32 %s, %s, 2' % (s(sT0), s(sROLE)))
        A('s_add_u32 %s, %s, %s' % (s(sT0), s(sT0), s(sWAVE)))
        A('s_mul_i32 %s, %s, 14336' % (s(sT0), s(sT0)))
        A('s_add_u32 %s, %s, 6144' % (s(sT1), s(sT0)))
        A('v_lshlrev_b32 v1, 7, v0')
        for j in range(2): A('buffer_load_dword v250, v1, %s, %s offen nt' % (s(S_BX, 4), s(sT0 + j)))
    A('s_and_b32 %s, %s, %d' % (s(sT0), s(sROLE), PRM['nrep'] - 1))
    A('s_lshl_b32 %s, %s, 8' % (s(sHMRD), s(sT0)))
    A('s_add_u32 %s, %s, %d' % (s(sHPRD), s(sHMRD), HINT_P))
    A('s_add_u32 %s, %s, %d' % (s(sHMRD), s(sHMRD), HINT_M))
    A('v_and_b32 v1, 2, v0')
    A('v_cmp_eq_u32 vcc, 0, v1')
    A('v_mov_b32 v2, 0xeeeeeeee')
    A('v_mov_b32 v3, 0x44444444')
    A('v_cndmask_b32 %s, v2, v3, vcc' % v(vIDX))
    A('v_lshlrev_b32 v1, 4, v0')
    A('s_sub_u32 %s, %s, 16' % (s(sT1), s(sROLE)))
    A('s_lshr_b32 %s, %s, 1' % (s(sT1), s(sT1)))
    A('s_cmp_lt_u32 %s, 16' % s(sROLE))
    A('s_cselect_b32 %s, 0, %s' % (s(sT1), s(sT1)))
    assert PRM['wrot'] in (0, 2)
    if PRM['wrot'] == 0: A('s_mov_b32 %s, 0' % s(sT1))
    A('s_lshl_b32 %s, %s, 1' % (s(sT0), s(sWAVE)))
    A('s_add_u32 %s, %s, %s' % (s(sT0), s(sT0), s(sT1)))
    rot(A, 0)
    A('s_mov_b32 %s, %s' % (s(sROT), s(sT1)))
    A('s_mov_b32 %s, %s' % (s(sT0), s(sT1)))
    for k in range(7):
        rot(A, k)
        A('s_lshl_b32 %s, %s, 10' % (s(sT1), s(sT1)))
        A('v_add_u32 %s, %s, v1' % (v(vK + k), s(sT1)))
    stamp_setup(A)

def load_weights(A, R, cstride):
    tag = 'S' if R is SC else 'V'
    A('s_mul_i32 %s, %s, %d' % (s(sT0), s(sWAVE), 0 if R is SC else R.nt * 1024))
    if not G.dev_nowait:
        A('v_mov_b32 %s, v8' % v(vT))
        wait_init(A)
        A('v_mov_b32 v3, %s' % v(vT))
    lexpr(A, 'v1', v(vLANE), [(0, 6, 16)], s(sT0), 'v2')
    A('v_add_u32 v2, 4096, v1')
    SB_ = 28
    A('s_mov_b32 %s, %s' % (s(sT0), '0' if R is SC else s(sROT)))
    for k in range(7):
        rot(A, k)
        A('s_mul_i32 %s, %s, %d' % (s(sT1), s(sT1), 2 * cstride))
        A('s_add_u32 %s, %s, %s' % (s(SB_ + 2 * k), s(sT1), s(sT3)))
        A('s_add_u32 %s, %s, %d' % (s(SB_ + 2 * k + 1), s(SB_ + 2 * k), cstride))
    A('s_mov_b32 %s, %d' % (s(sT0), FLG_W1))
    pl = 'buffer_load_dword %s, v3, %s, %s offen sc1' % (v(vT), s(S_WS, 4), s(sT0))
    for w in range(1, 4):
        A('s_cmp_eq_u32 %s, %d' % (s(sWAVE), w))
        A('s_cbranch_scc1 L_lw%s%d' % (tag, w))
    for w in range(4):
        A.label('L_lw%s%d' % (tag, w))
        st = [[], [], [], []]
        RW = R if R is VA else (SC4 if w == 0 else SC8)
        for k in range(7):
            for hi in range(2):
                for r in range(RW.nt):
                    if R is SC: c = (2 * k + hi - PRM['wrot'] * (tau(w, r) >> 2)) % 14
                    else: c = (2 * ((k + 2 * w) % 7) + hi) % 14
                    st[c >> 2].append((r, k, hi))
        n = 0; since = None
        for i in range(4):
            if not G.dev_nowait:
                l = A.newlabel('L_lwp')
                if since is None: A(pl); since = 0
                A('s_waitcnt vmcnt(%d)' % since)
                A.label(l)
                A('v_cmp_gt_u32 vcc, %d, %s' % (i + 1, v(vT)))
                spin_check(A, l, ['s_sleep %d' % PRM['lws'], pl, 's_waitcnt vmcnt(0)'])
                if i == 0: event(A, 4, 'v59', v(vT + 1))
            for j, (r, k, hi) in enumerate(st[i]):
                if j == len(st[i]) // 2 and i < 3 and not G.dev_nowait: A(pl); since = 0
                wv = RW.w(r, k)
                if wv is None: dst = v((ldstmp(VLDS.index((r, k))) if R is VA else 4 + 8 * (k - 5)) + 4 * hi, 4)
                else: dst = u(wv + 4 * hi, 4)
                if R is SC:
                    A('s_add_u32 %s, %s, %d' % (s(sT1), s(SB_ + 2 * k + hi), tau(w, r) * 1024))
                    A('buffer_load_dwordx4 %s, v1, %s, %s offen sc1' % (dst, s(S_WS, 4), s(sT1)))
                else:
                    A('buffer_load_dwordx4 %s, %s, %s, %s offen offset:%d sc1' % (dst, 'v1' if r < 4 else 'v2', s(S_WS, 4), s(SB_ + 2 * k + hi), (r & 3) * 1024))
                if since is not None: since += 1
                n += 1
                if G.dev_nowait and n % 16 == 0: A('s_waitcnt vmcnt(40)')
        if w < 3: A('s_branch L_lw%sE' % tag)
    A.label('L_lw%sE' % tag)
    A('s_waitcnt vmcnt(0)')
    if R is SC:
        for i in range(4): A('ds_write_b128 %s, %s offset:%d' % (v(vSW), v(4 + 4 * i, 4), i * 1024))
        A('s_waitcnt lgkmcnt(0)')
    if R is VA:
        for i in range(10):
            for hi in range(2):
                A('ds_write_b128 %s, %s offset:%d' % (v(vLW), v(ldstmp(i) + 4 * hi, 4), (2 * i + hi) * 1024))
            if i % 3 == 2: A('s_waitcnt lgkmcnt(4)')
        A('s_waitcnt lgkmcnt(0)')
def ldstmp(i): return (4 + 8 * i) if i < 7 else (UB + 8 * (i - 7))

def zero_regs(b, n): return ['v_mov_b32 %s, 0' % v(b + i) for i in range(n)]

def lds_younger(A, dst):
    n = 0
    for x in reversed(A.ins):
        if x.kind == 'label': return 0
        if x.kind == 'ds':
            if x.text.startswith('ds_read_b128 ' + dst): return n
            n += 1
    return 0

def main_phase(A, R, pw, delay, post, vm, every, extra, epi, pre_ds=0):
    NT = R.nt
    hint_wait(A, sHMRD, sSTEP1, pw, delay, 22, vHM_ if R is VA else None)
    stamp(A, 1)
    ld = ['buffer_load_dwordx4 %s, %s, %s, %s offen sc1' % (v(MF + 4 * k, 4), v(vK + k), s(S_WS, 4), s(sSLOT)) for k in range(2)]
    A(ld[0])
    if PRM['f0b']: A('s_barrier')
    A(ld[1])
    for x in post: A(x)
    nst = len([x for x in post if x.startswith('buffer_')])
    A('s_waitcnt vmcnt(%d)' % (nst + 1))
    l0 = A.newlabel('L_pm0'); A.label(l0)
    check4(A, MF, l0, [ld[0], 's_waitcnt vmcnt(0)'])
    stamp(A, 2)
    A('ds_write_b128 %s, %s offset:%d' % (v(vK), v(MF, 4), L_MEM))
    vm = list(vm); cnt = [0]
    def vmtick():
        cnt[0] += 1
        if vm and cnt[0] % every == 0:
            for x in vm.pop(0): A(x)
    k1, k2 = PRM['k1'], min(PRM['k2'], 2 * NT - 3)
    if R is SC8: k1, k2 = PRM['k1l'], PRM['k2l']
    kseq = [(r, 0) for r in range(NT)] + [(r, 1) for r in range(NT)]
    rd = [2, 3, 4, 5, 6]
    for i, (r, k) in enumerate(kseq):
        A(smf(v(R.accf(r), 4), v(MF + 4 * k, 4), u(R.w(r, k), 8)))
        if i == k1 - 1:
            A('s_waitcnt vmcnt(%d)' % nst)
            l1 = A.newlabel('L_pm1'); A.label(l1)
            check4(A, MF + 4, l1, [ld[1], 's_waitcnt vmcnt(0)'])
            A('ds_write_b128 %s, %s offset:%d' % (v(vK + 1), v(MF + 4, 4), L_MEM))
        elif i >= k1 and i < k2 - 1: vmtick()
        if i == k2 - 1:
            A('s_waitcnt lgkmcnt(0)')
            A('s_barrier')
            stamp(A, 3)
        if i >= k2 - 1:
            for _ in range(2 if len(kseq) - i > 2 else 5):
                if rd:
                    kk = rd.pop(0); A('ds_read_b128 %s, %s offset:%d' % (v(MF + 4 * kk, 4), v(vK + kk), L_MEM))
    assert not rd
    q = []
    i = 0
    for r in range(NT):
        for k in range(2, 7):
            if r == 0: A('s_waitcnt lgkmcnt(%d)' % (6 - k))
            w = R.w(r, k)
            if w is None and R is VA:
                iv = VORD.index((r, k))
                w = LB + 8 * (iv & 1)
                A('s_waitcnt lgkmcnt(%d)' % lds_younger(A, 'v[%d:%d]' % (w + 4, w + 7)))
            elif w is None: w = R.land[(r, k)]
            A(smf(v(R.accf(r), 4), v(MF + 4 * k, 4), u(w, 8)))
            if k == 3 and r > 0: q += epi(r - 1)
            if q: A(q.pop(0))
            for x in extra.get(i, []): A(x)
            vmtick()
            i += 1
    stamp(A, 4)
    for x in q: A(x)
    assert not vm, len(vm)
VORD = sorted(VLDS)

sXL = 86
def sc_epi(w, r):
    c = (SACC + 4 * r) if r < 7 else 0
    ch, ga = tile_pos(w, r)
    return ['v_add_f32 %s, %s, %s' % (v(c), v(c), v(c + 2)),
            'v_add_f32 %s, %s, %s' % (v(c + 1), v(c + 1), v(c + 3)),
            'v_cvt_pk_bf16_f32 %s, %s, %s' % (v(c), v(c), v(c + 1)),
            'ds_write_b32 %s, %s offset:%d' % (v(vYW), v(c), ga * 1792 + ch * 256)]

def score_role(A):
    A.label('L_score')
    L = v(vLANE)
    HV_, vHMS = 76, 61
    lexpr(A, v(vYW), L, [(2, 2, 64), (0, 1, 32), (4, 2, 8), (1, 1, 4)], L_YT, 'v1')
    lexpr(A, v(vTRL), L, [(4, 2, 1792), (0, 4, 8)], L_YT, 'v1')
    lexpr(A, v(vB), L, [(5, 1, 1792), (4, 1, 32), (0, 2, 64), (3, 1, 16)], L_MEM, 'v1')
    lexpr(A, v(vX), L, [(0, 6, 16)], 0, 'v1')
    A('s_lshl_b32 %s, %s, 12' % (s(sT0), s(sWAVE)))
    A('s_add_u32 %s, %s, %d' % (s(sT0), s(sT0), L_SWL))
    A('v_add_u32 %s, %s, %s' % (v(vSW), s(sT0), v(vX)))
    gterm = [(5, 1, 64), (4, 1, 16)]
    A('s_lshl_b32 %s, %s, 9' % (s(sT0), s(sROLE)))
    lexpr(A, v(vPST), L, [(3, 1, 256), (2, 1, 32), (0, 2, 4)] + gterm, s(sT0), 'v1')
    A('s_lshr_b32 %s, %s, 2' % (s(sT0), s(sROLE)))
    A('s_lshl_b32 %s, %s, 9' % (s(sT0), s(sT0)))
    A('s_and_b32 %s, %s, 1' % (s(sT1), s(sROLE)))
    A('s_lshl_b32 %s, %s, 5' % (s(sT1), s(sT1)))
    A('s_add_u32 %s, %s, %s' % (s(sT0), s(sT0), s(sT1)))
    A('s_and_b32 %s, %s, 2' % (s(sT1), s(sROLE)))
    A('s_lshl_b32 %s, %s, 1' % (s(sT1), s(sT1)))
    A('s_add_u32 %s, %s, %s' % (s(sT0), s(sT0), s(sT1)))
    A('s_add_u32 %s, %s, 8192' % (s(sT0), s(sT0)))
    lexpr(A, 'v3', L, [(1, 1, 256), (0, 1, 8), (2, 1, 128)] + gterm, s(sT0), 'v1')
    A('v_and_b32 v4, 8, %s' % L)
    A('v_mov_b32 v2, %d' % OOB)
    A('v_cmp_eq_u32 vcc, 0, v4')
    A('v_cndmask_b32 %s, v2, v3, vcc' % v(vPSM))
    A('s_lshl_b32 %s, %s, 2' % (s(sHWR), s(sROLE)))
    A('s_add_u32 %s, %s, %d' % (s(sHWR), s(sHWR), HINT_P))
    hint_setup(A, HV_, HA, False)
    A('v_min_u32 v1, 21, %s' % L)
    A('v_lshlrev_b32 %s, 2, v1' % v(vHMS))
    dbg_arrive(A, D_GRP)
    A('v_lshrrev_b32 v8, 2, %s' % L)
    A('v_min_u32 v8, 6, v8')
    A('s_cmp_eq_u32 %s, 0' % s(sWAVE))
    A('s_cselect_b32 %s, 0, 6' % s(sT1))
    A('v_min_u32 v8, %s, v8' % s(sT1))
    A('s_mul_i32 %s, %s, 7' % (s(sT0), s(sROLE)))
    A('v_add_u32 v8, %s, v8' % s(sT0))
    A('v_lshlrev_b32 v8, 6, v8')
    A('v_and_b32 v9, 3, %s' % L)
    A('v_lshl_add_u32 v8, v9, 2, v8')
    event(A, 3)
    A('s_mul_i32 %s, %s, %d' % (s(sT3), s(sROLE), WCU))
    load_weights(A, SC, 28672)
    event(A, 5)
    group_wait(A)
    event(A, 6, v(vT), v(vT + 1))
    event_spin(A, 13, v(vT), v(vT + 1))
    A('s_mov_b32 %s, 0' % s(sSTEP))
    A('s_mov_b32 %s, %d' % (s(sSLOT), MB_OFF))
    A('s_mov_b32 %s, %d' % (s(sXOFF), XF_OFF))
    AC = SACC; sSL2 = sXL
    ND = 3
    def mld(k): return 'buffer_load_dwordx4 %s, %s, %s, %s offen offset:%d sc1' % (v(MF + 4 * k, 4), v(vX), s(S_WS, 4), s(sSLOT if k < 4 else sSL2), (k & 3) * 1024)
    def top():
        A('s_add_u32 %s, %s, %d' % (s(sSLOTP), s(sSLOT), MB_PO))
        A('s_add_u32 %s, %s, 4096' % (s(sSL2), s(sSLOT)))
        A('s_add_u32 %s, %s, 1' % (s(sSTEP1), s(sSTEP)))
    def bottom(lp, order):
        stamp_flush(A, 11, order)
        A('s_add_u32 %s, %s, %d' % (s(sSLOT), s(sSLOT), MB_STEP))
        A('s_add_u32 %s, %s, 1' % (s(sSTEP), s(sSTEP)))
        A('s_cmp_lt_u32 %s, 63' % s(sSTEP))
        A('s_cbranch_scc1 %s' % lp)
        A('s_branch L_sc_end')
    def chk(k, first):
        r = MF + 4 * k; t0 = v(vT)
        if first: return ['v_max3_u32 %s, %s, %s, %s' % (t0, v(r), v(r + 1), v(r + 2)), 'v_max_u32 %s, %s, %s' % (t0, t0, v(r + 3))]
        return ['v_max3_u32 %s, %s, %s, %s' % (t0, t0, v(r), v(r + 1)), 'v_max3_u32 %s, %s, %s, %s' % (t0, t0, v(r + 2), v(r + 3))]
    for w in range(1, 4):
        A('s_cmp_eq_u32 %s, %d' % (s(sWAVE), w))
        A('s_cbranch_scc1 L_score_loop%d' % w)
    XR = lambda c, T: 120 + (2 * c + T) * 8
    MR = lambda c: (256 + 224 + 8 * c) if c < 4 else (232 + 8 * (c - 4))
    AR = [92 + 4 * c for c in range(7)]
    vBG = 62
    A('v_mov_b32 %s, 0x5f800000' % v(vBG))
    vMK = 64
    A('v_and_b32 v1, 64, %s' % v(vX))
    A('v_cmp_eq_u32 vcc, 0, v1')
    A('v_cndmask_b32 %s, 0, 1.0, vcc' % v(vMK))
    A('v_cndmask_b32 %s, 1.0, 0, vcc' % v(vMK + 1))
    A.label('L_score_loop0')
    zz = zero_regs(AC, 16) + zero_regs(SD, 12)
    for i in range(28):
        if i % 4 == 0: A('s_add_u32 %s, %s, %d' % (s(sXPF), s(sXOFF), i * 1024))
        A('buffer_load_dwordx4 %s, %s, %s, %s offen offset:%d sc1' % (v(120 + 4 * i, 4), v(vX), s(S_WS, 4), s(sXPF), (i & 3) * 1024))
        A(zz[i])
    A('s_add_u32 %s, %s, 32768' % (s(sXOFF), s(sXOFF)))
    top()
    stamp(A, 0)
    A('s_barrier')
    stamp(A, 1)
    A('s_barrier')
    if PRM['o2']: A('s_barrier')
    def mdma(k):
        return (['s_mov_b32 m0, %d' % (L_MEM + (4096 if k >= 4 else 0))] if k in (0, ND, 4) else []) + \
               ['buffer_load_dwordx4 %s, %s, %s offen offset:%d sc1 lds' % (v(vX), s(S_WS, 4), s(sSLOT if k < 4 else sSL2), (k & 3) * 1024)]
    X1 = [mld(k) for k in range(ND, 7)] + [x for k in range(ND, 7) for x in mdma(k)]
    X2 = [mld(k) for k in range(ND)] + [x for k in range(ND) for x in mdma(k)]
    if PRM['o3']:
        for x in X1[:7 - ND]: A(x)
        A('s_barrier')
        A('s_nop 7')
        for x in X1[7 - ND:]: A(x)
    else:
        for x in X1: A(x)
        A('s_barrier')
    for x in X2: A(x)
    A.label('L_s0_x')
    NX = 7 - ND
    seq = [(r, k) for k in range(ND, 7) for r in range(4)]
    for i, (r, k) in enumerate(seq):
        if r == 0: A('s_waitcnt vmcnt(%d)' % (2 * ND + 2 * NX - 1 - (k - ND)))
        if i == 0: stamp(A, 2)
        A(smf(v(AC + 4 * r, 4), v(MF + 4 * k, 4), u(sc_w(r, k), 8)))
        if i < 2 * NX:
            kk = ND + i // 2
            if i % 2 == 0 and kk > k: A('s_waitcnt vmcnt(%d)' % (2 * ND + 2 * NX - 1 - (kk - ND)))
            A(chk(kk, kk == ND)[i % 2])
        if i == 2 * NX:
            A('v_cmp_eq_u32 vcc, -1, %s' % v(vT))
            spin_check(A, 'L_s0_x', X1 + zero_regs(AC, 16) + ['s_waitcnt vmcnt(0)'])
        if i == PRM['s0b']:
            A('s_waitcnt vmcnt(%d)' % (2 * ND))
            A('s_barrier')
            stamp(A, 3)
    A('s_waitcnt vmcnt(%d)' % ND)
    for j in range(2 * ND): A(chk(j // 2, j < 2)[j % 2])
    A('v_cmp_eq_u32 vcc, -1, %s' % v(vT))
    A('s_cbranch_vccnz L_s0_y')
    A.label('L_s0_z')
    q = []
    for r in range(4):
        for k in range(ND):
            A(smf(v(AC + 4 * r, 4), v(MF + 4 * k, 4), u(sc_w(r, k), 8)))
            if k == 1 and r > 0: q += sc_epi(0, r - 1)
            if q: A(q.pop(0))
            if q and q[0].startswith('ds_'): A(q.pop(0))
    A('s_waitcnt vmcnt(0)')
    def mread(c): return ['ds_read_b128 %s, %s offset:%d' % (u(MR(c) + 4 * hi, 4), v(vB), hi * 3584 + c * 256) for hi in range(2)]
    def aread(c): return ['ds_read_b64_tr_b16 %s, %s offset:%d' % (v(AR[c] + 2 * t_, 2), v(vTRL), c * 256 + t_ * 128) for t_ in range(2)]
    ds = []
    def D(xs, tag):
        for x in xs:
            A(x)
            if x.startswith('ds_'): ds.append(tag)
    def wait_for(tags):
        last = max([i for i, tg in enumerate(ds) if tg in tags], default=-1)
        if last > wait_for.done:
            A('s_waitcnt lgkmcnt(%d)' % min(14, len(ds) - 1 - last)); wait_for.done = last
    wait_for.done = -1
    D(q, 'w'); D(mread(0), 'M0'); D(mread(1), 'M1'); D(sc_epi(0, 3), 'w'); D(mread(2), 'M2')
    stamp(A, 4)
    wait_for({'M0'})
    A('s_barrier')
    D(aread(0), 'A0'); D(aread(1), 'A1'); D(mread(3), 'M3')
    units = [(c, T) for c in range(6) for T in range(3)] + [(6, 2), (6, 0), (6, 1)]
    bars = {PRM['s23']: (2, 3), PRM['s4']: (4,), PRM['sb']: (5,), PRM['sc']: (6,)}
    for i, (c, T) in enumerate(units):
        wait_for({'A%d' % c} | ({'M%d' % c} if T == 2 else set()))
        A(smf(v(SD + 4 * T, 4), v(AR[c], 4), u(XR(c, T) if T < 2 else MR(c), 8)))
        if i < 3: D(mread(4 + i), 'M%d' % (4 + i))
        if i in bars:
            A('s_barrier')
            for cc in bars[i]: D(aread(cc), 'A%d' % cc)
    stamp(A, 5)
    e, o, mm, t2 = (v(AC), v(AC + 1)), (v(AC + 2), v(AC + 3)), v(AC + 4), v(AC + 5)
    m, rr = (v(AC + 6), v(AC + 7)), (v(AC + 8), v(AC + 9))
    ID = 'quad_perm:[0,1,2,3] row_mask:0xf bank_mask:0x%x'
    def reduce(op):
        for d in ('quad_perm:[1,0,3,2]', 'quad_perm:[2,3,0,1]', 'row_half_mirror', 'row_mirror'):
            for rb in range(2): A('%s_dpp %s, %s, %s %s row_mask:0xf bank_mask:0xf' % (op, m[rb], m[rb], m[rb], d))
    E2, O2, M2, R2 = v(AC, 2), v(AC + 2, 2), v(AC + 6, 2), v(AC + 8, 2)
    def softmax(exact):
        pk = (v(vT), v(vT + 1), v(AC + 10))
        if not exact:
            A('v_add_f32 %s, %s, %s' % (mm, v(SD + 8), v(SD + 10)))
            A('v_add_f32_dpp %s, %s, %s %s' % (mm, v(SD + 9), v(SD + 11), ID % 0xa))
            A('v_pk_add_f32 %s, %s, %s' % (E2, v(SD, 2), v(SD + 2, 2)))
            A('v_exp_f32 %s, %s' % (mm, mm))
            for rb in range(2): A('v_exp_f32 %s, %s' % (e[rb], e[rb]))
            A('v_pk_add_f32 %s, %s, %s' % (O2, v(SD + 4, 2), v(SD + 6, 2)))
            for rb in range(2): A('v_exp_f32 %s, %s' % (o[rb], o[rb]))
        else:
            A('v_pk_add_f32 %s, %s, %s' % (E2, v(SD, 2), v(SD + 2, 2)))
            A('v_pk_add_f32 %s, %s, %s' % (O2, v(SD + 4, 2), v(SD + 6, 2)))
            A('v_add_f32 %s, %s, %s' % (mm, v(SD + 8), v(SD + 10)))
            A('v_add_f32 %s, %s, %s' % (t2, v(SD + 9), v(SD + 11)))
            A('v_max3_f32 %s, %s, %s, %s' % (m[0], e[0], o[0], mm))
            A('v_max3_f32 %s, %s, %s, %s' % (m[1], e[1], o[1], t2))
            reduce('v_max_f32')
            for rb in range(2):
                A('v_sub_f32 %s, %s, %s' % (e[rb], e[rb], m[rb])); A('v_sub_f32 %s, %s, %s' % (o[rb], o[rb], m[rb]))
            A('v_sub_f32 %s, %s, %s' % (mm, mm, m[0]))
            A('v_sub_f32_dpp %s, %s, %s %s' % (mm, t2, m[1], ID % 0xa))
            for rb in range(2):
                A('v_exp_f32 %s, %s' % (e[rb], e[rb])); A('v_exp_f32 %s, %s' % (o[rb], o[rb]))
            A('v_exp_f32 %s, %s' % (mm, mm))
        A('v_pk_fma_f32 %s, %s, %s, %s op_sel_hi:[0,1,1]' % (M2, v(AC + 4, 2), v(vMK, 2), E2))
        A('v_pk_add_f32 %s, %s, %s' % (M2, M2, O2))
        A('v_mov_b32_dpp %s, %s row_ror:8 row_mask:0xf bank_mask:0xf' % (t2, mm))
        reduce('v_add_f32')
        for rb in range(2): A('v_rcp_f32 %s, %s' % (rr[rb], m[rb]))
        if not exact:
            A('v_add_f32 %s, %s, %s' % (m[0], m[0], m[1]))
            A('v_add_f32 %s, %s, %s' % (m[1], rr[0], rr[1]))
            A('v_pk_mul_f32 %s, %s, %s' % (E2, E2, R2))
            A('v_add_f32 %s, %s, %s' % (m[0], m[0], m[1]))
            A('v_pk_mul_f32 %s, %s, %s' % (O2, O2, R2))
            A('v_cmp_nlt_f32 vcc, %s, %s' % (m[0], v(vBG)))
            A('v_cvt_pk_bf16_f32 %s, %s, %s' % (pk[0], e[0], o[0]))
            A('v_cvt_pk_bf16_f32 %s, %s, %s' % (pk[1], e[1], o[1]))
            A('s_cbranch_vccnz L_sc_exact')
        else:
            A('v_pk_mul_f32 %s, %s, %s' % (E2, E2, R2))
            A('v_pk_mul_f32 %s, %s, %s' % (O2, O2, R2))
            for rb in range(2):
                A('v_cvt_pk_bf16_f32 %s, %s, %s' % (pk[rb], e[rb], o[rb]))
                A('v_min_u32 %s, -2, %s' % (pk[rb], pk[rb]))
        A('buffer_store_dword %s, %s, %s, %s offen' % (pk[0], v(vPST), s(S_WS, 4), s(sSLOTP)))
        A('buffer_store_dword %s, %s, %s, %s offen offset:128' % (pk[1], v(vPST), s(S_WS, 4), s(sSLOTP)))
        A('v_mov_b32_dpp %s, %s %s' % (rr[0], rr[1], ID % 0xa))
        A('v_mul_f32 %s, %s, %s' % (mm, mm, rr[0]))
        A('v_mul_f32 %s, %s, %s' % (t2, t2, rr[0]))
        A('v_cvt_pk_bf16_f32 %s, %s, %s' % (pk[2], mm, t2))
        if exact: A('v_min_u32 %s, -2, %s' % (pk[2], pk[2]))
        A('buffer_store_dword %s, %s, %s, %s offen' % (pk[2], v(vPSM), s(S_WS, 4), s(sSLOTP)))
    softmax(not PRM['fsm'])
    A.label('L_sc_join')
    stamp(A, 8)
    bottom('L_score_loop0', [0, 1, 2, 3, 4, 5, 8])
    A.label('L_s0_y')
    for x in X2: A(x)
    A('s_waitcnt vmcnt(0)')
    for k2 in range(ND):
        for x in chk(k2, k2 == 0): A(x)
    A('v_cmp_eq_u32 vcc, -1, %s' % v(vT))
    spin_check(A, 'L_s0_y')
    A('s_branch L_s0_z')
    A.label('L_sc_exact')
    softmax(True)
    A('s_branch L_sc_join')
    for w in range(1, 4):
        LP = 'L_score_loop%d' % w
        A.label(LP)
        for x in ['v_pk_mov_b32 %s, 0, 0' % v(2 * i, 2) for i in range(16)]: A(x)
        top()
        if w == 3: A('v_mov_b32 %s, %s' % (v(HV_), s(sSTEP1)))
        stamp(A, 0)
        if w == 2: hint_wait(A, sHMRD, sSTEP1, 2, PRM['sdel'], 22, vHMS, solo=True)
        A('s_barrier')
        stamp(A, 1)
        A(mld(0))
        A('s_barrier')
        if PRM['o2']:
            A(mld(1)); A('s_barrier'); A('s_barrier'); A(mld(2))
        else:
            A('s_barrier'); A(mld(1)); A(mld(2))
        lk = A.newlabel('L_lk'); A.label(lk)
        seq = [(r, k) for k in range(ND) for r in range(8)]
        ck = {}
        for k in range(ND):
            for j, x in enumerate(chk(k, k == 0)): ck[min(8 * k + 1 + j, PRM['lb'] - 3 + j)] = (k, x)
        have = -1
        rd = list(range(ND, 7))
        for i, (r, k) in enumerate(seq):
            if k > have: A('s_waitcnt vmcnt(%d)' % (ND - 1 - k)); have = k
            if i == 0: stamp(A, 2)
            A(smf(v(SC8.accf(r), 4), v(MF + 4 * k, 4), u(SC8.w(r, k), 8)))
            if i in ck:
                kk, x = ck[i]
                if kk > have: A('s_waitcnt vmcnt(%d)' % (ND - 1 - kk)); have = kk
                A(x)
            if i == PRM['lb'] - 1:
                A('v_cmp_eq_u32 vcc, -1, %s' % v(vT))
                spin_check(A, lk, [mld(k2) for k2 in range(ND)] + zero_regs(0, 32))
            if i == PRM['lb']:
                A('s_barrier')
                stamp(A, 3)
            if i >= PRM['lb']:
                for _ in range(2):
                    if rd:
                        kk = rd.pop(0); A('ds_read_b128 %s, %s offset:%d' % (v(MF + 4 * kk, 4), v(vX), L_MEM + kk * 1024))
        assert not rd
        extra = {}
        lw = ['ds_read_b128 %s, %s offset:%d' % (v(SC8.land[(7, k_)] + 4 * hi, 4), v(vSW), (2 * (k_ - 5) + hi) * 1024) for k_ in (5, 6) for hi in range(2)]
        for x, pos in zip(lw, (3, 4, 13, 17)): extra.setdefault(pos, []).append(x)
        extra.setdefault(PRM['b01'], []).extend(['s_waitcnt lgkmcnt(1)', 's_barrier'])
        extra.setdefault(PRM['ba'], []).extend(['s_waitcnt lgkmcnt(0)', 's_barrier'])
        extra.setdefault(31, []).extend(['s_waitcnt lgkmcnt(0)', 's_barrier'])
        q = []; i = 0
        for r in range(8):
            for k in range(ND, 7):
                if r == 0: A('s_waitcnt lgkmcnt(%d)' % (6 - k))
                wv = SC8.w(r, k)
                if wv is None: wv = SC8.land[(r, k)]
                A(smf(v(SC8.accf(r), 4), v(MF + 4 * k, 4), u(wv, 8)))
                if k == ND + 1 and r > 0: q += sc_epi(w, r - 1)
                if q: A(q.pop(0))
                for x in extra.get(i, []): A(x)
                i += 1
        stamp(A, 4)
        for x in q: A(x)
        e7 = sc_epi(w, 7)
        for x in e7: A(x)
        A('s_waitcnt lgkmcnt(1)')
        A('s_barrier')
        A('s_waitcnt lgkmcnt(0)')
        A('s_barrier')
        stamp(A, 5)
        if w == 3:
            for i in range(PRM['ht']): A('s_nop 3')
            hint_send(A, HV_, HA)
            if G.events:
                A('s_memtime s[4:5]')
                A('s_waitcnt lgkmcnt(0)')
                A('s_mov_b32 m0, %s' % s(sSTEP))
                A('s_nop 3')
                A('v_writelane_b32 v79, s4, m0')
        if w == 2: A('s_sleep %d' % PRM['psl'])
        bottom(LP, [0, 1, 2, 3, 4, 5])
    A.label('L_sc_end')
    stamp_acc_out(A)
    if G.events:
        A('s_lshl_b32 s6, %s, 2' % s(sROLE))
        A('s_add_u32 s6, s6, %s' % s(sWAVE))
        A('s_lshl_b32 s6, s6, 8')
        A('s_add_u32 s6, s6, %d' % (EVT + 0x20000))
        A('v_lshrrev_b32 v1, 2, %s' % v(vX))
        A('buffer_store_dword v79, v1, %s, s6 offen' % s(S_WS, 4))
    event(A, 8)
    event_spin(A, 14)
    A('s_branch L_exit')
    emit_stubs(A)

def va_epi(r):
    c = 4 * r
    return ['v_add_f32 %s, %s, %s' % (v(c), v(c), v(c + 2)),
            'v_add_f32 %s, %s, %s' % (v(c + 1), v(c + 1), v(c + 3)),
            'v_cvt_pk_bf16_f32 %s, %s, %s' % (v(ZB + 4 * (r & 1) + (r >> 1)), v(c), v(c + 1))]

sVB = 96
sPD = 97
def u_loads():
    out = []
    for cx in range(2):
        for hi in range(2):
            for p in range(2):
                out.append((['s_add_u32 m0, %s, %d' % (s(sVB), cx * 4096 + hi * 2048)] if p == 0 else []) +
                           ['buffer_load_dwordx4 %s, %s, %s offen offset:%d sc1 lds' % (v(vL16), s(S_WS, 4), s(88 + cx * 2 + hi), p * 1024)])
    return out

def ucheck_code(A, lbl, back, P0, t):
    A.label(lbl)
    A('v_mbcnt_lo_u32_b32 %s, -1, 0' % v(t))
    A('v_mbcnt_hi_u32_b32 %s, -1, %s' % (v(t), v(t)))
    A('v_min_u32 %s, 55, %s' % (v(t), v(t)))
    A('v_lshlrev_b32 %s, 4, %s' % (v(t), v(t)))
    A('s_mov_b32 %s, %d' % (s(sT1), FLG_W2 + 1792))
    A('s_lshr_b32 %s, %s, 2' % (s(sT2), s(sT4)))
    A('s_add_u32 %s, %s, 1' % (s(sT2), s(sT2)))
    A.label(lbl + '_l')
    A('buffer_load_dwordx4 %s, %s, %s, %s offen sc1' % (v(P0, 4), v(t), s(S_WS, 4), s(sT1)))
    A('buffer_load_dwordx4 %s, %s, %s, %s offen offset:896 sc1' % (v(P0 + 4, 4), v(t), s(S_WS, 4), s(sT1)))
    A('s_waitcnt vmcnt(0)')
    A('v_min3_u32 %s, %s, %s, %s' % (v(P0), v(P0), v(P0 + 1), v(P0 + 2)))
    A('v_min3_u32 %s, %s, %s, %s' % (v(P0), v(P0), v(P0 + 3), v(P0 + 4)))
    A('v_min3_u32 %s, %s, %s, %s' % (v(P0), v(P0), v(P0 + 5), v(P0 + 6)))
    A('v_min_u32 %s, %s, %s' % (v(P0), v(P0), v(P0 + 7)))
    A('v_cmp_gt_u32 vcc, %s, %s' % (s(sT2), v(P0)))
    spin_check(A, lbl + '_l', ['s_sleep 8'])
    A('s_lshl_b32 %s, %s, 2' % (s(sUOK), s(sT2)))
    for thr in range(2, 17):
        A('v_cmp_gt_u32 vcc, %d, %s' % (thr, v(P0)))
        A('s_cbranch_vccnz %s' % back)
        A('s_max_u32 %s, %s, %d' % (s(sUOK), s(sUOK), 4 * thr if thr < 16 else 1000))
    A('s_branch %s' % back)

def value_role(A):
    A.label('L_value')
    L = v(vLANE)
    sV = sT4
    A('s_sub_u32 %s, %s, 16' % (s(sV), s(sROLE)))
    lexpr(A, v(vL16), L, [(0, 6, 16)], 0, 'v1')
    A('s_lshl_b32 %s, %s, 13' % (s(sVB), s(sWAVE)))
    A('s_add_u32 %s, %s, %d' % (s(sVB), s(sVB), L_VB))
    A('s_lshl_b32 %s, %s, 11' % (s(sT0), s(sWAVE)))
    A('s_add_u32 %s, %s, %d' % (s(sT0), s(sT0), L_VB + 32768))
    A('v_add_u32 %s, %s, %s' % (v(vVW), s(sT0), v(vL16)))
    A('v_add_u32 %s, %d, %s' % (v(vVR), L_VB, v(vL16)))
    A('s_mul_i32 %s, %s, 20480' % (s(sT0), s(sWAVE)))
    A('s_add_u32 %s, %s, %d' % (s(sT0), s(sT0), L_WL))
    A('v_add_u32 %s, %s, %s' % (v(vLW), s(sT0), v(vL16)))
    A('s_lshl_b32 %s, %s, 9' % (s(sT0), s(sV)))
    A('s_cmp_eq_u32 %s, 0' % s(sWAVE))
    A('s_cselect_b32 %s, %s, 0x70000000' % (s(sT0), s(sT0)))
    FL = PRM['fl']; MO = 128 if FL else 16; HO = 64 if FL else 16
    lexpr(A, v(vMST), L, [(3, 1, 256), (2, 1, 32), (0, 2, 4)] + ([(5, 1, 64), (4, 1, 16)] if FL else [(4, 2, 64)]), s(sT0), 'v1')
    lexpr(A, v(vHIST), L, [(2, 2, 128), (4, 2, 16 if FL else 32), (0, 2, 4)], s(sT0), 'v1')
    A('s_lshl_b32 %s, %s, 6' % (s(sT0), s(sV)))
    lexpr(A, 'v2', L, [(4, 2, 1792), (0, 4, 4)], s(sT0), 'v1')
    A('buffer_load_dword %s, v2, %s, 0 offen' % (v(VR), s(S_M0, 4)))
    A('buffer_load_dword %s, v2, %s, 0 offen offset:896' % (v(VR + 1), s(S_M0, 4)))
    A('s_lshl_b32 %s, %s, 2' % (s(sHWR), s(sV)))
    A('s_add_u32 %s, %s, %d' % (s(sHWR), s(sHWR), HINT_M))
    hint_setup(A, VHV, VHA, True)
    A('v_min_u32 v1, 21, %s' % L)
    A('v_lshlrev_b32 %s, 2, v1' % v(vHM_))
    A('v_min_u32 v1, 15, %s' % L)
    A('v_lshlrev_b32 %s, 2, v1' % v(vHP_))
    A('s_cmp_eq_u32 %s, 2' % s(sWAVE))
    A('s_cselect_b32 %s, 0, 0x70000000' % s(sT0))
    A('v_add_u32 %s, %s, %s' % (v(vHP_), s(sT0), v(vHP_)))
    dbg_arrive(A, D_GRP)
    A('s_lshr_b32 %s, %s, 1' % (s(sT0), s(sV)))
    A('s_add_u32 %s, %s, 112' % (s(sT0), s(sT0)))
    A('s_mul_i32 %s, %s, 28' % (s(sT1), s(sWAVE)))
    A('s_add_u32 %s, %s, %s' % (s(sT0), s(sT0), s(sT1)))
    lexpr(A, 'v8', L, [(2, 2, 7)], s(sT0), 'v1')
    A('v_lshlrev_b32 v8, 6, v8')
    A('v_and_b32 v9, 3, %s' % L)
    A('v_lshl_add_u32 v8, v9, 2, v8')
    A('s_mul_i32 %s, %s, %d' % (s(sUOFF), s(sWAVE), 4 * 28672))
    A('s_lshl_b32 %s, %s, 11' % (s(sT0), s(sV)))
    A('s_add_u32 %s, %s, %s' % (s(sUOFF), s(sUOFF), s(sT0)))
    A('s_add_u32 %s, %s, %d' % (s(sUOFF), s(sUOFF), U_OFF))
    A('s_mul_i32 %s, %s, %d' % (s(sT3), s(sV), WCV))
    A('s_add_u32 %s, %s, %d' % (s(sT3), s(sT3), WIMGV))
    event(A, 3)
    load_weights(A, VA, 32768)
    event(A, 5)
    group_wait(A)
    event(A, 6, v(vT), v(vT + 1))
    event_spin(A, 13, v(vT), v(vT + 1))
    A('s_mov_b32 %s, 0' % s(sSTEP))
    A('s_mov_b32 %s, %d' % (s(sSLOT), MB_OFF))
    A('s_mov_b32 %s, 0' % s(sPD))
    for j in range(2):
        A('v_min_u32 %s, -2, %s' % (v(VR + j), v(VR + j)))
        A('buffer_store_dword %s, %s, %s, %s offen offset:%d' % (v(VR + j), v(vMST), s(S_WS, 4), s(sSLOT), MO * j))
    A('v_mov_b32 %s, 1' % v(VHV))
    A('s_barrier')
    hint_send(A, VHV, VHA)
    def lread(i):
        j = VLDS.index(VORD[i])
        return ['ds_read_b128 %s, %s offset:%d' % (v(LB + 8 * (i & 1) + 4 * hi, 4), v(vLW), (2 * j + hi) * 1024) for hi in range(2)]
    BF = [0, 8, 16, 24, 32, 40, 48, 80, 88]
    OD, PA, PKD = 96, 104, 56
    sP0 = 93
    def top():
        A('s_add_u32 %s, %s, 1' % (s(sSTEP1), s(sSTEP)))
        for j in range(4): A('s_add_u32 %s, %s, %d' % (s(88 + j), s(sUOFF), j * 28672))
    top()
    A.label('L_value_loop')
    if G.stamps != 2: stamp(A, 0)
    ul = u_loads(); nb1 = PRM['nb1']
    extra = {}
    for i in range(2, 10):
        r, k = VORD[i - 2]
        g0 = 5 * r + k - 2
        for j, x in enumerate(lread(i)): extra.setdefault(g0 + (j if (k == 6 and PRM['lsp']) else 0), []).append(x)
    A('s_add_u32 %s, %s, 2' % (s(sT0), s(sSTEP)))
    extra.setdefault(0, []).append('v_mov_b32 %s, %s' % (v(VHV), s(sT0)))
    for x in lread(0) + lread(1) + ['v_pk_mov_b32 %s, 0, 0' % v(2 * i, 2) for i in range(16)]: A(x)
    post = ['s_barrier']
    for j, x in enumerate(ul[:nb1]): post += x
    pp = 'buffer_load_dword %s, %s, %s, %s offen sc1' % (v(vT), v(vHP_), s(S_WS, 4), s(sHPRD))
    if PRM['prime']:
        extra.setdefault(34, []).append(pp); extra.setdefault(39, []).append(pp)
    main_phase(A, VA, 2, PRM['vdel'], post, ul[nb1:], PRM['uev'], extra, va_epi)
    zw = va_epi(7) + ['ds_write_b128 %s, %s offset:%d' % (v(vVW), v(ZB + 4 * p, 4), p * 1024) for p in range(2)]
    for j in range(3): A('s_add_u32 %s, %s, %d' % (s(sP0 + j), s(sSLOT), MB_PO + 4096 * j))
    A('s_add_u32 %s, %s, %d' % (s(sSLOT), s(sSLOT), MB_STEP))
    NB = PRM['nub']
    if not NB:
        A('s_waitcnt vmcnt(0)')
        A('s_barrier')
    def bread(f):
        c, p = f >> 1, f & 1
        return ['ds_read_b128 %s, %s offset:%d' % (v(BF[f % 9] + 4 * hi, 4), v(vVR), c * 4096 + hi * 2048 + p * 1024) for hi in range(2)]
    pre = []
    for f in range(9):
        pre += bread(f)
        if f in (4, 7): pre.append('s_waitcnt lgkmcnt(4)')
    pre += zero_regs(OD, 8) + ['s_waitcnt lgkmcnt(0)']
    A('s_add_u32 %s, %s, %d' % (s(sUOFF), s(sUOFF), 16 * 28672))
    A('s_add_u32 %s, %s, 1' % (s(sSTEP), s(sSTEP)))
    A('s_cmp_lg_u32 %s, 0' % s(sWAVE))
    A('s_cbranch_scc1 L_value_oth')
    npre = 4 if NB else PRM['npre']
    pre1 = []; pre2 = []
    if NB: pre1 = zw + zero_regs(OD, 8) + ['s_waitcnt vmcnt(0)']
    for f in range(9):
        if f == 3 and not NB: pre1.extend(zw + zero_regs(OD, 8))
        (pre1 if f < npre else pre2).extend(bread(f))
        if f in (4, 7) and not NB: (pre1 if f < npre else pre2).append('s_waitcnt lgkmcnt(4)')
    for x in pre1: A(x)
    if G.stamps == 2:
        stamp(A, 10); stamp(A, 3); stamp(A, 5)
    if G.stamps == 2: stamp(A, 0)
    if PRM['solo']: hint_wait(A, sHPRD, sSTEP1, 0, PRM['pdel'], 16, vHP_, solo=True)
    else:
        A('s_cmp_lg_u32 %s, 0' % s(sPD))
        A('s_barrier')
        A('s_cbranch_scc1 L_pv_delay')
        A.label('L_pv_go')
    stamp(A, 9)
    ld = ['buffer_load_dwordx4 %s, %s, %s, %s offen offset:%d sc1' % (v(PA + 4 * c, 4), v(vL16), s(S_WS, 4), s(sP0 + (c >> 2)), (c & 3) * 1024) for c in range(10)]
    for x in ld: A(x)
    for x in pre2: A(x)
    A('s_waitcnt lgkmcnt(%d)' % (PRM['pvw'] if NB else 0))
    A.label('L_pv')
    for f in range(20):
        c, p = f >> 1, f & 1
        if p == 0: A('s_waitcnt vmcnt(%d)' % (9 - c + (1 if f > PRM['vf'] else 0)))
        if f == 0: stamp(A, 6)
        if NB and PRM['pvw'] and f == 4: A('s_waitcnt lgkmcnt(8)')
        if f >= 9: A('s_waitcnt lgkmcnt(%d)' % min(14, sum(len(bread(g)) for g in range(f + 1, min(19, f + 8) + 1))))
        A(smf(v(OD + 4 * p, 4), v(PA + 4 * c, 4), v(BF[f % 9], 8)))
        if f == PRM['vf']: hint_send(A, VHV, VHA)
        if f + 9 < 20:
            for x in bread(f + 9): A(x)
    stamp(A, 7)
    A('v_pk_add_f32 %s, %s, %s' % (v(OD, 2), v(OD, 2), v(OD + 2, 2)))
    A('v_cmp_u_f32 vcc, %s, %s' % (v(OD), v(OD + 1)))
    A('v_pk_add_f32 %s, %s, %s' % (v(OD + 4, 2), v(OD + 4, 2), v(OD + 6, 2)))
    A('s_cbranch_vccnz L_pv_nan')
    A('v_cvt_pk_bf16_f32 %s, %s, %s' % (v(PKD), v(OD), v(OD + 4)))
    A('v_cvt_pk_bf16_f32 %s, %s, %s' % (v(PKD + 1), v(OD + 1), v(OD + 5)))
    A.label('L_pv_ok')
    A('buffer_store_dword %s, %s, %s, %s offen' % (v(PKD), v(vMST), s(S_WS, 4), s(sSLOT)))
    A('buffer_store_dword %s, %s, %s, %s offen offset:%d' % (v(PKD + 1), v(vMST), s(S_WS, 4), s(sSLOT), MO))
    stamp(A, 8)
    if G.stamps:
        A('s_sub_u32 %s, %s, 1' % (s(sSTEP), s(sSTEP)))
        stamp_flush(A, 11, [0, 1, 2, 3, 4, 5, 10, 9, 6, 7][:10] if False else [1, 2, 4, 10, 3, 5, 0, 9, 6, 8])
        A('s_add_u32 %s, %s, 1' % (s(sSTEP), s(sSTEP)))
    A.label('L_value_next')
    top()
    A('s_cmp_lt_u32 %s, 63' % s(sSTEP))
    A('s_cbranch_scc1 L_value_loop')
    stamp_acc_out(A)
    A('s_mov_b32 %s, %d' % (s(sT0), HM_OFF + 63 * HM_STEP))
    for j in range(2): A('buffer_store_dword %s, %s, %s, %s offen offset:%d sc1' % (v(PKD + j), v(vHIST), s(S_WS, 4), s(sT0), HO * j))
    event(A, 8)
    event_spin(A, 14)
    A('s_branch L_exit')
    A.label('L_value_oth')
    A(pp)
    for x in zw[:4]: A(x)
    A(pp)
    for x in zw[4:]: A(x)
    A('s_nop 7')
    if PRM['solo']: A('s_sleep %d' % PRM['vsl'])
    else: hint_wait(A, sHPRD, sSTEP1, 2, PRM['pdel'], 16, vHP_, primed=True)
    A('s_branch L_value_next')
    A.label('L_pv_delay')
    A('s_mov_b32 %s, %s' % (s(sT1), s(sPD)))
    A.label('L_pv_delay2')
    A('s_sub_u32 %s, %s, 1' % (s(sT1), s(sT1)))
    A('s_cmp_lg_u32 %s, 0' % s(sT1))
    A('s_cbranch_scc1 L_pv_delay2')
    A('s_branch L_pv_go')
    A.label('L_pv_nan')
    A('v_max3_u32 %s, %s, %s, %s' % (v(vT), v(PA), v(PA + 1), v(PA + 2)))
    for i in range(3, 39, 2): A('v_max3_u32 %s, %s, %s, %s' % (v(vT), v(vT), v(PA + i), v(PA + i + 1)))
    A('v_max_u32 %s, %s, %s' % (v(vT), v(vT), v(PA + 39)))
    A('v_cmp_eq_u32 vcc, -1, %s' % v(vT))
    spin_check(A, 'L_pv', ld + pre + ['s_add_u32 %s, %s, 1' % (s(sPD), s(sPD)), 's_min_u32 %s, %s, 6' % (s(sPD), s(sPD))])
    A('v_cvt_pk_bf16_f32 %s, %s, %s' % (v(PKD), v(OD), v(OD + 4)))
    A('v_cvt_pk_bf16_f32 %s, %s, %s' % (v(PKD + 1), v(OD + 1), v(OD + 5)))
    A('v_min_u32 %s, -2, %s' % (v(PKD), v(PKD)))
    A('v_min_u32 %s, -2, %s' % (v(PKD + 1), v(PKD + 1)))
    A('s_branch L_pv_ok')
    emit_stubs(A)

def helper_role(A):
    A.label('L_helper')
    diag(A, 5)
    L = v(vLANE)
    sHW, sJ, sXS, sXD, sSI = sT3, sPRST, sXOFF, sXPF, sUOFF
    LA = PRM['pla']; LT = PRM['plt']
    A('s_sub_u32 %s, %s, 30' % (s(sHW), s(sROLE)))
    A('s_lshl_b32 %s, %s, 2' % (s(sHW), s(sHW)))
    A('s_add_u32 %s, %s, %s' % (s(sHW), s(sHW), s(sWAVE)))
    A('s_min_u32 %s, %s, 6' % (s(sT4), s(sHW)))
    A('s_lshl_b32 %s, %s, 10' % (s(sT0), s(sT4)))
    lexpr(A, 'v10', L, [(0, 6, 16)], s(sT0), 'v1')
    A('s_cmp_lt_u32 %s, 7' % s(sHW))
    A('s_cselect_b32 %s, %s, 0x70000000' % (s(sT0), s(sT0)))
    lexpr(A, 'v11', L, [(4, 2, 256), (1, 1, 128), (2, 2, 32), (0, 1, 16)], s(sT0), 'v1')
    A('s_lshl_b32 %s, %s, 12' % (s(sT0), s(sHW)))
    lexpr(A, 'v12', L, [(0, 5, 128)], s(sT0), 'v1')
    A('s_lshl_b32 %s, %s, 10' % (s(sT0), s(sHW)))
    lexpr(A, 'v13', L, [(3, 2, 8192), (0, 3, 128)], s(sT0), 'v1')
    A('v_mov_b32 v2, %d' % OOB)
    A('v_cmp_gt_u32 vcc, %d, v13' % MB_STEP)
    A('v_cndmask_b32 v13, v2, v13, vcc')
    A('s_lshl_b32 %s, %s, 10' % (s(sT0), s(sHW)))
    lexpr(A, 'v14', L, [(0, 6, 16)], s(sT0), 'v1')
    A('v_add_u32 v15, 8192, v14')
    A('s_cmp_lt_u32 %s, 2' % s(sHW))
    A('s_cselect_b32 %s, 16384, 0' % s(sT0))
    A('v_add_u32 v9, %s, v14' % s(sT0))
    for i in range(4): A('v_mov_b32 %s, -1' % v(4 + i))
    A('s_lshl_b32 %s, %s, 2' % (s(sHWR), s(sHW)))
    A('s_add_u32 %s, %s, %d' % (s(sHWR), s(sHWR), HINT_M + 14 * 4))
    A('v_lshlrev_b32 v1, 8, %s' % L)
    A('v_mov_b32 v2, %d' % OOB)
    A('v_cmp_gt_u32 vcc, %d, %s' % (PRM['nrep'], L))
    A('v_cndmask_b32 v8, v2, v1, vcc')
    A('s_mov_b32 %s, 0' % s(sJ))
    A('s_cmp_eq_u32 %s, 7' % s(sHW))
    A('s_cselect_b32 %s, %d, 1000' % (s(sUOK), 1000 if G.dev_nowait else 0))
    A('s_mov_b32 %s, 0' % s(sXS))
    A('s_mov_b32 %s, %d' % (s(sXD), XF_OFF + LT * 32768))
    A('s_mov_b32 %s, %d' % (s(sSI), MB_OFF))
    def prepare(touch):
        A('s_sub_u32 %s, %s, 1' % (s(sT0), s(sJ)))
        A('s_max_i32 %s, %s, 0' % (s(sT0), s(sT0)))
        A('s_min_u32 %s, %s, %s' % (s(sT0), s(sT0), s(sUOK)))
        A('v_mov_b32 v3, %s' % s(sT0))
        A('buffer_store_dword v3, v8, %s, %s offen' % (s(S_WS, 4), s(sHWR)))
        if touch:
            A('s_add_u32 %s, %s, %d' % (s(sT0), s(sSLOT), LT * MB_STEP))
            A('buffer_load_dword v21, v13, %s, %s offen sc1' % (s(S_WS, 4), s(sT0)))
            A('buffer_load_dword v20, v12, %s, %s offen sc1' % (s(S_WS, 4), s(sXD)))
            A('s_add_u32 %s, %s, 32768' % (s(sXD), s(sXD)))
        e = A.newlabel('L_hsk')
        A('s_cmp_ge_u32 %s, 64' % s(sJ))
        A('s_cbranch_scc1 %s' % e)
        for a_ in ('v14', 'v15', 'v9'): A('buffer_store_dwordx4 v[4:7], %s, %s, %s offen' % (a_, s(S_WS, 4), s(sSI)))
        A('s_add_u32 %s, %s, 1' % (s(sJ), s(sJ)))
        A('s_add_u32 %s, %s, %d' % (s(sSI), s(sSI), MB_STEP))
        A.label(e)
    A.label('L_helper_pre')
    A('s_waitcnt vmcnt(0)')
    prepare(False)
    A('s_cmp_le_u32 %s, %d' % (s(sJ), LA + 1))
    A('s_cbranch_scc1 L_helper_pre')
    if not G.dev_nowait: wait_init(A, D_XG)
    dbg_arrive(A, D_GRP)
    group_wait(A)
    A('s_mov_b32 %s, 0' % s(sSTEP))
    A('s_mov_b32 %s, %d' % (s(sSLOT), MB_OFF))
    A('s_mov_b32 %s, %d' % (s(sHM), HM_OFF))
    A('s_cmp_eq_u32 %s, 7' % s(sHW))
    A('s_cbranch_scc1 L_helper7')
    A.label('L_helper_warm')
    for i in range(LT):
        A('s_mov_b32 %s, %d' % (s(sT0), XF_OFF + i * 32768))
        A('buffer_load_dword v20, v12, %s, %s offen sc1' % (s(S_WS, 4), s(sT0)))
        A('s_mov_b32 %s, %d' % (s(sT0), MB_OFF + i * MB_STEP))
        A('buffer_load_dword v21, v13, %s, %s offen sc1' % (s(S_WS, 4), s(sT0)))
    A('buffer_load_dwordx4 v[16:19], v10, %s, %s offen sc1' % (s(S_WS, 4), s(sSLOT)))
    A('s_waitcnt vmcnt(0)')
    check4(A, 16, 'L_helper_warm', ['s_sleep 8'])
    diag(A, 6)
    A.label('L_helper_loop')
    l = A.newlabel('L_hp'); A.label(l)
    A('buffer_load_dwordx4 v[16:19], v10, %s, %s offen sc1' % (s(S_WS, 4), s(sSLOT)))
    A('s_waitcnt vmcnt(0)')
    check4(A, 16, l, ['s_sleep 1'])
    A('buffer_store_dwordx4 v[16:19], v11, %s, %s offen sc1' % (s(S_WS, 4), s(sHM)))
    prepare(True)
    if G.diag:
        for st_, ix in ((1, 7), (2, 8), (8, 9), (63, 10)):
            lb = A.newlabel('L_dg')
            A('s_cmp_lg_u32 %s, %d' % (s(sSTEP), st_)); A('s_cbranch_scc1 %s' % lb); diag(A, ix); A.label(lb)
    A('s_add_u32 %s, %s, %d' % (s(sSLOT), s(sSLOT), MB_STEP))
    A('s_add_u32 %s, %s, %d' % (s(sHM), s(sHM), HM_STEP))
    A('s_add_u32 %s, %s, 1' % (s(sSTEP), s(sSTEP)))
    A('s_cmp_lt_u32 %s, 64' % s(sSTEP))
    A('s_cbranch_scc1 L_helper_loop')
    A('s_waitcnt vmcnt(0)')
    event(A, 8)
    A('s_branch L_exit')
    A.label('L_helper7')
    A('s_cmp_ge_u32 %s, 64' % s(sUOK))
    A('s_cbranch_scc1 L_h7_b')
    A('s_mov_b32 %s, 0' % s(sT4))
    A('s_branch L_hucheck')
    A.label('L_hucheck_done')
    A('s_sub_u32 %s, %s, 1' % (s(sT0), s(sJ)))
    A('s_min_u32 %s, %s, %s' % (s(sT0), s(sT0), s(sUOK)))
    A('v_mov_b32 v3, %s' % s(sT0))
    A('buffer_store_dword v3, v8, %s, %s offen' % (s(S_WS, 4), s(sHWR)))
    A.label('L_h7_b')
    A('buffer_load_dwordx4 v[16:19], v15, %s, %s offen sc1' % (s(S_WS, 4), s(sSLOT)))
    A('s_waitcnt vmcnt(0)')
    check4(A, 16, 'L_helper7', ['s_sleep 4'])
    prepare(True)
    A('s_add_u32 %s, %s, %d' % (s(sSLOT), s(sSLOT), MB_STEP))
    A('s_add_u32 %s, %s, 1' % (s(sSTEP), s(sSTEP)))
    A('s_cmp_lt_u32 %s, 63' % s(sSTEP))
    A('s_cbranch_scc1 L_helper7')
    A('s_branch L_exit')
    ucheck_code(A, 'L_hucheck', 'L_hucheck_done', 24, 22)
    emit_stubs(A)
```

```python
from common import *
import struct

sRHO, sH, sQ, sTY, sA = 71, 72, 73, 74, 75
sSC, sO1, sO2, sO3, sSEG, sCNT = 76, 77, 78, 79, 80, 81
S_W1 = 92
LW_R2 = 0
LW_ST = 36864
LW_WT = 36864 + 33792
def f2u(x): return struct.unpack('<I', struct.pack('<f', x))[0]

def wait_dbg(A, idx, val, sleep=2):
    l = A.newlabel('L_wd'); e = A.newlabel('L_wd_done')
    A('s_cmp_lg_u32 %s, 0' % s(sWAVE))
    A('s_cbranch_scc1 %s' % e)
    if idx in (D_INIT, D_XG): lexpr(A, 'v2', 'v0', [(0, 2, 64)], idx * 4, 'v3')
    else: A('v_mov_b32 v2, %d' % (idx * 4))
    A.label(l)
    A('buffer_load_dword v3, v2, %s, 0 offen sc1' % s(S_DBG, 4))
    A('s_waitcnt vmcnt(0)')
    A('v_cmp_gt_u32 vcc, %d, v3' % val)
    spin_check(A, l, ['s_sleep %d' % sleep])
    A.label(e)
    A('s_barrier')

def early_prefetch(A):
    e = A.newlabel('L_ep')
    A('s_cmp_eq_u32 %s, 0' % s(sXCC))
    A('s_cbranch_scc1 %s' % e)
    A('s_lshr_b32 %s, s2, 3' % s(sROLE))
    role_decode(A)
    lexpr(A, 'v5', 'v0', [(2, 4, 8192), (0, 2, 128)], 0, 'v6')
    A('s_and_b32 %s, %s, 1' % (s(sT2), s(sWAVE)))
    A('s_lshl_b32 %s, %s, 1' % (s(sT0), s(sQ)))
    A('s_add_u32 %s, %s, %s' % (s(sT0), s(sT0), s(sT2)))
    A('s_lshl_b32 %s, %s, 18' % (s(sT0), s(sT0)))
    A('s_lshl_b32 %s, %s, 9' % (s(sT1), s(sH)))
    A('s_add_u32 %s, %s, %s' % (s(sT0), s(sT0), s(sT1)))
    A('s_add_u32 %s, %s, %d' % (s(sT1), s(sT0), 16 * 8192))
    l2 = A.newlabel('L_ep2'); l3 = A.newlabel('L_ep3')
    A('s_cmp_ge_u32 %s, 2' % s(sWAVE))
    A('s_cbranch_scc1 %s' % l2)
    for j in range(2): A('buffer_load_dword v7, v5, %s, %s offen' % (s(S_W1, 4), s(sT0 + j)))
    A('s_branch %s' % e)
    A.label(l2)
    A('s_cmp_lg_u32 %s, 0' % s(sTY))
    A('s_cbranch_scc1 %s' % l3)
    for j in range(2): A('buffer_load_dword v7, v5, %s, %s offen' % (s(S_WK, 4), s(sT0 + j)))
    A('s_branch %s' % e)
    A.label(l3)
    A('v_lshlrev_b32 v5, 7, v0')
    A('s_lshl_b32 %s, %s, 1' % (s(sT0), s(sQ)))
    A('s_add_u32 %s, %s, %s' % (s(sT0), s(sT0), s(sT2)))
    A('s_lshl_b32 %s, %s, 14' % (s(sT0), s(sT0)))
    A('s_mul_i32 %s, %s, 229376' % (s(sT1), s(sH)))
    A('s_add_u32 %s, %s, %s' % (s(sT0), s(sT0), s(sT1)))
    A('s_add_u32 %s, %s, 8192' % (s(sT1), s(sT0)))
    for j in range(2): A('buffer_load_dword v7, v5, %s, %s offen' % (s(S_WO, 4), s(sT0 + j)))
    A.label(e)

def worker_entry(A):
    A.label('L_worker')
    A('s_mov_b32 %s, %d' % (s(sSPIN), SPIN_MAX))
    role_decode(A)

def role_decode(A):
    A('s_sub_u32 %s, %s, 1' % (s(sRHO), s(sXCC)))
    A('s_lshl_b32 %s, %s, 5' % (s(sRHO), s(sRHO)))
    A('s_add_u32 %s, %s, %s' % (s(sRHO), s(sRHO), s(sROLE)))
    A('s_mul_i32 %s, %s, 9363' % (s(sT0), s(sRHO)))
    A('s_lshr_b32 %s, %s, 16' % (s(sT0), s(sT0)))
    A('s_mul_i32 %s, %s, 7' % (s(sT1), s(sT0)))
    A('s_sub_u32 %s, %s, %s' % (s(sQ), s(sRHO), s(sT1)))
    A('s_lshr_b32 %s, %s, 4' % (s(sTY), s(sT0)))
    A('s_and_b32 %s, %s, 15' % (s(sH), s(sT0)))
    A('s_mul_i32 %s, %s, 7' % (s(sA), s(sH)))
    A('s_add_u32 %s, %s, %s' % (s(sA), s(sA), s(sQ)))
    A('s_cmp_eq_u32 %s, 0' % s(sTY))
    A('s_cselect_b32 %s, %s, %s' % (s(S_W1), s(S_WQ), s(S_WV)))
    A('s_cselect_b32 %s, %s, %s' % (s(S_W1 + 1), s(S_WQ + 1), s(S_WV + 1)))
    A('s_mov_b32 %s, 3670016' % s(S_W1 + 2))
    A('s_mov_b32 %s, 0x00020000' % s(S_W1 + 3))
    A('s_cselect_b32 %s, 0x%x, 1.0' % (s(sSC), f2u(SCALE_LOG2E)))

def zero_flags(A):
    A('s_cmp_eq_u32 %s, 3' % s(sWAVE))
    A('s_cselect_b32 %s, 0, 0x70000000' % s(sT1))
    A('s_cselect_b64 vcc, 1, 0')
    lexpr(A, 'v13', 'v0', [(0, 6, 16)], s(sT1), 'v1')
    A('v_mov_b32 v3, %d' % OOB)
    A('s_and_b32 %s, %s, 3' % (s(sT0), s(sRHO)))
    A('s_lshl_b32 %s, %s, 6' % (s(sT0), s(sT0)))
    A('s_add_u32 %s, %s, %d' % (s(sT0), s(sT0), D_INIT * 4))
    A('v_mov_b32 v1, %s' % s(sT0))
    A('v_cndmask_b32 v11, v3, v1, vcc')
    A('s_lshl_b32 %s, %s, 6' % (s(sT0), s(sRHO)))
    A('s_mul_i32 %s, %s, 192' % (s(sT2), s(sRHO)))
    A('s_add_u32 %s, %s, %d' % (s(sT2), s(sT2), 0x4000 - 64))
    A('v_mov_b32 v1, %s' % s(sT0))
    A('v_mov_b32 v2, %s' % s(sT2))
    A('v_cmp_gt_u32 vcc, 16, v0')
    A('v_cndmask_b32 v2, v2, v1, vcc')
    A('v_lshl_add_u32 v2, v0, 2, v2')
    A('v_add_u32 v2, %s, v2' % s(sT1))
    A('v_mov_b32 v3, 0')
    A('v_mov_b32 v12, 1')
    for i in range(4): A('v_mov_b32 %s, -1' % v(16 + i))
    A('s_mov_b32 %s, %d' % (s(sT0), FLAGS))
    A('buffer_store_dword v3, v2, %s, %s offen sc1' % (s(S_WS, 4), s(sT0)))
    A('s_lshl_b32 %s, %s, 11' % (s(sT0), s(sRHO)))
    A('s_add_u32 %s, %s, %d' % (s(sT0), s(sT0), HM_OFF))
    A('buffer_store_dwordx4 v[16:19], v13, %s, %s offen sc1' % (s(S_WS, 4), s(sT0)))
    A('buffer_store_dwordx4 v[16:19], v13, %s, %s offen offset:1024 sc1' % (s(S_WS, 4), s(sT0)))

sXGD = 100
def xg_load(A):
    A('s_lshl_b32 %s, %s, 2' % (s(sT0), s(sRHO)))
    A('s_add_u32 %s, %s, %s' % (s(sT0), s(sT0), s(sWAVE)))
    A('s_mul_i32 %s, %s, 9363' % (s(sT1), s(sT0)))
    A('s_lshr_b32 %s, %s, 16' % (s(sT1), s(sT1)))
    A('s_mul_i32 %s, %s, 7' % (s(sT2), s(sT1)))
    A('s_sub_u32 %s, %s, %s' % (s(sT2), s(sT0), s(sT2)))
    A('s_lshl_b32 %s, %s, 7' % (s(sT2), s(sT2)))
    A('s_lshr_b32 %s, %s, 1' % (s(sT3), s(sT1)))
    A('s_mul_i32 %s, %s, 28672' % (s(sT3), s(sT3)))
    A('s_add_u32 %s, %s, %s' % (s(sT2), s(sT2), s(sT3)))
    A('s_and_b32 %s, %s, 1' % (s(sT3), s(sT1)))
    A('s_mul_i32 %s, %s, %d' % (s(sT3), s(sT3), 4 * 896))
    A('s_add_u32 %s, %s, %s' % (s(sT2), s(sT2), s(sT3)))
    lexpr(A, 'v48', 'v0', [(2, 2, 8 * 896), (0, 2, 896), (4, 2, 16)], 0, 'v1')
    A('buffer_load_dwordx4 v[40:43], v48, %s, %s offen' % (s(S_BX, 4), s(sT2)))
    A('buffer_load_dwordx4 v[44:47], v48, %s, %s offen offset:64' % (s(S_BX, 4), s(sT2)))
    A('s_lshl_b32 %s, %s, 11' % (s(sXGD), s(sT0)))
    A('s_add_u32 %s, %s, %d' % (s(sXGD), s(sXGD), XG_OFF))
    A('s_lshr_b32 %s, %s, 1' % (s(sT1), s(sT1)))
    A('s_mul_i32 %s, %s, 14' % (s(sT2), s(sT1)))
    A('s_sub_u32 %s, %s, %s' % (s(sT0), s(sT0), s(sT2)))
    A('s_lshl_b32 %s, %s, 15' % (s(sXGD + 1), s(sT1)))
    A('s_lshl_b32 %s, %s, 11' % (s(sT2), s(sT0)))
    A('s_add_u32 %s, %s, %s' % (s(sXGD + 1), s(sXGD + 1), s(sT2)))
    A('s_add_u32 %s, %s, %d' % (s(sXGD + 1), s(sXGD + 1), XF_OFF))
    A('s_mul_i32 %s, %s, 28672' % (s(sT1), s(sT1)))
    A('s_lshr_b32 %s, %s, 1' % (s(sT2), s(sT0)))
    A('s_lshl_b32 %s, %s, 5' % (s(sT2), s(sT2)))
    A('s_add_u32 %s, %s, %s' % (s(sT1), s(sT1), s(sT2)))
    A('s_and_b32 %s, %s, 1' % (s(sT2), s(sT0)))
    A('s_mul_i32 %s, %s, 896' % (s(sT2), s(sT2)))
    A('s_add_u32 %s, %s, %s' % (s(sT1), s(sT1), s(sT2)))
    lexpr(A, 'v49', 'v0', [(3, 1, 16 * 896), (0, 2, 4 * 896), (2, 1, 2 * 896), (5, 1, 224), (4, 1, 16)], 0, 'v1')
    A('buffer_load_dwordx4 v[32:35], v49, %s, %s offen' % (s(S_BX, 4), s(sT1)))
    A('buffer_load_dwordx4 v[36:39], v49, %s, %s offen offset:448' % (s(S_BX, 4), s(sT1)))
    A('v_lshlrev_b32 v48, 4, v0')

WF = 256
vST = 4
def phase_w1(A):
    W2F = 256
    AFR = (64, 96)
    DD = (128, 160)
    PC = 192
    vSRC, vRD, vDST, vR2W, vR2R, vG2 = 16, 24, 28, 8, 9, 10
    R2 = 3 * 32768
    sB1, sCI, sRING, sCS = sO3, sSEG, sCNT, 83
    vm = ['i', 'i', 'i']
    done = [0]
    def V(x, tag):
        A(x); vm.append(tag)
    def vwait(tag):
        last = max(i for i, tg in enumerate(vm) if tg == tag)
        return 's_waitcnt vmcnt(%d)' % (len(vm) - 1 - last)
    A('s_cmp_lg_u32 %s, 0' % s(sTY))
    A('s_cbranch_scc1 L_w1_b')
    lexpr(A, v(vG2), 'v0', [(5, 1, 8192), (0, 5, 16)], 0, 'v1')
    A('s_lshl_b32 %s, %s, 2' % (s(sT0), s(sQ)))
    A('s_add_u32 %s, %s, %s' % (s(sT0), s(sT0), s(sWAVE)))
    A('s_lshl_b32 %s, %s, 17' % (s(sT0), s(sT0)))
    A('s_lshl_b32 %s, %s, 9' % (s(sT1), s(sH)))
    A('s_add_u32 %s, %s, %s' % (s(sT0), s(sT0), s(sT1)))
    for j in range(8):
        A('buffer_load_dwordx4 %s, %s, %s, %s offen' % (v(64 + 4 * j, 4), v(vG2), s(S_WK, 4), s(sT0)))
        if j < 7: A('s_add_u32 %s, %s, 16384' % (s(sT0), s(sT0)))
    A('s_branch L_w1_c')
    A.label('L_w1_b')
    if PRM['bdel']: A('s_sleep %d' % PRM['bdel'])
    lexpr(A, v(vG2), 'v0', [(3, 3, 896), (0, 3, 16)], 0, 'v1')
    A('s_mul_i32 %s, %s, 229376' % (s(sT0), s(sH)))
    A('s_mul_i32 %s, %s, %d' % (s(sT1), s(sWAVE), 64 * 896))
    A('s_add_u32 %s, %s, %s' % (s(sT0), s(sT0), s(sT1)))
    A('s_lshl_b32 %s, %s, 7' % (s(sT1), s(sQ)))
    A('s_add_u32 %s, %s, %s' % (s(sT0), s(sT0), s(sT1)))
    for j in range(8):
        A('buffer_load_dwordx4 %s, %s, %s, %s offen' % (v(64 + 4 * j, 4), v(vG2), s(S_WO, 4), s(sT0)))
        if j < 7: A('s_add_u32 %s, %s, %d' % (s(sT0), s(sT0), 8 * 896))
    A.label('L_w1_c')
    vm.extend(['w2'] * 8)
    A('v_lshrrev_b32 v1, 5, v0')
    A('v_and_b32 v2, 31, v0')
    A('v_xor_b32 v2, v2, v1')
    A('v_lshlrev_b32 v1, 13, v1')
    for j in range(8):
        g = j >> 1
        rowoff = 16 * (g >> 1) + 4 * (g & 1) + 8 * (j & 1)
        A('v_xor_b32 v3, %d, v2' % (2 * j))
        A('v_lshl_add_u32 v3, v3, 4, v1')
        A('v_add_u32 %s, %d, v3' % (v(vSRC + j), rowoff * 8192))
    A('s_lshl_b32 %s, %s, 9' % (s(sB1), s(sH)))
    A('s_lshl_b32 %s, %s, 13' % (s(sRING), s(sWAVE)))
    if PRM['wrot'] == 3:
        A('s_and_b32 %s, %s, 1' % (s(sT0), s(sQ)))
        A('s_lshl_b32 %s, %s, 2' % (s(sT0), s(sT0)))
    else: A('s_mul_i32 %s, %s, %d' % (s(sT0), s(sQ), PRM['wrot']))
    A('s_add_u32 %s, %s, %s' % (s(sT0), s(sT0), s(sWAVE)))
    for i in range(4):
        A('s_add_u32 %s, %s, %d' % (s(96 + i), s(sT0), 4 * i))
        A('s_sub_u32 %s, %s, 14' % (s(sT1), s(96 + i)))
        A('s_cmp_ge_u32 %s, 14' % s(96 + i))
        A('s_cselect_b32 %s, %s, %s' % (s(96 + i), s(sT1), s(96 + i)))
    def dma(tl):
        i, T = tl >> 1, tl & 1
        o = [('s_lshl_b32 %s, %s, 18' % (s(sO2), s(96 + i)), None), ('s_add_u32 %s, %s, %s' % (s(sO2), s(sO2), s(sB1)), None)]
        if T: o.append(('s_add_u32 %s, %s, %d' % (s(sO2), s(sO2), 2 * 8192), None))
        for j in range(8):
            o.append(('s_add_u32 m0, %s, %d' % (s(sRING), (tl & 3) * 32768 + j * 1024), None))
            o.append(('buffer_load_dwordx4 %s, %s, %s offen%s lds' % (v(vSRC + j), s(S_W1, 4), s(sO2), PRM_S['wfl']), 't%d' % tl))
        return o
    def emit(x):
        if x[1]: V(x[0], x[1])
        elif callable(x[0]): A(x[0]())
        else: A(x[0])
    for x in dma(0): emit(x)
    A(vwait('i'))
    V('buffer_atomic_add v12, v11, %s, 0 offen' % s(S_DBG, 4), 'at')
    for x in dma(1): emit(x)
    A('v_and_b32 v1, 15, v0')
    A('v_lshrrev_b32 v2, 4, v0')
    A('v_xor_b32 v2, v2, v1')
    A('v_lshl_add_u32 v1, v1, 9, %s' % s(sRING))
    for k in range(4):
        A('v_xor_b32 v3, %d, v2' % (4 * k))
        A('v_lshl_add_u32 %s, v3, 4, v1' % v(vRD + k))
    A('s_cmp_lg_u32 %s, 0' % s(sTY))
    A('s_cbranch_scc1 L_w1_b2')
    A('s_mul_i32 %s, %s, %d' % (s(sT0), s(sWAVE), 16 * 528))
    A('s_add_u32 %s, %s, %d' % (s(sT0), s(sT0), R2))
    lexpr(A, v(vR2W), 'v0', [(5, 1, 528), (0, 5, 16)], s(sT0), 'v1')
    lexpr(A, v(vR2R), 'v0', [(0, 4, 528), (4, 2, 16)], R2, 'v1')
    A('s_mul_i32 %s, %s, %d' % (s(sT0), s(sH), WCU))
    A('s_lshl_b32 %s, %s, 12' % (s(sT1), s(sQ)))
    A('s_add_u32 %s, %s, %s' % (s(sT0), s(sT0), s(sT1)))
    lexpr(A, v(vDST), 'v0', [(0, 6, 16)], s(sT0), 'v1')
    for nt in range(1, 4): A('v_add_u32 %s, %d, %s' % (v(vDST + nt), nt * 1024, v(vDST)))
    A('s_mov_b32 %s, 28672' % s(sCS))
    A(vwait('w2'))
    levent(A, 1)
    for j in range(8): A('ds_write_b128 %s, %s offset:%d' % (v(vR2W), v(64 + 4 * j, 4), j * 1056))
    A('s_waitcnt lgkmcnt(0)')
    A('s_barrier')
    for nt in range(4):
        for ks in range(8):
            A('ds_read_b128 %s, %s offset:%d' % (u(W2F + (nt * 8 + ks) * 4, 4), v(vR2R), nt * 16 * 528 + ks * 64))
            if ks % 4 == 3: A('s_waitcnt lgkmcnt(8)')
    A('s_branch L_w1_c2')
    A.label('L_w1_b2')
    A('s_mul_i32 %s, %s, %d' % (s(sT0), s(sWAVE), 64 * 144))
    A('s_add_u32 %s, %s, %d' % (s(sT0), s(sT0), R2))
    lexpr(A, v(vR2W), 'v0', [(3, 3, 144), (0, 3, 8)], s(sT0), 'v1')
    lexpr(A, v(vR2R), 'v0', [(4, 2, 8 * 144), (2, 2, 144), (0, 2, 8)], R2, 'v1')
    A('s_mul_i32 %s, %s, %d' % (s(sT0), s(sQ), 2 * WCV))
    A('s_lshl_b32 %s, %s, 11' % (s(sT1), s(sH)))
    A('s_add_u32 %s, %s, %s' % (s(sT0), s(sT0), s(sT1)))
    A('s_add_u32 %s, %s, %d' % (s(sT0), s(sT0), WIMGV))
    lexpr(A, v(vDST), 'v0', [(0, 6, 16)], s(sT0), 'v1')
    for nt in range(1, 4): A('v_add_u32 %s, %d, %s' % (v(vDST + nt), (nt & 1) * WCV + (nt >> 1) * 1024, v(vDST)))
    A('s_mov_b32 %s, 32768' % s(sCS))
    A('s_mov_b32 %s, 0x05040100' % s(sT0))
    A('s_mov_b32 %s, 0x07060302' % s(sT1))
    A(vwait('w2'))
    levent(A, 1)
    for j in range(8):
        r, o = 64 + 4 * j, 96 + 4 * j
        A('v_perm_b32 %s, %s, %s, %s' % (v(o), v(r + 1), v(r), s(sT0)))
        A('v_perm_b32 %s, %s, %s, %s' % (v(o + 1), v(r + 3), v(r + 2), s(sT0)))
        A('v_perm_b32 %s, %s, %s, %s' % (v(o + 2), v(r + 1), v(r), s(sT1)))
        A('v_perm_b32 %s, %s, %s, %s' % (v(o + 3), v(r + 3), v(r + 2), s(sT1)))
        A('ds_write_b64 %s, %s offset:%d' % (v(vR2W), v(o, 2), j * 8 * 144))
        A('ds_write_b64 %s, %s offset:%d' % (v(vR2W), v(o + 2, 2), j * 8 * 144 + 64))
        if j == 4: A('s_waitcnt lgkmcnt(4)')
    A('s_waitcnt lgkmcnt(0)')
    A('s_barrier')
    for nt in range(4):
        for ks in range(8):
            for tt in range(2):
                A('ds_read_b64_tr_b16 %s, %s offset:%d' % (u(W2F + (nt * 8 + ks) * 4 + 2 * tt, 2), v(vR2R), (32 * ks + 4 * tt) * 144 + (nt >> 1) * 64 + (nt & 1) * 32))
            if ks % 2 == 1: A('s_waitcnt lgkmcnt(8)')
    A.label('L_w1_c2')
    for x in dma(2): emit(x)
    xst = ['buffer_store_dwordx4 v[32:35], v48, %s, %s offen sc1' % (s(S_WS, 4), s(sXGD + 1)),
           'buffer_store_dwordx4 v[36:39], v48, %s, %s offen offset:1024 sc1' % (s(S_WS, 4), s(sXGD + 1)),
           'buffer_store_dwordx4 v[40:43], v48, %s, %s offen sc1' % (s(S_WS, 4), s(sXGD)),
           'buffer_store_dwordx4 v[44:47], v48, %s, %s offen offset:1024 sc1' % (s(S_WS, 4), s(sXGD))]
    def reads(tl):
        o = [((lambda tl=tl: vwait('t%d' % tl)), None)]
        for ks in range(8):
            off = (tl & 3) * 32768 + (ks >> 2) * 256
            if off > 65535: reg, off = vRD + 36 + (ks & 3), off - 65536
            else: reg = vRD + (ks & 3)
            o.append(('ds_read_b128 %s, %s offset:%d' % (v(AFR[tl & 1] + 4 * ks, 4), v(reg), off), None))
        return o
    for k in range(4): A('v_add_u32 %s, 0x10000, %s' % (v(vRD + 36 + k), v(vRD + k)))
    def post(i):
        D = DD[i & 1]
        o = [('s_mul_i32 %s, %s, %s' % (s(sT3), s(96 + i), s(sCS)), None)]
        for nt in range(4):
            for T in range(2):
                d = D + (T * 4 + nt) * 4
                for r in range(4): o.append(('v_mul_f32 %s, %s, %s' % (v(d + r), s(sSC), v(d + r)), None))
                pc = PC + (i * 4 + nt) * 4 + 2 * T
                o.append(('v_cvt_pk_bf16_f32 %s, %s, %s' % (v(pc), v(d), v(d + 1)), None))
                o.append(('v_cvt_pk_bf16_f32 %s, %s, %s' % (v(pc + 1), v(d + 2), v(d + 3)), None))
            o.append(('buffer_store_dwordx4 %s, %s, %s, %s offen sc1' % (v(PC + (i * 4 + nt) * 4, 4), v(vDST + nt), s(S_WS, 4), s(sT3)), 'st%d' % i))
        return o
    levent(A, 2)
    for x in reads(0): emit(x)
    A('s_waitcnt lgkmcnt(0)')
    A('s_barrier')
    A('s_lshl_b32 %s, %s, 6' % (s(sT0), s(sRHO)))
    A('s_lshl_b32 %s, %s, 2' % (s(sT1), s(sWAVE)))
    A('s_add_u32 %s, %s, %s' % (s(sT0), s(sT0), s(sT1)))
    A('s_add_u32 %s, %s, %d' % (s(sT0), s(sT0), FLG_W1))
    lane0_addr(A, 'v14', s(sT0))
    q2 = []
    for tl in range(8):
        if tl == PRM['wxs']:
            A(vwait('xl'))
            for x in xst: V(x, 'xs')
        if tl == 6:
            A(vwait('xs'))
            A('s_barrier')
            A('v_mov_b32 v15, 1')
            V('buffer_atomic_add v15, v11, %s, 0 offen offset:%d' % (s(S_DBG, 4), (D_XG - D_INIT) * 4), 'at')
        if tl == PRM['wxl']:
            xg_load(A); vm.extend(['xl'] * 4)
        if tl == 6:
            for x in q2: emit(x)
            q2 = []
            A('s_cmp_ge_u32 %s, 2' % s(sWAVE))
            A('s_cbranch_scc0 L_w1_last')
            for x in post(2):
                if callable(x[0]): A(x[0]())
                else: A(x[0])
            A('s_branch L_w1_done')
            A.label('L_w1_last')
        A('s_waitcnt lgkmcnt(0)')
        if tl == 2: levent(A, 0)
        D = DD[(tl >> 1) & 1] + (tl & 1) * 16
        if PRM['wfast']:
            q1 = []
            for d_ in {0: [3], 2: [4], 3: [5], 4: [6], 5: [7]}.get(tl, []): q1 += dma(d_)
        else: q1 = (dma(tl + 3) if tl + 3 < 8 else [])
        qr = reads(tl + 1) if tl < 7 else []
        if tl >= 2 and tl % 2 == 0: q2 = post(tl // 2 - 1)
        if tl == 2 and PRM['wfast']:
            for x in q2: emit(x)
            q2 = []
        n = 0
        for ks in range(8):
            for nt in range(4):
                A('v_mfma_f32_16x16x32_bf16 %s, %s, %s, %s' % (v(D + 4 * nt, 4), v(AFR[tl & 1] + 4 * ks, 4), u(W2F + (nt * 8 + ks) * 4, 4), '0' if ks == 0 else v(D + 4 * nt, 4)))
                n += 1
                def pop(qq):
                    while qq:
                        x = qq.pop(0); emit(x)
                        if not callable(x[0]) and not x[0].startswith('s_'): break
                if n >= 3:
                    pop(q2); pop(q2)
                if n % PRM['wsp'] == 1: pop(q1)
                if n >= 16 and n % 2 == 0: pop(qr)
                if tl in (3, 5, 7) and n == (PRM['wfn0'] if (tl == 3 and PRM['wfast']) else PRM['wfn']):
                    A(vwait('st%d' % (tl // 2 - 1)))
                    if tl == 3: levent(A, 3)
                    A('v_mov_b32 v12, %d' % (tl // 2))
                    V('buffer_store_dword v12, v14, %s, 0 offen sc1' % s(S_WS, 4), 'fl')
        for x in q1 + qr: emit(x)
    for x in q2 + post(3): emit(x)
    A.label('L_w1_done')
    A('v_mov_b32 v9, 4')
    A('s_waitcnt vmcnt(0)')
    A('buffer_store_dword v9, v14, %s, 0 offen sc1' % s(S_WS, 4))
    event(A, 2)
    levent_flush(A, 4, 9)
    A('s_waitcnt lgkmcnt(0)')
    A('s_barrier')

def phase_w1b(A):
    PC = 192
    lexpr(A, 'v8', 'v0', [(0, 4, 912), (5, 1, 32), (4, 1, 8)], 0, 'v1')
    for i in range(4):
        if i == 3:
            A('s_cmp_ge_u32 %s, 2' % s(sWAVE))
            A('s_cbranch_scc1 L_w1b_s')
        A('s_lshl_b32 %s, %s, 6' % (s(sT0), s(96 + i)))
        for nt in range(4):
            A('s_add_u32 %s, %s, %d' % (s(sT1), s(sT0), nt * 16 * 912))
            A('v_add_u32 v9, %s, v8' % s(sT1))
            pc = PC + (i * 4 + nt) * 4
            A('ds_write2_b32 v9, %s, %s offset0:0 offset1:1' % (v(pc), v(pc + 2)))
            A('ds_write2_b32 v9, %s, %s offset0:4 offset1:5' % (v(pc + 1), v(pc + 3)))
        A('s_waitcnt lgkmcnt(4)')
    A.label('L_w1b_s')
    A('s_cmp_lg_u32 %s, 0' % s(sTY))
    A('s_cbranch_scc1 L_w1b_b')
    for nt in range(4):
        lexpr(A, v(12 + nt), 'v0', [(2, 2, 8 * 912), (0, 2, 912), (4, 2, 16)], (32 * (nt >> 1) + 4 * (nt & 1)) * 912, 'v1')
    A('s_mul_i32 %s, %s, 28672' % (s(sT0), s(sH)))
    A('s_lshl_b32 %s, %s, 11' % (s(sT1), s(sQ)))
    A('s_add_u32 %s, %s, %s' % (s(sT0), s(sT0), s(sT1)))
    lexpr(A, v(vST), 'v0', [(0, 6, 16)], s(sT0), 'v1')
    A('v_add_u32 %s, 1024, %s' % (v(vST + 1), v(vST)))
    A('v_add_u32 %s, 14336, %s' % (v(vST + 2), v(vST)))
    A('v_add_u32 %s, 15360, %s' % (v(vST + 3), v(vST)))
    A('s_mov_b32 %s, %d' % (s(sO3), YX_OFF))
    A('s_branch L_w1b_c')
    A.label('L_w1b_b')
    for nt in range(4):
        lexpr(A, v(12 + nt), 'v0', [(0, 4, 912), (4, 2, 16)], 16 * nt * 912, 'v1')
    A('s_mul_i32 %s, %s, 28672' % (s(sT0), s(sH)))
    A('s_lshl_b32 %s, %s, 12' % (s(sT1), s(sQ)))
    A('s_add_u32 %s, %s, %s' % (s(sT0), s(sT0), s(sT1)))
    lexpr(A, v(vST), 'v0', [(0, 6, 16)], s(sT0), 'v1')
    for nt in range(1, 4): A('v_add_u32 %s, %d, %s' % (v(vST + nt), (nt & 1) * 2048 + (nt >> 1) * 1024, v(vST)))
    A('s_mov_b32 %s, %d' % (s(sO3), U_OFF))
    A.label('L_w1b_c')
    A('s_waitcnt lgkmcnt(0)')
    A('s_barrier')
    for nt in range(4):
        for ks in range(14):
            A('ds_read_b128 %s, %s offset:%d' % (u(WF + (nt * 14 + ks) * 4, 4), v(12 + nt), ks * 64))
            if ks % 7 == 6: A('s_waitcnt lgkmcnt(7)')
    A('s_waitcnt lgkmcnt(0)')
    wait_dbg(A, D_XG, 56, 16)

def phase_w2(A, ty):
    tag = 'AB'[ty]
    D, PK = 16, 48
    vXG, vFL, vFV = 8, 9, 10
    def X(b, t, ks):
        r = 64 + b * 112 + (t * 14 + ks) * 4
        return u(r if r < 256 else r - 256 + 256 + 224, 4)
    A.label('L_w2' + tag)
    lexpr(A, v(vXG), 'v0', [(0, 6, 16)], 0, 'v1')
    A('s_lshl_b32 %s, %s, 2' % (s(sT0), s(sA)))
    A('s_add_u32 %s, %s, %s' % (s(sT0), s(sT0), s(sWAVE)))
    A('s_lshl_b32 %s, %s, 2' % (s(sT0), s(sT0)))
    A('s_add_u32 %s, %s, %d' % (s(sT0), s(sT0), FLG_W2 + ty * 1792))
    A('v_mov_b32 v1, %s' % s(sT0))
    A('v_mov_b32 v2, %d' % OOB)
    A('v_cmp_eq_u32 vcc, 0, v0')
    A('v_cndmask_b32 %s, v2, v1, vcc' % v(vFL))
    A('s_mul_i32 %s, %s, 28672' % (s(sO1), s(sWAVE)))
    A('s_add_u32 %s, %s, %d' % (s(sO1), s(sO1), XG_OFF))
    A('s_mul_i32 %s, %s, %d' % (s(sT0), s(sWAVE), 16 * 28672))
    A('s_add_u32 %s, %s, %s' % (s(sO3), s(sO3), s(sT0)))
    A('s_mov_b32 %s, 0' % s(sCNT))
    def loads(b):
        out = []
        for n in range(28):
            ks, t = n >> 1, n & 1
            off = t * 14336 + ks * 1024
            g = []
            if n % 2 == 0 or True:
                g.append('s_add_u32 %s, %s, %d' % (s(sT2), s(sO1), off & ~4095))
            g.append('buffer_load_dwordx4 %s, %s, %s, %s offen offset:%d sc1' % (X(b, t, ks), v(vXG), s(S_WS, 4), s(sT2), off & 4095))
            out.append(g)
        return out
    for g in loads(0):
        for x in g: A(x)
    A('s_add_u32 %s, %s, %d' % (s(sO1), s(sO1), 4 * 28672))
    for _ in range(5): A('buffer_store_dword v1, v2, %s, 0 offen' % s(S_WS, 4))
    LP = 'L_w2loop' + tag
    A.label(LP)
    for b in range(2):
        ld = loads(1 - b)
        issued = 0
        for ks in range(14):
            A('s_waitcnt vmcnt(%d)' % min(63, 26 - 2 * ks + 5 + issued))
            for t in range(2):
                for nt in range(4):
                    d = v(D + (t * 4 + nt) * 4, 4)
                    w_, x_ = u(WF + (nt * 14 + ks) * 4, 4), X(b, t, ks)
                    a_, b_ = (w_, x_) if ty == 0 else (x_, w_)
                    A('v_mfma_f32_16x16x32_bf16 %s, %s, %s, %s' % (d, a_, b_, '0' if ks == 0 else d))
                    if nt == 1:
                        for x in ld.pop(0): A(x)
                        issued += 1
        A('s_add_u32 %s, %s, %d' % (s(sO1), s(sO1), 4 * 28672))
        A('s_waitcnt vmcnt(28)')
        A('v_mov_b32 %s, %s' % (v(vFV), s(sCNT)))
        A('buffer_store_dword %s, %s, %s, 0 offen sc1' % (v(vFV), v(vFL), s(S_WS, 4)))
        for k in range(4):
            if ty == 0: t, aa = k >> 1, k & 1; d0, d1 = D + (t * 4 + 2 * aa) * 4, D + (t * 4 + 2 * aa + 1) * 4
            else: d0, d1 = D + k * 4, D + (4 + k) * 4
            A('v_cvt_pk_bf16_f32 %s, %s, %s' % (v(PK + 4 * k), v(d0), v(d0 + 1)))
            A('v_cvt_pk_bf16_f32 %s, %s, %s' % (v(PK + 4 * k + 1), v(d0 + 2), v(d0 + 3)))
            A('v_cvt_pk_bf16_f32 %s, %s, %s' % (v(PK + 4 * k + 2), v(d1), v(d1 + 1)))
            A('v_cvt_pk_bf16_f32 %s, %s, %s' % (v(PK + 4 * k + 3), v(d1 + 2), v(d1 + 3)))
            A('buffer_store_dwordx4 %s, %s, %s, %s offen sc1' % (v(PK + 4 * k, 4), v(vST + k), s(S_WS, 4), s(sO3)))
        A('s_add_u32 %s, %s, %d' % (s(sO3), s(sO3), 4 * 16 * 28672))
        A('s_add_u32 %s, %s, 1' % (s(sCNT), s(sCNT)))
    A('s_cmp_lt_u32 %s, 16' % s(sCNT))
    A('s_cbranch_scc1 %s' % LP)
    A('s_waitcnt vmcnt(0)')
    A('v_mov_b32 %s, 16' % v(vFV))
    A('buffer_store_dword %s, %s, %s, 0 offen sc1' % (v(vFV), v(vFL), s(S_WS, 4)))

def wait_flags(A, vaddr, soff, sval, sleep, tmp='v3', coarse=False):
    l = A.newlabel('L_wf')
    A.label(l)
    A('buffer_load_dword %s, %s, %s, %s offen sc1' % (tmp, vaddr, s(S_WS, 4), soff))
    A('s_waitcnt vmcnt(0)')
    A('v_cmp_gt_u32 vcc, %s, %s' % (sval, tmp))
    if coarse:
        fine = A.newlabel('L_wff')
        spin_check(A, l, ['s_cmp_ge_u32 %s, %d' % (s(sSEG), PRM['fine']), 's_cbranch_scc1 %s' % fine, 's_sleep %d' % PRM['zs'], fine + ':', 's_sleep 1'])
    else: spin_check(A, l, ['s_sleep %d' % sleep])

def load_hm(A, M, va, vb, so, mm):
    l = A.newlabel('L_hm'); l2 = A.newlabel('L_hm2'); l3 = A.newlabel('L_hm3')
    ld = ['buffer_load_dwordx4 %s, %s, %s, %s offen offset:%d sc1' % (v(M + 4 * ks, 4), va if ks < 8 else vb, s(S_WS, 4), s(so), (ks & 7) * 512) for ks in range(14)]
    A('s_sub_u32 %s, %s, %d' % (s(sT2), s(so), HM_STEP))
    A('s_cmp_ge_u32 %s, %d' % (s(sSEG), PRM['fine']))
    A('s_cselect_b32 %s, %s, %s' % (s(sT2), s(sT2), s(so)))
    A.label(l)
    A('buffer_load_dword v3, %s, %s, %s offen offset:2560 sc1' % (vb, s(S_WS, 4), s(sT2)))
    A('s_waitcnt vmcnt(0)')
    A('v_cmp_eq_u32 vcc, -1, v3')
    spin_check(A, l, ['s_sleep %d' % PRM['zs']])
    A.label(l2)
    for x in ld: A(x)
    A('s_waitcnt vmcnt(13)')
    A('v_cmp_eq_u32 vcc, -1, %s' % v(M))
    spin_check(A, l2, ['s_waitcnt vmcnt(0)'])
    for ks in range(14):
        A('s_waitcnt vmcnt(%d)' % (13 - ks))
        mm(ks)
        r = M + 4 * ks
        if ks == 0: A('v_max_u32 v3, %s, %s' % (v(r), v(r + 1)))
        else: A('v_max3_u32 v3, v3, %s, %s' % (v(r), v(r + 1)))
        A('v_max3_u32 v3, v3, %s, %s' % (v(r + 2), v(r + 3)))
    A('v_cmp_eq_u32 vcc, -1, v3')
    spin_check(A, l2)

def lane0_addr(A, dst, sreg):
    A('v_mov_b32 v1, %s' % sreg)
    A('v_mov_b32 v2, %d' % OOB)
    A('v_cmp_eq_u32 vcc, 0, v0')
    A('v_cndmask_b32 %s, v2, v1, vcc' % dst)

def phase_z(A):
    D, M = 16, 64
    vHF, vHM, vFL = 8, 9, 10
    lexpr(A, v(vHM), 'v0', [(4, 2, 128), (0, 3, 16)], 0, 'v1')
    A('v_add_u32 v11, 4096, %s' % v(vHM))
    A('s_lshl_b32 %s, %s, 5' % (s(sT0), s(sA)))
    A('s_add_u32 %s, %s, %s' % (s(sT0), s(sT0), s(sWAVE)))
    A('s_lshl_b32 %s, %s, 2' % (s(sT0), s(sT0)))
    A('s_add_u32 %s, %s, %d' % (s(sT0), s(sT0), FLG_Z))
    lane0_addr(A, v(vFL), s(sT0))
    A('s_lshr_b32 %s, %s, 2' % (s(sT0), s(sH)))
    A('s_mul_i32 %s, %s, 28672' % (s(sT0), s(sT0)))
    A('s_and_b32 %s, %s, 3' % (s(sT1), s(sH)))
    A('s_lshl_b32 %s, %s, 8' % (s(sT1), s(sT1)))
    A('s_add_u32 %s, %s, %s' % (s(sT0), s(sT0), s(sT1)))
    A('s_lshl_b32 %s, %s, 12' % (s(sT1), s(sQ)))
    A('s_add_u32 %s, %s, %s' % (s(sT0), s(sT0), s(sT1)))
    lexpr(A, 'v12', 'v0', [(0, 4, 16), (4, 1, 8)], s(sT0), 'v1')
    A('v_cmp_gt_u32 vcc, 32, v0')
    A('v_cndmask_b32 %s, v2, v12, vcc' % v(vST))
    A('s_mov_b32 %s, %s' % (s(sSEG), s(sWAVE)))
    A('s_mov_b32 %s, 0' % s(sCNT))
    A.label('L_zloop')
    A('s_mul_i32 %s, %s, %d' % (s(sO1), s(sSEG), HM_STEP))
    A('s_add_u32 %s, %s, %d' % (s(sO1), s(sO1), HM_OFF))
    A('s_mul_i32 %s, %s, %d' % (s(sO2), s(sSEG), HZ_STEP))
    A('s_add_u32 %s, %s, %d' % (s(sO2), s(sO2), HZ_OFF))
    def mm(ks):
        for nt in range(4):
            d = v(D + 4 * nt, 4)
            A('v_mfma_f32_16x16x32_bf16 %s, %s, %s, %s' % (d, v(M + 4 * ks, 4), u(WF + (nt * 14 + ks) * 4, 4), '0' if ks == 0 else d))
    load_hm(A, M, v(vHM), 'v11', sO1, mm)
    for nt in range(4):
        d = D + 4 * nt
        A('v_cvt_pk_bf16_f32 %s, %s, %s' % (v(d), v(d), v(d + 1)))
        A('v_cvt_pk_bf16_f32 %s, %s, %s' % (v(d + 1), v(d + 2), v(d + 3)))
        A('buffer_store_dwordx2 %s, %s, %s, %s offen offset:%d sc1' % (v(d, 2), v(vST), s(S_WS, 4), s(sO2), (nt & 1) * 2048 + (nt >> 1) * 1024))
    A('s_add_u32 %s, %s, 1' % (s(sCNT), s(sCNT)))
    A('v_mov_b32 v3, %s' % s(sCNT))
    A('s_waitcnt vmcnt(0)')
    A('buffer_store_dword v3, %s, %s, 0 offen sc1' % (v(vFL), s(S_WS, 4)))
    A('s_add_u32 %s, %s, 4' % (s(sSEG), s(sSEG)))
    A('s_cmp_lt_u32 %s, 64' % s(sSEG))
    A('s_cbranch_scc1 L_zloop')

sK = 82
def post_dispatch(A):
    A('s_mov_b32 s101, 0')
    A('s_and_b32 %s, %s, 7' % (s(sK), s(sA)))
    A('s_lshr_b32 %s, %s, 3' % (s(sSEG), s(sA)))
    A('s_cmp_ge_u32 %s, 4' % s(sK))
    A('s_cbranch_scc1 L_s2')

def seg_count(A, dst):
    A('s_lshr_b32 %s, %s, 2' % (dst, s(sSEG)))
    A('s_add_u32 %s, %s, 1' % (dst, dst))
    A('s_and_b32 %s, %s, 3' % (s(sT1), s(sSEG)))
    A('s_lshl_b32 %s, %s, 2' % (s(sT1), s(sT1)))

def phase_s1(A):
    XG_, YX_, HM_, D = 256, 256 + 112, 64, 16
    vL16, vYF, vHF, vHM, vHM2, vDL, vPX, vPM, vFL = 4, 5, 6, 7, 8, 9, 10, 11, 12
    T = 40
    sHD = sH
    A.label('L_s1')
    A('s_lshl_b32 %s, %s, 2' % (s(sHD), s(sK)))
    A('s_add_u32 %s, %s, %s' % (s(sHD), s(sHD), s(sWAVE)))
    lexpr(A, v(vL16), 'v0', [(0, 6, 16)], 0, 'v1')
    A('v_min_u32 v1, 6, v0')
    A('s_mul_i32 %s, %s, 7' % (s(sT0), s(sHD)))
    A('v_add_u32 v1, %s, v1' % s(sT0))
    A('v_lshlrev_b32 v1, 4, v1')
    A('v_add_u32 %s, %d, v1' % (v(vYF), FLG_W2))
    lexpr(A, v(vHM), 'v0', [(4, 2, 128), (0, 3, 16)], 0, 'v1')
    A('v_add_u32 %s, 4096, %s' % (v(vHM2), v(vHM)))
    lexpr(A, v(vDL), 'v0', [(2, 2, 8), (0, 2, 1)], 0, 'v1')
    A('v_lshrrev_b32 v1, 4, v0')
    A('v_lshlrev_b32 v1, 3, v1')
    A('v_sub_u32 %s, %s, v1' % (v(vDL), v(vDL)))
    A('s_lshl_b32 %s, %s, 11' % (s(sT0), s(sHD)))
    A('v_add_u32 %s, %s, %s' % (v(vPX), s(sT0), v(vL16)))
    A('s_lshl_b32 %s, %s, 11' % (s(sT0), s(sK)))
    A('s_lshl_b32 %s, %s, 8' % (s(sT1), s(sWAVE)))
    A('s_add_u32 %s, %s, %s' % (s(sT0), s(sT0), s(sT1)))
    A('s_add_u32 %s, %s, %d' % (s(sT0), s(sT0), 16 * 2048))
    lexpr(A, 'v13', 'v0', [(0, 4, 16), (4, 1, 8)], s(sT0), 'v1')
    A('v_mov_b32 v2, %d' % OOB)
    A('v_cmp_gt_u32 vcc, 32, v0')
    A('v_cndmask_b32 %s, v2, v13, vcc' % v(vPM))
    A('s_lshl_b32 %s, %s, 5' % (s(sT0), s(sA)))
    A('s_add_u32 %s, %s, %s' % (s(sT0), s(sT0), s(sWAVE)))
    A('s_lshl_b32 %s, %s, 2' % (s(sT0), s(sT0)))
    A('s_add_u32 %s, %s, %d' % (s(sT0), s(sT0), FLG_P))
    lane0_addr(A, v(vFL), s(sT0))
    A('v_mov_b32 v14, 0x%x' % f2u(-1.0e9 * 1.4426950408889634))
    A('v_mov_b32 v15, 0xff800000')
    A.label('L_s1loop')
    seg_count(A, s(sT0))
    wait_flags(A, v(vYF), s(sT1), s(sT0), 16)
    A('s_mul_i32 %s, %s, 28672' % (s(sO1), s(sSEG)))
    A('s_add_u32 %s, %s, %d' % (s(sO1), s(sO1), XG_OFF))
    A('s_lshl_b32 %s, %s, 4' % (s(sO2), s(sSEG)))
    A('s_add_u32 %s, %s, %s' % (s(sO2), s(sO2), s(sHD)))
    A('s_mul_i32 %s, %s, 28672' % (s(sO2), s(sO2)))
    A('s_add_u32 %s, %s, %d' % (s(sO2), s(sO2), YX_OFF))
    for ks in range(14):
        for base, so in ((XG_, sO1), (YX_, sO2)):
            for t in range(2):
                off = t * 14336 + ks * 1024
                A('s_add_u32 %s, %s, %d' % (s(sT2), s(so), off & ~4095))
                A('buffer_load_dwordx4 %s, %s, %s, %s offen offset:%d sc1' % (u(base + (t * 14 + ks) * 4, 4), v(vL16), s(S_WS, 4), s(sT2), off & 4095))
    def Dr(qt, t): return D + (qt * 3 + t) * 4
    for ks in range(14):
        A('s_waitcnt vmcnt(%d)' % (52 - 4 * ks))
        for qt in range(2):
            for t in range(2):
                d = v(Dr(qt, t), 4)
                A('v_mfma_f32_16x16x32_bf16 %s, %s, %s, %s' % (d, u(XG_ + (t * 14 + ks) * 4, 4), u(YX_ + (qt * 14 + ks) * 4, 4), '0' if ks == 0 else d))
    for qt in range(2):
        for t in range(2):
            for r in range(4):
                A('v_cmp_le_i32 vcc, %d, %s' % (4 * (t - qt) + r, v(vDL)))
                A('v_cndmask_b32 %s, v14, %s, vcc' % (v(Dr(qt, t) + r), v(Dr(qt, t) + r)))
        d = Dr(qt, 0)
        A('v_max3_f32 %s, %s, %s, %s' % (v(T + qt), v(d), v(d + 1), v(d + 2)))
        A('v_max3_f32 %s, %s, %s, %s' % (v(T + qt), v(T + qt), v(d + 3), v(d + 4)))
        A('v_max3_f32 %s, %s, %s, %s' % (v(T + qt), v(T + qt), v(d + 5), v(d + 6)))
        A('v_max_f32 %s, %s, %s' % (v(T + qt), v(T + qt), v(d + 7)))
    A('s_mul_i32 %s, %s, %d' % (s(sO1), s(sSEG), HM_STEP))
    A('s_add_u32 %s, %s, %d' % (s(sO1), s(sO1), HM_OFF))
    A('s_mul_i32 %s, %s, 40960' % (s(sO3), s(sSEG)))
    A('s_add_u32 %s, %s, %d' % (s(sO3), s(sO3), PP_OFF))
    def mm(ks):
        for qt in range(2):
            d = v(Dr(qt, 2), 4)
            A('v_mfma_f32_16x16x32_bf16 %s, %s, %s, %s' % (d, v(HM_ + 4 * ks, 4), u(YX_ + (qt * 14 + ks) * 4, 4), '0' if ks == 0 else d))
    load_hm(A, HM_, v(vHM), v(vHM2), sO1, mm)
    A('v_cmp_gt_u32 vcc, 32, v0')
    def xred(op):
        for sw in ('v_permlane16_swap_b32', 'v_permlane32_swap_b32'):
            for qt in range(2): A('v_mov_b32 %s, %s' % (v(T + 2 + qt), v(T + qt)))
            for qt in range(2): A('%s %s, %s' % (sw, v(T + qt), v(T + 2 + qt)))
            for qt in range(2): A('%s %s, %s, %s' % (op, v(T + qt), v(T + qt), v(T + 2 + qt)))
    for qt in range(2):
        d = Dr(qt, 2)
        for r in range(4): A('v_cndmask_b32 %s, v15, %s, vcc' % (v(d + r), v(d + r)))
        A('v_max3_f32 %s, %s, %s, %s' % (v(T + qt), v(T + qt), v(d), v(d + 1)))
        A('v_max3_f32 %s, %s, %s, %s' % (v(T + qt), v(T + qt), v(d + 2), v(d + 3)))
    xred('v_max_f32')
    for qt in range(2):
        d = Dr(qt, 0)
        for i in range(12): A('v_sub_f32 %s, %s, %s' % (v(d + i), v(d + i), v(T + qt)))
        for i in range(12): A('v_exp_f32 %s, %s' % (v(d + i), v(d + i)))
    for qt in range(2):
        d = Dr(qt, 0)
        A('v_add_f32 %s, %s, %s' % (v(T + qt), v(d), v(d + 1)))
        for i in range(2, 12): A('v_add_f32 %s, %s, %s' % (v(T + qt), v(T + qt), v(d + i)))
    xred('v_add_f32')
    for qt in range(2): A('v_rcp_f32 %s, %s' % (v(T + qt), v(T + qt)))
    for qt in range(2):
        d = Dr(qt, 0); o = T + 4 + 8 * qt
        for i in range(12): A('v_mul_f32 %s, %s, %s' % (v(d + i), v(d + i), v(T + qt)))
        for i in range(6): A('v_cvt_pk_bf16_f32 %s, %s, %s' % (v(o + i), v(d + 2 * i), v(d + 2 * i + 1)))
        A('buffer_store_dwordx4 %s, %s, %s, %s offen offset:%d sc1' % (v(o, 4), v(vPX), s(S_WS, 4), s(sO3), qt * 1024))
        A('buffer_store_dwordx2 %s, %s, %s, %s offen offset:%d sc1' % (v(o + 4, 2), v(vPM), s(S_WS, 4), s(sO3), qt * 1024))
    A('s_add_u32 s101, s101, 1')
    A('v_mov_b32 v3, s101')
    A('s_waitcnt vmcnt(0)')
    A('buffer_store_dword v3, %s, %s, 0 offen sc1' % (v(vFL), s(S_WS, 4)))
    A('s_add_u32 %s, %s, 14' % (s(sSEG), s(sSEG)))
    A('s_cmp_lt_u32 %s, 64' % s(sSEG))
    A('s_cbranch_scc1 L_s1loop')

def phase_s2(A):
    U_, Z_, P_, D = 256, 64, 128, 16
    vV, vGF, vPF, vP, vO, vO2 = 4, 5, 6, 7, 8, 9
    A.label('L_s2')
    A('s_sub_u32 %s, %s, 4' % (s(sK), s(sK)))
    A('s_lshl_b32 %s, %s, 1' % (s(sT3), s(sK)))
    A('s_lshr_b32 %s, %s, 1' % (s(sT0), s(sWAVE)))
    A('s_add_u32 %s, %s, %s' % (s(sT3), s(sT3), s(sT0)))
    A('s_cmp_ge_u32 %s, 7' % s(sT3))
    A('s_cbranch_scc1 L_exit')
    A('s_lshl_b32 %s, %s, 12' % (s(sT0), s(sT3)))
    lexpr(A, v(vV), 'v0', [(0, 6, 16)], s(sT0), 'v1')
    A('s_lshl_b32 %s, %s, 4' % (s(sT0), s(sT3)))
    lexpr(A, v(vGF), 'v0', [(0, 4, 112)], s(sT0), 'v1')
    A('s_andn2_b32 %s, %s, 7' % (s(sT0), s(sA)))
    A('s_lshl_b32 %s, %s, 7' % (s(sT0), s(sT0)))
    A('s_add_u32 %s, %s, %d' % (s(sT0), s(sT0), FLG_P))
    lexpr(A, v(vPF), 'v0', [(2, 2, 128), (0, 2, 4)], s(sT0), 'v1')
    A('s_and_b32 %s, %s, 1' % (s(sT4), s(sWAVE)))
    A('s_lshl_b32 %s, %s, 10' % (s(sT0), s(sT4)))
    lexpr(A, v(vP), 'v0', [(0, 6, 16)], s(sT0), 'v1')
    A('s_mul_i32 %s, %s, %d' % (s(sT0), s(sT4), 4 * 1792))
    A('s_lshl_b32 %s, %s, 7' % (s(sT1), s(sT3)))
    A('s_add_u32 %s, %s, %s' % (s(sT0), s(sT0), s(sT1)))
    A('s_add_u32 %s, %s, 896' % (s(sT0), s(sT0)))
    lexpr(A, v(vO), 'v0', [(2, 2, 8 * 1792), (0, 2, 1792), (4, 2, 16)], s(sT0), 'v1')
    A.label('L_s2loop')
    seg_count(A, s(sCNT))
    A('s_add_u32 %s, %s, %d' % (s(sO3), s(sT1), FLG_Z))
    A('s_add_u32 %s, %s, %d' % (s(sT1), s(sT1), FLG_W2 + 1792))
    wait_flags(A, v(vGF), s(sT1), s(sCNT), 16)
    A('s_mul_i32 %s, %s, %d' % (s(sO1), s(sSEG), 16 * 28672))
    A('s_add_u32 %s, %s, %d' % (s(sO1), s(sO1), U_OFF))
    for c in range(16):
        for tl in range(4):
            A('buffer_load_dwordx4 %s, %s, %s, %s offen offset:%d sc1' % (u(U_ + (c * 4 + tl) * 4, 4), v(vV), s(S_WS, 4), s(sO1), tl * 1024))
        A('s_add_u32 %s, %s, 28672' % (s(sO1), s(sO1)))
        if c == 11: A('s_waitcnt vmcnt(32)')
    A('s_mul_i32 %s, %s, %d' % (s(sT2), s(sSEG), HM_STEP))
    A('s_add_u32 %s, %s, %d' % (s(sT2), s(sT2), HM_OFF))
    A('v_mov_b32 v10, 0')
    lp = A.newlabel('L_s2p'); A.label(lp)
    A('buffer_load_dword v3, v10, %s, %s offen sc1' % (s(S_WS, 4), s(sT2)))
    A('s_waitcnt vmcnt(0)')
    A('v_cmp_eq_u32 vcc, -1, v3')
    spin_check(A, lp, ['s_sleep %d' % PRM['zs']])
    A('s_add_u32 s101, s101, 1')
    A('v_lshl_add_u32 v10, %s, 3, %s' % (v(vGF), s(sO3)))
    A('v_and_b32 v1, 16, v0')
    A('v_cmp_eq_u32 vcc, 0, v1')
    A('v_cndmask_b32 v10, %s, v10, vcc' % v(vPF))
    A('v_mov_b32 v11, %s' % s(sCNT))
    A('v_mov_b32 v1, s101')
    A('v_cndmask_b32 v11, v1, v11, vcc')
    A('s_mul_i32 %s, %s, %d' % (s(sO1), s(sSEG), HZ_STEP))
    A('s_add_u32 %s, %s, %d' % (s(sO1), s(sO1), HZ_OFF))
    A('s_mul_i32 %s, %s, 40960' % (s(sO2), s(sSEG)))
    A('s_add_u32 %s, %s, %d' % (s(sO2), s(sO2), PP_OFF))
    wait_flags(A, 'v10', '0', 'v11', 1, coarse=True)
    for c in range(20):
        A('buffer_load_dwordx4 %s, %s, %s, %s offen offset:%d sc1' % (v(P_ + 4 * c, 4), v(vP), s(S_WS, 4), s(sO2), (c & 1) * 2048))
        if c & 1: A('s_add_u32 %s, %s, 4096' % (s(sO2), s(sO2)))
    for c in range(4):
        for tl in range(4):
            A('buffer_load_dwordx4 %s, %s, %s, %s offen offset:%d sc1' % (v(Z_ + (c * 4 + tl) * 4, 4), v(vV), s(S_WS, 4), s(sO1), tl * 1024))
        A('s_add_u32 %s, %s, 28672' % (s(sO1), s(sO1)))
    for c in range(20):
        A('s_waitcnt vmcnt(%d)' % (35 - c if c < 16 else 12 - 4 * (c - 16)))
        for tl in range(4):
            d = v(D + 4 * tl, 4)
            a_ = u(U_ + (c * 4 + tl) * 4, 4) if c < 16 else v(Z_ + ((c - 16) * 4 + tl) * 4, 4)
            A('v_mfma_f32_16x16x32_bf16 %s, %s, %s, %s' % (d, a_, v(P_ + 4 * c, 4), '0' if c == 0 else d))
    A('s_mul_i32 %s, %s, %d' % (s(sO1), s(sSEG), 32 * 1792))
    for b in range(2):
        e, o, pk = D + 8 * b, D + 8 * b + 4, 32 + 4 * b
        for r in range(4): A('v_cvt_pk_bf16_f32 %s, %s, %s' % (v(pk + r), v(e + r), v(o + r)))
        A('buffer_store_dwordx4 %s, %s, %s, %s offen offset:%d' % (v(pk, 4), v(vO), s(S_OUT, 4), s(sO1), 64 * b))
    A('s_add_u32 %s, %s, 14' % (s(sSEG), s(sSEG)))
    A('s_cmp_lt_u32 %s, 64' % s(sSEG))
    A('s_cbranch_scc1 L_s2loop')

LOG2E = 1.4426950408889634
def phase_a1(A):
    ST = 208
    def WQ(x, tl, ks):
        i = ((x * 2 + tl) * 14 + ks) * 4
        return a(i, 4) if i < 256 else v(176 + i - 256, 4)
    def WQh(x, tl, ks, t):
        i = ((x * 2 + tl) * 14 + ks) * 4 + 2 * t
        return a(i, 2) if i < 256 else v(176 + i - 256, 2)
    X_, D, KV, PQ = 120, 16, 64, 80
    T = 104
    vG, vW, vR, vR2, vX = 4, 5, 6, 7, 8
    sBLK, sI = sSEG, sCNT
    A('s_barrier')
    lexpr(A, v(vG), 'v0', [(2, 4, 2688), (0, 2, 16)], 0, 'v1')
    A('s_mul_i32 %s, %s, %d' % (s(sO1), s(sWAVE), 112 * 2688))
    A('s_mul_i32 %s, %s, 56' % (s(sT0), s(sH)))
    A('s_add_u32 %s, %s, %s' % (s(sO1), s(sO1), s(sT0)))
    for j in range(21):
        A('buffer_load_dwordx4 %s, %s, %s, %s offen offset:%d' % (v(16 + 4 * j, 4), v(vG), s(S_AW, 4), s(sO1), (j % 3) * 896))
        if j % 3 == 2: A('s_add_u32 %s, %s, %d' % (s(sO1), s(sO1), 16 * 2688))
    A('s_mul_i32 %s, %s, %d' % (s(sT0), s(sWAVE), 112 * ST))
    lexpr(A, v(vW), 'v0', [(2, 4, ST), (0, 2, 16)], s(sT0), 'v1')
    for j in range(21):
        A('s_waitcnt vmcnt(%d)' % (20 - j))
        A('ds_write_b128 %s, %s offset:%d' % (v(vW), v(16 + 4 * j, 4), (j // 3) * 16 * ST + (j % 3) * 64))
        if j % 6 == 5: A('s_waitcnt lgkmcnt(6)')
    lexpr(A, v(vR), 'v0', [(4, 2, 8 * ST), (2, 2, ST), (0, 2, 16)], 0, 'v1')
    A('v_add_u32 %s, %d, %s' % (v(vR2), 7 * 32 * ST, v(vR)))
    A('s_waitcnt lgkmcnt(0)')
    A('s_barrier')
    n = 0
    for x in range(3):
        for tl in range(2):
            for ks in range(14):
                for t in range(2):
                    A('ds_read_b64_tr_b16 %s, %s offset:%d' % (WQh(x, tl, ks, t), v(vR if ks < 7 else vR2), (32 * (ks % 7) + 4 * t) * ST + x * 64 + tl * 8))
                    n += 1
                    if n % 6 == 0: A('s_waitcnt lgkmcnt(6)')
    lexpr(A, v(vX), 'v0', [(0, 4, 896), (4, 2, 16)], 0, 'v1')
    A('v_add_u32 v9, %d, %s' % (16 * 896, v(vX)))
    for i in range(16): A('v_mov_b32 %s, 0' % v(KV + i))
    A('s_mov_b32 %s, 0x%x' % (s(sSC), f2u(LOG2E)))
    A('s_mov_b32 %s, 0x%x' % (s(sO3), f2u(1e-6)))
    A('v_and_b32 v1, 15, v0')
    A('v_cmp_le_u32 s[96:97], 12, v1')
    A('v_cmp_eq_u32 s[98:99], 12, v1')
    A('v_cmp_le_u32 s[100:101], 48, v0')
    A('s_lshl_b32 %s, %s, 2' % (s(sBLK), s(sQ)))
    A('s_add_u32 %s, %s, %s' % (s(sBLK), s(sBLK), s(sWAVE)))
    A('s_waitcnt lgkmcnt(0)')
    def phi(r):
        A('v_mul_f32 %s, %s, %s' % (v(T), s(sSC), v(r)))
        A('v_exp_f32 %s, %s' % (v(T), v(T)))
        A('v_cmp_lt_f32 vcc, 0, %s' % v(r))
        A('v_add_f32 %s, 1.0, %s' % (v(r), v(r)))
        A('v_cndmask_b32 %s, %s, %s, vcc' % (v(r), v(T), v(r)))
        A('v_add_f32 %s, %s, %s' % (v(r), s(sO3), v(r)))
    def Dk(x, t, tl): return D + (((x - 1) * 2 + tl) * 2 + t) * 4
    def Dq(t, tl): return D + 32 + (t * 2 + tl) * 4
    A('s_mov_b32 %s, 0' % s(sI))
    A.label('L_a1loop')
    A('s_mul_i32 %s, %s, %d' % (s(sO1), s(sBLK), 32 * 896))
    for hf in range(2):
        for k7 in range(7):
            for t in range(2):
                A('buffer_load_dwordx4 %s, %s, %s, %s offen offset:%d' % (v(X_ + (k7 * 2 + t) * 4, 4), v(vX) if t == 0 else 'v9', s(S_AX, 4), s(sO1), (7 * hf + k7) * 64))
        for k7 in range(7):
            ks = 7 * hf + k7
            A('s_waitcnt vmcnt(%d)' % (12 - 2 * k7))
            for t in range(2):
                xf = v(X_ + (k7 * 2 + t) * 4, 4)
                for tl in range(2):
                    for x in (1, 2):
                        d = v(Dk(x, t, tl), 4)
                        A('v_mfma_f32_16x16x32_bf16 %s, %s, %s, %s' % (d, xf, WQ(x, tl, ks), '0' if ks == 0 else d))
                    d = v(Dq(t, tl), 4)
                    A('v_mfma_f32_16x16x32_bf16 %s, %s, %s, %s' % (d, WQ(0, tl, ks), xf, '0' if ks == 0 else d))
        A('s_nop 7')
    for tl in range(2):
        b = Dk(1, 0, tl)
        for i in range(8):
            phi(b + i)
            if tl == 1: A('v_cndmask_b32 %s, %s, 0, s[96:97]' % (v(b + i), v(b + i)))
        for i in range(4): A('v_cvt_pk_bf16_f32 %s, %s, %s' % (v(b + i), v(b + 2 * i), v(b + 2 * i + 1)))
        b = Dk(2, 0, tl)
        if tl == 1:
            for i in range(8):
                A('v_cndmask_b32 %s, %s, 0, s[96:97]' % (v(b + i), v(b + i)))
                A('v_cndmask_b32 %s, %s, 1.0, s[98:99]' % (v(b + i), v(b + i)))
        for i in range(4): A('v_cvt_pk_bf16_f32 %s, %s, %s' % (v(b + i), v(b + 2 * i), v(b + 2 * i + 1)))
    for dt in range(2):
        for et in range(2):
            d = v(KV + (dt * 2 + et) * 4, 4)
            A('v_mfma_f32_16x16x32_bf16 %s, %s, %s, %s' % (d, v(Dk(1, 0, dt), 4), v(Dk(2, 0, et), 4), d))
    for i in range(15, -1, -1): A('v_mov_b32 %s, %s' % (v(PQ + 8 + i), v(PQ + i)))
    for t in range(2):
        b = Dq(t, 0)
        for i in range(8):
            phi(b + i)
            if i >= 4: A('v_cndmask_b32 %s, %s, 0, s[100:101]' % (v(b + i), v(b + i)))
        for i in range(4): A('v_cvt_pk_bf16_f32 %s, %s, %s' % (v(PQ + 4 * t + i), v(b + 2 * i), v(b + 2 * i + 1)))
    A('s_add_u32 %s, %s, 1' % (s(sI), s(sI)))
    A('s_add_u32 %s, %s, 28' % (s(sBLK), s(sBLK)))
    A('s_cmp_lt_u32 %s, 64' % s(sBLK))
    A('s_cbranch_scc1 L_a1loop')
    LK = 98304
    A('s_lshl_b32 %s, %s, 12' % (s(sT0), s(sWAVE)))
    A('s_add_u32 %s, %s, %d' % (s(sT0), s(sT0), LK))
    lexpr(A, v(vW), 'v0', [(0, 6, 16)], s(sT0), 'v1')
    for j in range(4): A('ds_write_b128 %s, %s offset:%d' % (v(vW), v(KV + 4 * j, 4), j * 1024))
    A('s_lshl_b32 %s, %s, 10' % (s(sT0), s(sWAVE)))
    lexpr(A, v(vR), 'v0', [(0, 6, 16)], s(sT0), 'v1')
    A('v_add_u32 %s, %d, %s' % (v(vR2), LK, v(vR)))
    A('s_waitcnt lgkmcnt(0)')
    A('s_barrier')
    for j in range(4): A('ds_read_b128 %s, %s offset:%d' % (v(D + 4 * j, 4), v(vR2), j * 4096))
    A('s_waitcnt lgkmcnt(0)')
    for r in range(4):
        A('v_add_f32 %s, %s, %s' % (v(D + r), v(D + r), v(D + 4 + r)))
        A('v_add_f32 %s, %s, %s' % (v(D + 8 + r), v(D + 8 + r), v(D + 12 + r)))
        A('v_add_f32 %s, %s, %s' % (v(D + r), v(D + r), v(D + 8 + r)))
    A('s_lshl_b32 %s, %s, 12' % (s(sT0), s(sA)))
    A('s_add_u32 %s, %s, %d' % (s(sT0), s(sT0), KVP_OFF))
    A('buffer_store_dwordx4 %s, %s, %s, %s offen sc1' % (v(D, 4), v(vR), s(S_WS, 4), s(sT0)))
    A('s_lshl_b32 %s, %s, 6' % (s(sT0), s(sA)))
    A('s_lshl_b32 %s, %s, 2' % (s(sT1), s(sWAVE)))
    A('s_add_u32 %s, %s, %s' % (s(sT0), s(sT0), s(sT1)))
    A('s_add_u32 %s, %s, %d' % (s(sT0), s(sT0), FLG_KV))
    lane0_addr(A, 'v10', s(sT0))
    A('v_mov_b32 v3, 1')
    A('s_waitcnt vmcnt(0)')
    A('buffer_store_dword v3, v10, %s, 0 offen sc1' % s(S_WS, 4))
    A('v_lshrrev_b32 v1, 2, v0')
    A('v_min_u32 v1, 6, v1')
    A('v_lshlrev_b32 v1, 6, v1')
    A('v_and_b32 v2, 3, v0')
    A('v_lshl_add_u32 v10, v2, 2, v1')
    A('s_mul_i32 %s, %s, %d' % (s(sT0), s(sH), 7 * 64))
    A('s_add_u32 %s, %s, %d' % (s(sT0), s(sT0), FLG_KV))
    wait_flags(A, 'v10', s(sT0), '1', 8)
    lexpr(A, v(vG), 'v0', [(0, 6, 16)], 0, 'v1')
    lexpr(A, v(vW), 'v0', [(4, 2, 256)], 12 * 16, 'v1')
    A('s_mul_i32 %s, %s, %d' % (s(sO1), s(sH), 7 * 4096))
    A('s_add_u32 %s, %s, %d' % (s(sO1), s(sO1), KVP_OFF))
    GB = 104
    def gr(q): return (GB + 24 * q) if q < 6 else D
    for q in range(7):
        for j in range(4):
            A('buffer_load_dwordx4 %s, %s, %s, %s offen offset:%d sc1' % (v(gr(q) + 4 * j, 4), v(vG), s(S_WS, 4), s(sO1), j * 1024))
        for dt in range(2):
            A('buffer_load_dwordx4 %s, %s, %s, %s offen offset:%d sc1' % (v(gr(q) + 16 + 4 * dt, 4), v(vW), s(S_WS, 4), s(sO1), (dt * 2 + 1) * 1024))
        A('s_add_u32 %s, %s, 4096' % (s(sO1), s(sO1)))
    A('s_waitcnt vmcnt(0)')
    for q in range(6):
        for i in range(24): A('v_add_f32 %s, %s, %s' % (v(D + i), v(D + i), v(gr(q) + i)))
    for et in range(2):
        for dt in range(2):
            b = D + (dt * 2 + et) * 4
            A('v_cvt_pk_bf16_f32 %s, %s, %s' % (v(KV + 4 * et + 2 * dt), v(b), v(b + 1)))
            A('v_cvt_pk_bf16_f32 %s, %s, %s' % (v(KV + 4 * et + 2 * dt + 1), v(b + 2), v(b + 3)))
    for i in range(4): A('v_cvt_pk_bf16_f32 %s, %s, %s' % (v(KV + 8 + i), v(D + 16 + 2 * i), v(D + 17 + 2 * i)))
    A('s_lshl_b32 %s, %s, 10' % (s(sT0), s(sH)))
    lexpr(A, v(vR), 'v0', [(0, 6, 16)], s(sT0), 'v1')
    A.label('L_a1o')
    A('s_sub_u32 %s, %s, 28' % (s(sBLK), s(sBLK)))
    A('s_lshl_b32 %s, %s, 15' % (s(sO1), s(sBLK)))
    A('s_add_u32 %s, %s, %d' % (s(sO1), s(sO1), OI_OFF))
    A('s_add_u32 %s, %s, 16384' % (s(sO2), s(sO1)))
    for t in range(2):
        b = D + 12 * t
        for j in range(3):
            A('v_mfma_f32_16x16x32_bf16 %s, %s, %s, 0' % (v(b + 4 * j, 4), v(KV + 4 * j, 4), v(PQ + 4 * t, 4)))
    for t in range(2):
        b = D + 12 * t; o = D + 24 + 4 * t
        A('v_add_f32 %s, %s, %s' % (v(b + 8), s(sO3), v(b + 8)))
        A('v_rcp_f32 %s, %s' % (v(b + 8), v(b + 8)))
        for i in range(8):
            A('v_mul_f32 %s, %s, %s' % (v(b + i), v(b + i), v(b + 8)))
            if i >= 4: A('v_cndmask_b32 %s, %s, 0, s[100:101]' % (v(b + i), v(b + i)))
        for i in range(4): A('v_cvt_pk_bf16_f32 %s, %s, %s' % (v(o + i), v(b + 2 * i), v(b + 2 * i + 1)))
        A('buffer_store_dwordx4 %s, %s, %s, %s offen sc1' % (v(o, 4), v(vR), s(S_WS, 4), s(sO1 + t)))
    for i in range(16): A('v_mov_b32 %s, %s' % (v(PQ + i), v(PQ + 8 + i)))
    A('s_sub_u32 %s, %s, 1' % (s(sI), s(sI)))
    A('s_cmp_lg_u32 %s, 0' % s(sI))
    A('s_cbranch_scc1 L_a1o')
    A('s_lshl_b32 %s, %s, 2' % (s(sT0), s(sA)))
    A('s_add_u32 %s, %s, %s' % (s(sT0), s(sT0), s(sWAVE)))
    A('s_lshl_b32 %s, %s, 2' % (s(sT0), s(sT0)))
    A('s_add_u32 %s, %s, %d' % (s(sT0), s(sT0), FLG_O))
    lane0_addr(A, 'v10', s(sT0))
    A('v_mov_b32 v3, 1')
    A('s_waitcnt vmcnt(0)')
    A('buffer_store_dword v3, v10, %s, 0 offen sc1' % s(S_WS, 4))

def phase_a2(A):
    ST = 144
    O_, D = 64, 16
    vG, vW, vR, vR2, vO = 4, 5, 6, 7, 8
    A('s_barrier')
    lexpr(A, v(vG), 'v0', [(3, 3, 896), (0, 3, 16)], 0, 'v1')
    A('s_mul_i32 %s, %s, %d' % (s(sO1), s(sWAVE), 112 * 896))
    A('s_lshl_b32 %s, %s, 7' % (s(sT0), s(sQ)))
    A('s_add_u32 %s, %s, %s' % (s(sO1), s(sO1), s(sT0)))
    for j in range(15):
        A('buffer_load_dwordx4 %s, %s, %s, %s offen' % (v(64 + 4 * j, 4), v(vG), s(S_AO, 4), s(sO1)))
        A('s_add_u32 %s, %s, %d' % (s(sO1), s(sO1), 8 * 896))
    A('s_mul_i32 %s, %s, %d' % (s(sT0), s(sWAVE), 112 * ST))
    lexpr(A, v(vW), 'v0', [(3, 3, ST), (0, 3, 16)], s(sT0), 'v1')
    for j in range(15):
        A('s_waitcnt vmcnt(%d)' % (14 - j))
        A('ds_write_b128 %s, %s offset:%d' % (v(vW), v(64 + 4 * j, 4), j * 8 * ST))
        if j % 6 == 5: A('s_waitcnt lgkmcnt(6)')
    lexpr(A, v(vR), 'v0', [(4, 2, 8 * ST), (2, 2, ST), (0, 2, 16)], 0, 'v1')
    A('s_waitcnt lgkmcnt(0)')
    A('s_barrier')
    n = 0
    for tl in range(4):
        for hh in range(16):
            for t in range(2):
                A('ds_read_b64_tr_b16 %s, %s offset:%d' % (a((tl * 16 + hh) * 4 + 2 * t, 2), v(vR), (28 * hh + 4 * t) * ST + (tl >> 1) * 64 + (tl & 1) * 8))
                n += 1
                if n % 6 == 0: A('s_waitcnt lgkmcnt(6)')
    A('s_lshl_b32 %s, %s, 2' % (s(sSEG), s(sH)))
    A('s_add_u32 %s, %s, %s' % (s(sSEG), s(sSEG), s(sWAVE)))
    A('s_mov_b32 %s, %s' % (s(sT0), s(sSEG)))
    for _ in range(2):
        A('s_sub_u32 %s, %s, 28' % (s(sT1), s(sT0)))
        A('s_cmp_ge_u32 %s, 28' % s(sT0))
        A('s_cselect_b32 %s, %s, %s' % (s(sT0), s(sT1), s(sT0)))
    A('s_lshl_b32 %s, %s, 2' % (s(sT0), s(sT0)))
    A('s_add_u32 %s, %s, %d' % (s(sT0), s(sT0), FLG_O))
    lexpr(A, 'v10', 'v0', [(0, 4, 7 * 16)], 0, 'v1')
    wait_flags(A, 'v10', s(sT0), '1', 8)
    lexpr(A, v(vG), 'v0', [(0, 6, 16)], 0, 'v1')
    A('s_lshl_b32 %s, %s, 15' % (s(sO1), s(sSEG)))
    A('s_add_u32 %s, %s, %d' % (s(sO1), s(sO1), OI_OFF))
    for i in range(32):
        A('buffer_load_dwordx4 %s, %s, %s, %s offen offset:%d sc1' % (v(O_ + 4 * i, 4), v(vG), s(S_WS, 4), s(sO1), (i & 3) * 1024))
        if i & 3 == 3: A('s_add_u32 %s, %s, 4096' % (s(sO1), s(sO1)))
    A('s_lshl_b32 %s, %s, 7' % (s(sT0), s(sQ)))
    lexpr(A, v(vO), 'v0', [(0, 4, 1792), (4, 2, 16)], s(sT0), 'v1')
    A('s_mul_i32 %s, %s, %d' % (s(sO1), s(sSEG), 32 * 1792))
    A('s_add_u32 %s, %s, %d' % (s(sO2), s(sO1), 16 * 1792))
    A('s_waitcnt lgkmcnt(0)')
    for t in range(2):
        for hh in range(16):
            A('s_waitcnt vmcnt(%d)' % (31 - (t * 16 + hh)))
            for tl in range(4):
                d = v(D + (t * 4 + tl) * 4, 4)
                A('v_mfma_f32_16x16x32_bf16 %s, %s, %s, %s' % (d, a((tl * 16 + hh) * 4, 4), v(O_ + (t * 16 + hh) * 4, 4), '0' if hh == 0 else d))
    for t in range(2):
        for aa in range(2):
            b = D + (t * 4 + 2 * aa) * 4; o = 48 + (t * 2 + aa) * 4
            for i in range(4): A('v_cvt_pk_bf16_f32 %s, %s, %s' % (v(o + i), v(b + 2 * i), v(b + 2 * i + 1)))
            A('buffer_store_dwordx4 %s, %s, %s, %s offen offset:%d' % (v(o, 4), v(vO), s(S_OUT, 4), s(sO1 + t), aa * 64))
```

```python
from common import *
import struct

sRHO, sH, sQ, sTY, sA = 71, 72, 73, 74, 75
sSC, sO1, sO2, sO3, sSEG, sCNT = 76, 77, 78, 79, 80, 81
S_W1 = 92
LW_R2 = 0
LW_ST = 36864
LW_WT = 36864 + 33792
def f2u(x): return struct.unpack('<I', struct.pack('<f', x))[0]

def wait_dbg(A, idx, val, sleep=2):
    l = A.newlabel('L_wd'); e = A.newlabel('L_wd_done')
    A('s_cmp_lg_u32 %s, 0' % s(sWAVE))
    A('s_cbranch_scc1 %s' % e)
    if idx in (D_INIT, D_XG): lexpr(A, 'v2', 'v0', [(0, 2, 64)], idx * 4, 'v3')
    else: A('v_mov_b32 v2, %d' % (idx * 4))
    A.label(l)
    A('buffer_load_dword v3, v2, %s, 0 offen sc1' % s(S_DBG, 4))
    A('s_waitcnt vmcnt(0)')
    A('v_cmp_gt_u32 vcc, %d, v3' % val)
    spin_check(A, l, ['s_sleep %d' % sleep])
    A.label(e)
    A('s_barrier')

def early_prefetch(A):
    e = A.newlabel('L_ep')
    A('s_cmp_eq_u32 %s, 0' % s(sXCC))
    A('s_cbranch_scc1 %s' % e)
    A('s_lshr_b32 %s, s2, 3' % s(sROLE))
    role_decode(A)
    lexpr(A, 'v5', 'v0', [(2, 4, 8192), (0, 2, 128)], 0, 'v6')
    A('s_and_b32 %s, %s, 1' % (s(sT2), s(sWAVE)))
    A('s_lshl_b32 %s, %s, 1' % (s(sT0), s(sQ)))
    A('s_add_u32 %s, %s, %s' % (s(sT0), s(sT0), s(sT2)))
    A('s_lshl_b32 %s, %s, 18' % (s(sT0), s(sT0)))
    A('s_lshl_b32 %s, %s, 9' % (s(sT1), s(sH)))
    A('s_add_u32 %s, %s, %s' % (s(sT0), s(sT0), s(sT1)))
    A('s_add_u32 %s, %s, %d' % (s(sT1), s(sT0), 16 * 8192))
    l2 = A.newlabel('L_ep2'); l3 = A.newlabel('L_ep3')
    A('s_cmp_ge_u32 %s, 2' % s(sWAVE))
    A('s_cbranch_scc1 %s' % l2)
    for j in range(2): A('buffer_load_dword v7, v5, %s, %s offen' % (s(S_W1, 4), s(sT0 + j)))
    A('s_branch %s' % e)
    A.label(l2)
    A('s_cmp_lg_u32 %s, 0' % s(sTY))
    A('s_cbranch_scc1 %s' % l3)
    for j in range(2): A('buffer_load_dword v7, v5, %s, %s offen' % (s(S_WK, 4), s(sT0 + j)))
    A('s_branch %s' % e)
    A.label(l3)
    A('v_lshlrev_b32 v5, 7, v0')
    A('s_lshl_b32 %s, %s, 1' % (s(sT0), s(sQ)))
    A('s_add_u32 %s, %s, %s' % (s(sT0), s(sT0), s(sT2)))
    A('s_lshl_b32 %s, %s, 14' % (s(sT0), s(sT0)))
    A('s_mul_i32 %s, %s, 229376' % (s(sT1), s(sH)))
    A('s_add_u32 %s, %s, %s' % (s(sT0), s(sT0), s(sT1)))
    A('s_add_u32 %s, %s, 8192' % (s(sT1), s(sT0)))
    for j in range(2): A('buffer_load_dword v7, v5, %s, %s offen' % (s(S_WO, 4), s(sT0 + j)))
    A.label(e)

def worker_entry(A):
    A.label('L_worker')
    A('s_mov_b32 %s, %d' % (s(sSPIN), SPIN_MAX))
    role_decode(A)

def role_decode(A):
    A('s_sub_u32 %s, %s, 1' % (s(sRHO), s(sXCC)))
    A('s_lshl_b32 %s, %s, 5' % (s(sRHO), s(sRHO)))
    A('s_add_u32 %s, %s, %s' % (s(sRHO), s(sRHO), s(sROLE)))
    A('s_mul_i32 %s, %s, 9363' % (s(sT0), s(sRHO)))
    A('s_lshr_b32 %s, %s, 16' % (s(sT0), s(sT0)))
    A('s_mul_i32 %s, %s, 7' % (s(sT1), s(sT0)))
    A('s_sub_u32 %s, %s, %s' % (s(sQ), s(sRHO), s(sT1)))
    A('s_lshr_b32 %s, %s, 4' % (s(sTY), s(sT0)))
    A('s_and_b32 %s, %s, 15' % (s(sH), s(sT0)))
    A('s_mul_i32 %s, %s, 7' % (s(sA), s(sH)))
    A('s_add_u32 %s, %s, %s' % (s(sA), s(sA), s(sQ)))
    A('s_cmp_eq_u32 %s, 0' % s(sTY))
    A('s_cselect_b32 %s, %s, %s' % (s(S_W1), s(S_WQ), s(S_WV)))
    A('s_cselect_b32 %s, %s, %s' % (s(S_W1 + 1), s(S_WQ + 1), s(S_WV + 1)))
    A('s_mov_b32 %s, 3670016' % s(S_W1 + 2))
    A('s_mov_b32 %s, 0x00020000' % s(S_W1 + 3))
    A('s_cselect_b32 %s, 0x%x, 1.0' % (s(sSC), f2u(SCALE_LOG2E)))

def zero_flags(A):
    A('s_cmp_eq_u32 %s, 3' % s(sWAVE))
    A('s_cselect_b32 %s, 0, 0x70000000' % s(sT1))
    A('s_cselect_b64 vcc, 1, 0')
    lexpr(A, 'v13', 'v0', [(0, 6, 16)], s(sT1), 'v1')
    A('v_mov_b32 v3, %d' % OOB)
    A('s_and_b32 %s, %s, 3' % (s(sT0), s(sRHO)))
    A('s_lshl_b32 %s, %s, 6' % (s(sT0), s(sT0)))
    A('s_add_u32 %s, %s, %d' % (s(sT0), s(sT0), D_INIT * 4))
    A('v_mov_b32 v1, %s' % s(sT0))
    A('v_cndmask_b32 v11, v3, v1, vcc')
    A('s_lshl_b32 %s, %s, 6' % (s(sT0), s(sRHO)))
    A('s_mul_i32 %s, %s, 192' % (s(sT2), s(sRHO)))
    A('s_add_u32 %s, %s, %d' % (s(sT2), s(sT2), 0x4000 - 64))
    A('v_mov_b32 v1, %s' % s(sT0))
    A('v_mov_b32 v2, %s' % s(sT2))
    A('v_cmp_gt_u32 vcc, 16, v0')
    A('v_cndmask_b32 v2, v2, v1, vcc')
    A('v_lshl_add_u32 v2, v0, 2, v2')
    A('v_add_u32 v2, %s, v2' % s(sT1))
    A('v_mov_b32 v3, 0')
    A('v_mov_b32 v12, 1')
    for i in range(4): A('v_mov_b32 %s, -1' % v(16 + i))
    A('s_mov_b32 %s, %d' % (s(sT0), FLAGS))
    A('buffer_store_dword v3, v2, %s, %s offen sc1' % (s(S_WS, 4), s(sT0)))
    A('s_lshl_b32 %s, %s, 11' % (s(sT0), s(sRHO)))
    A('s_add_u32 %s, %s, %d' % (s(sT0), s(sT0), HM_OFF))
    A('buffer_store_dwordx4 v[16:19], v13, %s, %s offen sc1' % (s(S_WS, 4), s(sT0)))
    A('buffer_store_dwordx4 v[16:19], v13, %s, %s offen offset:1024 sc1' % (s(S_WS, 4), s(sT0)))

sXGD = 100
def xg_load(A):
    A('s_lshl_b32 %s, %s, 2' % (s(sT0), s(sRHO)))
    A('s_add_u32 %s, %s, %s' % (s(sT0), s(sT0), s(sWAVE)))
    A('s_mul_i32 %s, %s, 9363' % (s(sT1), s(sT0)))
    A('s_lshr_b32 %s, %s, 16' % (s(sT1), s(sT1)))
    A('s_mul_i32 %s, %s, 7' % (s(sT2), s(sT1)))
    A('s_sub_u32 %s, %s, %s' % (s(sT2), s(sT0), s(sT2)))
    A('s_lshl_b32 %s, %s, 7' % (s(sT2), s(sT2)))
    A('s_lshr_b32 %s, %s, 1' % (s(sT3), s(sT1)))
    A('s_mul_i32 %s, %s, 28672' % (s(sT3), s(sT3)))
    A('s_add_u32 %s, %s, %s' % (s(sT2), s(sT2), s(sT3)))
    A('s_and_b32 %s, %s, 1' % (s(sT3), s(sT1)))
    A('s_mul_i32 %s, %s, %d' % (s(sT3), s(sT3), 4 * 896))
    A('s_add_u32 %s, %s, %s' % (s(sT2), s(sT2), s(sT3)))
    lexpr(A, 'v48', 'v0', [(2, 2, 8 * 896), (0, 2, 896), (4, 2, 16)], 0, 'v1')
    A('buffer_load_dwordx4 v[40:43], v48, %s, %s offen' % (s(S_BX, 4), s(sT2)))
    A('buffer_load_dwordx4 v[44:47], v48, %s, %s offen offset:64' % (s(S_BX, 4), s(sT2)))
    A('s_lshl_b32 %s, %s, 11' % (s(sXGD), s(sT0)))
    A('s_add_u32 %s, %s, %d' % (s(sXGD), s(sXGD), XG_OFF))
    A('s_lshr_b32 %s, %s, 1' % (s(sT1), s(sT1)))
    A('s_mul_i32 %s, %s, 14' % (s(sT2), s(sT1)))
    A('s_sub_u32 %s, %s, %s' % (s(sT0), s(sT0), s(sT2)))
    A('s_lshl_b32 %s, %s, 15' % (s(sXGD + 1), s(sT1)))
    A('s_lshl_b32 %s, %s, 11' % (s(sT2), s(sT0)))
    A('s_add_u32 %s, %s, %s' % (s(sXGD + 1), s(sXGD + 1), s(sT2)))
    A('s_add_u32 %s, %s, %d' % (s(sXGD + 1), s(sXGD + 1), XF_OFF))
    A('s_mul_i32 %s, %s, 28672' % (s(sT1), s(sT1)))
    A('s_lshr_b32 %s, %s, 1' % (s(sT2), s(sT0)))
    A('s_lshl_b32 %s, %s, 5' % (s(sT2), s(sT2)))
    A('s_add_u32 %s, %s, %s' % (s(sT1), s(sT1), s(sT2)))
    A('s_and_b32 %s, %s, 1' % (s(sT2), s(sT0)))
    A('s_mul_i32 %s, %s, 896' % (s(sT2), s(sT2)))
    A('s_add_u32 %s, %s, %s' % (s(sT1), s(sT1), s(sT2)))
    lexpr(A, 'v49', 'v0', [(3, 1, 16 * 896), (0, 2, 4 * 896), (2, 1, 2 * 896), (5, 1, 224), (4, 1, 16)], 0, 'v1')
    A('buffer_load_dwordx4 v[32:35], v49, %s, %s offen' % (s(S_BX, 4), s(sT1)))
    A('buffer_load_dwordx4 v[36:39], v49, %s, %s offen offset:448' % (s(S_BX, 4), s(sT1)))
    A('v_lshlrev_b32 v48, 4, v0')

WF = 256
vST = 4
def phase_w1(A):
    W2F = 256
    AFR = (64, 96)
    DD = (128, 160)
    PC = 192
    vSRC, vRD, vDST, vR2W, vR2R, vG2 = 16, 24, 28, 8, 9, 10
    R2 = 3 * 32768
    sB1, sCI, sRING, sCS = sO3, sSEG, sCNT, 83
    vm = ['i', 'i', 'i']
    done = [0]
    def V(x, tag):
        A(x); vm.append(tag)
    def vwait(tag):
        last = max(i for i, tg in enumerate(vm) if tg == tag)
        return 's_waitcnt vmcnt(%d)' % (len(vm) - 1 - last)
    A('s_cmp_lg_u32 %s, 0' % s(sTY))
    A('s_cbranch_scc1 L_w1_b')
    lexpr(A, v(vG2), 'v0', [(5, 1, 8192), (0, 5, 16)], 0, 'v1')
    A('s_lshl_b32 %s, %s, 2' % (s(sT0), s(sQ)))
    A('s_add_u32 %s, %s, %s' % (s(sT0), s(sT0), s(sWAVE)))
    A('s_lshl_b32 %s, %s, 17' % (s(sT0), s(sT0)))
    A('s_lshl_b32 %s, %s, 9' % (s(sT1), s(sH)))
    A('s_add_u32 %s, %s, %s' % (s(sT0), s(sT0), s(sT1)))
    for j in range(8):
        A('buffer_load_dwordx4 %s, %s, %s, %s offen' % (v(64 + 4 * j, 4), v(vG2), s(S_WK, 4), s(sT0)))
        if j < 7: A('s_add_u32 %s, %s, 16384' % (s(sT0), s(sT0)))
    A('s_branch L_w1_c')
    A.label('L_w1_b')
    if PRM['bdel']: A('s_sleep %d' % PRM['bdel'])
    lexpr(A, v(vG2), 'v0', [(3, 3, 896), (0, 3, 16)], 0, 'v1')
    A('s_mul_i32 %s, %s, 229376' % (s(sT0), s(sH)))
    A('s_mul_i32 %s, %s, %d' % (s(sT1), s(sWAVE), 64 * 896))
    A('s_add_u32 %s, %s, %s' % (s(sT0), s(sT0), s(sT1)))
    A('s_lshl_b32 %s, %s, 7' % (s(sT1), s(sQ)))
    A('s_add_u32 %s, %s, %s' % (s(sT0), s(sT0), s(sT1)))
    for j in range(8):
        A('buffer_load_dwordx4 %s, %s, %s, %s offen' % (v(64 + 4 * j, 4), v(vG2), s(S_WO, 4), s(sT0)))
        if j < 7: A('s_add_u32 %s, %s, %d' % (s(sT0), s(sT0), 8 * 896))
    A.label('L_w1_c')
    vm.extend(['w2'] * 8)
    A('v_lshrrev_b32 v1, 5, v0')
    A('v_and_b32 v2, 31, v0')
    A('v_xor_b32 v2, v2, v1')
    A('v_lshlrev_b32 v1, 13, v1')
    for j in range(8):
        g = j >> 1
        rowoff = 16 * (g >> 1) + 4 * (g & 1) + 8 * (j & 1)
        A('v_xor_b32 v3, %d, v2' % (2 * j))
        A('v_lshl_add_u32 v3, v3, 4, v1')
        A('v_add_u32 %s, %d, v3' % (v(vSRC + j), rowoff * 8192))
    A('s_lshl_b32 %s, %s, 9' % (s(sB1), s(sH)))
    A('s_lshl_b32 %s, %s, 13' % (s(sRING), s(sWAVE)))
    if PRM['wrot'] == 3:
        A('s_and_b32 %s, %s, 1' % (s(sT0), s(sQ)))
        A('s_lshl_b32 %s, %s, 2' % (s(sT0), s(sT0)))
    else: A('s_mul_i32 %s, %s, %d' % (s(sT0), s(sQ), PRM['wrot']))
    A('s_add_u32 %s, %s, %s' % (s(sT0), s(sT0), s(sWAVE)))
    for i in range(4):
        A('s_add_u32 %s, %s, %d' % (s(96 + i), s(sT0), 4 * i))
        A('s_sub_u32 %s, %s, 14' % (s(sT1), s(96 + i)))
        A('s_cmp_ge_u32 %s, 14' % s(96 + i))
        A('s_cselect_b32 %s, %s, %s' % (s(96 + i), s(sT1), s(96 + i)))
    def dma(tl):
        i, T = tl >> 1, tl & 1
        o = [('s_lshl_b32 %s, %s, 18' % (s(sO2), s(96 + i)), None), ('s_add_u32 %s, %s, %s' % (s(sO2), s(sO2), s(sB1)), None)]
        if T: o.append(('s_add_u32 %s, %s, %d' % (s(sO2), s(sO2), 2 * 8192), None))
        for j in range(8):
            o.append(('s_add_u32 m0, %s, %d' % (s(sRING), (tl & 3) * 32768 + j * 1024), None))
            o.append(('buffer_load_dwordx4 %s, %s, %s offen%s lds' % (v(vSRC + j), s(S_W1, 4), s(sO2), PRM_S['wfl']), 't%d' % tl))
        return o
    def emit(x):
        if x[1]: V(x[0], x[1])
        elif callable(x[0]): A(x[0]())
        else: A(x[0])
    for x in dma(0): emit(x)
    A(vwait('i'))
    V('buffer_atomic_add v12, v11, %s, 0 offen' % s(S_DBG, 4), 'at')
    for x in dma(1): emit(x)
    A('v_and_b32 v1, 15, v0')
    A('v_lshrrev_b32 v2, 4, v0')
    A('v_xor_b32 v2, v2, v1')
    A('v_lshl_add_u32 v1, v1, 9, %s' % s(sRING))
    for k in range(4):
        A('v_xor_b32 v3, %d, v2' % (4 * k))
        A('v_lshl_add_u32 %s, v3, 4, v1' % v(vRD + k))
    A('s_cmp_lg_u32 %s, 0' % s(sTY))
    A('s_cbranch_scc1 L_w1_b2')
    A('s_mul_i32 %s, %s, %d' % (s(sT0), s(sWAVE), 16 * 528))
    A('s_add_u32 %s, %s, %d' % (s(sT0), s(sT0), R2))
    lexpr(A, v(vR2W), 'v0', [(5, 1, 528), (0, 5, 16)], s(sT0), 'v1')
    lexpr(A, v(vR2R), 'v0', [(0, 4, 528), (4, 2, 16)], R2, 'v1')
    A('s_mul_i32 %s, %s, %d' % (s(sT0), s(sH), WCU))
    A('s_lshl_b32 %s, %s, 12' % (s(sT1), s(sQ)))
    A('s_add_u32 %s, %s, %s' % (s(sT0), s(sT0), s(sT1)))
    lexpr(A, v(vDST), 'v0', [(0, 6, 16)], s(sT0), 'v1')
    for nt in range(1, 4): A('v_add_u32 %s, %d, %s' % (v(vDST + nt), nt * 1024, v(vDST)))
    A('s_mov_b32 %s, 28672' % s(sCS))
    A(vwait('w2'))
    levent(A, 1)
    for j in range(8): A('ds_write_b128 %s, %s offset:%d' % (v(vR2W), v(64 + 4 * j, 4), j * 1056))
    A('s_waitcnt lgkmcnt(0)')
    A('s_barrier')
    for nt in range(4):
        for ks in range(8):
            A('ds_read_b128 %s, %s offset:%d' % (u(W2F + (nt * 8 + ks) * 4, 4), v(vR2R), nt * 16 * 528 + ks * 64))
            if ks % 4 == 3: A('s_waitcnt lgkmcnt(8)')
    A('s_branch L_w1_c2')
    A.label('L_w1_b2')
    A('s_mul_i32 %s, %s, %d' % (s(sT0), s(sWAVE), 64 * 144))
    A('s_add_u32 %s, %s, %d' % (s(sT0), s(sT0), R2))
    lexpr(A, v(vR2W), 'v0', [(3, 3, 144), (0, 3, 8)], s(sT0), 'v1')
    lexpr(A, v(vR2R), 'v0', [(4, 2, 8 * 144), (2, 2, 144), (0, 2, 8)], R2, 'v1')
    A('s_mul_i32 %s, %s, %d' % (s(sT0), s(sQ), 2 * WCV))
    A('s_lshl_b32 %s, %s, 11' % (s(sT1), s(sH)))
    A('s_add_u32 %s, %s, %s' % (s(sT0), s(sT0), s(sT1)))
    A('s_add_u32 %s, %s, %d' % (s(sT0), s(sT0), WIMGV))
    lexpr(A, v(vDST), 'v0', [(0, 6, 16)], s(sT0), 'v1')
    for nt in range(1, 4): A('v_add_u32 %s, %d, %s' % (v(vDST + nt), (nt & 1) * WCV + (nt >> 1) * 1024, v(vDST)))
    A('s_mov_b32 %s, 32768' % s(sCS))
    A('s_mov_b32 %s, 0x05040100' % s(sT0))
    A('s_mov_b32 %s, 0x07060302' % s(sT1))
    A(vwait('w2'))
    levent(A, 1)
    for j in range(8):
        r, o = 64 + 4 * j, 96 + 4 * j
        A('v_perm_b32 %s, %s, %s, %s' % (v(o), v(r + 1), v(r), s(sT0)))
        A('v_perm_b32 %s, %s, %s, %s' % (v(o + 1), v(r + 3), v(r + 2), s(sT0)))
        A('v_perm_b32 %s, %s, %s, %s' % (v(o + 2), v(r + 1), v(r), s(sT1)))
        A('v_perm_b32 %s, %s, %s, %s' % (v(o + 3), v(r + 3), v(r + 2), s(sT1)))
        A('ds_write_b64 %s, %s offset:%d' % (v(vR2W), v(o, 2), j * 8 * 144))
        A('ds_write_b64 %s, %s offset:%d' % (v(vR2W), v(o + 2, 2), j * 8 * 144 + 64))
        if j == 4: A('s_waitcnt lgkmcnt(4)')
    A('s_waitcnt lgkmcnt(0)')
    A('s_barrier')
    for nt in range(4):
        for ks in range(8):
            for tt in range(2):
                A('ds_read_b64_tr_b16 %s, %s offset:%d' % (u(W2F + (nt * 8 + ks) * 4 + 2 * tt, 2), v(vR2R), (32 * ks + 4 * tt) * 144 + (nt >> 1) * 64 + (nt & 1) * 32))
            if ks % 2 == 1: A('s_waitcnt lgkmcnt(8)')
    A.label('L_w1_c2')
    for x in dma(2): emit(x)
    xst = ['buffer_store_dwordx4 v[32:35], v48, %s, %s offen sc1' % (s(S_WS, 4), s(sXGD + 1)),
           'buffer_store_dwordx4 v[36:39], v48, %s, %s offen offset:1024 sc1' % (s(S_WS, 4), s(sXGD + 1)),
           'buffer_store_dwordx4 v[40:43], v48, %s, %s offen sc1' % (s(S_WS, 4), s(sXGD)),
           'buffer_store_dwordx4 v[44:47], v48, %s, %s offen offset:1024 sc1' % (s(S_WS, 4), s(sXGD))]
    def reads(tl):
        o = [((lambda tl=tl: vwait('t%d' % tl)), None)]
        for ks in range(8):
            off = (tl & 3) * 32768 + (ks >> 2) * 256
            if off > 65535: reg, off = vRD + 36 + (ks & 3), off - 65536
            else: reg = vRD + (ks & 3)
            o.append(('ds_read_b128 %s, %s offset:%d' % (v(AFR[tl & 1] + 4 * ks, 4), v(reg), off), None))
        return o
    for k in range(4): A('v_add_u32 %s, 0x10000, %s' % (v(vRD + 36 + k), v(vRD + k)))
    def post(i):
        D = DD[i & 1]
        o = [('s_mul_i32 %s, %s, %s' % (s(sT3), s(96 + i), s(sCS)), None)]
        for nt in range(4):
            for T in range(2):
                d = D + (T * 4 + nt) * 4
                for r in range(4): o.append(('v_mul_f32 %s, %s, %s' % (v(d + r), s(sSC), v(d + r)), None))
                pc = PC + (i * 4 + nt) * 4 + 2 * T
                o.append(('v_cvt_pk_bf16_f32 %s, %s, %s' % (v(pc), v(d), v(d + 1)), None))
                o.append(('v_cvt_pk_bf16_f32 %s, %s, %s' % (v(pc + 1), v(d + 2), v(d + 3)), None))
            o.append(('buffer_store_dwordx4 %s, %s, %s, %s offen sc1' % (v(PC + (i * 4 + nt) * 4, 4), v(vDST + nt), s(S_WS, 4), s(sT3)), 'st%d' % i))
        return o
    levent(A, 2)
    for x in reads(0): emit(x)
    A('s_waitcnt lgkmcnt(0)')
    A('s_barrier')
    A('s_lshl_b32 %s, %s, 6' % (s(sT0), s(sRHO)))
    A('s_lshl_b32 %s, %s, 2' % (s(sT1), s(sWAVE)))
    A('s_add_u32 %s, %s, %s' % (s(sT0), s(sT0), s(sT1)))
    A('s_add_u32 %s, %s, %d' % (s(sT0), s(sT0), FLG_W1))
    lane0_addr(A, 'v14', s(sT0))
    q2 = []
    for tl in range(8):
        if tl == PRM['wxs']:
            A(vwait('xl'))
            for x in xst: V(x, 'xs')
        if tl == 6:
            A(vwait('xs'))
            A('s_barrier')
            A('v_mov_b32 v15, 1')
            V('buffer_atomic_add v15, v11, %s, 0 offen offset:%d' % (s(S_DBG, 4), (D_XG - D_INIT) * 4), 'at')
        if tl == PRM['wxl']:
            xg_load(A); vm.extend(['xl'] * 4)
        if tl == 6:
            for x in q2: emit(x)
            q2 = []
            A('s_cmp_ge_u32 %s, 2' % s(sWAVE))
            A('s_cbranch_scc0 L_w1_last')
            for x in post(2):
                if callable(x[0]): A(x[0]())
                else: A(x[0])
            A('s_branch L_w1_done')
            A.label('L_w1_last')
        A('s_waitcnt lgkmcnt(0)')
        if tl == 2: levent(A, 0)
        D = DD[(tl >> 1) & 1] + (tl & 1) * 16
        if PRM['wfast']:
            q1 = []
            for d_ in {0: [3], 2: [4], 3: [5], 4: [6], 5: [7]}.get(tl, []): q1 += dma(d_)
        else: q1 = (dma(tl + 3) if tl + 3 < 8 else [])
        qr = reads(tl + 1) if tl < 7 else []
        if tl >= 2 and tl % 2 == 0: q2 = post(tl // 2 - 1)
        if tl == 2 and PRM['wfast']:
            for x in q2: emit(x)
            q2 = []
        n = 0
        for ks in range(8):
            for nt in range(4):
                A('v_mfma_f32_16x16x32_bf16 %s, %s, %s, %s' % (v(D + 4 * nt, 4), v(AFR[tl & 1] + 4 * ks, 4), u(W2F + (nt * 8 + ks) * 4, 4), '0' if ks == 0 else v(D + 4 * nt, 4)))
                n += 1
                def pop(qq):
                    while qq:
                        x = qq.pop(0); emit(x)
                        if not callable(x[0]) and not x[0].startswith('s_'): break
                if n >= 3:
                    pop(q2); pop(q2)
                if n % PRM['wsp'] == 1: pop(q1)
                if n >= 16 and n % 2 == 0: pop(qr)
                if tl in (3, 5, 7) and n == (PRM['wfn0'] if (tl == 3 and PRM['wfast']) else PRM['wfn']):
                    A(vwait('st%d' % (tl // 2 - 1)))
                    if tl == 3: levent(A, 3)
                    A('v_mov_b32 v12, %d' % (tl // 2))
                    V('buffer_store_dword v12, v14, %s, 0 offen sc1' % s(S_WS, 4), 'fl')
        for x in q1 + qr: emit(x)
    for x in q2 + post(3): emit(x)
    A.label('L_w1_done')
    A('v_mov_b32 v9, 4')
    A('s_waitcnt vmcnt(0)')
    A('buffer_store_dword v9, v14, %s, 0 offen sc1' % s(S_WS, 4))
    event(A, 2)
    levent_flush(A, 4, 9)
    A('s_waitcnt lgkmcnt(0)')
    A('s_barrier')

def phase_w1b(A):
    PC = 192
    lexpr(A, 'v8', 'v0', [(0, 4, 912), (5, 1, 32), (4, 1, 8)], 0, 'v1')
    for i in range(4):
        if i == 3:
            A('s_cmp_ge_u32 %s, 2' % s(sWAVE))
            A('s_cbranch_scc1 L_w1b_s')
        A('s_lshl_b32 %s, %s, 6' % (s(sT0), s(96 + i)))
        for nt in range(4):
            A('s_add_u32 %s, %s, %d' % (s(sT1), s(sT0), nt * 16 * 912))
            A('v_add_u32 v9, %s, v8' % s(sT1))
            pc = PC + (i * 4 + nt) * 4
            A('ds_write2_b32 v9, %s, %s offset0:0 offset1:1' % (v(pc), v(pc + 2)))
            A('ds_write2_b32 v9, %s, %s offset0:4 offset1:5' % (v(pc + 1), v(pc + 3)))
        A('s_waitcnt lgkmcnt(4)')
    A.label('L_w1b_s')
    A('s_cmp_lg_u32 %s, 0' % s(sTY))
    A('s_cbranch_scc1 L_w1b_b')
    for nt in range(4):
        lexpr(A, v(12 + nt), 'v0', [(2, 2, 8 * 912), (0, 2, 912), (4, 2, 16)], (32 * (nt >> 1) + 4 * (nt & 1)) * 912, 'v1')
    A('s_mul_i32 %s, %s, 28672' % (s(sT0), s(sH)))
    A('s_lshl_b32 %s, %s, 11' % (s(sT1), s(sQ)))
    A('s_add_u32 %s, %s, %s' % (s(sT0), s(sT0), s(sT1)))
    lexpr(A, v(vST), 'v0', [(0, 6, 16)], s(sT0), 'v1')
    A('v_add_u32 %s, 1024, %s' % (v(vST + 1), v(vST)))
    A('v_add_u32 %s, 14336, %s' % (v(vST + 2), v(vST)))
    A('v_add_u32 %s, 15360, %s' % (v(vST + 3), v(vST)))
    A('s_mov_b32 %s, %d' % (s(sO3), YX_OFF))
    A('s_branch L_w1b_c')
    A.label('L_w1b_b')
    for nt in range(4):
        lexpr(A, v(12 + nt), 'v0', [(0, 4, 912), (4, 2, 16)], 16 * nt * 912, 'v1')
    A('s_mul_i32 %s, %s, 28672' % (s(sT0), s(sH)))
    A('s_lshl_b32 %s, %s, 12' % (s(sT1), s(sQ)))
    A('s_add_u32 %s, %s, %s' % (s(sT0), s(sT0), s(sT1)))
    lexpr(A, v(vST), 'v0', [(0, 6, 16)], s(sT0), 'v1')
    for nt in range(1, 4): A('v_add_u32 %s, %d, %s' % (v(vST + nt), (nt & 1) * 2048 + (nt >> 1) * 1024, v(vST)))
    A('s_mov_b32 %s, %d' % (s(sO3), U_OFF))
    A.label('L_w1b_c')
    A('s_waitcnt lgkmcnt(0)')
    A('s_barrier')
    for nt in range(4):
        for ks in range(14):
            A('ds_read_b128 %s, %s offset:%d' % (u(WF + (nt * 14 + ks) * 4, 4), v(12 + nt), ks * 64))
            if ks % 7 == 6: A('s_waitcnt lgkmcnt(7)')
    A('s_waitcnt lgkmcnt(0)')
    wait_dbg(A, D_XG, 56, 16)

def phase_w2(A, ty):
    tag = 'AB'[ty]
    D, PK = 16, 48
    vXG, vFL, vFV = 8, 9, 10
    def X(b, t, ks):
        r = 64 + b * 112 + (t * 14 + ks) * 4
        return u(r if r < 256 else r - 256 + 256 + 224, 4)
    A.label('L_w2' + tag)
    lexpr(A, v(vXG), 'v0', [(0, 6, 16)], 0, 'v1')
    A('s_lshl_b32 %s, %s, 2' % (s(sT0), s(sA)))
    A('s_add_u32 %s, %s, %s' % (s(sT0), s(sT0), s(sWAVE)))
    A('s_lshl_b32 %s, %s, 2' % (s(sT0), s(sT0)))
    A('s_add_u32 %s, %s, %d' % (s(sT0), s(sT0), FLG_W2 + ty * 1792))
    A('v_mov_b32 v1, %s' % s(sT0))
    A('v_mov_b32 v2, %d' % OOB)
    A('v_cmp_eq_u32 vcc, 0, v0')
    A('v_cndmask_b32 %s, v2, v1, vcc' % v(vFL))
    A('s_mul_i32 %s, %s, 28672' % (s(sO1), s(sWAVE)))
    A('s_add_u32 %s, %s, %d' % (s(sO1), s(sO1), XG_OFF))
    A('s_mul_i32 %s, %s, %d' % (s(sT0), s(sWAVE), 16 * 28672))
    A('s_add_u32 %s, %s, %s' % (s(sO3), s(sO3), s(sT0)))
    A('s_mov_b32 %s, 0' % s(sCNT))
    def loads(b):
        out = []
        for n in range(28):
            ks, t = n >> 1, n & 1
            off = t * 14336 + ks * 1024
            g = []
            if n % 2 == 0 or True:
                g.append('s_add_u32 %s, %s, %d' % (s(sT2), s(sO1), off & ~4095))
            g.append('buffer_load_dwordx4 %s, %s, %s, %s offen offset:%d sc1' % (X(b, t, ks), v(vXG), s(S_WS, 4), s(sT2), off & 4095))
            out.append(g)
        return out
    for g in loads(0):
        for x in g: A(x)
    A('s_add_u32 %s, %s, %d' % (s(sO1), s(sO1), 4 * 28672))
    for _ in range(5): A('buffer_store_dword v1, v2, %s, 0 offen' % s(S_WS, 4))
    LP = 'L_w2loop' + tag
    A.label(LP)
    for b in range(2):
        ld = loads(1 - b)
        issued = 0
        for ks in range(14):
            A('s_waitcnt vmcnt(%d)' % min(63, 26 - 2 * ks + 5 + issued))
            for t in range(2):
                for nt in range(4):
                    d = v(D + (t * 4 + nt) * 4, 4)
                    w_, x_ = u(WF + (nt * 14 + ks) * 4, 4), X(b, t, ks)
                    a_, b_ = (w_, x_) if ty == 0 else (x_, w_)
                    A('v_mfma_f32_16x16x32_bf16 %s, %s, %s, %s' % (d, a_, b_, '0' if ks == 0 else d))
                    if nt == 1:
                        for x in ld.pop(0): A(x)
                        issued += 1
        A('s_add_u32 %s, %s, %d' % (s(sO1), s(sO1), 4 * 28672))
        A('s_waitcnt vmcnt(28)')
        A('v_mov_b32 %s, %s' % (v(vFV), s(sCNT)))
        A('buffer_store_dword %s, %s, %s, 0 offen sc1' % (v(vFV), v(vFL), s(S_WS, 4)))
        for k in range(4):
            if ty == 0: t, aa = k >> 1, k & 1; d0, d1 = D + (t * 4 + 2 * aa) * 4, D + (t * 4 + 2 * aa + 1) * 4
            else: d0, d1 = D + k * 4, D + (4 + k) * 4
            A('v_cvt_pk_bf16_f32 %s, %s, %s' % (v(PK + 4 * k), v(d0), v(d0 + 1)))
            A('v_cvt_pk_bf16_f32 %s, %s, %s' % (v(PK + 4 * k + 1), v(d0 + 2), v(d0 + 3)))
            A('v_cvt_pk_bf16_f32 %s, %s, %s' % (v(PK + 4 * k + 2), v(d1), v(d1 + 1)))
            A('v_cvt_pk_bf16_f32 %s, %s, %s' % (v(PK + 4 * k + 3), v(d1 + 2), v(d1 + 3)))
            A('buffer_store_dwordx4 %s, %s, %s, %s offen sc1' % (v(PK + 4 * k, 4), v(vST + k), s(S_WS, 4), s(sO3)))
        A('s_add_u32 %s, %s, %d' % (s(sO3), s(sO3), 4 * 16 * 28672))
        A('s_add_u32 %s, %s, 1' % (s(sCNT), s(sCNT)))
    A('s_cmp_lt_u32 %s, 16' % s(sCNT))
    A('s_cbranch_scc1 %s' % LP)
    A('s_waitcnt vmcnt(0)')
    A('v_mov_b32 %s, 16' % v(vFV))
    A('buffer_store_dword %s, %s, %s, 0 offen sc1' % (v(vFV), v(vFL), s(S_WS, 4)))

def wait_flags(A, vaddr, soff, sval, sleep, tmp='v3', coarse=False):
    l = A.newlabel('L_wf')
    A.label(l)
    A('buffer_load_dword %s, %s, %s, %s offen sc1' % (tmp, vaddr, s(S_WS, 4), soff))
    A('s_waitcnt vmcnt(0)')
    A('v_cmp_gt_u32 vcc, %s, %s' % (sval, tmp))
    if coarse:
        fine = A.newlabel('L_wff')
        spin_check(A, l, ['s_cmp_ge_u32 %s, %d' % (s(sSEG), PRM['fine']), 's_cbranch_scc1 %s' % fine, 's_sleep %d' % PRM['zs'], fine + ':', 's_sleep 1'])
    else: spin_check(A, l, ['s_sleep %d' % sleep])

def load_hm(A, M, va, vb, so, mm):
    l = A.newlabel('L_hm'); l2 = A.newlabel('L_hm2'); l3 = A.newlabel('L_hm3')
    ld = ['buffer_load_dwordx4 %s, %s, %s, %s offen offset:%d sc1' % (v(M + 4 * ks, 4), va if ks < 8 else vb, s(S_WS, 4), s(so), (ks & 7) * 512) for ks in range(14)]
    A('s_sub_u32 %s, %s, %d' % (s(sT2), s(so), HM_STEP))
    A('s_cmp_ge_u32 %s, %d' % (s(sSEG), PRM['fine']))
    A('s_cselect_b32 %s, %s, %s' % (s(sT2), s(sT2), s(so)))
    A.label(l)
    A('buffer_load_dword v3, %s, %s, %s offen offset:2560 sc1' % (vb, s(S_WS, 4), s(sT2)))
    A('s_waitcnt vmcnt(0)')
    A('v_cmp_eq_u32 vcc, -1, v3')
    spin_check(A, l, ['s_sleep %d' % PRM['zs']])
    A.label(l2)
    for x in ld: A(x)
    A('s_waitcnt vmcnt(13)')
    A('v_cmp_eq_u32 vcc, -1, %s' % v(M))
    spin_check(A, l2, ['s_waitcnt vmcnt(0)'])
    for ks in range(14):
        A('s_waitcnt vmcnt(%d)' % (13 - ks))
        mm(ks)
        r = M + 4 * ks
        if ks == 0: A('v_max_u32 v3, %s, %s' % (v(r), v(r + 1)))
        else: A('v_max3_u32 v3, v3, %s, %s' % (v(r), v(r + 1)))
        A('v_max3_u32 v3, v3, %s, %s' % (v(r + 2), v(r + 3)))
    A('v_cmp_eq_u32 vcc, -1, v3')
    spin_check(A, l2)

def lane0_addr(A, dst, sreg):
    A('v_mov_b32 v1, %s' % sreg)
    A('v_mov_b32 v2, %d' % OOB)
    A('v_cmp_eq_u32 vcc, 0, v0')
    A('v_cndmask_b32 %s, v2, v1, vcc' % dst)

def phase_z(A):
    D, M = 16, 64
    vHF, vHM, vFL = 8, 9, 10
    lexpr(A, v(vHM), 'v0', [(4, 2, 128), (0, 3, 16)], 0, 'v1')
    A('v_add_u32 v11, 4096, %s' % v(vHM))
    A('s_lshl_b32 %s, %s, 5' % (s(sT0), s(sA)))
    A('s_add_u32 %s, %s, %s' % (s(sT0), s(sT0), s(sWAVE)))
    A('s_lshl_b32 %s, %s, 2' % (s(sT0), s(sT0)))
    A('s_add_u32 %s, %s, %d' % (s(sT0), s(sT0), FLG_Z))
    lane0_addr(A, v(vFL), s(sT0))
    A('s_lshr_b32 %s, %s, 2' % (s(sT0), s(sH)))
    A('s_mul_i32 %s, %s, 28672' % (s(sT0), s(sT0)))
    A('s_and_b32 %s, %s, 3' % (s(sT1), s(sH)))
    A('s_lshl_b32 %s, %s, 8' % (s(sT1), s(sT1)))
    A('s_add_u32 %s, %s, %s' % (s(sT0), s(sT0), s(sT1)))
    A('s_lshl_b32 %s, %s, 12' % (s(sT1), s(sQ)))
    A('s_add_u32 %s, %s, %s' % (s(sT0), s(sT0), s(sT1)))
    lexpr(A, 'v12', 'v0', [(0, 4, 16), (4, 1, 8)], s(sT0), 'v1')
    A('v_cmp_gt_u32 vcc, 32, v0')
    A('v_cndmask_b32 %s, v2, v12, vcc' % v(vST))
    A('s_mul_i32 %s, %s, 28672' % (s(sT0), s(sH)))
    A('s_lshl_b32 %s, %s, 12' % (s(sT1), s(sQ)))
    A('s_add_u32 %s, %s, %s' % (s(sT0), s(sT0), s(sT1)))
    A('s_add_u32 %s, %s, %d' % (s(sT0), s(sT0), U_OFF))
    lexpr(A, 'v13', 'v0', [(0, 5, 128)], s(sT0), 'v1')
    A('s_mov_b32 %s, %s' % (s(sSEG), s(sWAVE)))
    A('s_mov_b32 %s, 0' % s(sCNT))
    A.label('L_zloop')
    A('s_mul_i32 %s, %s, %d' % (s(sO1), s(sSEG), HM_STEP))
    A('s_add_u32 %s, %s, %d' % (s(sO1), s(sO1), HM_OFF))
    A('s_mul_i32 %s, %s, %d' % (s(sO2), s(sSEG), HZ_STEP))
    A('s_add_u32 %s, %s, %d' % (s(sO2), s(sO2), HZ_OFF))
    def mm(ks):
        for nt in range(4):
            d = v(D + 4 * nt, 4)
            A('v_mfma_f32_16x16x32_bf16 %s, %s, %s, %s' % (d, v(M + 4 * ks, 4), u(WF + (nt * 14 + ks) * 4, 4), '0' if ks == 0 else d))
    load_hm(A, M, v(vHM), 'v11', sO1, mm)
    for nt in range(4):
        d = D + 4 * nt
        A('v_cvt_pk_bf16_f32 %s, %s, %s' % (v(d), v(d), v(d + 1)))
        A('v_cvt_pk_bf16_f32 %s, %s, %s' % (v(d + 1), v(d + 2), v(d + 3)))
        A('buffer_store_dwordx2 %s, %s, %s, %s offen offset:%d sc1' % (v(d, 2), v(vST), s(S_WS, 4), s(sO2), (nt & 1) * 2048 + (nt >> 1) * 1024))
    A('s_add_u32 %s, %s, 1' % (s(sCNT), s(sCNT)))
    A('v_mov_b32 v3, %s' % s(sCNT))
    A('s_waitcnt vmcnt(0)')
    A('buffer_store_dword v3, %s, %s, 0 offen sc1' % (v(vFL), s(S_WS, 4)))
    if PRM['upd']:
        A('s_add_u32 %s, %s, %d' % (s(sT0), s(sSEG), PRM['upd']))
        A('s_min_u32 %s, %s, 63' % (s(sT0), s(sT0)))
        A('s_mul_i32 %s, %s, %d' % (s(sT0), s(sT0), 16 * 28672))
        A('buffer_load_dword v14, v13, %s, %s offen sc1' % (s(S_WS, 4), s(sT0)))
    A('s_add_u32 %s, %s, 4' % (s(sSEG), s(sSEG)))
    A('s_cmp_lt_u32 %s, 64' % s(sSEG))
    A('s_cbranch_scc1 L_zloop')

sK = 82
def post_dispatch(A):
    A('s_mov_b32 s101, 0')
    A('s_and_b32 %s, %s, 7' % (s(sK), s(sA)))
    A('s_lshr_b32 %s, %s, 3' % (s(sSEG), s(sA)))
    A('s_cmp_ge_u32 %s, 4' % s(sK))
    A('s_cbranch_scc1 L_s2')

def seg_count(A, dst):
    A('s_lshr_b32 %s, %s, 2' % (dst, s(sSEG)))
    A('s_add_u32 %s, %s, 1' % (dst, dst))
    A('s_and_b32 %s, %s, 3' % (s(sT1), s(sSEG)))
    A('s_lshl_b32 %s, %s, 2' % (s(sT1), s(sT1)))

def phase_s1(A):
    XG_, YX_, HM_, D = 256, 256 + 112, 64, 16
    vL16, vYF, vHF, vHM, vHM2, vDL, vPX, vPM, vFL = 4, 5, 6, 7, 8, 9, 10, 11, 12
    T = 40
    sHD = sH
    A.label('L_s1')
    A('s_lshl_b32 %s, %s, 2' % (s(sHD), s(sK)))
    A('s_add_u32 %s, %s, %s' % (s(sHD), s(sHD), s(sWAVE)))
    lexpr(A, v(vL16), 'v0', [(0, 6, 16)], 0, 'v1')
    A('v_min_u32 v1, 6, v0')
    A('s_mul_i32 %s, %s, 7' % (s(sT0), s(sHD)))
    A('v_add_u32 v1, %s, v1' % s(sT0))
    A('v_lshlrev_b32 v1, 4, v1')
    A('v_add_u32 %s, %d, v1' % (v(vYF), FLG_W2))
    lexpr(A, v(vHM), 'v0', [(4, 2, 128), (0, 3, 16)], 0, 'v1')
    A('v_add_u32 %s, 4096, %s' % (v(vHM2), v(vHM)))
    lexpr(A, v(vDL), 'v0', [(2, 2, 8), (0, 2, 1)], 0, 'v1')
    A('v_lshrrev_b32 v1, 4, v0')
    A('v_lshlrev_b32 v1, 3, v1')
    A('v_sub_u32 %s, %s, v1' % (v(vDL), v(vDL)))
    A('s_lshl_b32 %s, %s, 11' % (s(sT0), s(sHD)))
    A('v_add_u32 %s, %s, %s' % (v(vPX), s(sT0), v(vL16)))
    A('s_lshl_b32 %s, %s, 11' % (s(sT0), s(sK)))
    A('s_lshl_b32 %s, %s, 8' % (s(sT1), s(sWAVE)))
    A('s_add_u32 %s, %s, %s' % (s(sT0), s(sT0), s(sT1)))
    A('s_add_u32 %s, %s, %d' % (s(sT0), s(sT0), 16 * 2048))
    lexpr(A, 'v13', 'v0', [(0, 4, 16), (4, 1, 8)], s(sT0), 'v1')
    A('v_mov_b32 v2, %d' % OOB)
    A('v_cmp_gt_u32 vcc, 32, v0')
    A('v_cndmask_b32 %s, v2, v13, vcc' % v(vPM))
    A('s_lshl_b32 %s, %s, 5' % (s(sT0), s(sA)))
    A('s_add_u32 %s, %s, %s' % (s(sT0), s(sT0), s(sWAVE)))
    A('s_lshl_b32 %s, %s, 2' % (s(sT0), s(sT0)))
    A('s_add_u32 %s, %s, %d' % (s(sT0), s(sT0), FLG_P))
    lane0_addr(A, v(vFL), s(sT0))
    A('v_mov_b32 v14, 0x%x' % f2u(-1.0e9 * 1.4426950408889634))
    A('v_mov_b32 v15, 0xff800000')
    A.label('L_s1loop')
    seg_count(A, s(sT0))
    wait_flags(A, v(vYF), s(sT1), s(sT0), 16)
    A('s_mul_i32 %s, %s, 28672' % (s(sO1), s(sSEG)))
    A('s_add_u32 %s, %s, %d' % (s(sO1), s(sO1), XG_OFF))
    A('s_lshl_b32 %s, %s, 4' % (s(sO2), s(sSEG)))
    A('s_add_u32 %s, %s, %s' % (s(sO2), s(sO2), s(sHD)))
    A('s_mul_i32 %s, %s, 28672' % (s(sO2), s(sO2)))
    A('s_add_u32 %s, %s, %d' % (s(sO2), s(sO2), YX_OFF))
    for ks in range(14):
        for base, so in ((XG_, sO1), (YX_, sO2)):
            for t in range(2):
                off = t * 14336 + ks * 1024
                A('s_add_u32 %s, %s, %d' % (s(sT2), s(so), off & ~4095))
                A('buffer_load_dwordx4 %s, %s, %s, %s offen offset:%d sc1' % (u(base + (t * 14 + ks) * 4, 4), v(vL16), s(S_WS, 4), s(sT2), off & 4095))
    def Dr(qt, t): return D + (qt * 3 + t) * 4
    for ks in range(14):
        A('s_waitcnt vmcnt(%d)' % (52 - 4 * ks))
        for qt in range(2):
            for t in range(2):
                d = v(Dr(qt, t), 4)
                A('v_mfma_f32_16x16x32_bf16 %s, %s, %s, %s' % (d, u(XG_ + (t * 14 + ks) * 4, 4), u(YX_ + (qt * 14 + ks) * 4, 4), '0' if ks == 0 else d))
    for qt in range(2):
        for t in range(2):
            for r in range(4):
                A('v_cmp_le_i32 vcc, %d, %s' % (4 * (t - qt) + r, v(vDL)))
                A('v_cndmask_b32 %s, v14, %s, vcc' % (v(Dr(qt, t) + r), v(Dr(qt, t) + r)))
        d = Dr(qt, 0)
        A('v_max3_f32 %s, %s, %s, %s' % (v(T + qt), v(d), v(d + 1), v(d + 2)))
        A('v_max3_f32 %s, %s, %s, %s' % (v(T + qt), v(T + qt), v(d + 3), v(d + 4)))
        A('v_max3_f32 %s, %s, %s, %s' % (v(T + qt), v(T + qt), v(d + 5), v(d + 6)))
        A('v_max_f32 %s, %s, %s' % (v(T + qt), v(T + qt), v(d + 7)))
    A('s_mul_i32 %s, %s, %d' % (s(sO1), s(sSEG), HM_STEP))
    A('s_add_u32 %s, %s, %d' % (s(sO1), s(sO1), HM_OFF))
    A('s_mul_i32 %s, %s, 40960' % (s(sO3), s(sSEG)))
    A('s_add_u32 %s, %s, %d' % (s(sO3), s(sO3), PP_OFF))
    def mm(ks):
        for qt in range(2):
            d = v(Dr(qt, 2), 4)
            A('v_mfma_f32_16x16x32_bf16 %s, %s, %s, %s' % (d, v(HM_ + 4 * ks, 4), u(YX_ + (qt * 14 + ks) * 4, 4), '0' if ks == 0 else d))
    load_hm(A, HM_, v(vHM), v(vHM2), sO1, mm)
    A('v_cmp_gt_u32 vcc, 32, v0')
    def xred(op):
        for sw in ('v_permlane16_swap_b32', 'v_permlane32_swap_b32'):
            for qt in range(2): A('v_mov_b32 %s, %s' % (v(T + 2 + qt), v(T + qt)))
            for qt in range(2): A('%s %s, %s' % (sw, v(T + qt), v(T + 2 + qt)))
            for qt in range(2): A('%s %s, %s, %s' % (op, v(T + qt), v(T + qt), v(T + 2 + qt)))
    for qt in range(2):
        d = Dr(qt, 2)
        for r in range(4): A('v_cndmask_b32 %s, v15, %s, vcc' % (v(d + r), v(d + r)))
        A('v_max3_f32 %s, %s, %s, %s' % (v(T + qt), v(T + qt), v(d), v(d + 1)))
        A('v_max3_f32 %s, %s, %s, %s' % (v(T + qt), v(T + qt), v(d + 2), v(d + 3)))
    xred('v_max_f32')
    for qt in range(2):
        d = Dr(qt, 0)
        for i in range(12): A('v_sub_f32 %s, %s, %s' % (v(d + i), v(d + i), v(T + qt)))
        for i in range(12): A('v_exp_f32 %s, %s' % (v(d + i), v(d + i)))
    for qt in range(2):
        d = Dr(qt, 0)
        A('v_add_f32 %s, %s, %s' % (v(T + qt), v(d), v(d + 1)))
        for i in range(2, 12): A('v_add_f32 %s, %s, %s' % (v(T + qt), v(T + qt), v(d + i)))
    xred('v_add_f32')
    for qt in range(2): A('v_rcp_f32 %s, %s' % (v(T + qt), v(T + qt)))
    for qt in range(2):
        d = Dr(qt, 0); o = T + 4 + 8 * qt
        for i in range(12): A('v_mul_f32 %s, %s, %s' % (v(d + i), v(d + i), v(T + qt)))
        for i in range(6): A('v_cvt_pk_bf16_f32 %s, %s, %s' % (v(o + i), v(d + 2 * i), v(d + 2 * i + 1)))
        A('buffer_store_dwordx4 %s, %s, %s, %s offen offset:%d sc1' % (v(o, 4), v(vPX), s(S_WS, 4), s(sO3), qt * 1024))
        A('buffer_store_dwordx2 %s, %s, %s, %s offen offset:%d sc1' % (v(o + 4, 2), v(vPM), s(S_WS, 4), s(sO3), qt * 1024))
    A('s_add_u32 s101, s101, 1')
    A('v_mov_b32 v3, s101')
    A('s_waitcnt vmcnt(0)')
    A('buffer_store_dword v3, %s, %s, 0 offen sc1' % (v(vFL), s(S_WS, 4)))
    A('s_add_u32 %s, %s, 14' % (s(sSEG), s(sSEG)))
    A('s_cmp_lt_u32 %s, 64' % s(sSEG))
    A('s_cbranch_scc1 L_s1loop')

def phase_s2(A):
    U_, Z_, P_, D = 256, 64, 128, 16
    vV, vGF, vPF, vP, vO, vO2 = 4, 5, 6, 7, 8, 9
    A.label('L_s2')
    A('s_sub_u32 %s, %s, 4' % (s(sK), s(sK)))
    A('s_lshl_b32 %s, %s, 1' % (s(sT3), s(sK)))
    A('s_lshr_b32 %s, %s, 1' % (s(sT0), s(sWAVE)))
    A('s_add_u32 %s, %s, %s' % (s(sT3), s(sT3), s(sT0)))
    A('s_cmp_ge_u32 %s, 7' % s(sT3))
    A('s_cbranch_scc1 L_exit')
    A('s_lshl_b32 %s, %s, 12' % (s(sT0), s(sT3)))
    lexpr(A, v(vV), 'v0', [(0, 6, 16)], s(sT0), 'v1')
    A('s_lshl_b32 %s, %s, 4' % (s(sT0), s(sT3)))
    lexpr(A, v(vGF), 'v0', [(0, 4, 112)], s(sT0), 'v1')
    A('s_andn2_b32 %s, %s, 7' % (s(sT0), s(sA)))
    A('s_lshl_b32 %s, %s, 7' % (s(sT0), s(sT0)))
    A('s_add_u32 %s, %s, %d' % (s(sT0), s(sT0), FLG_P))
    lexpr(A, v(vPF), 'v0', [(2, 2, 128), (0, 2, 4)], s(sT0), 'v1')
    A('s_and_b32 %s, %s, 1' % (s(sT4), s(sWAVE)))
    A('s_lshl_b32 %s, %s, 10' % (s(sT0), s(sT4)))
    lexpr(A, v(vP), 'v0', [(0, 6, 16)], s(sT0), 'v1')
    A('s_mul_i32 %s, %s, %d' % (s(sT0), s(sT4), 4 * 1792))
    A('s_lshl_b32 %s, %s, 7' % (s(sT1), s(sT3)))
    A('s_add_u32 %s, %s, %s' % (s(sT0), s(sT0), s(sT1)))
    A('s_add_u32 %s, %s, 896' % (s(sT0), s(sT0)))
    lexpr(A, v(vO), 'v0', [(2, 2, 8 * 1792), (0, 2, 1792), (4, 2, 16)], s(sT0), 'v1')
    A.label('L_s2loop')
    seg_count(A, s(sCNT))
    A('s_add_u32 %s, %s, %d' % (s(sO3), s(sT1), FLG_Z))
    A('s_add_u32 %s, %s, %d' % (s(sT1), s(sT1), FLG_W2 + 1792))
    wait_flags(A, v(vGF), s(sT1), s(sCNT), 16)
    A('s_mul_i32 %s, %s, %d' % (s(sO1), s(sSEG), 16 * 28672))
    A('s_add_u32 %s, %s, %d' % (s(sO1), s(sO1), U_OFF))
    for c in range(16):
        for tl in range(4):
            A('buffer_load_dwordx4 %s, %s, %s, %s offen offset:%d sc1' % (u(U_ + (c * 4 + tl) * 4, 4), v(vV), s(S_WS, 4), s(sO1), tl * 1024))
        A('s_add_u32 %s, %s, 28672' % (s(sO1), s(sO1)))
        if c == 11: A('s_waitcnt vmcnt(32)')
    A('s_mul_i32 %s, %s, %d' % (s(sT2), s(sSEG), HM_STEP))
    A('s_add_u32 %s, %s, %d' % (s(sT2), s(sT2), HM_OFF))
    A('v_mov_b32 v10, 0')
    lp = A.newlabel('L_s2p'); A.label(lp)
    A('buffer_load_dword v3, v10, %s, %s offen sc1' % (s(S_WS, 4), s(sT2)))
    A('s_waitcnt vmcnt(0)')
    A('v_cmp_eq_u32 vcc, -1, v3')
    spin_check(A, lp, ['s_sleep %d' % PRM['zs']])
    A('s_add_u32 s101, s101, 1')
    A('v_lshl_add_u32 v10, %s, 3, %s' % (v(vGF), s(sO3)))
    A('v_and_b32 v1, 16, v0')
    A('v_cmp_eq_u32 vcc, 0, v1')
    A('v_cndmask_b32 v10, %s, v10, vcc' % v(vPF))
    A('v_mov_b32 v11, %s' % s(sCNT))
    A('v_mov_b32 v1, s101')
    A('v_cndmask_b32 v11, v1, v11, vcc')
    A('s_mul_i32 %s, %s, %d' % (s(sO1), s(sSEG), HZ_STEP))
    A('s_add_u32 %s, %s, %d' % (s(sO1), s(sO1), HZ_OFF))
    A('s_mul_i32 %s, %s, 40960' % (s(sO2), s(sSEG)))
    A('s_add_u32 %s, %s, %d' % (s(sO2), s(sO2), PP_OFF))
    wait_flags(A, 'v10', '0', 'v11', 1, coarse=True)
    for c in range(20):
        A('buffer_load_dwordx4 %s, %s, %s, %s offen offset:%d sc1' % (v(P_ + 4 * c, 4), v(vP), s(S_WS, 4), s(sO2), (c & 1) * 2048))
        if c & 1: A('s_add_u32 %s, %s, 4096' % (s(sO2), s(sO2)))
    for c in range(4):
        for tl in range(4):
            A('buffer_load_dwordx4 %s, %s, %s, %s offen offset:%d sc1' % (v(Z_ + (c * 4 + tl) * 4, 4), v(vV), s(S_WS, 4), s(sO1), tl * 1024))
        A('s_add_u32 %s, %s, 28672' % (s(sO1), s(sO1)))
    for c in range(20):
        A('s_waitcnt vmcnt(%d)' % (35 - c if c < 16 else 12 - 4 * (c - 16)))
        for tl in range(4):
            d = v(D + 4 * tl, 4)
            a_ = u(U_ + (c * 4 + tl) * 4, 4) if c < 16 else v(Z_ + ((c - 16) * 4 + tl) * 4, 4)
            A('v_mfma_f32_16x16x32_bf16 %s, %s, %s, %s' % (d, a_, v(P_ + 4 * c, 4), '0' if c == 0 else d))
    A('s_mul_i32 %s, %s, %d' % (s(sO1), s(sSEG), 32 * 1792))
    for b in range(2):
        e, o, pk = D + 8 * b, D + 8 * b + 4, 32 + 4 * b
        for r in range(4): A('v_cvt_pk_bf16_f32 %s, %s, %s' % (v(pk + r), v(e + r), v(o + r)))
        A('buffer_store_dwordx4 %s, %s, %s, %s offen offset:%d' % (v(pk, 4), v(vO), s(S_OUT, 4), s(sO1), 64 * b))
    A('s_add_u32 %s, %s, 14' % (s(sSEG), s(sSEG)))
    A('s_cmp_lt_u32 %s, 64' % s(sSEG))
    A('s_cbranch_scc1 L_s2loop')

LOG2E = 1.4426950408889634
def phase_a1(A):
    ST = 208
    def WQ(x, tl, ks):
        i = ((x * 2 + tl) * 14 + ks) * 4
        return a(i, 4) if i < 256 else v(176 + i - 256, 4)
    def WQh(x, tl, ks, t):
        i = ((x * 2 + tl) * 14 + ks) * 4 + 2 * t
        return a(i, 2) if i < 256 else v(176 + i - 256, 2)
    X_, D, KV, PQ = 120, 16, 64, 80
    T = 104
    vG, vW, vR, vR2, vX = 4, 5, 6, 7, 8
    sBLK, sI = sSEG, sCNT
    A('s_barrier')
    lexpr(A, v(vG), 'v0', [(2, 4, 2688), (0, 2, 16)], 0, 'v1')
    A('s_mul_i32 %s, %s, %d' % (s(sO1), s(sWAVE), 112 * 2688))
    A('s_mul_i32 %s, %s, 56' % (s(sT0), s(sH)))
    A('s_add_u32 %s, %s, %s' % (s(sO1), s(sO1), s(sT0)))
    for j in range(21):
        A('buffer_load_dwordx4 %s, %s, %s, %s offen offset:%d' % (v(16 + 4 * j, 4), v(vG), s(S_AW, 4), s(sO1), (j % 3) * 896))
        if j % 3 == 2: A('s_add_u32 %s, %s, %d' % (s(sO1), s(sO1), 16 * 2688))
    A('s_mul_i32 %s, %s, %d' % (s(sT0), s(sWAVE), 112 * ST))
    lexpr(A, v(vW), 'v0', [(2, 4, ST), (0, 2, 16)], s(sT0), 'v1')
    for j in range(21):
        A('s_waitcnt vmcnt(%d)' % (20 - j))
        A('ds_write_b128 %s, %s offset:%d' % (v(vW), v(16 + 4 * j, 4), (j // 3) * 16 * ST + (j % 3) * 64))
        if j % 6 == 5: A('s_waitcnt lgkmcnt(6)')
    lexpr(A, v(vR), 'v0', [(4, 2, 8 * ST), (2, 2, ST), (0, 2, 16)], 0, 'v1')
    A('v_add_u32 %s, %d, %s' % (v(vR2), 7 * 32 * ST, v(vR)))
    A('s_waitcnt lgkmcnt(0)')
    A('s_barrier')
    n = 0
    for x in range(3):
        for tl in range(2):
            for ks in range(14):
                for t in range(2):
                    A('ds_read_b64_tr_b16 %s, %s offset:%d' % (WQh(x, tl, ks, t), v(vR if ks < 7 else vR2), (32 * (ks % 7) + 4 * t) * ST + x * 64 + tl * 8))
                    n += 1
                    if n % 6 == 0: A('s_waitcnt lgkmcnt(6)')
    lexpr(A, v(vX), 'v0', [(0, 4, 896), (4, 2, 16)], 0, 'v1')
    A('v_add_u32 v9, %d, %s' % (16 * 896, v(vX)))
    for i in range(16): A('v_mov_b32 %s, 0' % v(KV + i))
    A('s_mov_b32 %s, 0x%x' % (s(sSC), f2u(LOG2E)))
    A('s_mov_b32 %s, 0x%x' % (s(sO3), f2u(1e-6)))
    A('v_and_b32 v1, 15, v0')
    A('v_cmp_le_u32 s[96:97], 12, v1')
    A('v_cmp_eq_u32 s[98:99], 12, v1')
    A('v_cmp_le_u32 s[100:101], 48, v0')
    A('s_lshl_b32 %s, %s, 2' % (s(sBLK), s(sQ)))
    A('s_add_u32 %s, %s, %s' % (s(sBLK), s(sBLK), s(sWAVE)))
    A('s_waitcnt lgkmcnt(0)')
    def phi(r):
        A('v_mul_f32 %s, %s, %s' % (v(T), s(sSC), v(r)))
        A('v_exp_f32 %s, %s' % (v(T), v(T)))
        A('v_cmp_lt_f32 vcc, 0, %s' % v(r))
        A('v_add_f32 %s, 1.0, %s' % (v(r), v(r)))
        A('v_cndmask_b32 %s, %s, %s, vcc' % (v(r), v(T), v(r)))
        A('v_add_f32 %s, %s, %s' % (v(r), s(sO3), v(r)))
    def Dk(x, t, tl): return D + (((x - 1) * 2 + tl) * 2 + t) * 4
    def Dq(t, tl): return D + 32 + (t * 2 + tl) * 4
    A('s_mov_b32 %s, 0' % s(sI))
    A.label('L_a1loop')
    A('s_mul_i32 %s, %s, %d' % (s(sO1), s(sBLK), 32 * 896))
    for hf in range(2):
        for k7 in range(7):
            for t in range(2):
                A('buffer_load_dwordx4 %s, %s, %s, %s offen offset:%d' % (v(X_ + (k7 * 2 + t) * 4, 4), v(vX) if t == 0 else 'v9', s(S_AX, 4), s(sO1), (7 * hf + k7) * 64))
        for k7 in range(7):
            ks = 7 * hf + k7
            A('s_waitcnt vmcnt(%d)' % (12 - 2 * k7))
            for t in range(2):
                xf = v(X_ + (k7 * 2 + t) * 4, 4)
                for tl in range(2):
                    for x in (1, 2):
                        d = v(Dk(x, t, tl), 4)
                        A('v_mfma_f32_16x16x32_bf16 %s, %s, %s, %s' % (d, xf, WQ(x, tl, ks), '0' if ks == 0 else d))
                    d = v(Dq(t, tl), 4)
                    A('v_mfma_f32_16x16x32_bf16 %s, %s, %s, %s' % (d, WQ(0, tl, ks), xf, '0' if ks == 0 else d))
        A('s_nop 7')
    for tl in range(2):
        b = Dk(1, 0, tl)
        for i in range(8):
            phi(b + i)
            if tl == 1: A('v_cndmask_b32 %s, %s, 0, s[96:97]' % (v(b + i), v(b + i)))
        for i in range(4): A('v_cvt_pk_bf16_f32 %s, %s, %s' % (v(b + i), v(b + 2 * i), v(b + 2 * i + 1)))
        b = Dk(2, 0, tl)
        if tl == 1:
            for i in range(8):
                A('v_cndmask_b32 %s, %s, 0, s[96:97]' % (v(b + i), v(b + i)))
                A('v_cndmask_b32 %s, %s, 1.0, s[98:99]' % (v(b + i), v(b + i)))
        for i in range(4): A('v_cvt_pk_bf16_f32 %s, %s, %s' % (v(b + i), v(b + 2 * i), v(b + 2 * i + 1)))
    for dt in range(2):
        for et in range(2):
            d = v(KV + (dt * 2 + et) * 4, 4)
            A('v_mfma_f32_16x16x32_bf16 %s, %s, %s, %s' % (d, v(Dk(1, 0, dt), 4), v(Dk(2, 0, et), 4), d))
    for i in range(15, -1, -1): A('v_mov_b32 %s, %s' % (v(PQ + 8 + i), v(PQ + i)))
    for t in range(2):
        b = Dq(t, 0)
        for i in range(8):
            phi(b + i)
            if i >= 4: A('v_cndmask_b32 %s, %s, 0, s[100:101]' % (v(b + i), v(b + i)))
        for i in range(4): A('v_cvt_pk_bf16_f32 %s, %s, %s' % (v(PQ + 4 * t + i), v(b + 2 * i), v(b + 2 * i + 1)))
    A('s_add_u32 %s, %s, 1' % (s(sI), s(sI)))
    A('s_add_u32 %s, %s, 28' % (s(sBLK), s(sBLK)))
    A('s_cmp_lt_u32 %s, 64' % s(sBLK))
    A('s_cbranch_scc1 L_a1loop')
    LK = 98304
    A('s_lshl_b32 %s, %s, 12' % (s(sT0), s(sWAVE)))
    A('s_add_u32 %s, %s, %d' % (s(sT0), s(sT0), LK))
    lexpr(A, v(vW), 'v0', [(0, 6, 16)], s(sT0), 'v1')
    for j in range(4): A('ds_write_b128 %s, %s offset:%d' % (v(vW), v(KV + 4 * j, 4), j * 1024))
    A('s_lshl_b32 %s, %s, 10' % (s(sT0), s(sWAVE)))
    lexpr(A, v(vR), 'v0', [(0, 6, 16)], s(sT0), 'v1')
    A('v_add_u32 %s, %d, %s' % (v(vR2), LK, v(vR)))
    A('s_waitcnt lgkmcnt(0)')
    A('s_barrier')
    for j in range(4): A('ds_read_b128 %s, %s offset:%d' % (v(D + 4 * j, 4), v(vR2), j * 4096))
    A('s_waitcnt lgkmcnt(0)')
    for r in range(4):
        A('v_add_f32 %s, %s, %s' % (v(D + r), v(D + r), v(D + 4 + r)))
        A('v_add_f32 %s, %s, %s' % (v(D + 8 + r), v(D + 8 + r), v(D + 12 + r)))
        A('v_add_f32 %s, %s, %s' % (v(D + r), v(D + r), v(D + 8 + r)))
    A('s_lshl_b32 %s, %s, 12' % (s(sT0), s(sA)))
    A('s_add_u32 %s, %s, %d' % (s(sT0), s(sT0), KVP_OFF))
    A('buffer_store_dwordx4 %s, %s, %s, %s offen sc1' % (v(D, 4), v(vR), s(S_WS, 4), s(sT0)))
    A('s_lshl_b32 %s, %s, 6' % (s(sT0), s(sA)))
    A('s_lshl_b32 %s, %s, 2' % (s(sT1), s(sWAVE)))
    A('s_add_u32 %s, %s, %s' % (s(sT0), s(sT0), s(sT1)))
    A('s_add_u32 %s, %s, %d' % (s(sT0), s(sT0), FLG_KV))
    lane0_addr(A, 'v10', s(sT0))
    A('v_mov_b32 v3, 1')
    A('s_waitcnt vmcnt(0)')
    A('buffer_store_dword v3, v10, %s, 0 offen sc1' % s(S_WS, 4))
    A('v_lshrrev_b32 v1, 2, v0')
    A('v_min_u32 v1, 6, v1')
    A('v_lshlrev_b32 v1, 6, v1')
    A('v_and_b32 v2, 3, v0')
    A('v_lshl_add_u32 v10, v2, 2, v1')
    A('s_mul_i32 %s, %s, %d' % (s(sT0), s(sH), 7 * 64))
    A('s_add_u32 %s, %s, %d' % (s(sT0), s(sT0), FLG_KV))
    wait_flags(A, 'v10', s(sT0), '1', 8)
    lexpr(A, v(vG), 'v0', [(0, 6, 16)], 0, 'v1')
    lexpr(A, v(vW), 'v0', [(4, 2, 256)], 12 * 16, 'v1')
    A('s_mul_i32 %s, %s, %d' % (s(sO1), s(sH), 7 * 4096))
    A('s_add_u32 %s, %s, %d' % (s(sO1), s(sO1), KVP_OFF))
    GB = 104
    def gr(q): return (GB + 24 * q) if q < 6 else D
    for q in range(7):
        for j in range(4):
            A('buffer_load_dwordx4 %s, %s, %s, %s offen offset:%d sc1' % (v(gr(q) + 4 * j, 4), v(vG), s(S_WS, 4), s(sO1), j * 1024))
        for dt in range(2):
            A('buffer_load_dwordx4 %s, %s, %s, %s offen offset:%d sc1' % (v(gr(q) + 16 + 4 * dt, 4), v(vW), s(S_WS, 4), s(sO1), (dt * 2 + 1) * 1024))
        A('s_add_u32 %s, %s, 4096' % (s(sO1), s(sO1)))
    A('s_waitcnt vmcnt(0)')
    for q in range(6):
        for i in range(24): A('v_add_f32 %s, %s, %s' % (v(D + i), v(D + i), v(gr(q) + i)))
    for et in range(2):
        for dt in range(2):
            b = D + (dt * 2 + et) * 4
            A('v_cvt_pk_bf16_f32 %s, %s, %s' % (v(KV + 4 * et + 2 * dt), v(b), v(b + 1)))
            A('v_cvt_pk_bf16_f32 %s, %s, %s' % (v(KV + 4 * et + 2 * dt + 1), v(b + 2), v(b + 3)))
    for i in range(4): A('v_cvt_pk_bf16_f32 %s, %s, %s' % (v(KV + 8 + i), v(D + 16 + 2 * i), v(D + 17 + 2 * i)))
    A('s_lshl_b32 %s, %s, 10' % (s(sT0), s(sH)))
    lexpr(A, v(vR), 'v0', [(0, 6, 16)], s(sT0), 'v1')
    A.label('L_a1o')
    A('s_sub_u32 %s, %s, 28' % (s(sBLK), s(sBLK)))
    A('s_lshl_b32 %s, %s, 15' % (s(sO1), s(sBLK)))
    A('s_add_u32 %s, %s, %d' % (s(sO1), s(sO1), OI_OFF))
    A('s_add_u32 %s, %s, 16384' % (s(sO2), s(sO1)))
    for t in range(2):
        b = D + 12 * t
        for j in range(3):
            A('v_mfma_f32_16x16x32_bf16 %s, %s, %s, 0' % (v(b + 4 * j, 4), v(KV + 4 * j, 4), v(PQ + 4 * t, 4)))
    for t in range(2):
        b = D + 12 * t; o = D + 24 + 4 * t
        A('v_add_f32 %s, %s, %s' % (v(b + 8), s(sO3), v(b + 8)))
        A('v_rcp_f32 %s, %s' % (v(b + 8), v(b + 8)))
        for i in range(8):
            A('v_mul_f32 %s, %s, %s' % (v(b + i), v(b + i), v(b + 8)))
            if i >= 4: A('v_cndmask_b32 %s, %s, 0, s[100:101]' % (v(b + i), v(b + i)))
        for i in range(4): A('v_cvt_pk_bf16_f32 %s, %s, %s' % (v(o + i), v(b + 2 * i), v(b + 2 * i + 1)))
        A('buffer_store_dwordx4 %s, %s, %s, %s offen sc1' % (v(o, 4), v(vR), s(S_WS, 4), s(sO1 + t)))
    for i in range(16): A('v_mov_b32 %s, %s' % (v(PQ + i), v(PQ + 8 + i)))
    A('s_sub_u32 %s, %s, 1' % (s(sI), s(sI)))
    A('s_cmp_lg_u32 %s, 0' % s(sI))
    A('s_cbranch_scc1 L_a1o')
    A('s_lshl_b32 %s, %s, 2' % (s(sT0), s(sA)))
    A('s_add_u32 %s, %s, %s' % (s(sT0), s(sT0), s(sWAVE)))
    A('s_lshl_b32 %s, %s, 2' % (s(sT0), s(sT0)))
    A('s_add_u32 %s, %s, %d' % (s(sT0), s(sT0), FLG_O))
    lane0_addr(A, 'v10', s(sT0))
    A('v_mov_b32 v3, 1')
    A('s_waitcnt vmcnt(0)')
    A('buffer_store_dword v3, v10, %s, 0 offen sc1' % s(S_WS, 4))

def phase_a2(A):
    ST = 144
    O_, D = 64, 16
    vG, vW, vR, vR2, vO = 4, 5, 6, 7, 8
    A('s_barrier')
    lexpr(A, v(vG), 'v0', [(3, 3, 896), (0, 3, 16)], 0, 'v1')
    A('s_mul_i32 %s, %s, %d' % (s(sO1), s(sWAVE), 112 * 896))
    A('s_lshl_b32 %s, %s, 7' % (s(sT0), s(sQ)))
    A('s_add_u32 %s, %s, %s' % (s(sO1), s(sO1), s(sT0)))
    for j in range(15):
        A('buffer_load_dwordx4 %s, %s, %s, %s offen' % (v(64 + 4 * j, 4), v(vG), s(S_AO, 4), s(sO1)))
        A('s_add_u32 %s, %s, %d' % (s(sO1), s(sO1), 8 * 896))
    A('s_mul_i32 %s, %s, %d' % (s(sT0), s(sWAVE), 112 * ST))
    lexpr(A, v(vW), 'v0', [(3, 3, ST), (0, 3, 16)], s(sT0), 'v1')
    for j in range(15):
        A('s_waitcnt vmcnt(%d)' % (14 - j))
        A('ds_write_b128 %s, %s offset:%d' % (v(vW), v(64 + 4 * j, 4), j * 8 * ST))
        if j % 6 == 5: A('s_waitcnt lgkmcnt(6)')
    lexpr(A, v(vR), 'v0', [(4, 2, 8 * ST), (2, 2, ST), (0, 2, 16)], 0, 'v1')
    A('s_waitcnt lgkmcnt(0)')
    A('s_barrier')
    n = 0
    for tl in range(4):
        for hh in range(16):
            for t in range(2):
                A('ds_read_b64_tr_b16 %s, %s offset:%d' % (a((tl * 16 + hh) * 4 + 2 * t, 2), v(vR), (28 * hh + 4 * t) * ST + (tl >> 1) * 64 + (tl & 1) * 8))
                n += 1
                if n % 6 == 0: A('s_waitcnt lgkmcnt(6)')
    A('s_lshl_b32 %s, %s, 2' % (s(sSEG), s(sH)))
    A('s_add_u32 %s, %s, %s' % (s(sSEG), s(sSEG), s(sWAVE)))
    A('s_mov_b32 %s, %s' % (s(sT0), s(sSEG)))
    for _ in range(2):
        A('s_sub_u32 %s, %s, 28' % (s(sT1), s(sT0)))
        A('s_cmp_ge_u32 %s, 28' % s(sT0))
        A('s_cselect_b32 %s, %s, %s' % (s(sT0), s(sT1), s(sT0)))
    A('s_lshl_b32 %s, %s, 2' % (s(sT0), s(sT0)))
    A('s_add_u32 %s, %s, %d' % (s(sT0), s(sT0), FLG_O))
    lexpr(A, 'v10', 'v0', [(0, 4, 7 * 16)], 0, 'v1')
    wait_flags(A, 'v10', s(sT0), '1', 8)
    lexpr(A, v(vG), 'v0', [(0, 6, 16)], 0, 'v1')
    A('s_lshl_b32 %s, %s, 15' % (s(sO1), s(sSEG)))
    A('s_add_u32 %s, %s, %d' % (s(sO1), s(sO1), OI_OFF))
    for i in range(32):
        A('buffer_load_dwordx4 %s, %s, %s, %s offen offset:%d sc1' % (v(O_ + 4 * i, 4), v(vG), s(S_WS, 4), s(sO1), (i & 3) * 1024))
        if i & 3 == 3: A('s_add_u32 %s, %s, 4096' % (s(sO1), s(sO1)))
    A('s_lshl_b32 %s, %s, 7' % (s(sT0), s(sQ)))
    lexpr(A, v(vO), 'v0', [(0, 4, 1792), (4, 2, 16)], s(sT0), 'v1')
    A('s_mul_i32 %s, %s, %d' % (s(sO1), s(sSEG), 32 * 1792))
    A('s_add_u32 %s, %s, %d' % (s(sO2), s(sO1), 16 * 1792))
    A('s_waitcnt lgkmcnt(0)')
    for t in range(2):
        for hh in range(16):
            A('s_waitcnt vmcnt(%d)' % (31 - (t * 16 + hh)))
            for tl in range(4):
                d = v(D + (t * 4 + tl) * 4, 4)
                A('v_mfma_f32_16x16x32_bf16 %s, %s, %s, %s' % (d, a((tl * 16 + hh) * 4, 4), v(O_ + (t * 16 + hh) * 4, 4), '0' if hh == 0 else d))
    for t in range(2):
        for aa in range(2):
            b = D + (t * 4 + 2 * aa) * 4; o = 48 + (t * 2 + aa) * 4
            for i in range(4): A('v_cvt_pk_bf16_f32 %s, %s, %s' % (v(o + i), v(b + 2 * i), v(b + 2 * i + 1)))
            A('buffer_store_dwordx4 %s, %s, %s, %s offen offset:%d' % (v(o, 4), v(vO), s(S_OUT, 4), s(sO1 + t), aa * 64))
```

```python
from common import *

sSLOT, sSLOTP, sSLOTN, sUOK = sMEMRD, sPWR, sMEMWR, sHZ
vIDX = 60
vK = 61
vT = 68
vLANE = 255
MF = 32
SACC = 4
AF0 = 0
vYW, vTRL, vB, vX, vPST, vPSM, HV, HA = 70, 71, 72, 73, 74, 75, 71, 77
vBIG = 200
vSW = 78
SD = 80
XB = 92
AF1 = 116
L_XS = 32768
vL16, vVW, vVR, vMST, vLW, VHV, VHA, vHM_, vHP_, vHIST = 70, 71, 72, 73, 74, 75, 76, 77, 78, 79
VR = 80
vUS = 69
ZB = 84
UB = 92
LB = 124
L_VB = 114688
L_WL = 32768

class Role:
    pass
SC = Role(); SC.nt = 7
VA = Role(); VA.nt = 8; VA.accf = lambda r: 4 * r
def sc_w(r, k):
    t = r * 7 + k
    return (256 + t * 8) if t < 32 else (120 + (t - 32) * 8)
def tile_pos(w, r):
    if r < 4: return r, w
    e = 3 * (r - 4) + (w - 1)
    return 4 + e // 4, e % 4
def tau(w, r):
    c, ga = tile_pos(w, r); return 7 * ga + c
SC4 = Role(); SC4.nt = 4; SC4.w = sc_w
SC6 = Role(); SC6.nt = 6; SC6.w = sc_w; SC6.accf = lambda r: SACC + 4 * r; SC6.land = {}
SC8 = Role(); SC8.nt = 8; SC8.accf = lambda r: (SACC + 4 * r) if r < 7 else 0
SC8.land = {(7, 5): MF, (7, 6): SACC}
SC8.w = lambda r, k: sc_w(r, k) if r < 7 else (80 + 8 * k if k < 5 else None)
XS2 = 0x10000
L_SWL = 65536
VLDS = [(r, 6) for r in range(8)] + [(2, 4), (5, 4)]
VREG = [(r, k) for r in range(8) for k in range(7) if (r, k) not in VLDS]
def va_w(r, k):
    if (r, k) in VLDS: return None
    t = VREG.index((r, k))
    return (256 + t * 8) if t < 32 else (144 + (t - 32) * 8)
VA.w = va_w

def smf(d, aa, bb, k32=False):
    return 'v_smfmac_f32_16x16x%d_bf16 %s, %s, %s, %s' % (32 if k32 else 64, d, aa, bb, v(vIDX))

sTMB = 28
sSTB = 92
def stamp(A, idx):
    if not G.stamps: return
    A('s_memtime %s' % s(sTMB + 2 * idx, 2))
    if idx == 0 and G.stamps == 1: A('s_memrealtime %s' % s(sTMB + 2 * 10, 2))
def stamp_acc(A, order):
    A('s_waitcnt lgkmcnt(0)')
    l = A.newlabel('L_sa')
    A('s_cmp_lt_u32 %s, 10' % s(sSTEP))
    A('s_cbranch_scc1 %s' % l)
    prev = 3
    for i, k in enumerate(order):
        A('s_sub_u32 s2, %s, %s' % (s(sTMB + 2 * k), s(prev)))
        A('s_add_u32 %s, %s, s2' % (s(50 + i), s(50 + i)))
        prev = sTMB + 2 * k
    A.label(l)
    A('s_mov_b32 s3, %s' % s(sTMB + 2 * order[-1]))
def stamp_acc_out(A):
    if G.stamps != 2: return
    A('v_mbcnt_lo_u32_b32 v2, -1, 0')
    A('v_lshlrev_b32 v2, 2, v2')
    for i in range(10): A('v_writelane_b32 v1, %s, %d' % (s(50 + i), i))
    A('s_mov_b64 exec, 0xffff')
    A('buffer_store_dword v1, v2, %s, %s offen' % (s(S_WS, 4), s(sSTB)))
    A('s_mov_b64 exec, -1')
def stamp_flush(A, n, order=None):
    if not G.stamps: return
    if G.stamps == 2:
        stamp_acc(A, order); return
    A('s_waitcnt lgkmcnt(0)')
    A('s_lshl_b32 %s, %s, 6' % (s(sT5), s(sSTEP)))
    A('s_add_u32 %s, %s, %s' % (s(sT5), s(sT5), s(sSTB)))
    A('v_mbcnt_lo_u32_b32 %s, -1, 0' % v(vT + 1))
    A('v_lshlrev_b32 %s, 2, %s' % (v(vT + 1), v(vT + 1)))
    for i in range(n):
        A('v_writelane_b32 %s, %s, %d' % (v(vT), s(sTMB + 2 * i), i))
    A('v_writelane_b32 %s, %s, 11' % (v(vT), s(sSPIN)))
    A('s_mov_b64 exec, 0xffff')
    A('buffer_store_dword %s, %s, %s, %s offen' % (v(vT), v(vT + 1), s(S_WS, 4), s(sT5)))
    A('s_mov_b64 exec, -1')
def stamp_setup(A):
    if not G.stamps: return
    A('s_lshl_b32 %s, %s, 2' % (s(sT0), s(sROLE)))
    A('s_add_u32 %s, %s, %s' % (s(sT0), s(sT0), s(sWAVE)))
    A('s_lshl_b32 %s, %s, 12' % (s(sT0), s(sT0)))
    A('s_add_u32 %s, %s, %d' % (s(sSTB), s(sT0), STAMPS))
    for i in range(10): A('s_mov_b32 %s, 0' % s(50 + i))

def hint_wait(A, soff, sval, pw, delay, nent, areg=None, solo=False, primed=False):
    l = A.newlabel('L_hint'); e = A.newlabel('L_hint_done')
    D = PRM['hd']
    if not solo:
        A('s_cmp_lg_u32 %s, %d' % (s(sWAVE), pw))
        A('s_cbranch_scc1 %s' % e)
    if areg is None:
        areg = vT + 1
        A('v_mbcnt_lo_u32_b32 %s, -1, 0' % v(vT + 1))
        A('v_mbcnt_hi_u32_b32 %s, -1, %s' % (v(vT + 1), v(vT + 1)))
        A('v_min_u32 %s, %d, %s' % (v(vT + 1), nent - 1, v(vT + 1)))
        A('v_lshlrev_b32 %s, 2, %s' % (v(vT + 1), v(vT + 1)))
    ld = 'buffer_load_dword %s, %s, %s, %s offen sc1' % (v(vT), v(areg), s(S_WS, 4), s(soff))
    if PRM['hv0']: A('s_waitcnt vmcnt(0)')
    for i in range(0 if primed else D - 1):
        A(ld); A('s_nop %d' % PRM['hn'])
    A.label(l)
    A(ld)
    A('s_waitcnt vmcnt(%d)' % (D - 1))
    A('v_cmp_gt_u32 vcc, %s, %s' % (s(sval), v(vT)))
    spin_check(A, l)
    for i in range(delay): A('s_nop 3')
    if solo: return
    A.label(e)
    if primed: A('s_waitcnt vmcnt(2) lgkmcnt(0)')
    A('s_barrier')

def hint_send(A, t0, t1):
    A('buffer_store_dword %s, %s, %s, %s offen' % (v(t0), v(t1), s(S_WS, 4), s(sHWR)))
def hint_setup(A, t0, t1, allw):
    nrep = PRM['nrep']
    A('v_lshlrev_b32 v1, 8, %s' % v(vLANE))
    A('v_mov_b32 v2, %d' % OOB)
    A('s_cmp_eq_u32 %s, %d' % (s(sWAVE), 0 if allw else 3))
    A('s_cselect_b32 %s, %d, 0' % (s(sT0), nrep))
    A('v_cmp_gt_u32 vcc, %s, %s' % (s(sT0), v(vLANE)))
    A('v_cndmask_b32 %s, v2, v1, vcc' % v(t1))
    A('v_mov_b32 %s, %d' % (v(t0), 1 if allw else 0))
    hint_send(A, t0, t1)

def dbg_arrive(A, idx):
    A('s_waitcnt vmcnt(0) lgkmcnt(0)')
    A('s_barrier')
    l = A.newlabel('L_gb')
    A('s_cmp_lg_u32 %s, 0' % s(sWAVE))
    A('s_cbranch_scc1 %s' % l)
    A('v_mov_b32 v1, %d' % (idx * 4))
    A('v_mov_b32 v2, 1')
    A('s_mov_b64 exec, 1')
    A('buffer_atomic_add v2, v1, %s, 0 offen' % s(S_DBG, 4))
    A('s_mov_b64 exec, -1')
    A.label(l)

def group_wait(A):
    l = A.newlabel('L_gw')
    A('v_mov_b32 v2, %d' % (D_GRP * 4))
    A.label(l)
    A('buffer_load_dword %s, v2, %s, 0 offen sc1' % (v(vT + 1), s(S_DBG, 4)))
    A('s_waitcnt vmcnt(0)')
    A('v_cmp_gt_u32 vcc, 32, %s' % v(vT + 1))
    spin_check(A, l, ['s_sleep 8'])

def wait_init(A, idx=D_INIT, lane=None):
    l = A.newlabel('L_wi')
    lexpr(A, 'v2', lane or v(vLANE), [(0, 2, 64)], idx * 4, 'v3')
    A.label(l)
    A('buffer_load_dword v3, v2, %s, 0 offen sc1' % s(S_DBG, 4))
    A('s_waitcnt vmcnt(0)')
    A('v_cmp_gt_u32 vcc, 56, v3')
    spin_check(A, l, ['s_sleep 16'])

def check4(A, r, lbl, pre):
    t0 = v(vT)
    A('v_max3_u32 %s, %s, %s, %s' % (t0, v(r), v(r + 1), v(r + 2)))
    A('v_max_u32 %s, %s, %s' % (t0, t0, v(r + 3)))
    A('v_cmp_eq_u32 vcc, -1, %s' % t0)
    spin_check(A, lbl, pre)

sROT = 87
def rot(A, k):
    A('s_add_u32 %s, %s, %d' % (s(sT1), s(sT0), k))
    A('s_sub_u32 %s, %s, 7' % (s(sT2), s(sT1)))
    A('s_cmp_ge_u32 %s, 7' % s(sT1))
    A('s_cselect_b32 %s, %s, %s' % (s(sT1), s(sT2), s(sT1)))

def rec_start(A):
    A('v_mov_b32 %s, v0' % v(vLANE))
    A('s_mov_b32 %s, %d' % (s(sSPIN), SPIN_MAX))
    if PRM['xw']:
        A('s_lshl_b32 %s, %s, 2' % (s(sT0), s(sROLE)))
        A('s_add_u32 %s, %s, %s' % (s(sT0), s(sT0), s(sWAVE)))
        A('s_mul_i32 %s, %s, 14336' % (s(sT0), s(sT0)))
        A('s_add_u32 %s, %s, 6144' % (s(sT1), s(sT0)))
        A('v_lshlrev_b32 v1, 7, v0')
        for j in range(2): A('buffer_load_dword v250, v1, %s, %s offen nt' % (s(S_BX, 4), s(sT0 + j)))
    A('s_and_b32 %s, %s, %d' % (s(sT0), s(sROLE), PRM['nrep'] - 1))
    A('s_lshl_b32 %s, %s, 8' % (s(sHMRD), s(sT0)))
    A('s_add_u32 %s, %s, %d' % (s(sHPRD), s(sHMRD), HINT_P))
    A('s_add_u32 %s, %s, %d' % (s(sHMRD), s(sHMRD), HINT_M))
    A('v_and_b32 v1, 2, v0')
    A('v_cmp_eq_u32 vcc, 0, v1')
    A('v_mov_b32 v2, 0xeeeeeeee')
    A('v_mov_b32 v3, 0x44444444')
    A('v_cndmask_b32 %s, v2, v3, vcc' % v(vIDX))
    A('v_lshlrev_b32 v1, 4, v0')
    A('s_sub_u32 %s, %s, 16' % (s(sT1), s(sROLE)))
    A('s_lshr_b32 %s, %s, 1' % (s(sT1), s(sT1)))
    A('s_cmp_lt_u32 %s, 16' % s(sROLE))
    A('s_cselect_b32 %s, 0, %s' % (s(sT1), s(sT1)))
    assert PRM['wrot'] in (0, 2)
    if PRM['wrot'] == 0: A('s_mov_b32 %s, 0' % s(sT1))
    A('s_lshl_b32 %s, %s, 1' % (s(sT0), s(sWAVE)))
    A('s_add_u32 %s, %s, %s' % (s(sT0), s(sT0), s(sT1)))
    rot(A, 0)
    A('s_mov_b32 %s, %s' % (s(sROT), s(sT1)))
    A('s_mov_b32 %s, %s' % (s(sT0), s(sT1)))
    for k in range(7):
        rot(A, k)
        A('s_lshl_b32 %s, %s, 10' % (s(sT1), s(sT1)))
        A('v_add_u32 %s, %s, v1' % (v(vK + k), s(sT1)))
    stamp_setup(A)

def load_weights(A, R, cstride, early=None):
    tag = 'S' if R is SC else 'V'
    A('s_mul_i32 %s, %s, %d' % (s(sT0), s(sWAVE), 0 if R is SC else R.nt * 1024))
    if not G.dev_nowait:
        A('v_mov_b32 %s, v8' % v(vT))
        wait_init(A)
        A('v_mov_b32 v3, %s' % v(vT))
    lexpr(A, 'v1', v(vLANE), [(0, 6, 16)], s(sT0), 'v2')
    A('v_add_u32 v2, 4096, v1')
    SB_ = 28
    A('s_mov_b32 %s, %s' % (s(sT0), '0' if R is SC else s(sROT)))
    for k in range(7):
        rot(A, k)
        A('s_mul_i32 %s, %s, %d' % (s(sT1), s(sT1), 2 * cstride))
        A('s_add_u32 %s, %s, %s' % (s(SB_ + 2 * k), s(sT1), s(sT3)))
        A('s_add_u32 %s, %s, %d' % (s(SB_ + 2 * k + 1), s(SB_ + 2 * k), cstride))
    A('s_mov_b32 %s, %d' % (s(sT0), FLG_W1))
    pl = 'buffer_load_dword %s, v3, %s, %s offen sc1' % (v(vT), s(S_WS, 4), s(sT0))
    for w in range(1, 4):
        A('s_cmp_eq_u32 %s, %d' % (s(sWAVE), w))
        A('s_cbranch_scc1 L_lw%s%d' % (tag, w))
    for w in range(4):
        A.label('L_lw%s%d' % (tag, w))
        st = [[], [], [], []]
        RW = R if R is VA else (SC4 if w == 0 else SC8)
        for k in range(7):
            for hi in range(2):
                for r in range(RW.nt):
                    if R is SC: c = (2 * k + hi - PRM['wrot'] * (tau(w, r) >> 2)) % 14
                    else: c = (2 * ((k + 2 * w) % 7) + hi) % 14
                    st[c >> 2].append((r, k, hi))
        n = 0; since = None
        for i in range(4):
            if not G.dev_nowait:
                l = A.newlabel('L_lwp')
                if since is None: A(pl); since = 0
                A('s_waitcnt vmcnt(%d)' % since)
                A.label(l)
                A('v_cmp_gt_u32 vcc, %d, %s' % (i + 1, v(vT)))
                spin_check(A, l, ['s_sleep %d' % PRM['lws'], pl, 's_waitcnt vmcnt(0)'])
                if i == 0: event(A, 4, 'v59', v(vT + 1))
            for j, (r, k, hi) in enumerate(st[i]):
                if j == len(st[i]) // 2 and i < 3 and not G.dev_nowait: A(pl); since = 0
                wv = RW.w(r, k)
                if wv is None:
                    slot_ = (2 * VLDS.index((r, k)) + hi) if R is VA else (2 * (k - 5) + hi)
                    base_ = (L_WL + w * 20480) if R is VA else (L_SWL + w * 4096)
                    A('s_add_u32 %s, %s, %d' % (s(sT1), s(SB_ + 2 * k + hi), (tau(w, r) if R is SC else r) * 1024))
                    A('s_mov_b32 m0, %d' % (base_ + slot_ * 1024))
                    A('buffer_load_dwordx4 v1, %s, %s offen sc1 lds' % (s(S_WS, 4), s(sT1)))
                    if since is not None: since += 1
                    n += 1
                    continue
                dst = u(wv + 4 * hi, 4)
                if R is SC:
                    A('s_add_u32 %s, %s, %d' % (s(sT1), s(SB_ + 2 * k + hi), tau(w, r) * 1024))
                    A('buffer_load_dwordx4 %s, v1, %s, %s offen sc1' % (dst, s(S_WS, 4), s(sT1)))
                else:
                    A('buffer_load_dwordx4 %s, %s, %s, %s offen offset:%d sc1' % (dst, 'v1' if r < 4 else 'v2', s(S_WS, 4), s(SB_ + 2 * k + hi), (r & 3) * 1024))
                if since is not None: since += 1
                n += 1
                if G.dev_nowait and n % 16 == 0: A('s_waitcnt vmcnt(40)')
        if w < 3: A('s_branch L_lw%sE' % tag)
    A.label('L_lw%sE' % tag)
    if early: early()
    A('s_waitcnt vmcnt(0)')
def ldstmp(i): return (4 + 8 * i) if i < 7 else (UB + 8 * (i - 7))

def zero_regs(b, n): return ['v_mov_b32 %s, 0' % v(b + i) for i in range(n)]

def lds_younger(A, dst):
    n = 0
    for x in reversed(A.ins):
        if x.kind == 'label': return 0
        if x.kind == 'ds':
            if x.text.startswith('ds_read_b128 ' + dst): return n
            n += 1
    return 0

def main_phase(A, R, pw, delay, post, vm, every, extra, epi, pre_ds=0):
    NT = R.nt
    hint_wait(A, sHMRD, sSTEP1, pw, delay, 22, vHM_ if R is VA else None)
    stamp(A, 1)
    ld = ['buffer_load_dwordx4 %s, %s, %s, %s offen sc1' % (v(MF + 4 * k, 4), v(vK + k), s(S_WS, 4), s(sSLOT)) for k in range(2)]
    A(ld[0])
    if PRM['f0b']: A('s_barrier')
    A(ld[1])
    for x in post: A(x)
    nst = len([x for x in post if x.startswith('buffer_')])
    A('s_waitcnt vmcnt(%d)' % (nst + 1))
    l0 = A.newlabel('L_pm0'); A.label(l0)
    check4(A, MF, l0, [ld[0], 's_waitcnt vmcnt(0)'])
    stamp(A, 2)
    A('ds_write_b128 %s, %s offset:%d' % (v(vK), v(MF, 4), L_MEM))
    vm = list(vm); cnt = [0]
    def vmtick():
        cnt[0] += 1
        if vm and cnt[0] % every == 0:
            for x in vm.pop(0): A(x)
    k1, k2 = PRM['k1'], min(PRM['k2'], 2 * NT - 3)
    if R is SC8: k1, k2 = PRM['k1l'], PRM['k2l']
    kseq = [(r, 0) for r in range(NT)] + [(r, 1) for r in range(NT)]
    rd = [2, 3, 4, 5, 6]
    for i, (r, k) in enumerate(kseq):
        A(smf(v(R.accf(r), 4), v(MF + 4 * k, 4), u(R.w(r, k), 8)))
        if i == k1 - 1:
            A('s_waitcnt vmcnt(%d)' % nst)
            l1 = A.newlabel('L_pm1'); A.label(l1)
            check4(A, MF + 4, l1, [ld[1], 's_waitcnt vmcnt(0)'])
            A('ds_write_b128 %s, %s offset:%d' % (v(vK + 1), v(MF + 4, 4), L_MEM))
        elif i >= k1 and i < k2 - 1: vmtick()
        if i == k2 - 1:
            A('s_waitcnt lgkmcnt(0)')
            A('s_barrier')
            stamp(A, 3)
        if i >= k2 - 1:
            for _ in range(2 if len(kseq) - i > 2 else 5):
                if rd:
                    kk = rd.pop(0); A('ds_read_b128 %s, %s offset:%d' % (v(MF + 4 * kk, 4), v(vK + kk), L_MEM))
    assert not rd
    q = []
    i = 0
    for r in range(NT):
        for k in range(2, 7):
            if r == 0: A('s_waitcnt lgkmcnt(%d)' % (6 - k))
            w = R.w(r, k)
            if w is None and R is VA:
                iv = VORD.index((r, k))
                w = LB + 8 * (iv & 1)
                A('s_waitcnt lgkmcnt(%d)' % lds_younger(A, 'v[%d:%d]' % (w + 4, w + 7)))
            elif w is None: w = R.land[(r, k)]
            A(smf(v(R.accf(r), 4), v(MF + 4 * k, 4), u(w, 8)))
            if k == 3 and r > 0: q += epi(r - 1)
            if q: A(q.pop(0))
            for x in extra.get(i, []): A(x)
            vmtick()
            i += 1
    stamp(A, 4)
    for x in q: A(x)
    assert not vm, len(vm)
VORD = sorted(VLDS)

sXL = 86
def sc_epi(w, r):
    c = (SACC + 4 * r) if r < 7 else 0
    ch, ga = tile_pos(w, r)
    return ['v_add_f32 %s, %s, %s' % (v(c), v(c), v(c + 2)),
            'v_add_f32 %s, %s, %s' % (v(c + 1), v(c + 1), v(c + 3)),
            'v_cvt_pk_bf16_f32 %s, %s, %s' % (v(c), v(c), v(c + 1)),
            'ds_write_b32 %s, %s offset:%d' % (v(vYW), v(c), ga * 1792 + ch * 256)]

def score_role(A):
    A.label('L_score')
    L = v(vLANE)
    HV_, vHMS = 76, 61
    lexpr(A, v(vYW), L, [(2, 2, 64), (0, 1, 32), (4, 2, 8), (1, 1, 4)], L_YT, 'v1')
    lexpr(A, v(vTRL), L, [(4, 2, 1792), (0, 4, 8)], L_YT, 'v1')
    lexpr(A, v(vB), L, [(5, 1, 1792), (4, 1, 32), (0, 2, 64), (3, 1, 16)], L_MEM, 'v1')
    lexpr(A, v(vX), L, [(0, 6, 16)], 0, 'v1')
    A('s_lshl_b32 %s, %s, 12' % (s(sT0), s(sWAVE)))
    A('s_add_u32 %s, %s, %d' % (s(sT0), s(sT0), L_SWL))
    A('v_add_u32 %s, %s, %s' % (v(vSW), s(sT0), v(vX)))
    gterm = [(5, 1, 64), (4, 1, 16)]
    A('s_lshl_b32 %s, %s, 9' % (s(sT0), s(sROLE)))
    lexpr(A, v(vPST), L, [(3, 1, 256), (2, 1, 32), (0, 2, 4)] + gterm, s(sT0), 'v1')
    A('s_lshr_b32 %s, %s, 2' % (s(sT0), s(sROLE)))
    A('s_lshl_b32 %s, %s, 9' % (s(sT0), s(sT0)))
    A('s_and_b32 %s, %s, 1' % (s(sT1), s(sROLE)))
    A('s_lshl_b32 %s, %s, 5' % (s(sT1), s(sT1)))
    A('s_add_u32 %s, %s, %s' % (s(sT0), s(sT0), s(sT1)))
    A('s_and_b32 %s, %s, 2' % (s(sT1), s(sROLE)))
    A('s_lshl_b32 %s, %s, 1' % (s(sT1), s(sT1)))
    A('s_add_u32 %s, %s, %s' % (s(sT0), s(sT0), s(sT1)))
    A('s_add_u32 %s, %s, 8192' % (s(sT0), s(sT0)))
    lexpr(A, 'v3', L, [(1, 1, 256), (0, 1, 8), (2, 1, 128)] + gterm, s(sT0), 'v1')
    A('v_and_b32 v4, 8, %s' % L)
    A('v_mov_b32 v2, %d' % OOB)
    A('v_cmp_eq_u32 vcc, 0, v4')
    A('v_cndmask_b32 %s, v2, v3, vcc' % v(vPSM))
    A('s_lshl_b32 %s, %s, 2' % (s(sHWR), s(sROLE)))
    A('s_add_u32 %s, %s, %d' % (s(sHWR), s(sHWR), HINT_P))
    hint_setup(A, HV_, HA, False)
    A('v_min_u32 v1, 17, %s' % L)
    A('v_lshlrev_b32 %s, 2, v1' % v(vHMS))
    dbg_arrive(A, D_GRP)
    A('v_lshrrev_b32 v8, 2, %s' % L)
    A('v_min_u32 v8, 6, v8')
    A('s_cmp_eq_u32 %s, 0' % s(sWAVE))
    A('s_cselect_b32 %s, 0, 6' % s(sT1))
    A('v_min_u32 v8, %s, v8' % s(sT1))
    A('s_mul_i32 %s, %s, 7' % (s(sT0), s(sROLE)))
    A('v_add_u32 v8, %s, v8' % s(sT0))
    A('v_lshlrev_b32 v8, 6, v8')
    A('v_and_b32 v9, 3, %s' % L)
    A('v_lshl_add_u32 v8, v9, 2, v8')
    event(A, 3)
    A('s_mul_i32 %s, %s, %d' % (s(sT3), s(sROLE), WCU))
    load_weights(A, SC, 28672, lambda: group_wait(A))
    event(A, 5)
    event(A, 6, v(vT), v(vT + 1))
    event_spin(A, 13, v(vT), v(vT + 1))
    A('s_mov_b32 %s, 0' % s(sSTEP))
    A('s_mov_b32 %s, %d' % (s(sSLOT), MB_OFF))
    A('s_mov_b32 %s, %d' % (s(sXOFF), XF_OFF))
    AC = SACC; sSL2 = sXL
    ND = 3
    def mld(k): return 'buffer_load_dwordx4 %s, %s, %s, %s offen offset:%d sc1' % (v(MF + 4 * k, 4), v(vX), s(S_WS, 4), s(sSLOT if k < 4 else sSL2), (k & 3) * 1024)
    def top():
        A('s_add_u32 %s, %s, %d' % (s(sSLOTP), s(sSLOT), MB_PO))
        A('s_add_u32 %s, %s, 4096' % (s(sSL2), s(sSLOT)))
        A('s_add_u32 %s, %s, 1' % (s(sSTEP1), s(sSTEP)))
    def bottom(lp, order):
        stamp_flush(A, 11, order)
        A('s_add_u32 %s, %s, %d' % (s(sSLOT), s(sSLOT), MB_STEP))
        A('s_add_u32 %s, %s, 1' % (s(sSTEP), s(sSTEP)))
        A('s_cmp_lt_u32 %s, 63' % s(sSTEP))
        A('s_cbranch_scc1 %s' % lp)
        A('s_branch L_sc_end')
    def chk(k, first):
        r = MF + 4 * k; t0 = v(vT)
        if first: return ['v_max3_u32 %s, %s, %s, %s' % (t0, v(r), v(r + 1), v(r + 2)), 'v_max_u32 %s, %s, %s' % (t0, t0, v(r + 3))]
        return ['v_max3_u32 %s, %s, %s, %s' % (t0, t0, v(r), v(r + 1)), 'v_max3_u32 %s, %s, %s, %s' % (t0, t0, v(r + 2), v(r + 3))]
    for w in range(1, 4):
        A('s_cmp_eq_u32 %s, %d' % (s(sWAVE), w))
        A('s_cbranch_scc1 L_score_loop%d' % w)
    XR = lambda c, T: 120 + (2 * c + T) * 8
    MR = lambda c: (256 + 224 + 8 * c) if c < 4 else (232 + 8 * (c - 4))
    AR = [92 + 4 * c for c in range(7)]
    vBG = 62
    A('v_mov_b32 %s, 0x5f800000' % v(vBG))
    vMK = 64
    A('v_and_b32 v1, 64, %s' % v(vX))
    A('v_cmp_eq_u32 vcc, 0, v1')
    A('v_cndmask_b32 %s, 0, 1.0, vcc' % v(vMK))
    A('v_cndmask_b32 %s, 1.0, 0, vcc' % v(vMK + 1))
    A.label('L_score_loop0')
    zz = zero_regs(AC, 16) + zero_regs(SD, 12)
    for i in range(28):
        if i % 4 == 0: A('s_add_u32 %s, %s, %d' % (s(sXPF), s(sXOFF), i * 1024))
        A('buffer_load_dwordx4 %s, %s, %s, %s offen offset:%d sc1' % (v(120 + 4 * i, 4), v(vX), s(S_WS, 4), s(sXPF), (i & 3) * 1024))
        A(zz[i])
    A('s_add_u32 %s, %s, 32768' % (s(sXOFF), s(sXOFF)))
    top()
    stamp(A, 0)
    A('s_barrier')
    stamp(A, 1)
    A('s_barrier')
    if PRM['o2']: A('s_barrier')
    def mdma(k):
        return (['s_mov_b32 m0, %d' % (L_MEM + (4096 if k >= 4 else 0))] if k in (0, ND, 4) else []) + \
               ['buffer_load_dwordx4 %s, %s, %s offen offset:%d sc1 lds' % (v(vX), s(S_WS, 4), s(sSLOT if k < 4 else sSL2), (k & 3) * 1024)]
    X1 = [mld(k) for k in range(ND, 7)] + [x for k in range(ND, 7) for x in mdma(k)]
    X2 = [mld(k) for k in range(ND)] + [x for k in range(ND) for x in mdma(k)]
    if PRM['o3']:
        for x in X1[:7 - ND]: A(x)
        A('s_barrier')
        A('s_nop 7')
        for x in X1[7 - ND:]: A(x)
    else:
        for x in X1: A(x)
        A('s_barrier')
    for x in X2: A(x)
    A.label('L_s0_x')
    NX = 7 - ND
    seq = [(r, k) for k in range(ND, 7) for r in range(4)]
    for i, (r, k) in enumerate(seq):
        if r == 0: A('s_waitcnt vmcnt(%d)' % (2 * ND + 2 * NX - 1 - (k - ND)))
        if i == 0: stamp(A, 2)
        A(smf(v(AC + 4 * r, 4), v(MF + 4 * k, 4), u(sc_w(r, k), 8)))
        if i < 2 * NX:
            kk = ND + i // 2
            if i % 2 == 0 and kk > k: A('s_waitcnt vmcnt(%d)' % (2 * ND + 2 * NX - 1 - (kk - ND)))
            A(chk(kk, kk == ND)[i % 2])
        if i == 2 * NX:
            A('v_cmp_eq_u32 vcc, -1, %s' % v(vT))
            spin_check(A, 'L_s0_x', X1 + zero_regs(AC, 16) + ['s_waitcnt vmcnt(0)'])
        if i == PRM['s0b']:
            A('s_waitcnt vmcnt(%d)' % (2 * ND))
            A('s_barrier')
            stamp(A, 3)
    A('s_waitcnt vmcnt(%d)' % ND)
    for j in range(2 * ND): A(chk(j // 2, j < 2)[j % 2])
    A('v_cmp_eq_u32 vcc, -1, %s' % v(vT))
    A('s_cbranch_vccnz L_s0_y')
    A.label('L_s0_z')
    q = []
    for r in range(4):
        for k in range(ND):
            A(smf(v(AC + 4 * r, 4), v(MF + 4 * k, 4), u(sc_w(r, k), 8)))
            if k == 1 and r > 0: q += sc_epi(0, r - 1)
            if q: A(q.pop(0))
            if q and q[0].startswith('ds_'): A(q.pop(0))
    A('s_waitcnt vmcnt(0)')
    def mread(c): return ['ds_read_b128 %s, %s offset:%d' % (u(MR(c) + 4 * hi, 4), v(vB), hi * 3584 + c * 256) for hi in range(2)]
    def aread(c): return ['ds_read_b64_tr_b16 %s, %s offset:%d' % (v(AR[c] + 2 * t_, 2), v(vTRL), c * 256 + t_ * 128) for t_ in range(2)]
    ds = []
    def D(xs, tag):
        for x in xs:
            A(x)
            if x.startswith('ds_'): ds.append(tag)
    def wait_for(tags):
        last = max([i for i, tg in enumerate(ds) if tg in tags], default=-1)
        if last > wait_for.done:
            A('s_waitcnt lgkmcnt(%d)' % min(14, len(ds) - 1 - last)); wait_for.done = last
    wait_for.done = -1
    D(q, 'w'); D(mread(0), 'M0'); D(mread(1), 'M1'); D(sc_epi(0, 3), 'w'); D(mread(2), 'M2')
    stamp(A, 4)
    wait_for({'M0'})
    A('s_barrier')
    D(aread(0), 'A0'); D(aread(1), 'A1'); D(mread(3), 'M3')
    units = [(c, T) for c in range(6) for T in range(3)] + [(6, 2), (6, 0), (6, 1)]
    bars = {PRM['s23']: (2, 3), PRM['s4']: (4,), PRM['sb']: (5,), PRM['sc']: (6,)}
    for i, (c, T) in enumerate(units):
        wait_for({'A%d' % c} | ({'M%d' % c} if T == 2 else set()))
        A(smf(v(SD + 4 * T, 4), v(AR[c], 4), u(XR(c, T) if T < 2 else MR(c), 8)))
        if i < 3: D(mread(4 + i), 'M%d' % (4 + i))
        if i in bars:
            A('s_barrier')
            for cc in bars[i]: D(aread(cc), 'A%d' % cc)
    stamp(A, 5)
    e, o, mm, t2 = (v(AC), v(AC + 1)), (v(AC + 2), v(AC + 3)), v(AC + 4), v(AC + 5)
    m, rr = (v(AC + 6), v(AC + 7)), (v(AC + 8), v(AC + 9))
    ID = 'quad_perm:[0,1,2,3] row_mask:0xf bank_mask:0x%x'
    def reduce(op):
        for d in ('quad_perm:[1,0,3,2]', 'quad_perm:[2,3,0,1]', 'row_half_mirror', 'row_mirror'):
            for rb in range(2): A('%s_dpp %s, %s, %s %s row_mask:0xf bank_mask:0xf' % (op, m[rb], m[rb], m[rb], d))
    E2, O2, M2, R2 = v(AC, 2), v(AC + 2, 2), v(AC + 6, 2), v(AC + 8, 2)
    def softmax(exact):
        pk = (v(vT), v(vT + 1), v(AC + 10))
        if not exact:
            A('v_add_f32 %s, %s, %s' % (mm, v(SD + 8), v(SD + 10)))
            A('v_add_f32_dpp %s, %s, %s %s' % (mm, v(SD + 9), v(SD + 11), ID % 0xa))
            A('v_pk_add_f32 %s, %s, %s' % (E2, v(SD, 2), v(SD + 2, 2)))
            A('v_exp_f32 %s, %s' % (mm, mm))
            for rb in range(2): A('v_exp_f32 %s, %s' % (e[rb], e[rb]))
            A('v_pk_add_f32 %s, %s, %s' % (O2, v(SD + 4, 2), v(SD + 6, 2)))
            for rb in range(2): A('v_exp_f32 %s, %s' % (o[rb], o[rb]))
        else:
            A('v_pk_add_f32 %s, %s, %s' % (E2, v(SD, 2), v(SD + 2, 2)))
            A('v_pk_add_f32 %s, %s, %s' % (O2, v(SD + 4, 2), v(SD + 6, 2)))
            A('v_add_f32 %s, %s, %s' % (mm, v(SD + 8), v(SD + 10)))
            A('v_add_f32 %s, %s, %s' % (t2, v(SD + 9), v(SD + 11)))
            A('v_max3_f32 %s, %s, %s, %s' % (m[0], e[0], o[0], mm))
            A('v_max3_f32 %s, %s, %s, %s' % (m[1], e[1], o[1], t2))
            reduce('v_max_f32')
            for rb in range(2):
                A('v_sub_f32 %s, %s, %s' % (e[rb], e[rb], m[rb])); A('v_sub_f32 %s, %s, %s' % (o[rb], o[rb], m[rb]))
            A('v_sub_f32 %s, %s, %s' % (mm, mm, m[0]))
            A('v_sub_f32_dpp %s, %s, %s %s' % (mm, t2, m[1], ID % 0xa))
            for rb in range(2):
                A('v_exp_f32 %s, %s' % (e[rb], e[rb])); A('v_exp_f32 %s, %s' % (o[rb], o[rb]))
            A('v_exp_f32 %s, %s' % (mm, mm))
        A('v_pk_fma_f32 %s, %s, %s, %s op_sel_hi:[0,1,1]' % (M2, v(AC + 4, 2), v(vMK, 2), E2))
        A('v_pk_add_f32 %s, %s, %s' % (M2, M2, O2))
        A('v_mov_b32_dpp %s, %s row_ror:8 row_mask:0xf bank_mask:0xf' % (t2, mm))
        reduce('v_add_f32')
        for rb in range(2): A('v_rcp_f32 %s, %s' % (rr[rb], m[rb]))
        if not exact:
            A('v_add_f32 %s, %s, %s' % (m[0], m[0], m[1]))
            A('v_add_f32 %s, %s, %s' % (m[1], rr[0], rr[1]))
            A('v_pk_mul_f32 %s, %s, %s' % (E2, E2, R2))
            A('v_add_f32 %s, %s, %s' % (m[0], m[0], m[1]))
            A('v_pk_mul_f32 %s, %s, %s' % (O2, O2, R2))
            A('v_cmp_nlt_f32 vcc, %s, %s' % (m[0], v(vBG)))
            A('v_cvt_pk_bf16_f32 %s, %s, %s' % (pk[0], e[0], o[0]))
            A('v_cvt_pk_bf16_f32 %s, %s, %s' % (pk[1], e[1], o[1]))
            A('s_cbranch_vccnz L_sc_exact')
        else:
            A('v_pk_mul_f32 %s, %s, %s' % (E2, E2, R2))
            A('v_pk_mul_f32 %s, %s, %s' % (O2, O2, R2))
            for rb in range(2):
                A('v_cvt_pk_bf16_f32 %s, %s, %s' % (pk[rb], e[rb], o[rb]))
                A('v_min_u32 %s, -2, %s' % (pk[rb], pk[rb]))
        A('buffer_store_dword %s, %s, %s, %s offen' % (pk[0], v(vPST), s(S_WS, 4), s(sSLOTP)))
        A('buffer_store_dword %s, %s, %s, %s offen offset:128' % (pk[1], v(vPST), s(S_WS, 4), s(sSLOTP)))
        A('v_mov_b32_dpp %s, %s %s' % (rr[0], rr[1], ID % 0xa))
        A('v_mul_f32 %s, %s, %s' % (mm, mm, rr[0]))
        A('v_mul_f32 %s, %s, %s' % (t2, t2, rr[0]))
        A('v_cvt_pk_bf16_f32 %s, %s, %s' % (pk[2], mm, t2))
        if exact: A('v_min_u32 %s, -2, %s' % (pk[2], pk[2]))
        A('buffer_store_dword %s, %s, %s, %s offen' % (pk[2], v(vPSM), s(S_WS, 4), s(sSLOTP)))
    softmax(not PRM['fsm'])
    A.label('L_sc_join')
    stamp(A, 8)
    bottom('L_score_loop0', [0, 1, 2, 3, 4, 5, 8])
    A.label('L_s0_y')
    for x in X2: A(x)
    A('s_waitcnt vmcnt(0)')
    for k2 in range(ND):
        for x in chk(k2, k2 == 0): A(x)
    A('v_cmp_eq_u32 vcc, -1, %s' % v(vT))
    spin_check(A, 'L_s0_y')
    A('s_branch L_s0_z')
    A.label('L_sc_exact')
    softmax(True)
    A('s_branch L_sc_join')
    for w in range(1, 4):
        LP = 'L_score_loop%d' % w
        A.label(LP)
        for x in ['v_pk_mov_b32 %s, 0, 0' % v(2 * i, 2) for i in range(16)]: A(x)
        top()
        if w == 3: A('v_mov_b32 %s, %s' % (v(HV_), s(sSTEP1)))
        stamp(A, 0)
        if w == 2: hint_wait(A, sHMRD, sSTEP1, 2, PRM['sdel'], 22, vHMS, solo=True)
        A('s_barrier')
        stamp(A, 1)
        A(mld(0))
        A('s_barrier')
        if PRM['o2']:
            A(mld(1)); A('s_barrier'); A('s_barrier'); A(mld(2))
        else:
            A('s_barrier'); A(mld(1)); A(mld(2))
        lk = A.newlabel('L_lk'); A.label(lk)
        seq = [(r, k) for k in range(ND) for r in range(8)]
        ck = {}
        for k in range(ND):
            for j, x in enumerate(chk(k, k == 0)): ck[min(8 * k + 1 + j, PRM['lb'] - 3 + j)] = (k, x)
        have = -1
        rd = list(range(ND, 7))
        for i, (r, k) in enumerate(seq):
            if k > have: A('s_waitcnt vmcnt(%d)' % (ND - 1 - k)); have = k
            if i == 0: stamp(A, 2)
            A(smf(v(SC8.accf(r), 4), v(MF + 4 * k, 4), u(SC8.w(r, k), 8)))
            if i in ck:
                kk, x = ck[i]
                if kk > have: A('s_waitcnt vmcnt(%d)' % (ND - 1 - kk)); have = kk
                A(x)
            if i == PRM['lb'] - 1:
                A('v_cmp_eq_u32 vcc, -1, %s' % v(vT))
                spin_check(A, lk, [mld(k2) for k2 in range(ND)] + zero_regs(0, 32))
            if i == PRM['lb']:
                A('s_barrier')
                stamp(A, 3)
            if i >= PRM['lb']:
                for _ in range(2):
                    if rd:
                        kk = rd.pop(0); A('ds_read_b128 %s, %s offset:%d' % (v(MF + 4 * kk, 4), v(vX), L_MEM + kk * 1024))
        assert not rd
        extra = {}
        lw = ['ds_read_b128 %s, %s offset:%d' % (v(SC8.land[(7, k_)] + 4 * hi, 4), v(vSW), (2 * (k_ - 5) + hi) * 1024) for k_ in (5, 6) for hi in range(2)]
        for x, pos in zip(lw, (3, 4, 13, 17)): extra.setdefault(pos, []).append(x)
        extra.setdefault(PRM['b01'], []).extend(['s_waitcnt lgkmcnt(1)', 's_barrier'])
        extra.setdefault(PRM['ba'], []).extend(['s_waitcnt lgkmcnt(0)', 's_barrier'])
        extra.setdefault(31, []).extend(['s_waitcnt lgkmcnt(0)', 's_barrier'])
        q = []; i = 0
        for r in range(8):
            for k in range(ND, 7):
                if r == 0: A('s_waitcnt lgkmcnt(%d)' % (6 - k))
                wv = SC8.w(r, k)
                if wv is None: wv = SC8.land[(r, k)]
                A(smf(v(SC8.accf(r), 4), v(MF + 4 * k, 4), u(wv, 8)))
                if k == ND + 1 and r > 0: q += sc_epi(w, r - 1)
                if q: A(q.pop(0))
                for x in extra.get(i, []): A(x)
                i += 1
        stamp(A, 4)
        for x in q: A(x)
        e7 = sc_epi(w, 7)
        for x in e7: A(x)
        A('s_waitcnt lgkmcnt(1)')
        A('s_barrier')
        A('s_waitcnt lgkmcnt(0)')
        A('s_barrier')
        stamp(A, 5)
        if w == 3:
            for i in range(PRM['ht']): A('s_nop 3')
            hint_send(A, HV_, HA)
            if G.events:
                A('s_memtime s[4:5]')
                A('s_memrealtime s[6:7]')
                A('s_waitcnt lgkmcnt(0)')
                A('s_mov_b32 m0, %s' % s(sSTEP))
                A('s_nop 3')
                A('v_writelane_b32 v79, s4, m0')
                A('v_writelane_b32 v67, s6, m0')
        if w == 2: A('s_sleep %d' % PRM['psl'])
        bottom(LP, [0, 1, 2, 3, 4, 5])
    A.label('L_sc_end')
    stamp_acc_out(A)
    if G.events:
        A('s_lshl_b32 s6, %s, 2' % s(sROLE))
        A('s_add_u32 s6, s6, %s' % s(sWAVE))
        A('s_lshl_b32 s6, s6, 8')
        A('s_add_u32 s6, s6, %d' % (EVT + 0x20000))
        A('v_lshrrev_b32 v1, 2, %s' % v(vX))
        A('buffer_store_dword v79, v1, %s, s6 offen' % s(S_WS, 4))
        A('s_add_u32 s6, s6, 0x8000')
        A('buffer_store_dword v67, v1, %s, s6 offen' % s(S_WS, 4))
    event(A, 8)
    event_spin(A, 14)
    A('s_branch L_exit')
    emit_stubs(A)

def va_epi(r):
    c = 4 * r
    return ['v_add_f32 %s, %s, %s' % (v(c), v(c), v(c + 2)),
            'v_add_f32 %s, %s, %s' % (v(c + 1), v(c + 1), v(c + 3)),
            'v_cvt_pk_bf16_f32 %s, %s, %s' % (v(ZB + 4 * (r & 1) + (r >> 1)), v(c), v(c + 1))]

sVB = 96
sPD = 97
def u_loads():
    out = []
    for cx in range(2):
        for hi in range(2):
            for p in range(2):
                out.append((['s_add_u32 m0, %s, %d' % (s(sVB), cx * 4096 + hi * 2048)] if p == 0 else []) +
                           ['buffer_load_dwordx4 %s, %s, %s offen offset:%d sc1 lds' % (v(vL16), s(S_WS, 4), s(88 + cx * 2 + hi), p * 1024)])
    return out

def ucheck_code(A, lbl, back, P0, t):
    A.label(lbl)
    A('v_mbcnt_lo_u32_b32 %s, -1, 0' % v(t))
    A('v_mbcnt_hi_u32_b32 %s, -1, %s' % (v(t), v(t)))
    A('v_min_u32 %s, 55, %s' % (v(t), v(t)))
    A('v_lshlrev_b32 %s, 4, %s' % (v(t), v(t)))
    A('s_mov_b32 %s, %d' % (s(sT1), FLG_W2 + 1792))
    A('s_lshr_b32 %s, %s, 2' % (s(sT2), s(sT4)))
    A('s_add_u32 %s, %s, 1' % (s(sT2), s(sT2)))
    A.label(lbl + '_l')
    A('buffer_load_dwordx4 %s, %s, %s, %s offen sc1' % (v(P0, 4), v(t), s(S_WS, 4), s(sT1)))
    A('buffer_load_dwordx4 %s, %s, %s, %s offen offset:896 sc1' % (v(P0 + 4, 4), v(t), s(S_WS, 4), s(sT1)))
    A('s_waitcnt vmcnt(0)')
    A('v_min3_u32 %s, %s, %s, %s' % (v(P0), v(P0), v(P0 + 1), v(P0 + 2)))
    A('v_min3_u32 %s, %s, %s, %s' % (v(P0), v(P0), v(P0 + 3), v(P0 + 4)))
    A('v_min3_u32 %s, %s, %s, %s' % (v(P0), v(P0), v(P0 + 5), v(P0 + 6)))
    A('v_min_u32 %s, %s, %s' % (v(P0), v(P0), v(P0 + 7)))
    A('v_cmp_gt_u32 vcc, %s, %s' % (s(sT2), v(P0)))
    spin_check(A, lbl + '_l', ['s_sleep 8'])
    A('s_lshl_b32 %s, %s, 2' % (s(sUOK), s(sT2)))
    for thr in range(2, 17):
        A('v_cmp_gt_u32 vcc, %d, %s' % (thr, v(P0)))
        A('s_cbranch_vccnz %s' % back)
        A('s_max_u32 %s, %s, %d' % (s(sUOK), s(sUOK), 4 * thr if thr < 16 else 1000))
    A('s_branch %s' % back)

def value_role(A):
    A.label('L_value')
    L = v(vLANE)
    sV = sT4
    A('s_sub_u32 %s, %s, 16' % (s(sV), s(sROLE)))
    lexpr(A, v(vL16), L, [(0, 6, 16)], 0, 'v1')
    A('s_lshl_b32 %s, %s, 13' % (s(sVB), s(sWAVE)))
    A('s_add_u32 %s, %s, %d' % (s(sVB), s(sVB), L_VB))
    A('s_lshl_b32 %s, %s, 11' % (s(sT0), s(sWAVE)))
    A('s_add_u32 %s, %s, %d' % (s(sT0), s(sT0), L_VB + 32768))
    A('v_add_u32 %s, %s, %s' % (v(vVW), s(sT0), v(vL16)))
    A('v_add_u32 %s, %d, %s' % (v(vVR), L_VB, v(vL16)))
    A('s_mul_i32 %s, %s, 20480' % (s(sT0), s(sWAVE)))
    A('s_add_u32 %s, %s, %d' % (s(sT0), s(sT0), L_WL))
    A('v_add_u32 %s, %s, %s' % (v(vLW), s(sT0), v(vL16)))
    A('s_lshl_b32 %s, %s, 9' % (s(sT0), s(sV)))
    A('s_cmp_eq_u32 %s, 0' % s(sWAVE))
    A('s_cselect_b32 %s, %s, 0x70000000' % (s(sT0), s(sT0)))
    FL = PRM['fl']; MO = 128 if FL else 16; HO = 64 if FL else 16
    lexpr(A, v(vMST), L, [(3, 1, 256), (2, 1, 32), (0, 2, 4)] + ([(5, 1, 64), (4, 1, 16)] if FL else [(4, 2, 64)]), s(sT0), 'v1')
    lexpr(A, v(vHIST), L, [(2, 2, 128), (4, 2, 16 if FL else 32), (0, 2, 4)], s(sT0), 'v1')
    A('s_lshl_b32 %s, %s, 6' % (s(sT0), s(sV)))
    lexpr(A, 'v2', L, [(4, 2, 1792), (0, 4, 4)], s(sT0), 'v1')
    A('s_lshl_b32 %s, %s, 2' % (s(sHWR), s(sV)))
    A('s_add_u32 %s, %s, %d' % (s(sHWR), s(sHWR), HINT_M))
    hint_setup(A, VHV, VHA, True)
    A('v_min_u32 v1, 18, %s' % L)
    A('v_lshlrev_b32 %s, 2, v1' % v(vHM_))
    A('v_min_u32 v1, 15, %s' % L)
    A('v_lshlrev_b32 %s, 2, v1' % v(vHP_))
    A('s_cmp_eq_u32 %s, 2' % s(sWAVE))
    A('s_cselect_b32 %s, 0, 0x70000000' % s(sT0))
    A('v_add_u32 %s, %s, %s' % (v(vHP_), s(sT0), v(vHP_)))
    dbg_arrive(A, D_GRP)
    A('s_lshr_b32 %s, %s, 1' % (s(sT0), s(sV)))
    A('s_add_u32 %s, %s, 112' % (s(sT0), s(sT0)))
    A('s_mul_i32 %s, %s, 28' % (s(sT1), s(sWAVE)))
    A('s_add_u32 %s, %s, %s' % (s(sT0), s(sT0), s(sT1)))
    lexpr(A, 'v8', L, [(2, 2, 7)], s(sT0), 'v1')
    A('v_lshlrev_b32 v8, 6, v8')
    A('v_and_b32 v9, 3, %s' % L)
    A('v_lshl_add_u32 v8, v9, 2, v8')
    A('s_mul_i32 %s, %s, %d' % (s(sUOFF), s(sWAVE), 4 * 28672))
    A('s_lshl_b32 %s, %s, 11' % (s(sT0), s(sV)))
    A('s_add_u32 %s, %s, %s' % (s(sUOFF), s(sUOFF), s(sT0)))
    A('s_add_u32 %s, %s, %d' % (s(sUOFF), s(sUOFF), U_OFF))
    A('s_mul_i32 %s, %s, %d' % (s(sT3), s(sV), WCV))
    A('s_add_u32 %s, %s, %d' % (s(sT3), s(sT3), WIMGV))
    event(A, 3)
    load_weights(A, VA, 32768, lambda: group_wait(A))
    event(A, 5)
    event(A, 6, v(vT), v(vT + 1))
    event_spin(A, 13, v(vT), v(vT + 1))
    A('s_mov_b32 %s, 0' % s(sSTEP))
    A('s_mov_b32 %s, %d' % (s(sSLOT), MB_OFF))
    A('s_mov_b32 %s, 0' % s(sPD))
    def lread(i):
        j = VLDS.index(VORD[i])
        return ['ds_read_b128 %s, %s offset:%d' % (v(LB + 8 * (i & 1) + 4 * hi, 4), v(vLW), (2 * j + hi) * 1024) for hi in range(2)]
    BF = [0, 8, 16, 24, 32, 40, 48, 80, 88]
    OD, PA, PKD = 96, 104, 56
    sP0 = 93
    def top():
        A('s_add_u32 %s, %s, 1' % (s(sSTEP1), s(sSTEP)))
        for j in range(4): A('s_add_u32 %s, %s, %d' % (s(88 + j), s(sUOFF), j * 28672))
    top()
    A.label('L_value_loop')
    if G.stamps != 2: stamp(A, 0)
    ul = u_loads(); nb1 = PRM['nb1']
    extra = {}
    for i in range(2, 10):
        r, k = VORD[i - 2]
        g0 = 5 * r + k - 2
        for j, x in enumerate(lread(i)): extra.setdefault(g0 + (j if (k == 6 and PRM['lsp']) else 0), []).append(x)
    A('s_add_u32 %s, %s, 2' % (s(sT0), s(sSTEP)))
    extra.setdefault(0, []).append('v_mov_b32 %s, %s' % (v(VHV), s(sT0)))
    for x in lread(0) + lread(1) + ['v_pk_mov_b32 %s, 0, 0' % v(2 * i, 2) for i in range(16)]: A(x)
    post = ['s_barrier']
    for j, x in enumerate(ul[:nb1]): post += x
    pp = 'buffer_load_dword %s, %s, %s, %s offen sc1' % (v(vT), v(vHP_), s(S_WS, 4), s(sHPRD))
    if PRM['prime']:
        extra.setdefault(34, []).append(pp); extra.setdefault(39, []).append(pp)
    main_phase(A, VA, 2, PRM['vdel'], post, ul[nb1:], PRM['uev'], extra, va_epi)
    zw = va_epi(7) + ['ds_write_b128 %s, %s offset:%d' % (v(vVW), v(ZB + 4 * p, 4), p * 1024) for p in range(2)]
    for j in range(3): A('s_add_u32 %s, %s, %d' % (s(sP0 + j), s(sSLOT), MB_PO + 4096 * j))
    A('s_add_u32 %s, %s, %d' % (s(sSLOT), s(sSLOT), MB_STEP))
    NB = PRM['nub']
    if not NB:
        A('s_waitcnt vmcnt(0)')
        A('s_barrier')
    def bread(f):
        c, p = f >> 1, f & 1
        return ['ds_read_b128 %s, %s offset:%d' % (v(BF[f % 9] + 4 * hi, 4), v(vVR), c * 4096 + hi * 2048 + p * 1024) for hi in range(2)]
    pre = []
    for f in range(9):
        pre += bread(f)
        if f in (4, 7): pre.append('s_waitcnt lgkmcnt(4)')
    pre += zero_regs(OD, 8) + ['s_waitcnt lgkmcnt(0)']
    A('s_add_u32 %s, %s, %d' % (s(sUOFF), s(sUOFF), 16 * 28672))
    A('s_add_u32 %s, %s, 1' % (s(sSTEP), s(sSTEP)))
    A('s_cmp_lg_u32 %s, 0' % s(sWAVE))
    A('s_cbranch_scc1 L_value_oth')
    npre = 4 if NB else PRM['npre']
    pre1 = []; pre2 = []
    if NB: pre1 = zw + zero_regs(OD, 8) + ['s_waitcnt vmcnt(0)']
    for f in range(9):
        if f == 3 and not NB: pre1.extend(zw + zero_regs(OD, 8))
        (pre1 if f < npre else pre2).extend(bread(f))
        if f in (4, 7) and not NB: (pre1 if f < npre else pre2).append('s_waitcnt lgkmcnt(4)')
    for x in pre1: A(x)
    if G.stamps == 2:
        stamp(A, 10); stamp(A, 3); stamp(A, 5)
    if G.stamps == 2: stamp(A, 0)
    if PRM['solo']: hint_wait(A, sHPRD, sSTEP1, 0, PRM['pdel'], 16, vHP_, solo=True)
    else:
        A('s_cmp_lg_u32 %s, 0' % s(sPD))
        A('s_barrier')
        A('s_cbranch_scc1 L_pv_delay')
        A.label('L_pv_go')
    stamp(A, 9)
    ld = ['buffer_load_dwordx4 %s, %s, %s, %s offen offset:%d sc1' % (v(PA + 4 * c, 4), v(vL16), s(S_WS, 4), s(sP0 + (c >> 2)), (c & 3) * 1024) for c in range(10)]
    for x in ld: A(x)
    for x in pre2: A(x)
    A('s_waitcnt lgkmcnt(%d)' % (PRM['pvw'] if NB else 0))
    A.label('L_pv')
    for f in range(20):
        c, p = f >> 1, f & 1
        if p == 0: A('s_waitcnt vmcnt(%d)' % (9 - c + (1 if f > PRM['vf'] else 0)))
        if f == 0: stamp(A, 6)
        if NB and PRM['pvw'] and f == 4: A('s_waitcnt lgkmcnt(8)')
        if f >= 9: A('s_waitcnt lgkmcnt(%d)' % min(14, sum(len(bread(g)) for g in range(f + 1, min(19, f + 8) + 1))))
        A(smf(v(OD + 4 * p, 4), v(PA + 4 * c, 4), v(BF[f % 9], 8)))
        if f == PRM['vf']: hint_send(A, VHV, VHA)
        if f + 9 < 20:
            for x in bread(f + 9): A(x)
    stamp(A, 7)
    A('v_pk_add_f32 %s, %s, %s' % (v(OD, 2), v(OD, 2), v(OD + 2, 2)))
    A('v_cmp_u_f32 vcc, %s, %s' % (v(OD), v(OD + 1)))
    A('v_pk_add_f32 %s, %s, %s' % (v(OD + 4, 2), v(OD + 4, 2), v(OD + 6, 2)))
    A('s_cbranch_vccnz L_pv_nan')
    A('v_cvt_pk_bf16_f32 %s, %s, %s' % (v(PKD), v(OD), v(OD + 4)))
    A('v_cvt_pk_bf16_f32 %s, %s, %s' % (v(PKD + 1), v(OD + 1), v(OD + 5)))
    A.label('L_pv_ok')
    A('buffer_store_dword %s, %s, %s, %s offen' % (v(PKD), v(vMST), s(S_WS, 4), s(sSLOT)))
    A('buffer_store_dword %s, %s, %s, %s offen offset:%d' % (v(PKD + 1), v(vMST), s(S_WS, 4), s(sSLOT), MO))
    stamp(A, 8)
    if G.stamps:
        A('s_sub_u32 %s, %s, 1' % (s(sSTEP), s(sSTEP)))
        stamp_flush(A, 11, [0, 1, 2, 3, 4, 5, 10, 9, 6, 7][:10] if False else [1, 2, 4, 10, 3, 5, 0, 9, 6, 8])
        A('s_add_u32 %s, %s, 1' % (s(sSTEP), s(sSTEP)))
    A.label('L_value_next')
    top()
    A('s_cmp_lt_u32 %s, 63' % s(sSTEP))
    A('s_cbranch_scc1 L_value_loop')
    stamp_acc_out(A)
    A('s_mov_b32 %s, %d' % (s(sT0), HM_OFF + 63 * HM_STEP))
    for j in range(2): A('buffer_store_dword %s, %s, %s, %s offen offset:%d sc1' % (v(PKD + j), v(vHIST), s(S_WS, 4), s(sT0), HO * j))
    event(A, 8)
    event_spin(A, 14)
    A('s_branch L_exit')
    A.label('L_value_oth')
    A(pp)
    for x in zw[:4]: A(x)
    A(pp)
    for x in zw[4:]: A(x)
    A('s_nop 7')
    if PRM['solo']: A('s_sleep %d' % PRM['vsl'])
    else: hint_wait(A, sHPRD, sSTEP1, 2, PRM['pdel'], 16, vHP_, primed=True)
    A('s_branch L_value_next')
    A.label('L_pv_delay')
    A('s_mov_b32 %s, %s' % (s(sT1), s(sPD)))
    A.label('L_pv_delay2')
    A('s_sub_u32 %s, %s, 1' % (s(sT1), s(sT1)))
    A('s_cmp_lg_u32 %s, 0' % s(sT1))
    A('s_cbranch_scc1 L_pv_delay2')
    A('s_branch L_pv_go')
    A.label('L_pv_nan')
    A('v_max3_u32 %s, %s, %s, %s' % (v(vT), v(PA), v(PA + 1), v(PA + 2)))
    for i in range(3, 39, 2): A('v_max3_u32 %s, %s, %s, %s' % (v(vT), v(vT), v(PA + i), v(PA + i + 1)))
    A('v_max_u32 %s, %s, %s' % (v(vT), v(vT), v(PA + 39)))
    A('v_cmp_eq_u32 vcc, -1, %s' % v(vT))
    spin_check(A, 'L_pv', ld + pre + ['s_add_u32 %s, %s, 1' % (s(sPD), s(sPD)), 's_min_u32 %s, %s, 6' % (s(sPD), s(sPD))])
    A('v_cvt_pk_bf16_f32 %s, %s, %s' % (v(PKD), v(OD), v(OD + 4)))
    A('v_cvt_pk_bf16_f32 %s, %s, %s' % (v(PKD + 1), v(OD + 1), v(OD + 5)))
    A('v_min_u32 %s, -2, %s' % (v(PKD), v(PKD)))
    A('v_min_u32 %s, -2, %s' % (v(PKD + 1), v(PKD + 1)))
    A('s_branch L_pv_ok')
    emit_stubs(A)

def helper_role(A):
    A.label('L_helper')
    L = v(vLANE)
    sJ, sXD, sSI = sPRST, sXPF, sUOFF
    LA = PRM['pla']; LT = PRM['plt']
    A('v_lshlrev_b32 v1, 8, %s' % L)
    A('v_mov_b32 v2, %d' % OOB)
    A('v_cmp_gt_u32 vcc, %d, %s' % (PRM['nrep'], L))
    A('v_cndmask_b32 v8, v2, v1, vcc')
    A('s_mov_b32 %s, 0' % s(sSTEP))
    A('s_mov_b32 %s, %d' % (s(sSLOT), MB_OFF))
    A('s_lshl_b32 %s, %s, 10' % (s(sT0), s(sWAVE)))
    lexpr(A, 'v10', L, [(0, 6, 16)], s(sT0), 'v1')
    A('s_cmp_eq_u32 %s, 31' % s(sROLE))
    A('s_cbranch_scc1 L_prep')
    diag(A, 5)
    lexpr(A, 'v11', L, [(4, 2, 256), (1, 1, 128), (2, 2, 32), (0, 1, 16)], s(sT0), 'v1')
    A('s_cmp_lt_u32 %s, 3' % s(sWAVE))
    A('s_cselect_b32 %s, 4096, 0' % s(sT0))
    A('v_add_u32 v12, %s, v10' % s(sT0))
    A('v_add_u32 v13, %s, v11' % s(sT0))
    A('s_mov_b32 %s, %d' % (s(sHWR), HINT_M + 18 * 4))
    A('s_cmp_eq_u32 %s, 3' % s(sWAVE))
    A('s_cselect_b32 %s, %d, 1000' % (s(sUOK), 1000 if G.dev_nowait else 0))
    A('s_cbranch_scc0 L_h_nu')
    A('v_mov_b32 v3, %s' % s(sUOK))
    A('buffer_store_dword v3, v8, %s, %s offen' % (s(S_WS, 4), s(sHWR)))
    A.label('L_h_nu')
    if not G.dev_nowait:
        A('s_cmp_lg_u32 %s, 0' % s(sWAVE))
        A('s_cbranch_scc1 L_h_rdy')
        lexpr(A, 'v2', L, [(0, 1, 64)], D_XG * 4, 'v3')
        A.label('L_h_xg')
        A('buffer_load_dword v3, v2, %s, 0 offen sc1' % s(S_DBG, 4))
        A('s_waitcnt vmcnt(0)')
        A('v_cmp_gt_u32 vcc, 112, v3')
        spin_check(A, 'L_h_xg', ['s_sleep 4'])
        A('v_mov_b32 v2, %d' % (D_RDY * 4))
        A('v_mov_b32 v3, 1')
        A('s_mov_b64 exec, 1')
        A('buffer_store_dword v3, v2, %s, 0 offen sc1' % s(S_DBG, 4))
        A('s_mov_b64 exec, -1')
        A.label('L_h_rdy')
    dbg_arrive(A, D_GRP)
    group_wait(A)
    A('s_mov_b32 %s, %d' % (s(sHM), HM_OFF))
    A.label('L_hist')
    A('s_cmp_ge_u32 %s, 64' % s(sUOK))
    A('s_cbranch_scc1 L_hist_b')
    A('s_mov_b32 %s, 0' % s(sT4))
    A('s_branch L_hucheck')
    A.label('L_hucheck_done')
    A('v_mov_b32 v3, %s' % s(sUOK))
    A('buffer_store_dword v3, v8, %s, %s offen' % (s(S_WS, 4), s(sHWR)))
    A.label('L_hist_b')
    A('buffer_load_dwordx4 v[16:19], v10, %s, %s offen sc1' % (s(S_WS, 4), s(sSLOT)))
    A('buffer_load_dwordx4 v[20:23], v12, %s, %s offen sc1' % (s(S_WS, 4), s(sSLOT)))
    A('s_waitcnt vmcnt(0)')
    A('v_max3_u32 v3, v16, v17, v18')
    A('v_max3_u32 v3, v3, v19, v20')
    A('v_max3_u32 v3, v3, v21, v22')
    A('v_max_u32 v3, v3, v23')
    A('v_cmp_eq_u32 vcc, -1, v3')
    spin_check(A, 'L_hist', ['s_sleep 1'])
    A('buffer_store_dwordx4 v[16:19], v11, %s, %s offen sc1' % (s(S_WS, 4), s(sHM)))
    A('buffer_store_dwordx4 v[20:23], v13, %s, %s offen sc1' % (s(S_WS, 4), s(sHM)))
    if G.diag:
        for st_, ix in ((1, 7), (2, 8), (8, 9), (63, 10)):
            lb = A.newlabel('L_dg')
            A('s_cmp_lg_u32 %s, %d' % (s(sSTEP), st_)); A('s_cbranch_scc1 %s' % lb); diag(A, ix); A.label(lb)
    A('s_add_u32 %s, %s, %d' % (s(sSLOT), s(sSLOT), MB_STEP))
    A('s_add_u32 %s, %s, %d' % (s(sHM), s(sHM), HM_STEP))
    A('s_add_u32 %s, %s, 1' % (s(sSTEP), s(sSTEP)))
    A('s_cmp_lt_u32 %s, 64' % s(sSTEP))
    A('s_cbranch_scc1 L_hist')
    A('s_waitcnt vmcnt(0)')
    event(A, 8)
    A('s_branch L_exit')
    ucheck_code(A, 'L_hucheck', 'L_hucheck_done', 32, 24)
    A.label('L_prep')
    for i in range(1, 4): A('v_add_u32 %s, %d, v10' % (v(10 + i), 4096 * i))
    A('s_cmp_lt_u32 %s, 2' % s(sWAVE))
    A('s_cselect_b32 %s, 16384, 0' % s(sT1))
    A('v_add_u32 v14, %s, v10' % s(sT1))
    lexpr(A, 'v15', L, [(3, 3, 4096), (0, 3, 128)], s(sT0), 'v1')
    A('v_cmp_gt_u32 vcc, %d, v15' % MB_STEP)
    A('v_cndmask_b32 v15, v2, v15, vcc')
    A('s_mul_i32 %s, %s, 7168' % (s(sT0), s(sWAVE)))
    A('v_min_u32 v1, 55, %s' % L)
    A('v_lshl_add_u32 v9, v1, 7, %s' % s(sT0))
    for i in range(4): A('v_mov_b32 %s, -1' % v(4 + i))
    A('s_lshl_b32 %s, %s, 2' % (s(sHWR), s(sWAVE)))
    A('s_add_u32 %s, %s, %d' % (s(sHWR), s(sHWR), HINT_M + 14 * 4))
    A('s_mov_b32 %s, 0' % s(sJ))
    A('s_mov_b32 %s, %d' % (s(sXD), XF_OFF + LT * 32768))
    A('s_mov_b32 %s, %d' % (s(sSI), MB_OFF))
    def prepare(touch):
        A('s_sub_u32 %s, %s, 2' % (s(sT0), s(sJ)))
        A('s_max_i32 %s, %s, 0' % (s(sT0), s(sT0)))
        A('s_cmp_ge_u32 %s, 64' % s(sJ))
        A('s_cselect_b32 %s, 64, %s' % (s(sT0), s(sT0)))
        A('v_mov_b32 v3, %s' % s(sT0))
        A('buffer_store_dword v3, v8, %s, %s offen' % (s(S_WS, 4), s(sHWR)))
        if touch:
            A('s_add_u32 %s, %s, %d' % (s(sT0), s(sSLOT), LT * MB_STEP))
            A('buffer_load_dword v21, v15, %s, %s offen sc1' % (s(S_WS, 4), s(sT0)))
            A('buffer_load_dword v20, v9, %s, %s offen sc1' % (s(S_WS, 4), s(sXD)))
            A('s_add_u32 %s, %s, 32768' % (s(sXD), s(sXD)))
        e = A.newlabel('L_hsk')
        A('s_cmp_ge_u32 %s, 64' % s(sJ))
        A('s_cbranch_scc1 %s' % e)
        for i in range(5): A('buffer_store_dwordx4 v[4:7], %s, %s, %s offen' % (v(10 + i), s(S_WS, 4), s(sSI)))
        A('s_add_u32 %s, %s, 1' % (s(sJ), s(sJ)))
        A('s_add_u32 %s, %s, %d' % (s(sSI), s(sSI), MB_STEP))
        A.label(e)
    A('s_lshl_b32 %s, %s, 7' % (s(sT0), s(sWAVE)))
    lexpr(A, 'v22', L, [(2, 2, 1792), (0, 1, 896), (4, 2, 32), (1, 1, 16)], s(sT0), 'v1')
    A('buffer_load_dwordx4 v[24:27], v22, %s, 0 offen' % s(S_M0, 4))
    A('buffer_load_dwordx4 v[28:31], v22, %s, 0 offen offset:512' % s(S_M0, 4))
    prepare(False)
    A('s_waitcnt vmcnt(0)')
    for i in range(8): A('v_min_u32 %s, -2, %s' % (v(24 + i), v(24 + i)))
    A('buffer_store_dwordx4 v[24:27], v10, %s, %s offen' % (s(S_WS, 4), s(sSLOT)))
    A('buffer_store_dwordx4 v[28:31], v11, %s, %s offen' % (s(S_WS, 4), s(sSLOT)))
    A.label('L_prep_pre')
    A('s_waitcnt vmcnt(0)')
    prepare(False)
    A('s_cmp_le_u32 %s, %d' % (s(sJ), LA + 1))
    A('s_cbranch_scc1 L_prep_pre')
    dbg_arrive(A, D_GRP)
    group_wait(A)
    A.label('L_prep_warm')
    for i in range(LT + 1):
        A('s_mov_b32 %s, %d' % (s(sT0), XF_OFF + i * 32768))
        A('buffer_load_dword v20, v9, %s, %s offen sc1' % (s(S_WS, 4), s(sT0)))
        A('s_mov_b32 %s, %d' % (s(sT0), MB_OFF + i * MB_STEP))
        A('buffer_load_dword v21, v15, %s, %s offen sc1' % (s(S_WS, 4), s(sT0)))
    A('buffer_load_dwordx4 v[16:19], v12, %s, %s offen sc1' % (s(S_WS, 4), s(sSLOT)))
    A('s_waitcnt vmcnt(0)')
    check4(A, 16, 'L_prep_warm', ['s_sleep 8'])
    A.label('L_prep_loop')
    A('buffer_load_dwordx4 v[16:19], v12, %s, %s offen sc1' % (s(S_WS, 4), s(sSLOT)))
    A('s_waitcnt vmcnt(0)')
    check4(A, 16, 'L_prep_loop', ['s_sleep 4'])
    prepare(True)
    A('s_add_u32 %s, %s, %d' % (s(sSLOT), s(sSLOT), MB_STEP))
    A('s_add_u32 %s, %s, 1' % (s(sSTEP), s(sSTEP)))
    A('s_cmp_lt_u32 %s, 62' % s(sSTEP))
    A('s_cbranch_scc1 L_prep_loop')
    A('s_branch L_exit')
    emit_stubs(A)
```

```python
from common import *
import struct

sRHO, sH, sQ, sTY, sA = 71, 72, 73, 74, 75
sSC, sO1, sO2, sO3, sSEG, sCNT = 76, 77, 78, 79, 80, 81
S_W1 = 92
LW_R2 = 0
LW_ST = 36864
LW_WT = 36864 + 33792
def f2u(x): return struct.unpack('<I', struct.pack('<f', x))[0]

def wait_dbg(A, idx, val, sleep=2):
    l = A.newlabel('L_wd'); e = A.newlabel('L_wd_done')
    A('s_cmp_lg_u32 %s, 0' % s(sWAVE))
    A('s_cbranch_scc1 %s' % e)
    if idx == D_INIT: lexpr(A, 'v2', 'v0', [(0, 2, 64)], idx * 4, 'v3')
    else: A('v_mov_b32 v2, %d' % (idx * 4))
    A.label(l)
    A('buffer_load_dword v3, v2, %s, 0 offen sc1' % s(S_DBG, 4))
    A('s_waitcnt vmcnt(0)')
    A('v_cmp_gt_u32 vcc, %d, v3' % val)
    spin_check(A, l, ['s_sleep %d' % sleep])
    A.label(e)
    A('s_barrier')

def early_prefetch(A):
    e = A.newlabel('L_ep')
    A('s_cmp_eq_u32 %s, 0' % s(sXCC))
    A('s_cbranch_scc1 %s' % e)
    A('s_lshr_b32 %s, s2, 3' % s(sROLE))
    role_decode(A)
    lexpr(A, 'v5', 'v0', [(2, 4, 8192), (0, 2, 128)], 0, 'v6')
    A('s_and_b32 %s, %s, 1' % (s(sT2), s(sWAVE)))
    A('s_lshl_b32 %s, %s, 1' % (s(sT0), s(sQ)))
    A('s_add_u32 %s, %s, %s' % (s(sT0), s(sT0), s(sT2)))
    A('s_lshl_b32 %s, %s, 18' % (s(sT0), s(sT0)))
    A('s_lshl_b32 %s, %s, 9' % (s(sT1), s(sH)))
    A('s_add_u32 %s, %s, %s' % (s(sT0), s(sT0), s(sT1)))
    A('s_add_u32 %s, %s, %d' % (s(sT1), s(sT0), 16 * 8192))
    l2 = A.newlabel('L_ep2'); l3 = A.newlabel('L_ep3')
    A('s_cmp_ge_u32 %s, 2' % s(sWAVE))
    A('s_cbranch_scc1 %s' % l2)
    for j in range(2): A('buffer_load_dword v7, v5, %s, %s offen' % (s(S_W1, 4), s(sT0 + j)))
    A('s_branch %s' % e)
    A.label(l2)
    A('s_cmp_lg_u32 %s, 0' % s(sTY))
    A('s_cbranch_scc1 %s' % l3)
    for j in range(2): A('buffer_load_dword v7, v5, %s, %s offen' % (s(S_WK, 4), s(sT0 + j)))
    A('s_branch %s' % e)
    A.label(l3)
    A('v_lshlrev_b32 v5, 7, v0')
    A('s_lshl_b32 %s, %s, 1' % (s(sT0), s(sQ)))
    A('s_add_u32 %s, %s, %s' % (s(sT0), s(sT0), s(sT2)))
    A('s_lshl_b32 %s, %s, 14' % (s(sT0), s(sT0)))
    A('s_mul_i32 %s, %s, 229376' % (s(sT1), s(sH)))
    A('s_add_u32 %s, %s, %s' % (s(sT0), s(sT0), s(sT1)))
    A('s_add_u32 %s, %s, 8192' % (s(sT1), s(sT0)))
    for j in range(2): A('buffer_load_dword v7, v5, %s, %s offen' % (s(S_WO, 4), s(sT0 + j)))
    A.label(e)

def worker_entry(A):
    A.label('L_worker')
    A('s_mov_b32 %s, %d' % (s(sSPIN), SPIN_MAX))
    role_decode(A)

def role_decode(A):
    A('s_sub_u32 %s, %s, 1' % (s(sRHO), s(sXCC)))
    A('s_lshl_b32 %s, %s, 5' % (s(sRHO), s(sRHO)))
    A('s_add_u32 %s, %s, %s' % (s(sRHO), s(sRHO), s(sROLE)))
    A('s_mul_i32 %s, %s, 9363' % (s(sT0), s(sRHO)))
    A('s_lshr_b32 %s, %s, 16' % (s(sT0), s(sT0)))
    A('s_mul_i32 %s, %s, 7' % (s(sT1), s(sT0)))
    A('s_sub_u32 %s, %s, %s' % (s(sQ), s(sRHO), s(sT1)))
    A('s_lshr_b32 %s, %s, 4' % (s(sTY), s(sT0)))
    A('s_and_b32 %s, %s, 15' % (s(sH), s(sT0)))
    A('s_mul_i32 %s, %s, 7' % (s(sA), s(sH)))
    A('s_add_u32 %s, %s, %s' % (s(sA), s(sA), s(sQ)))
    A('s_cmp_eq_u32 %s, 0' % s(sTY))
    A('s_cselect_b32 %s, %s, %s' % (s(S_W1), s(S_WQ), s(S_WV)))
    A('s_cselect_b32 %s, %s, %s' % (s(S_W1 + 1), s(S_WQ + 1), s(S_WV + 1)))
    A('s_mov_b32 %s, 3670016' % s(S_W1 + 2))
    A('s_mov_b32 %s, 0x00020000' % s(S_W1 + 3))
    A('s_cselect_b32 %s, 0x%x, 1.0' % (s(sSC), f2u(SCALE_LOG2E)))

def zero_flags(A):
    A('s_cmp_eq_u32 %s, 3' % s(sWAVE))
    A('s_cselect_b32 %s, 0, 0x70000000' % s(sT1))
    A('s_cselect_b64 vcc, 1, 0')
    lexpr(A, 'v13', 'v0', [(0, 6, 16)], s(sT1), 'v1')
    A('v_mov_b32 v3, %d' % OOB)
    A('s_and_b32 %s, %s, 3' % (s(sT0), s(sRHO)))
    A('s_lshl_b32 %s, %s, 6' % (s(sT0), s(sT0)))
    A('s_add_u32 %s, %s, %d' % (s(sT0), s(sT0), D_INIT * 4))
    A('v_mov_b32 v1, %s' % s(sT0))
    A('v_cndmask_b32 v11, v3, v1, vcc')
    A('s_lshl_b32 %s, %s, 6' % (s(sT0), s(sRHO)))
    A('s_mul_i32 %s, %s, 192' % (s(sT2), s(sRHO)))
    A('s_add_u32 %s, %s, %d' % (s(sT2), s(sT2), 0x4000 - 64))
    A('v_mov_b32 v1, %s' % s(sT0))
    A('v_mov_b32 v2, %s' % s(sT2))
    A('v_cmp_gt_u32 vcc, 16, v0')
    A('v_cndmask_b32 v2, v2, v1, vcc')
    A('v_lshl_add_u32 v2, v0, 2, v2')
    A('v_add_u32 v2, %s, v2' % s(sT1))
    A('v_mov_b32 v3, 0')
    A('v_mov_b32 v12, 1')
    for i in range(4): A('v_mov_b32 %s, -1' % v(16 + i))
    A('s_mov_b32 %s, %d' % (s(sT0), FLAGS))
    A('buffer_store_dword v3, v2, %s, %s offen sc1' % (s(S_WS, 4), s(sT0)))
    A('s_lshl_b32 %s, %s, 11' % (s(sT0), s(sRHO)))
    A('s_add_u32 %s, %s, %d' % (s(sT0), s(sT0), HM_OFF))
    A('buffer_store_dwordx4 v[16:19], v13, %s, %s offen sc1' % (s(S_WS, 4), s(sT0)))
    A('buffer_store_dwordx4 v[16:19], v13, %s, %s offen offset:1024 sc1' % (s(S_WS, 4), s(sT0)))

sXGD = 100
def xg_load(A):
    A('s_lshl_b32 %s, %s, 2' % (s(sT0), s(sRHO)))
    A('s_add_u32 %s, %s, %s' % (s(sT0), s(sT0), s(sWAVE)))
    A('s_mul_i32 %s, %s, 9363' % (s(sT1), s(sT0)))
    A('s_lshr_b32 %s, %s, 16' % (s(sT1), s(sT1)))
    A('s_mul_i32 %s, %s, 7' % (s(sT2), s(sT1)))
    A('s_sub_u32 %s, %s, %s' % (s(sT2), s(sT0), s(sT2)))
    A('s_lshl_b32 %s, %s, 7' % (s(sT2), s(sT2)))
    A('s_lshr_b32 %s, %s, 1' % (s(sT3), s(sT1)))
    A('s_mul_i32 %s, %s, 28672' % (s(sT3), s(sT3)))
    A('s_add_u32 %s, %s, %s' % (s(sT2), s(sT2), s(sT3)))
    A('s_and_b32 %s, %s, 1' % (s(sT3), s(sT1)))
    A('s_mul_i32 %s, %s, %d' % (s(sT3), s(sT3), 4 * 896))
    A('s_add_u32 %s, %s, %s' % (s(sT2), s(sT2), s(sT3)))
    lexpr(A, 'v48', 'v0', [(2, 2, 8 * 896), (0, 2, 896), (4, 2, 16)], 0, 'v1')
    A('buffer_load_dwordx4 v[40:43], v48, %s, %s offen' % (s(S_BX, 4), s(sT2)))
    A('buffer_load_dwordx4 v[44:47], v48, %s, %s offen offset:64' % (s(S_BX, 4), s(sT2)))
    A('s_lshl_b32 %s, %s, 11' % (s(sXGD), s(sT0)))
    A('s_add_u32 %s, %s, %d' % (s(sXGD), s(sXGD), XG_OFF))
    A('s_lshr_b32 %s, %s, 1' % (s(sT1), s(sT1)))
    A('s_mul_i32 %s, %s, 14' % (s(sT2), s(sT1)))
    A('s_sub_u32 %s, %s, %s' % (s(sT0), s(sT0), s(sT2)))
    A('s_lshl_b32 %s, %s, 15' % (s(sXGD + 1), s(sT1)))
    A('s_lshl_b32 %s, %s, 11' % (s(sT2), s(sT0)))
    A('s_add_u32 %s, %s, %s' % (s(sXGD + 1), s(sXGD + 1), s(sT2)))
    A('s_add_u32 %s, %s, %d' % (s(sXGD + 1), s(sXGD + 1), XF_OFF))
    A('s_mul_i32 %s, %s, 28672' % (s(sT1), s(sT1)))
    A('s_lshr_b32 %s, %s, 1' % (s(sT2), s(sT0)))
    A('s_lshl_b32 %s, %s, 5' % (s(sT2), s(sT2)))
    A('s_add_u32 %s, %s, %s' % (s(sT1), s(sT1), s(sT2)))
    A('s_and_b32 %s, %s, 1' % (s(sT2), s(sT0)))
    A('s_mul_i32 %s, %s, 896' % (s(sT2), s(sT2)))
    A('s_add_u32 %s, %s, %s' % (s(sT1), s(sT1), s(sT2)))
    lexpr(A, 'v49', 'v0', [(3, 1, 16 * 896), (0, 2, 4 * 896), (2, 1, 2 * 896), (5, 1, 224), (4, 1, 16)], 0, 'v1')
    A('buffer_load_dwordx4 v[32:35], v49, %s, %s offen' % (s(S_BX, 4), s(sT1)))
    A('buffer_load_dwordx4 v[36:39], v49, %s, %s offen offset:448' % (s(S_BX, 4), s(sT1)))
    A('v_lshlrev_b32 v48, 4, v0')

WF = 256
vST = 4
def phase_w1(A):
    W2F = 256
    AFR = (64, 96)
    DD = (128, 160)
    PC = 192
    vSRC, vRD, vDST, vR2W, vR2R, vG2 = 16, 24, 28, 8, 9, 10
    R2 = 3 * 32768
    sB1, sCI, sRING, sCS = sO3, sSEG, sCNT, 83
    vm = ['i', 'i', 'i']
    done = [0]
    def V(x, tag):
        A(x); vm.append(tag)
    def vwait(tag):
        last = max(i for i, tg in enumerate(vm) if tg == tag)
        return 's_waitcnt vmcnt(%d)' % (len(vm) - 1 - last)
    A('s_cmp_lg_u32 %s, 0' % s(sTY))
    A('s_cbranch_scc1 L_w1_b')
    lexpr(A, v(vG2), 'v0', [(5, 1, 8192), (0, 5, 16)], 0, 'v1')
    A('s_lshl_b32 %s, %s, 2' % (s(sT0), s(sQ)))
    A('s_add_u32 %s, %s, %s' % (s(sT0), s(sT0), s(sWAVE)))
    A('s_lshl_b32 %s, %s, 17' % (s(sT0), s(sT0)))
    A('s_lshl_b32 %s, %s, 9' % (s(sT1), s(sH)))
    A('s_add_u32 %s, %s, %s' % (s(sT0), s(sT0), s(sT1)))
    for j in range(8):
        A('buffer_load_dwordx4 %s, %s, %s, %s offen' % (v(64 + 4 * j, 4), v(vG2), s(S_WK, 4), s(sT0)))
        if j < 7: A('s_add_u32 %s, %s, 16384' % (s(sT0), s(sT0)))
    A('s_branch L_w1_c')
    A.label('L_w1_b')
    if PRM['bdel']: A('s_sleep %d' % PRM['bdel'])
    lexpr(A, v(vG2), 'v0', [(3, 3, 896), (0, 3, 16)], 0, 'v1')
    A('s_mul_i32 %s, %s, 229376' % (s(sT0), s(sH)))
    A('s_mul_i32 %s, %s, %d' % (s(sT1), s(sWAVE), 64 * 896))
    A('s_add_u32 %s, %s, %s' % (s(sT0), s(sT0), s(sT1)))
    A('s_lshl_b32 %s, %s, 7' % (s(sT1), s(sQ)))
    A('s_add_u32 %s, %s, %s' % (s(sT0), s(sT0), s(sT1)))
    for j in range(8):
        A('buffer_load_dwordx4 %s, %s, %s, %s offen' % (v(64 + 4 * j, 4), v(vG2), s(S_WO, 4), s(sT0)))
        if j < 7: A('s_add_u32 %s, %s, %d' % (s(sT0), s(sT0), 8 * 896))
    A.label('L_w1_c')
    vm.extend(['w2'] * 8)
    A('v_lshrrev_b32 v1, 5, v0')
    A('v_and_b32 v2, 31, v0')
    A('v_xor_b32 v2, v2, v1')
    A('v_lshlrev_b32 v1, 13, v1')
    for j in range(8):
        g = j >> 1
        rowoff = 16 * (g >> 1) + 4 * (g & 1) + 8 * (j & 1)
        A('v_xor_b32 v3, %d, v2' % (2 * j))
        A('v_lshl_add_u32 v3, v3, 4, v1')
        A('v_add_u32 %s, %d, v3' % (v(vSRC + j), rowoff * 8192))
    A('s_lshl_b32 %s, %s, 9' % (s(sB1), s(sH)))
    A('s_lshl_b32 %s, %s, 13' % (s(sRING), s(sWAVE)))
    if PRM['wrot'] == 3:
        A('s_and_b32 %s, %s, 1' % (s(sT0), s(sQ)))
        A('s_lshl_b32 %s, %s, 2' % (s(sT0), s(sT0)))
    else: A('s_mul_i32 %s, %s, %d' % (s(sT0), s(sQ), PRM['wrot']))
    A('s_add_u32 %s, %s, %s' % (s(sT0), s(sT0), s(sWAVE)))
    for i in range(4):
        A('s_add_u32 %s, %s, %d' % (s(96 + i), s(sT0), 4 * i))
        A('s_sub_u32 %s, %s, 14' % (s(sT1), s(96 + i)))
        A('s_cmp_ge_u32 %s, 14' % s(96 + i))
        A('s_cselect_b32 %s, %s, %s' % (s(96 + i), s(sT1), s(96 + i)))
    def dma(tl):
        i, T = tl >> 1, tl & 1
        o = [('s_lshl_b32 %s, %s, 18' % (s(sO2), s(96 + i)), None), ('s_add_u32 %s, %s, %s' % (s(sO2), s(sO2), s(sB1)), None)]
        if T: o.append(('s_add_u32 %s, %s, %d' % (s(sO2), s(sO2), 2 * 8192), None))
        for j in range(8):
            o.append(('s_add_u32 m0, %s, %d' % (s(sRING), (tl & 3) * 32768 + j * 1024), None))
            o.append(('buffer_load_dwordx4 %s, %s, %s offen%s lds' % (v(vSRC + j), s(S_W1, 4), s(sO2), PRM_S['wfl']), 't%d' % tl))
        return o
    def emit(x):
        if x[1]: V(x[0], x[1])
        elif callable(x[0]): A(x[0]())
        else: A(x[0])
    for x in dma(0): emit(x)
    A(vwait('i'))
    V('buffer_atomic_add v12, v11, %s, 0 offen' % s(S_DBG, 4), 'at')
    for x in dma(1): emit(x)
    A('v_and_b32 v1, 15, v0')
    A('v_lshrrev_b32 v2, 4, v0')
    A('v_xor_b32 v2, v2, v1')
    A('v_lshl_add_u32 v1, v1, 9, %s' % s(sRING))
    for k in range(4):
        A('v_xor_b32 v3, %d, v2' % (4 * k))
        A('v_lshl_add_u32 %s, v3, 4, v1' % v(vRD + k))
    A('s_cmp_lg_u32 %s, 0' % s(sTY))
    A('s_cbranch_scc1 L_w1_b2')
    A('s_mul_i32 %s, %s, %d' % (s(sT0), s(sWAVE), 16 * 528))
    A('s_add_u32 %s, %s, %d' % (s(sT0), s(sT0), R2))
    lexpr(A, v(vR2W), 'v0', [(5, 1, 528), (0, 5, 16)], s(sT0), 'v1')
    lexpr(A, v(vR2R), 'v0', [(0, 4, 528), (4, 2, 16)], R2, 'v1')
    A('s_mul_i32 %s, %s, %d' % (s(sT0), s(sH), WCU))
    A('s_lshl_b32 %s, %s, 12' % (s(sT1), s(sQ)))
    A('s_add_u32 %s, %s, %s' % (s(sT0), s(sT0), s(sT1)))
    lexpr(A, v(vDST), 'v0', [(0, 6, 16)], s(sT0), 'v1')
    for nt in range(1, 4): A('v_add_u32 %s, %d, %s' % (v(vDST + nt), nt * 1024, v(vDST)))
    A('s_mov_b32 %s, 28672' % s(sCS))
    A(vwait('w2'))
    levent(A, 1)
    for j in range(8): A('ds_write_b128 %s, %s offset:%d' % (v(vR2W), v(64 + 4 * j, 4), j * 1056))
    A('s_waitcnt lgkmcnt(0)')
    A('s_barrier')
    for nt in range(4):
        for ks in range(8):
            A('ds_read_b128 %s, %s offset:%d' % (u(W2F + (nt * 8 + ks) * 4, 4), v(vR2R), nt * 16 * 528 + ks * 64))
            if ks % 4 == 3: A('s_waitcnt lgkmcnt(8)')
    A('s_branch L_w1_c2')
    A.label('L_w1_b2')
    A('s_mul_i32 %s, %s, %d' % (s(sT0), s(sWAVE), 64 * 144))
    A('s_add_u32 %s, %s, %d' % (s(sT0), s(sT0), R2))
    lexpr(A, v(vR2W), 'v0', [(3, 3, 144), (0, 3, 8)], s(sT0), 'v1')
    lexpr(A, v(vR2R), 'v0', [(4, 2, 8 * 144), (2, 2, 144), (0, 2, 8)], R2, 'v1')
    A('s_mul_i32 %s, %s, %d' % (s(sT0), s(sQ), 2 * WCV))
    A('s_lshl_b32 %s, %s, 11' % (s(sT1), s(sH)))
    A('s_add_u32 %s, %s, %s' % (s(sT0), s(sT0), s(sT1)))
    A('s_add_u32 %s, %s, %d' % (s(sT0), s(sT0), WIMGV))
    lexpr(A, v(vDST), 'v0', [(0, 6, 16)], s(sT0), 'v1')
    for nt in range(1, 4): A('v_add_u32 %s, %d, %s' % (v(vDST + nt), (nt & 1) * WCV + (nt >> 1) * 1024, v(vDST)))
    A('s_mov_b32 %s, 32768' % s(sCS))
    A('s_mov_b32 %s, 0x05040100' % s(sT0))
    A('s_mov_b32 %s, 0x07060302' % s(sT1))
    A(vwait('w2'))
    levent(A, 1)
    for j in range(8):
        r, o = 64 + 4 * j, 96 + 4 * j
        A('v_perm_b32 %s, %s, %s, %s' % (v(o), v(r + 1), v(r), s(sT0)))
        A('v_perm_b32 %s, %s, %s, %s' % (v(o + 1), v(r + 3), v(r + 2), s(sT0)))
        A('v_perm_b32 %s, %s, %s, %s' % (v(o + 2), v(r + 1), v(r), s(sT1)))
        A('v_perm_b32 %s, %s, %s, %s' % (v(o + 3), v(r + 3), v(r + 2), s(sT1)))
        A('ds_write_b64 %s, %s offset:%d' % (v(vR2W), v(o, 2), j * 8 * 144))
        A('ds_write_b64 %s, %s offset:%d' % (v(vR2W), v(o + 2, 2), j * 8 * 144 + 64))
        if j == 4: A('s_waitcnt lgkmcnt(4)')
    A('s_waitcnt lgkmcnt(0)')
    A('s_barrier')
    for nt in range(4):
        for ks in range(8):
            for tt in range(2):
                A('ds_read_b64_tr_b16 %s, %s offset:%d' % (u(W2F + (nt * 8 + ks) * 4 + 2 * tt, 2), v(vR2R), (32 * ks + 4 * tt) * 144 + (nt >> 1) * 64 + (nt & 1) * 32))
            if ks % 2 == 1: A('s_waitcnt lgkmcnt(8)')
    A.label('L_w1_c2')
    for x in dma(2): emit(x)
    xst = ['buffer_store_dwordx4 v[32:35], v48, %s, %s offen sc1' % (s(S_WS, 4), s(sXGD + 1)),
           'buffer_store_dwordx4 v[36:39], v48, %s, %s offen offset:1024 sc1' % (s(S_WS, 4), s(sXGD + 1)),
           'buffer_store_dwordx4 v[40:43], v48, %s, %s offen sc1' % (s(S_WS, 4), s(sXGD)),
           'buffer_store_dwordx4 v[44:47], v48, %s, %s offen offset:1024 sc1' % (s(S_WS, 4), s(sXGD))]
    def reads(tl):
        o = [((lambda tl=tl: vwait('t%d' % tl)), None)]
        for ks in range(8):
            off = (tl & 3) * 32768 + (ks >> 2) * 256
            if off > 65535: reg, off = vRD + 36 + (ks & 3), off - 65536
            else: reg = vRD + (ks & 3)
            o.append(('ds_read_b128 %s, %s offset:%d' % (v(AFR[tl & 1] + 4 * ks, 4), v(reg), off), None))
        return o
    for k in range(4): A('v_add_u32 %s, 0x10000, %s' % (v(vRD + 36 + k), v(vRD + k)))
    def post(i):
        D = DD[i & 1]
        o = [('s_mul_i32 %s, %s, %s' % (s(sT3), s(96 + i), s(sCS)), None)]
        for nt in range(4):
            for T in range(2):
                d = D + (T * 4 + nt) * 4
                for r in range(4): o.append(('v_mul_f32 %s, %s, %s' % (v(d + r), s(sSC), v(d + r)), None))
                pc = PC + (i * 4 + nt) * 4 + 2 * T
                o.append(('v_cvt_pk_bf16_f32 %s, %s, %s' % (v(pc), v(d), v(d + 1)), None))
                o.append(('v_cvt_pk_bf16_f32 %s, %s, %s' % (v(pc + 1), v(d + 2), v(d + 3)), None))
            o.append(('buffer_store_dwordx4 %s, %s, %s, %s offen sc1' % (v(PC + (i * 4 + nt) * 4, 4), v(vDST + nt), s(S_WS, 4), s(sT3)), 'st%d' % i))
        return o
    levent(A, 2)
    for x in reads(0): emit(x)
    A('s_waitcnt lgkmcnt(0)')
    A('s_barrier')
    A('s_lshl_b32 %s, %s, 6' % (s(sT0), s(sRHO)))
    A('s_lshl_b32 %s, %s, 2' % (s(sT1), s(sWAVE)))
    A('s_add_u32 %s, %s, %s' % (s(sT0), s(sT0), s(sT1)))
    A('s_add_u32 %s, %s, %d' % (s(sT0), s(sT0), FLG_W1))
    lane0_addr(A, 'v14', s(sT0))
    q2 = []
    for tl in range(8):
        if tl == PRM['wxs']:
            A(vwait('xl'))
            for x in xst: V(x, 'xs')
        if tl == 6:
            A(vwait('xs'))
            A('s_barrier')
            A('v_mov_b32 v15, 1')
            A('v_and_b32 v13, 0xffffff7f, v11')
            V('buffer_atomic_add v15, v13, %s, 0 offen offset:%d' % (s(S_DBG, 4), (D_XG - D_INIT) * 4), 'at')
        if tl == PRM['wxl']:
            xg_load(A); vm.extend(['xl'] * 4)
        if tl == 6:
            for x in q2: emit(x)
            q2 = []
            A('s_cmp_ge_u32 %s, 2' % s(sWAVE))
            A('s_cbranch_scc0 L_w1_last')
            for x in post(2):
                if callable(x[0]): A(x[0]())
                else: A(x[0])
            A('s_branch L_w1_done')
            A.label('L_w1_last')
        A('s_waitcnt lgkmcnt(0)')
        if tl == 2: levent(A, 0)
        D = DD[(tl >> 1) & 1] + (tl & 1) * 16
        if PRM['wfast']:
            q1 = []
            for d_ in {0: [3], 2: [4], 3: [5], 4: [6], 5: [7]}.get(tl, []): q1 += dma(d_)
        else: q1 = (dma(tl + 3) if tl + 3 < 8 else [])
        qr = reads(tl + 1) if tl < 7 else []
        if tl >= 2 and tl % 2 == 0: q2 = post(tl // 2 - 1)
        if tl == 2 and PRM['wfast']:
            for x in q2: emit(x)
            q2 = []
        n = 0
        for ks in range(8):
            for nt in range(4):
                A('v_mfma_f32_16x16x32_bf16 %s, %s, %s, %s' % (v(D + 4 * nt, 4), v(AFR[tl & 1] + 4 * ks, 4), u(W2F + (nt * 8 + ks) * 4, 4), '0' if ks == 0 else v(D + 4 * nt, 4)))
                n += 1
                def pop(qq):
                    while qq:
                        x = qq.pop(0); emit(x)
                        if not callable(x[0]) and not x[0].startswith('s_'): break
                if n >= 3:
                    pop(q2); pop(q2)
                if n % PRM['wsp'] == 1: pop(q1)
                if n >= 16 and n % 2 == 0: pop(qr)
                if tl in (3, 5, 7) and n == (PRM['wfn0'] if (tl == 3 and PRM['wfast']) else PRM['wfn']):
                    A(vwait('st%d' % (tl // 2 - 1)))
                    if tl == 3: levent(A, 3)
                    A('v_mov_b32 v12, %d' % (tl // 2))
                    V('buffer_store_dword v12, v14, %s, 0 offen sc1' % s(S_WS, 4), 'fl')
        for x in q1 + qr: emit(x)
    for x in q2 + post(3): emit(x)
    A.label('L_w1_done')
    A('v_mov_b32 v9, 4')
    A('s_waitcnt vmcnt(0)')
    A('buffer_store_dword v9, v14, %s, 0 offen sc1' % s(S_WS, 4))
    event(A, 2)
    levent_flush(A, 4, 9)
    A('s_waitcnt lgkmcnt(0)')
    A('s_barrier')

def phase_w1b(A):
    PC = 192
    lexpr(A, 'v8', 'v0', [(0, 4, 912), (5, 1, 32), (4, 1, 8)], 0, 'v1')
    for i in range(4):
        if i == 3:
            A('s_cmp_ge_u32 %s, 2' % s(sWAVE))
            A('s_cbranch_scc1 L_w1b_s')
        A('s_lshl_b32 %s, %s, 6' % (s(sT0), s(96 + i)))
        for nt in range(4):
            A('s_add_u32 %s, %s, %d' % (s(sT1), s(sT0), nt * 16 * 912))
            A('v_add_u32 v9, %s, v8' % s(sT1))
            pc = PC + (i * 4 + nt) * 4
            A('ds_write2_b32 v9, %s, %s offset0:0 offset1:1' % (v(pc), v(pc + 2)))
            A('ds_write2_b32 v9, %s, %s offset0:4 offset1:5' % (v(pc + 1), v(pc + 3)))
        A('s_waitcnt lgkmcnt(4)')
    A.label('L_w1b_s')
    A('s_cmp_lg_u32 %s, 0' % s(sTY))
    A('s_cbranch_scc1 L_w1b_b')
    for nt in range(4):
        lexpr(A, v(12 + nt), 'v0', [(2, 2, 8 * 912), (0, 2, 912), (4, 2, 16)], (32 * (nt >> 1) + 4 * (nt & 1)) * 912, 'v1')
    A('s_mul_i32 %s, %s, 28672' % (s(sT0), s(sH)))
    A('s_lshl_b32 %s, %s, 11' % (s(sT1), s(sQ)))
    A('s_add_u32 %s, %s, %s' % (s(sT0), s(sT0), s(sT1)))
    lexpr(A, v(vST), 'v0', [(0, 6, 16)], s(sT0), 'v1')
    A('v_add_u32 %s, 1024, %s' % (v(vST + 1), v(vST)))
    A('v_add_u32 %s, 14336, %s' % (v(vST + 2), v(vST)))
    A('v_add_u32 %s, 15360, %s' % (v(vST + 3), v(vST)))
    A('s_mov_b32 %s, %d' % (s(sO3), YX_OFF))
    A('s_branch L_w1b_c')
    A.label('L_w1b_b')
    for nt in range(4):
        lexpr(A, v(12 + nt), 'v0', [(0, 4, 912), (4, 2, 16)], 16 * nt * 912, 'v1')
    A('s_mul_i32 %s, %s, 28672' % (s(sT0), s(sH)))
    A('s_lshl_b32 %s, %s, 12' % (s(sT1), s(sQ)))
    A('s_add_u32 %s, %s, %s' % (s(sT0), s(sT0), s(sT1)))
    lexpr(A, v(vST), 'v0', [(0, 6, 16)], s(sT0), 'v1')
    for nt in range(1, 4): A('v_add_u32 %s, %d, %s' % (v(vST + nt), (nt & 1) * 2048 + (nt >> 1) * 1024, v(vST)))
    A('s_mov_b32 %s, %d' % (s(sO3), U_OFF))
    A.label('L_w1b_c')
    A('s_waitcnt lgkmcnt(0)')
    wait_dbg(A, D_RDY, 1, 4)

def phase_w2(A, ty):
    tag = 'AB'[ty]
    D, PK = 16, 48
    vXG, vFL, vFV = 8, 9, 10
    def X(b, t, ks):
        r = 64 + b * 112 + (t * 14 + ks) * 4
        return u(r if r < 256 else r - 256 + 256 + 224, 4)
    A.label('L_w2' + tag)
    lexpr(A, v(vXG), 'v0', [(0, 6, 16)], 0, 'v1')
    A('s_lshl_b32 %s, %s, 2' % (s(sT0), s(sA)))
    A('s_add_u32 %s, %s, %s' % (s(sT0), s(sT0), s(sWAVE)))
    A('s_lshl_b32 %s, %s, 2' % (s(sT0), s(sT0)))
    A('s_add_u32 %s, %s, %d' % (s(sT0), s(sT0), FLG_W2 + ty * 1792))
    A('v_mov_b32 v1, %s' % s(sT0))
    A('v_mov_b32 v2, %d' % OOB)
    A('v_cmp_eq_u32 vcc, 0, v0')
    A('v_cndmask_b32 %s, v2, v1, vcc' % v(vFL))
    A('s_mul_i32 %s, %s, 28672' % (s(sO1), s(sWAVE)))
    A('s_add_u32 %s, %s, %d' % (s(sO1), s(sO1), XG_OFF))
    A('s_mul_i32 %s, %s, %d' % (s(sT0), s(sWAVE), 16 * 28672))
    A('s_add_u32 %s, %s, %s' % (s(sO3), s(sO3), s(sT0)))
    A('s_mov_b32 %s, 0' % s(sCNT))
    def loads(b):
        out = []
        for n in range(28):
            ks, t = n >> 1, n & 1
            off = t * 14336 + ks * 1024
            g = []
            if n % 2 == 0 or True:
                g.append('s_add_u32 %s, %s, %d' % (s(sT2), s(sO1), off & ~4095))
            g.append('buffer_load_dwordx4 %s, %s, %s, %s offen offset:%d sc1' % (X(b, t, ks), v(vXG), s(S_WS, 4), s(sT2), off & 4095))
            out.append(g)
        return out
    FK = PRM['w2f']
    drop = 'buffer_store_dword v1, v2, %s, 0 offen' % s(S_WS, 4)
    wf = ['ds_read_b128 %s, %s offset:%d' % (u(WF + (nt * 14 + ks) * 4, 4), v(12 + nt), ks * 64) for ks in range(14) for nt in range(4)]
    for n_, g in enumerate(loads(0)):
        if n_ == 2 * FK: A(drop)
        for x in g: A(x)
        A(wf[2 * n_]); A(wf[2 * n_ + 1])
        if n_ % 4 == 3: A('s_waitcnt lgkmcnt(6)')
    A('s_waitcnt lgkmcnt(0)')
    A('s_add_u32 %s, %s, %d' % (s(sO1), s(sO1), 4 * 28672))
    for _ in range(4): A(drop)
    LP = 'L_w2loop' + tag
    A.label(LP)
    for b in range(2):
        ld = loads(1 - b)
        issued = 0
        for ks in range(14):
            if ks == FK:
                A('s_waitcnt vmcnt(%d)' % issued)
                A('v_mov_b32 %s, %s' % (v(vFV), s(sCNT)))
                A('buffer_store_dword %s, %s, %s, 0 offen sc1' % (v(vFV), v(vFL), s(S_WS, 4)))
                issued += 1
            if ks < FK: A('s_waitcnt vmcnt(%d)' % min(63, 26 - 2 * ks + 1 + 4 + issued))
            for t in range(2):
                for nt in range(4):
                    d = v(D + (t * 4 + nt) * 4, 4)
                    w_, x_ = u(WF + (nt * 14 + ks) * 4, 4), X(b, t, ks)
                    a_, b_ = (w_, x_) if ty == 0 else (x_, w_)
                    A('v_mfma_f32_16x16x32_bf16 %s, %s, %s, %s' % (d, a_, b_, '0' if ks == 0 else d))
                    if nt == 1:
                        for x in ld.pop(0): A(x)
                        issued += 1
        A('s_add_u32 %s, %s, %d' % (s(sO1), s(sO1), 4 * 28672))
        for k in range(4):
            if ty == 0: t, aa = k >> 1, k & 1; d0, d1 = D + (t * 4 + 2 * aa) * 4, D + (t * 4 + 2 * aa + 1) * 4
            else: d0, d1 = D + k * 4, D + (4 + k) * 4
            A('v_cvt_pk_bf16_f32 %s, %s, %s' % (v(PK + 4 * k), v(d0), v(d0 + 1)))
            A('v_cvt_pk_bf16_f32 %s, %s, %s' % (v(PK + 4 * k + 1), v(d0 + 2), v(d0 + 3)))
            A('v_cvt_pk_bf16_f32 %s, %s, %s' % (v(PK + 4 * k + 2), v(d1), v(d1 + 1)))
            A('v_cvt_pk_bf16_f32 %s, %s, %s' % (v(PK + 4 * k + 3), v(d1 + 2), v(d1 + 3)))
            A('buffer_store_dwordx4 %s, %s, %s, %s offen sc1' % (v(PK + 4 * k, 4), v(vST + k), s(S_WS, 4), s(sO3)))
        A('s_add_u32 %s, %s, %d' % (s(sO3), s(sO3), 4 * 16 * 28672))
        A('s_add_u32 %s, %s, 1' % (s(sCNT), s(sCNT)))
    A('s_cmp_lt_u32 %s, 16' % s(sCNT))
    A('s_cbranch_scc1 %s' % LP)
    A('s_waitcnt vmcnt(0)')
    A('v_mov_b32 %s, 16' % v(vFV))
    A('buffer_store_dword %s, %s, %s, 0 offen sc1' % (v(vFV), v(vFL), s(S_WS, 4)))

def wait_flags(A, vaddr, soff, sval, sleep, tmp='v3', coarse=False):
    l = A.newlabel('L_wf')
    A.label(l)
    A('buffer_load_dword %s, %s, %s, %s offen sc1' % (tmp, vaddr, s(S_WS, 4), soff))
    A('s_waitcnt vmcnt(0)')
    A('v_cmp_gt_u32 vcc, %s, %s' % (sval, tmp))
    if coarse:
        fine = A.newlabel('L_wff')
        spin_check(A, l, ['s_cmp_ge_u32 %s, %d' % (s(sSEG), PRM['fine']), 's_cbranch_scc1 %s' % fine, 's_sleep %d' % PRM['zs'], fine + ':', 's_sleep 1'])
    else: spin_check(A, l, ['s_sleep %d' % sleep])

def load_hm(A, M, va, vb, so, mm):
    l = A.newlabel('L_hm'); l2 = A.newlabel('L_hm2'); l3 = A.newlabel('L_hm3')
    ld = ['buffer_load_dwordx4 %s, %s, %s, %s offen offset:%d sc1' % (v(M + 4 * ks, 4), va if ks < 8 else vb, s(S_WS, 4), s(so), (ks & 7) * 512) for ks in range(14)]
    A('s_sub_u32 %s, %s, %d' % (s(sT2), s(so), HM_STEP))
    A('s_cmp_ge_u32 %s, %d' % (s(sSEG), PRM['fine']))
    A('s_cselect_b32 %s, %s, %s' % (s(sT2), s(sT2), s(so)))
    A.label(l)
    A('buffer_load_dword v3, %s, %s, %s offen offset:2560 sc1' % (vb, s(S_WS, 4), s(sT2)))
    A('s_waitcnt vmcnt(0)')
    A('v_cmp_eq_u32 vcc, -1, v3')
    spin_check(A, l, ['s_sleep %d' % PRM['zs']])
    A.label(l2)
    for x in ld: A(x)
    A('s_waitcnt vmcnt(13)')
    A('v_cmp_eq_u32 vcc, -1, %s' % v(M))
    spin_check(A, l2, ['s_waitcnt vmcnt(0)'])
    for ks in range(14):
        A('s_waitcnt vmcnt(%d)' % (13 - ks))
        mm(ks)
        r = M + 4 * ks
        if ks == 0: A('v_max_u32 v3, %s, %s' % (v(r), v(r + 1)))
        else: A('v_max3_u32 v3, v3, %s, %s' % (v(r), v(r + 1)))
        A('v_max3_u32 v3, v3, %s, %s' % (v(r + 2), v(r + 3)))
    A('v_cmp_eq_u32 vcc, -1, v3')
    spin_check(A, l2)

def lane0_addr(A, dst, sreg):
    A('v_mov_b32 v1, %s' % sreg)
    A('v_mov_b32 v2, %d' % OOB)
    A('v_cmp_eq_u32 vcc, 0, v0')
    A('v_cndmask_b32 %s, v2, v1, vcc' % dst)

def phase_z(A):
    D, M = 16, 64
    vHF, vHM, vFL = 8, 9, 10
    lexpr(A, v(vHM), 'v0', [(4, 2, 128), (0, 3, 16)], 0, 'v1')
    A('v_add_u32 v11, 4096, %s' % v(vHM))
    A('s_lshl_b32 %s, %s, 5' % (s(sT0), s(sA)))
    A('s_add_u32 %s, %s, %s' % (s(sT0), s(sT0), s(sWAVE)))
    A('s_lshl_b32 %s, %s, 2' % (s(sT0), s(sT0)))
    A('s_add_u32 %s, %s, %d' % (s(sT0), s(sT0), FLG_Z))
    lane0_addr(A, v(vFL), s(sT0))
    A('s_lshr_b32 %s, %s, 2' % (s(sT0), s(sH)))
    A('s_mul_i32 %s, %s, 28672' % (s(sT0), s(sT0)))
    A('s_and_b32 %s, %s, 3' % (s(sT1), s(sH)))
    A('s_lshl_b32 %s, %s, 8' % (s(sT1), s(sT1)))
    A('s_add_u32 %s, %s, %s' % (s(sT0), s(sT0), s(sT1)))
    A('s_lshl_b32 %s, %s, 12' % (s(sT1), s(sQ)))
    A('s_add_u32 %s, %s, %s' % (s(sT0), s(sT0), s(sT1)))
    lexpr(A, 'v12', 'v0', [(0, 4, 16), (4, 1, 8)], s(sT0), 'v1')
    A('v_cmp_gt_u32 vcc, 32, v0')
    A('v_cndmask_b32 %s, v2, v12, vcc' % v(vST))
    A('s_mul_i32 %s, %s, 28672' % (s(sT0), s(sH)))
    A('s_lshl_b32 %s, %s, 12' % (s(sT1), s(sQ)))
    A('s_add_u32 %s, %s, %s' % (s(sT0), s(sT0), s(sT1)))
    A('s_add_u32 %s, %s, %d' % (s(sT0), s(sT0), U_OFF))
    lexpr(A, 'v13', 'v0', [(0, 5, 128)], s(sT0), 'v1')
    A('s_mov_b32 %s, %s' % (s(sSEG), s(sWAVE)))
    A('s_mov_b32 %s, 0' % s(sCNT))
    A.label('L_zloop')
    A('s_mul_i32 %s, %s, %d' % (s(sO1), s(sSEG), HM_STEP))
    A('s_add_u32 %s, %s, %d' % (s(sO1), s(sO1), HM_OFF))
    A('s_mul_i32 %s, %s, %d' % (s(sO2), s(sSEG), HZ_STEP))
    A('s_add_u32 %s, %s, %d' % (s(sO2), s(sO2), HZ_OFF))
    def mm(ks):
        for nt in range(4):
            d = v(D + 4 * nt, 4)
            A('v_mfma_f32_16x16x32_bf16 %s, %s, %s, %s' % (d, v(M + 4 * ks, 4), u(WF + (nt * 14 + ks) * 4, 4), '0' if ks == 0 else d))
    load_hm(A, M, v(vHM), 'v11', sO1, mm)
    for nt in range(4):
        d = D + 4 * nt
        A('v_cvt_pk_bf16_f32 %s, %s, %s' % (v(d), v(d), v(d + 1)))
        A('v_cvt_pk_bf16_f32 %s, %s, %s' % (v(d + 1), v(d + 2), v(d + 3)))
        A('buffer_store_dwordx2 %s, %s, %s, %s offen offset:%d sc1' % (v(d, 2), v(vST), s(S_WS, 4), s(sO2), (nt & 1) * 2048 + (nt >> 1) * 1024))
    A('s_add_u32 %s, %s, 1' % (s(sCNT), s(sCNT)))
    A('v_mov_b32 v3, %s' % s(sCNT))
    A('s_waitcnt vmcnt(0)')
    A('buffer_store_dword v3, %s, %s, 0 offen sc1' % (v(vFL), s(S_WS, 4)))
    if PRM['upd']:
        A('s_add_u32 %s, %s, %d' % (s(sT0), s(sSEG), PRM['upd']))
        A('s_min_u32 %s, %s, 63' % (s(sT0), s(sT0)))
        A('s_mul_i32 %s, %s, %d' % (s(sT0), s(sT0), 16 * 28672))
        A('buffer_load_dword v14, v13, %s, %s offen sc1' % (s(S_WS, 4), s(sT0)))
    A('s_add_u32 %s, %s, 4' % (s(sSEG), s(sSEG)))
    A('s_cmp_lt_u32 %s, 64' % s(sSEG))
    A('s_cbranch_scc1 L_zloop')

sK = 82
def post_dispatch(A):
    A('s_mov_b32 s101, 0')
    A('s_and_b32 %s, %s, 7' % (s(sK), s(sA)))
    A('s_lshr_b32 %s, %s, 3' % (s(sSEG), s(sA)))
    A('s_cmp_ge_u32 %s, 4' % s(sK))
    A('s_cbranch_scc1 L_s2')

def seg_count(A, dst):
    A('s_lshr_b32 %s, %s, 2' % (dst, s(sSEG)))
    A('s_add_u32 %s, %s, 1' % (dst, dst))
    A('s_and_b32 %s, %s, 3' % (s(sT1), s(sSEG)))
    A('s_lshl_b32 %s, %s, 2' % (s(sT1), s(sT1)))

def phase_s1(A):
    PSC = '' if PRM['ploc'] else ' sc1'
    XG_, YX_, HM_, D = 256, 256 + 112, 64, 16
    vL16, vYF, vHF, vHM, vHM2, vDL, vPX, vPM, vFL = 4, 5, 6, 7, 8, 9, 10, 11, 12
    T = 40
    sHD = sH
    A.label('L_s1')
    A('s_lshl_b32 %s, %s, 2' % (s(sHD), s(sK)))
    A('s_add_u32 %s, %s, %s' % (s(sHD), s(sHD), s(sWAVE)))
    lexpr(A, v(vL16), 'v0', [(0, 6, 16)], 0, 'v1')
    A('v_min_u32 v1, 6, v0')
    A('s_mul_i32 %s, %s, 7' % (s(sT0), s(sHD)))
    A('v_add_u32 v1, %s, v1' % s(sT0))
    A('v_lshlrev_b32 v1, 4, v1')
    A('v_add_u32 %s, %d, v1' % (v(vYF), FLG_W2))
    lexpr(A, v(vHM), 'v0', [(4, 2, 128), (0, 3, 16)], 0, 'v1')
    A('v_add_u32 %s, 4096, %s' % (v(vHM2), v(vHM)))
    lexpr(A, v(vDL), 'v0', [(2, 2, 8), (0, 2, 1)], 0, 'v1')
    A('v_lshrrev_b32 v1, 4, v0')
    A('v_lshlrev_b32 v1, 3, v1')
    A('v_sub_u32 %s, %s, v1' % (v(vDL), v(vDL)))
    A('s_lshl_b32 %s, %s, 11' % (s(sT0), s(sHD)))
    A('v_add_u32 %s, %s, %s' % (v(vPX), s(sT0), v(vL16)))
    A('s_lshl_b32 %s, %s, 11' % (s(sT0), s(sK)))
    A('s_lshl_b32 %s, %s, 8' % (s(sT1), s(sWAVE)))
    A('s_add_u32 %s, %s, %s' % (s(sT0), s(sT0), s(sT1)))
    A('s_add_u32 %s, %s, %d' % (s(sT0), s(sT0), 16 * 2048))
    lexpr(A, 'v13', 'v0', [(0, 4, 16), (4, 1, 8)], s(sT0), 'v1')
    A('v_mov_b32 v2, %d' % OOB)
    A('v_cmp_gt_u32 vcc, 32, v0')
    A('v_cndmask_b32 %s, v2, v13, vcc' % v(vPM))
    A('s_lshl_b32 %s, %s, 5' % (s(sT0), s(sA)))
    A('s_add_u32 %s, %s, %s' % (s(sT0), s(sT0), s(sWAVE)))
    A('s_lshl_b32 %s, %s, 2' % (s(sT0), s(sT0)))
    A('s_add_u32 %s, %s, %d' % (s(sT0), s(sT0), FLG_P))
    lane0_addr(A, v(vFL), s(sT0))
    A('v_mov_b32 v14, 0x%x' % f2u(-1.0e9 * 1.4426950408889634))
    A('v_mov_b32 v15, 0xff800000')
    A.label('L_s1loop')
    seg_count(A, s(sT0))
    wait_flags(A, v(vYF), s(sT1), s(sT0), 16)
    A('s_mul_i32 %s, %s, 28672' % (s(sO1), s(sSEG)))
    A('s_add_u32 %s, %s, %d' % (s(sO1), s(sO1), XG_OFF))
    A('s_lshl_b32 %s, %s, 4' % (s(sO2), s(sSEG)))
    A('s_add_u32 %s, %s, %s' % (s(sO2), s(sO2), s(sHD)))
    A('s_mul_i32 %s, %s, 28672' % (s(sO2), s(sO2)))
    A('s_add_u32 %s, %s, %d' % (s(sO2), s(sO2), YX_OFF))
    for ks in range(14):
        for base, so in ((XG_, sO1), (YX_, sO2)):
            for t in range(2):
                off = t * 14336 + ks * 1024
                A('s_add_u32 %s, %s, %d' % (s(sT2), s(so), off & ~4095))
                A('buffer_load_dwordx4 %s, %s, %s, %s offen offset:%d sc1' % (u(base + (t * 14 + ks) * 4, 4), v(vL16), s(S_WS, 4), s(sT2), off & 4095))
    def Dr(qt, t): return D + (qt * 3 + t) * 4
    for ks in range(14):
        A('s_waitcnt vmcnt(%d)' % (52 - 4 * ks))
        for qt in range(2):
            for t in range(2):
                d = v(Dr(qt, t), 4)
                A('v_mfma_f32_16x16x32_bf16 %s, %s, %s, %s' % (d, u(XG_ + (t * 14 + ks) * 4, 4), u(YX_ + (qt * 14 + ks) * 4, 4), '0' if ks == 0 else d))
    for qt in range(2):
        for t in range(2):
            for r in range(4):
                A('v_cmp_le_i32 vcc, %d, %s' % (4 * (t - qt) + r, v(vDL)))
                A('v_cndmask_b32 %s, v14, %s, vcc' % (v(Dr(qt, t) + r), v(Dr(qt, t) + r)))
        d = Dr(qt, 0)
        A('v_max3_f32 %s, %s, %s, %s' % (v(T + qt), v(d), v(d + 1), v(d + 2)))
        A('v_max3_f32 %s, %s, %s, %s' % (v(T + qt), v(T + qt), v(d + 3), v(d + 4)))
        A('v_max3_f32 %s, %s, %s, %s' % (v(T + qt), v(T + qt), v(d + 5), v(d + 6)))
        A('v_max_f32 %s, %s, %s' % (v(T + qt), v(T + qt), v(d + 7)))
    A('s_mul_i32 %s, %s, %d' % (s(sO1), s(sSEG), HM_STEP))
    A('s_add_u32 %s, %s, %d' % (s(sO1), s(sO1), HM_OFF))
    A('s_mul_i32 %s, %s, 40960' % (s(sO3), s(sSEG)))
    A('s_add_u32 %s, %s, %d' % (s(sO3), s(sO3), PP_OFF))
    def mm(ks):
        for qt in range(2):
            d = v(Dr(qt, 2), 4)
            A('v_mfma_f32_16x16x32_bf16 %s, %s, %s, %s' % (d, v(HM_ + 4 * ks, 4), u(YX_ + (qt * 14 + ks) * 4, 4), '0' if ks == 0 else d))
    load_hm(A, HM_, v(vHM), v(vHM2), sO1, mm)
    A('v_cmp_gt_u32 vcc, 32, v0')
    def xred(op):
        for sw in ('v_permlane16_swap_b32', 'v_permlane32_swap_b32'):
            for qt in range(2): A('v_mov_b32 %s, %s' % (v(T + 2 + qt), v(T + qt)))
            for qt in range(2): A('%s %s, %s' % (sw, v(T + qt), v(T + 2 + qt)))
            for qt in range(2): A('%s %s, %s, %s' % (op, v(T + qt), v(T + qt), v(T + 2 + qt)))
    for qt in range(2):
        d = Dr(qt, 2)
        for r in range(4): A('v_cndmask_b32 %s, v15, %s, vcc' % (v(d + r), v(d + r)))
        A('v_max3_f32 %s, %s, %s, %s' % (v(T + qt), v(T + qt), v(d), v(d + 1)))
        A('v_max3_f32 %s, %s, %s, %s' % (v(T + qt), v(T + qt), v(d + 2), v(d + 3)))
    xred('v_max_f32')
    for qt in range(2):
        d = Dr(qt, 0)
        for i in range(12): A('v_sub_f32 %s, %s, %s' % (v(d + i), v(d + i), v(T + qt)))
        for i in range(12): A('v_exp_f32 %s, %s' % (v(d + i), v(d + i)))
    for qt in range(2):
        d = Dr(qt, 0)
        A('v_add_f32 %s, %s, %s' % (v(T + qt), v(d), v(d + 1)))
        for i in range(2, 12): A('v_add_f32 %s, %s, %s' % (v(T + qt), v(T + qt), v(d + i)))
    xred('v_add_f32')
    for qt in range(2): A('v_rcp_f32 %s, %s' % (v(T + qt), v(T + qt)))
    for qt in range(2):
        d = Dr(qt, 0); o = T + 4 + 8 * qt
        for i in range(12): A('v_mul_f32 %s, %s, %s' % (v(d + i), v(d + i), v(T + qt)))
        for i in range(6): A('v_cvt_pk_bf16_f32 %s, %s, %s' % (v(o + i), v(d + 2 * i), v(d + 2 * i + 1)))
        A('buffer_store_dwordx4 %s, %s, %s, %s offen offset:%d%s' % (v(o, 4), v(vPX), s(S_WS, 4), s(sO3), qt * 1024, PSC))
        A('buffer_store_dwordx2 %s, %s, %s, %s offen offset:%d%s' % (v(o + 4, 2), v(vPM), s(S_WS, 4), s(sO3), qt * 1024, PSC))
    A('s_add_u32 s101, s101, 1')
    A('v_mov_b32 v3, s101')
    A('s_waitcnt vmcnt(0)')
    A('buffer_store_dword v3, %s, %s, 0 offen%s' % (v(vFL), s(S_WS, 4), PSC))
    A('s_add_u32 %s, %s, 14' % (s(sSEG), s(sSEG)))
    A('s_cmp_lt_u32 %s, 64' % s(sSEG))
    A('s_cbranch_scc1 L_s1loop')

def phase_s2(A):
    U_, Z_, P_, D = 256, 64, 128, 16
    vV, vGF, vPF, vP, vO, vO2 = 4, 5, 6, 7, 8, 9
    A.label('L_s2')
    A('s_sub_u32 %s, %s, 4' % (s(sK), s(sK)))
    A('s_lshl_b32 %s, %s, 1' % (s(sT3), s(sK)))
    A('s_lshr_b32 %s, %s, 1' % (s(sT0), s(sWAVE)))
    A('s_add_u32 %s, %s, %s' % (s(sT3), s(sT3), s(sT0)))
    A('s_cmp_ge_u32 %s, 7' % s(sT3))
    A('s_cbranch_scc1 L_exit')
    A('s_lshl_b32 %s, %s, 12' % (s(sT0), s(sT3)))
    lexpr(A, v(vV), 'v0', [(0, 6, 16)], s(sT0), 'v1')
    A('s_lshl_b32 %s, %s, 4' % (s(sT0), s(sT3)))
    lexpr(A, v(vGF), 'v0', [(0, 4, 112)], s(sT0), 'v1')
    A('s_andn2_b32 %s, %s, 7' % (s(sT0), s(sA)))
    A('s_lshl_b32 %s, %s, 7' % (s(sT0), s(sT0)))
    A('s_add_u32 %s, %s, %d' % (s(sT0), s(sT0), FLG_P))
    lexpr(A, v(vPF), 'v0', [(2, 2, 128), (0, 2, 4)], s(sT0), 'v1')
    A('s_and_b32 %s, %s, 1' % (s(sT4), s(sWAVE)))
    A('s_lshl_b32 %s, %s, 10' % (s(sT0), s(sT4)))
    lexpr(A, v(vP), 'v0', [(0, 6, 16)], s(sT0), 'v1')
    A('s_mul_i32 %s, %s, %d' % (s(sT0), s(sT4), 4 * 1792))
    A('s_lshl_b32 %s, %s, 7' % (s(sT1), s(sT3)))
    A('s_add_u32 %s, %s, %s' % (s(sT0), s(sT0), s(sT1)))
    A('s_add_u32 %s, %s, 896' % (s(sT0), s(sT0)))
    lexpr(A, v(vO), 'v0', [(2, 2, 8 * 1792), (0, 2, 1792), (4, 2, 16)], s(sT0), 'v1')
    A.label('L_s2loop')
    seg_count(A, s(sCNT))
    A('s_add_u32 %s, %s, %d' % (s(sO3), s(sT1), FLG_Z))
    A('s_add_u32 %s, %s, %d' % (s(sT1), s(sT1), FLG_W2 + 1792))
    wait_flags(A, v(vGF), s(sT1), s(sCNT), 16)
    A('s_mul_i32 %s, %s, %d' % (s(sO1), s(sSEG), 16 * 28672))
    A('s_add_u32 %s, %s, %d' % (s(sO1), s(sO1), U_OFF))
    for c in range(16):
        for tl in range(4):
            A('buffer_load_dwordx4 %s, %s, %s, %s offen offset:%d sc1' % (u(U_ + (c * 4 + tl) * 4, 4), v(vV), s(S_WS, 4), s(sO1), tl * 1024))
        A('s_add_u32 %s, %s, 28672' % (s(sO1), s(sO1)))
        if c == 11: A('s_waitcnt vmcnt(32)')
    A('s_mul_i32 %s, %s, %d' % (s(sT2), s(sSEG), HM_STEP))
    A('s_add_u32 %s, %s, %d' % (s(sT2), s(sT2), HM_OFF))
    A('v_mov_b32 v10, 0')
    lp = A.newlabel('L_s2p'); A.label(lp)
    A('buffer_load_dword v3, v10, %s, %s offen sc1' % (s(S_WS, 4), s(sT2)))
    A('s_waitcnt vmcnt(0)')
    A('v_cmp_eq_u32 vcc, -1, v3')
    spin_check(A, lp, ['s_sleep %d' % PRM['zs']])
    A('s_add_u32 s101, s101, 1')
    A('v_lshl_add_u32 v10, %s, 3, %s' % (v(vGF), s(sO3)))
    A('v_and_b32 v1, 16, v0')
    A('v_cmp_eq_u32 vcc, 0, v1')
    A('v_cndmask_b32 v10, %s, v10, vcc' % v(vPF))
    A('v_mov_b32 v11, %s' % s(sCNT))
    A('v_mov_b32 v1, s101')
    A('v_cndmask_b32 v11, v1, v11, vcc')
    A('s_mul_i32 %s, %s, %d' % (s(sO1), s(sSEG), HZ_STEP))
    A('s_add_u32 %s, %s, %d' % (s(sO1), s(sO1), HZ_OFF))
    A('s_mul_i32 %s, %s, 40960' % (s(sO2), s(sSEG)))
    A('s_add_u32 %s, %s, %d' % (s(sO2), s(sO2), PP_OFF))
    wait_flags(A, 'v10', '0', 'v11', 1, coarse=True)
    for c in range(20):
        A('buffer_load_dwordx4 %s, %s, %s, %s offen offset:%d sc1' % (v(P_ + 4 * c, 4), v(vP), s(S_WS, 4), s(sO2), (c & 1) * 2048))
        if c & 1: A('s_add_u32 %s, %s, 4096' % (s(sO2), s(sO2)))
    for c in range(4):
        for tl in range(4):
            A('buffer_load_dwordx4 %s, %s, %s, %s offen offset:%d sc1' % (v(Z_ + (c * 4 + tl) * 4, 4), v(vV), s(S_WS, 4), s(sO1), tl * 1024))
        A('s_add_u32 %s, %s, 28672' % (s(sO1), s(sO1)))
    for c in range(20):
        A('s_waitcnt vmcnt(%d)' % (35 - c if c < 16 else 12 - 4 * (c - 16)))
        for tl in range(4):
            d = v(D + 4 * tl, 4)
            a_ = u(U_ + (c * 4 + tl) * 4, 4) if c < 16 else v(Z_ + ((c - 16) * 4 + tl) * 4, 4)
            A('v_mfma_f32_16x16x32_bf16 %s, %s, %s, %s' % (d, a_, v(P_ + 4 * c, 4), '0' if c == 0 else d))
    A('s_mul_i32 %s, %s, %d' % (s(sO1), s(sSEG), 32 * 1792))
    for b in range(2):
        e, o, pk = D + 8 * b, D + 8 * b + 4, 32 + 4 * b
        for r in range(4): A('v_cvt_pk_bf16_f32 %s, %s, %s' % (v(pk + r), v(e + r), v(o + r)))
        A('buffer_store_dwordx4 %s, %s, %s, %s offen offset:%d' % (v(pk, 4), v(vO), s(S_OUT, 4), s(sO1), 64 * b))
    A('s_add_u32 %s, %s, 14' % (s(sSEG), s(sSEG)))
    A('s_cmp_lt_u32 %s, 64' % s(sSEG))
    A('s_cbranch_scc1 L_s2loop')

LOG2E = 1.4426950408889634
def phase_a1(A):
    ST = 208
    def WQ(x, tl, ks):
        i = ((x * 2 + tl) * 14 + ks) * 4
        return a(i, 4) if i < 256 else v(176 + i - 256, 4)
    def WQh(x, tl, ks, t):
        i = ((x * 2 + tl) * 14 + ks) * 4 + 2 * t
        return a(i, 2) if i < 256 else v(176 + i - 256, 2)
    X_, D, KV, PQ = 120, 16, 64, 80
    T = 104
    vG, vW, vR, vR2, vX = 4, 5, 6, 7, 8
    sBLK, sI = sSEG, sCNT
    A('s_barrier')
    lexpr(A, v(vG), 'v0', [(2, 4, 2688), (0, 2, 16)], 0, 'v1')
    A('s_mul_i32 %s, %s, %d' % (s(sO1), s(sWAVE), 112 * 2688))
    A('s_mul_i32 %s, %s, 56' % (s(sT0), s(sH)))
    A('s_add_u32 %s, %s, %s' % (s(sO1), s(sO1), s(sT0)))
    for j in range(21):
        A('buffer_load_dwordx4 %s, %s, %s, %s offen offset:%d' % (v(16 + 4 * j, 4), v(vG), s(S_AW, 4), s(sO1), (j % 3) * 896))
        if j % 3 == 2: A('s_add_u32 %s, %s, %d' % (s(sO1), s(sO1), 16 * 2688))
    A('s_mul_i32 %s, %s, %d' % (s(sT0), s(sWAVE), 112 * ST))
    lexpr(A, v(vW), 'v0', [(2, 4, ST), (0, 2, 16)], s(sT0), 'v1')
    for j in range(21):
        A('s_waitcnt vmcnt(%d)' % (20 - j))
        A('ds_write_b128 %s, %s offset:%d' % (v(vW), v(16 + 4 * j, 4), (j // 3) * 16 * ST + (j % 3) * 64))
        if j % 6 == 5: A('s_waitcnt lgkmcnt(6)')
    lexpr(A, v(vR), 'v0', [(4, 2, 8 * ST), (2, 2, ST), (0, 2, 16)], 0, 'v1')
    A('v_add_u32 %s, %d, %s' % (v(vR2), 7 * 32 * ST, v(vR)))
    A('s_waitcnt lgkmcnt(0)')
    A('s_barrier')
    n = 0
    for x in range(3):
        for tl in range(2):
            for ks in range(14):
                for t in range(2):
                    A('ds_read_b64_tr_b16 %s, %s offset:%d' % (WQh(x, tl, ks, t), v(vR if ks < 7 else vR2), (32 * (ks % 7) + 4 * t) * ST + x * 64 + tl * 8))
                    n += 1
                    if n % 6 == 0: A('s_waitcnt lgkmcnt(6)')
    lexpr(A, v(vX), 'v0', [(0, 4, 896), (4, 2, 16)], 0, 'v1')
    A('v_add_u32 v9, %d, %s' % (16 * 896, v(vX)))
    for i in range(16): A('v_mov_b32 %s, 0' % v(KV + i))
    A('s_mov_b32 %s, 0x%x' % (s(sSC), f2u(LOG2E)))
    A('s_mov_b32 %s, 0x%x' % (s(sO3), f2u(1e-6)))
    A('v_and_b32 v1, 15, v0')
    A('v_cmp_le_u32 s[96:97], 12, v1')
    A('v_cmp_eq_u32 s[98:99], 12, v1')
    A('v_cmp_le_u32 s[100:101], 48, v0')
    A('s_lshl_b32 %s, %s, 2' % (s(sBLK), s(sQ)))
    A('s_add_u32 %s, %s, %s' % (s(sBLK), s(sBLK), s(sWAVE)))
    A('s_waitcnt lgkmcnt(0)')
    def phi(r):
        A('v_mul_f32 %s, %s, %s' % (v(T), s(sSC), v(r)))
        A('v_exp_f32 %s, %s' % (v(T), v(T)))
        A('v_cmp_lt_f32 vcc, 0, %s' % v(r))
        A('v_add_f32 %s, 1.0, %s' % (v(r), v(r)))
        A('v_cndmask_b32 %s, %s, %s, vcc' % (v(r), v(T), v(r)))
        A('v_add_f32 %s, %s, %s' % (v(r), s(sO3), v(r)))
    def Dk(x, t, tl): return D + (((x - 1) * 2 + tl) * 2 + t) * 4
    def Dq(t, tl): return D + 32 + (t * 2 + tl) * 4
    A('s_mov_b32 %s, 0' % s(sI))
    A.label('L_a1loop')
    A('s_mul_i32 %s, %s, %d' % (s(sO1), s(sBLK), 32 * 896))
    for hf in range(2):
        for k7 in range(7):
            for t in range(2):
                A('buffer_load_dwordx4 %s, %s, %s, %s offen offset:%d' % (v(X_ + (k7 * 2 + t) * 4, 4), v(vX) if t == 0 else 'v9', s(S_AX, 4), s(sO1), (7 * hf + k7) * 64))
        for k7 in range(7):
            ks = 7 * hf + k7
            A('s_waitcnt vmcnt(%d)' % (12 - 2 * k7))
            for t in range(2):
                xf = v(X_ + (k7 * 2 + t) * 4, 4)
                for tl in range(2):
                    for x in (1, 2):
                        d = v(Dk(x, t, tl), 4)
                        A('v_mfma_f32_16x16x32_bf16 %s, %s, %s, %s' % (d, xf, WQ(x, tl, ks), '0' if ks == 0 else d))
                    d = v(Dq(t, tl), 4)
                    A('v_mfma_f32_16x16x32_bf16 %s, %s, %s, %s' % (d, WQ(0, tl, ks), xf, '0' if ks == 0 else d))
        A('s_nop 7')
    for tl in range(2):
        b = Dk(1, 0, tl)
        for i in range(8):
            phi(b + i)
            if tl == 1: A('v_cndmask_b32 %s, %s, 0, s[96:97]' % (v(b + i), v(b + i)))
        for i in range(4): A('v_cvt_pk_bf16_f32 %s, %s, %s' % (v(b + i), v(b + 2 * i), v(b + 2 * i + 1)))
        b = Dk(2, 0, tl)
        if tl == 1:
            for i in range(8):
                A('v_cndmask_b32 %s, %s, 0, s[96:97]' % (v(b + i), v(b + i)))
                A('v_cndmask_b32 %s, %s, 1.0, s[98:99]' % (v(b + i), v(b + i)))
        for i in range(4): A('v_cvt_pk_bf16_f32 %s, %s, %s' % (v(b + i), v(b + 2 * i), v(b + 2 * i + 1)))
    for dt in range(2):
        for et in range(2):
            d = v(KV + (dt * 2 + et) * 4, 4)
            A('v_mfma_f32_16x16x32_bf16 %s, %s, %s, %s' % (d, v(Dk(1, 0, dt), 4), v(Dk(2, 0, et), 4), d))
    for i in range(15, -1, -1): A('v_mov_b32 %s, %s' % (v(PQ + 8 + i), v(PQ + i)))
    for t in range(2):
        b = Dq(t, 0)
        for i in range(8):
            phi(b + i)
            if i >= 4: A('v_cndmask_b32 %s, %s, 0, s[100:101]' % (v(b + i), v(b + i)))
        for i in range(4): A('v_cvt_pk_bf16_f32 %s, %s, %s' % (v(PQ + 4 * t + i), v(b + 2 * i), v(b + 2 * i + 1)))
    A('s_add_u32 %s, %s, 1' % (s(sI), s(sI)))
    A('s_add_u32 %s, %s, 28' % (s(sBLK), s(sBLK)))
    A('s_cmp_lt_u32 %s, 64' % s(sBLK))
    A('s_cbranch_scc1 L_a1loop')
    LK = 98304
    A('s_lshl_b32 %s, %s, 12' % (s(sT0), s(sWAVE)))
    A('s_add_u32 %s, %s, %d' % (s(sT0), s(sT0), LK))
    lexpr(A, v(vW), 'v0', [(0, 6, 16)], s(sT0), 'v1')
    for j in range(4): A('ds_write_b128 %s, %s offset:%d' % (v(vW), v(KV + 4 * j, 4), j * 1024))
    A('s_lshl_b32 %s, %s, 10' % (s(sT0), s(sWAVE)))
    lexpr(A, v(vR), 'v0', [(0, 6, 16)], s(sT0), 'v1')
    A('v_add_u32 %s, %d, %s' % (v(vR2), LK, v(vR)))
    A('s_waitcnt lgkmcnt(0)')
    A('s_barrier')
    for j in range(4): A('ds_read_b128 %s, %s offset:%d' % (v(D + 4 * j, 4), v(vR2), j * 4096))
    A('s_waitcnt lgkmcnt(0)')
    for r in range(4):
        A('v_add_f32 %s, %s, %s' % (v(D + r), v(D + r), v(D + 4 + r)))
        A('v_add_f32 %s, %s, %s' % (v(D + 8 + r), v(D + 8 + r), v(D + 12 + r)))
        A('v_add_f32 %s, %s, %s' % (v(D + r), v(D + r), v(D + 8 + r)))
    A('s_lshl_b32 %s, %s, 12' % (s(sT0), s(sA)))
    A('s_add_u32 %s, %s, %d' % (s(sT0), s(sT0), KVP_OFF))
    A('buffer_store_dwordx4 %s, %s, %s, %s offen sc1' % (v(D, 4), v(vR), s(S_WS, 4), s(sT0)))
    A('s_lshl_b32 %s, %s, 6' % (s(sT0), s(sA)))
    A('s_lshl_b32 %s, %s, 2' % (s(sT1), s(sWAVE)))
    A('s_add_u32 %s, %s, %s' % (s(sT0), s(sT0), s(sT1)))
    A('s_add_u32 %s, %s, %d' % (s(sT0), s(sT0), FLG_KV))
    lane0_addr(A, 'v10', s(sT0))
    A('v_mov_b32 v3, 1')
    A('s_waitcnt vmcnt(0)')
    A('buffer_store_dword v3, v10, %s, 0 offen sc1' % s(S_WS, 4))
    A('v_lshrrev_b32 v1, 2, v0')
    A('v_min_u32 v1, 6, v1')
    A('v_lshlrev_b32 v1, 6, v1')
    A('v_and_b32 v2, 3, v0')
    A('v_lshl_add_u32 v10, v2, 2, v1')
    A('s_mul_i32 %s, %s, %d' % (s(sT0), s(sH), 7 * 64))
    A('s_add_u32 %s, %s, %d' % (s(sT0), s(sT0), FLG_KV))
    wait_flags(A, 'v10', s(sT0), '1', 8)
    lexpr(A, v(vG), 'v0', [(0, 6, 16)], 0, 'v1')
    lexpr(A, v(vW), 'v0', [(4, 2, 256)], 12 * 16, 'v1')
    A('s_mul_i32 %s, %s, %d' % (s(sO1), s(sH), 7 * 4096))
    A('s_add_u32 %s, %s, %d' % (s(sO1), s(sO1), KVP_OFF))
    GB = 104
    def gr(q): return (GB + 24 * q) if q < 6 else D
    for q in range(7):
        for j in range(4):
            A('buffer_load_dwordx4 %s, %s, %s, %s offen offset:%d sc1' % (v(gr(q) + 4 * j, 4), v(vG), s(S_WS, 4), s(sO1), j * 1024))
        for dt in range(2):
            A('buffer_load_dwordx4 %s, %s, %s, %s offen offset:%d sc1' % (v(gr(q) + 16 + 4 * dt, 4), v(vW), s(S_WS, 4), s(sO1), (dt * 2 + 1) * 1024))
        A('s_add_u32 %s, %s, 4096' % (s(sO1), s(sO1)))
    A('s_waitcnt vmcnt(0)')
    for q in range(6):
        for i in range(24): A('v_add_f32 %s, %s, %s' % (v(D + i), v(D + i), v(gr(q) + i)))
    for et in range(2):
        for dt in range(2):
            b = D + (dt * 2 + et) * 4
            A('v_cvt_pk_bf16_f32 %s, %s, %s' % (v(KV + 4 * et + 2 * dt), v(b), v(b + 1)))
            A('v_cvt_pk_bf16_f32 %s, %s, %s' % (v(KV + 4 * et + 2 * dt + 1), v(b + 2), v(b + 3)))
    for i in range(4): A('v_cvt_pk_bf16_f32 %s, %s, %s' % (v(KV + 8 + i), v(D + 16 + 2 * i), v(D + 17 + 2 * i)))
    A('s_lshl_b32 %s, %s, 10' % (s(sT0), s(sH)))
    lexpr(A, v(vR), 'v0', [(0, 6, 16)], s(sT0), 'v1')
    A.label('L_a1o')
    A('s_sub_u32 %s, %s, 28' % (s(sBLK), s(sBLK)))
    A('s_lshl_b32 %s, %s, 15' % (s(sO1), s(sBLK)))
    A('s_add_u32 %s, %s, %d' % (s(sO1), s(sO1), OI_OFF))
    A('s_add_u32 %s, %s, 16384' % (s(sO2), s(sO1)))
    for t in range(2):
        b = D + 12 * t
        for j in range(3):
            A('v_mfma_f32_16x16x32_bf16 %s, %s, %s, 0' % (v(b + 4 * j, 4), v(KV + 4 * j, 4), v(PQ + 4 * t, 4)))
    for t in range(2):
        b = D + 12 * t; o = D + 24 + 4 * t
        A('v_add_f32 %s, %s, %s' % (v(b + 8), s(sO3), v(b + 8)))
        A('v_rcp_f32 %s, %s' % (v(b + 8), v(b + 8)))
        for i in range(8):
            A('v_mul_f32 %s, %s, %s' % (v(b + i), v(b + i), v(b + 8)))
            if i >= 4: A('v_cndmask_b32 %s, %s, 0, s[100:101]' % (v(b + i), v(b + i)))
        for i in range(4): A('v_cvt_pk_bf16_f32 %s, %s, %s' % (v(o + i), v(b + 2 * i), v(b + 2 * i + 1)))
        A('buffer_store_dwordx4 %s, %s, %s, %s offen sc1' % (v(o, 4), v(vR), s(S_WS, 4), s(sO1 + t)))
    for i in range(16): A('v_mov_b32 %s, %s' % (v(PQ + i), v(PQ + 8 + i)))
    A('s_sub_u32 %s, %s, 1' % (s(sI), s(sI)))
    A('s_cmp_lg_u32 %s, 0' % s(sI))
    A('s_cbranch_scc1 L_a1o')
    A('s_lshl_b32 %s, %s, 2' % (s(sT0), s(sA)))
    A('s_add_u32 %s, %s, %s' % (s(sT0), s(sT0), s(sWAVE)))
    A('s_lshl_b32 %s, %s, 2' % (s(sT0), s(sT0)))
    A('s_add_u32 %s, %s, %d' % (s(sT0), s(sT0), FLG_O))
    lane0_addr(A, 'v10', s(sT0))
    A('v_mov_b32 v3, 1')
    A('s_waitcnt vmcnt(0)')
    A('buffer_store_dword v3, v10, %s, 0 offen sc1' % s(S_WS, 4))

def phase_a2(A):
    ST = 144
    O_, D = 64, 16
    vG, vW, vR, vR2, vO = 4, 5, 6, 7, 8
    A('s_barrier')
    lexpr(A, v(vG), 'v0', [(3, 3, 896), (0, 3, 16)], 0, 'v1')
    A('s_mul_i32 %s, %s, %d' % (s(sO1), s(sWAVE), 112 * 896))
    A('s_lshl_b32 %s, %s, 7' % (s(sT0), s(sQ)))
    A('s_add_u32 %s, %s, %s' % (s(sO1), s(sO1), s(sT0)))
    for j in range(15):
        A('buffer_load_dwordx4 %s, %s, %s, %s offen' % (v(64 + 4 * j, 4), v(vG), s(S_AO, 4), s(sO1)))
        A('s_add_u32 %s, %s, %d' % (s(sO1), s(sO1), 8 * 896))
    A('s_mul_i32 %s, %s, %d' % (s(sT0), s(sWAVE), 112 * ST))
    lexpr(A, v(vW), 'v0', [(3, 3, ST), (0, 3, 16)], s(sT0), 'v1')
    for j in range(15):
        A('s_waitcnt vmcnt(%d)' % (14 - j))
        A('ds_write_b128 %s, %s offset:%d' % (v(vW), v(64 + 4 * j, 4), j * 8 * ST))
        if j % 6 == 5: A('s_waitcnt lgkmcnt(6)')
    lexpr(A, v(vR), 'v0', [(4, 2, 8 * ST), (2, 2, ST), (0, 2, 16)], 0, 'v1')
    A('s_waitcnt lgkmcnt(0)')
    A('s_barrier')
    n = 0
    for tl in range(4):
        for hh in range(16):
            for t in range(2):
                A('ds_read_b64_tr_b16 %s, %s offset:%d' % (a((tl * 16 + hh) * 4 + 2 * t, 2), v(vR), (28 * hh + 4 * t) * ST + (tl >> 1) * 64 + (tl & 1) * 8))
                n += 1
                if n % 6 == 0: A('s_waitcnt lgkmcnt(6)')
    A('s_lshl_b32 %s, %s, 2' % (s(sSEG), s(sH)))
    A('s_add_u32 %s, %s, %s' % (s(sSEG), s(sSEG), s(sWAVE)))
    A('s_mov_b32 %s, %s' % (s(sT0), s(sSEG)))
    for _ in range(2):
        A('s_sub_u32 %s, %s, 28' % (s(sT1), s(sT0)))
        A('s_cmp_ge_u32 %s, 28' % s(sT0))
        A('s_cselect_b32 %s, %s, %s' % (s(sT0), s(sT1), s(sT0)))
    A('s_lshl_b32 %s, %s, 2' % (s(sT0), s(sT0)))
    A('s_add_u32 %s, %s, %d' % (s(sT0), s(sT0), FLG_O))
    lexpr(A, 'v10', 'v0', [(0, 4, 7 * 16)], 0, 'v1')
    wait_flags(A, 'v10', s(sT0), '1', 8)
    lexpr(A, v(vG), 'v0', [(0, 6, 16)], 0, 'v1')
    A('s_lshl_b32 %s, %s, 15' % (s(sO1), s(sSEG)))
    A('s_add_u32 %s, %s, %d' % (s(sO1), s(sO1), OI_OFF))
    for i in range(32):
        A('buffer_load_dwordx4 %s, %s, %s, %s offen offset:%d sc1' % (v(O_ + 4 * i, 4), v(vG), s(S_WS, 4), s(sO1), (i & 3) * 1024))
        if i & 3 == 3: A('s_add_u32 %s, %s, 4096' % (s(sO1), s(sO1)))
    A('s_lshl_b32 %s, %s, 7' % (s(sT0), s(sQ)))
    lexpr(A, v(vO), 'v0', [(0, 4, 1792), (4, 2, 16)], s(sT0), 'v1')
    A('s_mul_i32 %s, %s, %d' % (s(sO1), s(sSEG), 32 * 1792))
    A('s_add_u32 %s, %s, %d' % (s(sO2), s(sO1), 16 * 1792))
    A('s_waitcnt lgkmcnt(0)')
    for t in range(2):
        for hh in range(16):
            A('s_waitcnt vmcnt(%d)' % (31 - (t * 16 + hh)))
            for tl in range(4):
                d = v(D + (t * 4 + tl) * 4, 4)
                A('v_mfma_f32_16x16x32_bf16 %s, %s, %s, %s' % (d, a((tl * 16 + hh) * 4, 4), v(O_ + (t * 16 + hh) * 4, 4), '0' if hh == 0 else d))
    for t in range(2):
        for aa in range(2):
            b = D + (t * 4 + 2 * aa) * 4; o = 48 + (t * 2 + aa) * 4
            for i in range(4): A('v_cvt_pk_bf16_f32 %s, %s, %s' % (v(o + i), v(b + 2 * i), v(b + 2 * i + 1)))
            A('buffer_store_dwordx4 %s, %s, %s, %s offen offset:%d' % (v(o, 4), v(vO), s(S_OUT, 4), s(sO1 + t), aa * 64))
```

```python
from common import *

sSLOT, sSLOTP, sSLOTN, sUOK = sMEMRD, sPWR, sMEMWR, sHZ
vIDX = 60
vK = 61
vT = 68
vLANE = 255
MF = 32
SACC = 4
AF0 = 0
vYW, vTRL, vB, vX, vPST, vPSM, HV, HA = 70, 71, 72, 73, 74, 75, 71, 77
vBIG = 200
vSW = 78
SD = 80
XB = 92
AF1 = 116
L_XS = 32768
vL16, vVW, vVR, vMST, vLW, VHV, VHA, vHM_, vHP_, vHIST = 70, 71, 72, 73, 74, 75, 76, 77, 78, 79
VR = 80
vUS = 69
ZB = 84
UB = 92
LB = 124
L_VB = 114688
L_WL = 32768

class Role:
    pass
SC = Role(); SC.nt = 7
VA = Role(); VA.nt = 8; VA.accf = lambda r: 4 * r
def sc_w(r, k):
    t = r * 7 + k
    return (256 + t * 8) if t < 32 else (120 + (t - 32) * 8)
def tile_pos(w, r):
    if r < 4: return r, w
    e = 3 * (r - 4) + (w - 1)
    return 4 + e // 4, e % 4
def tau(w, r):
    c, ga = tile_pos(w, r); return 7 * ga + c
SC4 = Role(); SC4.nt = 4; SC4.w = sc_w
SC6 = Role(); SC6.nt = 6; SC6.w = sc_w; SC6.accf = lambda r: SACC + 4 * r; SC6.land = {}
SC8 = Role(); SC8.nt = 8; SC8.accf = lambda r: (SACC + 4 * r) if r < 7 else 0
SC8.land = {(7, 5): MF, (7, 6): SACC}
SC8.w = lambda r, k: sc_w(r, k) if r < 7 else (80 + 8 * k if k < 5 else None)
XS2 = 0x10000
L_SWL = 65536
VLDS = [(r, 6) for r in range(8)] + [(2, 4), (5, 4)]
VREG = [(r, k) for r in range(8) for k in range(7) if (r, k) not in VLDS]
def va_w(r, k):
    if (r, k) in VLDS: return None
    t = VREG.index((r, k))
    return (256 + t * 8) if t < 32 else (144 + (t - 32) * 8)
VA.w = va_w

def smf(d, aa, bb, k32=False):
    return 'v_smfmac_f32_16x16x%d_bf16 %s, %s, %s, %s' % (32 if k32 else 64, d, aa, bb, v(vIDX))

sTMB = 28
sSTB = 92
def stamp(A, idx):
    if not G.stamps: return
    A('s_memtime %s' % s(sTMB + 2 * idx, 2))
    if idx == 0 and G.stamps == 1: A('s_memrealtime %s' % s(sTMB + 2 * 10, 2))
def stamp_acc(A, order):
    A('s_waitcnt lgkmcnt(0)')
    l = A.newlabel('L_sa')
    A('s_cmp_lt_u32 %s, 10' % s(sSTEP))
    A('s_cbranch_scc1 %s' % l)
    prev = 3
    for i, k in enumerate(order):
        A('s_sub_u32 s2, %s, %s' % (s(sTMB + 2 * k), s(prev)))
        A('s_add_u32 %s, %s, s2' % (s(50 + i), s(50 + i)))
        prev = sTMB + 2 * k
    A.label(l)
    A('s_mov_b32 s3, %s' % s(sTMB + 2 * order[-1]))
def stamp_acc_out(A):
    if G.stamps != 2: return
    A('v_mbcnt_lo_u32_b32 v2, -1, 0')
    A('v_lshlrev_b32 v2, 2, v2')
    for i in range(10): A('v_writelane_b32 v1, %s, %d' % (s(50 + i), i))
    A('s_mov_b64 exec, 0xffff')
    A('buffer_store_dword v1, v2, %s, %s offen' % (s(S_WS, 4), s(sSTB)))
    A('s_mov_b64 exec, -1')
def stamp_flush(A, n, order=None):
    if not G.stamps: return
    if G.stamps == 2:
        stamp_acc(A, order); return
    A('s_waitcnt lgkmcnt(0)')
    A('s_lshl_b32 %s, %s, 6' % (s(sT5), s(sSTEP)))
    A('s_add_u32 %s, %s, %s' % (s(sT5), s(sT5), s(sSTB)))
    A('v_mbcnt_lo_u32_b32 %s, -1, 0' % v(vT + 1))
    A('v_lshlrev_b32 %s, 2, %s' % (v(vT + 1), v(vT + 1)))
    for i in range(n):
        A('v_writelane_b32 %s, %s, %d' % (v(vT), s(sTMB + 2 * i), i))
    A('v_writelane_b32 %s, %s, 11' % (v(vT), s(sSPIN)))
    A('s_mov_b64 exec, 0xffff')
    A('buffer_store_dword %s, %s, %s, %s offen' % (v(vT), v(vT + 1), s(S_WS, 4), s(sT5)))
    A('s_mov_b64 exec, -1')
def stamp_setup(A):
    if not G.stamps: return
    A('s_lshl_b32 %s, %s, 2' % (s(sT0), s(sROLE)))
    A('s_add_u32 %s, %s, %s' % (s(sT0), s(sT0), s(sWAVE)))
    A('s_lshl_b32 %s, %s, 12' % (s(sT0), s(sT0)))
    A('s_add_u32 %s, %s, %d' % (s(sSTB), s(sT0), STAMPS))
    for i in range(10): A('s_mov_b32 %s, 0' % s(50 + i))

def hint_wait(A, soff, sval, pw, delay, nent, areg=None, solo=False, primed=False):
    l = A.newlabel('L_hint'); e = A.newlabel('L_hint_done')
    D = PRM['hd']
    if not solo:
        A('s_cmp_lg_u32 %s, %d' % (s(sWAVE), pw))
        A('s_cbranch_scc1 %s' % e)
    if areg is None:
        areg = vT + 1
        A('v_mbcnt_lo_u32_b32 %s, -1, 0' % v(vT + 1))
        A('v_mbcnt_hi_u32_b32 %s, -1, %s' % (v(vT + 1), v(vT + 1)))
        A('v_min_u32 %s, %d, %s' % (v(vT + 1), nent - 1, v(vT + 1)))
        A('v_lshlrev_b32 %s, 2, %s' % (v(vT + 1), v(vT + 1)))
    ld = 'buffer_load_dword %s, %s, %s, %s offen sc1' % (v(vT), v(areg), s(S_WS, 4), s(soff))
    if PRM['hv0']: A('s_waitcnt vmcnt(0)')
    for i in range(0 if primed else D - 1):
        A(ld); A('s_nop %d' % PRM['hn'])
    A.label(l)
    A(ld)
    A('s_waitcnt vmcnt(%d)' % (D - 1))
    A('v_cmp_gt_u32 vcc, %s, %s' % (s(sval), v(vT)))
    spin_check(A, l)
    for i in range(delay): A('s_nop 3')
    if solo: return
    A.label(e)
    if primed: A('s_waitcnt vmcnt(2) lgkmcnt(0)')
    A('s_barrier')

def hint_send(A, t0, t1):
    A('buffer_store_dword %s, %s, %s, %s offen' % (v(t0), v(t1), s(S_WS, 4), s(sHWR)))
def hint_setup(A, t0, t1, allw):
    nrep = PRM['nrep']
    A('v_lshlrev_b32 v1, 8, %s' % v(vLANE))
    A('v_mov_b32 v2, %d' % OOB)
    A('s_cmp_eq_u32 %s, %d' % (s(sWAVE), 0 if allw else 3))
    A('s_cselect_b32 %s, %d, 0' % (s(sT0), nrep))
    A('v_cmp_gt_u32 vcc, %s, %s' % (s(sT0), v(vLANE)))
    A('v_cndmask_b32 %s, v2, v1, vcc' % v(t1))
    A('v_mov_b32 %s, %d' % (v(t0), 1 if allw else 0))
    hint_send(A, t0, t1)

def dbg_arrive(A, idx):
    A('s_waitcnt vmcnt(0) lgkmcnt(0)')
    A('s_barrier')
    l = A.newlabel('L_gb')
    A('s_cmp_lg_u32 %s, 0' % s(sWAVE))
    A('s_cbranch_scc1 %s' % l)
    A('v_mov_b32 v1, %d' % (idx * 4))
    A('v_mov_b32 v2, 1')
    A('s_mov_b64 exec, 1')
    A('buffer_atomic_add v2, v1, %s, 0 offen' % s(S_DBG, 4))
    A('s_mov_b64 exec, -1')
    A.label(l)

def group_wait(A):
    l = A.newlabel('L_gw')
    A('v_mov_b32 v2, %d' % (D_GRP * 4))
    A.label(l)
    A('buffer_load_dword %s, v2, %s, 0 offen sc1' % (v(vT + 1), s(S_DBG, 4)))
    A('s_waitcnt vmcnt(0)')
    A('v_cmp_gt_u32 vcc, 32, %s' % v(vT + 1))
    spin_check(A, l, ['s_sleep 8'])

def wait_init(A, idx=D_INIT, lane=None):
    l = A.newlabel('L_wi')
    lexpr(A, 'v2', lane or v(vLANE), [(0, 2, 64)], idx * 4, 'v3')
    A.label(l)
    A('buffer_load_dword v3, v2, %s, 0 offen sc1' % s(S_DBG, 4))
    A('s_waitcnt vmcnt(0)')
    A('v_cmp_gt_u32 vcc, 56, v3')
    spin_check(A, l, ['s_sleep 16'])

def check4(A, r, lbl, pre):
    t0 = v(vT)
    A('v_max3_u32 %s, %s, %s, %s' % (t0, v(r), v(r + 1), v(r + 2)))
    A('v_max_u32 %s, %s, %s' % (t0, t0, v(r + 3)))
    A('v_cmp_eq_u32 vcc, -1, %s' % t0)
    spin_check(A, lbl, pre)

sROT = 87
def rot(A, k):
    A('s_add_u32 %s, %s, %d' % (s(sT1), s(sT0), k))
    A('s_sub_u32 %s, %s, 7' % (s(sT2), s(sT1)))
    A('s_cmp_ge_u32 %s, 7' % s(sT1))
    A('s_cselect_b32 %s, %s, %s' % (s(sT1), s(sT2), s(sT1)))

def rec_start(A):
    A('v_mov_b32 %s, v0' % v(vLANE))
    A('s_mov_b32 %s, %d' % (s(sSPIN), SPIN_MAX))
    if PRM['xw']:
        A('s_lshl_b32 %s, %s, 2' % (s(sT0), s(sROLE)))
        A('s_add_u32 %s, %s, %s' % (s(sT0), s(sT0), s(sWAVE)))
        A('s_mul_i32 %s, %s, 14336' % (s(sT0), s(sT0)))
        A('s_add_u32 %s, %s, 6144' % (s(sT1), s(sT0)))
        A('v_lshlrev_b32 v1, 7, v0')
        for j in range(2): A('buffer_load_dword v250, v1, %s, %s offen nt' % (s(S_BX, 4), s(sT0 + j)))
    A('s_and_b32 %s, %s, %d' % (s(sT0), s(sROLE), PRM['nrep'] - 1))
    A('s_lshl_b32 %s, %s, 8' % (s(sHMRD), s(sT0)))
    A('s_add_u32 %s, %s, %d' % (s(sHPRD), s(sHMRD), HINT_P))
    A('s_add_u32 %s, %s, %d' % (s(sHMRD), s(sHMRD), HINT_M))
    A('v_and_b32 v1, 2, v0')
    A('v_cmp_eq_u32 vcc, 0, v1')
    A('v_mov_b32 v2, 0xeeeeeeee')
    A('v_mov_b32 v3, 0x44444444')
    A('v_cndmask_b32 %s, v2, v3, vcc' % v(vIDX))
    A('v_lshlrev_b32 v1, 4, v0')
    A('s_sub_u32 %s, %s, 16' % (s(sT1), s(sROLE)))
    A('s_lshr_b32 %s, %s, 1' % (s(sT1), s(sT1)))
    A('s_cmp_lt_u32 %s, 16' % s(sROLE))
    A('s_cselect_b32 %s, 0, %s' % (s(sT1), s(sT1)))
    assert PRM['wrot'] in (0, 2)
    if PRM['wrot'] == 0: A('s_mov_b32 %s, 0' % s(sT1))
    A('s_lshl_b32 %s, %s, 1' % (s(sT0), s(sWAVE)))
    A('s_add_u32 %s, %s, %s' % (s(sT0), s(sT0), s(sT1)))
    rot(A, 0)
    A('s_mov_b32 %s, %s' % (s(sROT), s(sT1)))
    A('s_mov_b32 %s, %s' % (s(sT0), s(sT1)))
    for k in range(7):
        rot(A, k)
        A('s_lshl_b32 %s, %s, 10' % (s(sT1), s(sT1)))
        A('v_add_u32 %s, %s, v1' % (v(vK + k), s(sT1)))
    stamp_setup(A)

def load_weights(A, R, cstride, early=None):
    tag = 'S' if R is SC else 'V'
    WL = ['sc1', '', 'nt', 'sc1 nt', 'sc0 sc1'][PRM['wl']]
    A('s_mul_i32 %s, %s, %d' % (s(sT0), s(sWAVE), 0 if R is SC else R.nt * 1024))
    if not G.dev_nowait:
        A('v_mov_b32 %s, v8' % v(vT))
        wait_init(A)
        A('v_mov_b32 v3, %s' % v(vT))
    lexpr(A, 'v1', v(vLANE), [(0, 6, 16)], s(sT0), 'v2')
    A('v_add_u32 v2, 4096, v1')
    SB_ = 28
    A('s_mov_b32 %s, %s' % (s(sT0), '0' if R is SC else s(sROT)))
    for k in range(7):
        rot(A, k)
        A('s_mul_i32 %s, %s, %d' % (s(sT1), s(sT1), 2 * cstride))
        A('s_add_u32 %s, %s, %s' % (s(SB_ + 2 * k), s(sT1), s(sT3)))
        A('s_add_u32 %s, %s, %d' % (s(SB_ + 2 * k + 1), s(SB_ + 2 * k), cstride))
    A('s_mov_b32 %s, %d' % (s(sT0), FLG_W1))
    pl = 'buffer_load_dword %s, v3, %s, %s offen sc1' % (v(vT), s(S_WS, 4), s(sT0))
    for w in range(1, 4):
        A('s_cmp_eq_u32 %s, %d' % (s(sWAVE), w))
        A('s_cbranch_scc1 L_lw%s%d' % (tag, w))
    for w in range(4):
        A.label('L_lw%s%d' % (tag, w))
        st = [[], [], [], []]
        RW = R if R is VA else (SC4 if w == 0 else SC8)
        for k in range(7):
            for hi in range(2):
                for r in range(RW.nt):
                    if R is SC: c = (2 * k + hi - PRM['wrot'] * (tau(w, r) >> 2)) % 14
                    else: c = (2 * ((k + 2 * w) % 7) + hi) % 14
                    st[c >> 2].append((r, k, hi))
        n = 0; since = None
        for i in range(4):
            if not G.dev_nowait:
                l = A.newlabel('L_lwp')
                if since is None: A(pl); since = 0
                A('s_waitcnt vmcnt(%d)' % since)
                A.label(l)
                A('v_cmp_gt_u32 vcc, %d, %s' % (i + 1, v(vT)))
                spin_check(A, l, ['s_sleep %d' % PRM['lws'], pl, 's_waitcnt vmcnt(0)'])
                if i == 0: event(A, 4, 'v59', v(vT + 1))
            for j, (r, k, hi) in enumerate(st[i]):
                if j == len(st[i]) // 2 and i < 3 and not G.dev_nowait: A(pl); since = 0
                wv = RW.w(r, k)
                if wv is None:
                    slot_ = (2 * VLDS.index((r, k)) + hi) if R is VA else (2 * (k - 5) + hi)
                    base_ = (L_WL + w * 20480) if R is VA else (L_SWL + w * 4096)
                    A('s_add_u32 %s, %s, %d' % (s(sT1), s(SB_ + 2 * k + hi), (tau(w, r) if R is SC else r) * 1024))
                    A('s_mov_b32 m0, %d' % (base_ + slot_ * 1024))
                    A('buffer_load_dwordx4 v1, %s, %s offen sc1 lds' % (s(S_WS, 4), s(sT1)))
                    if since is not None: since += 1
                    n += 1
                    continue
                dst = u(wv + 4 * hi, 4)
                if R is SC:
                    A('s_add_u32 %s, %s, %d' % (s(sT1), s(SB_ + 2 * k + hi), tau(w, r) * 1024))
                    A('buffer_load_dwordx4 %s, v1, %s, %s offen %s' % (dst, s(S_WS, 4), s(sT1), WL))
                else:
                    A('buffer_load_dwordx4 %s, %s, %s, %s offen offset:%d %s' % (dst, 'v1' if r < 4 else 'v2', s(S_WS, 4), s(SB_ + 2 * k + hi), (r & 3) * 1024, WL))
                if since is not None: since += 1
                n += 1
                if G.dev_nowait and n % 16 == 0: A('s_waitcnt vmcnt(40)')
        if w < 3: A('s_branch L_lw%sE' % tag)
    A.label('L_lw%sE' % tag)
    if early: early()
    A('s_waitcnt vmcnt(0)')
def ldstmp(i): return (4 + 8 * i) if i < 7 else (UB + 8 * (i - 7))

def zero_regs(b, n): return ['v_mov_b32 %s, 0' % v(b + i) for i in range(n)]

def lds_younger(A, dst):
    n = 0
    for x in reversed(A.ins):
        if x.kind == 'label': return 0
        if x.kind == 'ds':
            if x.text.startswith('ds_read_b128 ' + dst): return n
            n += 1
    return 0

def main_phase(A, R, pw, delay, post, vm, every, extra, epi, pre_ds=0):
    NT = R.nt
    hint_wait(A, sHMRD, sSTEP1, pw, delay, 22, vHM_ if R is VA else None)
    stamp(A, 1)
    ld = ['buffer_load_dwordx4 %s, %s, %s, %s offen sc1' % (v(MF + 4 * k, 4), v(vK + k), s(S_WS, 4), s(sSLOT)) for k in range(2)]
    A(ld[0])
    if PRM['f0b']: A('s_barrier')
    A(ld[1])
    for x in post: A(x)
    nst = len([x for x in post if x.startswith('buffer_')])
    A('s_waitcnt vmcnt(%d)' % (nst + 1))
    l0 = A.newlabel('L_pm0'); A.label(l0)
    check4(A, MF, l0, [ld[0], 's_waitcnt vmcnt(0)'])
    stamp(A, 2)
    A('ds_write_b128 %s, %s offset:%d' % (v(vK), v(MF, 4), L_MEM))
    vm = list(vm); cnt = [0]
    def vmtick():
        cnt[0] += 1
        if vm and cnt[0] % every == 0:
            for x in vm.pop(0): A(x)
    k1, k2 = PRM['k1'], min(PRM['k2'], 2 * NT - 3)
    if R is SC8: k1, k2 = PRM['k1l'], PRM['k2l']
    kseq = [(r, 0) for r in range(NT)] + [(r, 1) for r in range(NT)]
    rd = [2, 3, 4, 5, 6]
    for i, (r, k) in enumerate(kseq):
        A(smf(v(R.accf(r), 4), v(MF + 4 * k, 4), u(R.w(r, k), 8)))
        if i == k1 - 1:
            A('s_waitcnt vmcnt(%d)' % nst)
            l1 = A.newlabel('L_pm1'); A.label(l1)
            check4(A, MF + 4, l1, [ld[1], 's_waitcnt vmcnt(0)'])
            A('ds_write_b128 %s, %s offset:%d' % (v(vK + 1), v(MF + 4, 4), L_MEM))
        elif i >= k1 and i < k2 - 1: vmtick()
        if i == k2 - 1:
            A('s_waitcnt lgkmcnt(0)')
            A('s_barrier')
            stamp(A, 3)
        if i >= k2 - 1:
            for _ in range(2 if len(kseq) - i > 2 else 5):
                if rd:
                    kk = rd.pop(0); A('ds_read_b128 %s, %s offset:%d' % (v(MF + 4 * kk, 4), v(vK + kk), L_MEM))
    assert not rd
    q = []
    i = 0
    for r in range(NT):
        for k in range(2, 7):
            if r == 0: A('s_waitcnt lgkmcnt(%d)' % (6 - k))
            w = R.w(r, k)
            if w is None and R is VA:
                iv = VORD.index((r, k))
                w = LB + 8 * (iv & 1)
                A('s_waitcnt lgkmcnt(%d)' % lds_younger(A, 'v[%d:%d]' % (w + 4, w + 7)))
            elif w is None: w = R.land[(r, k)]
            A(smf(v(R.accf(r), 4), v(MF + 4 * k, 4), u(w, 8)))
            if k == 3 and r > 0: q += epi(r - 1)
            if q: A(q.pop(0))
            for x in extra.get(i, []): A(x)
            vmtick()
            i += 1
    stamp(A, 4)
    for x in q: A(x)
    assert not vm, len(vm)
VORD = sorted(VLDS)

sXL = 86
def sc_epi(w, r):
    c = (SACC + 4 * r) if r < 7 else 0
    ch, ga = tile_pos(w, r)
    return ['v_add_f32 %s, %s, %s' % (v(c), v(c), v(c + 2)),
            'v_add_f32 %s, %s, %s' % (v(c + 1), v(c + 1), v(c + 3)),
            'v_cvt_pk_bf16_f32 %s, %s, %s' % (v(c), v(c), v(c + 1)),
            'ds_write_b32 %s, %s offset:%d' % (v(vYW), v(c), ga * 1792 + ch * 256)]

def score_role(A):
    A.label('L_score')
    L = v(vLANE)
    HV_, vHMS = 76, 61
    lexpr(A, v(vYW), L, [(2, 2, 64), (0, 1, 32), (4, 2, 8), (1, 1, 4)], L_YT, 'v1')
    lexpr(A, v(vTRL), L, [(4, 2, 1792), (0, 4, 8)], L_YT, 'v1')
    lexpr(A, v(vB), L, [(5, 1, 1792), (4, 1, 32), (0, 2, 64), (3, 1, 16)], L_MEM, 'v1')
    lexpr(A, v(vX), L, [(0, 6, 16)], 0, 'v1')
    A('s_lshl_b32 %s, %s, 12' % (s(sT0), s(sWAVE)))
    A('s_add_u32 %s, %s, %d' % (s(sT0), s(sT0), L_SWL))
    A('v_add_u32 %s, %s, %s' % (v(vSW), s(sT0), v(vX)))
    gterm = [(5, 1, 64), (4, 1, 16)]
    A('s_lshl_b32 %s, %s, 9' % (s(sT0), s(sROLE)))
    lexpr(A, v(vPST), L, [(3, 1, 256), (2, 1, 32), (0, 2, 4)] + gterm, s(sT0), 'v1')
    A('s_lshr_b32 %s, %s, 2' % (s(sT0), s(sROLE)))
    A('s_lshl_b32 %s, %s, 9' % (s(sT0), s(sT0)))
    A('s_and_b32 %s, %s, 1' % (s(sT1), s(sROLE)))
    A('s_lshl_b32 %s, %s, 5' % (s(sT1), s(sT1)))
    A('s_add_u32 %s, %s, %s' % (s(sT0), s(sT0), s(sT1)))
    A('s_and_b32 %s, %s, 2' % (s(sT1), s(sROLE)))
    A('s_lshl_b32 %s, %s, 1' % (s(sT1), s(sT1)))
    A('s_add_u32 %s, %s, %s' % (s(sT0), s(sT0), s(sT1)))
    A('s_add_u32 %s, %s, 8192' % (s(sT0), s(sT0)))
    lexpr(A, 'v3', L, [(1, 1, 256), (0, 1, 8), (2, 1, 128)] + gterm, s(sT0), 'v1')
    A('v_and_b32 v4, 8, %s' % L)
    A('v_mov_b32 v2, %d' % OOB)
    A('v_cmp_eq_u32 vcc, 0, v4')
    A('v_cndmask_b32 %s, v2, v3, vcc' % v(vPSM))
    A('s_lshl_b32 %s, %s, 2' % (s(sHWR), s(sROLE)))
    A('s_add_u32 %s, %s, %d' % (s(sHWR), s(sHWR), HINT_P))
    hint_setup(A, HV_, HA, False)
    A('v_min_u32 v1, 17, %s' % L)
    A('v_lshlrev_b32 %s, 2, v1' % v(vHMS))
    dbg_arrive(A, D_GRP)
    A('v_lshrrev_b32 v8, 2, %s' % L)
    A('v_min_u32 v8, 6, v8')
    A('s_cmp_eq_u32 %s, 0' % s(sWAVE))
    A('s_cselect_b32 %s, 0, 6' % s(sT1))
    A('v_min_u32 v8, %s, v8' % s(sT1))
    A('s_mul_i32 %s, %s, 7' % (s(sT0), s(sROLE)))
    A('v_add_u32 v8, %s, v8' % s(sT0))
    A('v_lshlrev_b32 v8, 6, v8')
    A('v_and_b32 v9, 3, %s' % L)
    A('v_lshl_add_u32 v8, v9, 2, v8')
    event(A, 3)
    A('s_mul_i32 %s, %s, %d' % (s(sT3), s(sROLE), WCU))
    load_weights(A, SC, 28672, lambda: group_wait(A))
    event(A, 5)
    event(A, 6, v(vT), v(vT + 1))
    event_spin(A, 13, v(vT), v(vT + 1))
    A('s_mov_b32 %s, 0' % s(sSTEP))
    A('s_mov_b32 %s, %d' % (s(sSLOT), MB_OFF))
    A('s_mov_b32 %s, %d' % (s(sXOFF), XF_OFF))
    AC = SACC; sSL2 = sXL
    ND = 3
    def mld(k): return 'buffer_load_dwordx4 %s, %s, %s, %s offen offset:%d sc1' % (v(MF + 4 * k, 4), v(vX), s(S_WS, 4), s(sSLOT if k < 4 else sSL2), (k & 3) * 1024)
    def top():
        A('s_add_u32 %s, %s, %d' % (s(sSLOTP), s(sSLOT), MB_PO))
        A('s_add_u32 %s, %s, 4096' % (s(sSL2), s(sSLOT)))
        A('s_add_u32 %s, %s, 1' % (s(sSTEP1), s(sSTEP)))
    def bottom(lp, order):
        stamp_flush(A, 11, order)
        A('s_add_u32 %s, %s, %d' % (s(sSLOT), s(sSLOT), MB_STEP))
        A('s_add_u32 %s, %s, 1' % (s(sSTEP), s(sSTEP)))
        A('s_cmp_lt_u32 %s, 63' % s(sSTEP))
        A('s_cbranch_scc1 %s' % lp)
        A('s_branch L_sc_end')
    def chk(k, first):
        r = MF + 4 * k; t0 = v(vT)
        if first: return ['v_max3_u32 %s, %s, %s, %s' % (t0, v(r), v(r + 1), v(r + 2)), 'v_max_u32 %s, %s, %s' % (t0, t0, v(r + 3))]
        return ['v_max3_u32 %s, %s, %s, %s' % (t0, t0, v(r), v(r + 1)), 'v_max3_u32 %s, %s, %s, %s' % (t0, t0, v(r + 2), v(r + 3))]
    for w in range(1, 4):
        A('s_cmp_eq_u32 %s, %d' % (s(sWAVE), w))
        A('s_cbranch_scc1 L_score_loop%d' % w)
    XR = lambda c, T: 120 + (2 * c + T) * 8
    MR = lambda c: (256 + 224 + 8 * c) if c < 4 else (232 + 8 * (c - 4))
    AR = [92 + 4 * c for c in range(7)]
    vBG = 62
    A('v_mov_b32 %s, 0x5f800000' % v(vBG))
    vMK = 64
    A('v_and_b32 v1, 64, %s' % v(vX))
    A('v_cmp_eq_u32 vcc, 0, v1')
    A('v_cndmask_b32 %s, 0, 1.0, vcc' % v(vMK))
    A('v_cndmask_b32 %s, 1.0, 0, vcc' % v(vMK + 1))
    A.label('L_score_loop0')
    zz = zero_regs(AC, 16) + zero_regs(SD, 12)
    for i in range(28):
        if i % 4 == 0: A('s_add_u32 %s, %s, %d' % (s(sXPF), s(sXOFF), i * 1024))
        A('buffer_load_dwordx4 %s, %s, %s, %s offen offset:%d sc1' % (v(120 + 4 * i, 4), v(vX), s(S_WS, 4), s(sXPF), (i & 3) * 1024))
        A(zz[i])
    A('s_add_u32 %s, %s, 32768' % (s(sXOFF), s(sXOFF)))
    top()
    stamp(A, 0)
    A('s_barrier')
    stamp(A, 1)
    A('s_barrier')
    if PRM['o2']: A('s_barrier')
    def mdma(k):
        return (['s_mov_b32 m0, %d' % (L_MEM + (4096 if k >= 4 else 0))] if k in (0, ND, 4) else []) + \
               ['buffer_load_dwordx4 %s, %s, %s offen offset:%d sc1 lds' % (v(vX), s(S_WS, 4), s(sSLOT if k < 4 else sSL2), (k & 3) * 1024)]
    X1 = [mld(k) for k in range(ND, 7)] + [x for k in range(ND, 7) for x in mdma(k)]
    X2 = [mld(k) for k in range(ND)] + [x for k in range(ND) for x in mdma(k)]
    if PRM['o3']:
        for x in X1[:7 - ND]: A(x)
        A('s_barrier')
        A('s_nop 7')
        for x in X1[7 - ND:]: A(x)
    else:
        for x in X1: A(x)
        A('s_barrier')
    for x in X2: A(x)
    A.label('L_s0_x')
    NX = 7 - ND
    seq = [(r, k) for k in range(ND, 7) for r in range(4)]
    for i, (r, k) in enumerate(seq):
        if r == 0: A('s_waitcnt vmcnt(%d)' % (2 * ND + 2 * NX - 1 - (k - ND)))
        if i == 0: stamp(A, 2)
        A(smf(v(AC + 4 * r, 4), v(MF + 4 * k, 4), u(sc_w(r, k), 8)))
        if i < 2 * NX:
            kk = ND + i // 2
            if i % 2 == 0 and kk > k: A('s_waitcnt vmcnt(%d)' % (2 * ND + 2 * NX - 1 - (kk - ND)))
            A(chk(kk, kk == ND)[i % 2])
        if i == 2 * NX:
            A('v_cmp_eq_u32 vcc, -1, %s' % v(vT))
            spin_check(A, 'L_s0_x', X1 + zero_regs(AC, 16) + ['s_waitcnt vmcnt(0)'])
        if i == PRM['s0b']:
            A('s_waitcnt vmcnt(%d)' % (2 * ND))
            A('s_barrier')
            stamp(A, 3)
    A('s_waitcnt vmcnt(%d)' % ND)
    for j in range(2 * ND): A(chk(j // 2, j < 2)[j % 2])
    A('v_cmp_eq_u32 vcc, -1, %s' % v(vT))
    A('s_cbranch_vccnz L_s0_y')
    A.label('L_s0_z')
    q = []
    for r in range(4):
        for k in range(ND):
            A(smf(v(AC + 4 * r, 4), v(MF + 4 * k, 4), u(sc_w(r, k), 8)))
            if k == 1 and r > 0: q += sc_epi(0, r - 1)
            if q: A(q.pop(0))
            if q and q[0].startswith('ds_'): A(q.pop(0))
    A('s_waitcnt vmcnt(0)')
    def mread(c): return ['ds_read_b128 %s, %s offset:%d' % (u(MR(c) + 4 * hi, 4), v(vB), hi * 3584 + c * 256) for hi in range(2)]
    def aread(c): return ['ds_read_b64_tr_b16 %s, %s offset:%d' % (v(AR[c] + 2 * t_, 2), v(vTRL), c * 256 + t_ * 128) for t_ in range(2)]
    ds = []
    def D(xs, tag):
        for x in xs:
            A(x)
            if x.startswith('ds_'): ds.append(tag)
    def wait_for(tags):
        last = max([i for i, tg in enumerate(ds) if tg in tags], default=-1)
        if last > wait_for.done:
            A('s_waitcnt lgkmcnt(%d)' % min(14, len(ds) - 1 - last)); wait_for.done = last
    wait_for.done = -1
    D(q, 'w'); D(mread(0), 'M0'); D(mread(1), 'M1'); D(sc_epi(0, 3), 'w'); D(mread(2), 'M2')
    stamp(A, 4)
    wait_for({'M0'})
    A('s_barrier')
    D(aread(0), 'A0'); D(aread(1), 'A1'); D(mread(3), 'M3')
    units = [(c, T) for c in range(6) for T in range(3)] + [(6, 2), (6, 0), (6, 1)]
    bars = {PRM['s23']: (2, 3), PRM['s4']: (4,), PRM['sb']: (5,), PRM['sc']: (6,)}
    for i, (c, T) in enumerate(units):
        wait_for({'A%d' % c} | ({'M%d' % c} if T == 2 else set()))
        A(smf(v(SD + 4 * T, 4), v(AR[c], 4), u(XR(c, T) if T < 2 else MR(c), 8)))
        if i < 3: D(mread(4 + i), 'M%d' % (4 + i))
        if i in bars:
            A('s_barrier')
            for cc in bars[i]: D(aread(cc), 'A%d' % cc)
    stamp(A, 5)
    e, o, mm, t2 = (v(AC), v(AC + 1)), (v(AC + 2), v(AC + 3)), v(AC + 4), v(AC + 5)
    m, rr = (v(AC + 6), v(AC + 7)), (v(AC + 8), v(AC + 9))
    ID = 'quad_perm:[0,1,2,3] row_mask:0xf bank_mask:0x%x'
    def reduce(op):
        for d in ('quad_perm:[1,0,3,2]', 'quad_perm:[2,3,0,1]', 'row_half_mirror', 'row_mirror'):
            for rb in range(2): A('%s_dpp %s, %s, %s %s row_mask:0xf bank_mask:0xf' % (op, m[rb], m[rb], m[rb], d))
    E2, O2, M2, R2 = v(AC, 2), v(AC + 2, 2), v(AC + 6, 2), v(AC + 8, 2)
    def softmax(exact):
        pk = (v(vT), v(vT + 1), v(AC + 10))
        if not exact:
            A('v_add_f32 %s, %s, %s' % (mm, v(SD + 8), v(SD + 10)))
            A('v_add_f32_dpp %s, %s, %s %s' % (mm, v(SD + 9), v(SD + 11), ID % 0xa))
            A('v_pk_add_f32 %s, %s, %s' % (E2, v(SD, 2), v(SD + 2, 2)))
            A('v_exp_f32 %s, %s' % (mm, mm))
            for rb in range(2): A('v_exp_f32 %s, %s' % (e[rb], e[rb]))
            A('v_pk_add_f32 %s, %s, %s' % (O2, v(SD + 4, 2), v(SD + 6, 2)))
            for rb in range(2): A('v_exp_f32 %s, %s' % (o[rb], o[rb]))
        else:
            A('v_pk_add_f32 %s, %s, %s' % (E2, v(SD, 2), v(SD + 2, 2)))
            A('v_pk_add_f32 %s, %s, %s' % (O2, v(SD + 4, 2), v(SD + 6, 2)))
            A('v_add_f32 %s, %s, %s' % (mm, v(SD + 8), v(SD + 10)))
            A('v_add_f32 %s, %s, %s' % (t2, v(SD + 9), v(SD + 11)))
            A('v_max3_f32 %s, %s, %s, %s' % (m[0], e[0], o[0], mm))
            A('v_max3_f32 %s, %s, %s, %s' % (m[1], e[1], o[1], t2))
            reduce('v_max_f32')
            for rb in range(2):
                A('v_sub_f32 %s, %s, %s' % (e[rb], e[rb], m[rb])); A('v_sub_f32 %s, %s, %s' % (o[rb], o[rb], m[rb]))
            A('v_sub_f32 %s, %s, %s' % (mm, mm, m[0]))
            A('v_sub_f32_dpp %s, %s, %s %s' % (mm, t2, m[1], ID % 0xa))
            for rb in range(2):
                A('v_exp_f32 %s, %s' % (e[rb], e[rb])); A('v_exp_f32 %s, %s' % (o[rb], o[rb]))
            A('v_exp_f32 %s, %s' % (mm, mm))
        A('v_pk_fma_f32 %s, %s, %s, %s op_sel_hi:[0,1,1]' % (M2, v(AC + 4, 2), v(vMK, 2), E2))
        A('v_pk_add_f32 %s, %s, %s' % (M2, M2, O2))
        A('v_mov_b32_dpp %s, %s row_ror:8 row_mask:0xf bank_mask:0xf' % (t2, mm))
        reduce('v_add_f32')
        for rb in range(2): A('v_rcp_f32 %s, %s' % (rr[rb], m[rb]))
        if not exact:
            A('v_add_f32 %s, %s, %s' % (m[0], m[0], m[1]))
            A('v_add_f32 %s, %s, %s' % (m[1], rr[0], rr[1]))
            A('v_pk_mul_f32 %s, %s, %s' % (E2, E2, R2))
            A('v_add_f32 %s, %s, %s' % (m[0], m[0], m[1]))
            A('v_pk_mul_f32 %s, %s, %s' % (O2, O2, R2))
            A('v_cmp_nlt_f32 vcc, %s, %s' % (m[0], v(vBG)))
            A('v_cvt_pk_bf16_f32 %s, %s, %s' % (pk[0], e[0], o[0]))
            A('v_cvt_pk_bf16_f32 %s, %s, %s' % (pk[1], e[1], o[1]))
            A('s_cbranch_vccnz L_sc_exact')
        else:
            A('v_pk_mul_f32 %s, %s, %s' % (E2, E2, R2))
            A('v_pk_mul_f32 %s, %s, %s' % (O2, O2, R2))
            for rb in range(2):
                A('v_cvt_pk_bf16_f32 %s, %s, %s' % (pk[rb], e[rb], o[rb]))
                A('v_min_u32 %s, -2, %s' % (pk[rb], pk[rb]))
        A('buffer_store_dword %s, %s, %s, %s offen' % (pk[0], v(vPST), s(S_WS, 4), s(sSLOTP)))
        A('buffer_store_dword %s, %s, %s, %s offen offset:128' % (pk[1], v(vPST), s(S_WS, 4), s(sSLOTP)))
        A('v_mov_b32_dpp %s, %s %s' % (rr[0], rr[1], ID % 0xa))
        A('v_mul_f32 %s, %s, %s' % (mm, mm, rr[0]))
        A('v_mul_f32 %s, %s, %s' % (t2, t2, rr[0]))
        A('v_cvt_pk_bf16_f32 %s, %s, %s' % (pk[2], mm, t2))
        if exact: A('v_min_u32 %s, -2, %s' % (pk[2], pk[2]))
        A('buffer_store_dword %s, %s, %s, %s offen' % (pk[2], v(vPSM), s(S_WS, 4), s(sSLOTP)))
    softmax(not PRM['fsm'])
    A.label('L_sc_join')
    stamp(A, 8)
    bottom('L_score_loop0', [0, 1, 2, 3, 4, 5, 8])
    A.label('L_s0_y')
    for x in X2: A(x)
    A('s_waitcnt vmcnt(0)')
    for k2 in range(ND):
        for x in chk(k2, k2 == 0): A(x)
    A('v_cmp_eq_u32 vcc, -1, %s' % v(vT))
    spin_check(A, 'L_s0_y')
    A('s_branch L_s0_z')
    A.label('L_sc_exact')
    softmax(True)
    A('s_branch L_sc_join')
    for w in range(1, 4):
        LP = 'L_score_loop%d' % w
        A.label(LP)
        for x in ['v_pk_mov_b32 %s, 0, 0' % v(2 * i, 2) for i in range(16)]: A(x)
        top()
        if w == 3: A('v_mov_b32 %s, %s' % (v(HV_), s(sSTEP1)))
        stamp(A, 0)
        if w == 2: hint_wait(A, sHMRD, sSTEP1, 2, PRM['sdel'], 22, vHMS, solo=True)
        A('s_barrier')
        stamp(A, 1)
        A(mld(0))
        A('s_barrier')
        if PRM['o2']:
            A(mld(1)); A('s_barrier'); A('s_barrier'); A(mld(2))
        else:
            A('s_barrier'); A(mld(1)); A(mld(2))
        lk = A.newlabel('L_lk'); A.label(lk)
        seq = [(r, k) for k in range(ND) for r in range(8)]
        ck = {}
        for k in range(ND):
            for j, x in enumerate(chk(k, k == 0)): ck[min(8 * k + 1 + j, PRM['lb'] - 3 + j)] = (k, x)
        have = -1
        rd = list(range(ND, 7))
        for i, (r, k) in enumerate(seq):
            if k > have: A('s_waitcnt vmcnt(%d)' % (ND - 1 - k)); have = k
            if i == 0: stamp(A, 2)
            A(smf(v(SC8.accf(r), 4), v(MF + 4 * k, 4), u(SC8.w(r, k), 8)))
            if i in ck:
                kk, x = ck[i]
                if kk > have: A('s_waitcnt vmcnt(%d)' % (ND - 1 - kk)); have = kk
                A(x)
            if i == PRM['lb'] - 1:
                A('v_cmp_eq_u32 vcc, -1, %s' % v(vT))
                spin_check(A, lk, [mld(k2) for k2 in range(ND)] + zero_regs(0, 32))
            if i == PRM['lb']:
                A('s_barrier')
                stamp(A, 3)
            if i >= PRM['lb']:
                for _ in range(2):
                    if rd:
                        kk = rd.pop(0); A('ds_read_b128 %s, %s offset:%d' % (v(MF + 4 * kk, 4), v(vX), L_MEM + kk * 1024))
        assert not rd
        extra = {}
        lw = ['ds_read_b128 %s, %s offset:%d' % (v(SC8.land[(7, k_)] + 4 * hi, 4), v(vSW), (2 * (k_ - 5) + hi) * 1024) for k_ in (5, 6) for hi in range(2)]
        for x, pos in zip(lw, (3, 4, 13, 17)): extra.setdefault(pos, []).append(x)
        extra.setdefault(PRM['b01'], []).extend(['s_waitcnt lgkmcnt(1)', 's_barrier'])
        extra.setdefault(PRM['ba'], []).extend(['s_waitcnt lgkmcnt(0)', 's_barrier'])
        extra.setdefault(31, []).extend(['s_waitcnt lgkmcnt(0)', 's_barrier'])
        q = []; i = 0
        for r in range(8):
            for k in range(ND, 7):
                if r == 0: A('s_waitcnt lgkmcnt(%d)' % (6 - k))
                wv = SC8.w(r, k)
                if wv is None: wv = SC8.land[(r, k)]
                A(smf(v(SC8.accf(r), 4), v(MF + 4 * k, 4), u(wv, 8)))
                if k == ND + 1 and r > 0: q += sc_epi(w, r - 1)
                if q: A(q.pop(0))
                for x in extra.get(i, []): A(x)
                i += 1
        stamp(A, 4)
        for x in q: A(x)
        e7 = sc_epi(w, 7)
        for x in e7: A(x)
        A('s_waitcnt lgkmcnt(1)')
        A('s_barrier')
        A('s_waitcnt lgkmcnt(0)')
        A('s_barrier')
        stamp(A, 5)
        if w == 3:
            for i in range(PRM['ht']): A('s_nop 3')
            hint_send(A, HV_, HA)
            if G.events:
                A('s_memtime s[4:5]')
                A('s_memrealtime s[6:7]')
                A('s_waitcnt lgkmcnt(0)')
                A('s_mov_b32 m0, %s' % s(sSTEP))
                A('s_nop 3')
                A('v_writelane_b32 v79, s4, m0')
                A('v_writelane_b32 v67, s6, m0')
        if w == 2: A('s_sleep %d' % PRM['psl'])
        bottom(LP, [0, 1, 2, 3, 4, 5])
    A.label('L_sc_end')
    stamp_acc_out(A)
    if G.events:
        A('s_lshl_b32 s6, %s, 2' % s(sROLE))
        A('s_add_u32 s6, s6, %s' % s(sWAVE))
        A('s_lshl_b32 s6, s6, 8')
        A('s_add_u32 s6, s6, %d' % (EVT + 0x20000))
        A('v_lshrrev_b32 v1, 2, %s' % v(vX))
        A('buffer_store_dword v79, v1, %s, s6 offen' % s(S_WS, 4))
        A('s_add_u32 s6, s6, 0x8000')
        A('buffer_store_dword v67, v1, %s, s6 offen' % s(S_WS, 4))
    event(A, 8)
    event_spin(A, 14)
    A('s_branch L_exit')
    emit_stubs(A)

def va_epi(r):
    c = 4 * r
    return ['v_add_f32 %s, %s, %s' % (v(c), v(c), v(c + 2)),
            'v_add_f32 %s, %s, %s' % (v(c + 1), v(c + 1), v(c + 3)),
            'v_cvt_pk_bf16_f32 %s, %s, %s' % (v(ZB + 4 * (r & 1) + (r >> 1)), v(c), v(c + 1))]

sVB = 96
sPD = 97
def u_loads():
    out = []
    for cx in range(2):
        for hi in range(2):
            for p in range(2):
                out.append((['s_add_u32 m0, %s, %d' % (s(sVB), cx * 4096 + hi * 2048)] if p == 0 else []) +
                           ['buffer_load_dwordx4 %s, %s, %s offen offset:%d sc1 lds' % (v(vL16), s(S_WS, 4), s(88 + cx * 2 + hi), p * 1024)])
    return out

def ucheck_code(A, lbl, back, P0, t):
    A.label(lbl)
    A('v_mbcnt_lo_u32_b32 %s, -1, 0' % v(t))
    A('v_mbcnt_hi_u32_b32 %s, -1, %s' % (v(t), v(t)))
    A('v_min_u32 %s, 55, %s' % (v(t), v(t)))
    A('v_lshlrev_b32 %s, 4, %s' % (v(t), v(t)))
    A('s_mov_b32 %s, %d' % (s(sT1), FLG_W2 + 1792))
    A('s_lshr_b32 %s, %s, 2' % (s(sT2), s(sT4)))
    A('s_add_u32 %s, %s, 1' % (s(sT2), s(sT2)))
    A.label(lbl + '_l')
    A('buffer_load_dwordx4 %s, %s, %s, %s offen sc1' % (v(P0, 4), v(t), s(S_WS, 4), s(sT1)))
    A('buffer_load_dwordx4 %s, %s, %s, %s offen offset:896 sc1' % (v(P0 + 4, 4), v(t), s(S_WS, 4), s(sT1)))
    A('s_waitcnt vmcnt(0)')
    A('v_min3_u32 %s, %s, %s, %s' % (v(P0), v(P0), v(P0 + 1), v(P0 + 2)))
    A('v_min3_u32 %s, %s, %s, %s' % (v(P0), v(P0), v(P0 + 3), v(P0 + 4)))
    A('v_min3_u32 %s, %s, %s, %s' % (v(P0), v(P0), v(P0 + 5), v(P0 + 6)))
    A('v_min_u32 %s, %s, %s' % (v(P0), v(P0), v(P0 + 7)))
    A('v_cmp_gt_u32 vcc, %s, %s' % (s(sT2), v(P0)))
    spin_check(A, lbl + '_l', ['s_sleep 8'])
    A('s_lshl_b32 %s, %s, 2' % (s(sUOK), s(sT2)))
    for thr in range(2, 17):
        A('v_cmp_gt_u32 vcc, %d, %s' % (thr, v(P0)))
        A('s_cbranch_vccnz %s' % back)
        A('s_max_u32 %s, %s, %d' % (s(sUOK), s(sUOK), 4 * thr if thr < 16 else 1000))
    A('s_branch %s' % back)

def value_role(A):
    A.label('L_value')
    L = v(vLANE)
    sV = sT4
    A('s_sub_u32 %s, %s, 16' % (s(sV), s(sROLE)))
    lexpr(A, v(vL16), L, [(0, 6, 16)], 0, 'v1')
    A('s_lshl_b32 %s, %s, 13' % (s(sVB), s(sWAVE)))
    A('s_add_u32 %s, %s, %d' % (s(sVB), s(sVB), L_VB))
    A('s_lshl_b32 %s, %s, 11' % (s(sT0), s(sWAVE)))
    A('s_add_u32 %s, %s, %d' % (s(sT0), s(sT0), L_VB + 32768))
    A('v_add_u32 %s, %s, %s' % (v(vVW), s(sT0), v(vL16)))
    A('v_add_u32 %s, %d, %s' % (v(vVR), L_VB, v(vL16)))
    A('s_mul_i32 %s, %s, 20480' % (s(sT0), s(sWAVE)))
    A('s_add_u32 %s, %s, %d' % (s(sT0), s(sT0), L_WL))
    A('v_add_u32 %s, %s, %s' % (v(vLW), s(sT0), v(vL16)))
    A('s_lshl_b32 %s, %s, 9' % (s(sT0), s(sV)))
    A('s_cmp_eq_u32 %s, 0' % s(sWAVE))
    A('s_cselect_b32 %s, %s, 0x70000000' % (s(sT0), s(sT0)))
    FL = PRM['fl']; MO = 128 if FL else 16; HO = 64 if FL else 16
    lexpr(A, v(vMST), L, [(3, 1, 256), (2, 1, 32), (0, 2, 4)] + ([(5, 1, 64), (4, 1, 16)] if FL else [(4, 2, 64)]), s(sT0), 'v1')
    lexpr(A, v(vHIST), L, [(2, 2, 128), (4, 2, 16 if FL else 32), (0, 2, 4)], s(sT0), 'v1')
    A('s_lshl_b32 %s, %s, 6' % (s(sT0), s(sV)))
    lexpr(A, 'v2', L, [(4, 2, 1792), (0, 4, 4)], s(sT0), 'v1')
    A('s_lshl_b32 %s, %s, 2' % (s(sHWR), s(sV)))
    A('s_add_u32 %s, %s, %d' % (s(sHWR), s(sHWR), HINT_M))
    hint_setup(A, VHV, VHA, True)
    A('v_min_u32 v1, 18, %s' % L)
    A('v_lshlrev_b32 %s, 2, v1' % v(vHM_))
    A('v_min_u32 v1, 15, %s' % L)
    A('v_lshlrev_b32 %s, 2, v1' % v(vHP_))
    A('s_cmp_eq_u32 %s, 2' % s(sWAVE))
    A('s_cselect_b32 %s, 0, 0x70000000' % s(sT0))
    A('v_add_u32 %s, %s, %s' % (v(vHP_), s(sT0), v(vHP_)))
    dbg_arrive(A, D_GRP)
    A('s_lshr_b32 %s, %s, 1' % (s(sT0), s(sV)))
    A('s_add_u32 %s, %s, 112' % (s(sT0), s(sT0)))
    A('s_mul_i32 %s, %s, 28' % (s(sT1), s(sWAVE)))
    A('s_add_u32 %s, %s, %s' % (s(sT0), s(sT0), s(sT1)))
    lexpr(A, 'v8', L, [(2, 2, 7)], s(sT0), 'v1')
    A('v_lshlrev_b32 v8, 6, v8')
    A('v_and_b32 v9, 3, %s' % L)
    A('v_lshl_add_u32 v8, v9, 2, v8')
    A('s_mul_i32 %s, %s, %d' % (s(sUOFF), s(sWAVE), 4 * 28672))
    A('s_lshl_b32 %s, %s, 11' % (s(sT0), s(sV)))
    A('s_add_u32 %s, %s, %s' % (s(sUOFF), s(sUOFF), s(sT0)))
    A('s_add_u32 %s, %s, %d' % (s(sUOFF), s(sUOFF), U_OFF))
    A('s_mul_i32 %s, %s, %d' % (s(sT3), s(sV), WCV))
    A('s_add_u32 %s, %s, %d' % (s(sT3), s(sT3), WIMGV))
    event(A, 3)
    load_weights(A, VA, 32768, lambda: group_wait(A))
    event(A, 5)
    event(A, 6, v(vT), v(vT + 1))
    event_spin(A, 13, v(vT), v(vT + 1))
    A('s_mov_b32 %s, 0' % s(sSTEP))
    A('s_mov_b32 %s, %d' % (s(sSLOT), MB_OFF))
    A('s_mov_b32 %s, 0' % s(sPD))
    def lread(i):
        j = VLDS.index(VORD[i])
        return ['ds_read_b128 %s, %s offset:%d' % (v(LB + 8 * (i & 1) + 4 * hi, 4), v(vLW), (2 * j + hi) * 1024) for hi in range(2)]
    BF = [0, 8, 16, 24, 32, 40, 48, 80, 88]
    OD, PA, PKD = 96, 104, 56
    sP0 = 93
    def top():
        A('s_add_u32 %s, %s, 1' % (s(sSTEP1), s(sSTEP)))
        for j in range(4): A('s_add_u32 %s, %s, %d' % (s(88 + j), s(sUOFF), j * 28672))
    top()
    A.label('L_value_loop')
    if G.stamps != 2: stamp(A, 0)
    ul = u_loads(); nb1 = PRM['nb1']
    extra = {}
    for i in range(2, 10):
        r, k = VORD[i - 2]
        g0 = 5 * r + k - 2
        for j, x in enumerate(lread(i)): extra.setdefault(g0 + (j if (k == 6 and PRM['lsp']) else 0), []).append(x)
    A('s_add_u32 %s, %s, 2' % (s(sT0), s(sSTEP)))
    extra.setdefault(0, []).append('v_mov_b32 %s, %s' % (v(VHV), s(sT0)))
    for x in lread(0) + lread(1) + ['v_pk_mov_b32 %s, 0, 0' % v(2 * i, 2) for i in range(16)]: A(x)
    post = ['s_barrier']
    for j, x in enumerate(ul[:nb1]): post += x
    pp = 'buffer_load_dword %s, %s, %s, %s offen sc1' % (v(vT), v(vHP_), s(S_WS, 4), s(sHPRD))
    if PRM['prime']:
        extra.setdefault(34, []).append(pp); extra.setdefault(39, []).append(pp)
    main_phase(A, VA, 2, PRM['vdel'], post, ul[nb1:], PRM['uev'], extra, va_epi)
    A('s_cmp_eq_u32 %s, 63' % s(sSTEP))
    A('s_cbranch_scc1 L_value_end')
    zw = va_epi(7) + ['ds_write_b128 %s, %s offset:%d' % (v(vVW), v(ZB + 4 * p, 4), p * 1024) for p in range(2)]
    for j in range(3): A('s_add_u32 %s, %s, %d' % (s(sP0 + j), s(sSLOT), MB_PO + 4096 * j))
    A('s_add_u32 %s, %s, %d' % (s(sSLOT), s(sSLOT), MB_STEP))
    NB = PRM['nub']
    if not NB:
        A('s_waitcnt vmcnt(0)')
        A('s_barrier')
    def bread(f):
        c, p = f >> 1, f & 1
        return ['ds_read_b128 %s, %s offset:%d' % (v(BF[f % 9] + 4 * hi, 4), v(vVR), c * 4096 + hi * 2048 + p * 1024) for hi in range(2)]
    pre = []
    for f in range(9):
        pre += bread(f)
        if f in (4, 7): pre.append('s_waitcnt lgkmcnt(4)')
    pre += zero_regs(OD, 8) + ['s_waitcnt lgkmcnt(0)']
    A('s_add_u32 %s, %s, %d' % (s(sUOFF), s(sUOFF), 16 * 28672))
    A('s_add_u32 %s, %s, 1' % (s(sSTEP), s(sSTEP)))
    A('s_cmp_lg_u32 %s, 0' % s(sWAVE))
    A('s_cbranch_scc1 L_value_oth')
    npre = 4 if NB else PRM['npre']
    pre1 = []; pre2 = []
    if NB: pre1 = zw + zero_regs(OD, 8) + ['s_waitcnt vmcnt(0)']
    for f in range(9):
        if f == 3 and not NB: pre1.extend(zw + zero_regs(OD, 8))
        (pre1 if f < npre else pre2).extend(bread(f))
        if f in (4, 7) and not NB: (pre1 if f < npre else pre2).append('s_waitcnt lgkmcnt(4)')
    for x in pre1: A(x)
    if G.stamps == 2:
        stamp(A, 10); stamp(A, 3); stamp(A, 5)
    if G.stamps == 2: stamp(A, 0)
    if PRM['solo']: hint_wait(A, sHPRD, sSTEP1, 0, PRM['pdel'], 16, vHP_, solo=True)
    else:
        A('s_cmp_lg_u32 %s, 0' % s(sPD))
        A('s_barrier')
        A('s_cbranch_scc1 L_pv_delay')
        A.label('L_pv_go')
    stamp(A, 9)
    ld = ['buffer_load_dwordx4 %s, %s, %s, %s offen offset:%d sc1' % (v(PA + 4 * c, 4), v(vL16), s(S_WS, 4), s(sP0 + (c >> 2)), (c & 3) * 1024) for c in range(10)]
    for x in ld: A(x)
    for x in pre2: A(x)
    A('s_waitcnt lgkmcnt(%d)' % (PRM['pvw'] if NB else 0))
    A.label('L_pv')
    for f in range(20):
        c, p = f >> 1, f & 1
        if p == 0: A('s_waitcnt vmcnt(%d)' % (9 - c + (1 if f > PRM['vf'] else 0)))
        if f == 0: stamp(A, 6)
        if NB and PRM['pvw'] and f == 4: A('s_waitcnt lgkmcnt(8)')
        if f >= 9: A('s_waitcnt lgkmcnt(%d)' % min(14, sum(len(bread(g)) for g in range(f + 1, min(19, f + 8) + 1))))
        A(smf(v(OD + 4 * p, 4), v(PA + 4 * c, 4), v(BF[f % 9], 8)))
        if f == PRM['vf']: hint_send(A, VHV, VHA)
        if f + 9 < 20:
            for x in bread(f + 9): A(x)
    stamp(A, 7)
    A('v_pk_add_f32 %s, %s, %s' % (v(OD, 2), v(OD, 2), v(OD + 2, 2)))
    A('v_cmp_u_f32 vcc, %s, %s' % (v(OD), v(OD + 1)))
    A('v_pk_add_f32 %s, %s, %s' % (v(OD + 4, 2), v(OD + 4, 2), v(OD + 6, 2)))
    A('s_cbranch_vccnz L_pv_nan')
    A('v_cvt_pk_bf16_f32 %s, %s, %s' % (v(PKD), v(OD), v(OD + 4)))
    A('v_cvt_pk_bf16_f32 %s, %s, %s' % (v(PKD + 1), v(OD + 1), v(OD + 5)))
    A.label('L_pv_ok')
    A('buffer_store_dword %s, %s, %s, %s offen' % (v(PKD), v(vMST), s(S_WS, 4), s(sSLOT)))
    A('buffer_store_dword %s, %s, %s, %s offen offset:%d' % (v(PKD + 1), v(vMST), s(S_WS, 4), s(sSLOT), MO))
    stamp(A, 8)
    if G.stamps:
        A('s_sub_u32 %s, %s, 1' % (s(sSTEP), s(sSTEP)))
        stamp_flush(A, 11, [0, 1, 2, 3, 4, 5, 10, 9, 6, 7][:10] if False else [1, 2, 4, 10, 3, 5, 0, 9, 6, 8])
        A('s_add_u32 %s, %s, 1' % (s(sSTEP), s(sSTEP)))
    A.label('L_value_next')
    top()
    A('s_cmp_lt_u32 %s, 63' % s(sSTEP))
    A('s_cbranch_scc1 L_value_loop')
    A('s_mov_b32 %s, %d' % (s(sT0), HM_OFF + 63 * HM_STEP))
    for j in range(2): A('buffer_store_dword %s, %s, %s, %s offen offset:%d sc1' % (v(PKD + j), v(vHIST), s(S_WS, 4), s(sT0), HO * j))
    for j in range(4): A('s_mov_b32 %s, 0x70000000' % s(88 + j))
    event(A, 8, v(104), v(105))
    A('s_branch L_value_loop')
    A.label('L_value_end')
    for x in va_epi(7): A(x)
    A('s_sub_u32 %s, %s, 16' % (s(sT1), s(sROLE)))
    A('s_mul_i32 %s, %s, 28672' % (s(sT0), s(sWAVE)))
    A('s_lshl_b32 %s, %s, 11' % (s(sT2), s(sT1)))
    A('s_add_u32 %s, %s, %s' % (s(sT0), s(sT0), s(sT2)))
    A('s_add_u32 %s, %s, %d' % (s(sT0), s(sT0), HZ_OFF + 63 * 114688))
    A('v_and_b32 v0, 0xf0, %s' % v(vL16))
    A('v_lshrrev_b32 v1, 8, %s' % v(vL16))
    A('v_lshl_add_u32 v0, v1, 2, v0')
    for p_ in range(2):
        for j in range(4):
            A('buffer_store_dword %s, v0, %s, %s offen offset:%d sc1' % (v(ZB + 4 * p_ + j), s(S_WS, 4), s(sT0), p_ * 1024 + j * 256))
    A('s_lshl_b32 %s, %s, 2' % (s(sT1), s(sT1)))
    A('s_add_u32 %s, %s, %s' % (s(sT1), s(sT1), s(sWAVE)))
    A('s_lshl_b32 %s, %s, 7' % (s(sT1), s(sT1)))
    A('s_add_u32 %s, %s, %d' % (s(sT1), s(sT1), FLG_W1 + 32))
    A('v_mov_b32 v2, 0')
    A('v_mov_b32 v3, 16')
    A('s_waitcnt vmcnt(0)')
    A('s_mov_b64 exec, 1')
    A('buffer_store_dword v3, v2, %s, %s offen sc1' % (s(S_WS, 4), s(sT1)))
    A('s_mov_b64 exec, -1')
    event(A, 7)
    stamp_acc_out(A)
    event_spin(A, 14)
    A('s_branch L_exit')
    A.label('L_value_oth')
    A(pp)
    for x in zw[:4]: A(x)
    A(pp)
    for x in zw[4:]: A(x)
    A('s_nop 7')
    if PRM['solo']: A('s_sleep %d' % PRM['vsl'])
    else: hint_wait(A, sHPRD, sSTEP1, 2, PRM['pdel'], 16, vHP_, primed=True)
    A('s_branch L_value_next')
    A.label('L_pv_delay')
    A('s_mov_b32 %s, %s' % (s(sT1), s(sPD)))
    A.label('L_pv_delay2')
    A('s_sub_u32 %s, %s, 1' % (s(sT1), s(sT1)))
    A('s_cmp_lg_u32 %s, 0' % s(sT1))
    A('s_cbranch_scc1 L_pv_delay2')
    A('s_branch L_pv_go')
    A.label('L_pv_nan')
    A('v_max3_u32 %s, %s, %s, %s' % (v(vT), v(PA), v(PA + 1), v(PA + 2)))
    for i in range(3, 39, 2): A('v_max3_u32 %s, %s, %s, %s' % (v(vT), v(vT), v(PA + i), v(PA + i + 1)))
    A('v_max_u32 %s, %s, %s' % (v(vT), v(vT), v(PA + 39)))
    A('v_cmp_eq_u32 vcc, -1, %s' % v(vT))
    spin_check(A, 'L_pv', ld + pre + ['s_add_u32 %s, %s, 1' % (s(sPD), s(sPD)), 's_min_u32 %s, %s, 6' % (s(sPD), s(sPD))])
    A('v_cvt_pk_bf16_f32 %s, %s, %s' % (v(PKD), v(OD), v(OD + 4)))
    A('v_cvt_pk_bf16_f32 %s, %s, %s' % (v(PKD + 1), v(OD + 1), v(OD + 5)))
    A('v_min_u32 %s, -2, %s' % (v(PKD), v(PKD)))
    A('v_min_u32 %s, -2, %s' % (v(PKD + 1), v(PKD + 1)))
    A('s_branch L_pv_ok')
    emit_stubs(A)

def helper_role(A):
    A.label('L_helper')
    L = v(vLANE)
    sJ, sXD, sSI = sPRST, sXPF, sUOFF
    LA = PRM['pla']; LT = PRM['plt']
    A('v_lshlrev_b32 v1, 8, %s' % L)
    A('v_mov_b32 v2, %d' % OOB)
    A('v_cmp_gt_u32 vcc, %d, %s' % (PRM['nrep'], L))
    A('v_cndmask_b32 v8, v2, v1, vcc')
    A('s_mov_b32 %s, 0' % s(sSTEP))
    A('s_mov_b32 %s, %d' % (s(sSLOT), MB_OFF))
    A('s_lshl_b32 %s, %s, 10' % (s(sT0), s(sWAVE)))
    lexpr(A, 'v10', L, [(0, 6, 16)], s(sT0), 'v1')
    A('s_cmp_eq_u32 %s, 31' % s(sROLE))
    A('s_cbranch_scc1 L_prep')
    diag(A, 5)
    lexpr(A, 'v11', L, [(4, 2, 256), (1, 1, 128), (2, 2, 32), (0, 1, 16)], s(sT0), 'v1')
    A('s_cmp_lt_u32 %s, 3' % s(sWAVE))
    A('s_cselect_b32 %s, 4096, 0' % s(sT0))
    A('v_add_u32 v12, %s, v10' % s(sT0))
    A('v_add_u32 v13, %s, v11' % s(sT0))
    A('s_mov_b32 %s, %d' % (s(sHWR), HINT_M + 18 * 4))
    A('s_cmp_eq_u32 %s, 3' % s(sWAVE))
    A('s_cselect_b32 %s, %d, 1000' % (s(sUOK), 1000 if G.dev_nowait else 0))
    A('s_cbranch_scc0 L_h_nu')
    A('v_mov_b32 v3, %s' % s(sUOK))
    A('buffer_store_dword v3, v8, %s, %s offen' % (s(S_WS, 4), s(sHWR)))
    A.label('L_h_nu')
    if not G.dev_nowait:
        A('s_cmp_lg_u32 %s, 0' % s(sWAVE))
        A('s_cbranch_scc1 L_h_rdy')
        lexpr(A, 'v2', L, [(0, 1, 64)], D_XG * 4, 'v3')
        A.label('L_h_xg')
        A('buffer_load_dword v3, v2, %s, 0 offen sc1' % s(S_DBG, 4))
        A('s_waitcnt vmcnt(0)')
        A('v_cmp_gt_u32 vcc, 112, v3')
        spin_check(A, 'L_h_xg', ['s_sleep 4'])
        A('v_mov_b32 v2, %d' % (D_RDY * 4))
        A('v_mov_b32 v3, 1')
        A('s_mov_b64 exec, 1')
        A('buffer_store_dword v3, v2, %s, 0 offen sc1' % s(S_DBG, 4))
        A('s_mov_b64 exec, -1')
        A.label('L_h_rdy')
    dbg_arrive(A, D_GRP)
    group_wait(A)
    A('s_mov_b32 %s, %d' % (s(sHM), HM_OFF))
    A.label('L_hist')
    A('s_cmp_ge_u32 %s, 64' % s(sUOK))
    A('s_cbranch_scc1 L_hist_b')
    A('s_mov_b32 %s, 0' % s(sT4))
    A('s_branch L_hucheck')
    A.label('L_hucheck_done')
    A('v_mov_b32 v3, %s' % s(sUOK))
    A('buffer_store_dword v3, v8, %s, %s offen' % (s(S_WS, 4), s(sHWR)))
    A.label('L_hist_b')
    A('buffer_load_dwordx4 v[16:19], v10, %s, %s offen sc1' % (s(S_WS, 4), s(sSLOT)))
    A('buffer_load_dwordx4 v[20:23], v12, %s, %s offen sc1' % (s(S_WS, 4), s(sSLOT)))
    A('s_waitcnt vmcnt(0)')
    A('v_max3_u32 v3, v16, v17, v18')
    A('v_max3_u32 v3, v3, v19, v20')
    A('v_max3_u32 v3, v3, v21, v22')
    A('v_max_u32 v3, v3, v23')
    A('v_cmp_eq_u32 vcc, -1, v3')
    spin_check(A, 'L_hist', ['s_sleep 1'])
    A('buffer_store_dwordx4 v[16:19], v11, %s, %s offen sc1' % (s(S_WS, 4), s(sHM)))
    A('buffer_store_dwordx4 v[20:23], v13, %s, %s offen sc1' % (s(S_WS, 4), s(sHM)))
    if G.diag:
        for st_, ix in ((1, 7), (2, 8), (8, 9), (63, 10)):
            lb = A.newlabel('L_dg')
            A('s_cmp_lg_u32 %s, %d' % (s(sSTEP), st_)); A('s_cbranch_scc1 %s' % lb); diag(A, ix); A.label(lb)
    A('s_add_u32 %s, %s, %d' % (s(sSLOT), s(sSLOT), MB_STEP))
    A('s_add_u32 %s, %s, %d' % (s(sHM), s(sHM), HM_STEP))
    A('s_add_u32 %s, %s, 1' % (s(sSTEP), s(sSTEP)))
    A('s_cmp_lt_u32 %s, 64' % s(sSTEP))
    A('s_cbranch_scc1 L_hist')
    A('s_waitcnt vmcnt(0)')
    event(A, 8)
    A('s_branch L_exit')
    ucheck_code(A, 'L_hucheck', 'L_hucheck_done', 32, 24)
    A.label('L_prep')
    for i in range(1, 4): A('v_add_u32 %s, %d, v10' % (v(10 + i), 4096 * i))
    A('s_cmp_lt_u32 %s, 2' % s(sWAVE))
    A('s_cselect_b32 %s, 16384, 0' % s(sT1))
    A('v_add_u32 v14, %s, v10' % s(sT1))
    lexpr(A, 'v15', L, [(3, 3, 4096), (0, 3, 128)], s(sT0), 'v1')
    A('v_cmp_gt_u32 vcc, %d, v15' % MB_STEP)
    A('v_cndmask_b32 v15, v2, v15, vcc')
    A('s_mul_i32 %s, %s, 7168' % (s(sT0), s(sWAVE)))
    A('v_min_u32 v1, 55, %s' % L)
    A('v_lshl_add_u32 v9, v1, 7, %s' % s(sT0))
    for i in range(4): A('v_mov_b32 %s, -1' % v(4 + i))
    A('s_lshl_b32 %s, %s, 2' % (s(sHWR), s(sWAVE)))
    A('s_add_u32 %s, %s, %d' % (s(sHWR), s(sHWR), HINT_M + 14 * 4))
    A('s_mov_b32 %s, 0' % s(sJ))
    A('s_mov_b32 %s, %d' % (s(sXD), XF_OFF + LT * 32768))
    A('s_mov_b32 %s, %d' % (s(sSI), MB_OFF))
    def prepare(touch):
        A('s_sub_u32 %s, %s, 2' % (s(sT0), s(sJ)))
        A('s_max_i32 %s, %s, 0' % (s(sT0), s(sT0)))
        A('s_cmp_ge_u32 %s, 64' % s(sJ))
        A('s_cselect_b32 %s, 64, %s' % (s(sT0), s(sT0)))
        A('v_mov_b32 v3, %s' % s(sT0))
        A('buffer_store_dword v3, v8, %s, %s offen' % (s(S_WS, 4), s(sHWR)))
        if touch:
            A('s_add_u32 %s, %s, %d' % (s(sT0), s(sSLOT), LT * MB_STEP))
            A('buffer_load_dword v21, v15, %s, %s offen sc1' % (s(S_WS, 4), s(sT0)))
            A('buffer_load_dword v20, v9, %s, %s offen sc1' % (s(S_WS, 4), s(sXD)))
            A('s_add_u32 %s, %s, 32768' % (s(sXD), s(sXD)))
        e = A.newlabel('L_hsk')
        A('s_cmp_ge_u32 %s, 64' % s(sJ))
        A('s_cbranch_scc1 %s' % e)
        for i in range(5): A('buffer_store_dwordx4 v[4:7], %s, %s, %s offen' % (v(10 + i), s(S_WS, 4), s(sSI)))
        A('s_add_u32 %s, %s, 1' % (s(sJ), s(sJ)))
        A('s_add_u32 %s, %s, %d' % (s(sSI), s(sSI), MB_STEP))
        A.label(e)
    A('s_lshl_b32 %s, %s, 7' % (s(sT0), s(sWAVE)))
    lexpr(A, 'v22', L, [(2, 2, 1792), (0, 1, 896), (4, 2, 32), (1, 1, 16)], s(sT0), 'v1')
    A('buffer_load_dwordx4 v[24:27], v22, %s, 0 offen' % s(S_M0, 4))
    A('buffer_load_dwordx4 v[28:31], v22, %s, 0 offen offset:512' % s(S_M0, 4))
    prepare(False)
    A('s_waitcnt vmcnt(0)')
    for i in range(8): A('v_min_u32 %s, -2, %s' % (v(24 + i), v(24 + i)))
    A('buffer_store_dwordx4 v[24:27], v10, %s, %s offen' % (s(S_WS, 4), s(sSLOT)))
    A('buffer_store_dwordx4 v[28:31], v11, %s, %s offen' % (s(S_WS, 4), s(sSLOT)))
    A.label('L_prep_pre')
    A('s_waitcnt vmcnt(0)')
    prepare(False)
    A('s_cmp_le_u32 %s, %d' % (s(sJ), LA + 1))
    A('s_cbranch_scc1 L_prep_pre')
    dbg_arrive(A, D_GRP)
    group_wait(A)
    if PRM['cpl']:
        A('s_getpc_b64 s[4:5]')
        A.label('L_pc2')
        A('s_sub_u32 s4, s4, L_pc2-L_score_loop0')
        A('s_subb_u32 s5, s5, 0')
        A('s_lshl_b32 %s, %s, 13' % (s(sT0), s(sWAVE)))
        A('v_lshl_add_u32 v23, %s, 7, %s' % (L, s(sT0)))
        A('v_min_u32 v23, L_pc2-L_score_loop0, v23')
    A.label('L_prep_warm')
    if PRM['cpl']: A('global_load_dword v22, v23, s[4:5] sc1')
    for i in range(LT + 1):
        A('s_mov_b32 %s, %d' % (s(sT0), XF_OFF + i * 32768))
        A('buffer_load_dword v20, v9, %s, %s offen sc1' % (s(S_WS, 4), s(sT0)))
        A('s_mov_b32 %s, %d' % (s(sT0), MB_OFF + i * MB_STEP))
        A('buffer_load_dword v21, v15, %s, %s offen sc1' % (s(S_WS, 4), s(sT0)))
    A('buffer_load_dwordx4 v[16:19], v12, %s, %s offen sc1' % (s(S_WS, 4), s(sSLOT)))
    A('s_waitcnt vmcnt(0)')
    check4(A, 16, 'L_prep_warm', ['s_sleep 8'])
    A.label('L_prep_loop')
    A('buffer_load_dwordx4 v[16:19], v12, %s, %s offen sc1' % (s(S_WS, 4), s(sSLOT)))
    A('s_waitcnt vmcnt(0)')
    check4(A, 16, 'L_prep_loop', ['s_sleep 4'])
    prepare(True)
    A('s_add_u32 %s, %s, %d' % (s(sSLOT), s(sSLOT), MB_STEP))
    A('s_add_u32 %s, %s, 1' % (s(sSTEP), s(sSTEP)))
    A('s_cmp_lt_u32 %s, 62' % s(sSTEP))
    A('s_cbranch_scc1 L_prep_loop')
    A('s_branch L_exit')
    emit_stubs(A)
```

```python
from common import *
import struct

sRHO, sH, sQ, sTY, sA = 71, 72, 73, 74, 75
sSC, sO1, sO2, sO3, sSEG, sCNT = 76, 77, 78, 79, 80, 81
S_W1 = 92
LW_R2 = 0
LW_ST = 36864
LW_WT = 36864 + 33792
def f2u(x): return struct.unpack('<I', struct.pack('<f', x))[0]

def wait_dbg(A, idx, val, sleep=2):
    l = A.newlabel('L_wd'); e = A.newlabel('L_wd_done')
    A('s_cmp_lg_u32 %s, 0' % s(sWAVE))
    A('s_cbranch_scc1 %s' % e)
    if idx == D_INIT: lexpr(A, 'v2', 'v0', [(0, 2, 64)], idx * 4, 'v3')
    else: A('v_mov_b32 v2, %d' % (idx * 4))
    A.label(l)
    A('buffer_load_dword v3, v2, %s, 0 offen sc1' % s(S_DBG, 4))
    A('s_waitcnt vmcnt(0)')
    A('v_cmp_gt_u32 vcc, %d, v3' % val)
    spin_check(A, l, ['s_sleep %d' % sleep])
    A.label(e)
    A('s_barrier')

def early_prefetch(A):
    e = A.newlabel('L_ep')
    A('s_cmp_eq_u32 %s, 0' % s(sXCC))
    A('s_cbranch_scc1 %s' % e)
    A('s_lshr_b32 %s, s2, 3' % s(sROLE))
    role_decode(A)
    lexpr(A, 'v5', 'v0', [(2, 4, 8192), (0, 2, 128)], 0, 'v6')
    A('s_and_b32 %s, %s, 1' % (s(sT2), s(sWAVE)))
    A('s_lshl_b32 %s, %s, 1' % (s(sT0), s(sQ)))
    A('s_add_u32 %s, %s, %s' % (s(sT0), s(sT0), s(sT2)))
    A('s_lshl_b32 %s, %s, 18' % (s(sT0), s(sT0)))
    A('s_lshl_b32 %s, %s, 9' % (s(sT1), s(sH)))
    A('s_add_u32 %s, %s, %s' % (s(sT0), s(sT0), s(sT1)))
    A('s_add_u32 %s, %s, %d' % (s(sT1), s(sT0), 16 * 8192))
    l2 = A.newlabel('L_ep2'); l3 = A.newlabel('L_ep3')
    A('s_cmp_ge_u32 %s, 2' % s(sWAVE))
    A('s_cbranch_scc1 %s' % l2)
    for j in range(2): A('buffer_load_dword v7, v5, %s, %s offen' % (s(S_W1, 4), s(sT0 + j)))
    A('s_branch %s' % e)
    A.label(l2)
    A('s_cmp_lg_u32 %s, 0' % s(sTY))
    A('s_cbranch_scc1 %s' % l3)
    for j in range(2): A('buffer_load_dword v7, v5, %s, %s offen' % (s(S_WK, 4), s(sT0 + j)))
    A('s_branch %s' % e)
    A.label(l3)
    A('v_lshlrev_b32 v5, 7, v0')
    A('s_lshl_b32 %s, %s, 1' % (s(sT0), s(sQ)))
    A('s_add_u32 %s, %s, %s' % (s(sT0), s(sT0), s(sT2)))
    A('s_lshl_b32 %s, %s, 14' % (s(sT0), s(sT0)))
    A('s_mul_i32 %s, %s, 229376' % (s(sT1), s(sH)))
    A('s_add_u32 %s, %s, %s' % (s(sT0), s(sT0), s(sT1)))
    A('s_add_u32 %s, %s, 8192' % (s(sT1), s(sT0)))
    for j in range(2): A('buffer_load_dword v7, v5, %s, %s offen' % (s(S_WO, 4), s(sT0 + j)))
    A.label(e)

def worker_entry(A):
    A.label('L_worker')
    A('s_mov_b32 %s, %d' % (s(sSPIN), SPIN_MAX))
    role_decode(A)

def role_decode(A):
    A('s_sub_u32 %s, %s, 1' % (s(sRHO), s(sXCC)))
    A('s_lshl_b32 %s, %s, 5' % (s(sRHO), s(sRHO)))
    A('s_add_u32 %s, %s, %s' % (s(sRHO), s(sRHO), s(sROLE)))
    A('s_mul_i32 %s, %s, 9363' % (s(sT0), s(sRHO)))
    A('s_lshr_b32 %s, %s, 16' % (s(sT0), s(sT0)))
    A('s_mul_i32 %s, %s, 7' % (s(sT1), s(sT0)))
    A('s_sub_u32 %s, %s, %s' % (s(sQ), s(sRHO), s(sT1)))
    A('s_lshr_b32 %s, %s, 4' % (s(sTY), s(sT0)))
    A('s_and_b32 %s, %s, 15' % (s(sH), s(sT0)))
    A('s_mul_i32 %s, %s, 7' % (s(sA), s(sH)))
    A('s_add_u32 %s, %s, %s' % (s(sA), s(sA), s(sQ)))
    A('s_cmp_eq_u32 %s, 0' % s(sTY))
    A('s_cselect_b32 %s, %s, %s' % (s(S_W1), s(S_WQ), s(S_WV)))
    A('s_cselect_b32 %s, %s, %s' % (s(S_W1 + 1), s(S_WQ + 1), s(S_WV + 1)))
    A('s_mov_b32 %s, 3670016' % s(S_W1 + 2))
    A('s_mov_b32 %s, 0x00020000' % s(S_W1 + 3))
    A('s_cselect_b32 %s, 0x%x, 1.0' % (s(sSC), f2u(SCALE_LOG2E)))

def zero_flags(A):
    A('s_cmp_eq_u32 %s, 3' % s(sWAVE))
    A('s_cselect_b32 %s, 0, 0x70000000' % s(sT1))
    A('s_cselect_b64 vcc, 1, 0')
    lexpr(A, 'v13', 'v0', [(0, 6, 16)], s(sT1), 'v1')
    A('v_mov_b32 v3, %d' % OOB)
    A('s_and_b32 %s, %s, 3' % (s(sT0), s(sRHO)))
    A('s_lshl_b32 %s, %s, 6' % (s(sT0), s(sT0)))
    A('s_add_u32 %s, %s, %d' % (s(sT0), s(sT0), D_INIT * 4))
    A('v_mov_b32 v1, %s' % s(sT0))
    A('v_cndmask_b32 v11, v3, v1, vcc')
    A('s_lshl_b32 %s, %s, 6' % (s(sT0), s(sRHO)))
    A('s_mul_i32 %s, %s, 192' % (s(sT2), s(sRHO)))
    A('s_add_u32 %s, %s, %d' % (s(sT2), s(sT2), 0x4000 - 64))
    A('v_mov_b32 v1, %s' % s(sT0))
    A('v_mov_b32 v2, %s' % s(sT2))
    A('v_cmp_gt_u32 vcc, 16, v0')
    A('v_cndmask_b32 v2, v2, v1, vcc')
    A('v_lshl_add_u32 v2, v0, 2, v2')
    A('v_add_u32 v2, %s, v2' % s(sT1))
    A('v_mov_b32 v3, 0')
    A('v_mov_b32 v12, 1')
    for i in range(4): A('v_mov_b32 %s, -1' % v(16 + i))
    A('s_mov_b32 %s, %d' % (s(sT0), FLAGS))
    A('buffer_store_dword v3, v2, %s, %s offen sc1' % (s(S_WS, 4), s(sT0)))
    A('s_lshl_b32 %s, %s, 11' % (s(sT0), s(sRHO)))
    A('s_add_u32 %s, %s, %d' % (s(sT0), s(sT0), HM_OFF))
    A('buffer_store_dwordx4 v[16:19], v13, %s, %s offen sc1' % (s(S_WS, 4), s(sT0)))
    A('buffer_store_dwordx4 v[16:19], v13, %s, %s offen offset:1024 sc1' % (s(S_WS, 4), s(sT0)))

sXGD = 100
def xg_load(A):
    A('s_lshl_b32 %s, %s, 2' % (s(sT0), s(sRHO)))
    A('s_add_u32 %s, %s, %s' % (s(sT0), s(sT0), s(sWAVE)))
    A('s_mul_i32 %s, %s, 9363' % (s(sT1), s(sT0)))
    A('s_lshr_b32 %s, %s, 16' % (s(sT1), s(sT1)))
    A('s_mul_i32 %s, %s, 7' % (s(sT2), s(sT1)))
    A('s_sub_u32 %s, %s, %s' % (s(sT2), s(sT0), s(sT2)))
    A('s_lshl_b32 %s, %s, 7' % (s(sT2), s(sT2)))
    A('s_lshr_b32 %s, %s, 1' % (s(sT3), s(sT1)))
    A('s_mul_i32 %s, %s, 28672' % (s(sT3), s(sT3)))
    A('s_add_u32 %s, %s, %s' % (s(sT2), s(sT2), s(sT3)))
    A('s_and_b32 %s, %s, 1' % (s(sT3), s(sT1)))
    A('s_mul_i32 %s, %s, %d' % (s(sT3), s(sT3), 4 * 896))
    A('s_add_u32 %s, %s, %s' % (s(sT2), s(sT2), s(sT3)))
    lexpr(A, 'v48', 'v0', [(2, 2, 8 * 896), (0, 2, 896), (4, 2, 16)], 0, 'v1')
    A('buffer_load_dwordx4 v[40:43], v48, %s, %s offen' % (s(S_BX, 4), s(sT2)))
    A('buffer_load_dwordx4 v[44:47], v48, %s, %s offen offset:64' % (s(S_BX, 4), s(sT2)))
    A('s_lshl_b32 %s, %s, 11' % (s(sXGD), s(sT0)))
    A('s_add_u32 %s, %s, %d' % (s(sXGD), s(sXGD), XG_OFF))
    A('s_lshr_b32 %s, %s, 1' % (s(sT1), s(sT1)))
    A('s_mul_i32 %s, %s, 14' % (s(sT2), s(sT1)))
    A('s_sub_u32 %s, %s, %s' % (s(sT0), s(sT0), s(sT2)))
    A('s_lshl_b32 %s, %s, 15' % (s(sXGD + 1), s(sT1)))
    A('s_lshl_b32 %s, %s, 11' % (s(sT2), s(sT0)))
    A('s_add_u32 %s, %s, %s' % (s(sXGD + 1), s(sXGD + 1), s(sT2)))
    A('s_add_u32 %s, %s, %d' % (s(sXGD + 1), s(sXGD + 1), XF_OFF))
    A('s_mul_i32 %s, %s, 28672' % (s(sT1), s(sT1)))
    A('s_lshr_b32 %s, %s, 1' % (s(sT2), s(sT0)))
    A('s_lshl_b32 %s, %s, 5' % (s(sT2), s(sT2)))
    A('s_add_u32 %s, %s, %s' % (s(sT1), s(sT1), s(sT2)))
    A('s_and_b32 %s, %s, 1' % (s(sT2), s(sT0)))
    A('s_mul_i32 %s, %s, 896' % (s(sT2), s(sT2)))
    A('s_add_u32 %s, %s, %s' % (s(sT1), s(sT1), s(sT2)))
    lexpr(A, 'v49', 'v0', [(3, 1, 16 * 896), (0, 2, 4 * 896), (2, 1, 2 * 896), (5, 1, 224), (4, 1, 16)], 0, 'v1')
    A('buffer_load_dwordx4 v[32:35], v49, %s, %s offen' % (s(S_BX, 4), s(sT1)))
    A('buffer_load_dwordx4 v[36:39], v49, %s, %s offen offset:448' % (s(S_BX, 4), s(sT1)))
    A('v_lshlrev_b32 v48, 4, v0')

WF = 256
vST = 4
def phase_w1(A):
    W2F = 256
    AFR = (64, 96)
    DD = (128, 160)
    PC = 192
    vSRC, vRD, vDST, vR2W, vR2R, vG2 = 16, 24, 28, 8, 9, 10
    R2 = 3 * 32768
    sB1, sCI, sRING, sCS = sO3, sSEG, sCNT, 83
    vm = ['i', 'i', 'i']
    done = [0]
    def V(x, tag):
        A(x); vm.append(tag)
    def vwait(tag):
        last = max(i for i, tg in enumerate(vm) if tg == tag)
        return 's_waitcnt vmcnt(%d)' % (len(vm) - 1 - last)
    A('s_cmp_lg_u32 %s, 0' % s(sTY))
    A('s_cbranch_scc1 L_w1_b')
    lexpr(A, v(vG2), 'v0', [(5, 1, 8192), (0, 5, 16)], 0, 'v1')
    A('s_lshl_b32 %s, %s, 2' % (s(sT0), s(sQ)))
    A('s_add_u32 %s, %s, %s' % (s(sT0), s(sT0), s(sWAVE)))
    A('s_lshl_b32 %s, %s, 17' % (s(sT0), s(sT0)))
    A('s_lshl_b32 %s, %s, 9' % (s(sT1), s(sH)))
    A('s_add_u32 %s, %s, %s' % (s(sT0), s(sT0), s(sT1)))
    for j in range(8):
        A('buffer_load_dwordx4 %s, %s, %s, %s offen' % (v(64 + 4 * j, 4), v(vG2), s(S_WK, 4), s(sT0)))
        if j < 7: A('s_add_u32 %s, %s, 16384' % (s(sT0), s(sT0)))
    A('s_branch L_w1_c')
    A.label('L_w1_b')
    if PRM['bdel']: A('s_sleep %d' % PRM['bdel'])
    lexpr(A, v(vG2), 'v0', [(3, 3, 896), (0, 3, 16)], 0, 'v1')
    A('s_mul_i32 %s, %s, 229376' % (s(sT0), s(sH)))
    A('s_mul_i32 %s, %s, %d' % (s(sT1), s(sWAVE), 64 * 896))
    A('s_add_u32 %s, %s, %s' % (s(sT0), s(sT0), s(sT1)))
    A('s_lshl_b32 %s, %s, 7' % (s(sT1), s(sQ)))
    A('s_add_u32 %s, %s, %s' % (s(sT0), s(sT0), s(sT1)))
    for j in range(8):
        A('buffer_load_dwordx4 %s, %s, %s, %s offen' % (v(64 + 4 * j, 4), v(vG2), s(S_WO, 4), s(sT0)))
        if j < 7: A('s_add_u32 %s, %s, %d' % (s(sT0), s(sT0), 8 * 896))
    A.label('L_w1_c')
    vm.extend(['w2'] * 8)
    A('v_lshrrev_b32 v1, 5, v0')
    A('v_and_b32 v2, 31, v0')
    A('v_xor_b32 v2, v2, v1')
    A('v_lshlrev_b32 v1, 13, v1')
    for j in range(8):
        g = j >> 1
        rowoff = 16 * (g >> 1) + 4 * (g & 1) + 8 * (j & 1)
        A('v_xor_b32 v3, %d, v2' % (2 * j))
        A('v_lshl_add_u32 v3, v3, 4, v1')
        A('v_add_u32 %s, %d, v3' % (v(vSRC + j), rowoff * 8192))
    A('s_lshl_b32 %s, %s, 9' % (s(sB1), s(sH)))
    A('s_lshl_b32 %s, %s, 13' % (s(sRING), s(sWAVE)))
    if PRM['wrot'] == 3:
        A('s_and_b32 %s, %s, 1' % (s(sT0), s(sQ)))
        A('s_lshl_b32 %s, %s, 2' % (s(sT0), s(sT0)))
    else: A('s_mul_i32 %s, %s, %d' % (s(sT0), s(sQ), PRM['wrot']))
    A('s_add_u32 %s, %s, %s' % (s(sT0), s(sT0), s(sWAVE)))
    for i in range(4):
        A('s_add_u32 %s, %s, %d' % (s(96 + i), s(sT0), 4 * i))
        A('s_sub_u32 %s, %s, 14' % (s(sT1), s(96 + i)))
        A('s_cmp_ge_u32 %s, 14' % s(96 + i))
        A('s_cselect_b32 %s, %s, %s' % (s(96 + i), s(sT1), s(96 + i)))
    def dma(tl):
        i, T = tl >> 1, tl & 1
        o = [('s_lshl_b32 %s, %s, 18' % (s(sO2), s(96 + i)), None), ('s_add_u32 %s, %s, %s' % (s(sO2), s(sO2), s(sB1)), None)]
        if T: o.append(('s_add_u32 %s, %s, %d' % (s(sO2), s(sO2), 2 * 8192), None))
        for j in range(8):
            o.append(('s_add_u32 m0, %s, %d' % (s(sRING), (tl & 3) * 32768 + j * 1024), None))
            o.append(('buffer_load_dwordx4 %s, %s, %s offen%s lds' % (v(vSRC + j), s(S_W1, 4), s(sO2), PRM_S['wfl']), 't%d' % tl))
        return o
    def emit(x):
        if x[1]: V(x[0], x[1])
        elif callable(x[0]): A(x[0]())
        else: A(x[0])
    for x in dma(0): emit(x)
    A(vwait('i'))
    V('buffer_atomic_add v12, v11, %s, 0 offen' % s(S_DBG, 4), 'at')
    for x in dma(1): emit(x)
    A('v_and_b32 v1, 15, v0')
    A('v_lshrrev_b32 v2, 4, v0')
    A('v_xor_b32 v2, v2, v1')
    A('v_lshl_add_u32 v1, v1, 9, %s' % s(sRING))
    for k in range(4):
        A('v_xor_b32 v3, %d, v2' % (4 * k))
        A('v_lshl_add_u32 %s, v3, 4, v1' % v(vRD + k))
    A('s_cmp_lg_u32 %s, 0' % s(sTY))
    A('s_cbranch_scc1 L_w1_b2')
    A('s_mul_i32 %s, %s, %d' % (s(sT0), s(sWAVE), 16 * 528))
    A('s_add_u32 %s, %s, %d' % (s(sT0), s(sT0), R2))
    lexpr(A, v(vR2W), 'v0', [(5, 1, 528), (0, 5, 16)], s(sT0), 'v1')
    lexpr(A, v(vR2R), 'v0', [(0, 4, 528), (4, 2, 16)], R2, 'v1')
    A('s_mul_i32 %s, %s, %d' % (s(sT0), s(sH), WCU))
    A('s_lshl_b32 %s, %s, 12' % (s(sT1), s(sQ)))
    A('s_add_u32 %s, %s, %s' % (s(sT0), s(sT0), s(sT1)))
    lexpr(A, v(vDST), 'v0', [(0, 6, 16)], s(sT0), 'v1')
    for nt in range(1, 4): A('v_add_u32 %s, %d, %s' % (v(vDST + nt), nt * 1024, v(vDST)))
    A('s_mov_b32 %s, 28672' % s(sCS))
    A(vwait('w2'))
    levent(A, 1)
    for j in range(8): A('ds_write_b128 %s, %s offset:%d' % (v(vR2W), v(64 + 4 * j, 4), j * 1056))
    A('s_waitcnt lgkmcnt(0)')
    A('s_barrier')
    for nt in range(4):
        for ks in range(8):
            A('ds_read_b128 %s, %s offset:%d' % (u(W2F + (nt * 8 + ks) * 4, 4), v(vR2R), nt * 16 * 528 + ks * 64))
            if ks % 4 == 3: A('s_waitcnt lgkmcnt(8)')
    A('s_branch L_w1_c2')
    A.label('L_w1_b2')
    A('s_mul_i32 %s, %s, %d' % (s(sT0), s(sWAVE), 64 * 144))
    A('s_add_u32 %s, %s, %d' % (s(sT0), s(sT0), R2))
    lexpr(A, v(vR2W), 'v0', [(3, 3, 144), (0, 3, 8)], s(sT0), 'v1')
    lexpr(A, v(vR2R), 'v0', [(4, 2, 8 * 144), (2, 2, 144), (0, 2, 8)], R2, 'v1')
    A('s_mul_i32 %s, %s, %d' % (s(sT0), s(sQ), 2 * WCV))
    A('s_lshl_b32 %s, %s, 11' % (s(sT1), s(sH)))
    A('s_add_u32 %s, %s, %s' % (s(sT0), s(sT0), s(sT1)))
    A('s_add_u32 %s, %s, %d' % (s(sT0), s(sT0), WIMGV))
    lexpr(A, v(vDST), 'v0', [(0, 6, 16)], s(sT0), 'v1')
    for nt in range(1, 4): A('v_add_u32 %s, %d, %s' % (v(vDST + nt), (nt & 1) * WCV + (nt >> 1) * 1024, v(vDST)))
    A('s_mov_b32 %s, 32768' % s(sCS))
    A('s_mov_b32 %s, 0x05040100' % s(sT0))
    A('s_mov_b32 %s, 0x07060302' % s(sT1))
    A(vwait('w2'))
    levent(A, 1)
    for j in range(8):
        r, o = 64 + 4 * j, 96 + 4 * j
        A('v_perm_b32 %s, %s, %s, %s' % (v(o), v(r + 1), v(r), s(sT0)))
        A('v_perm_b32 %s, %s, %s, %s' % (v(o + 1), v(r + 3), v(r + 2), s(sT0)))
        A('v_perm_b32 %s, %s, %s, %s' % (v(o + 2), v(r + 1), v(r), s(sT1)))
        A('v_perm_b32 %s, %s, %s, %s' % (v(o + 3), v(r + 3), v(r + 2), s(sT1)))
        A('ds_write_b64 %s, %s offset:%d' % (v(vR2W), v(o, 2), j * 8 * 144))
        A('ds_write_b64 %s, %s offset:%d' % (v(vR2W), v(o + 2, 2), j * 8 * 144 + 64))
        if j == 4: A('s_waitcnt lgkmcnt(4)')
    A('s_waitcnt lgkmcnt(0)')
    A('s_barrier')
    for nt in range(4):
        for ks in range(8):
            for tt in range(2):
                A('ds_read_b64_tr_b16 %s, %s offset:%d' % (u(W2F + (nt * 8 + ks) * 4 + 2 * tt, 2), v(vR2R), (32 * ks + 4 * tt) * 144 + (nt >> 1) * 64 + (nt & 1) * 32))
            if ks % 2 == 1: A('s_waitcnt lgkmcnt(8)')
    A.label('L_w1_c2')
    for x in dma(2): emit(x)
    xst = ['buffer_store_dwordx4 v[32:35], v48, %s, %s offen sc1' % (s(S_WS, 4), s(sXGD + 1)),
           'buffer_store_dwordx4 v[36:39], v48, %s, %s offen offset:1024 sc1' % (s(S_WS, 4), s(sXGD + 1)),
           'buffer_store_dwordx4 v[40:43], v48, %s, %s offen sc1' % (s(S_WS, 4), s(sXGD)),
           'buffer_store_dwordx4 v[44:47], v48, %s, %s offen offset:1024 sc1' % (s(S_WS, 4), s(sXGD))]
    def reads(tl):
        o = [((lambda tl=tl: vwait('t%d' % tl)), None)]
        for ks in range(8):
            off = (tl & 3) * 32768 + (ks >> 2) * 256
            if off > 65535: reg, off = vRD + 36 + (ks & 3), off - 65536
            else: reg = vRD + (ks & 3)
            o.append(('ds_read_b128 %s, %s offset:%d' % (v(AFR[tl & 1] + 4 * ks, 4), v(reg), off), None))
        return o
    for k in range(4): A('v_add_u32 %s, 0x10000, %s' % (v(vRD + 36 + k), v(vRD + k)))
    def post(i):
        D = DD[i & 1]
        o = [('s_mul_i32 %s, %s, %s' % (s(sT3), s(96 + i), s(sCS)), None)]
        for nt in range(4):
            for T in range(2):
                d = D + (T * 4 + nt) * 4
                for r in range(4): o.append(('v_mul_f32 %s, %s, %s' % (v(d + r), s(sSC), v(d + r)), None))
                pc = PC + (i * 4 + nt) * 4 + 2 * T
                o.append(('v_cvt_pk_bf16_f32 %s, %s, %s' % (v(pc), v(d), v(d + 1)), None))
                o.append(('v_cvt_pk_bf16_f32 %s, %s, %s' % (v(pc + 1), v(d + 2), v(d + 3)), None))
            o.append(('buffer_store_dwordx4 %s, %s, %s, %s offen %s' % (v(PC + (i * 4 + nt) * 4, 4), v(vDST + nt), s(S_WS, 4), s(sT3), ['sc1', 'sc0 sc1', 'sc1 nt'][PRM['wst']]), 'st%d' % i))
        return o
    levent(A, 2)
    for x in reads(0): emit(x)
    A('s_waitcnt lgkmcnt(0)')
    A('s_barrier')
    A('s_lshl_b32 %s, %s, 6' % (s(sT0), s(sRHO)))
    A('s_lshl_b32 %s, %s, 2' % (s(sT1), s(sWAVE)))
    A('s_add_u32 %s, %s, %s' % (s(sT0), s(sT0), s(sT1)))
    A('s_add_u32 %s, %s, %d' % (s(sT0), s(sT0), FLG_W1))
    lane0_addr(A, 'v14', s(sT0))
    q2 = []
    for tl in range(8):
        if tl == PRM['wxs']:
            A(vwait('xl'))
            for x in xst: V(x, 'xs')
        if tl == 6:
            A(vwait('xs'))
            A('s_barrier')
            A('v_mov_b32 v15, 1')
            A('v_and_b32 v13, 0xffffff7f, v11')
            V('buffer_atomic_add v15, v13, %s, 0 offen offset:%d' % (s(S_DBG, 4), (D_XG - D_INIT) * 4), 'at')
        if tl == PRM['wxl']:
            xg_load(A); vm.extend(['xl'] * 4)
        if tl == 6:
            for x in q2: emit(x)
            q2 = []
            A('s_cmp_ge_u32 %s, 2' % s(sWAVE))
            A('s_cbranch_scc0 L_w1_last')
            for x in post(2):
                if callable(x[0]): A(x[0]())
                else: A(x[0])
            A('s_branch L_w1_done')
            A.label('L_w1_last')
        A('s_waitcnt lgkmcnt(0)')
        if tl == 2: levent(A, 0)
        D = DD[(tl >> 1) & 1] + (tl & 1) * 16
        if PRM['wfast']:
            q1 = []
            for d_ in {0: [3], 2: [4], 3: [5], 4: [6], 5: [7]}.get(tl, []): q1 += dma(d_)
        else: q1 = (dma(tl + 3) if tl + 3 < 8 else [])
        qr = reads(tl + 1) if tl < 7 else []
        if tl >= 2 and tl % 2 == 0: q2 = post(tl // 2 - 1)
        if tl == 2 and PRM['wfast']:
            for x in q2: emit(x)
            q2 = []
        n = 0
        for ks in range(8):
            for nt in range(4):
                A('v_mfma_f32_16x16x32_bf16 %s, %s, %s, %s' % (v(D + 4 * nt, 4), v(AFR[tl & 1] + 4 * ks, 4), u(W2F + (nt * 8 + ks) * 4, 4), '0' if ks == 0 else v(D + 4 * nt, 4)))
                n += 1
                def pop(qq):
                    while qq:
                        x = qq.pop(0); emit(x)
                        if not callable(x[0]) and not x[0].startswith('s_'): break
                if n >= 3:
                    pop(q2); pop(q2)
                if n % PRM['wsp'] == 1: pop(q1)
                if n >= 16 and n % 2 == 0: pop(qr)
                if tl in (3, 5, 7) and n == (PRM['wfn0'] if (tl == 3 and PRM['wfast']) else PRM['wfn']):
                    A(vwait('st%d' % (tl // 2 - 1)))
                    if tl == 3: levent(A, 3)
                    A('v_mov_b32 v12, %d' % (tl // 2))
                    V('buffer_store_dword v12, v14, %s, 0 offen sc1' % s(S_WS, 4), 'fl')
        for x in q1 + qr: emit(x)
    for x in q2 + post(3): emit(x)
    A.label('L_w1_done')
    A('v_mov_b32 v9, 4')
    A('s_waitcnt vmcnt(0)')
    A('buffer_store_dword v9, v14, %s, 0 offen sc1' % s(S_WS, 4))
    event(A, 2)
    levent_flush(A, 4, 9)
    A('s_waitcnt lgkmcnt(0)')
    A('s_barrier')

def phase_w1b(A):
    PC = 192
    lexpr(A, 'v8', 'v0', [(0, 4, 912), (5, 1, 32), (4, 1, 8)], 0, 'v1')
    for i in range(4):
        if i == 3:
            A('s_cmp_ge_u32 %s, 2' % s(sWAVE))
            A('s_cbranch_scc1 L_w1b_s')
        A('s_lshl_b32 %s, %s, 6' % (s(sT0), s(96 + i)))
        for nt in range(4):
            A('s_add_u32 %s, %s, %d' % (s(sT1), s(sT0), nt * 16 * 912))
            A('v_add_u32 v9, %s, v8' % s(sT1))
            pc = PC + (i * 4 + nt) * 4
            A('ds_write2_b32 v9, %s, %s offset0:0 offset1:1' % (v(pc), v(pc + 2)))
            A('ds_write2_b32 v9, %s, %s offset0:4 offset1:5' % (v(pc + 1), v(pc + 3)))
        A('s_waitcnt lgkmcnt(4)')
    A.label('L_w1b_s')
    A('s_cmp_lg_u32 %s, 0' % s(sTY))
    A('s_cbranch_scc1 L_w1b_b')
    for nt in range(4):
        lexpr(A, v(12 + nt), 'v0', [(2, 2, 8 * 912), (0, 2, 912), (4, 2, 16)], (32 * (nt >> 1) + 4 * (nt & 1)) * 912, 'v1')
    A('s_mul_i32 %s, %s, 28672' % (s(sT0), s(sH)))
    A('s_lshl_b32 %s, %s, 11' % (s(sT1), s(sQ)))
    A('s_add_u32 %s, %s, %s' % (s(sT0), s(sT0), s(sT1)))
    lexpr(A, v(vST), 'v0', [(0, 6, 16)], s(sT0), 'v1')
    A('v_add_u32 %s, 1024, %s' % (v(vST + 1), v(vST)))
    A('v_add_u32 %s, 14336, %s' % (v(vST + 2), v(vST)))
    A('v_add_u32 %s, 15360, %s' % (v(vST + 3), v(vST)))
    A('s_mov_b32 %s, %d' % (s(sO3), YX_OFF))
    A('s_branch L_w1b_c')
    A.label('L_w1b_b')
    for nt in range(4):
        lexpr(A, v(12 + nt), 'v0', [(0, 4, 912), (4, 2, 16)], 16 * nt * 912, 'v1')
    A('s_mul_i32 %s, %s, 28672' % (s(sT0), s(sH)))
    A('s_lshl_b32 %s, %s, 12' % (s(sT1), s(sQ)))
    A('s_add_u32 %s, %s, %s' % (s(sT0), s(sT0), s(sT1)))
    lexpr(A, v(vST), 'v0', [(0, 6, 16)], s(sT0), 'v1')
    for nt in range(1, 4): A('v_add_u32 %s, %d, %s' % (v(vST + nt), (nt & 1) * 2048 + (nt >> 1) * 1024, v(vST)))
    A('s_mov_b32 %s, %d' % (s(sO3), U_OFF))
    A.label('L_w1b_c')
    A('s_waitcnt lgkmcnt(0)')
    wait_dbg(A, D_RDY, 1, 4)

def phase_w2(A, ty):
    tag = 'AB'[ty]
    D, PK = 16, 48
    vXG, vFL, vFV = 8, 9, 10
    def X(b, t, ks):
        r = 64 + b * 112 + (t * 14 + ks) * 4
        return u(r if r < 256 else r - 256 + 256 + 224, 4)
    A.label('L_w2' + tag)
    lexpr(A, v(vXG), 'v0', [(0, 6, 16)], 0, 'v1')
    A('s_lshl_b32 %s, %s, 2' % (s(sT0), s(sA)))
    A('s_add_u32 %s, %s, %s' % (s(sT0), s(sT0), s(sWAVE)))
    A('s_lshl_b32 %s, %s, 2' % (s(sT0), s(sT0)))
    A('s_add_u32 %s, %s, %d' % (s(sT0), s(sT0), FLG_W2 + ty * 1792))
    A('v_mov_b32 v1, %s' % s(sT0))
    A('v_mov_b32 v2, %d' % OOB)
    A('v_cmp_eq_u32 vcc, 0, v0')
    A('v_cndmask_b32 %s, v2, v1, vcc' % v(vFL))
    A('s_mul_i32 %s, %s, 28672' % (s(sO1), s(sWAVE)))
    A('s_add_u32 %s, %s, %d' % (s(sO1), s(sO1), XG_OFF))
    A('s_mul_i32 %s, %s, %d' % (s(sT0), s(sWAVE), 16 * 28672))
    A('s_add_u32 %s, %s, %s' % (s(sO3), s(sO3), s(sT0)))
    A('s_mov_b32 %s, 0' % s(sCNT))
    def loads(b):
        out = []
        for n in range(28):
            ks, t = n >> 1, n & 1
            off = t * 14336 + ks * 1024
            g = []
            if n % 2 == 0 or True:
                g.append('s_add_u32 %s, %s, %d' % (s(sT2), s(sO1), off & ~4095))
            g.append('buffer_load_dwordx4 %s, %s, %s, %s offen offset:%d sc1' % (X(b, t, ks), v(vXG), s(S_WS, 4), s(sT2), off & 4095))
            out.append(g)
        return out
    FK = PRM['w2f']
    drop = 'buffer_store_dword v1, v2, %s, 0 offen' % s(S_WS, 4)
    wf = ['ds_read_b128 %s, %s offset:%d' % (u(WF + (nt * 14 + ks) * 4, 4), v(12 + nt), ks * 64) for ks in range(14) for nt in range(4)]
    for n_, g in enumerate(loads(0)):
        if n_ == 2 * FK: A(drop)
        for x in g: A(x)
        A(wf[2 * n_]); A(wf[2 * n_ + 1])
        if n_ % 4 == 3: A('s_waitcnt lgkmcnt(6)')
    A('s_waitcnt lgkmcnt(0)')
    A('s_add_u32 %s, %s, %d' % (s(sO1), s(sO1), 4 * 28672))
    for _ in range(4): A(drop)
    LP = 'L_w2loop' + tag
    A.label(LP)
    for b in range(2):
        ld = loads(1 - b)
        issued = 0
        for ks in range(14):
            if ks == FK:
                A('s_waitcnt vmcnt(%d)' % issued)
                A('v_mov_b32 %s, %s' % (v(vFV), s(sCNT)))
                A('buffer_store_dword %s, %s, %s, 0 offen sc1' % (v(vFV), v(vFL), s(S_WS, 4)))
                issued += 1
            if ks < FK: A('s_waitcnt vmcnt(%d)' % min(63, 26 - 2 * ks + 1 + 4 + issued))
            for t in range(2):
                for nt in range(4):
                    d = v(D + (t * 4 + nt) * 4, 4)
                    w_, x_ = u(WF + (nt * 14 + ks) * 4, 4), X(b, t, ks)
                    a_, b_ = (w_, x_) if ty == 0 else (x_, w_)
                    A('v_mfma_f32_16x16x32_bf16 %s, %s, %s, %s' % (d, a_, b_, '0' if ks == 0 else d))
                    if nt == 1:
                        for x in ld.pop(0): A(x)
                        issued += 1
        A('s_add_u32 %s, %s, %d' % (s(sO1), s(sO1), 4 * 28672))
        for k in range(4):
            if ty == 0: t, aa = k >> 1, k & 1; d0, d1 = D + (t * 4 + 2 * aa) * 4, D + (t * 4 + 2 * aa + 1) * 4
            else: d0, d1 = D + k * 4, D + (4 + k) * 4
            A('v_cvt_pk_bf16_f32 %s, %s, %s' % (v(PK + 4 * k), v(d0), v(d0 + 1)))
            A('v_cvt_pk_bf16_f32 %s, %s, %s' % (v(PK + 4 * k + 1), v(d0 + 2), v(d0 + 3)))
            A('v_cvt_pk_bf16_f32 %s, %s, %s' % (v(PK + 4 * k + 2), v(d1), v(d1 + 1)))
            A('v_cvt_pk_bf16_f32 %s, %s, %s' % (v(PK + 4 * k + 3), v(d1 + 2), v(d1 + 3)))
            A('buffer_store_dwordx4 %s, %s, %s, %s offen sc1' % (v(PK + 4 * k, 4), v(vST + k), s(S_WS, 4), s(sO3)))
        A('s_add_u32 %s, %s, %d' % (s(sO3), s(sO3), 4 * 16 * 28672))
        A('s_add_u32 %s, %s, 1' % (s(sCNT), s(sCNT)))
    A('s_cmp_lt_u32 %s, 16' % s(sCNT))
    A('s_cbranch_scc1 %s' % LP)
    A('s_waitcnt vmcnt(0)')
    A('v_mov_b32 %s, 16' % v(vFV))
    A('buffer_store_dword %s, %s, %s, 0 offen sc1' % (v(vFV), v(vFL), s(S_WS, 4)))

def wait_flags(A, vaddr, soff, sval, sleep, tmp='v3', coarse=False):
    l = A.newlabel('L_wf')
    A.label(l)
    A('buffer_load_dword %s, %s, %s, %s offen sc1' % (tmp, vaddr, s(S_WS, 4), soff))
    A('s_waitcnt vmcnt(0)')
    A('v_cmp_gt_u32 vcc, %s, %s' % (sval, tmp))
    if coarse:
        fine = A.newlabel('L_wff')
        spin_check(A, l, ['s_cmp_ge_u32 %s, %d' % (s(sSEG), PRM['fine']), 's_cbranch_scc1 %s' % fine, 's_sleep %d' % PRM['zs'], fine + ':', 's_sleep 1'])
    else: spin_check(A, l, ['s_sleep %d' % sleep])

def load_hm(A, M, va, vb, so, mm):
    l = A.newlabel('L_hm'); l2 = A.newlabel('L_hm2'); l3 = A.newlabel('L_hm3')
    ld = ['buffer_load_dwordx4 %s, %s, %s, %s offen offset:%d sc1' % (v(M + 4 * ks, 4), va if ks < 8 else vb, s(S_WS, 4), s(so), (ks & 7) * 512) for ks in range(14)]
    A('s_sub_u32 %s, %s, %d' % (s(sT2), s(so), HM_STEP))
    A('s_cmp_ge_u32 %s, %d' % (s(sSEG), PRM['fine']))
    A('s_cselect_b32 %s, %s, %s' % (s(sT2), s(sT2), s(so)))
    A.label(l)
    A('buffer_load_dword v3, %s, %s, %s offen offset:2560 sc1' % (vb, s(S_WS, 4), s(sT2)))
    A('s_waitcnt vmcnt(0)')
    A('v_cmp_eq_u32 vcc, -1, v3')
    spin_check(A, l, ['s_sleep %d' % PRM['zs']])
    A.label(l2)
    for x in ld: A(x)
    A('s_waitcnt vmcnt(13)')
    A('v_cmp_eq_u32 vcc, -1, %s' % v(M))
    spin_check(A, l2, ['s_waitcnt vmcnt(0)'])
    levent(A, 0)
    for ks in range(14):
        A('s_waitcnt vmcnt(%d)' % (13 - ks))
        mm(ks)
        r = M + 4 * ks
        if ks == 0: A('v_max_u32 v3, %s, %s' % (v(r), v(r + 1)))
        else: A('v_max3_u32 v3, v3, %s, %s' % (v(r), v(r + 1)))
        A('v_max3_u32 v3, v3, %s, %s' % (v(r + 2), v(r + 3)))
    A('v_cmp_eq_u32 vcc, -1, v3')
    spin_check(A, l2)
    levent(A, 1)

def lane0_addr(A, dst, sreg):
    A('v_mov_b32 v1, %s' % sreg)
    A('v_mov_b32 v2, %d' % OOB)
    A('v_cmp_eq_u32 vcc, 0, v0')
    A('v_cndmask_b32 %s, v2, v1, vcc' % dst)

def phase_z(A):
    D, M = 16, 64
    vHF, vHM, vFL = 8, 9, 10
    lexpr(A, v(vHM), 'v0', [(4, 2, 128), (0, 3, 16)], 0, 'v1')
    A('v_add_u32 v11, 4096, %s' % v(vHM))
    A('s_lshl_b32 %s, %s, 5' % (s(sT0), s(sA)))
    A('s_add_u32 %s, %s, %s' % (s(sT0), s(sT0), s(sWAVE)))
    A('s_lshl_b32 %s, %s, 2' % (s(sT0), s(sT0)))
    A('s_add_u32 %s, %s, %d' % (s(sT0), s(sT0), FLG_Z))
    lane0_addr(A, v(vFL), s(sT0))
    A('s_lshr_b32 %s, %s, 2' % (s(sT0), s(sH)))
    A('s_mul_i32 %s, %s, 28672' % (s(sT0), s(sT0)))
    A('s_and_b32 %s, %s, 3' % (s(sT1), s(sH)))
    A('s_lshl_b32 %s, %s, 8' % (s(sT1), s(sT1)))
    A('s_add_u32 %s, %s, %s' % (s(sT0), s(sT0), s(sT1)))
    A('s_lshl_b32 %s, %s, 12' % (s(sT1), s(sQ)))
    A('s_add_u32 %s, %s, %s' % (s(sT0), s(sT0), s(sT1)))
    lexpr(A, 'v12', 'v0', [(0, 4, 16), (4, 1, 8)], s(sT0), 'v1')
    A('v_cmp_gt_u32 vcc, 32, v0')
    A('v_cndmask_b32 %s, v2, v12, vcc' % v(vST))
    A('s_mul_i32 %s, %s, 28672' % (s(sT0), s(sH)))
    A('s_lshl_b32 %s, %s, 12' % (s(sT1), s(sQ)))
    A('s_add_u32 %s, %s, %s' % (s(sT0), s(sT0), s(sT1)))
    A('s_add_u32 %s, %s, %d' % (s(sT0), s(sT0), U_OFF))
    lexpr(A, 'v13', 'v0', [(0, 5, 128)], s(sT0), 'v1')
    A('s_mov_b32 %s, %s' % (s(sSEG), s(sWAVE)))
    A('s_mov_b32 %s, 0' % s(sCNT))
    A.label('L_zloop')
    A('s_mul_i32 %s, %s, %d' % (s(sO1), s(sSEG), HM_STEP))
    A('s_add_u32 %s, %s, %d' % (s(sO1), s(sO1), HM_OFF))
    A('s_mul_i32 %s, %s, %d' % (s(sO2), s(sSEG), HZ_STEP))
    A('s_add_u32 %s, %s, %d' % (s(sO2), s(sO2), HZ_OFF))
    def mm(ks):
        for nt in range(4):
            d = v(D + 4 * nt, 4)
            A('v_mfma_f32_16x16x32_bf16 %s, %s, %s, %s' % (d, v(M + 4 * ks, 4), u(WF + (nt * 14 + ks) * 4, 4), '0' if ks == 0 else d))
    load_hm(A, M, v(vHM), 'v11', sO1, mm)
    for nt in range(4):
        d = D + 4 * nt
        A('v_cvt_pk_bf16_f32 %s, %s, %s' % (v(d), v(d), v(d + 1)))
        A('v_cvt_pk_bf16_f32 %s, %s, %s' % (v(d + 1), v(d + 2), v(d + 3)))
        A('buffer_store_dwordx2 %s, %s, %s, %s offen offset:%d sc1' % (v(d, 2), v(vST), s(S_WS, 4), s(sO2), (nt & 1) * 2048 + (nt >> 1) * 1024))
    A('s_add_u32 %s, %s, 1' % (s(sCNT), s(sCNT)))
    A('v_mov_b32 v3, %s' % s(sCNT))
    levent(A, 2)
    A('s_waitcnt vmcnt(0)')
    A('buffer_store_dword v3, %s, %s, 0 offen sc1' % (v(vFL), s(S_WS, 4)))
    if PRM['upd']:
        A('s_add_u32 %s, %s, %d' % (s(sT0), s(sSEG), PRM['upd']))
        A('s_min_u32 %s, %s, 63' % (s(sT0), s(sT0)))
        A('s_mul_i32 %s, %s, %d' % (s(sT0), s(sT0), 16 * 28672))
        A('buffer_load_dword v14, v13, %s, %s offen sc1' % (s(S_WS, 4), s(sT0)))
    A('s_add_u32 %s, %s, 4' % (s(sSEG), s(sSEG)))
    A('s_cmp_lt_u32 %s, 63' % s(sSEG))
    A('s_cbranch_scc1 L_zloop')

sK = 82
def post_dispatch(A):
    A('s_mov_b32 s101, 0')
    A('s_and_b32 %s, %s, 7' % (s(sK), s(sA)))
    A('s_lshr_b32 %s, %s, 3' % (s(sSEG), s(sA)))
    A('s_cmp_ge_u32 %s, 4' % s(sK))
    A('s_cbranch_scc1 L_s2')

def seg_count(A, dst):
    A('s_lshr_b32 %s, %s, 2' % (dst, s(sSEG)))
    A('s_add_u32 %s, %s, 1' % (dst, dst))
    A('s_and_b32 %s, %s, 3' % (s(sT1), s(sSEG)))
    A('s_lshl_b32 %s, %s, 2' % (s(sT1), s(sT1)))

def phase_s1(A):
    PSC = '' if PRM['ploc'] else ' sc1'
    XG_, YX_, HM_, D = 256, 256 + 112, 64, 16
    vL16, vYF, vHF, vHM, vHM2, vDL, vPX, vPM, vFL = 4, 5, 6, 7, 8, 9, 10, 11, 12
    T = 40
    sHD = sH
    A.label('L_s1')
    A('s_lshl_b32 %s, %s, 2' % (s(sHD), s(sK)))
    A('s_add_u32 %s, %s, %s' % (s(sHD), s(sHD), s(sWAVE)))
    lexpr(A, v(vL16), 'v0', [(0, 6, 16)], 0, 'v1')
    A('v_min_u32 v1, 6, v0')
    A('s_mul_i32 %s, %s, 7' % (s(sT0), s(sHD)))
    A('v_add_u32 v1, %s, v1' % s(sT0))
    A('v_lshlrev_b32 v1, 4, v1')
    A('v_add_u32 %s, %d, v1' % (v(vYF), FLG_W2))
    lexpr(A, v(vHM), 'v0', [(4, 2, 128), (0, 3, 16)], 0, 'v1')
    A('v_add_u32 %s, 4096, %s' % (v(vHM2), v(vHM)))
    lexpr(A, v(vDL), 'v0', [(2, 2, 8), (0, 2, 1)], 0, 'v1')
    A('v_lshrrev_b32 v1, 4, v0')
    A('v_lshlrev_b32 v1, 3, v1')
    A('v_sub_u32 %s, %s, v1' % (v(vDL), v(vDL)))
    A('s_lshl_b32 %s, %s, 11' % (s(sT0), s(sHD)))
    A('v_add_u32 %s, %s, %s' % (v(vPX), s(sT0), v(vL16)))
    A('s_lshl_b32 %s, %s, 11' % (s(sT0), s(sK)))
    A('s_lshl_b32 %s, %s, 8' % (s(sT1), s(sWAVE)))
    A('s_add_u32 %s, %s, %s' % (s(sT0), s(sT0), s(sT1)))
    A('s_add_u32 %s, %s, %d' % (s(sT0), s(sT0), 16 * 2048))
    lexpr(A, 'v13', 'v0', [(0, 4, 16), (4, 1, 8)], s(sT0), 'v1')
    A('v_mov_b32 v2, %d' % OOB)
    A('v_cmp_gt_u32 vcc, 32, v0')
    A('v_cndmask_b32 %s, v2, v13, vcc' % v(vPM))
    A('s_lshl_b32 %s, %s, 5' % (s(sT0), s(sA)))
    A('s_add_u32 %s, %s, %s' % (s(sT0), s(sT0), s(sWAVE)))
    A('s_lshl_b32 %s, %s, 2' % (s(sT0), s(sT0)))
    A('s_add_u32 %s, %s, %d' % (s(sT0), s(sT0), FLG_P))
    lane0_addr(A, v(vFL), s(sT0))
    A('v_mov_b32 v14, 0x%x' % f2u(-1.0e9 * 1.4426950408889634))
    A('v_mov_b32 v15, 0xff800000')
    A.label('L_s1loop')
    seg_count(A, s(sT0))
    wait_flags(A, v(vYF), s(sT1), s(sT0), 16)
    A('s_mul_i32 %s, %s, 28672' % (s(sO1), s(sSEG)))
    A('s_add_u32 %s, %s, %d' % (s(sO1), s(sO1), XG_OFF))
    A('s_lshl_b32 %s, %s, 4' % (s(sO2), s(sSEG)))
    A('s_add_u32 %s, %s, %s' % (s(sO2), s(sO2), s(sHD)))
    A('s_mul_i32 %s, %s, 28672' % (s(sO2), s(sO2)))
    A('s_add_u32 %s, %s, %d' % (s(sO2), s(sO2), YX_OFF))
    for ks in range(14):
        for base, so in ((XG_, sO1), (YX_, sO2)):
            for t in range(2):
                off = t * 14336 + ks * 1024
                A('s_add_u32 %s, %s, %d' % (s(sT2), s(so), off & ~4095))
                A('buffer_load_dwordx4 %s, %s, %s, %s offen offset:%d sc1' % (u(base + (t * 14 + ks) * 4, 4), v(vL16), s(S_WS, 4), s(sT2), off & 4095))
    def Dr(qt, t): return D + (qt * 3 + t) * 4
    for ks in range(14):
        A('s_waitcnt vmcnt(%d)' % (52 - 4 * ks))
        for qt in range(2):
            for t in range(2):
                d = v(Dr(qt, t), 4)
                A('v_mfma_f32_16x16x32_bf16 %s, %s, %s, %s' % (d, u(XG_ + (t * 14 + ks) * 4, 4), u(YX_ + (qt * 14 + ks) * 4, 4), '0' if ks == 0 else d))
    for qt in range(2):
        for t in range(2):
            for r in range(4):
                A('v_cmp_le_i32 vcc, %d, %s' % (4 * (t - qt) + r, v(vDL)))
                A('v_cndmask_b32 %s, v14, %s, vcc' % (v(Dr(qt, t) + r), v(Dr(qt, t) + r)))
        d = Dr(qt, 0)
        A('v_max3_f32 %s, %s, %s, %s' % (v(T + qt), v(d), v(d + 1), v(d + 2)))
        A('v_max3_f32 %s, %s, %s, %s' % (v(T + qt), v(T + qt), v(d + 3), v(d + 4)))
        A('v_max3_f32 %s, %s, %s, %s' % (v(T + qt), v(T + qt), v(d + 5), v(d + 6)))
        A('v_max_f32 %s, %s, %s' % (v(T + qt), v(T + qt), v(d + 7)))
    A('s_mul_i32 %s, %s, %d' % (s(sO1), s(sSEG), HM_STEP))
    A('s_add_u32 %s, %s, %d' % (s(sO1), s(sO1), HM_OFF))
    A('s_mul_i32 %s, %s, 40960' % (s(sO3), s(sSEG)))
    A('s_add_u32 %s, %s, %d' % (s(sO3), s(sO3), PP_OFF))
    def mm(ks):
        for qt in range(2):
            d = v(Dr(qt, 2), 4)
            A('v_mfma_f32_16x16x32_bf16 %s, %s, %s, %s' % (d, v(HM_ + 4 * ks, 4), u(YX_ + (qt * 14 + ks) * 4, 4), '0' if ks == 0 else d))
    load_hm(A, HM_, v(vHM), v(vHM2), sO1, mm)
    A('v_cmp_gt_u32 vcc, 32, v0')
    def xred(op):
        for sw in ('v_permlane16_swap_b32', 'v_permlane32_swap_b32'):
            for qt in range(2): A('v_mov_b32 %s, %s' % (v(T + 2 + qt), v(T + qt)))
            for qt in range(2): A('%s %s, %s' % (sw, v(T + qt), v(T + 2 + qt)))
            for qt in range(2): A('%s %s, %s, %s' % (op, v(T + qt), v(T + qt), v(T + 2 + qt)))
    for qt in range(2):
        d = Dr(qt, 2)
        for r in range(4): A('v_cndmask_b32 %s, v15, %s, vcc' % (v(d + r), v(d + r)))
        A('v_max3_f32 %s, %s, %s, %s' % (v(T + qt), v(T + qt), v(d), v(d + 1)))
        A('v_max3_f32 %s, %s, %s, %s' % (v(T + qt), v(T + qt), v(d + 2), v(d + 3)))
    xred('v_max_f32')
    for qt in range(2):
        d = Dr(qt, 0)
        for i in range(12): A('v_sub_f32 %s, %s, %s' % (v(d + i), v(d + i), v(T + qt)))
        for i in range(12): A('v_exp_f32 %s, %s' % (v(d + i), v(d + i)))
    for qt in range(2):
        d = Dr(qt, 0)
        A('v_add_f32 %s, %s, %s' % (v(T + qt), v(d), v(d + 1)))
        for i in range(2, 12): A('v_add_f32 %s, %s, %s' % (v(T + qt), v(T + qt), v(d + i)))
    xred('v_add_f32')
    for qt in range(2): A('v_rcp_f32 %s, %s' % (v(T + qt), v(T + qt)))
    for qt in range(2):
        d = Dr(qt, 0); o = T + 4 + 8 * qt
        for i in range(12): A('v_mul_f32 %s, %s, %s' % (v(d + i), v(d + i), v(T + qt)))
        for i in range(6): A('v_cvt_pk_bf16_f32 %s, %s, %s' % (v(o + i), v(d + 2 * i), v(d + 2 * i + 1)))
        A('buffer_store_dwordx4 %s, %s, %s, %s offen offset:%d%s' % (v(o, 4), v(vPX), s(S_WS, 4), s(sO3), qt * 1024, PSC))
        A('buffer_store_dwordx2 %s, %s, %s, %s offen offset:%d%s' % (v(o + 4, 2), v(vPM), s(S_WS, 4), s(sO3), qt * 1024, PSC))
    A('s_add_u32 s101, s101, 1')
    A('v_mov_b32 v3, s101')
    levent(A, 2)
    A('s_waitcnt vmcnt(0)')
    A('buffer_store_dword v3, %s, %s, 0 offen%s' % (v(vFL), s(S_WS, 4), PSC))
    A('s_add_u32 %s, %s, 14' % (s(sSEG), s(sSEG)))
    A('s_cmp_lt_u32 %s, 64' % s(sSEG))
    A('s_cbranch_scc1 L_s1loop')

def phase_s2(A):
    U_, Z_, P_, D = 256, 64, 128, 16
    vV, vGF, vPF, vP, vO, vO2 = 4, 5, 6, 7, 8, 9
    A.label('L_s2')
    A('s_sub_u32 %s, %s, 4' % (s(sK), s(sK)))
    A('s_lshl_b32 %s, %s, 1' % (s(sT3), s(sK)))
    A('s_lshr_b32 %s, %s, 1' % (s(sT0), s(sWAVE)))
    A('s_add_u32 %s, %s, %s' % (s(sT3), s(sT3), s(sT0)))
    A('s_cmp_ge_u32 %s, 7' % s(sT3))
    A('s_cbranch_scc1 L_exit')
    A('s_lshl_b32 %s, %s, 12' % (s(sT0), s(sT3)))
    lexpr(A, v(vV), 'v0', [(0, 6, 16)], s(sT0), 'v1')
    A('s_lshl_b32 %s, %s, 4' % (s(sT0), s(sT3)))
    lexpr(A, v(vGF), 'v0', [(0, 4, 112)], s(sT0), 'v1')
    A('s_andn2_b32 %s, %s, 7' % (s(sT0), s(sA)))
    A('s_lshl_b32 %s, %s, 7' % (s(sT0), s(sT0)))
    A('s_add_u32 %s, %s, %d' % (s(sT0), s(sT0), FLG_P))
    lexpr(A, v(vPF), 'v0', [(2, 2, 128), (0, 2, 4)], s(sT0), 'v1')
    A('s_and_b32 %s, %s, 1' % (s(sT4), s(sWAVE)))
    A('s_lshl_b32 %s, %s, 10' % (s(sT0), s(sT4)))
    lexpr(A, v(vP), 'v0', [(0, 6, 16)], s(sT0), 'v1')
    A('s_mul_i32 %s, %s, %d' % (s(sT0), s(sT4), 4 * 1792))
    A('s_lshl_b32 %s, %s, 7' % (s(sT1), s(sT3)))
    A('s_add_u32 %s, %s, %s' % (s(sT0), s(sT0), s(sT1)))
    A('s_add_u32 %s, %s, 896' % (s(sT0), s(sT0)))
    lexpr(A, v(vO), 'v0', [(2, 2, 8 * 1792), (0, 2, 1792), (4, 2, 16)], s(sT0), 'v1')
    A.label('L_s2loop')
    seg_count(A, s(sCNT))
    A('s_add_u32 %s, %s, %d' % (s(sO3), s(sT1), FLG_Z))
    A('s_add_u32 %s, %s, %d' % (s(sT1), s(sT1), FLG_W2 + 1792))
    wait_flags(A, v(vGF), s(sT1), s(sCNT), 16)
    A('s_mul_i32 %s, %s, %d' % (s(sO1), s(sSEG), 16 * 28672))
    A('s_add_u32 %s, %s, %d' % (s(sO1), s(sO1), U_OFF))
    for c in range(16):
        for tl in range(4):
            A('buffer_load_dwordx4 %s, %s, %s, %s offen offset:%d sc1' % (u(U_ + (c * 4 + tl) * 4, 4), v(vV), s(S_WS, 4), s(sO1), tl * 1024))
        A('s_add_u32 %s, %s, 28672' % (s(sO1), s(sO1)))
        if c == 11: A('s_waitcnt vmcnt(32)')
    A('s_mul_i32 %s, %s, %d' % (s(sT2), s(sSEG), HM_STEP))
    A('s_add_u32 %s, %s, %d' % (s(sT2), s(sT2), HM_OFF))
    A('v_mov_b32 v10, 0')
    lp = A.newlabel('L_s2p'); A.label(lp)
    A('buffer_load_dword v3, v10, %s, %s offen sc1' % (s(S_WS, 4), s(sT2)))
    A('s_waitcnt vmcnt(0)')
    A('v_cmp_eq_u32 vcc, -1, v3')
    spin_check(A, lp, ['s_sleep %d' % PRM['zs']])
    A('s_add_u32 s101, s101, 1')
    A('v_lshl_add_u32 v10, %s, 3, %s' % (v(vGF), s(sO3)))
    A('v_and_b32 v1, 16, v0')
    A('v_cmp_eq_u32 vcc, 0, v1')
    A('v_cndmask_b32 v10, %s, v10, vcc' % v(vPF))
    A('v_mov_b32 v11, %s' % s(sCNT))
    A('v_mov_b32 v1, s101')
    A('v_cndmask_b32 v11, v1, v11, vcc')
    A('s_mul_i32 %s, %s, %d' % (s(sO1), s(sSEG), HZ_STEP))
    A('s_add_u32 %s, %s, %d' % (s(sO1), s(sO1), HZ_OFF))
    A('s_mul_i32 %s, %s, 40960' % (s(sO2), s(sSEG)))
    A('s_add_u32 %s, %s, %d' % (s(sO2), s(sO2), PP_OFF))
    levent(A, 0)
    wait_flags(A, 'v10', '0', 'v11', 1, coarse=True)
    levent(A, 1)
    for c in range(20):
        A('buffer_load_dwordx4 %s, %s, %s, %s offen offset:%d sc1' % (v(P_ + 4 * c, 4), v(vP), s(S_WS, 4), s(sO2), (c & 1) * 2048))
        if c & 1: A('s_add_u32 %s, %s, 4096' % (s(sO2), s(sO2)))
    for c in range(4):
        for tl in range(4):
            A('buffer_load_dwordx4 %s, %s, %s, %s offen offset:%d sc1' % (v(Z_ + (c * 4 + tl) * 4, 4), v(vV), s(S_WS, 4), s(sO1), tl * 1024))
        A('s_add_u32 %s, %s, 28672' % (s(sO1), s(sO1)))
    for c in range(20):
        A('s_waitcnt vmcnt(%d)' % (35 - c if c < 16 else 12 - 4 * (c - 16)))
        for tl in range(4):
            d = v(D + 4 * tl, 4)
            a_ = u(U_ + (c * 4 + tl) * 4, 4) if c < 16 else v(Z_ + ((c - 16) * 4 + tl) * 4, 4)
            A('v_mfma_f32_16x16x32_bf16 %s, %s, %s, %s' % (d, a_, v(P_ + 4 * c, 4), '0' if c == 0 else d))
    levent(A, 2)
    A('s_mul_i32 %s, %s, %d' % (s(sO1), s(sSEG), 32 * 1792))
    for b in range(2):
        e, o, pk = D + 8 * b, D + 8 * b + 4, 32 + 4 * b
        for r in range(4): A('v_cvt_pk_bf16_f32 %s, %s, %s' % (v(pk + r), v(e + r), v(o + r)))
        A('buffer_store_dwordx4 %s, %s, %s, %s offen offset:%d' % (v(pk, 4), v(vO), s(S_OUT, 4), s(sO1), 64 * b))
    A('s_add_u32 %s, %s, 14' % (s(sSEG), s(sSEG)))
    A('s_cmp_lt_u32 %s, 64' % s(sSEG))
    A('s_cbranch_scc1 L_s2loop')

def phase_post(A):
    XG_, YX_, Z_, HM_, U_, D, PF = 256, 256 + 112, 256 + 168, 64, 128, 16, 64
    vL16, vF1, vHM, vHM2, vDL, vPX, vPM, vFL, vPF, vZF, vV, vO = 4, 5, 6, 7, 8, 9, 10, 11, 12, 13, 60, 61
    T = 40
    sHD, sQT, sTK = sH, sQ, 101
    A('s_barrier')
    A('s_mov_b32 %s, 0' % s(sTK))
    A('s_and_b32 %s, %s, 7' % (s(sK), s(sA)))
    A('s_lshr_b32 %s, %s, 3' % (s(sSEG), s(sA)))
    A('s_and_b32 %s, %s, 1' % (s(sQT), s(sK)))
    A('s_lshr_b32 %s, %s, 1' % (s(sK), s(sK)))
    A('s_lshl_b32 %s, %s, 2' % (s(sHD), s(sK)))
    A('s_add_u32 %s, %s, %s' % (s(sHD), s(sHD), s(sWAVE)))
    A('s_min_u32 %s, %s, 13' % (s(sT3), s(sHD)))
    lexpr(A, v(vL16), 'v0', [(0, 6, 16)], 0, 'v1')
    A('s_lshr_b32 %s, %s, 1' % (s(sT0), s(sT3)))
    lexpr(A, 'v16', 'v0', [(0, 4, 7)], s(sT0), 'v1')
    A('v_lshlrev_b32 %s, 7, v16' % v(vZF))
    A('v_add_u32 %s, %d, %s' % (v(vZF), FLG_Z, v(vZF)))
    A('v_add_u32 v16, 112, v16')
    A('v_and_b32 v1, 7, v0')
    A('v_min_u32 v1, 6, v1')
    A('s_mul_i32 %s, %s, 7' % (s(sT0), s(sHD)))
    A('v_add_u32 v1, %s, v1' % s(sT0))
    A('v_cmp_gt_u32 vcc, 16, v0')
    A('v_cndmask_b32 v1, v1, v16, vcc')
    A('v_lshlrev_b32 v1, 4, v1')
    A('v_add_u32 %s, %d, v1' % (v(vF1), FLG_W2))
    lexpr(A, v(vHM), 'v0', [(4, 2, 128), (0, 3, 16)], 0, 'v1')
    A('v_add_u32 %s, 4096, %s' % (v(vHM2), v(vHM)))
    A('s_lshl_b32 %s, %s, 2' % (s(sT0), s(sQT)))
    lexpr(A, v(vDL), 'v0', [(2, 2, 8), (0, 2, 1)], s(sT0), 'v1')
    A('v_lshrrev_b32 v1, 4, v0')
    A('v_lshlrev_b32 v1, 3, v1')
    A('v_sub_u32 %s, %s, v1' % (v(vDL), v(vDL)))
    A('s_mul_i32 %s, %s, 20480' % (s(sT2), s(sQT)))
    A('s_lshl_b32 %s, %s, 10' % (s(sT0), s(sHD)))
    A('s_add_u32 %s, %s, %s' % (s(sT0), s(sT0), s(sT2)))
    A('v_add_u32 %s, %s, %s' % (v(vPX), s(sT0), v(vL16)))
    A('s_lshl_b32 %s, %s, 10' % (s(sT0), s(sK)))
    A('s_lshl_b32 %s, %s, 8' % (s(sT1), s(sWAVE)))
    A('s_add_u32 %s, %s, %s' % (s(sT0), s(sT0), s(sT1)))
    A('s_add_u32 %s, %s, %s' % (s(sT0), s(sT0), s(sT2)))
    A('s_add_u32 %s, %s, %d' % (s(sT0), s(sT0), 16 * 1024))
    lexpr(A, 'v16', 'v0', [(0, 4, 16), (4, 1, 8)], s(sT0), 'v1')
    A('v_mov_b32 v2, %d' % OOB)
    A('v_cmp_gt_u32 vcc, 32, v0')
    A('v_cndmask_b32 %s, v2, v16, vcc' % v(vPM))
    A('s_mul_i32 %s, %s, 5120' % (s(sSC), s(sWAVE)))
    A('s_add_u32 %s, %s, %s' % (s(83), s(sSC), s(sT2)))
    A('s_lshl_b32 %s, %s, 5' % (s(sT0), s(sA)))
    A('s_add_u32 %s, %s, %s' % (s(sT0), s(sT0), s(sWAVE)))
    A('s_lshl_b32 %s, %s, 2' % (s(sT0), s(sT0)))
    A('s_add_u32 %s, %s, %d' % (s(sT0), s(sT0), FLG_P))
    lane0_addr(A, v(vFL), s(sT0))
    A('s_andn2_b32 %s, %s, 6' % (s(sT0), s(sA)))
    A('s_lshl_b32 %s, %s, 7' % (s(sT0), s(sT0)))
    A('s_add_u32 %s, %s, %d' % (s(sT0), s(sT0), FLG_P))
    lexpr(A, v(vPF), 'v0', [(2, 2, 256), (0, 2, 4)], s(sT0), 'v1')
    A('s_lshl_b32 %s, %s, 11' % (s(sT0), s(sT3)))
    A('v_add_u32 %s, %s, %s' % (v(vV), s(sT0), v(vL16)))
    A('s_mul_i32 %s, %s, %d' % (s(sT0), s(sQT), 4 * 1792))
    A('s_lshl_b32 %s, %s, 6' % (s(sT1), s(sT3)))
    A('s_add_u32 %s, %s, %s' % (s(sT0), s(sT0), s(sT1)))
    A('s_add_u32 %s, %s, 896' % (s(sT0), s(sT0)))
    A('s_cmp_lt_u32 %s, 14' % s(sHD))
    A('s_cselect_b32 %s, %s, 0x70000000' % (s(sT0), s(sT0)))
    lexpr(A, v(vO), 'v0', [(2, 2, 8 * 1792), (0, 2, 1792), (4, 2, 16)], s(sT0), 'v1')
    A('v_mov_b32 v14, 0x%x' % f2u(-1.0e9 * 1.4426950408889634))
    A('v_mov_b32 v15, 0xff800000')
    A.label('L_ploop')
    seg_count(A, s(sCNT))
    A('s_mov_b32 %s, %s' % (s(sT4), s(sT1)))
    wait_flags(A, v(vF1), s(sT1), s(sCNT), 16)
    A('s_mul_i32 %s, %s, 28672' % (s(sO1), s(sSEG)))
    A('s_add_u32 %s, %s, %d' % (s(sO1), s(sO1), XG_OFF))
    A('s_lshl_b32 %s, %s, 4' % (s(sO2), s(sSEG)))
    A('s_add_u32 %s, %s, %s' % (s(sO2), s(sO2), s(sHD)))
    A('s_lshl_b32 %s, %s, 1' % (s(sO2), s(sO2)))
    A('s_add_u32 %s, %s, %s' % (s(sO2), s(sO2), s(sQT)))
    A('s_mul_i32 %s, %s, 14336' % (s(sO2), s(sO2)))
    A('s_add_u32 %s, %s, %d' % (s(sO2), s(sO2), YX_OFF))
    for ks in range(14):
        for dst, so, off in ((YX_ + ks * 4, sO2, ks * 1024), (XG_ + ks * 4, sO1, ks * 1024), (XG_ + (14 + ks) * 4, sO1, 14336 + ks * 1024)):
            A('s_add_u32 %s, %s, %d' % (s(sT2), s(so), off & ~4095))
            A('buffer_load_dwordx4 %s, %s, %s, %s offen offset:%d sc1' % (u(dst, 4), v(vL16), s(S_WS, 4), s(sT2), off & 4095))
    A('s_mul_i32 %s, %s, %d' % (s(sO1), s(sSEG), 16 * 28672))
    A('s_add_u32 %s, %s, %d' % (s(sO1), s(sO1), U_OFF))
    nu = 0
    def uload(c):
        for tl in range(2):
            A('buffer_load_dwordx4 %s, %s, %s, %s offen offset:%d sc1' % (v(U_ + (c * 2 + tl) * 4, 4), v(vV), s(S_WS, 4), s(sO1), tl * 1024))
        A('s_add_u32 %s, %s, 28672' % (s(sO1), s(sO1)))
    for ks in range(14):
        A('s_waitcnt vmcnt(%d)' % (39 - 3 * ks + nu))
        for t in range(2):
            d = v(D + 4 * t, 4)
            A('v_mfma_f32_16x16x32_bf16 %s, %s, %s, %s' % (d, u(XG_ + (t * 14 + ks) * 4, 4), u(YX_ + ks * 4, 4), '0' if ks == 0 else d))
        uload(ks); nu += 2
    uload(14); uload(15)
    for t in range(2):
        for r in range(4):
            A('v_cmp_le_i32 vcc, %d, %s' % (4 * t + r, v(vDL)))
            A('v_cndmask_b32 %s, v14, %s, vcc' % (v(D + 4 * t + r), v(D + 4 * t + r)))
    A('v_max3_f32 %s, %s, %s, %s' % (v(T), v(D), v(D + 1), v(D + 2)))
    A('v_max3_f32 %s, %s, %s, %s' % (v(T), v(T), v(D + 3), v(D + 4)))
    A('v_max3_f32 %s, %s, %s, %s' % (v(T), v(T), v(D + 5), v(D + 6)))
    A('v_max_f32 %s, %s, %s' % (v(T), v(T), v(D + 7)))
    A('s_mul_i32 %s, %s, %d' % (s(sO1), s(sSEG), HM_STEP))
    A('s_add_u32 %s, %s, %d' % (s(sO1), s(sO1), HM_OFF))
    A('s_mul_i32 %s, %s, 40960' % (s(sO3), s(sSEG)))
    A('s_add_u32 %s, %s, %d' % (s(sO3), s(sO3), PP_OFF))
    A('buffer_load_dword v36, %s, %s, %s offen sc1' % (v(vPX), s(S_WS, 4), s(sO3)))
    A('buffer_load_dword v36, %s, %s, %s offen sc1' % (v(vPM), s(S_WS, 4), s(sO3)))
    A('v_add_u32 v62, %s, %s' % (s(sT4), v(vZF)))
    A('s_cmp_lg_u32 %s, 63' % s(sSEG))
    A('s_cbranch_scc1 L_pz63')
    A('s_min_u32 %s, %s, 13' % (s(sT0), s(sHD)))
    A('s_lshl_b32 %s, %s, 9' % (s(sT0), s(sT0)))
    A('s_add_u32 %s, %s, %d' % (s(sT0), s(sT0), FLG_W1 + 32))
    lexpr(A, 'v62', 'v0', [(0, 2, 128)], s(sT0), 'v1')
    A.label('L_pz63')
    A('v_and_b32 v1, 16, v0')
    A('v_cmp_eq_u32 vcc, 0, v1')
    A('v_cndmask_b32 v62, %s, v62, vcc' % v(vPF))
    A('s_add_u32 %s, %s, 1' % (s(sT0), s(sTK)))
    A('v_mov_b32 v63, %s' % s(sCNT))
    A('v_mov_b32 v1, %s' % s(sT0))
    A('v_cndmask_b32 v63, v1, v63, vcc')
    def mm(ks):
        d = v(D + 8, 4)
        A('v_mfma_f32_16x16x32_bf16 %s, %s, %s, %s' % (d, v(HM_ + 4 * ks, 4), u(YX_ + ks * 4, 4), '0' if ks == 0 else d))
    load_hm(A, HM_, v(vHM), v(vHM2), sO1, mm)
    A('v_cmp_gt_u32 vcc, 32, v0')
    def xred(op):
        for sw in ('v_permlane16_swap_b32', 'v_permlane32_swap_b32'):
            A('v_mov_b32 %s, %s' % (v(T + 1), v(T)))
            A('%s %s, %s' % (sw, v(T), v(T + 1)))
            A('%s %s, %s, %s' % (op, v(T), v(T), v(T + 1)))
    for r in range(4): A('v_cndmask_b32 %s, v15, %s, vcc' % (v(D + 8 + r), v(D + 8 + r)))
    A('v_max3_f32 %s, %s, %s, %s' % (v(T), v(T), v(D + 8), v(D + 9)))
    A('v_max3_f32 %s, %s, %s, %s' % (v(T), v(T), v(D + 10), v(D + 11)))
    xred('v_max_f32')
    for i in range(12): A('v_sub_f32 %s, %s, %s' % (v(D + i), v(D + i), v(T)))
    for i in range(12): A('v_exp_f32 %s, %s' % (v(D + i), v(D + i)))
    A('v_pk_add_f32 %s, %s, %s' % (v(T + 2, 2), v(D, 2), v(D + 2, 2)))
    for i in range(4, 12, 2): A('v_pk_add_f32 %s, %s, %s' % (v(T + 2, 2), v(T + 2, 2), v(D + i, 2)))
    A('v_add_f32 %s, %s, %s' % (v(T), v(T + 2), v(T + 3)))
    xred('v_add_f32')
    A('v_rcp_f32 %s, %s' % (v(T), v(T)))
    o = T + 4
    for i in range(0, 12, 2):
        A('v_pk_mul_f32 %s, %s, %s op_sel_hi:[1,0]' % (v(D + i, 2), v(D + i, 2), v(T, 2)))
        A('v_cvt_pk_bf16_f32 %s, %s, %s' % (v(o + i // 2), v(D + i), v(D + i + 1)))
    A('buffer_store_dwordx4 %s, %s, %s, %s offen' % (v(o, 4), v(vPX), s(S_WS, 4), s(sO3)))
    A('buffer_store_dwordx2 %s, %s, %s, %s offen' % (v(o + 4, 2), v(vPM), s(S_WS, 4), s(sO3)))
    A('s_add_u32 %s, %s, 1' % (s(sTK), s(sTK)))
    A('v_mov_b32 v3, %s' % s(sTK))
    A('s_add_u32 %s, %s, %s' % (s(sO3), s(sO3), s(83)))
    A('s_add_u32 %s, %s, 4096' % (s(sO2), s(sO3)))
    A('s_mul_i32 %s, %s, %d' % (s(sO1), s(sSEG), HZ_STEP))
    A('s_add_u32 %s, %s, %d' % (s(sO1), s(sO1), HZ_OFF))
    A('s_waitcnt vmcnt(0)')
    A('buffer_store_dword v3, %s, %s, 0 offen' % (v(vFL), s(S_WS, 4)))
    levent(A, 2)
    zp = 'buffer_load_dword v3, v62, %s, 0 offen sc1' % s(S_WS, 4)
    A.label('L_pp')
    A(zp)
    A('s_waitcnt vmcnt(0)')
    A('v_cmp_gt_u32 vcc, v63, v3')
    A('s_and_b32 %s, vcc_lo, 0xffff' % s(sT3))
    A('s_lshr_b32 vcc_lo, vcc_lo, 16')
    A('s_mov_b32 vcc_hi, 0')
    A('s_cmp_lg_u32 vcc_lo, 0')
    A('s_cbranch_scc1 L_pp_r')
    STUBS.append(('L_pp_r', 'L_pp', ['s_sleep 1']))
    A('s_mov_b32 m0, %s' % s(sSC))
    for i in range(4): A('buffer_load_dwordx4 %s, %s, %s offen offset:%d sc1 lds' % (v(vL16), s(S_WS, 4), s(sO3), i * 1024))
    A('s_add_u32 m0, %s, 4096' % s(sSC))
    A('buffer_load_dwordx4 %s, %s, %s offen sc1 lds' % (v(vL16), s(S_WS, 4), s(sO2)))
    def zloads():
        for c in range(4):
            for tl in range(2):
                A('buffer_load_dwordx4 %s, %s, %s, %s offen offset:%d sc1' % (u(Z_ + (c * 2 + tl) * 4, 4), v(vV), s(S_WS, 4), s(sO1), tl * 1024))
            if c < 3: A('s_add_u32 %s, %s, 28672' % (s(sO1), s(sO1)))
    A('s_cmp_lg_u32 %s, 0' % s(sT3))
    A('s_cbranch_scc1 L_pz0')
    zloads()
    A('s_waitcnt vmcnt(8)')
    A('s_barrier')
    A('s_branch L_pz2')
    A.label('L_pz0')
    A(zp)
    A('s_waitcnt vmcnt(1)')
    A('s_barrier')
    A('s_waitcnt vmcnt(0)')
    A.label('L_pz')
    A('v_cmp_gt_u32 vcc, v63, v3')
    fine = A.newlabel('L_pzf')
    spin_check(A, 'L_pz', ['s_cmp_ge_u32 %s, %d' % (s(sSEG), PRM['fine']), 's_cbranch_scc1 %s' % fine, 's_sleep %d' % PRM['zs'], fine + ':', zp, 's_waitcnt vmcnt(0)'])
    zloads()
    A.label('L_pz2')
    def pread(c): return 'ds_read_b128 %s, %s offset:%d' % (v(PF + 4 * (c % 12), 4), v(vL16), c * 1024)
    for c in range(10): A(pread(c))
    for c in range(20):
        if c >= 16: A('s_waitcnt vmcnt(%d)' % (6 - 2 * (c - 16)))
        A('s_waitcnt lgkmcnt(%d)' % min(9, 19 - c))
        for tl in range(2):
            d = v(D + 4 * tl, 4)
            a_ = v(U_ + (c * 2 + tl) * 4, 4) if c < 16 else u(Z_ + ((c - 16) * 2 + tl) * 4, 4)
            A('v_mfma_f32_16x16x32_bf16 %s, %s, %s, %s' % (d, a_, v(PF + 4 * (c % 12), 4), '0' if c == 0 else d))
        if c + 10 < 20: A(pread(c + 10))
    A('s_mul_i32 %s, %s, %d' % (s(sO1), s(sSEG), 32 * 1792))
    for r in range(4): A('v_cvt_pk_bf16_f32 %s, %s, %s' % (v(32 + r), v(D + r), v(D + 4 + r)))
    A('buffer_store_dwordx4 v[32:35], %s, %s, %s offen' % (v(vO), s(S_OUT, 4), s(sO1)))
    A('s_add_u32 %s, %s, 14' % (s(sSEG), s(sSEG)))
    A('s_cmp_lt_u32 %s, 64' % s(sSEG))
    A('s_cbranch_scc1 L_ploop')

LOG2E = 1.4426950408889634
def phase_a1(A):
    ST = 208
    def WQ(x, tl, ks):
        i = ((x * 2 + tl) * 14 + ks) * 4
        return a(i, 4) if i < 256 else v(176 + i - 256, 4)
    def WQh(x, tl, ks, t):
        i = ((x * 2 + tl) * 14 + ks) * 4 + 2 * t
        return a(i, 2) if i < 256 else v(176 + i - 256, 2)
    X_, D, KV, PQ = 120, 16, 64, 80
    T = 104
    vG, vW, vR, vR2, vX = 4, 5, 6, 7, 8
    sBLK, sI = sSEG, sCNT
    A('s_barrier')
    lexpr(A, v(vG), 'v0', [(2, 4, 2688), (0, 2, 16)], 0, 'v1')
    A('s_mul_i32 %s, %s, %d' % (s(sO1), s(sWAVE), 112 * 2688))
    A('s_mul_i32 %s, %s, 56' % (s(sT0), s(sH)))
    A('s_add_u32 %s, %s, %s' % (s(sO1), s(sO1), s(sT0)))
    for j in range(21):
        A('buffer_load_dwordx4 %s, %s, %s, %s offen offset:%d' % (v(16 + 4 * j, 4), v(vG), s(S_AW, 4), s(sO1), (j % 3) * 896))
        if j % 3 == 2: A('s_add_u32 %s, %s, %d' % (s(sO1), s(sO1), 16 * 2688))
    A('s_mul_i32 %s, %s, %d' % (s(sT0), s(sWAVE), 112 * ST))
    lexpr(A, v(vW), 'v0', [(2, 4, ST), (0, 2, 16)], s(sT0), 'v1')
    for j in range(21):
        A('s_waitcnt vmcnt(%d)' % (20 - j))
        A('ds_write_b128 %s, %s offset:%d' % (v(vW), v(16 + 4 * j, 4), (j // 3) * 16 * ST + (j % 3) * 64))
        if j % 6 == 5: A('s_waitcnt lgkmcnt(6)')
    lexpr(A, v(vR), 'v0', [(4, 2, 8 * ST), (2, 2, ST), (0, 2, 16)], 0, 'v1')
    A('v_add_u32 %s, %d, %s' % (v(vR2), 7 * 32 * ST, v(vR)))
    A('s_waitcnt lgkmcnt(0)')
    A('s_barrier')
    n = 0
    for x in range(3):
        for tl in range(2):
            for ks in range(14):
                for t in range(2):
                    A('ds_read_b64_tr_b16 %s, %s offset:%d' % (WQh(x, tl, ks, t), v(vR if ks < 7 else vR2), (32 * (ks % 7) + 4 * t) * ST + x * 64 + tl * 8))
                    n += 1
                    if n % 6 == 0: A('s_waitcnt lgkmcnt(6)')
    lexpr(A, v(vX), 'v0', [(0, 4, 896), (4, 2, 16)], 0, 'v1')
    A('v_add_u32 v9, %d, %s' % (16 * 896, v(vX)))
    for i in range(16): A('v_mov_b32 %s, 0' % v(KV + i))
    A('s_mov_b32 %s, 0x%x' % (s(sSC), f2u(LOG2E)))
    A('s_mov_b32 %s, 0x%x' % (s(sO3), f2u(1e-6)))
    A('v_and_b32 v1, 15, v0')
    A('v_cmp_le_u32 s[96:97], 12, v1')
    A('v_cmp_eq_u32 s[98:99], 12, v1')
    A('v_cmp_le_u32 s[100:101], 48, v0')
    A('s_lshl_b32 %s, %s, 2' % (s(sBLK), s(sQ)))
    A('s_add_u32 %s, %s, %s' % (s(sBLK), s(sBLK), s(sWAVE)))
    A('s_waitcnt lgkmcnt(0)')
    def phi(r):
        A('v_mul_f32 %s, %s, %s' % (v(T), s(sSC), v(r)))
        A('v_exp_f32 %s, %s' % (v(T), v(T)))
        A('v_cmp_lt_f32 vcc, 0, %s' % v(r))
        A('v_add_f32 %s, 1.0, %s' % (v(r), v(r)))
        A('v_cndmask_b32 %s, %s, %s, vcc' % (v(r), v(T), v(r)))
        A('v_add_f32 %s, %s, %s' % (v(r), s(sO3), v(r)))
    def Dk(x, t, tl): return D + (((x - 1) * 2 + tl) * 2 + t) * 4
    def Dq(t, tl): return D + 32 + (t * 2 + tl) * 4
    A('s_mov_b32 %s, 0' % s(sI))
    A.label('L_a1loop')
    A('s_mul_i32 %s, %s, %d' % (s(sO1), s(sBLK), 32 * 896))
    for hf in range(2):
        for k7 in range(7):
            for t in range(2):
                A('buffer_load_dwordx4 %s, %s, %s, %s offen offset:%d' % (v(X_ + (k7 * 2 + t) * 4, 4), v(vX) if t == 0 else 'v9', s(S_AX, 4), s(sO1), (7 * hf + k7) * 64))
        for k7 in range(7):
            ks = 7 * hf + k7
            A('s_waitcnt vmcnt(%d)' % (12 - 2 * k7))
            for t in range(2):
                xf = v(X_ + (k7 * 2 + t) * 4, 4)
                for tl in range(2):
                    for x in (1, 2):
                        d = v(Dk(x, t, tl), 4)
                        A('v_mfma_f32_16x16x32_bf16 %s, %s, %s, %s' % (d, xf, WQ(x, tl, ks), '0' if ks == 0 else d))
                    d = v(Dq(t, tl), 4)
                    A('v_mfma_f32_16x16x32_bf16 %s, %s, %s, %s' % (d, WQ(0, tl, ks), xf, '0' if ks == 0 else d))
        A('s_nop 7')
    for tl in range(2):
        b = Dk(1, 0, tl)
        for i in range(8):
            phi(b + i)
            if tl == 1: A('v_cndmask_b32 %s, %s, 0, s[96:97]' % (v(b + i), v(b + i)))
        for i in range(4): A('v_cvt_pk_bf16_f32 %s, %s, %s' % (v(b + i), v(b + 2 * i), v(b + 2 * i + 1)))
        b = Dk(2, 0, tl)
        if tl == 1:
            for i in range(8):
                A('v_cndmask_b32 %s, %s, 0, s[96:97]' % (v(b + i), v(b + i)))
                A('v_cndmask_b32 %s, %s, 1.0, s[98:99]' % (v(b + i), v(b + i)))
        for i in range(4): A('v_cvt_pk_bf16_f32 %s, %s, %s' % (v(b + i), v(b + 2 * i), v(b + 2 * i + 1)))
    for dt in range(2):
        for et in range(2):
            d = v(KV + (dt * 2 + et) * 4, 4)
            A('v_mfma_f32_16x16x32_bf16 %s, %s, %s, %s' % (d, v(Dk(1, 0, dt), 4), v(Dk(2, 0, et), 4), d))
    for i in range(15, -1, -1): A('v_mov_b32 %s, %s' % (v(PQ + 8 + i), v(PQ + i)))
    for t in range(2):
        b = Dq(t, 0)
        for i in range(8):
            phi(b + i)
            if i >= 4: A('v_cndmask_b32 %s, %s, 0, s[100:101]' % (v(b + i), v(b + i)))
        for i in range(4): A('v_cvt_pk_bf16_f32 %s, %s, %s' % (v(PQ + 4 * t + i), v(b + 2 * i), v(b + 2 * i + 1)))
    A('s_add_u32 %s, %s, 1' % (s(sI), s(sI)))
    A('s_add_u32 %s, %s, 28' % (s(sBLK), s(sBLK)))
    A('s_cmp_lt_u32 %s, 64' % s(sBLK))
    A('s_cbranch_scc1 L_a1loop')
    LK = 98304
    A('s_lshl_b32 %s, %s, 12' % (s(sT0), s(sWAVE)))
    A('s_add_u32 %s, %s, %d' % (s(sT0), s(sT0), LK))
    lexpr(A, v(vW), 'v0', [(0, 6, 16)], s(sT0), 'v1')
    for j in range(4): A('ds_write_b128 %s, %s offset:%d' % (v(vW), v(KV + 4 * j, 4), j * 1024))
    A('s_lshl_b32 %s, %s, 10' % (s(sT0), s(sWAVE)))
    lexpr(A, v(vR), 'v0', [(0, 6, 16)], s(sT0), 'v1')
    A('v_add_u32 %s, %d, %s' % (v(vR2), LK, v(vR)))
    A('s_waitcnt lgkmcnt(0)')
    A('s_barrier')
    for j in range(4): A('ds_read_b128 %s, %s offset:%d' % (v(D + 4 * j, 4), v(vR2), j * 4096))
    A('s_waitcnt lgkmcnt(0)')
    for r in range(4):
        A('v_add_f32 %s, %s, %s' % (v(D + r), v(D + r), v(D + 4 + r)))
        A('v_add_f32 %s, %s, %s' % (v(D + 8 + r), v(D + 8 + r), v(D + 12 + r)))
        A('v_add_f32 %s, %s, %s' % (v(D + r), v(D + r), v(D + 8 + r)))
    A('s_lshl_b32 %s, %s, 12' % (s(sT0), s(sA)))
    A('s_add_u32 %s, %s, %d' % (s(sT0), s(sT0), KVP_OFF))
    A('buffer_store_dwordx4 %s, %s, %s, %s offen sc1' % (v(D, 4), v(vR), s(S_WS, 4), s(sT0)))
    A('s_lshl_b32 %s, %s, 6' % (s(sT0), s(sA)))
    A('s_lshl_b32 %s, %s, 2' % (s(sT1), s(sWAVE)))
    A('s_add_u32 %s, %s, %s' % (s(sT0), s(sT0), s(sT1)))
    A('s_add_u32 %s, %s, %d' % (s(sT0), s(sT0), FLG_KV))
    lane0_addr(A, 'v10', s(sT0))
    A('v_mov_b32 v3, 1')
    A('s_waitcnt vmcnt(0)')
    A('buffer_store_dword v3, v10, %s, 0 offen sc1' % s(S_WS, 4))
    A('v_lshrrev_b32 v1, 2, v0')
    A('v_min_u32 v1, 6, v1')
    A('v_lshlrev_b32 v1, 6, v1')
    A('v_and_b32 v2, 3, v0')
    A('v_lshl_add_u32 v10, v2, 2, v1')
    A('s_mul_i32 %s, %s, %d' % (s(sT0), s(sH), 7 * 64))
    A('s_add_u32 %s, %s, %d' % (s(sT0), s(sT0), FLG_KV))
    wait_flags(A, 'v10', s(sT0), '1', 8)
    lexpr(A, v(vG), 'v0', [(0, 6, 16)], 0, 'v1')
    lexpr(A, v(vW), 'v0', [(4, 2, 256)], 12 * 16, 'v1')
    A('s_mul_i32 %s, %s, %d' % (s(sO1), s(sH), 7 * 4096))
    A('s_add_u32 %s, %s, %d' % (s(sO1), s(sO1), KVP_OFF))
    GB = 104
    def gr(q): return (GB + 24 * q) if q < 6 else D
    for q in range(7):
        for j in range(4):
            A('buffer_load_dwordx4 %s, %s, %s, %s offen offset:%d sc1' % (v(gr(q) + 4 * j, 4), v(vG), s(S_WS, 4), s(sO1), j * 1024))
        for dt in range(2):
            A('buffer_load_dwordx4 %s, %s, %s, %s offen offset:%d sc1' % (v(gr(q) + 16 + 4 * dt, 4), v(vW), s(S_WS, 4), s(sO1), (dt * 2 + 1) * 1024))
        A('s_add_u32 %s, %s, 4096' % (s(sO1), s(sO1)))
    A('s_waitcnt vmcnt(0)')
    for q in range(6):
        for i in range(24): A('v_add_f32 %s, %s, %s' % (v(D + i), v(D + i), v(gr(q) + i)))
    for et in range(2):
        for dt in range(2):
            b = D + (dt * 2 + et) * 4
            A('v_cvt_pk_bf16_f32 %s, %s, %s' % (v(KV + 4 * et + 2 * dt), v(b), v(b + 1)))
            A('v_cvt_pk_bf16_f32 %s, %s, %s' % (v(KV + 4 * et + 2 * dt + 1), v(b + 2), v(b + 3)))
    for i in range(4): A('v_cvt_pk_bf16_f32 %s, %s, %s' % (v(KV + 8 + i), v(D + 16 + 2 * i), v(D + 17 + 2 * i)))
    A('s_lshl_b32 %s, %s, 10' % (s(sT0), s(sH)))
    lexpr(A, v(vR), 'v0', [(0, 6, 16)], s(sT0), 'v1')
    A.label('L_a1o')
    A('s_sub_u32 %s, %s, 28' % (s(sBLK), s(sBLK)))
    A('s_lshl_b32 %s, %s, 15' % (s(sO1), s(sBLK)))
    A('s_add_u32 %s, %s, %d' % (s(sO1), s(sO1), OI_OFF))
    A('s_add_u32 %s, %s, 16384' % (s(sO2), s(sO1)))
    for t in range(2):
        b = D + 12 * t
        for j in range(3):
            A('v_mfma_f32_16x16x32_bf16 %s, %s, %s, 0' % (v(b + 4 * j, 4), v(KV + 4 * j, 4), v(PQ + 4 * t, 4)))
    for t in range(2):
        b = D + 12 * t; o = D + 24 + 4 * t
        A('v_add_f32 %s, %s, %s' % (v(b + 8), s(sO3), v(b + 8)))
        A('v_rcp_f32 %s, %s' % (v(b + 8), v(b + 8)))
        for i in range(8):
            A('v_mul_f32 %s, %s, %s' % (v(b + i), v(b + i), v(b + 8)))
            if i >= 4: A('v_cndmask_b32 %s, %s, 0, s[100:101]' % (v(b + i), v(b + i)))
        for i in range(4): A('v_cvt_pk_bf16_f32 %s, %s, %s' % (v(o + i), v(b + 2 * i), v(b + 2 * i + 1)))
        A('buffer_store_dwordx4 %s, %s, %s, %s offen sc1' % (v(o, 4), v(vR), s(S_WS, 4), s(sO1 + t)))
    for i in range(16): A('v_mov_b32 %s, %s' % (v(PQ + i), v(PQ + 8 + i)))
    A('s_sub_u32 %s, %s, 1' % (s(sI), s(sI)))
    A('s_cmp_lg_u32 %s, 0' % s(sI))
    A('s_cbranch_scc1 L_a1o')
    A('s_lshl_b32 %s, %s, 2' % (s(sT0), s(sA)))
    A('s_add_u32 %s, %s, %s' % (s(sT0), s(sT0), s(sWAVE)))
    A('s_lshl_b32 %s, %s, 2' % (s(sT0), s(sT0)))
    A('s_add_u32 %s, %s, %d' % (s(sT0), s(sT0), FLG_O))
    lane0_addr(A, 'v10', s(sT0))
    A('v_mov_b32 v3, 1')
    A('s_waitcnt vmcnt(0)')
    A('buffer_store_dword v3, v10, %s, 0 offen sc1' % s(S_WS, 4))

def phase_a2(A):
    ST = 144
    O_, D = 64, 16
    vG, vW, vR, vR2, vO = 4, 5, 6, 7, 8
    A('s_barrier')
    lexpr(A, v(vG), 'v0', [(3, 3, 896), (0, 3, 16)], 0, 'v1')
    A('s_mul_i32 %s, %s, %d' % (s(sO1), s(sWAVE), 112 * 896))
    A('s_lshl_b32 %s, %s, 7' % (s(sT0), s(sQ)))
    A('s_add_u32 %s, %s, %s' % (s(sO1), s(sO1), s(sT0)))
    for j in range(15):
        A('buffer_load_dwordx4 %s, %s, %s, %s offen' % (v(64 + 4 * j, 4), v(vG), s(S_AO, 4), s(sO1)))
        A('s_add_u32 %s, %s, %d' % (s(sO1), s(sO1), 8 * 896))
    A('s_mul_i32 %s, %s, %d' % (s(sT0), s(sWAVE), 112 * ST))
    lexpr(A, v(vW), 'v0', [(3, 3, ST), (0, 3, 16)], s(sT0), 'v1')
    for j in range(15):
        A('s_waitcnt vmcnt(%d)' % (14 - j))
        A('ds_write_b128 %s, %s offset:%d' % (v(vW), v(64 + 4 * j, 4), j * 8 * ST))
        if j % 6 == 5: A('s_waitcnt lgkmcnt(6)')
    lexpr(A, v(vR), 'v0', [(4, 2, 8 * ST), (2, 2, ST), (0, 2, 16)], 0, 'v1')
    A('s_waitcnt lgkmcnt(0)')
    A('s_barrier')
    n = 0
    for tl in range(4):
        for hh in range(16):
            for t in range(2):
                A('ds_read_b64_tr_b16 %s, %s offset:%d' % (a((tl * 16 + hh) * 4 + 2 * t, 2), v(vR), (28 * hh + 4 * t) * ST + (tl >> 1) * 64 + (tl & 1) * 8))
                n += 1
                if n % 6 == 0: A('s_waitcnt lgkmcnt(6)')
    A('s_lshl_b32 %s, %s, 2' % (s(sSEG), s(sH)))
    A('s_add_u32 %s, %s, %s' % (s(sSEG), s(sSEG), s(sWAVE)))
    A('s_mov_b32 %s, %s' % (s(sT0), s(sSEG)))
    for _ in range(2):
        A('s_sub_u32 %s, %s, 28' % (s(sT1), s(sT0)))
        A('s_cmp_ge_u32 %s, 28' % s(sT0))
        A('s_cselect_b32 %s, %s, %s' % (s(sT0), s(sT1), s(sT0)))
    A('s_lshl_b32 %s, %s, 2' % (s(sT0), s(sT0)))
    A('s_add_u32 %s, %s, %d' % (s(sT0), s(sT0), FLG_O))
    lexpr(A, 'v10', 'v0', [(0, 4, 7 * 16)], 0, 'v1')
    wait_flags(A, 'v10', s(sT0), '1', 8)
    lexpr(A, v(vG), 'v0', [(0, 6, 16)], 0, 'v1')
    A('s_lshl_b32 %s, %s, 15' % (s(sO1), s(sSEG)))
    A('s_add_u32 %s, %s, %d' % (s(sO1), s(sO1), OI_OFF))
    for i in range(32):
        A('buffer_load_dwordx4 %s, %s, %s, %s offen offset:%d sc1' % (v(O_ + 4 * i, 4), v(vG), s(S_WS, 4), s(sO1), (i & 3) * 1024))
        if i & 3 == 3: A('s_add_u32 %s, %s, 4096' % (s(sO1), s(sO1)))
    A('s_lshl_b32 %s, %s, 7' % (s(sT0), s(sQ)))
    lexpr(A, v(vO), 'v0', [(0, 4, 1792), (4, 2, 16)], s(sT0), 'v1')
    A('s_mul_i32 %s, %s, %d' % (s(sO1), s(sSEG), 32 * 1792))
    A('s_add_u32 %s, %s, %d' % (s(sO2), s(sO1), 16 * 1792))
    A('s_waitcnt lgkmcnt(0)')
    for t in range(2):
        for hh in range(16):
            A('s_waitcnt vmcnt(%d)' % (31 - (t * 16 + hh)))
            for tl in range(4):
                d = v(D + (t * 4 + tl) * 4, 4)
                A('v_mfma_f32_16x16x32_bf16 %s, %s, %s, %s' % (d, a((tl * 16 + hh) * 4, 4), v(O_ + (t * 16 + hh) * 4, 4), '0' if hh == 0 else d))
    for t in range(2):
        for aa in range(2):
            b = D + (t * 4 + 2 * aa) * 4; o = 48 + (t * 2 + aa) * 4
            for i in range(4): A('v_cvt_pk_bf16_f32 %s, %s, %s' % (v(o + i), v(b + 2 * i), v(b + 2 * i + 1)))
            A('buffer_store_dwordx4 %s, %s, %s, %s offen offset:%d' % (v(o, 4), v(vO), s(S_OUT, 4), s(sO1 + t), aa * 64))
```

```python
from common import *
from rec import *
from work import *

def build(stamps=False):
    G.stamps = stamps
    A = Asm()
    entry(A, early_prefetch if PRM['epf'] and not G.dev_nowait else None)
    A('s_cmp_lg_u32 %s, 0' % s(sXCC))
    A('s_cbranch_scc1 %s' % ('L_exit' if G.dev_nowait else 'L_worker'))
    rec_start(A)
    A('s_cmp_ge_u32 %s, 30' % s(sROLE))
    A('s_cbranch_scc1 L_helper')
    A('s_cmp_ge_u32 %s, 16' % s(sROLE))
    A('s_cbranch_scc1 L_value')
    score_role(A)
    value_role(A)
    helper_role(A)
    if not G.dev_nowait:
        worker_entry(A)
        zero_flags(A)
        phase_w1(A)
        phase_w1b(A)
        event(A, 4)
        A('s_cmp_lg_u32 %s, 0' % s(sTY))
        A('s_cbranch_scc1 L_w2B')
        for i in range(PRM['adel']): A('s_sleep 127')
        phase_w2(A, 0)
        event(A, 5)
        phase_a1(A)
        event(A, 6)
        phase_a2(A)
        event(A, 7)
        phase_post(A)
        if G.events: A('s_waitcnt vmcnt(0)')
        diag(A, 11)
        event(A, 8)
        levent_flush(A, 3, 13)
        A('s_branch L_exit')
        phase_w2(A, 1)
        event(A, 5)
        phase_z(A)
        event(A, 8)
        levent_flush(A, 3, 13)
        A('s_branch L_exit')
        emit_stubs(A)
    A.label('L_exit')
    A('s_endpgm')
    body = A.pad()
    K = NAME + '_kernel'
    txt = HDR + '; @launch grid=(256,1,1) block=(256,1,1) lds=%d\n' % LDS_BYTES
    txt += '.amdgcn_target "amdgcn-amd-amdhsa--gfx950"\n.text\n.globl %s\n.p2align 8\n.type %s,@function\n%s:\n' % (K, K, K)
    txt += body
    txt += '''.section .rodata,"a"
.p2align 6
.amdhsa_kernel %s
  .amdhsa_next_free_vgpr 512
  .amdhsa_next_free_sgpr 102
  .amdhsa_accum_offset 256
  .amdhsa_group_segment_fixed_size 0
  .amdhsa_kernarg_size 104
  .amdhsa_user_sgpr_count 2
  .amdhsa_user_sgpr_kernarg_segment_ptr 1
  .amdhsa_system_sgpr_workgroup_id_x 1
  .amdhsa_float_denorm_mode_32 3
.end_amdhsa_kernel
''' % K
    return txt, A

if __name__ == '__main__':
    out = sys.argv[1] if len(sys.argv) > 1 else 'dev.s'
    for x in sys.argv[2:]:
        if '=' in x: PRM[x.split('=')[0]] = int(x.split('=')[1])
    G.events = 'events' in sys.argv
    G.diag = 'diag' in sys.argv
    G.dev_nowait = 'nowait' in sys.argv
    txt, A = build(stamps=2 if 'acc' in sys.argv else (1 if 'stamps' in sys.argv else 0))
    if G.events: txt = '; ' + ' '.join(sys.argv[2:]) + '\n' + txt
    open(out, 'w').write(txt)
    print('wrote', out, 'instrs', len(A.ins), 'pads', A.npad)
```

```python
from common import *

sSLOT, sSLOTP, sSLOTN, sUOK = sMEMRD, sPWR, sMEMWR, sHZ
vIDX = 60
vK = 61
vT = 68
vLANE = 255
MF = 32
SACC = 4
AF0 = 0
vYW, vTRL, vB, vX, vPST, vPSM, HV, HA = 70, 71, 72, 73, 74, 75, 71, 77
vBIG = 200
vSW = 78
SD = 80
XB = 92
AF1 = 116
L_XS = 32768
vL16, vVW, vVR, vMST, vLW, VHV, VHA, vHM_, vHP_, vHIST = 70, 71, 72, 73, 74, 75, 76, 77, 78, 79
VR = 80
vUS = 69
ZB = 84
UB = 92
LB = 124
L_VB = 114688
L_WL = 32768

class Role:
    pass
SC = Role(); SC.nt = 7
VA = Role(); VA.nt = 8; VA.accf = lambda r: 4 * r
def sc_w(r, k):
    t = r * 7 + k
    return (256 + t * 8) if t < 32 else (120 + (t - 32) * 8)
def tile_pos(w, r):
    if r < 4: return r, w
    e = 3 * (r - 4) + (w - 1)
    return 4 + e // 4, e % 4
def tau(w, r):
    c, ga = tile_pos(w, r); return 7 * ga + c
SC4 = Role(); SC4.nt = 4; SC4.w = sc_w
SC6 = Role(); SC6.nt = 6; SC6.w = sc_w; SC6.accf = lambda r: SACC + 4 * r; SC6.land = {}
SC8 = Role(); SC8.nt = 8; SC8.accf = lambda r: (SACC + 4 * r) if r < 7 else 0
SC8.land = {(7, 5): MF, (7, 6): SACC}
SC8.w = lambda r, k: sc_w(r, k) if r < 7 else (80 + 8 * k if k < 5 else None)
XS2 = 0x10000
L_SWL = 65536
VLDS = [(r, 6) for r in range(8)] + [(2, 4), (5, 4)]
VREG = [(r, k) for r in range(8) for k in range(7) if (r, k) not in VLDS]
def va_w(r, k):
    if (r, k) in VLDS: return None
    t = VREG.index((r, k))
    return (256 + t * 8) if t < 32 else (144 + (t - 32) * 8)
VA.w = va_w

def smf(d, aa, bb, k32=False):
    return 'v_smfmac_f32_16x16x%d_bf16 %s, %s, %s, %s' % (32 if k32 else 64, d, aa, bb, v(vIDX))

sTMB = 28
sSTB = 92
def stamp(A, idx):
    if not G.stamps: return
    A('s_memtime %s' % s(sTMB + 2 * idx, 2))
    if idx == 0 and G.stamps == 1: A('s_memrealtime %s' % s(sTMB + 2 * 10, 2))
def stamp_acc(A, order):
    A('s_waitcnt lgkmcnt(0)')
    l = A.newlabel('L_sa')
    A('s_cmp_lt_u32 %s, 10' % s(sSTEP))
    A('s_cbranch_scc1 %s' % l)
    prev = 3
    for i, k in enumerate(order):
        A('s_sub_u32 s2, %s, %s' % (s(sTMB + 2 * k), s(prev)))
        A('s_add_u32 %s, %s, s2' % (s(50 + i), s(50 + i)))
        prev = sTMB + 2 * k
    A.label(l)
    A('s_mov_b32 s3, %s' % s(sTMB + 2 * order[-1]))
def stamp_acc_out(A):
    if G.stamps != 2: return
    A('v_mbcnt_lo_u32_b32 v2, -1, 0')
    A('v_lshlrev_b32 v2, 2, v2')
    for i in range(10): A('v_writelane_b32 v1, %s, %d' % (s(50 + i), i))
    A('s_mov_b64 exec, 0xffff')
    A('buffer_store_dword v1, v2, %s, %s offen' % (s(S_WS, 4), s(sSTB)))
    A('s_mov_b64 exec, -1')
def stamp_flush(A, n, order=None):
    if not G.stamps: return
    if G.stamps == 2:
        stamp_acc(A, order); return
    A('s_waitcnt lgkmcnt(0)')
    A('s_lshl_b32 %s, %s, 6' % (s(sT5), s(sSTEP)))
    A('s_add_u32 %s, %s, %s' % (s(sT5), s(sT5), s(sSTB)))
    A('v_mbcnt_lo_u32_b32 %s, -1, 0' % v(vT + 1))
    A('v_lshlrev_b32 %s, 2, %s' % (v(vT + 1), v(vT + 1)))
    for i in range(n):
        A('v_writelane_b32 %s, %s, %d' % (v(vT), s(sTMB + 2 * i), i))
    A('v_writelane_b32 %s, %s, 11' % (v(vT), s(sSPIN)))
    A('s_mov_b64 exec, 0xffff')
    A('buffer_store_dword %s, %s, %s, %s offen' % (v(vT), v(vT + 1), s(S_WS, 4), s(sT5)))
    A('s_mov_b64 exec, -1')
def stamp_setup(A):
    if not G.stamps: return
    A('s_lshl_b32 %s, %s, 2' % (s(sT0), s(sROLE)))
    A('s_add_u32 %s, %s, %s' % (s(sT0), s(sT0), s(sWAVE)))
    A('s_lshl_b32 %s, %s, 12' % (s(sT0), s(sT0)))
    A('s_add_u32 %s, %s, %d' % (s(sSTB), s(sT0), STAMPS))
    for i in range(10): A('s_mov_b32 %s, 0' % s(50 + i))

def hint_wait(A, soff, sval, pw, delay, nent, areg=None, solo=False, primed=False):
    l = A.newlabel('L_hint'); e = A.newlabel('L_hint_done')
    D = PRM['hd']
    if not solo:
        A('s_cmp_lg_u32 %s, %d' % (s(sWAVE), pw))
        A('s_cbranch_scc1 %s' % e)
    if areg is None:
        areg = vT + 1
        A('v_mbcnt_lo_u32_b32 %s, -1, 0' % v(vT + 1))
        A('v_mbcnt_hi_u32_b32 %s, -1, %s' % (v(vT + 1), v(vT + 1)))
        A('v_min_u32 %s, %d, %s' % (v(vT + 1), nent - 1, v(vT + 1)))
        A('v_lshlrev_b32 %s, 2, %s' % (v(vT + 1), v(vT + 1)))
    ld = 'buffer_load_dword %s, %s, %s, %s offen sc1' % (v(vT), v(areg), s(S_WS, 4), s(soff))
    if PRM['hv0']: A('s_waitcnt vmcnt(0)')
    for i in range(0 if primed else D - 1):
        A(ld); A('s_nop %d' % PRM['hn'])
    A.label(l)
    A(ld)
    A('s_waitcnt vmcnt(%d)' % (D - 1))
    A('v_cmp_gt_u32 vcc, %s, %s' % (s(sval), v(vT)))
    spin_check(A, l)
    for i in range(delay): A('s_nop 3')
    if solo: return
    A.label(e)
    if primed: A('s_waitcnt vmcnt(2) lgkmcnt(0)')
    A('s_barrier')

def hint_send(A, t0, t1):
    A('buffer_store_dword %s, %s, %s, %s offen' % (v(t0), v(t1), s(S_WS, 4), s(sHWR)))
def hint_setup(A, t0, t1, allw):
    nrep = PRM['nrep']
    A('v_lshlrev_b32 v1, 8, %s' % v(vLANE))
    A('v_mov_b32 v2, %d' % OOB)
    A('s_cmp_eq_u32 %s, %d' % (s(sWAVE), 0 if allw else 3))
    A('s_cselect_b32 %s, %d, 0' % (s(sT0), nrep))
    A('v_cmp_gt_u32 vcc, %s, %s' % (s(sT0), v(vLANE)))
    A('v_cndmask_b32 %s, v2, v1, vcc' % v(t1))
    A('v_mov_b32 %s, %d' % (v(t0), 1 if allw else 0))
    hint_send(A, t0, t1)

def dbg_arrive(A, idx):
    A('s_waitcnt vmcnt(0) lgkmcnt(0)')
    A('s_barrier')
    l = A.newlabel('L_gb')
    A('s_cmp_lg_u32 %s, 0' % s(sWAVE))
    A('s_cbranch_scc1 %s' % l)
    A('v_mov_b32 v1, %d' % (idx * 4))
    A('v_mov_b32 v2, 1')
    A('s_mov_b64 exec, 1')
    A('buffer_atomic_add v2, v1, %s, 0 offen' % s(S_DBG, 4))
    A('s_mov_b64 exec, -1')
    A.label(l)

def group_wait(A):
    l = A.newlabel('L_gw')
    A('v_mov_b32 v2, %d' % (D_GRP * 4))
    A.label(l)
    A('buffer_load_dword %s, v2, %s, 0 offen sc1' % (v(vT + 1), s(S_DBG, 4)))
    A('s_waitcnt vmcnt(0)')
    A('v_cmp_gt_u32 vcc, 32, %s' % v(vT + 1))
    spin_check(A, l, ['s_sleep 8'])

def wait_init(A, idx=D_INIT, lane=None):
    l = A.newlabel('L_wi')
    lexpr(A, 'v2', lane or v(vLANE), [(0, 2, 64)], idx * 4, 'v3')
    A.label(l)
    A('buffer_load_dword v3, v2, %s, 0 offen sc1' % s(S_DBG, 4))
    A('s_waitcnt vmcnt(0)')
    A('v_cmp_gt_u32 vcc, 56, v3')
    spin_check(A, l, ['s_sleep 16'])

def check4(A, r, lbl, pre):
    t0 = v(vT)
    A('v_max3_u32 %s, %s, %s, %s' % (t0, v(r), v(r + 1), v(r + 2)))
    A('v_max_u32 %s, %s, %s' % (t0, t0, v(r + 3)))
    A('v_cmp_eq_u32 vcc, -1, %s' % t0)
    spin_check(A, lbl, pre)

sROT = 87
def rot(A, k):
    A('s_add_u32 %s, %s, %d' % (s(sT1), s(sT0), k))
    A('s_sub_u32 %s, %s, 7' % (s(sT2), s(sT1)))
    A('s_cmp_ge_u32 %s, 7' % s(sT1))
    A('s_cselect_b32 %s, %s, %s' % (s(sT1), s(sT2), s(sT1)))

def rec_start(A):
    A('v_mov_b32 %s, v0' % v(vLANE))
    A('s_mov_b32 %s, %d' % (s(sSPIN), SPIN_MAX))
    if PRM['xw']:
        A('s_lshl_b32 %s, %s, 2' % (s(sT0), s(sROLE)))
        A('s_add_u32 %s, %s, %s' % (s(sT0), s(sT0), s(sWAVE)))
        A('s_mul_i32 %s, %s, 14336' % (s(sT0), s(sT0)))
        A('s_add_u32 %s, %s, 6144' % (s(sT1), s(sT0)))
        A('v_lshlrev_b32 v1, 7, v0')
        for j in range(2): A('buffer_load_dword v250, v1, %s, %s offen nt' % (s(S_BX, 4), s(sT0 + j)))
    A('s_and_b32 %s, %s, %d' % (s(sT0), s(sROLE), PRM['nrep'] - 1))
    A('s_lshl_b32 %s, %s, 8' % (s(sHMRD), s(sT0)))
    A('s_add_u32 %s, %s, %d' % (s(sHPRD), s(sHMRD), HINT_P))
    A('s_add_u32 %s, %s, %d' % (s(sHMRD), s(sHMRD), HINT_M))
    A('v_and_b32 v1, 2, v0')
    A('v_cmp_eq_u32 vcc, 0, v1')
    A('v_mov_b32 v2, 0xeeeeeeee')
    A('v_mov_b32 v3, 0x44444444')
    A('v_cndmask_b32 %s, v2, v3, vcc' % v(vIDX))
    A('v_lshlrev_b32 v1, 4, v0')
    A('s_sub_u32 %s, %s, 16' % (s(sT1), s(sROLE)))
    A('s_lshr_b32 %s, %s, 1' % (s(sT1), s(sT1)))
    A('s_cmp_lt_u32 %s, 16' % s(sROLE))
    A('s_cselect_b32 %s, 0, %s' % (s(sT1), s(sT1)))
    assert PRM['wrot'] in (0, 2)
    if PRM['wrot'] == 0: A('s_mov_b32 %s, 0' % s(sT1))
    A('s_lshl_b32 %s, %s, 1' % (s(sT0), s(sWAVE)))
    A('s_add_u32 %s, %s, %s' % (s(sT0), s(sT0), s(sT1)))
    rot(A, 0)
    A('s_mov_b32 %s, %s' % (s(sROT), s(sT1)))
    A('s_mov_b32 %s, %s' % (s(sT0), s(sT1)))
    for k in range(7):
        rot(A, k)
        A('s_lshl_b32 %s, %s, 10' % (s(sT1), s(sT1)))
        A('v_add_u32 %s, %s, v1' % (v(vK + k), s(sT1)))
    stamp_setup(A)

def load_weights(A, R, cstride, early=None):
    tag = 'S' if R is SC else 'V'
    WL = ['sc1', '', 'nt', 'sc1 nt', 'sc0 sc1'][PRM['wl']]
    A('s_mul_i32 %s, %s, %d' % (s(sT0), s(sWAVE), 0 if R is SC else R.nt * 1024))
    if not G.dev_nowait:
        A('v_mov_b32 %s, v8' % v(vT))
        wait_init(A)
        A('v_mov_b32 v3, %s' % v(vT))
    lexpr(A, 'v1', v(vLANE), [(0, 6, 16)], s(sT0), 'v2')
    A('v_add_u32 v2, 4096, v1')
    SB_ = 28
    A('s_mov_b32 %s, %s' % (s(sT0), '0' if R is SC else s(sROT)))
    for k in range(7):
        rot(A, k)
        A('s_mul_i32 %s, %s, %d' % (s(sT1), s(sT1), 2 * cstride))
        A('s_add_u32 %s, %s, %s' % (s(SB_ + 2 * k), s(sT1), s(sT3)))
        A('s_add_u32 %s, %s, %d' % (s(SB_ + 2 * k + 1), s(SB_ + 2 * k), cstride))
    A('s_mov_b32 %s, %d' % (s(sT0), FLG_W1))
    pl = 'buffer_load_dword %s, v3, %s, %s offen sc1' % (v(vT), s(S_WS, 4), s(sT0))
    for w in range(1, 4):
        A('s_cmp_eq_u32 %s, %d' % (s(sWAVE), w))
        A('s_cbranch_scc1 L_lw%s%d' % (tag, w))
    for w in range(4):
        A.label('L_lw%s%d' % (tag, w))
        st = [[], [], [], []]
        RW = R if R is VA else (SC4 if w == 0 else SC8)
        for k in range(7):
            for hi in range(2):
                for r in range(RW.nt):
                    if R is SC: c = (2 * k + hi - PRM['wrot'] * (tau(w, r) >> 2)) % 14
                    else: c = (2 * ((k + 2 * w) % 7) + hi) % 14
                    st[c >> 2].append((r, k, hi))
        n = 0; since = None
        for i in range(4):
            if not G.dev_nowait:
                l = A.newlabel('L_lwp')
                if since is None: A(pl); since = 0
                A('s_waitcnt vmcnt(%d)' % since)
                A.label(l)
                A('v_cmp_gt_u32 vcc, %d, %s' % (i + 1, v(vT)))
                spin_check(A, l, ['s_sleep %d' % PRM['lws'], pl, 's_waitcnt vmcnt(0)'])
                if i == 0: event(A, 4, 'v59', v(vT + 1))
            for j, (r, k, hi) in enumerate(st[i]):
                if j == len(st[i]) // 2 and i < 3 and not G.dev_nowait: A(pl); since = 0
                wv = RW.w(r, k)
                if wv is None:
                    slot_ = (2 * VLDS.index((r, k)) + hi) if R is VA else (2 * (k - 5) + hi)
                    base_ = (L_WL + w * 20480) if R is VA else (L_SWL + w * 4096)
                    A('s_add_u32 %s, %s, %d' % (s(sT1), s(SB_ + 2 * k + hi), (tau(w, r) if R is SC else r) * 1024))
                    A('s_mov_b32 m0, %d' % (base_ + slot_ * 1024))
                    A('buffer_load_dwordx4 v1, %s, %s offen sc1 lds' % (s(S_WS, 4), s(sT1)))
                    if since is not None: since += 1
                    n += 1
                    continue
                dst = u(wv + 4 * hi, 4)
                if R is SC:
                    A('s_add_u32 %s, %s, %d' % (s(sT1), s(SB_ + 2 * k + hi), tau(w, r) * 1024))
                    A('buffer_load_dwordx4 %s, v1, %s, %s offen %s' % (dst, s(S_WS, 4), s(sT1), WL))
                else:
                    A('buffer_load_dwordx4 %s, %s, %s, %s offen offset:%d %s' % (dst, 'v1' if r < 4 else 'v2', s(S_WS, 4), s(SB_ + 2 * k + hi), (r & 3) * 1024, WL))
                if since is not None: since += 1
                n += 1
                if G.dev_nowait and n % 16 == 0: A('s_waitcnt vmcnt(40)')
        if w < 3: A('s_branch L_lw%sE' % tag)
    A.label('L_lw%sE' % tag)
    if early: early()
    A('s_waitcnt vmcnt(0)')
def ldstmp(i): return (4 + 8 * i) if i < 7 else (UB + 8 * (i - 7))

def zero_regs(b, n): return ['v_mov_b32 %s, 0' % v(b + i) for i in range(n)]

def lds_younger(A, dst):
    n = 0
    for x in reversed(A.ins):
        if x.kind == 'label': return 0
        if x.kind == 'ds':
            if x.text.startswith('ds_read_b128 ' + dst): return n
            n += 1
    return 0

def main_phase(A, R, pw, delay, post, vm, every, extra, epi, pre_ds=0):
    NT = R.nt
    hint_wait(A, sHMRD, sSTEP1, pw, delay, 22, vHM_ if R is VA else None)
    stamp(A, 1)
    ld = ['buffer_load_dwordx4 %s, %s, %s, %s offen sc1' % (v(MF + 4 * k, 4), v(vK + k), s(S_WS, 4), s(sSLOT)) for k in range(2)]
    A(ld[0])
    if PRM['f0b']: A('s_barrier')
    A(ld[1])
    for x in post: A(x)
    nst = len([x for x in post if x.startswith('buffer_')])
    A('s_waitcnt vmcnt(%d)' % (nst + 1))
    l0 = A.newlabel('L_pm0'); A.label(l0)
    check4(A, MF, l0, [ld[0], 's_waitcnt vmcnt(0)'])
    stamp(A, 2)
    A('ds_write_b128 %s, %s offset:%d' % (v(vK), v(MF, 4), L_MEM))
    vm = list(vm); cnt = [0]
    def vmtick():
        cnt[0] += 1
        if vm and cnt[0] % every == 0:
            for x in vm.pop(0): A(x)
    k1, k2 = PRM['k1'], min(PRM['k2'], 2 * NT - 3)
    if R is SC8: k1, k2 = PRM['k1l'], PRM['k2l']
    kseq = [(r, 0) for r in range(NT)] + [(r, 1) for r in range(NT)]
    rd = [2, 3, 4, 5, 6]
    for i, (r, k) in enumerate(kseq):
        A(smf(v(R.accf(r), 4), v(MF + 4 * k, 4), u(R.w(r, k), 8)))
        if i == k1 - 1:
            A('s_waitcnt vmcnt(%d)' % nst)
            l1 = A.newlabel('L_pm1'); A.label(l1)
            check4(A, MF + 4, l1, [ld[1], 's_waitcnt vmcnt(0)'])
            A('ds_write_b128 %s, %s offset:%d' % (v(vK + 1), v(MF + 4, 4), L_MEM))
        elif i >= k1 and i < k2 - 1: vmtick()
        if i == k2 - 1:
            A('s_waitcnt lgkmcnt(0)')
            A('s_barrier')
            stamp(A, 3)
        if i >= k2 - 1:
            for _ in range(2 if len(kseq) - i > 2 else 5):
                if rd:
                    kk = rd.pop(0); A('ds_read_b128 %s, %s offset:%d' % (v(MF + 4 * kk, 4), v(vK + kk), L_MEM))
    assert not rd
    q = []
    i = 0
    for r in range(NT):
        for k in range(2, 7):
            if r == 0: A('s_waitcnt lgkmcnt(%d)' % (6 - k))
            w = R.w(r, k)
            if w is None and R is VA:
                iv = VORD.index((r, k))
                w = LB + 8 * (iv & 1)
                A('s_waitcnt lgkmcnt(%d)' % lds_younger(A, 'v[%d:%d]' % (w + 4, w + 7)))
            elif w is None: w = R.land[(r, k)]
            A(smf(v(R.accf(r), 4), v(MF + 4 * k, 4), u(w, 8)))
            if k == 3 and r > 0: q += epi(r - 1)
            if q: A(q.pop(0))
            for x in extra.get(i, []): A(x)
            vmtick()
            i += 1
    stamp(A, 4)
    for x in q: A(x)
    assert not vm, len(vm)
VORD = sorted(VLDS)

sXL = 86
def sc_epi(w, r):
    c = (SACC + 4 * r) if r < 7 else 0
    ch, ga = tile_pos(w, r)
    return ['v_add_f32 %s, %s, %s' % (v(c), v(c), v(c + 2)),
            'v_add_f32 %s, %s, %s' % (v(c + 1), v(c + 1), v(c + 3)),
            'v_cvt_pk_bf16_f32 %s, %s, %s' % (v(c), v(c), v(c + 1)),
            'ds_write_b32 %s, %s offset:%d' % (v(vYW), v(c), ga * 1792 + ch * 256)]

def score_role(A):
    A.label('L_score')
    L = v(vLANE)
    HV_, vHMS = 76, 61
    lexpr(A, v(vYW), L, [(2, 2, 64), (0, 1, 32), (4, 2, 8), (1, 1, 4)], L_YT, 'v1')
    lexpr(A, v(vTRL), L, [(4, 2, 1792), (0, 4, 8)], L_YT, 'v1')
    lexpr(A, v(vB), L, [(5, 1, 1792), (4, 1, 32), (0, 2, 64), (3, 1, 16)], L_MEM, 'v1')
    lexpr(A, v(vX), L, [(0, 6, 16)], 0, 'v1')
    A('s_lshl_b32 %s, %s, 12' % (s(sT0), s(sWAVE)))
    A('s_add_u32 %s, %s, %d' % (s(sT0), s(sT0), L_SWL))
    A('v_add_u32 %s, %s, %s' % (v(vSW), s(sT0), v(vX)))
    gterm = [(5, 1, 64), (4, 1, 16)]
    A('s_lshl_b32 %s, %s, 9' % (s(sT0), s(sROLE)))
    lexpr(A, v(vPST), L, [(3, 1, 256), (2, 1, 32), (0, 2, 4)] + gterm, s(sT0), 'v1')
    A('s_lshr_b32 %s, %s, 2' % (s(sT0), s(sROLE)))
    A('s_lshl_b32 %s, %s, 9' % (s(sT0), s(sT0)))
    A('s_and_b32 %s, %s, 1' % (s(sT1), s(sROLE)))
    A('s_lshl_b32 %s, %s, 5' % (s(sT1), s(sT1)))
    A('s_add_u32 %s, %s, %s' % (s(sT0), s(sT0), s(sT1)))
    A('s_and_b32 %s, %s, 2' % (s(sT1), s(sROLE)))
    A('s_lshl_b32 %s, %s, 1' % (s(sT1), s(sT1)))
    A('s_add_u32 %s, %s, %s' % (s(sT0), s(sT0), s(sT1)))
    A('s_add_u32 %s, %s, 8192' % (s(sT0), s(sT0)))
    lexpr(A, 'v3', L, [(1, 1, 256), (0, 1, 8), (2, 1, 128)] + gterm, s(sT0), 'v1')
    A('v_and_b32 v4, 8, %s' % L)
    A('v_mov_b32 v2, %d' % OOB)
    A('v_cmp_eq_u32 vcc, 0, v4')
    A('v_cndmask_b32 %s, v2, v3, vcc' % v(vPSM))
    A('s_lshl_b32 %s, %s, 2' % (s(sHWR), s(sROLE)))
    A('s_add_u32 %s, %s, %d' % (s(sHWR), s(sHWR), HINT_P))
    hint_setup(A, HV_, HA, False)
    A('v_min_u32 v1, 17, %s' % L)
    A('v_lshlrev_b32 %s, 2, v1' % v(vHMS))
    dbg_arrive(A, D_GRP)
    A('v_lshrrev_b32 v8, 2, %s' % L)
    A('v_min_u32 v8, 6, v8')
    A('s_cmp_eq_u32 %s, 0' % s(sWAVE))
    A('s_cselect_b32 %s, 0, 6' % s(sT1))
    A('v_min_u32 v8, %s, v8' % s(sT1))
    A('s_mul_i32 %s, %s, 7' % (s(sT0), s(sROLE)))
    A('v_add_u32 v8, %s, v8' % s(sT0))
    A('v_lshlrev_b32 v8, 6, v8')
    A('v_and_b32 v9, 3, %s' % L)
    A('v_lshl_add_u32 v8, v9, 2, v8')
    event(A, 3)
    A('s_mul_i32 %s, %s, %d' % (s(sT3), s(sROLE), WCU))
    load_weights(A, SC, 28672, lambda: group_wait(A))
    event(A, 5)
    event(A, 6, v(vT), v(vT + 1))
    event_spin(A, 13, v(vT), v(vT + 1))
    A('s_mov_b32 %s, 0' % s(sSTEP))
    A('s_mov_b32 %s, %d' % (s(sSLOT), MB_OFF))
    A('s_mov_b32 %s, %d' % (s(sXOFF), XF_OFF))
    AC = SACC; sSL2 = sXL
    ND = 3
    def mld(k): return 'buffer_load_dwordx4 %s, %s, %s, %s offen offset:%d sc1' % (v(MF + 4 * k, 4), v(vX), s(S_WS, 4), s(sSLOT if k < 4 else sSL2), (k & 3) * 1024)
    def top():
        A('s_add_u32 %s, %s, %d' % (s(sSLOTP), s(sSLOT), MB_PO))
        A('s_add_u32 %s, %s, 4096' % (s(sSL2), s(sSLOT)))
        A('s_add_u32 %s, %s, 1' % (s(sSTEP1), s(sSTEP)))
    def bottom(lp, order):
        stamp_flush(A, 11, order)
        A('s_add_u32 %s, %s, %d' % (s(sSLOT), s(sSLOT), MB_STEP))
        A('s_add_u32 %s, %s, 1' % (s(sSTEP), s(sSTEP)))
        A('s_cmp_lt_u32 %s, 63' % s(sSTEP))
        A('s_cbranch_scc1 %s' % lp)
        A('s_branch L_sc_end')
    def chk(k, first):
        r = MF + 4 * k; t0 = v(vT)
        if first: return ['v_max3_u32 %s, %s, %s, %s' % (t0, v(r), v(r + 1), v(r + 2)), 'v_max_u32 %s, %s, %s' % (t0, t0, v(r + 3))]
        return ['v_max3_u32 %s, %s, %s, %s' % (t0, t0, v(r), v(r + 1)), 'v_max3_u32 %s, %s, %s, %s' % (t0, t0, v(r + 2), v(r + 3))]
    for w in range(1, 4):
        A('s_cmp_eq_u32 %s, %d' % (s(sWAVE), w))
        A('s_cbranch_scc1 L_score_loop%d' % w)
    XR = lambda c, T: 120 + (2 * c + T) * 8
    MR = lambda c: (256 + 224 + 8 * c) if c < 4 else (232 + 8 * (c - 4))
    AR = [92 + 4 * c for c in range(7)]
    vBG = 62
    A('v_mov_b32 %s, 0x5f800000' % v(vBG))
    vMK = 64
    A('v_and_b32 v1, 64, %s' % v(vX))
    A('v_cmp_eq_u32 vcc, 0, v1')
    A('v_cndmask_b32 %s, 0, 1.0, vcc' % v(vMK))
    A('v_cndmask_b32 %s, 1.0, 0, vcc' % v(vMK + 1))
    A.label('L_score_loop0')
    zz = zero_regs(AC, 16) + zero_regs(SD, 12)
    for i in range(28):
        if i % 4 == 0: A('s_add_u32 %s, %s, %d' % (s(sXPF), s(sXOFF), i * 1024))
        A('buffer_load_dwordx4 %s, %s, %s, %s offen offset:%d sc1' % (v(120 + 4 * i, 4), v(vX), s(S_WS, 4), s(sXPF), (i & 3) * 1024))
        A(zz[i])
    A('s_add_u32 %s, %s, 32768' % (s(sXOFF), s(sXOFF)))
    top()
    stamp(A, 0)
    A('s_barrier')
    stamp(A, 1)
    A('s_barrier')
    if PRM['o2']: A('s_barrier')
    def mdma(k):
        return (['s_mov_b32 m0, %d' % (L_MEM + (4096 if k >= 4 else 0))] if k in (0, ND, 4) else []) + \
               ['buffer_load_dwordx4 %s, %s, %s offen offset:%d sc1 lds' % (v(vX), s(S_WS, 4), s(sSLOT if k < 4 else sSL2), (k & 3) * 1024)]
    X1 = [mld(k) for k in range(ND, 7)] + [x for k in range(ND, 7) for x in mdma(k)]
    X2 = [mld(k) for k in range(ND)] + [x for k in range(ND) for x in mdma(k)]
    if PRM['o3']:
        for x in X1[:7 - ND]: A(x)
        A('s_barrier')
        A('s_nop 7')
        for x in X1[7 - ND:]: A(x)
    else:
        for x in X1: A(x)
        A('s_barrier')
    for x in X2: A(x)
    A.label('L_s0_x')
    NX = 7 - ND
    seq = [(r, k) for k in range(ND, 7) for r in range(4)]
    for i, (r, k) in enumerate(seq):
        if r == 0: A('s_waitcnt vmcnt(%d)' % (2 * ND + 2 * NX - 1 - (k - ND)))
        if i == 0: stamp(A, 2)
        A(smf(v(AC + 4 * r, 4), v(MF + 4 * k, 4), u(sc_w(r, k), 8)))
        if i < 2 * NX:
            kk = ND + i // 2
            if i % 2 == 0 and kk > k: A('s_waitcnt vmcnt(%d)' % (2 * ND + 2 * NX - 1 - (kk - ND)))
            A(chk(kk, kk == ND)[i % 2])
        if i == 2 * NX:
            A('v_cmp_eq_u32 vcc, -1, %s' % v(vT))
            spin_check(A, 'L_s0_x', X1 + zero_regs(AC, 16) + ['s_waitcnt vmcnt(0)'])
        if i == PRM['s0b']:
            A('s_waitcnt vmcnt(%d)' % (2 * ND))
            A('s_barrier')
            stamp(A, 3)
    A('s_waitcnt vmcnt(%d)' % ND)
    for j in range(2 * ND): A(chk(j // 2, j < 2)[j % 2])
    A('v_cmp_eq_u32 vcc, -1, %s' % v(vT))
    A('s_cbranch_vccnz L_s0_y')
    A.label('L_s0_z')
    q = []
    for r in range(4):
        for k in range(ND):
            A(smf(v(AC + 4 * r, 4), v(MF + 4 * k, 4), u(sc_w(r, k), 8)))
            if k == 1 and r > 0: q += sc_epi(0, r - 1)
            if q: A(q.pop(0))
            if q and q[0].startswith('ds_'): A(q.pop(0))
    A('s_waitcnt vmcnt(0)')
    def mread(c): return ['ds_read_b128 %s, %s offset:%d' % (u(MR(c) + 4 * hi, 4), v(vB), hi * 3584 + c * 256) for hi in range(2)]
    def aread(c): return ['ds_read_b64_tr_b16 %s, %s offset:%d' % (v(AR[c] + 2 * t_, 2), v(vTRL), c * 256 + t_ * 128) for t_ in range(2)]
    ds = []
    def D(xs, tag):
        for x in xs:
            A(x)
            if x.startswith('ds_'): ds.append(tag)
    def wait_for(tags):
        last = max([i for i, tg in enumerate(ds) if tg in tags], default=-1)
        if last > wait_for.done:
            A('s_waitcnt lgkmcnt(%d)' % min(14, len(ds) - 1 - last)); wait_for.done = last
    wait_for.done = -1
    D(q, 'w'); D(mread(0), 'M0'); D(mread(1), 'M1'); D(sc_epi(0, 3), 'w'); D(mread(2), 'M2')
    stamp(A, 4)
    wait_for({'M0'})
    A('s_barrier')
    D(aread(0), 'A0'); D(aread(1), 'A1'); D(mread(3), 'M3')
    units = [(c, T) for c in range(6) for T in range(3)] + [(6, 2), (6, 0), (6, 1)]
    bars = {PRM['s23']: (2, 3), PRM['s4']: (4,), PRM['sb']: (5,), PRM['sc']: (6,)}
    for i, (c, T) in enumerate(units):
        wait_for({'A%d' % c} | ({'M%d' % c} if T == 2 else set()))
        A(smf(v(SD + 4 * T, 4), v(AR[c], 4), u(XR(c, T) if T < 2 else MR(c), 8)))
        if i < 3: D(mread(4 + i), 'M%d' % (4 + i))
        if i in bars:
            A('s_barrier')
            for cc in bars[i]: D(aread(cc), 'A%d' % cc)
    stamp(A, 5)
    e, o, mm, t2 = (v(AC), v(AC + 1)), (v(AC + 2), v(AC + 3)), v(AC + 4), v(AC + 5)
    m, rr = (v(AC + 6), v(AC + 7)), (v(AC + 8), v(AC + 9))
    ID = 'quad_perm:[0,1,2,3] row_mask:0xf bank_mask:0x%x'
    def reduce(op):
        for d in ('quad_perm:[1,0,3,2]', 'quad_perm:[2,3,0,1]', 'row_half_mirror', 'row_mirror'):
            for rb in range(2): A('%s_dpp %s, %s, %s %s row_mask:0xf bank_mask:0xf' % (op, m[rb], m[rb], m[rb], d))
    E2, O2, M2, R2 = v(AC, 2), v(AC + 2, 2), v(AC + 6, 2), v(AC + 8, 2)
    def softmax(exact):
        pk = (v(vT), v(vT + 1), v(AC + 10))
        if not exact:
            A('v_add_f32 %s, %s, %s' % (mm, v(SD + 8), v(SD + 10)))
            A('v_add_f32_dpp %s, %s, %s %s' % (mm, v(SD + 9), v(SD + 11), ID % 0xa))
            A('v_pk_add_f32 %s, %s, %s' % (E2, v(SD, 2), v(SD + 2, 2)))
            A('v_exp_f32 %s, %s' % (mm, mm))
            for rb in range(2): A('v_exp_f32 %s, %s' % (e[rb], e[rb]))
            A('v_pk_add_f32 %s, %s, %s' % (O2, v(SD + 4, 2), v(SD + 6, 2)))
            for rb in range(2): A('v_exp_f32 %s, %s' % (o[rb], o[rb]))
        else:
            A('v_pk_add_f32 %s, %s, %s' % (E2, v(SD, 2), v(SD + 2, 2)))
            A('v_pk_add_f32 %s, %s, %s' % (O2, v(SD + 4, 2), v(SD + 6, 2)))
            A('v_add_f32 %s, %s, %s' % (mm, v(SD + 8), v(SD + 10)))
            A('v_add_f32 %s, %s, %s' % (t2, v(SD + 9), v(SD + 11)))
            A('v_max3_f32 %s, %s, %s, %s' % (m[0], e[0], o[0], mm))
            A('v_max3_f32 %s, %s, %s, %s' % (m[1], e[1], o[1], t2))
            reduce('v_max_f32')
            for rb in range(2):
                A('v_sub_f32 %s, %s, %s' % (e[rb], e[rb], m[rb])); A('v_sub_f32 %s, %s, %s' % (o[rb], o[rb], m[rb]))
            A('v_sub_f32 %s, %s, %s' % (mm, mm, m[0]))
            A('v_sub_f32_dpp %s, %s, %s %s' % (mm, t2, m[1], ID % 0xa))
            for rb in range(2):
                A('v_exp_f32 %s, %s' % (e[rb], e[rb])); A('v_exp_f32 %s, %s' % (o[rb], o[rb]))
            A('v_exp_f32 %s, %s' % (mm, mm))
        A('v_pk_fma_f32 %s, %s, %s, %s op_sel_hi:[0,1,1]' % (M2, v(AC + 4, 2), v(vMK, 2), E2))
        A('v_pk_add_f32 %s, %s, %s' % (M2, M2, O2))
        A('v_mov_b32_dpp %s, %s row_ror:8 row_mask:0xf bank_mask:0xf' % (t2, mm))
        reduce('v_add_f32')
        for rb in range(2): A('v_rcp_f32 %s, %s' % (rr[rb], m[rb]))
        if not exact:
            A('v_add_f32 %s, %s, %s' % (m[0], m[0], m[1]))
            A('v_add_f32 %s, %s, %s' % (m[1], rr[0], rr[1]))
            A('v_pk_mul_f32 %s, %s, %s' % (E2, E2, R2))
            A('v_add_f32 %s, %s, %s' % (m[0], m[0], m[1]))
            A('v_pk_mul_f32 %s, %s, %s' % (O2, O2, R2))
            A('v_cmp_nlt_f32 vcc, %s, %s' % (m[0], v(vBG)))
            A('v_cvt_pk_bf16_f32 %s, %s, %s' % (pk[0], e[0], o[0]))
            A('v_cvt_pk_bf16_f32 %s, %s, %s' % (pk[1], e[1], o[1]))
            A('s_cbranch_vccnz L_sc_exact')
        else:
            A('v_pk_mul_f32 %s, %s, %s' % (E2, E2, R2))
            A('v_pk_mul_f32 %s, %s, %s' % (O2, O2, R2))
            for rb in range(2):
                A('v_cvt_pk_bf16_f32 %s, %s, %s' % (pk[rb], e[rb], o[rb]))
                A('v_min_u32 %s, -2, %s' % (pk[rb], pk[rb]))
        A('buffer_store_dword %s, %s, %s, %s offen' % (pk[0], v(vPST), s(S_WS, 4), s(sSLOTP)))
        A('buffer_store_dword %s, %s, %s, %s offen offset:128' % (pk[1], v(vPST), s(S_WS, 4), s(sSLOTP)))
        A('v_mov_b32_dpp %s, %s %s' % (rr[0], rr[1], ID % 0xa))
        A('v_mul_f32 %s, %s, %s' % (mm, mm, rr[0]))
        A('v_mul_f32 %s, %s, %s' % (t2, t2, rr[0]))
        A('v_cvt_pk_bf16_f32 %s, %s, %s' % (pk[2], mm, t2))
        if exact: A('v_min_u32 %s, -2, %s' % (pk[2], pk[2]))
        A('buffer_store_dword %s, %s, %s, %s offen' % (pk[2], v(vPSM), s(S_WS, 4), s(sSLOTP)))
    softmax(not PRM['fsm'])
    A.label('L_sc_join')
    stamp(A, 8)
    bottom('L_score_loop0', [0, 1, 2, 3, 4, 5, 8])
    A.label('L_s0_y')
    for x in X2: A(x)
    A('s_waitcnt vmcnt(0)')
    for k2 in range(ND):
        for x in chk(k2, k2 == 0): A(x)
    A('v_cmp_eq_u32 vcc, -1, %s' % v(vT))
    spin_check(A, 'L_s0_y')
    A('s_branch L_s0_z')
    A.label('L_sc_exact')
    softmax(True)
    A('s_branch L_sc_join')
    for w in range(1, 4):
        LP = 'L_score_loop%d' % w
        A.label(LP)
        for x in ['v_pk_mov_b32 %s, 0, 0' % v(2 * i, 2) for i in range(16)]: A(x)
        top()
        if w == 3: A('v_mov_b32 %s, %s' % (v(HV_), s(sSTEP1)))
        stamp(A, 0)
        if w == 2: hint_wait(A, sHMRD, sSTEP1, 2, PRM['sdel'], 22, vHMS, solo=True)
        A('s_barrier')
        stamp(A, 1)
        A(mld(0))
        A('s_barrier')
        if PRM['o2']:
            A(mld(1)); A('s_barrier'); A('s_barrier'); A(mld(2))
        else:
            A('s_barrier'); A(mld(1)); A(mld(2))
        lk = A.newlabel('L_lk'); A.label(lk)
        seq = [(r, k) for k in range(ND) for r in range(8)]
        ck = {}
        for k in range(ND):
            for j, x in enumerate(chk(k, k == 0)): ck[min(8 * k + 1 + j, PRM['lb'] - 3 + j)] = (k, x)
        have = -1
        rd = list(range(ND, 7))
        for i, (r, k) in enumerate(seq):
            if k > have: A('s_waitcnt vmcnt(%d)' % (ND - 1 - k)); have = k
            if i == 0: stamp(A, 2)
            A(smf(v(SC8.accf(r), 4), v(MF + 4 * k, 4), u(SC8.w(r, k), 8)))
            if i in ck:
                kk, x = ck[i]
                if kk > have: A('s_waitcnt vmcnt(%d)' % (ND - 1 - kk)); have = kk
                A(x)
            if i == PRM['lb'] - 1:
                A('v_cmp_eq_u32 vcc, -1, %s' % v(vT))
                spin_check(A, lk, [mld(k2) for k2 in range(ND)] + zero_regs(0, 32))
            if i == PRM['lb']:
                A('s_barrier')
                stamp(A, 3)
            if i >= PRM['lb']:
                for _ in range(2):
                    if rd:
                        kk = rd.pop(0); A('ds_read_b128 %s, %s offset:%d' % (v(MF + 4 * kk, 4), v(vX), L_MEM + kk * 1024))
        assert not rd
        extra = {}
        lw = ['ds_read_b128 %s, %s offset:%d' % (v(SC8.land[(7, k_)] + 4 * hi, 4), v(vSW), (2 * (k_ - 5) + hi) * 1024) for k_ in (5, 6) for hi in range(2)]
        for x, pos in zip(lw, (3, 4, 13, 17)): extra.setdefault(pos, []).append(x)
        extra.setdefault(PRM['b01'], []).extend(['s_waitcnt lgkmcnt(1)', 's_barrier'])
        extra.setdefault(PRM['ba'], []).extend(['s_waitcnt lgkmcnt(0)', 's_barrier'])
        extra.setdefault(31, []).extend(['s_waitcnt lgkmcnt(0)', 's_barrier'])
        q = []; i = 0
        for r in range(8):
            for k in range(ND, 7):
                if r == 0: A('s_waitcnt lgkmcnt(%d)' % (6 - k))
                wv = SC8.w(r, k)
                if wv is None: wv = SC8.land[(r, k)]
                A(smf(v(SC8.accf(r), 4), v(MF + 4 * k, 4), u(wv, 8)))
                if k == ND + 1 and r > 0: q += sc_epi(w, r - 1)
                if q: A(q.pop(0))
                for x in extra.get(i, []): A(x)
                i += 1
        stamp(A, 4)
        for x in q: A(x)
        e7 = sc_epi(w, 7)
        for x in e7: A(x)
        A('s_waitcnt lgkmcnt(1)')
        A('s_barrier')
        A('s_waitcnt lgkmcnt(0)')
        A('s_barrier')
        stamp(A, 5)
        if w == 3:
            for i in range(PRM['ht']): A('s_nop 3')
            hint_send(A, HV_, HA)
            if G.events:
                A('s_memtime s[4:5]')
                A('s_memrealtime s[6:7]')
                A('s_waitcnt lgkmcnt(0)')
                A('s_mov_b32 m0, %s' % s(sSTEP))
                A('s_nop 3')
                A('v_writelane_b32 v79, s4, m0')
                A('v_writelane_b32 v67, s6, m0')
        if w == 2: A('s_sleep %d' % PRM['psl'])
        bottom(LP, [0, 1, 2, 3, 4, 5])
    A.label('L_sc_end')
    stamp_acc_out(A)
    if G.events:
        A('s_lshl_b32 s6, %s, 2' % s(sROLE))
        A('s_add_u32 s6, s6, %s' % s(sWAVE))
        A('s_lshl_b32 s6, s6, 8')
        A('s_add_u32 s6, s6, %d' % (EVT + 0x20000))
        A('v_lshrrev_b32 v1, 2, %s' % v(vX))
        A('buffer_store_dword v79, v1, %s, s6 offen' % s(S_WS, 4))
        A('s_add_u32 s6, s6, 0x8000')
        A('buffer_store_dword v67, v1, %s, s6 offen' % s(S_WS, 4))
    event(A, 8)
    event_spin(A, 14)
    A('s_branch L_exit')
    emit_stubs(A)

def va_epi(r):
    c = 4 * r
    return ['v_add_f32 %s, %s, %s' % (v(c), v(c), v(c + 2)),
            'v_add_f32 %s, %s, %s' % (v(c + 1), v(c + 1), v(c + 3)),
            'v_cvt_pk_bf16_f32 %s, %s, %s' % (v(ZB + 4 * (r & 1) + (r >> 1)), v(c), v(c + 1))]

sVB = 96
sPD = 97
def u_loads():
    out = []
    for cx in range(2):
        for hi in range(2):
            for p in range(2):
                out.append((['s_add_u32 m0, %s, %d' % (s(sVB), cx * 4096 + hi * 2048)] if p == 0 else []) +
                           ['buffer_load_dwordx4 %s, %s, %s offen offset:%d sc1 lds' % (v(vL16), s(S_WS, 4), s(88 + cx * 2 + hi), p * 1024)])
    return out

def ucheck_code(A, lbl, back, P0, t):
    A.label(lbl)
    A('v_mbcnt_lo_u32_b32 %s, -1, 0' % v(t))
    A('v_mbcnt_hi_u32_b32 %s, -1, %s' % (v(t), v(t)))
    A('v_min_u32 %s, 55, %s' % (v(t), v(t)))
    A('v_lshlrev_b32 %s, 4, %s' % (v(t), v(t)))
    A('s_mov_b32 %s, %d' % (s(sT1), FLG_W2 + 1792))
    A('s_lshr_b32 %s, %s, 2' % (s(sT2), s(sT4)))
    A('s_add_u32 %s, %s, 1' % (s(sT2), s(sT2)))
    A.label(lbl + '_l')
    A('buffer_load_dwordx4 %s, %s, %s, %s offen sc1' % (v(P0, 4), v(t), s(S_WS, 4), s(sT1)))
    A('buffer_load_dwordx4 %s, %s, %s, %s offen offset:896 sc1' % (v(P0 + 4, 4), v(t), s(S_WS, 4), s(sT1)))
    A('s_waitcnt vmcnt(0)')
    A('v_min3_u32 %s, %s, %s, %s' % (v(P0), v(P0), v(P0 + 1), v(P0 + 2)))
    A('v_min3_u32 %s, %s, %s, %s' % (v(P0), v(P0), v(P0 + 3), v(P0 + 4)))
    A('v_min3_u32 %s, %s, %s, %s' % (v(P0), v(P0), v(P0 + 5), v(P0 + 6)))
    A('v_min_u32 %s, %s, %s' % (v(P0), v(P0), v(P0 + 7)))
    A('v_cmp_gt_u32 vcc, %s, %s' % (s(sT2), v(P0)))
    spin_check(A, lbl + '_l', ['s_sleep 8'])
    A('s_lshl_b32 %s, %s, 2' % (s(sUOK), s(sT2)))
    for thr in range(2, 17):
        A('v_cmp_gt_u32 vcc, %d, %s' % (thr, v(P0)))
        A('s_cbranch_vccnz %s' % back)
        A('s_max_u32 %s, %s, %d' % (s(sUOK), s(sUOK), 4 * thr if thr < 16 else 1000))
    A('s_branch %s' % back)

def value_role(A):
    A.label('L_value')
    L = v(vLANE)
    sV = sT4
    A('s_sub_u32 %s, %s, 16' % (s(sV), s(sROLE)))
    lexpr(A, v(vL16), L, [(0, 6, 16)], 0, 'v1')
    A('s_lshl_b32 %s, %s, 13' % (s(sVB), s(sWAVE)))
    A('s_add_u32 %s, %s, %d' % (s(sVB), s(sVB), L_VB))
    A('s_lshl_b32 %s, %s, 11' % (s(sT0), s(sWAVE)))
    A('s_add_u32 %s, %s, %d' % (s(sT0), s(sT0), L_VB + 32768))
    A('v_add_u32 %s, %s, %s' % (v(vVW), s(sT0), v(vL16)))
    A('v_add_u32 %s, %d, %s' % (v(vVR), L_VB, v(vL16)))
    A('s_mul_i32 %s, %s, 20480' % (s(sT0), s(sWAVE)))
    A('s_add_u32 %s, %s, %d' % (s(sT0), s(sT0), L_WL))
    A('v_add_u32 %s, %s, %s' % (v(vLW), s(sT0), v(vL16)))
    A('s_lshl_b32 %s, %s, 9' % (s(sT0), s(sV)))
    A('s_cmp_eq_u32 %s, 0' % s(sWAVE))
    A('s_cselect_b32 %s, %s, 0x70000000' % (s(sT0), s(sT0)))
    FL = PRM['fl']; MO = 128 if FL else 16; HO = 64 if FL else 16
    lexpr(A, v(vMST), L, [(3, 1, 256), (2, 1, 32), (0, 2, 4)] + ([(5, 1, 64), (4, 1, 16)] if FL else [(4, 2, 64)]), s(sT0), 'v1')
    lexpr(A, v(vHIST), L, [(2, 2, 128), (4, 2, 16 if FL else 32), (0, 2, 4)], s(sT0), 'v1')
    A('s_lshl_b32 %s, %s, 6' % (s(sT0), s(sV)))
    lexpr(A, 'v2', L, [(4, 2, 1792), (0, 4, 4)], s(sT0), 'v1')
    A('s_lshl_b32 %s, %s, 2' % (s(sHWR), s(sV)))
    A('s_add_u32 %s, %s, %d' % (s(sHWR), s(sHWR), HINT_M))
    hint_setup(A, VHV, VHA, True)
    A('v_min_u32 v1, 18, %s' % L)
    A('v_lshlrev_b32 %s, 2, v1' % v(vHM_))
    A('v_min_u32 v1, 15, %s' % L)
    A('v_lshlrev_b32 %s, 2, v1' % v(vHP_))
    A('s_cmp_eq_u32 %s, 2' % s(sWAVE))
    A('s_cselect_b32 %s, 0, 0x70000000' % s(sT0))
    A('v_add_u32 %s, %s, %s' % (v(vHP_), s(sT0), v(vHP_)))
    dbg_arrive(A, D_GRP)
    A('s_lshr_b32 %s, %s, 1' % (s(sT0), s(sV)))
    A('s_add_u32 %s, %s, 112' % (s(sT0), s(sT0)))
    A('s_mul_i32 %s, %s, 28' % (s(sT1), s(sWAVE)))
    A('s_add_u32 %s, %s, %s' % (s(sT0), s(sT0), s(sT1)))
    lexpr(A, 'v8', L, [(2, 2, 7)], s(sT0), 'v1')
    A('v_lshlrev_b32 v8, 6, v8')
    A('v_and_b32 v9, 3, %s' % L)
    A('v_lshl_add_u32 v8, v9, 2, v8')
    A('s_mul_i32 %s, %s, %d' % (s(sUOFF), s(sWAVE), 4 * 28672))
    A('s_lshl_b32 %s, %s, 11' % (s(sT0), s(sV)))
    A('s_add_u32 %s, %s, %s' % (s(sUOFF), s(sUOFF), s(sT0)))
    A('s_add_u32 %s, %s, %d' % (s(sUOFF), s(sUOFF), U_OFF))
    A('s_mul_i32 %s, %s, %d' % (s(sT3), s(sV), WCV))
    A('s_add_u32 %s, %s, %d' % (s(sT3), s(sT3), WIMGV))
    event(A, 3)
    load_weights(A, VA, 32768, lambda: group_wait(A))
    event(A, 5)
    event(A, 6, v(vT), v(vT + 1))
    event_spin(A, 13, v(vT), v(vT + 1))
    A('s_mov_b32 %s, 0' % s(sSTEP))
    A('s_mov_b32 %s, %d' % (s(sSLOT), MB_OFF))
    A('s_mov_b32 %s, 0' % s(sPD))
    if PRM['probe']: A('s_memrealtime s[58:59]')
    def lread(i):
        j = VLDS.index(VORD[i])
        return ['ds_read_b128 %s, %s offset:%d' % (v(LB + 8 * (i & 1) + 4 * hi, 4), v(vLW), (2 * j + hi) * 1024) for hi in range(2)]
    BF = [0, 8, 16, 24, 32, 40, 48, 80, 88]
    OD, PA, PKD = 96, 104, 56
    sP0 = 93
    def top():
        A('s_add_u32 %s, %s, 1' % (s(sSTEP1), s(sSTEP)))
        for j in range(4): A('s_add_u32 %s, %s, %d' % (s(88 + j), s(sUOFF), j * 28672))
    top()
    A.label('L_value_loop')
    if G.stamps != 2: stamp(A, 0)
    ul = u_loads(); nb1 = PRM['nb1']
    extra = {}
    for i in range(2, 10):
        r, k = VORD[i - 2]
        g0 = 5 * r + k - 2
        for j, x in enumerate(lread(i)): extra.setdefault(g0 + (j if (k == 6 and PRM['lsp']) else 0), []).append(x)
    A('s_add_u32 %s, %s, 2' % (s(sT0), s(sSTEP)))
    extra.setdefault(0, []).append('v_mov_b32 %s, %s' % (v(VHV), s(sT0)))
    for x in lread(0) + lread(1) + ['v_pk_mov_b32 %s, 0, 0' % v(2 * i, 2) for i in range(16)]: A(x)
    post = ['s_barrier']
    for j, x in enumerate(ul[:nb1]): post += x
    pp = 'buffer_load_dword %s, %s, %s, %s offen sc1' % (v(vT), v(vHP_), s(S_WS, 4), s(sHPRD))
    if PRM['prime']:
        extra.setdefault(34, []).append(pp); extra.setdefault(39, []).append(pp)
    main_phase(A, VA, 2, PRM['vdel'], post, ul[nb1:], PRM['uev'], extra, va_epi)
    A('s_cmp_eq_u32 %s, 63' % s(sSTEP))
    A('s_cbranch_scc1 L_value_end')
    zw = va_epi(7) + ['ds_write_b128 %s, %s offset:%d' % (v(vVW), v(ZB + 4 * p, 4), p * 1024) for p in range(2)]
    for j in range(3): A('s_add_u32 %s, %s, %d' % (s(sP0 + j), s(sSLOT), MB_PO + 4096 * j))
    A('s_add_u32 %s, %s, %d' % (s(sSLOT), s(sSLOT), MB_STEP))
    NB = PRM['nub']
    if not NB:
        A('s_waitcnt vmcnt(0)')
        A('s_barrier')
    def bread(f):
        c, p = f >> 1, f & 1
        return ['ds_read_b128 %s, %s offset:%d' % (v(BF[f % 9] + 4 * hi, 4), v(vVR), c * 4096 + hi * 2048 + p * 1024) for hi in range(2)]
    pre = []
    for f in range(9):
        pre += bread(f)
        if f in (4, 7): pre.append('s_waitcnt lgkmcnt(4)')
    pre += zero_regs(OD, 8) + ['s_waitcnt lgkmcnt(0)']
    A('s_add_u32 %s, %s, %d' % (s(sUOFF), s(sUOFF), 16 * 28672))
    A('s_add_u32 %s, %s, 1' % (s(sSTEP), s(sSTEP)))
    A('s_cmp_lg_u32 %s, 0' % s(sWAVE))
    A('s_cbranch_scc1 L_value_oth')
    npre = 4 if NB else PRM['npre']
    pre1 = []; pre2 = []
    if NB: pre1 = zw + zero_regs(OD, 8) + ['s_waitcnt vmcnt(0)']
    for f in range(9):
        if f == 3 and not NB: pre1.extend(zw + zero_regs(OD, 8))
        (pre1 if f < npre else pre2).extend(bread(f))
        if f in (4, 7) and not NB: (pre1 if f < npre else pre2).append('s_waitcnt lgkmcnt(4)')
    for x in pre1: A(x)
    if G.stamps == 2:
        stamp(A, 10); stamp(A, 3); stamp(A, 5)
    if G.stamps == 2: stamp(A, 0)
    if PRM['solo']: hint_wait(A, sHPRD, sSTEP1, 0, PRM['pdel'], 16, vHP_, solo=True)
    else:
        A('s_cmp_lg_u32 %s, 0' % s(sPD))
        A('s_barrier')
        A('s_cbranch_scc1 L_pv_delay')
        A.label('L_pv_go')
    stamp(A, 9)
    ld = ['buffer_load_dwordx4 %s, %s, %s, %s offen offset:%d sc1' % (v(PA + 4 * c, 4), v(vL16), s(S_WS, 4), s(sP0 + (c >> 2)), (c & 3) * 1024) for c in range(10)]
    for x in ld: A(x)
    for x in pre2: A(x)
    A('s_waitcnt lgkmcnt(%d)' % (PRM['pvw'] if NB else 0))
    A.label('L_pv')
    for f in range(20):
        c, p = f >> 1, f & 1
        if p == 0: A('s_waitcnt vmcnt(%d)' % (9 - c + (1 if f > PRM['vf'] else 0)))
        if f == 0: stamp(A, 6)
        if NB and PRM['pvw'] and f == 4: A('s_waitcnt lgkmcnt(8)')
        if f >= 9: A('s_waitcnt lgkmcnt(%d)' % min(14, sum(len(bread(g)) for g in range(f + 1, min(19, f + 8) + 1))))
        A(smf(v(OD + 4 * p, 4), v(PA + 4 * c, 4), v(BF[f % 9], 8)))
        if f == PRM['vf']: hint_send(A, VHV, VHA)
        if f + 9 < 20:
            for x in bread(f + 9): A(x)
    stamp(A, 7)
    A('v_pk_add_f32 %s, %s, %s' % (v(OD, 2), v(OD, 2), v(OD + 2, 2)))
    A('v_cmp_u_f32 vcc, %s, %s' % (v(OD), v(OD + 1)))
    A('v_pk_add_f32 %s, %s, %s' % (v(OD + 4, 2), v(OD + 4, 2), v(OD + 6, 2)))
    A('s_cbranch_vccnz L_pv_nan')
    A('v_cvt_pk_bf16_f32 %s, %s, %s' % (v(PKD), v(OD), v(OD + 4)))
    A('v_cvt_pk_bf16_f32 %s, %s, %s' % (v(PKD + 1), v(OD + 1), v(OD + 5)))
    A.label('L_pv_ok')
    A('buffer_store_dword %s, %s, %s, %s offen' % (v(PKD), v(vMST), s(S_WS, 4), s(sSLOT)))
    A('buffer_store_dword %s, %s, %s, %s offen offset:%d' % (v(PKD + 1), v(vMST), s(S_WS, 4), s(sSLOT), MO))
    stamp(A, 8)
    if G.stamps:
        A('s_sub_u32 %s, %s, 1' % (s(sSTEP), s(sSTEP)))
        stamp_flush(A, 11, [0, 1, 2, 3, 4, 5, 10, 9, 6, 7][:10] if False else [1, 2, 4, 10, 3, 5, 0, 9, 6, 8])
        A('s_add_u32 %s, %s, 1' % (s(sSTEP), s(sSTEP)))
    A.label('L_value_next')
    if PRM['probe']:
        A('s_cmp_lg_u32 %s, 1' % s(sSTEP)); A('s_cbranch_scc1 L_prb0'); A('s_memrealtime s[52:53]'); A.label('L_prb0')
    top()
    A('s_cmp_lt_u32 %s, 63' % s(sSTEP))
    A('s_cbranch_scc1 L_value_loop')
    A('s_mov_b32 %s, %d' % (s(sT0), HM_OFF + 63 * HM_STEP))
    for j in range(2): A('buffer_store_dword %s, %s, %s, %s offen offset:%d sc1' % (v(PKD + j), v(vHIST), s(S_WS, 4), s(sT0), HO * j))
    for j in range(4): A('s_mov_b32 %s, 0x70000000' % s(88 + j))
    if PRM['probe']: A('s_memrealtime s[54:55]')
    event(A, 8, v(104), v(105))
    A('s_branch L_value_loop')
    A.label('L_value_end')
    for x in va_epi(7): A(x)
    A('s_sub_u32 %s, %s, 16' % (s(sT1), s(sROLE)))
    A('s_mul_i32 %s, %s, 28672' % (s(sT0), s(sWAVE)))
    A('s_lshl_b32 %s, %s, 11' % (s(sT2), s(sT1)))
    A('s_add_u32 %s, %s, %s' % (s(sT0), s(sT0), s(sT2)))
    A('s_add_u32 %s, %s, %d' % (s(sT0), s(sT0), HZ_OFF + 63 * 114688))
    A('v_and_b32 v0, 0xf0, %s' % v(vL16))
    A('v_lshrrev_b32 v1, 8, %s' % v(vL16))
    A('v_lshl_add_u32 v0, v1, 2, v0')
    for p_ in range(2):
        for j in range(4):
            A('buffer_store_dword %s, v0, %s, %s offen offset:%d sc1' % (v(ZB + 4 * p_ + j), s(S_WS, 4), s(sT0), p_ * 1024 + j * 256))
    A('s_lshl_b32 %s, %s, 2' % (s(sT1), s(sT1)))
    A('s_add_u32 %s, %s, %s' % (s(sT1), s(sT1), s(sWAVE)))
    A('s_lshl_b32 %s, %s, 7' % (s(sT1), s(sT1)))
    A('s_add_u32 %s, %s, %d' % (s(sT1), s(sT1), FLG_W1 + 32))
    A('v_mov_b32 v2, 0')
    A('v_mov_b32 v3, 16')
    A('s_waitcnt vmcnt(0)')
    A('s_mov_b64 exec, 1')
    A('buffer_store_dword v3, v2, %s, %s offen sc1' % (s(S_WS, 4), s(sT1)))
    A('s_mov_b64 exec, -1')
    if PRM['probe']:
        A('s_waitcnt lgkmcnt(0)')
        A('s_add_u32 s50, %s, 15000' % {1: 's56', 2: 's58', 3: 's54', 4: 's52'}[PRM['probe']])
        A.label('L_prb')
        A('s_memrealtime s[48:49]')
        A('s_waitcnt lgkmcnt(0)')
        A('s_sub_u32 s51, s50, s48')
        A('s_cmp_gt_i32 s51, 0')
        A('s_cbranch_scc1 L_prb')
    event(A, 7)
    stamp_acc_out(A)
    event_spin(A, 14)
    A('s_branch L_exit')
    A.label('L_value_oth')
    A(pp)
    for x in zw[:4]: A(x)
    A(pp)
    for x in zw[4:]: A(x)
    A('s_nop 7')
    if PRM['solo']: A('s_sleep %d' % PRM['vsl'])
    else: hint_wait(A, sHPRD, sSTEP1, 2, PRM['pdel'], 16, vHP_, primed=True)
    A('s_branch L_value_next')
    A.label('L_pv_delay')
    A('s_mov_b32 %s, %s' % (s(sT1), s(sPD)))
    A.label('L_pv_delay2')
    A('s_sub_u32 %s, %s, 1' % (s(sT1), s(sT1)))
    A('s_cmp_lg_u32 %s, 0' % s(sT1))
    A('s_cbranch_scc1 L_pv_delay2')
    A('s_branch L_pv_go')
    A.label('L_pv_nan')
    A('v_max3_u32 %s, %s, %s, %s' % (v(vT), v(PA), v(PA + 1), v(PA + 2)))
    for i in range(3, 39, 2): A('v_max3_u32 %s, %s, %s, %s' % (v(vT), v(vT), v(PA + i), v(PA + i + 1)))
    A('v_max_u32 %s, %s, %s' % (v(vT), v(vT), v(PA + 39)))
    A('v_cmp_eq_u32 vcc, -1, %s' % v(vT))
    spin_check(A, 'L_pv', ld + pre + ['s_add_u32 %s, %s, 1' % (s(sPD), s(sPD)), 's_min_u32 %s, %s, 6' % (s(sPD), s(sPD))])
    A('v_cvt_pk_bf16_f32 %s, %s, %s' % (v(PKD), v(OD), v(OD + 4)))
    A('v_cvt_pk_bf16_f32 %s, %s, %s' % (v(PKD + 1), v(OD + 1), v(OD + 5)))
    A('v_min_u32 %s, -2, %s' % (v(PKD), v(PKD)))
    A('v_min_u32 %s, -2, %s' % (v(PKD + 1), v(PKD + 1)))
    A('s_branch L_pv_ok')
    emit_stubs(A)

def helper_role(A):
    A.label('L_helper')
    L = v(vLANE)
    sJ, sXD, sSI = sPRST, sXPF, sUOFF
    LA = PRM['pla']; LT = PRM['plt']
    A('v_lshlrev_b32 v1, 8, %s' % L)
    A('v_mov_b32 v2, %d' % OOB)
    A('v_cmp_gt_u32 vcc, %d, %s' % (PRM['nrep'], L))
    A('v_cndmask_b32 v8, v2, v1, vcc')
    A('s_mov_b32 %s, 0' % s(sSTEP))
    A('s_mov_b32 %s, %d' % (s(sSLOT), MB_OFF))
    A('s_lshl_b32 %s, %s, 10' % (s(sT0), s(sWAVE)))
    lexpr(A, 'v10', L, [(0, 6, 16)], s(sT0), 'v1')
    A('s_cmp_eq_u32 %s, 31' % s(sROLE))
    A('s_cbranch_scc1 L_prep')
    diag(A, 5)
    lexpr(A, 'v11', L, [(4, 2, 256), (1, 1, 128), (2, 2, 32), (0, 1, 16)], s(sT0), 'v1')
    A('s_cmp_lt_u32 %s, 3' % s(sWAVE))
    A('s_cselect_b32 %s, 4096, 0' % s(sT0))
    A('v_add_u32 v12, %s, v10' % s(sT0))
    A('v_add_u32 v13, %s, v11' % s(sT0))
    A('s_mov_b32 %s, %d' % (s(sHWR), HINT_M + 18 * 4))
    A('s_cmp_eq_u32 %s, 3' % s(sWAVE))
    A('s_cselect_b32 %s, %d, 1000' % (s(sUOK), 1000 if G.dev_nowait else 0))
    A('s_cbranch_scc0 L_h_nu')
    A('v_mov_b32 v3, %s' % s(sUOK))
    A('buffer_store_dword v3, v8, %s, %s offen' % (s(S_WS, 4), s(sHWR)))
    A.label('L_h_nu')
    if not G.dev_nowait:
        A('s_cmp_lg_u32 %s, 0' % s(sWAVE))
        A('s_cbranch_scc1 L_h_rdy')
        lexpr(A, 'v2', L, [(0, 1, 64)], D_XG * 4, 'v3')
        A.label('L_h_xg')
        A('buffer_load_dword v3, v2, %s, 0 offen sc1' % s(S_DBG, 4))
        A('s_waitcnt vmcnt(0)')
        A('v_cmp_gt_u32 vcc, 112, v3')
        spin_check(A, 'L_h_xg', ['s_sleep 4'])
        A('v_mov_b32 v2, %d' % (D_RDY * 4))
        A('v_mov_b32 v3, 1')
        A('s_mov_b64 exec, 1')
        A('buffer_store_dword v3, v2, %s, 0 offen sc1' % s(S_DBG, 4))
        A('s_mov_b64 exec, -1')
        A.label('L_h_rdy')
    dbg_arrive(A, D_GRP)
    group_wait(A)
    A('s_mov_b32 %s, %d' % (s(sHM), HM_OFF))
    A.label('L_hist')
    A('s_cmp_ge_u32 %s, 64' % s(sUOK))
    A('s_cbranch_scc1 L_hist_b')
    A('s_mov_b32 %s, 0' % s(sT4))
    A('s_branch L_hucheck')
    A.label('L_hucheck_done')
    A('v_mov_b32 v3, %s' % s(sUOK))
    A('buffer_store_dword v3, v8, %s, %s offen' % (s(S_WS, 4), s(sHWR)))
    A.label('L_hist_b')
    A('buffer_load_dwordx4 v[16:19], v10, %s, %s offen sc1' % (s(S_WS, 4), s(sSLOT)))
    A('buffer_load_dwordx4 v[20:23], v12, %s, %s offen sc1' % (s(S_WS, 4), s(sSLOT)))
    A('s_waitcnt vmcnt(0)')
    A('v_max3_u32 v3, v16, v17, v18')
    A('v_max3_u32 v3, v3, v19, v20')
    A('v_max3_u32 v3, v3, v21, v22')
    A('v_max_u32 v3, v3, v23')
    A('v_cmp_eq_u32 vcc, -1, v3')
    spin_check(A, 'L_hist', ['s_sleep 1'])
    A('buffer_store_dwordx4 v[16:19], v11, %s, %s offen sc1' % (s(S_WS, 4), s(sHM)))
    A('buffer_store_dwordx4 v[20:23], v13, %s, %s offen sc1' % (s(S_WS, 4), s(sHM)))
    if G.diag:
        for st_, ix in ((1, 7), (2, 8), (8, 9), (63, 10)):
            lb = A.newlabel('L_dg')
            A('s_cmp_lg_u32 %s, %d' % (s(sSTEP), st_)); A('s_cbranch_scc1 %s' % lb); diag(A, ix); A.label(lb)
    A('s_add_u32 %s, %s, %d' % (s(sSLOT), s(sSLOT), MB_STEP))
    A('s_add_u32 %s, %s, %d' % (s(sHM), s(sHM), HM_STEP))
    A('s_add_u32 %s, %s, 1' % (s(sSTEP), s(sSTEP)))
    A('s_cmp_lt_u32 %s, 64' % s(sSTEP))
    A('s_cbranch_scc1 L_hist')
    A('s_waitcnt vmcnt(0)')
    event(A, 8)
    A('s_branch L_exit')
    ucheck_code(A, 'L_hucheck', 'L_hucheck_done', 32, 24)
    A.label('L_prep')
    for i in range(1, 4): A('v_add_u32 %s, %d, v10' % (v(10 + i), 4096 * i))
    A('s_cmp_lt_u32 %s, 2' % s(sWAVE))
    A('s_cselect_b32 %s, 16384, 0' % s(sT1))
    A('v_add_u32 v14, %s, v10' % s(sT1))
    lexpr(A, 'v15', L, [(3, 3, 4096), (0, 3, 128)], s(sT0), 'v1')
    A('v_cmp_gt_u32 vcc, %d, v15' % MB_STEP)
    A('v_cndmask_b32 v15, v2, v15, vcc')
    A('s_mul_i32 %s, %s, 7168' % (s(sT0), s(sWAVE)))
    A('v_min_u32 v1, 55, %s' % L)
    A('v_lshl_add_u32 v9, v1, 7, %s' % s(sT0))
    for i in range(4): A('v_mov_b32 %s, -1' % v(4 + i))
    A('s_lshl_b32 %s, %s, 2' % (s(sHWR), s(sWAVE)))
    A('s_add_u32 %s, %s, %d' % (s(sHWR), s(sHWR), HINT_M + 14 * 4))
    A('s_mov_b32 %s, 0' % s(sJ))
    A('s_mov_b32 %s, %d' % (s(sXD), XF_OFF + LT * 32768))
    A('s_mov_b32 %s, %d' % (s(sSI), MB_OFF))
    def prepare(touch):
        A('s_sub_u32 %s, %s, 2' % (s(sT0), s(sJ)))
        A('s_max_i32 %s, %s, 0' % (s(sT0), s(sT0)))
        A('s_cmp_ge_u32 %s, 64' % s(sJ))
        A('s_cselect_b32 %s, 64, %s' % (s(sT0), s(sT0)))
        A('v_mov_b32 v3, %s' % s(sT0))
        A('buffer_store_dword v3, v8, %s, %s offen' % (s(S_WS, 4), s(sHWR)))
        if touch:
            A('s_add_u32 %s, %s, %d' % (s(sT0), s(sSLOT), LT * MB_STEP))
            A('buffer_load_dword v21, v15, %s, %s offen sc1' % (s(S_WS, 4), s(sT0)))
            A('buffer_load_dword v20, v9, %s, %s offen sc1' % (s(S_WS, 4), s(sXD)))
            A('s_add_u32 %s, %s, 32768' % (s(sXD), s(sXD)))
        e = A.newlabel('L_hsk')
        A('s_cmp_ge_u32 %s, 64' % s(sJ))
        A('s_cbranch_scc1 %s' % e)
        for i in range(5): A('buffer_store_dwordx4 v[4:7], %s, %s, %s offen' % (v(10 + i), s(S_WS, 4), s(sSI)))
        A('s_add_u32 %s, %s, 1' % (s(sJ), s(sJ)))
        A('s_add_u32 %s, %s, %d' % (s(sSI), s(sSI), MB_STEP))
        A.label(e)
    A('s_lshl_b32 %s, %s, 7' % (s(sT0), s(sWAVE)))
    lexpr(A, 'v22', L, [(2, 2, 1792), (0, 1, 896), (4, 2, 32), (1, 1, 16)], s(sT0), 'v1')
    A('buffer_load_dwordx4 v[24:27], v22, %s, 0 offen' % s(S_M0, 4))
    A('buffer_load_dwordx4 v[28:31], v22, %s, 0 offen offset:512' % s(S_M0, 4))
    prepare(False)
    A('s_waitcnt vmcnt(0)')
    for i in range(8): A('v_min_u32 %s, -2, %s' % (v(24 + i), v(24 + i)))
    A('buffer_store_dwordx4 v[24:27], v10, %s, %s offen' % (s(S_WS, 4), s(sSLOT)))
    A('buffer_store_dwordx4 v[28:31], v11, %s, %s offen' % (s(S_WS, 4), s(sSLOT)))
    A.label('L_prep_pre')
    A('s_waitcnt vmcnt(0)')
    prepare(False)
    A('s_cmp_le_u32 %s, %d' % (s(sJ), LA + 1))
    A('s_cbranch_scc1 L_prep_pre')
    dbg_arrive(A, D_GRP)
    group_wait(A)
    if PRM['cpl']:
        A('s_getpc_b64 s[4:5]')
        A.label('L_pc2')
        A('s_sub_u32 s4, s4, L_pc2-L_score_loop0')
        A('s_subb_u32 s5, s5, 0')
        A('s_lshl_b32 %s, %s, 13' % (s(sT0), s(sWAVE)))
        A('v_lshl_add_u32 v23, %s, 7, %s' % (L, s(sT0)))
        A('v_min_u32 v23, L_pc2-L_score_loop0, v23')
    A.label('L_prep_warm')
    if PRM['cpl']: A('global_load_dword v22, v23, s[4:5] sc1')
    for i in range(LT + 1):
        A('s_mov_b32 %s, %d' % (s(sT0), XF_OFF + i * 32768))
        A('buffer_load_dword v20, v9, %s, %s offen sc1' % (s(S_WS, 4), s(sT0)))
        A('s_mov_b32 %s, %d' % (s(sT0), MB_OFF + i * MB_STEP))
        A('buffer_load_dword v21, v15, %s, %s offen sc1' % (s(S_WS, 4), s(sT0)))
    A('buffer_load_dwordx4 v[16:19], v12, %s, %s offen sc1' % (s(S_WS, 4), s(sSLOT)))
    A('s_waitcnt vmcnt(0)')
    check4(A, 16, 'L_prep_warm', ['s_sleep 8'])
    A.label('L_prep_loop')
    A('buffer_load_dwordx4 v[16:19], v12, %s, %s offen sc1' % (s(S_WS, 4), s(sSLOT)))
    A('s_waitcnt vmcnt(0)')
    check4(A, 16, 'L_prep_loop', ['s_sleep 4'])
    prepare(True)
    A('s_add_u32 %s, %s, %d' % (s(sSLOT), s(sSLOT), MB_STEP))
    A('s_add_u32 %s, %s, 1' % (s(sSTEP), s(sSTEP)))
    A('s_cmp_lt_u32 %s, 62' % s(sSTEP))
    A('s_cbranch_scc1 L_prep_loop')
    A('s_branch L_exit')
    emit_stubs(A)
```

```python
from common import *
import struct

sRHO, sH, sQ, sTY, sA = 71, 72, 73, 74, 75
sSC, sO1, sO2, sO3, sSEG, sCNT = 76, 77, 78, 79, 80, 81
S_W1 = 92
LW_R2 = 0
LW_ST = 36864
LW_WT = 36864 + 33792
def OSC(): return ['', ' sc1', ' nt', ' sc0 sc1'][PRM['osc']]
def f2u(x): return struct.unpack('<I', struct.pack('<f', x))[0]

def wait_dbg(A, idx, val, sleep=2):
    l = A.newlabel('L_wd'); e = A.newlabel('L_wd_done')
    A('s_cmp_lg_u32 %s, 0' % s(sWAVE))
    A('s_cbranch_scc1 %s' % e)
    if idx == D_INIT: lexpr(A, 'v2', 'v0', [(0, 2, 64)], idx * 4, 'v3')
    else: A('v_mov_b32 v2, %d' % (idx * 4))
    A.label(l)
    A('buffer_load_dword v3, v2, %s, 0 offen sc1' % s(S_DBG, 4))
    A('s_waitcnt vmcnt(0)')
    A('v_cmp_gt_u32 vcc, %d, v3' % val)
    spin_check(A, l, ['s_sleep %d' % sleep])
    A.label(e)
    A('s_barrier')

def early_prefetch(A):
    e = A.newlabel('L_ep')
    A('s_cmp_eq_u32 %s, 0' % s(sXCC))
    A('s_cbranch_scc1 %s' % e)
    A('s_lshr_b32 %s, s2, 3' % s(sROLE))
    role_decode(A)
    lexpr(A, 'v5', 'v0', [(2, 4, 8192), (0, 2, 128)], 0, 'v6')
    A('s_and_b32 %s, %s, 1' % (s(sT2), s(sWAVE)))
    A('s_lshl_b32 %s, %s, 1' % (s(sT0), s(sQ)))
    A('s_add_u32 %s, %s, %s' % (s(sT0), s(sT0), s(sT2)))
    A('s_lshl_b32 %s, %s, 18' % (s(sT0), s(sT0)))
    A('s_lshl_b32 %s, %s, 9' % (s(sT1), s(sH)))
    A('s_add_u32 %s, %s, %s' % (s(sT0), s(sT0), s(sT1)))
    A('s_add_u32 %s, %s, %d' % (s(sT1), s(sT0), 16 * 8192))
    l2 = A.newlabel('L_ep2'); l3 = A.newlabel('L_ep3')
    A('s_cmp_ge_u32 %s, 2' % s(sWAVE))
    A('s_cbranch_scc1 %s' % l2)
    for j in range(2): A('buffer_load_dword v7, v5, %s, %s offen' % (s(S_W1, 4), s(sT0 + j)))
    A('s_branch %s' % e)
    A.label(l2)
    A('s_cmp_lg_u32 %s, 0' % s(sTY))
    A('s_cbranch_scc1 %s' % l3)
    for j in range(2): A('buffer_load_dword v7, v5, %s, %s offen' % (s(S_WK, 4), s(sT0 + j)))
    A('s_branch %s' % e)
    A.label(l3)
    A('v_lshlrev_b32 v5, 7, v0')
    A('s_lshl_b32 %s, %s, 1' % (s(sT0), s(sQ)))
    A('s_add_u32 %s, %s, %s' % (s(sT0), s(sT0), s(sT2)))
    A('s_lshl_b32 %s, %s, 14' % (s(sT0), s(sT0)))
    A('s_mul_i32 %s, %s, 229376' % (s(sT1), s(sH)))
    A('s_add_u32 %s, %s, %s' % (s(sT0), s(sT0), s(sT1)))
    A('s_add_u32 %s, %s, 8192' % (s(sT1), s(sT0)))
    for j in range(2): A('buffer_load_dword v7, v5, %s, %s offen' % (s(S_WO, 4), s(sT0 + j)))
    A.label(e)

def worker_entry(A):
    A.label('L_worker')
    A('s_mov_b32 %s, %d' % (s(sSPIN), SPIN_MAX))
    role_decode(A)

def role_decode(A):
    A('s_sub_u32 %s, %s, 1' % (s(sRHO), s(sXCC)))
    A('s_lshl_b32 %s, %s, 5' % (s(sRHO), s(sRHO)))
    A('s_add_u32 %s, %s, %s' % (s(sRHO), s(sRHO), s(sROLE)))
    A('s_mul_i32 %s, %s, 9363' % (s(sT0), s(sRHO)))
    A('s_lshr_b32 %s, %s, 16' % (s(sT0), s(sT0)))
    A('s_mul_i32 %s, %s, 7' % (s(sT1), s(sT0)))
    A('s_sub_u32 %s, %s, %s' % (s(sQ), s(sRHO), s(sT1)))
    A('s_lshr_b32 %s, %s, 4' % (s(sTY), s(sT0)))
    A('s_and_b32 %s, %s, 15' % (s(sH), s(sT0)))
    A('s_mul_i32 %s, %s, 7' % (s(sA), s(sH)))
    A('s_add_u32 %s, %s, %s' % (s(sA), s(sA), s(sQ)))
    A('s_cmp_eq_u32 %s, 0' % s(sTY))
    A('s_cselect_b32 %s, %s, %s' % (s(S_W1), s(S_WQ), s(S_WV)))
    A('s_cselect_b32 %s, %s, %s' % (s(S_W1 + 1), s(S_WQ + 1), s(S_WV + 1)))
    A('s_mov_b32 %s, 3670016' % s(S_W1 + 2))
    A('s_mov_b32 %s, 0x00020000' % s(S_W1 + 3))
    A('s_cselect_b32 %s, 0x%x, 1.0' % (s(sSC), f2u(SCALE_LOG2E)))

def zero_flags(A):
    A('s_cmp_eq_u32 %s, 3' % s(sWAVE))
    A('s_cselect_b32 %s, 0, 0x70000000' % s(sT1))
    A('s_cselect_b64 vcc, 1, 0')
    lexpr(A, 'v13', 'v0', [(0, 6, 16)], s(sT1), 'v1')
    A('v_mov_b32 v3, %d' % OOB)
    A('s_and_b32 %s, %s, 3' % (s(sT0), s(sRHO)))
    A('s_lshl_b32 %s, %s, 6' % (s(sT0), s(sT0)))
    A('s_add_u32 %s, %s, %d' % (s(sT0), s(sT0), D_INIT * 4))
    A('v_mov_b32 v1, %s' % s(sT0))
    A('v_cndmask_b32 v11, v3, v1, vcc')
    A('s_lshl_b32 %s, %s, 6' % (s(sT0), s(sRHO)))
    A('s_mul_i32 %s, %s, 192' % (s(sT2), s(sRHO)))
    A('s_add_u32 %s, %s, %d' % (s(sT2), s(sT2), 0x4000 - 64))
    A('v_mov_b32 v1, %s' % s(sT0))
    A('v_mov_b32 v2, %s' % s(sT2))
    A('v_cmp_gt_u32 vcc, 16, v0')
    A('v_cndmask_b32 v2, v2, v1, vcc')
    A('v_lshl_add_u32 v2, v0, 2, v2')
    A('v_add_u32 v2, %s, v2' % s(sT1))
    A('v_mov_b32 v3, 0')
    A('v_mov_b32 v12, 1')
    for i in range(4): A('v_mov_b32 %s, -1' % v(16 + i))
    A('s_mov_b32 %s, %d' % (s(sT0), FLAGS))
    A('buffer_store_dword v3, v2, %s, %s offen sc1' % (s(S_WS, 4), s(sT0)))
    A('s_lshl_b32 %s, %s, 11' % (s(sT0), s(sRHO)))
    A('s_add_u32 %s, %s, %d' % (s(sT0), s(sT0), HM_OFF))
    A('buffer_store_dwordx4 v[16:19], v13, %s, %s offen sc1' % (s(S_WS, 4), s(sT0)))
    A('buffer_store_dwordx4 v[16:19], v13, %s, %s offen offset:1024 sc1' % (s(S_WS, 4), s(sT0)))

sXGD = 100
def xg_load(A):
    A('s_lshl_b32 %s, %s, 2' % (s(sT0), s(sRHO)))
    A('s_add_u32 %s, %s, %s' % (s(sT0), s(sT0), s(sWAVE)))
    A('s_mul_i32 %s, %s, 9363' % (s(sT1), s(sT0)))
    A('s_lshr_b32 %s, %s, 16' % (s(sT1), s(sT1)))
    A('s_mul_i32 %s, %s, 7' % (s(sT2), s(sT1)))
    A('s_sub_u32 %s, %s, %s' % (s(sT2), s(sT0), s(sT2)))
    A('s_lshl_b32 %s, %s, 7' % (s(sT2), s(sT2)))
    A('s_lshr_b32 %s, %s, 1' % (s(sT3), s(sT1)))
    A('s_mul_i32 %s, %s, 28672' % (s(sT3), s(sT3)))
    A('s_add_u32 %s, %s, %s' % (s(sT2), s(sT2), s(sT3)))
    A('s_and_b32 %s, %s, 1' % (s(sT3), s(sT1)))
    A('s_mul_i32 %s, %s, %d' % (s(sT3), s(sT3), 4 * 896))
    A('s_add_u32 %s, %s, %s' % (s(sT2), s(sT2), s(sT3)))
    lexpr(A, 'v48', 'v0', [(2, 2, 8 * 896), (0, 2, 896), (4, 2, 16)], 0, 'v1')
    A('buffer_load_dwordx4 v[40:43], v48, %s, %s offen' % (s(S_BX, 4), s(sT2)))
    A('buffer_load_dwordx4 v[44:47], v48, %s, %s offen offset:64' % (s(S_BX, 4), s(sT2)))
    A('s_lshl_b32 %s, %s, 11' % (s(sXGD), s(sT0)))
    A('s_add_u32 %s, %s, %d' % (s(sXGD), s(sXGD), XG_OFF))
    A('s_lshr_b32 %s, %s, 1' % (s(sT1), s(sT1)))
    A('s_mul_i32 %s, %s, 14' % (s(sT2), s(sT1)))
    A('s_sub_u32 %s, %s, %s' % (s(sT0), s(sT0), s(sT2)))
    A('s_lshl_b32 %s, %s, 15' % (s(sXGD + 1), s(sT1)))
    A('s_lshl_b32 %s, %s, 11' % (s(sT2), s(sT0)))
    A('s_add_u32 %s, %s, %s' % (s(sXGD + 1), s(sXGD + 1), s(sT2)))
    A('s_add_u32 %s, %s, %d' % (s(sXGD + 1), s(sXGD + 1), XF_OFF))
    A('s_mul_i32 %s, %s, 28672' % (s(sT1), s(sT1)))
    A('s_lshr_b32 %s, %s, 1' % (s(sT2), s(sT0)))
    A('s_lshl_b32 %s, %s, 5' % (s(sT2), s(sT2)))
    A('s_add_u32 %s, %s, %s' % (s(sT1), s(sT1), s(sT2)))
    A('s_and_b32 %s, %s, 1' % (s(sT2), s(sT0)))
    A('s_mul_i32 %s, %s, 896' % (s(sT2), s(sT2)))
    A('s_add_u32 %s, %s, %s' % (s(sT1), s(sT1), s(sT2)))
    lexpr(A, 'v49', 'v0', [(3, 1, 16 * 896), (0, 2, 4 * 896), (2, 1, 2 * 896), (5, 1, 224), (4, 1, 16)], 0, 'v1')
    A('buffer_load_dwordx4 v[32:35], v49, %s, %s offen' % (s(S_BX, 4), s(sT1)))
    A('buffer_load_dwordx4 v[36:39], v49, %s, %s offen offset:448' % (s(S_BX, 4), s(sT1)))
    A('v_lshlrev_b32 v48, 4, v0')

WF = 256
vST = 4
def phase_w1(A):
    W2F = 256
    AFR = (64, 96)
    DD = (128, 160)
    PC = 192
    vSRC, vRD, vDST, vR2W, vR2R, vG2 = 16, 24, 28, 8, 9, 10
    R2 = 3 * 32768
    sB1, sCI, sRING, sCS = sO3, sSEG, sCNT, 83
    vm = ['i', 'i', 'i']
    done = [0]
    def V(x, tag):
        A(x); vm.append(tag)
    def vwait(tag):
        last = max(i for i, tg in enumerate(vm) if tg == tag)
        return 's_waitcnt vmcnt(%d)' % (len(vm) - 1 - last)
    A('s_cmp_lg_u32 %s, 0' % s(sTY))
    A('s_cbranch_scc1 L_w1_b')
    lexpr(A, v(vG2), 'v0', [(5, 1, 8192), (0, 5, 16)], 0, 'v1')
    A('s_lshl_b32 %s, %s, 2' % (s(sT0), s(sQ)))
    A('s_add_u32 %s, %s, %s' % (s(sT0), s(sT0), s(sWAVE)))
    A('s_lshl_b32 %s, %s, 17' % (s(sT0), s(sT0)))
    A('s_lshl_b32 %s, %s, 9' % (s(sT1), s(sH)))
    A('s_add_u32 %s, %s, %s' % (s(sT0), s(sT0), s(sT1)))
    for j in range(8):
        A('buffer_load_dwordx4 %s, %s, %s, %s offen' % (v(64 + 4 * j, 4), v(vG2), s(S_WK, 4), s(sT0)))
        if j < 7: A('s_add_u32 %s, %s, 16384' % (s(sT0), s(sT0)))
    A('s_branch L_w1_c')
    A.label('L_w1_b')
    if PRM['bdel']: A('s_sleep %d' % PRM['bdel'])
    lexpr(A, v(vG2), 'v0', [(3, 3, 896), (0, 3, 16)], 0, 'v1')
    A('s_mul_i32 %s, %s, 229376' % (s(sT0), s(sH)))
    A('s_mul_i32 %s, %s, %d' % (s(sT1), s(sWAVE), 64 * 896))
    A('s_add_u32 %s, %s, %s' % (s(sT0), s(sT0), s(sT1)))
    A('s_lshl_b32 %s, %s, 7' % (s(sT1), s(sQ)))
    A('s_add_u32 %s, %s, %s' % (s(sT0), s(sT0), s(sT1)))
    for j in range(8):
        A('buffer_load_dwordx4 %s, %s, %s, %s offen' % (v(64 + 4 * j, 4), v(vG2), s(S_WO, 4), s(sT0)))
        if j < 7: A('s_add_u32 %s, %s, %d' % (s(sT0), s(sT0), 8 * 896))
    A.label('L_w1_c')
    vm.extend(['w2'] * 8)
    A('v_lshrrev_b32 v1, 5, v0')
    A('v_and_b32 v2, 31, v0')
    A('v_xor_b32 v2, v2, v1')
    A('v_lshlrev_b32 v1, 13, v1')
    for j in range(8):
        g = j >> 1
        rowoff = 16 * (g >> 1) + 4 * (g & 1) + 8 * (j & 1)
        A('v_xor_b32 v3, %d, v2' % (2 * j))
        A('v_lshl_add_u32 v3, v3, 4, v1')
        A('v_add_u32 %s, %d, v3' % (v(vSRC + j), rowoff * 8192))
    A('s_lshl_b32 %s, %s, 9' % (s(sB1), s(sH)))
    A('s_lshl_b32 %s, %s, 13' % (s(sRING), s(sWAVE)))
    if PRM['wrot'] == 3:
        A('s_and_b32 %s, %s, 1' % (s(sT0), s(sQ)))
        A('s_lshl_b32 %s, %s, 2' % (s(sT0), s(sT0)))
    else: A('s_mul_i32 %s, %s, %d' % (s(sT0), s(sQ), PRM['wrot']))
    A('s_add_u32 %s, %s, %s' % (s(sT0), s(sT0), s(sWAVE)))
    for i in range(4):
        A('s_add_u32 %s, %s, %d' % (s(96 + i), s(sT0), 4 * i))
        A('s_sub_u32 %s, %s, 14' % (s(sT1), s(96 + i)))
        A('s_cmp_ge_u32 %s, 14' % s(96 + i))
        A('s_cselect_b32 %s, %s, %s' % (s(96 + i), s(sT1), s(96 + i)))
    def dma(tl):
        i, T = tl >> 1, tl & 1
        o = [('s_lshl_b32 %s, %s, 18' % (s(sO2), s(96 + i)), None), ('s_add_u32 %s, %s, %s' % (s(sO2), s(sO2), s(sB1)), None)]
        if T: o.append(('s_add_u32 %s, %s, %d' % (s(sO2), s(sO2), 2 * 8192), None))
        for j in range(8):
            o.append(('s_add_u32 m0, %s, %d' % (s(sRING), (tl & 3) * 32768 + j * 1024), None))
            o.append(('buffer_load_dwordx4 %s, %s, %s offen%s lds' % (v(vSRC + j), s(S_W1, 4), s(sO2), PRM_S['wfl']), 't%d' % tl))
        return o
    def emit(x):
        if x[1]: V(x[0], x[1])
        elif callable(x[0]): A(x[0]())
        else: A(x[0])
    for x in dma(0): emit(x)
    A(vwait('i'))
    V('buffer_atomic_add v12, v11, %s, 0 offen' % s(S_DBG, 4), 'at')
    for x in dma(1): emit(x)
    A('v_and_b32 v1, 15, v0')
    A('v_lshrrev_b32 v2, 4, v0')
    A('v_xor_b32 v2, v2, v1')
    A('v_lshl_add_u32 v1, v1, 9, %s' % s(sRING))
    for k in range(4):
        A('v_xor_b32 v3, %d, v2' % (4 * k))
        A('v_lshl_add_u32 %s, v3, 4, v1' % v(vRD + k))
    A('s_cmp_lg_u32 %s, 0' % s(sTY))
    A('s_cbranch_scc1 L_w1_b2')
    A('s_mul_i32 %s, %s, %d' % (s(sT0), s(sWAVE), 16 * 528))
    A('s_add_u32 %s, %s, %d' % (s(sT0), s(sT0), R2))
    lexpr(A, v(vR2W), 'v0', [(5, 1, 528), (0, 5, 16)], s(sT0), 'v1')
    lexpr(A, v(vR2R), 'v0', [(0, 4, 528), (4, 2, 16)], R2, 'v1')
    A('s_mul_i32 %s, %s, %d' % (s(sT0), s(sH), WCU))
    A('s_lshl_b32 %s, %s, 12' % (s(sT1), s(sQ)))
    A('s_add_u32 %s, %s, %s' % (s(sT0), s(sT0), s(sT1)))
    lexpr(A, v(vDST), 'v0', [(0, 6, 16)], s(sT0), 'v1')
    for nt in range(1, 4): A('v_add_u32 %s, %d, %s' % (v(vDST + nt), nt * 1024, v(vDST)))
    A('s_mov_b32 %s, 28672' % s(sCS))
    A(vwait('w2'))
    levent(A, 1)
    for j in range(8): A('ds_write_b128 %s, %s offset:%d' % (v(vR2W), v(64 + 4 * j, 4), j * 1056))
    A('s_waitcnt lgkmcnt(0)')
    A('s_barrier')
    for nt in range(4):
        for ks in range(8):
            A('ds_read_b128 %s, %s offset:%d' % (u(W2F + (nt * 8 + ks) * 4, 4), v(vR2R), nt * 16 * 528 + ks * 64))
            if ks % 4 == 3: A('s_waitcnt lgkmcnt(8)')
    A('s_branch L_w1_c2')
    A.label('L_w1_b2')
    A('s_mul_i32 %s, %s, %d' % (s(sT0), s(sWAVE), 64 * 144))
    A('s_add_u32 %s, %s, %d' % (s(sT0), s(sT0), R2))
    lexpr(A, v(vR2W), 'v0', [(3, 3, 144), (0, 3, 8)], s(sT0), 'v1')
    lexpr(A, v(vR2R), 'v0', [(4, 2, 8 * 144), (2, 2, 144), (0, 2, 8)], R2, 'v1')
    A('s_mul_i32 %s, %s, %d' % (s(sT0), s(sQ), 2 * WCV))
    A('s_lshl_b32 %s, %s, 11' % (s(sT1), s(sH)))
    A('s_add_u32 %s, %s, %s' % (s(sT0), s(sT0), s(sT1)))
    A('s_add_u32 %s, %s, %d' % (s(sT0), s(sT0), WIMGV))
    lexpr(A, v(vDST), 'v0', [(0, 6, 16)], s(sT0), 'v1')
    for nt in range(1, 4): A('v_add_u32 %s, %d, %s' % (v(vDST + nt), (nt & 1) * WCV + (nt >> 1) * 1024, v(vDST)))
    A('s_mov_b32 %s, 32768' % s(sCS))
    A('s_mov_b32 %s, 0x05040100' % s(sT0))
    A('s_mov_b32 %s, 0x07060302' % s(sT1))
    A(vwait('w2'))
    levent(A, 1)
    for j in range(8):
        r, o = 64 + 4 * j, 96 + 4 * j
        A('v_perm_b32 %s, %s, %s, %s' % (v(o), v(r + 1), v(r), s(sT0)))
        A('v_perm_b32 %s, %s, %s, %s' % (v(o + 1), v(r + 3), v(r + 2), s(sT0)))
        A('v_perm_b32 %s, %s, %s, %s' % (v(o + 2), v(r + 1), v(r), s(sT1)))
        A('v_perm_b32 %s, %s, %s, %s' % (v(o + 3), v(r + 3), v(r + 2), s(sT1)))
        A('ds_write_b64 %s, %s offset:%d' % (v(vR2W), v(o, 2), j * 8 * 144))
        A('ds_write_b64 %s, %s offset:%d' % (v(vR2W), v(o + 2, 2), j * 8 * 144 + 64))
        if j == 4: A('s_waitcnt lgkmcnt(4)')
    A('s_waitcnt lgkmcnt(0)')
    A('s_barrier')
    for nt in range(4):
        for ks in range(8):
            for tt in range(2):
                A('ds_read_b64_tr_b16 %s, %s offset:%d' % (u(W2F + (nt * 8 + ks) * 4 + 2 * tt, 2), v(vR2R), (32 * ks + 4 * tt) * 144 + (nt >> 1) * 64 + (nt & 1) * 32))
            if ks % 2 == 1: A('s_waitcnt lgkmcnt(8)')
    A.label('L_w1_c2')
    for x in dma(2): emit(x)
    xst = ['buffer_store_dwordx4 v[32:35], v48, %s, %s offen sc1' % (s(S_WS, 4), s(sXGD + 1)),
           'buffer_store_dwordx4 v[36:39], v48, %s, %s offen offset:1024 sc1' % (s(S_WS, 4), s(sXGD + 1)),
           'buffer_store_dwordx4 v[40:43], v48, %s, %s offen sc1' % (s(S_WS, 4), s(sXGD)),
           'buffer_store_dwordx4 v[44:47], v48, %s, %s offen offset:1024 sc1' % (s(S_WS, 4), s(sXGD))]
    def reads(tl):
        o = [((lambda tl=tl: vwait('t%d' % tl)), None)]
        for ks in range(8):
            off = (tl & 3) * 32768 + (ks >> 2) * 256
            if off > 65535: reg, off = vRD + 36 + (ks & 3), off - 65536
            else: reg = vRD + (ks & 3)
            o.append(('ds_read_b128 %s, %s offset:%d' % (v(AFR[tl & 1] + 4 * ks, 4), v(reg), off), None))
        return o
    for k in range(4): A('v_add_u32 %s, 0x10000, %s' % (v(vRD + 36 + k), v(vRD + k)))
    def post(i):
        D = DD[i & 1]
        o = [('s_mul_i32 %s, %s, %s' % (s(sT3), s(96 + i), s(sCS)), None)]
        for nt in range(4):
            for T in range(2):
                d = D + (T * 4 + nt) * 4
                for r in range(4): o.append(('v_mul_f32 %s, %s, %s' % (v(d + r), s(sSC), v(d + r)), None))
                pc = PC + (i * 4 + nt) * 4 + 2 * T
                o.append(('v_cvt_pk_bf16_f32 %s, %s, %s' % (v(pc), v(d), v(d + 1)), None))
                o.append(('v_cvt_pk_bf16_f32 %s, %s, %s' % (v(pc + 1), v(d + 2), v(d + 3)), None))
            o.append(('buffer_store_dwordx4 %s, %s, %s, %s offen %s' % (v(PC + (i * 4 + nt) * 4, 4), v(vDST + nt), s(S_WS, 4), s(sT3), ['sc1', 'sc0 sc1', 'sc1 nt'][PRM['wst']]), 'st%d' % i))
        return o
    levent(A, 2)
    for x in reads(0): emit(x)
    A('s_waitcnt lgkmcnt(0)')
    A('s_barrier')
    A('s_lshl_b32 %s, %s, 6' % (s(sT0), s(sRHO)))
    A('s_lshl_b32 %s, %s, 2' % (s(sT1), s(sWAVE)))
    A('s_add_u32 %s, %s, %s' % (s(sT0), s(sT0), s(sT1)))
    A('s_add_u32 %s, %s, %d' % (s(sT0), s(sT0), FLG_W1))
    lane0_addr(A, 'v14', s(sT0))
    q2 = []
    for tl in range(8):
        if tl == PRM['wxs']:
            A(vwait('xl'))
            for x in xst: V(x, 'xs')
        if tl == 6:
            A(vwait('xs'))
            A('s_barrier')
            A('v_mov_b32 v15, 1')
            A('v_and_b32 v13, 0xffffff7f, v11')
            V('buffer_atomic_add v15, v13, %s, 0 offen offset:%d' % (s(S_DBG, 4), (D_XG - D_INIT) * 4), 'at')
        if tl == PRM['wxl']:
            xg_load(A); vm.extend(['xl'] * 4)
        if tl == 6:
            for x in q2: emit(x)
            q2 = []
            A('s_cmp_ge_u32 %s, 2' % s(sWAVE))
            A('s_cbranch_scc0 L_w1_last')
            for x in post(2):
                if callable(x[0]): A(x[0]())
                else: A(x[0])
            A('s_branch L_w1_done')
            A.label('L_w1_last')
        A('s_waitcnt lgkmcnt(0)')
        if tl == 2: levent(A, 0)
        D = DD[(tl >> 1) & 1] + (tl & 1) * 16
        if PRM['wfast']:
            q1 = []
            for d_ in {0: [3], 2: [4], 3: [5], 4: [6], 5: [7]}.get(tl, []): q1 += dma(d_)
        else: q1 = (dma(tl + 3) if tl + 3 < 8 else [])
        qr = reads(tl + 1) if tl < 7 else []
        if tl >= 2 and tl % 2 == 0: q2 = post(tl // 2 - 1)
        if tl == 2 and PRM['wfast']:
            for x in q2: emit(x)
            q2 = []
        n = 0
        for ks in range(8):
            for nt in range(4):
                A('v_mfma_f32_16x16x32_bf16 %s, %s, %s, %s' % (v(D + 4 * nt, 4), v(AFR[tl & 1] + 4 * ks, 4), u(W2F + (nt * 8 + ks) * 4, 4), '0' if ks == 0 else v(D + 4 * nt, 4)))
                n += 1
                def pop(qq):
                    while qq:
                        x = qq.pop(0); emit(x)
                        if not callable(x[0]) and not x[0].startswith('s_'): break
                if n >= 3:
                    pop(q2); pop(q2)
                if n % PRM['wsp'] == 1: pop(q1)
                if n >= 16 and n % 2 == 0: pop(qr)
                if tl in (3, 5, 7) and n == (PRM['wfn0'] if (tl == 3 and PRM['wfast']) else PRM['wfn']):
                    A(vwait('st%d' % (tl // 2 - 1)))
                    if tl == 3: levent(A, 3)
                    A('v_mov_b32 v12, %d' % (tl // 2))
                    V('buffer_store_dword v12, v14, %s, 0 offen sc1' % s(S_WS, 4), 'fl')
        for x in q1 + qr: emit(x)
    for x in q2 + post(3): emit(x)
    A.label('L_w1_done')
    A('v_mov_b32 v9, 4')
    A('s_waitcnt vmcnt(0)')
    A('buffer_store_dword v9, v14, %s, 0 offen sc1' % s(S_WS, 4))
    event(A, 2)
    levent_flush(A, 4, 9)
    A('s_waitcnt lgkmcnt(0)')
    A('s_barrier')

def phase_w1b(A):
    PC = 192
    lexpr(A, 'v8', 'v0', [(0, 4, 912), (5, 1, 32), (4, 1, 8)], 0, 'v1')
    for i in range(4):
        if i == 3:
            A('s_cmp_ge_u32 %s, 2' % s(sWAVE))
            A('s_cbranch_scc1 L_w1b_s')
        A('s_lshl_b32 %s, %s, 6' % (s(sT0), s(96 + i)))
        for nt in range(4):
            A('s_add_u32 %s, %s, %d' % (s(sT1), s(sT0), nt * 16 * 912))
            A('v_add_u32 v9, %s, v8' % s(sT1))
            pc = PC + (i * 4 + nt) * 4
            A('ds_write2_b32 v9, %s, %s offset0:0 offset1:1' % (v(pc), v(pc + 2)))
            A('ds_write2_b32 v9, %s, %s offset0:4 offset1:5' % (v(pc + 1), v(pc + 3)))
        A('s_waitcnt lgkmcnt(4)')
    A.label('L_w1b_s')
    A('s_cmp_lg_u32 %s, 0' % s(sTY))
    A('s_cbranch_scc1 L_w1b_b')
    for nt in range(4):
        lexpr(A, v(12 + nt), 'v0', [(2, 2, 8 * 912), (0, 2, 912), (4, 2, 16)], (32 * (nt >> 1) + 4 * (nt & 1)) * 912, 'v1')
    A('s_mul_i32 %s, %s, 28672' % (s(sT0), s(sH)))
    A('s_lshl_b32 %s, %s, 11' % (s(sT1), s(sQ)))
    A('s_add_u32 %s, %s, %s' % (s(sT0), s(sT0), s(sT1)))
    lexpr(A, v(vST), 'v0', [(0, 6, 16)], s(sT0), 'v1')
    A('v_add_u32 %s, 1024, %s' % (v(vST + 1), v(vST)))
    A('v_add_u32 %s, 14336, %s' % (v(vST + 2), v(vST)))
    A('v_add_u32 %s, 15360, %s' % (v(vST + 3), v(vST)))
    A('s_mov_b32 %s, %d' % (s(sO3), YX_OFF))
    A('s_branch L_w1b_c')
    A.label('L_w1b_b')
    for nt in range(4):
        lexpr(A, v(12 + nt), 'v0', [(0, 4, 912), (4, 2, 16)], 16 * nt * 912, 'v1')
    A('s_mul_i32 %s, %s, 28672' % (s(sT0), s(sH)))
    A('s_lshl_b32 %s, %s, 12' % (s(sT1), s(sQ)))
    A('s_add_u32 %s, %s, %s' % (s(sT0), s(sT0), s(sT1)))
    lexpr(A, v(vST), 'v0', [(0, 6, 16)], s(sT0), 'v1')
    for nt in range(1, 4): A('v_add_u32 %s, %d, %s' % (v(vST + nt), (nt & 1) * 2048 + (nt >> 1) * 1024, v(vST)))
    A('s_mov_b32 %s, %d' % (s(sO3), U_OFF))
    A.label('L_w1b_c')
    A('s_waitcnt lgkmcnt(0)')
    wait_dbg(A, D_RDY, 1, 4)

def phase_w2(A, ty):
    tag = 'AB'[ty]
    D, PK = 16, 48
    vXG, vFL, vFV = 8, 9, 10
    def X(b, t, ks):
        r = 64 + b * 112 + (t * 14 + ks) * 4
        return u(r if r < 256 else r - 256 + 256 + 224, 4)
    A.label('L_w2' + tag)
    lexpr(A, v(vXG), 'v0', [(0, 6, 16)], 0, 'v1')
    A('s_lshl_b32 %s, %s, 2' % (s(sT0), s(sA)))
    A('s_add_u32 %s, %s, %s' % (s(sT0), s(sT0), s(sWAVE)))
    A('s_lshl_b32 %s, %s, 2' % (s(sT0), s(sT0)))
    A('s_add_u32 %s, %s, %d' % (s(sT0), s(sT0), FLG_W2 + ty * 1792))
    A('v_mov_b32 v1, %s' % s(sT0))
    A('v_mov_b32 v2, %d' % OOB)
    A('v_cmp_eq_u32 vcc, 0, v0')
    A('v_cndmask_b32 %s, v2, v1, vcc' % v(vFL))
    A('s_mul_i32 %s, %s, 28672' % (s(sO1), s(sWAVE)))
    A('s_add_u32 %s, %s, %d' % (s(sO1), s(sO1), XG_OFF))
    A('s_mul_i32 %s, %s, %d' % (s(sT0), s(sWAVE), 16 * 28672))
    A('s_add_u32 %s, %s, %s' % (s(sO3), s(sO3), s(sT0)))
    A('s_mov_b32 %s, 0' % s(sCNT))
    def loads(b):
        out = []
        for n in range(28):
            ks, t = n >> 1, n & 1
            off = t * 14336 + ks * 1024
            g = []
            if n % 2 == 0 or True:
                g.append('s_add_u32 %s, %s, %d' % (s(sT2), s(sO1), off & ~4095))
            g.append('buffer_load_dwordx4 %s, %s, %s, %s offen offset:%d sc1' % (X(b, t, ks), v(vXG), s(S_WS, 4), s(sT2), off & 4095))
            out.append(g)
        return out
    FK = PRM['w2f']
    drop = 'buffer_store_dword v1, v2, %s, 0 offen' % s(S_WS, 4)
    wf = ['ds_read_b128 %s, %s offset:%d' % (u(WF + (nt * 14 + ks) * 4, 4), v(12 + nt), ks * 64) for ks in range(14) for nt in range(4)]
    for n_, g in enumerate(loads(0)):
        if n_ == 2 * FK: A(drop)
        for x in g: A(x)
        A(wf[2 * n_]); A(wf[2 * n_ + 1])
        if n_ % 4 == 3: A('s_waitcnt lgkmcnt(6)')
    A('s_waitcnt lgkmcnt(0)')
    A('s_add_u32 %s, %s, %d' % (s(sO1), s(sO1), 4 * 28672))
    for _ in range(4): A(drop)
    LP = 'L_w2loop' + tag
    A.label(LP)
    for b in range(2):
        ld = loads(1 - b)
        issued = 0
        for ks in range(14):
            if ks == FK:
                A('s_waitcnt vmcnt(%d)' % issued)
                A('v_mov_b32 %s, %s' % (v(vFV), s(sCNT)))
                A('buffer_store_dword %s, %s, %s, 0 offen sc1' % (v(vFV), v(vFL), s(S_WS, 4)))
                issued += 1
            if ks < FK: A('s_waitcnt vmcnt(%d)' % min(63, 26 - 2 * ks + 1 + 4 + issued))
            for t in range(2):
                for nt in range(4):
                    d = v(D + (t * 4 + nt) * 4, 4)
                    w_, x_ = u(WF + (nt * 14 + ks) * 4, 4), X(b, t, ks)
                    a_, b_ = (w_, x_) if ty == 0 else (x_, w_)
                    A('v_mfma_f32_16x16x32_bf16 %s, %s, %s, %s' % (d, a_, b_, '0' if ks == 0 else d))
                    if nt == 1:
                        for x in ld.pop(0): A(x)
                        issued += 1
        A('s_add_u32 %s, %s, %d' % (s(sO1), s(sO1), 4 * 28672))
        for k in range(4):
            if ty == 0: t, aa = k >> 1, k & 1; d0, d1 = D + (t * 4 + 2 * aa) * 4, D + (t * 4 + 2 * aa + 1) * 4
            else: d0, d1 = D + k * 4, D + (4 + k) * 4
            A('v_cvt_pk_bf16_f32 %s, %s, %s' % (v(PK + 4 * k), v(d0), v(d0 + 1)))
            A('v_cvt_pk_bf16_f32 %s, %s, %s' % (v(PK + 4 * k + 1), v(d0 + 2), v(d0 + 3)))
            A('v_cvt_pk_bf16_f32 %s, %s, %s' % (v(PK + 4 * k + 2), v(d1), v(d1 + 1)))
            A('v_cvt_pk_bf16_f32 %s, %s, %s' % (v(PK + 4 * k + 3), v(d1 + 2), v(d1 + 3)))
            A('buffer_store_dwordx4 %s, %s, %s, %s offen sc1' % (v(PK + 4 * k, 4), v(vST + k), s(S_WS, 4), s(sO3)))
        A('s_add_u32 %s, %s, %d' % (s(sO3), s(sO3), 4 * 16 * 28672))
        A('s_add_u32 %s, %s, 1' % (s(sCNT), s(sCNT)))
    A('s_cmp_lt_u32 %s, 16' % s(sCNT))
    A('s_cbranch_scc1 %s' % LP)
    A('s_waitcnt vmcnt(0)')
    A('v_mov_b32 %s, 16' % v(vFV))
    A('buffer_store_dword %s, %s, %s, 0 offen sc1' % (v(vFV), v(vFL), s(S_WS, 4)))

def wait_flags(A, vaddr, soff, sval, sleep, tmp='v3', coarse=False):
    l = A.newlabel('L_wf')
    A.label(l)
    A('buffer_load_dword %s, %s, %s, %s offen sc1' % (tmp, vaddr, s(S_WS, 4), soff))
    A('s_waitcnt vmcnt(0)')
    A('v_cmp_gt_u32 vcc, %s, %s' % (sval, tmp))
    if coarse:
        fine = A.newlabel('L_wff')
        spin_check(A, l, ['s_cmp_ge_u32 %s, %d' % (s(sSEG), PRM['fine']), 's_cbranch_scc1 %s' % fine, 's_sleep %d' % PRM['zs'], fine + ':', 's_sleep 1'])
    else: spin_check(A, l, ['s_sleep %d' % sleep])

def load_hm(A, M, va, vb, so, mm):
    l = A.newlabel('L_hm'); l2 = A.newlabel('L_hm2'); l3 = A.newlabel('L_hm3')
    ld = ['buffer_load_dwordx4 %s, %s, %s, %s offen offset:%d sc1' % (v(M + 4 * ks, 4), va if ks < 8 else vb, s(S_WS, 4), s(so), (ks & 7) * 512) for ks in range(14)]
    A('s_sub_u32 %s, %s, %d' % (s(sT2), s(so), HM_STEP))
    A('s_cmp_ge_u32 %s, %d' % (s(sSEG), PRM['fine']))
    A('s_cselect_b32 %s, %s, %s' % (s(sT2), s(sT2), s(so)))
    A.label(l)
    A('buffer_load_dword v3, %s, %s, %s offen offset:2560 sc1' % (vb, s(S_WS, 4), s(sT2)))
    A('s_waitcnt vmcnt(0)')
    A('v_cmp_eq_u32 vcc, -1, v3')
    spin_check(A, l, ['s_sleep %d' % PRM['zs']])
    A.label(l2)
    for x in ld: A(x)
    A('s_waitcnt vmcnt(13)')
    A('v_cmp_eq_u32 vcc, -1, %s' % v(M))
    spin_check(A, l2, ['s_waitcnt vmcnt(0)'])
    levent(A, 0)
    for ks in range(14):
        A('s_waitcnt vmcnt(%d)' % (13 - ks))
        mm(ks)
        r = M + 4 * ks
        if ks == 0: A('v_max_u32 v3, %s, %s' % (v(r), v(r + 1)))
        else: A('v_max3_u32 v3, v3, %s, %s' % (v(r), v(r + 1)))
        A('v_max3_u32 v3, v3, %s, %s' % (v(r + 2), v(r + 3)))
    A('v_cmp_eq_u32 vcc, -1, v3')
    spin_check(A, l2)
    levent(A, 1)

def lane0_addr(A, dst, sreg):
    A('v_mov_b32 v1, %s' % sreg)
    A('v_mov_b32 v2, %d' % OOB)
    A('v_cmp_eq_u32 vcc, 0, v0')
    A('v_cndmask_b32 %s, v2, v1, vcc' % dst)

def phase_z(A):
    D, M = 16, 64
    vHF, vHM, vFL = 8, 9, 10
    lexpr(A, v(vHM), 'v0', [(4, 2, 128), (0, 3, 16)], 0, 'v1')
    A('v_add_u32 v11, 4096, %s' % v(vHM))
    A('s_lshl_b32 %s, %s, 5' % (s(sT0), s(sA)))
    A('s_add_u32 %s, %s, %s' % (s(sT0), s(sT0), s(sWAVE)))
    A('s_lshl_b32 %s, %s, 2' % (s(sT0), s(sT0)))
    A('s_add_u32 %s, %s, %d' % (s(sT0), s(sT0), FLG_Z))
    lane0_addr(A, v(vFL), s(sT0))
    A('s_lshr_b32 %s, %s, 2' % (s(sT0), s(sH)))
    A('s_mul_i32 %s, %s, 28672' % (s(sT0), s(sT0)))
    A('s_and_b32 %s, %s, 3' % (s(sT1), s(sH)))
    A('s_lshl_b32 %s, %s, 8' % (s(sT1), s(sT1)))
    A('s_add_u32 %s, %s, %s' % (s(sT0), s(sT0), s(sT1)))
    A('s_lshl_b32 %s, %s, 12' % (s(sT1), s(sQ)))
    A('s_add_u32 %s, %s, %s' % (s(sT0), s(sT0), s(sT1)))
    lexpr(A, 'v12', 'v0', [(0, 4, 16), (4, 1, 8)], s(sT0), 'v1')
    A('v_cmp_gt_u32 vcc, 32, v0')
    A('v_cndmask_b32 %s, v2, v12, vcc' % v(vST))
    A('s_mul_i32 %s, %s, 28672' % (s(sT0), s(sH)))
    A('s_lshl_b32 %s, %s, 12' % (s(sT1), s(sQ)))
    A('s_add_u32 %s, %s, %s' % (s(sT0), s(sT0), s(sT1)))
    A('s_add_u32 %s, %s, %d' % (s(sT0), s(sT0), U_OFF))
    lexpr(A, 'v13', 'v0', [(0, 5, 128)], s(sT0), 'v1')
    A('s_mov_b32 %s, %s' % (s(sSEG), s(sWAVE)))
    A('s_mov_b32 %s, 0' % s(sCNT))
    A.label('L_zloop')
    A('s_mul_i32 %s, %s, %d' % (s(sO1), s(sSEG), HM_STEP))
    A('s_add_u32 %s, %s, %d' % (s(sO1), s(sO1), HM_OFF))
    A('s_mul_i32 %s, %s, %d' % (s(sO2), s(sSEG), HZ_STEP))
    A('s_add_u32 %s, %s, %d' % (s(sO2), s(sO2), HZ_OFF))
    def mm(ks):
        for nt in range(4):
            d = v(D + 4 * nt, 4)
            A('v_mfma_f32_16x16x32_bf16 %s, %s, %s, %s' % (d, v(M + 4 * ks, 4), u(WF + (nt * 14 + ks) * 4, 4), '0' if ks == 0 else d))
    load_hm(A, M, v(vHM), 'v11', sO1, mm)
    for nt in range(4):
        d = D + 4 * nt
        A('v_cvt_pk_bf16_f32 %s, %s, %s' % (v(d), v(d), v(d + 1)))
        A('v_cvt_pk_bf16_f32 %s, %s, %s' % (v(d + 1), v(d + 2), v(d + 3)))
        A('buffer_store_dwordx2 %s, %s, %s, %s offen offset:%d sc1' % (v(d, 2), v(vST), s(S_WS, 4), s(sO2), (nt & 1) * 2048 + (nt >> 1) * 1024))
    A('s_add_u32 %s, %s, 1' % (s(sCNT), s(sCNT)))
    A('v_mov_b32 v3, %s' % s(sCNT))
    levent(A, 2)
    A('s_waitcnt vmcnt(0)')
    A('buffer_store_dword v3, %s, %s, 0 offen sc1' % (v(vFL), s(S_WS, 4)))
    if PRM['upd']:
        A('s_add_u32 %s, %s, %d' % (s(sT0), s(sSEG), PRM['upd']))
        A('s_min_u32 %s, %s, 63' % (s(sT0), s(sT0)))
        A('s_mul_i32 %s, %s, %d' % (s(sT0), s(sT0), 16 * 28672))
        A('buffer_load_dword v14, v13, %s, %s offen sc1' % (s(S_WS, 4), s(sT0)))
    A('s_add_u32 %s, %s, 4' % (s(sSEG), s(sSEG)))
    A('s_cmp_lt_u32 %s, 63' % s(sSEG))
    A('s_cbranch_scc1 L_zloop')

sK = 82
def post_dispatch(A):
    A('s_mov_b32 s101, 0')
    A('s_and_b32 %s, %s, 7' % (s(sK), s(sA)))
    A('s_lshr_b32 %s, %s, 3' % (s(sSEG), s(sA)))
    A('s_cmp_ge_u32 %s, 4' % s(sK))
    A('s_cbranch_scc1 L_s2')

def seg_count(A, dst):
    A('s_lshr_b32 %s, %s, 2' % (dst, s(sSEG)))
    A('s_add_u32 %s, %s, 1' % (dst, dst))
    A('s_and_b32 %s, %s, 3' % (s(sT1), s(sSEG)))
    A('s_lshl_b32 %s, %s, 2' % (s(sT1), s(sT1)))

def phase_s1(A):
    PSC = '' if PRM['ploc'] else ' sc1'
    XG_, YX_, HM_, D = 256, 256 + 112, 64, 16
    vL16, vYF, vHF, vHM, vHM2, vDL, vPX, vPM, vFL = 4, 5, 6, 7, 8, 9, 10, 11, 12
    T = 40
    sHD = sH
    A.label('L_s1')
    A('s_lshl_b32 %s, %s, 2' % (s(sHD), s(sK)))
    A('s_add_u32 %s, %s, %s' % (s(sHD), s(sHD), s(sWAVE)))
    lexpr(A, v(vL16), 'v0', [(0, 6, 16)], 0, 'v1')
    A('v_min_u32 v1, 6, v0')
    A('s_mul_i32 %s, %s, 7' % (s(sT0), s(sHD)))
    A('v_add_u32 v1, %s, v1' % s(sT0))
    A('v_lshlrev_b32 v1, 4, v1')
    A('v_add_u32 %s, %d, v1' % (v(vYF), FLG_W2))
    lexpr(A, v(vHM), 'v0', [(4, 2, 128), (0, 3, 16)], 0, 'v1')
    A('v_add_u32 %s, 4096, %s' % (v(vHM2), v(vHM)))
    lexpr(A, v(vDL), 'v0', [(2, 2, 8), (0, 2, 1)], 0, 'v1')
    A('v_lshrrev_b32 v1, 4, v0')
    A('v_lshlrev_b32 v1, 3, v1')
    A('v_sub_u32 %s, %s, v1' % (v(vDL), v(vDL)))
    A('s_lshl_b32 %s, %s, 11' % (s(sT0), s(sHD)))
    A('v_add_u32 %s, %s, %s' % (v(vPX), s(sT0), v(vL16)))
    A('s_lshl_b32 %s, %s, 11' % (s(sT0), s(sK)))
    A('s_lshl_b32 %s, %s, 8' % (s(sT1), s(sWAVE)))
    A('s_add_u32 %s, %s, %s' % (s(sT0), s(sT0), s(sT1)))
    A('s_add_u32 %s, %s, %d' % (s(sT0), s(sT0), 16 * 2048))
    lexpr(A, 'v13', 'v0', [(0, 4, 16), (4, 1, 8)], s(sT0), 'v1')
    A('v_mov_b32 v2, %d' % OOB)
    A('v_cmp_gt_u32 vcc, 32, v0')
    A('v_cndmask_b32 %s, v2, v13, vcc' % v(vPM))
    A('s_lshl_b32 %s, %s, 5' % (s(sT0), s(sA)))
    A('s_add_u32 %s, %s, %s' % (s(sT0), s(sT0), s(sWAVE)))
    A('s_lshl_b32 %s, %s, 2' % (s(sT0), s(sT0)))
    A('s_add_u32 %s, %s, %d' % (s(sT0), s(sT0), FLG_P))
    lane0_addr(A, v(vFL), s(sT0))
    A('v_mov_b32 v14, 0x%x' % f2u(-1.0e9 * 1.4426950408889634))
    A('v_mov_b32 v15, 0xff800000')
    A.label('L_s1loop')
    seg_count(A, s(sT0))
    wait_flags(A, v(vYF), s(sT1), s(sT0), 16)
    A('s_mul_i32 %s, %s, 28672' % (s(sO1), s(sSEG)))
    A('s_add_u32 %s, %s, %d' % (s(sO1), s(sO1), XG_OFF))
    A('s_lshl_b32 %s, %s, 4' % (s(sO2), s(sSEG)))
    A('s_add_u32 %s, %s, %s' % (s(sO2), s(sO2), s(sHD)))
    A('s_mul_i32 %s, %s, 28672' % (s(sO2), s(sO2)))
    A('s_add_u32 %s, %s, %d' % (s(sO2), s(sO2), YX_OFF))
    for ks in range(14):
        for base, so in ((XG_, sO1), (YX_, sO2)):
            for t in range(2):
                off = t * 14336 + ks * 1024
                A('s_add_u32 %s, %s, %d' % (s(sT2), s(so), off & ~4095))
                A('buffer_load_dwordx4 %s, %s, %s, %s offen offset:%d sc1' % (u(base + (t * 14 + ks) * 4, 4), v(vL16), s(S_WS, 4), s(sT2), off & 4095))
    def Dr(qt, t): return D + (qt * 3 + t) * 4
    for ks in range(14):
        A('s_waitcnt vmcnt(%d)' % (52 - 4 * ks))
        for qt in range(2):
            for t in range(2):
                d = v(Dr(qt, t), 4)
                A('v_mfma_f32_16x16x32_bf16 %s, %s, %s, %s' % (d, u(XG_ + (t * 14 + ks) * 4, 4), u(YX_ + (qt * 14 + ks) * 4, 4), '0' if ks == 0 else d))
    for qt in range(2):
        for t in range(2):
            for r in range(4):
                A('v_cmp_le_i32 vcc, %d, %s' % (4 * (t - qt) + r, v(vDL)))
                A('v_cndmask_b32 %s, v14, %s, vcc' % (v(Dr(qt, t) + r), v(Dr(qt, t) + r)))
        d = Dr(qt, 0)
        A('v_max3_f32 %s, %s, %s, %s' % (v(T + qt), v(d), v(d + 1), v(d + 2)))
        A('v_max3_f32 %s, %s, %s, %s' % (v(T + qt), v(T + qt), v(d + 3), v(d + 4)))
        A('v_max3_f32 %s, %s, %s, %s' % (v(T + qt), v(T + qt), v(d + 5), v(d + 6)))
        A('v_max_f32 %s, %s, %s' % (v(T + qt), v(T + qt), v(d + 7)))
    A('s_mul_i32 %s, %s, %d' % (s(sO1), s(sSEG), HM_STEP))
    A('s_add_u32 %s, %s, %d' % (s(sO1), s(sO1), HM_OFF))
    A('s_mul_i32 %s, %s, 40960' % (s(sO3), s(sSEG)))
    A('s_add_u32 %s, %s, %d' % (s(sO3), s(sO3), PP_OFF))
    def mm(ks):
        for qt in range(2):
            d = v(Dr(qt, 2), 4)
            A('v_mfma_f32_16x16x32_bf16 %s, %s, %s, %s' % (d, v(HM_ + 4 * ks, 4), u(YX_ + (qt * 14 + ks) * 4, 4), '0' if ks == 0 else d))
    load_hm(A, HM_, v(vHM), v(vHM2), sO1, mm)
    A('v_cmp_gt_u32 vcc, 32, v0')
    def xred(op):
        for sw in ('v_permlane16_swap_b32', 'v_permlane32_swap_b32'):
            for qt in range(2): A('v_mov_b32 %s, %s' % (v(T + 2 + qt), v(T + qt)))
            for qt in range(2): A('%s %s, %s' % (sw, v(T + qt), v(T + 2 + qt)))
            for qt in range(2): A('%s %s, %s, %s' % (op, v(T + qt), v(T + qt), v(T + 2 + qt)))
    for qt in range(2):
        d = Dr(qt, 2)
        for r in range(4): A('v_cndmask_b32 %s, v15, %s, vcc' % (v(d + r), v(d + r)))
        A('v_max3_f32 %s, %s, %s, %s' % (v(T + qt), v(T + qt), v(d), v(d + 1)))
        A('v_max3_f32 %s, %s, %s, %s' % (v(T + qt), v(T + qt), v(d + 2), v(d + 3)))
    xred('v_max_f32')
    for qt in range(2):
        d = Dr(qt, 0)
        for i in range(12): A('v_sub_f32 %s, %s, %s' % (v(d + i), v(d + i), v(T + qt)))
        for i in range(12): A('v_exp_f32 %s, %s' % (v(d + i), v(d + i)))
    for qt in range(2):
        d = Dr(qt, 0)
        A('v_add_f32 %s, %s, %s' % (v(T + qt), v(d), v(d + 1)))
        for i in range(2, 12): A('v_add_f32 %s, %s, %s' % (v(T + qt), v(T + qt), v(d + i)))
    xred('v_add_f32')
    for qt in range(2): A('v_rcp_f32 %s, %s' % (v(T + qt), v(T + qt)))
    for qt in range(2):
        d = Dr(qt, 0); o = T + 4 + 8 * qt
        for i in range(12): A('v_mul_f32 %s, %s, %s' % (v(d + i), v(d + i), v(T + qt)))
        for i in range(6): A('v_cvt_pk_bf16_f32 %s, %s, %s' % (v(o + i), v(d + 2 * i), v(d + 2 * i + 1)))
        A('buffer_store_dwordx4 %s, %s, %s, %s offen offset:%d%s' % (v(o, 4), v(vPX), s(S_WS, 4), s(sO3), qt * 1024, PSC))
        A('buffer_store_dwordx2 %s, %s, %s, %s offen offset:%d%s' % (v(o + 4, 2), v(vPM), s(S_WS, 4), s(sO3), qt * 1024, PSC))
    A('s_add_u32 s101, s101, 1')
    A('v_mov_b32 v3, s101')
    levent(A, 2)
    A('s_waitcnt vmcnt(0)')
    A('buffer_store_dword v3, %s, %s, 0 offen%s' % (v(vFL), s(S_WS, 4), PSC))
    A('s_add_u32 %s, %s, 14' % (s(sSEG), s(sSEG)))
    A('s_cmp_lt_u32 %s, 64' % s(sSEG))
    A('s_cbranch_scc1 L_s1loop')

def phase_s2(A):
    U_, Z_, P_, D = 256, 64, 128, 16
    vV, vGF, vPF, vP, vO, vO2 = 4, 5, 6, 7, 8, 9
    A.label('L_s2')
    A('s_sub_u32 %s, %s, 4' % (s(sK), s(sK)))
    A('s_lshl_b32 %s, %s, 1' % (s(sT3), s(sK)))
    A('s_lshr_b32 %s, %s, 1' % (s(sT0), s(sWAVE)))
    A('s_add_u32 %s, %s, %s' % (s(sT3), s(sT3), s(sT0)))
    A('s_cmp_ge_u32 %s, 7' % s(sT3))
    A('s_cbranch_scc1 L_exit')
    A('s_lshl_b32 %s, %s, 12' % (s(sT0), s(sT3)))
    lexpr(A, v(vV), 'v0', [(0, 6, 16)], s(sT0), 'v1')
    A('s_lshl_b32 %s, %s, 4' % (s(sT0), s(sT3)))
    lexpr(A, v(vGF), 'v0', [(0, 4, 112)], s(sT0), 'v1')
    A('s_andn2_b32 %s, %s, 7' % (s(sT0), s(sA)))
    A('s_lshl_b32 %s, %s, 7' % (s(sT0), s(sT0)))
    A('s_add_u32 %s, %s, %d' % (s(sT0), s(sT0), FLG_P))
    lexpr(A, v(vPF), 'v0', [(2, 2, 128), (0, 2, 4)], s(sT0), 'v1')
    A('s_and_b32 %s, %s, 1' % (s(sT4), s(sWAVE)))
    A('s_lshl_b32 %s, %s, 10' % (s(sT0), s(sT4)))
    lexpr(A, v(vP), 'v0', [(0, 6, 16)], s(sT0), 'v1')
    A('s_mul_i32 %s, %s, %d' % (s(sT0), s(sT4), 4 * 1792))
    A('s_lshl_b32 %s, %s, 7' % (s(sT1), s(sT3)))
    A('s_add_u32 %s, %s, %s' % (s(sT0), s(sT0), s(sT1)))
    A('s_add_u32 %s, %s, 896' % (s(sT0), s(sT0)))
    lexpr(A, v(vO), 'v0', [(2, 2, 8 * 1792), (0, 2, 1792), (4, 2, 16)], s(sT0), 'v1')
    A.label('L_s2loop')
    seg_count(A, s(sCNT))
    A('s_add_u32 %s, %s, %d' % (s(sO3), s(sT1), FLG_Z))
    A('s_add_u32 %s, %s, %d' % (s(sT1), s(sT1), FLG_W2 + 1792))
    wait_flags(A, v(vGF), s(sT1), s(sCNT), 16)
    A('s_mul_i32 %s, %s, %d' % (s(sO1), s(sSEG), 16 * 28672))
    A('s_add_u32 %s, %s, %d' % (s(sO1), s(sO1), U_OFF))
    for c in range(16):
        for tl in range(4):
            A('buffer_load_dwordx4 %s, %s, %s, %s offen offset:%d sc1' % (u(U_ + (c * 4 + tl) * 4, 4), v(vV), s(S_WS, 4), s(sO1), tl * 1024))
        A('s_add_u32 %s, %s, 28672' % (s(sO1), s(sO1)))
        if c == 11: A('s_waitcnt vmcnt(32)')
    A('s_mul_i32 %s, %s, %d' % (s(sT2), s(sSEG), HM_STEP))
    A('s_add_u32 %s, %s, %d' % (s(sT2), s(sT2), HM_OFF))
    A('v_mov_b32 v10, 0')
    lp = A.newlabel('L_s2p'); A.label(lp)
    A('buffer_load_dword v3, v10, %s, %s offen sc1' % (s(S_WS, 4), s(sT2)))
    A('s_waitcnt vmcnt(0)')
    A('v_cmp_eq_u32 vcc, -1, v3')
    spin_check(A, lp, ['s_sleep %d' % PRM['zs']])
    A('s_add_u32 s101, s101, 1')
    A('v_lshl_add_u32 v10, %s, 3, %s' % (v(vGF), s(sO3)))
    A('v_and_b32 v1, 16, v0')
    A('v_cmp_eq_u32 vcc, 0, v1')
    A('v_cndmask_b32 v10, %s, v10, vcc' % v(vPF))
    A('v_mov_b32 v11, %s' % s(sCNT))
    A('v_mov_b32 v1, s101')
    A('v_cndmask_b32 v11, v1, v11, vcc')
    A('s_mul_i32 %s, %s, %d' % (s(sO1), s(sSEG), HZ_STEP))
    A('s_add_u32 %s, %s, %d' % (s(sO1), s(sO1), HZ_OFF))
    A('s_mul_i32 %s, %s, 40960' % (s(sO2), s(sSEG)))
    A('s_add_u32 %s, %s, %d' % (s(sO2), s(sO2), PP_OFF))
    levent(A, 0)
    wait_flags(A, 'v10', '0', 'v11', 1, coarse=True)
    levent(A, 1)
    for c in range(20):
        A('buffer_load_dwordx4 %s, %s, %s, %s offen offset:%d sc1' % (v(P_ + 4 * c, 4), v(vP), s(S_WS, 4), s(sO2), (c & 1) * 2048))
        if c & 1: A('s_add_u32 %s, %s, 4096' % (s(sO2), s(sO2)))
    for c in range(4):
        for tl in range(4):
            A('buffer_load_dwordx4 %s, %s, %s, %s offen offset:%d sc1' % (v(Z_ + (c * 4 + tl) * 4, 4), v(vV), s(S_WS, 4), s(sO1), tl * 1024))
        A('s_add_u32 %s, %s, 28672' % (s(sO1), s(sO1)))
    for c in range(20):
        A('s_waitcnt vmcnt(%d)' % (35 - c if c < 16 else 12 - 4 * (c - 16)))
        for tl in range(4):
            d = v(D + 4 * tl, 4)
            a_ = u(U_ + (c * 4 + tl) * 4, 4) if c < 16 else v(Z_ + ((c - 16) * 4 + tl) * 4, 4)
            A('v_mfma_f32_16x16x32_bf16 %s, %s, %s, %s' % (d, a_, v(P_ + 4 * c, 4), '0' if c == 0 else d))
    levent(A, 2)
    A('s_mul_i32 %s, %s, %d' % (s(sO1), s(sSEG), 32 * 1792))
    for b in range(2):
        e, o, pk = D + 8 * b, D + 8 * b + 4, 32 + 4 * b
        for r in range(4): A('v_cvt_pk_bf16_f32 %s, %s, %s' % (v(pk + r), v(e + r), v(o + r)))
        A('buffer_store_dwordx4 %s, %s, %s, %s offen offset:%d' % (v(pk, 4), v(vO), s(S_OUT, 4), s(sO1), 64 * b))
    A('s_add_u32 %s, %s, 14' % (s(sSEG), s(sSEG)))
    A('s_cmp_lt_u32 %s, 64' % s(sSEG))
    A('s_cbranch_scc1 L_s2loop')

def phase_post(A):
    XG_, YX_, Z_, HM_, U_, D, PF = 256, 256 + 112, 256 + 168, 64, 128, 16, 64
    vL16, vF1, vHM, vHM2, vDL, vPX, vPM, vFL, vPF, vZF, vV, vO = 4, 5, 6, 7, 8, 9, 10, 11, 12, 13, 60, 61
    T = 40
    sHD, sQT, sTK = sH, sQ, 101
    A('s_barrier')
    A('s_mov_b32 %s, 0' % s(sTK))
    A('s_and_b32 %s, %s, 7' % (s(sK), s(sA)))
    A('s_lshr_b32 %s, %s, 3' % (s(sSEG), s(sA)))
    A('s_and_b32 %s, %s, 1' % (s(sQT), s(sK)))
    A('s_lshr_b32 %s, %s, 1' % (s(sK), s(sK)))
    A('s_lshl_b32 %s, %s, 2' % (s(sHD), s(sK)))
    A('s_add_u32 %s, %s, %s' % (s(sHD), s(sHD), s(sWAVE)))
    A('s_min_u32 %s, %s, 13' % (s(sT3), s(sHD)))
    lexpr(A, v(vL16), 'v0', [(0, 6, 16)], 0, 'v1')
    A('s_lshr_b32 %s, %s, 1' % (s(sT0), s(sT3)))
    lexpr(A, 'v16', 'v0', [(0, 4, 7)], s(sT0), 'v1')
    A('v_lshlrev_b32 %s, 7, v16' % v(vZF))
    A('v_add_u32 %s, %d, %s' % (v(vZF), FLG_Z, v(vZF)))
    A('v_add_u32 v16, 112, v16')
    A('v_and_b32 v1, 7, v0')
    A('v_min_u32 v1, 6, v1')
    A('s_mul_i32 %s, %s, 7' % (s(sT0), s(sHD)))
    A('v_add_u32 v1, %s, v1' % s(sT0))
    A('v_cmp_gt_u32 vcc, 16, v0')
    A('v_cndmask_b32 v1, v1, v16, vcc')
    A('v_lshlrev_b32 v1, 4, v1')
    A('v_add_u32 %s, %d, v1' % (v(vF1), FLG_W2))
    lexpr(A, v(vHM), 'v0', [(4, 2, 128), (0, 3, 16)], 0, 'v1')
    A('v_add_u32 %s, 4096, %s' % (v(vHM2), v(vHM)))
    A('s_lshl_b32 %s, %s, 2' % (s(sT0), s(sQT)))
    lexpr(A, v(vDL), 'v0', [(2, 2, 8), (0, 2, 1)], s(sT0), 'v1')
    A('v_lshrrev_b32 v1, 4, v0')
    A('v_lshlrev_b32 v1, 3, v1')
    A('v_sub_u32 %s, %s, v1' % (v(vDL), v(vDL)))
    A('s_mul_i32 %s, %s, 20480' % (s(sT2), s(sQT)))
    A('s_lshl_b32 %s, %s, 10' % (s(sT0), s(sHD)))
    A('s_add_u32 %s, %s, %s' % (s(sT0), s(sT0), s(sT2)))
    A('v_add_u32 %s, %s, %s' % (v(vPX), s(sT0), v(vL16)))
    A('s_lshl_b32 %s, %s, 10' % (s(sT0), s(sK)))
    A('s_lshl_b32 %s, %s, 8' % (s(sT1), s(sWAVE)))
    A('s_add_u32 %s, %s, %s' % (s(sT0), s(sT0), s(sT1)))
    A('s_add_u32 %s, %s, %s' % (s(sT0), s(sT0), s(sT2)))
    A('s_add_u32 %s, %s, %d' % (s(sT0), s(sT0), 16 * 1024))
    lexpr(A, 'v16', 'v0', [(0, 4, 16), (4, 1, 8)], s(sT0), 'v1')
    A('v_mov_b32 v2, %d' % OOB)
    A('v_cmp_gt_u32 vcc, 32, v0')
    A('v_cndmask_b32 %s, v2, v16, vcc' % v(vPM))
    A('s_mul_i32 %s, %s, 5120' % (s(sSC), s(sWAVE)))
    A('s_add_u32 %s, %s, %s' % (s(83), s(sSC), s(sT2)))
    A('s_lshl_b32 %s, %s, 5' % (s(sT0), s(sA)))
    A('s_add_u32 %s, %s, %s' % (s(sT0), s(sT0), s(sWAVE)))
    A('s_lshl_b32 %s, %s, 2' % (s(sT0), s(sT0)))
    A('s_add_u32 %s, %s, %d' % (s(sT0), s(sT0), FLG_P))
    lane0_addr(A, v(vFL), s(sT0))
    A('s_andn2_b32 %s, %s, 6' % (s(sT0), s(sA)))
    A('s_lshl_b32 %s, %s, 7' % (s(sT0), s(sT0)))
    A('s_add_u32 %s, %s, %d' % (s(sT0), s(sT0), FLG_P))
    lexpr(A, v(vPF), 'v0', [(2, 2, 256), (0, 2, 4)], s(sT0), 'v1')
    A('s_lshl_b32 %s, %s, 11' % (s(sT0), s(sT3)))
    A('v_add_u32 %s, %s, %s' % (v(vV), s(sT0), v(vL16)))
    A('s_mul_i32 %s, %s, %d' % (s(sT0), s(sQT), 4 * 1792))
    A('s_lshl_b32 %s, %s, 6' % (s(sT1), s(sT3)))
    A('s_add_u32 %s, %s, %s' % (s(sT0), s(sT0), s(sT1)))
    A('s_add_u32 %s, %s, 896' % (s(sT0), s(sT0)))
    A('s_cmp_lt_u32 %s, 14' % s(sHD))
    A('s_cselect_b32 %s, %s, 0x70000000' % (s(sT0), s(sT0)))
    lexpr(A, v(vO), 'v0', [(2, 2, 8 * 1792), (0, 2, 1792), (4, 2, 16)], s(sT0), 'v1')
    A('v_mov_b32 v14, 0x%x' % f2u(-1.0e9 * 1.4426950408889634))
    A('v_mov_b32 v15, 0xff800000')
    A.label('L_ploop')
    seg_count(A, s(sCNT))
    A('s_mov_b32 %s, %s' % (s(sT4), s(sT1)))
    wait_flags(A, v(vF1), s(sT1), s(sCNT), 16)
    A('s_mul_i32 %s, %s, 28672' % (s(sO1), s(sSEG)))
    A('s_add_u32 %s, %s, %d' % (s(sO1), s(sO1), XG_OFF))
    A('s_lshl_b32 %s, %s, 4' % (s(sO2), s(sSEG)))
    A('s_add_u32 %s, %s, %s' % (s(sO2), s(sO2), s(sHD)))
    A('s_lshl_b32 %s, %s, 1' % (s(sO2), s(sO2)))
    A('s_add_u32 %s, %s, %s' % (s(sO2), s(sO2), s(sQT)))
    A('s_mul_i32 %s, %s, 14336' % (s(sO2), s(sO2)))
    A('s_add_u32 %s, %s, %d' % (s(sO2), s(sO2), YX_OFF))
    for ks in range(14):
        for dst, so, off in ((YX_ + ks * 4, sO2, ks * 1024), (XG_ + ks * 4, sO1, ks * 1024), (XG_ + (14 + ks) * 4, sO1, 14336 + ks * 1024)):
            A('s_add_u32 %s, %s, %d' % (s(sT2), s(so), off & ~4095))
            A('buffer_load_dwordx4 %s, %s, %s, %s offen offset:%d sc1' % (u(dst, 4), v(vL16), s(S_WS, 4), s(sT2), off & 4095))
    A('s_mul_i32 %s, %s, %d' % (s(sO1), s(sSEG), 16 * 28672))
    A('s_add_u32 %s, %s, %d' % (s(sO1), s(sO1), U_OFF))
    nu = 0
    def uload(c):
        for tl in range(2):
            A('buffer_load_dwordx4 %s, %s, %s, %s offen offset:%d sc1' % (v(U_ + (c * 2 + tl) * 4, 4), v(vV), s(S_WS, 4), s(sO1), tl * 1024))
        A('s_add_u32 %s, %s, 28672' % (s(sO1), s(sO1)))
    for ks in range(14):
        A('s_waitcnt vmcnt(%d)' % (39 - 3 * ks + nu))
        for t in range(2):
            d = v(D + 4 * t, 4)
            A('v_mfma_f32_16x16x32_bf16 %s, %s, %s, %s' % (d, u(XG_ + (t * 14 + ks) * 4, 4), u(YX_ + ks * 4, 4), '0' if ks == 0 else d))
        uload(ks); nu += 2
    uload(14); uload(15)
    for t in range(2):
        for r in range(4):
            A('v_cmp_le_i32 vcc, %d, %s' % (4 * t + r, v(vDL)))
            A('v_cndmask_b32 %s, v14, %s, vcc' % (v(D + 4 * t + r), v(D + 4 * t + r)))
    A('v_max3_f32 %s, %s, %s, %s' % (v(T), v(D), v(D + 1), v(D + 2)))
    A('v_max3_f32 %s, %s, %s, %s' % (v(T), v(T), v(D + 3), v(D + 4)))
    A('v_max3_f32 %s, %s, %s, %s' % (v(T), v(T), v(D + 5), v(D + 6)))
    A('v_max_f32 %s, %s, %s' % (v(T), v(T), v(D + 7)))
    A('s_mul_i32 %s, %s, %d' % (s(sO1), s(sSEG), HM_STEP))
    A('s_add_u32 %s, %s, %d' % (s(sO1), s(sO1), HM_OFF))
    if PRM['pring']:
        A('s_and_b32 %s, %s, 1' % (s(sO3), s(sTK)))
        A('s_lshr_b32 %s, %s, 3' % (s(sT0), s(sA)))
        A('s_lshl_b32 %s, %s, 1' % (s(sT0), s(sT0)))
        A('s_add_u32 %s, %s, %s' % (s(sO3), s(sO3), s(sT0)))
        A('s_mul_i32 %s, %s, 40960' % (s(sO3), s(sO3)))
    else: A('s_mul_i32 %s, %s, 40960' % (s(sO3), s(sSEG)))
    A('s_add_u32 %s, %s, %d' % (s(sO3), s(sO3), PP_OFF))
    A('buffer_load_dword v36, %s, %s, %s offen sc1' % (v(vPX), s(S_WS, 4), s(sO3)))
    A('buffer_load_dword v36, %s, %s, %s offen sc1' % (v(vPM), s(S_WS, 4), s(sO3)))
    A('v_add_u32 v62, %s, %s' % (s(sT4), v(vZF)))
    A('s_cmp_lg_u32 %s, 63' % s(sSEG))
    A('s_cbranch_scc1 L_pz63')
    A('s_min_u32 %s, %s, 13' % (s(sT0), s(sHD)))
    A('s_lshl_b32 %s, %s, 9' % (s(sT0), s(sT0)))
    A('s_add_u32 %s, %s, %d' % (s(sT0), s(sT0), FLG_W1 + 32))
    lexpr(A, 'v62', 'v0', [(0, 2, 128)], s(sT0), 'v1')
    A.label('L_pz63')
    A('v_and_b32 v1, 16, v0')
    A('v_cmp_eq_u32 vcc, 0, v1')
    A('v_cndmask_b32 v62, %s, v62, vcc' % v(vPF))
    A('s_add_u32 %s, %s, 1' % (s(sT0), s(sTK)))
    A('v_mov_b32 v63, %s' % s(sCNT))
    A('v_mov_b32 v1, %s' % s(sT0))
    A('v_cndmask_b32 v63, v1, v63, vcc')
    def mm(ks):
        d = v(D + 8, 4)
        A('v_mfma_f32_16x16x32_bf16 %s, %s, %s, %s' % (d, v(HM_ + 4 * ks, 4), u(YX_ + ks * 4, 4), '0' if ks == 0 else d))
    load_hm(A, HM_, v(vHM), v(vHM2), sO1, mm)
    A('v_cmp_gt_u32 vcc, 32, v0')
    def xred(op):
        for sw in ('v_permlane16_swap_b32', 'v_permlane32_swap_b32'):
            A('v_mov_b32 %s, %s' % (v(T + 1), v(T)))
            A('%s %s, %s' % (sw, v(T), v(T + 1)))
            A('%s %s, %s, %s' % (op, v(T), v(T), v(T + 1)))
    for r in range(4): A('v_cndmask_b32 %s, v15, %s, vcc' % (v(D + 8 + r), v(D + 8 + r)))
    A('v_max3_f32 %s, %s, %s, %s' % (v(T), v(T), v(D + 8), v(D + 9)))
    A('v_max3_f32 %s, %s, %s, %s' % (v(T), v(T), v(D + 10), v(D + 11)))
    xred('v_max_f32')
    for i in range(12): A('v_sub_f32 %s, %s, %s' % (v(D + i), v(D + i), v(T)))
    for i in range(12): A('v_exp_f32 %s, %s' % (v(D + i), v(D + i)))
    A('v_pk_add_f32 %s, %s, %s' % (v(T + 2, 2), v(D, 2), v(D + 2, 2)))
    for i in range(4, 12, 2): A('v_pk_add_f32 %s, %s, %s' % (v(T + 2, 2), v(T + 2, 2), v(D + i, 2)))
    A('v_add_f32 %s, %s, %s' % (v(T), v(T + 2), v(T + 3)))
    xred('v_add_f32')
    A('v_rcp_f32 %s, %s' % (v(T), v(T)))
    o = T + 4
    for i in range(0, 12, 2):
        A('v_pk_mul_f32 %s, %s, %s op_sel_hi:[1,0]' % (v(D + i, 2), v(D + i, 2), v(T, 2)))
        A('v_cvt_pk_bf16_f32 %s, %s, %s' % (v(o + i // 2), v(D + i), v(D + i + 1)))
    A('buffer_store_dwordx4 %s, %s, %s, %s offen' % (v(o, 4), v(vPX), s(S_WS, 4), s(sO3)))
    A('buffer_store_dwordx2 %s, %s, %s, %s offen' % (v(o + 4, 2), v(vPM), s(S_WS, 4), s(sO3)))
    A('s_add_u32 %s, %s, 1' % (s(sTK), s(sTK)))
    A('v_mov_b32 v3, %s' % s(sTK))
    A('s_add_u32 %s, %s, %s' % (s(sO3), s(sO3), s(83)))
    A('s_add_u32 %s, %s, 4096' % (s(sO2), s(sO3)))
    A('s_mul_i32 %s, %s, %d' % (s(sO1), s(sSEG), HZ_STEP))
    A('s_add_u32 %s, %s, %d' % (s(sO1), s(sO1), HZ_OFF))
    A('s_waitcnt vmcnt(0)')
    A('buffer_store_dword v3, %s, %s, 0 offen' % (v(vFL), s(S_WS, 4)))
    levent(A, 2)
    zp = 'buffer_load_dword v3, v62, %s, 0 offen sc1' % s(S_WS, 4)
    A.label('L_pp')
    A(zp)
    A('s_waitcnt vmcnt(0)')
    A('v_cmp_gt_u32 vcc, v63, v3')
    A('s_and_b32 %s, vcc_lo, 0xffff' % s(sT3))
    A('s_lshr_b32 vcc_lo, vcc_lo, 16')
    A('s_mov_b32 vcc_hi, 0')
    A('s_cmp_lg_u32 vcc_lo, 0')
    A('s_cbranch_scc1 L_pp_r')
    STUBS.append(('L_pp_r', 'L_pp', ['s_sleep 1']))
    A('s_mov_b32 m0, %s' % s(sSC))
    for i in range(4): A('buffer_load_dwordx4 %s, %s, %s offen offset:%d sc1 lds' % (v(vL16), s(S_WS, 4), s(sO3), i * 1024))
    A('s_add_u32 m0, %s, 4096' % s(sSC))
    A('buffer_load_dwordx4 %s, %s, %s offen sc1 lds' % (v(vL16), s(S_WS, 4), s(sO2)))
    def zloads():
        for c in range(4):
            for tl in range(2):
                A('buffer_load_dwordx4 %s, %s, %s, %s offen offset:%d sc1' % (u(Z_ + (c * 2 + tl) * 4, 4), v(vV), s(S_WS, 4), s(sO1), tl * 1024))
            if c < 3: A('s_add_u32 %s, %s, 28672' % (s(sO1), s(sO1)))
    A('s_cmp_lg_u32 %s, 0' % s(sT3))
    A('s_cbranch_scc1 L_pz0')
    zloads()
    A('s_waitcnt vmcnt(8)')
    A('s_barrier')
    A('s_branch L_pz2')
    A.label('L_pz0')
    A(zp)
    A('s_waitcnt vmcnt(1)')
    A('s_barrier')
    A('s_waitcnt vmcnt(0)')
    A.label('L_pz')
    A('v_cmp_gt_u32 vcc, v63, v3')
    fine = A.newlabel('L_pzf')
    spin_check(A, 'L_pz', ['s_cmp_ge_u32 %s, %d' % (s(sSEG), PRM['fine']), 's_cbranch_scc1 %s' % fine, 's_sleep %d' % PRM['zs'], fine + ':', zp, 's_waitcnt vmcnt(0)'])
    zloads()
    A.label('L_pz2')
    def pread(c): return 'ds_read_b128 %s, %s offset:%d' % (v(PF + 4 * (c % 12), 4), v(vL16), c * 1024)
    for c in range(10): A(pread(c))
    for c in range(20):
        if c >= 16: A('s_waitcnt vmcnt(%d)' % (6 - 2 * (c - 16)))
        A('s_waitcnt lgkmcnt(%d)' % min(9, 19 - c))
        for tl in range(2):
            d = v(D + 4 * tl, 4)
            a_ = v(U_ + (c * 2 + tl) * 4, 4) if c < 16 else u(Z_ + ((c - 16) * 2 + tl) * 4, 4)
            A('v_mfma_f32_16x16x32_bf16 %s, %s, %s, %s' % (d, a_, v(PF + 4 * (c % 12), 4), '0' if c == 0 else d))
        if c + 10 < 20: A(pread(c + 10))
    A('s_mul_i32 %s, %s, %d' % (s(sO1), s(sSEG), 32 * 1792))
    for r in range(4): A('v_cvt_pk_bf16_f32 %s, %s, %s' % (v(32 + r), v(D + r), v(D + 4 + r)))
    A('buffer_store_dwordx4 v[32:35], %s, %s, %s offen%s' % (v(vO), s(S_OUT, 4), s(sO1), OSC()))
    A('s_add_u32 %s, %s, 14' % (s(sSEG), s(sSEG)))
    A('s_cmp_lt_u32 %s, 64' % s(sSEG))
    A('s_cbranch_scc1 L_ploop')

LOG2E = 1.4426950408889634
def phase_a1(A):
    ST = 208
    def WQ(x, tl, ks):
        i = ((x * 2 + tl) * 14 + ks) * 4
        return a(i, 4) if i < 256 else v(176 + i - 256, 4)
    def WQh(x, tl, ks, t):
        i = ((x * 2 + tl) * 14 + ks) * 4 + 2 * t
        return a(i, 2) if i < 256 else v(176 + i - 256, 2)
    X_, D, KV, PQ = 120, 16, 64, 80
    T = 104
    vG, vW, vR, vR2, vX = 4, 5, 6, 7, 8
    sBLK, sI = sSEG, sCNT
    A('s_barrier')
    lexpr(A, v(vG), 'v0', [(2, 4, 2688), (0, 2, 16)], 0, 'v1')
    A('s_mul_i32 %s, %s, %d' % (s(sO1), s(sWAVE), 112 * 2688))
    A('s_mul_i32 %s, %s, 56' % (s(sT0), s(sH)))
    A('s_add_u32 %s, %s, %s' % (s(sO1), s(sO1), s(sT0)))
    for j in range(21):
        A('buffer_load_dwordx4 %s, %s, %s, %s offen offset:%d' % (v(16 + 4 * j, 4), v(vG), s(S_AW, 4), s(sO1), (j % 3) * 896))
        if j % 3 == 2: A('s_add_u32 %s, %s, %d' % (s(sO1), s(sO1), 16 * 2688))
    A('s_mul_i32 %s, %s, %d' % (s(sT0), s(sWAVE), 112 * ST))
    lexpr(A, v(vW), 'v0', [(2, 4, ST), (0, 2, 16)], s(sT0), 'v1')
    for j in range(21):
        A('s_waitcnt vmcnt(%d)' % (20 - j))
        A('ds_write_b128 %s, %s offset:%d' % (v(vW), v(16 + 4 * j, 4), (j // 3) * 16 * ST + (j % 3) * 64))
        if j % 6 == 5: A('s_waitcnt lgkmcnt(6)')
    lexpr(A, v(vR), 'v0', [(4, 2, 8 * ST), (2, 2, ST), (0, 2, 16)], 0, 'v1')
    A('v_add_u32 %s, %d, %s' % (v(vR2), 7 * 32 * ST, v(vR)))
    A('s_waitcnt lgkmcnt(0)')
    A('s_barrier')
    n = 0
    for x in range(3):
        for tl in range(2):
            for ks in range(14):
                for t in range(2):
                    A('ds_read_b64_tr_b16 %s, %s offset:%d' % (WQh(x, tl, ks, t), v(vR if ks < 7 else vR2), (32 * (ks % 7) + 4 * t) * ST + x * 64 + tl * 8))
                    n += 1
                    if n % 6 == 0: A('s_waitcnt lgkmcnt(6)')
    lexpr(A, v(vX), 'v0', [(0, 4, 896), (4, 2, 16)], 0, 'v1')
    A('v_add_u32 v9, %d, %s' % (16 * 896, v(vX)))
    for i in range(16): A('v_mov_b32 %s, 0' % v(KV + i))
    A('s_mov_b32 %s, 0x%x' % (s(sSC), f2u(LOG2E)))
    A('s_mov_b32 %s, 0x%x' % (s(sO3), f2u(1e-6)))
    A('v_and_b32 v1, 15, v0')
    A('v_cmp_le_u32 s[96:97], 12, v1')
    A('v_cmp_eq_u32 s[98:99], 12, v1')
    A('v_cmp_le_u32 s[100:101], 48, v0')
    A('s_lshl_b32 %s, %s, 2' % (s(sBLK), s(sQ)))
    A('s_add_u32 %s, %s, %s' % (s(sBLK), s(sBLK), s(sWAVE)))
    A('s_waitcnt lgkmcnt(0)')
    def phi(r):
        A('v_mul_f32 %s, %s, %s' % (v(T), s(sSC), v(r)))
        A('v_exp_f32 %s, %s' % (v(T), v(T)))
        A('v_cmp_lt_f32 vcc, 0, %s' % v(r))
        A('v_add_f32 %s, 1.0, %s' % (v(r), v(r)))
        A('v_cndmask_b32 %s, %s, %s, vcc' % (v(r), v(T), v(r)))
        A('v_add_f32 %s, %s, %s' % (v(r), s(sO3), v(r)))
    def Dk(x, t, tl): return D + (((x - 1) * 2 + tl) * 2 + t) * 4
    def Dq(t, tl): return D + 32 + (t * 2 + tl) * 4
    A('s_mov_b32 %s, 0' % s(sI))
    A.label('L_a1loop')
    A('s_mul_i32 %s, %s, %d' % (s(sO1), s(sBLK), 32 * 896))
    for hf in range(2):
        for k7 in range(7):
            for t in range(2):
                A('buffer_load_dwordx4 %s, %s, %s, %s offen offset:%d' % (v(X_ + (k7 * 2 + t) * 4, 4), v(vX) if t == 0 else 'v9', s(S_AX, 4), s(sO1), (7 * hf + k7) * 64))
        for k7 in range(7):
            ks = 7 * hf + k7
            A('s_waitcnt vmcnt(%d)' % (12 - 2 * k7))
            for t in range(2):
                xf = v(X_ + (k7 * 2 + t) * 4, 4)
                for tl in range(2):
                    for x in (1, 2):
                        d = v(Dk(x, t, tl), 4)
                        A('v_mfma_f32_16x16x32_bf16 %s, %s, %s, %s' % (d, xf, WQ(x, tl, ks), '0' if ks == 0 else d))
                    d = v(Dq(t, tl), 4)
                    A('v_mfma_f32_16x16x32_bf16 %s, %s, %s, %s' % (d, WQ(0, tl, ks), xf, '0' if ks == 0 else d))
        A('s_nop 7')
    for tl in range(2):
        b = Dk(1, 0, tl)
        for i in range(8):
            phi(b + i)
            if tl == 1: A('v_cndmask_b32 %s, %s, 0, s[96:97]' % (v(b + i), v(b + i)))
        for i in range(4): A('v_cvt_pk_bf16_f32 %s, %s, %s' % (v(b + i), v(b + 2 * i), v(b + 2 * i + 1)))
        b = Dk(2, 0, tl)
        if tl == 1:
            for i in range(8):
                A('v_cndmask_b32 %s, %s, 0, s[96:97]' % (v(b + i), v(b + i)))
                A('v_cndmask_b32 %s, %s, 1.0, s[98:99]' % (v(b + i), v(b + i)))
        for i in range(4): A('v_cvt_pk_bf16_f32 %s, %s, %s' % (v(b + i), v(b + 2 * i), v(b + 2 * i + 1)))
    for dt in range(2):
        for et in range(2):
            d = v(KV + (dt * 2 + et) * 4, 4)
            A('v_mfma_f32_16x16x32_bf16 %s, %s, %s, %s' % (d, v(Dk(1, 0, dt), 4), v(Dk(2, 0, et), 4), d))
    for i in range(15, -1, -1): A('v_mov_b32 %s, %s' % (v(PQ + 8 + i), v(PQ + i)))
    for t in range(2):
        b = Dq(t, 0)
        for i in range(8):
            phi(b + i)
            if i >= 4: A('v_cndmask_b32 %s, %s, 0, s[100:101]' % (v(b + i), v(b + i)))
        for i in range(4): A('v_cvt_pk_bf16_f32 %s, %s, %s' % (v(PQ + 4 * t + i), v(b + 2 * i), v(b + 2 * i + 1)))
    A('s_add_u32 %s, %s, 1' % (s(sI), s(sI)))
    A('s_add_u32 %s, %s, 28' % (s(sBLK), s(sBLK)))
    A('s_cmp_lt_u32 %s, 64' % s(sBLK))
    A('s_cbranch_scc1 L_a1loop')
    LK = 98304
    A('s_lshl_b32 %s, %s, 12' % (s(sT0), s(sWAVE)))
    A('s_add_u32 %s, %s, %d' % (s(sT0), s(sT0), LK))
    lexpr(A, v(vW), 'v0', [(0, 6, 16)], s(sT0), 'v1')
    for j in range(4): A('ds_write_b128 %s, %s offset:%d' % (v(vW), v(KV + 4 * j, 4), j * 1024))
    A('s_lshl_b32 %s, %s, 10' % (s(sT0), s(sWAVE)))
    lexpr(A, v(vR), 'v0', [(0, 6, 16)], s(sT0), 'v1')
    A('v_add_u32 %s, %d, %s' % (v(vR2), LK, v(vR)))
    A('s_waitcnt lgkmcnt(0)')
    A('s_barrier')
    for j in range(4): A('ds_read_b128 %s, %s offset:%d' % (v(D + 4 * j, 4), v(vR2), j * 4096))
    A('s_waitcnt lgkmcnt(0)')
    for r in range(4):
        A('v_add_f32 %s, %s, %s' % (v(D + r), v(D + r), v(D + 4 + r)))
        A('v_add_f32 %s, %s, %s' % (v(D + 8 + r), v(D + 8 + r), v(D + 12 + r)))
        A('v_add_f32 %s, %s, %s' % (v(D + r), v(D + r), v(D + 8 + r)))
    A('s_lshl_b32 %s, %s, 12' % (s(sT0), s(sA)))
    A('s_add_u32 %s, %s, %d' % (s(sT0), s(sT0), KVP_OFF))
    A('buffer_store_dwordx4 %s, %s, %s, %s offen sc1' % (v(D, 4), v(vR), s(S_WS, 4), s(sT0)))
    A('s_lshl_b32 %s, %s, 6' % (s(sT0), s(sA)))
    A('s_lshl_b32 %s, %s, 2' % (s(sT1), s(sWAVE)))
    A('s_add_u32 %s, %s, %s' % (s(sT0), s(sT0), s(sT1)))
    A('s_add_u32 %s, %s, %d' % (s(sT0), s(sT0), FLG_KV))
    lane0_addr(A, 'v10', s(sT0))
    A('v_mov_b32 v3, 1')
    A('s_waitcnt vmcnt(0)')
    A('buffer_store_dword v3, v10, %s, 0 offen sc1' % s(S_WS, 4))
    A('v_lshrrev_b32 v1, 2, v0')
    A('v_min_u32 v1, 6, v1')
    A('v_lshlrev_b32 v1, 6, v1')
    A('v_and_b32 v2, 3, v0')
    A('v_lshl_add_u32 v10, v2, 2, v1')
    A('s_mul_i32 %s, %s, %d' % (s(sT0), s(sH), 7 * 64))
    A('s_add_u32 %s, %s, %d' % (s(sT0), s(sT0), FLG_KV))
    wait_flags(A, 'v10', s(sT0), '1', 8)
    lexpr(A, v(vG), 'v0', [(0, 6, 16)], 0, 'v1')
    lexpr(A, v(vW), 'v0', [(4, 2, 256)], 12 * 16, 'v1')
    A('s_mul_i32 %s, %s, %d' % (s(sO1), s(sH), 7 * 4096))
    A('s_add_u32 %s, %s, %d' % (s(sO1), s(sO1), KVP_OFF))
    GB = 104
    def gr(q): return (GB + 24 * q) if q < 6 else D
    for q in range(7):
        for j in range(4):
            A('buffer_load_dwordx4 %s, %s, %s, %s offen offset:%d sc1' % (v(gr(q) + 4 * j, 4), v(vG), s(S_WS, 4), s(sO1), j * 1024))
        for dt in range(2):
            A('buffer_load_dwordx4 %s, %s, %s, %s offen offset:%d sc1' % (v(gr(q) + 16 + 4 * dt, 4), v(vW), s(S_WS, 4), s(sO1), (dt * 2 + 1) * 1024))
        A('s_add_u32 %s, %s, 4096' % (s(sO1), s(sO1)))
    A('s_waitcnt vmcnt(0)')
    for q in range(6):
        for i in range(24): A('v_add_f32 %s, %s, %s' % (v(D + i), v(D + i), v(gr(q) + i)))
    for et in range(2):
        for dt in range(2):
            b = D + (dt * 2 + et) * 4
            A('v_cvt_pk_bf16_f32 %s, %s, %s' % (v(KV + 4 * et + 2 * dt), v(b), v(b + 1)))
            A('v_cvt_pk_bf16_f32 %s, %s, %s' % (v(KV + 4 * et + 2 * dt + 1), v(b + 2), v(b + 3)))
    for i in range(4): A('v_cvt_pk_bf16_f32 %s, %s, %s' % (v(KV + 8 + i), v(D + 16 + 2 * i), v(D + 17 + 2 * i)))
    A('s_lshl_b32 %s, %s, 10' % (s(sT0), s(sH)))
    lexpr(A, v(vR), 'v0', [(0, 6, 16)], s(sT0), 'v1')
    A.label('L_a1o')
    A('s_sub_u32 %s, %s, 28' % (s(sBLK), s(sBLK)))
    A('s_lshl_b32 %s, %s, 15' % (s(sO1), s(sBLK)))
    A('s_add_u32 %s, %s, %d' % (s(sO1), s(sO1), OI_OFF))
    A('s_add_u32 %s, %s, 16384' % (s(sO2), s(sO1)))
    for t in range(2):
        b = D + 12 * t
        for j in range(3):
            A('v_mfma_f32_16x16x32_bf16 %s, %s, %s, 0' % (v(b + 4 * j, 4), v(KV + 4 * j, 4), v(PQ + 4 * t, 4)))
    for t in range(2):
        b = D + 12 * t; o = D + 24 + 4 * t
        A('v_add_f32 %s, %s, %s' % (v(b + 8), s(sO3), v(b + 8)))
        A('v_rcp_f32 %s, %s' % (v(b + 8), v(b + 8)))
        for i in range(8):
            A('v_mul_f32 %s, %s, %s' % (v(b + i), v(b + i), v(b + 8)))
            if i >= 4: A('v_cndmask_b32 %s, %s, 0, s[100:101]' % (v(b + i), v(b + i)))
        for i in range(4): A('v_cvt_pk_bf16_f32 %s, %s, %s' % (v(o + i), v(b + 2 * i), v(b + 2 * i + 1)))
        A('buffer_store_dwordx4 %s, %s, %s, %s offen sc1' % (v(o, 4), v(vR), s(S_WS, 4), s(sO1 + t)))
    for i in range(16): A('v_mov_b32 %s, %s' % (v(PQ + i), v(PQ + 8 + i)))
    A('s_sub_u32 %s, %s, 1' % (s(sI), s(sI)))
    A('s_cmp_lg_u32 %s, 0' % s(sI))
    A('s_cbranch_scc1 L_a1o')
    A('s_lshl_b32 %s, %s, 2' % (s(sT0), s(sA)))
    A('s_add_u32 %s, %s, %s' % (s(sT0), s(sT0), s(sWAVE)))
    A('s_lshl_b32 %s, %s, 2' % (s(sT0), s(sT0)))
    A('s_add_u32 %s, %s, %d' % (s(sT0), s(sT0), FLG_O))
    lane0_addr(A, 'v10', s(sT0))
    A('v_mov_b32 v3, 1')
    A('s_waitcnt vmcnt(0)')
    A('buffer_store_dword v3, v10, %s, 0 offen sc1' % s(S_WS, 4))

def phase_a2(A):
    ST = 144
    O_, D = 64, 16
    vG, vW, vR, vR2, vO = 4, 5, 6, 7, 8
    A('s_barrier')
    lexpr(A, v(vG), 'v0', [(3, 3, 896), (0, 3, 16)], 0, 'v1')
    A('s_mul_i32 %s, %s, %d' % (s(sO1), s(sWAVE), 112 * 896))
    A('s_lshl_b32 %s, %s, 7' % (s(sT0), s(sQ)))
    A('s_add_u32 %s, %s, %s' % (s(sO1), s(sO1), s(sT0)))
    for j in range(15):
        A('buffer_load_dwordx4 %s, %s, %s, %s offen' % (v(64 + 4 * j, 4), v(vG), s(S_AO, 4), s(sO1)))
        A('s_add_u32 %s, %s, %d' % (s(sO1), s(sO1), 8 * 896))
    A('s_mul_i32 %s, %s, %d' % (s(sT0), s(sWAVE), 112 * ST))
    lexpr(A, v(vW), 'v0', [(3, 3, ST), (0, 3, 16)], s(sT0), 'v1')
    for j in range(15):
        A('s_waitcnt vmcnt(%d)' % (14 - j))
        A('ds_write_b128 %s, %s offset:%d' % (v(vW), v(64 + 4 * j, 4), j * 8 * ST))
        if j % 6 == 5: A('s_waitcnt lgkmcnt(6)')
    lexpr(A, v(vR), 'v0', [(4, 2, 8 * ST), (2, 2, ST), (0, 2, 16)], 0, 'v1')
    A('s_waitcnt lgkmcnt(0)')
    A('s_barrier')
    n = 0
    for tl in range(4):
        for hh in range(16):
            for t in range(2):
                A('ds_read_b64_tr_b16 %s, %s offset:%d' % (a((tl * 16 + hh) * 4 + 2 * t, 2), v(vR), (28 * hh + 4 * t) * ST + (tl >> 1) * 64 + (tl & 1) * 8))
                n += 1
                if n % 6 == 0: A('s_waitcnt lgkmcnt(6)')
    A('s_lshl_b32 %s, %s, 2' % (s(sSEG), s(sH)))
    A('s_add_u32 %s, %s, %s' % (s(sSEG), s(sSEG), s(sWAVE)))
    A('s_mov_b32 %s, %s' % (s(sT0), s(sSEG)))
    for _ in range(2):
        A('s_sub_u32 %s, %s, 28' % (s(sT1), s(sT0)))
        A('s_cmp_ge_u32 %s, 28' % s(sT0))
        A('s_cselect_b32 %s, %s, %s' % (s(sT0), s(sT1), s(sT0)))
    A('s_lshl_b32 %s, %s, 2' % (s(sT0), s(sT0)))
    A('s_add_u32 %s, %s, %d' % (s(sT0), s(sT0), FLG_O))
    lexpr(A, 'v10', 'v0', [(0, 4, 7 * 16)], 0, 'v1')
    wait_flags(A, 'v10', s(sT0), '1', 8)
    lexpr(A, v(vG), 'v0', [(0, 6, 16)], 0, 'v1')
    A('s_lshl_b32 %s, %s, 15' % (s(sO1), s(sSEG)))
    A('s_add_u32 %s, %s, %d' % (s(sO1), s(sO1), OI_OFF))
    for i in range(32):
        A('buffer_load_dwordx4 %s, %s, %s, %s offen offset:%d sc1' % (v(O_ + 4 * i, 4), v(vG), s(S_WS, 4), s(sO1), (i & 3) * 1024))
        if i & 3 == 3: A('s_add_u32 %s, %s, 4096' % (s(sO1), s(sO1)))
    A('s_lshl_b32 %s, %s, 7' % (s(sT0), s(sQ)))
    lexpr(A, v(vO), 'v0', [(0, 4, 1792), (4, 2, 16)], s(sT0), 'v1')
    A('s_mul_i32 %s, %s, %d' % (s(sO1), s(sSEG), 32 * 1792))
    A('s_add_u32 %s, %s, %d' % (s(sO2), s(sO1), 16 * 1792))
    A('s_waitcnt lgkmcnt(0)')
    for t in range(2):
        for hh in range(16):
            A('s_waitcnt vmcnt(%d)' % (31 - (t * 16 + hh)))
            for tl in range(4):
                d = v(D + (t * 4 + tl) * 4, 4)
                A('v_mfma_f32_16x16x32_bf16 %s, %s, %s, %s' % (d, a((tl * 16 + hh) * 4, 4), v(O_ + (t * 16 + hh) * 4, 4), '0' if hh == 0 else d))
    for t in range(2):
        for aa in range(2):
            b = D + (t * 4 + 2 * aa) * 4; o = 48 + (t * 2 + aa) * 4
            for i in range(4): A('v_cvt_pk_bf16_f32 %s, %s, %s' % (v(o + i), v(b + 2 * i), v(b + 2 * i + 1)))
            A('buffer_store_dwordx4 %s, %s, %s, %s offen offset:%d%s' % (v(o, 4), v(vO), s(S_OUT, 4), s(sO1 + t), aa * 64, OSC()))
```
